```python
import torch

def _softmax(x, axis=-1):
    return torch.softmax(x, dim=axis)
def _gelu(x):
    return torch.nn.functional.gelu(x, approximate="tanh")
def _silu(x):
    return torch.nn.functional.silu(x)
def _sigmoid(x):
    return torch.sigmoid(x)
def _layernorm(x, axis=-1, eps=1e-5):
    m = x.mean(dim=axis, keepdim=True)
    v = x.var(dim=axis, keepdim=True, unbiased=False)
    return (x - m) / torch.sqrt(v + eps)
def _scatter_add(tgt, idx, src, axis=0):
    return tgt.clone().index_add_(axis, idx, src)
def _segment_sum(src, seg, n):
    out = torch.zeros((n,) + src.shape[1:], dtype=src.dtype)
    return out.index_add_(0, seg, src)
def _pad(x, pw):
    flat = tuple(v for pair in reversed(pw) for v in pair)
    return torch.nn.functional.pad(x, flat)

kernel_name = 'concat_heads__mha_block__ssm_conv_s4d__prompt'

def setup_inputs():

    _w = (lambda a: (lambda t: t.to(torch.bfloat16) if t.is_floating_point() else t)(torch.as_tensor(a)))
    def _A_setup():
        B, S, D, H = 1, 2048, 448, 16
        return {
            "x": _w((lambda *s: torch.randn(*s, dtype=torch.bfloat16) * 0.2)(B, S, D)),
            "wqkv": _w((lambda *s: torch.randn(*s, dtype=torch.bfloat16) * 0.2)(D, 3 * D)),
            "wo": _w((lambda *s: torch.randn(*s, dtype=torch.bfloat16) * 0.05)(D, D)),
        }
    _A_in = _A_setup()

    def _B_setup():
        Bsz, L, D, N = 1, 2048, 448, 256
        return {
            "u": _w((lambda *s: torch.randn(*s, dtype=torch.bfloat16) * 0.05)(Bsz, L, D)),
            "log_A_real": _w((lambda *s: torch.randn(*s, dtype=torch.bfloat16) * 6.4)(D, N) * 0.5),
            "A_imag": _w((lambda *s: torch.randn(*s, dtype=torch.bfloat16) * 0.1)(D, N) * 3.14),
            "C_real": _w((lambda *s: torch.randn(*s, dtype=torch.bfloat16) * 0.4)(D, N) / N ** 0.5),
            "C_imag": _w((lambda *s: torch.randn(*s, dtype=torch.bfloat16) * 0.4)(D, N) / N ** 0.5),
            "log_dt": _w((lambda *s: torch.randn(*s, dtype=torch.bfloat16) * 0.1)(D) * 0.5 - 4.0),
            "D_skip": _w((lambda *s: torch.randn(*s, dtype=torch.bfloat16) * 0.1)(D)),
        }
    _B_in = _B_setup()

    return {
        "A_x": _A_in["x"],
        "A_wqkv": _A_in["wqkv"],
        "A_wo": _A_in["wo"],
        "B_u": _B_in["u"],
        "B_log_A_real": _B_in["log_A_real"],
        "B_A_imag": _B_in["A_imag"],
        "B_C_real": _B_in["C_real"],
        "B_C_imag": _B_in["C_imag"],
        "B_log_dt": _B_in["log_dt"],
        "B_D_skip": _B_in["D_skip"],
    }

def reference(A_x, A_wqkv, A_wo, B_u, B_log_A_real, B_A_imag, B_C_real, B_C_imag, B_log_dt, B_D_skip):
    def _A_ref(x, wqkv, wo):
        B, S, D = x.shape
        H = 16
        Dh = D // H
        qkv = (lambda x, *d: x.permute(*d))((x @ wqkv).reshape(B, S, 3, H, Dh), 2, 0, 3, 1, 4)
        q, k, v = qkv[0], qkv[1], qkv[2]
        scores = torch.einsum("bhqd,bhkd->bhqk", q, k) * (Dh ** -0.5)
        p = _softmax(scores, axis=-1)
        o = torch.einsum("bhqk,bhkd->bhqd", p, v)
        return (lambda x, *d: x.permute(*d))(o, 0, 2, 1, 3).reshape(B, S, D) @ wo

    def _B_ref(u, log_A_real, A_imag, C_real, C_imag, log_dt, D_skip):
        L = u.shape[1]
        dt = torch.exp(log_dt)
        A = -torch.exp(log_A_real) + 1j * A_imag
        C = (C_real + 1j * C_imag) * dt[:, None]
        pos = (lambda x, dt: x.to(dt))(torch.arange(L), log_dt.dtype)
        P = torch.exp((A * dt[:, None])[:, :, None] * pos[None, None, :])
        K = 2.0 * torch.einsum("dn,dnl->dl", C, P).real
        L2 = 2 * L
        u_t = (lambda x, *d: x.permute(*d))(u, 0, 2, 1)
        Kf = (lambda x, *a, **k: torch.fft.rfft(x.float(), *a, **k))(K, L2)
        Uf = (lambda x, *a, **k: torch.fft.rfft(x.float(), *a, **k))(u_t, L2)
        y = (lambda x, *a, **k: torch.fft.irfft(x, *a, **k).to(torch.bfloat16))(Uf * Kf[None, :, :], L2)[:, :, :L]
        y = (lambda x, *d: x.permute(*d))(y, 0, 2, 1)
        return y + u * D_skip[None, None, :]

    a = _A_ref(A_x, A_wqkv, A_wo)
    b = _B_ref(B_u, B_log_A_real, B_A_imag, B_C_real, B_C_imag, B_log_dt, B_D_skip)
    return torch.concatenate([a, b], axis=-1)
```

```python
import re

def v(n, c=1):
    return f'v{n}' if c == 1 else f'v[{n}:{n+c-1}]'
def s(n, c=1):
    return f's{n}' if c == 1 else f's[{n}:{n+c-1}]'

_REG = re.compile(r'^(-|abs\(|\|)?([vsa])(?:(\d+)|\[(\d+):(\d+)\])\)?\|?$')

def regs_of(tok):
    tok = tok.strip()
    if tok.startswith('neg(') and tok.endswith(')'): tok = tok[4:-1]
    if tok in ('vcc',): return [('s', 'vcc_lo'), ('s', 'vcc_hi')]
    if tok in ('vcc_lo', 'vcc_hi'): return [('s', tok)]
    if tok == 'exec': return [('s', 'exec_lo'), ('s', 'exec_hi')]
    if tok in ('exec_lo', 'exec_hi'): return [('s', tok)]
    if tok == 'm0': return [('s', 'm0')]
    m = _REG.match(tok)
    if not m: return []
    k = m.group(2)
    if m.group(3) is not None: return [(k, int(m.group(3)))]
    return [(k, i) for i in range(int(m.group(4)), int(m.group(5)) + 1)]

TRANS = ('v_exp_', 'v_log_', 'v_rcp_', 'v_rsq_', 'v_sqrt_', 'v_sin_', 'v_cos_')

class Ins:
    __slots__ = ('text', 'op', 'ops', 'mods', 'kind', 'dst', 'src', 'srcC', 'passes', 'label', 'target', 'ws')
    def __init__(self, text):
        self.text = text
        self.label = None; self.target = None
        t = text.split(';')[0].strip()
        self.dst = []; self.src = []; self.srcC = []; self.passes = 0; self.kind = 'other'; self.ws = 1
        if not t or t.startswith('.'):
            self.op = None; self.kind = 'none'; self.ws = 0; return
        if t.endswith(':'):
            self.op = None; self.kind = 'label'; self.label = t[:-1]; self.ws = 0; return
        parts = t.split(None, 1)
        self.op = op = parts[0]
        rest = parts[1] if len(parts) > 1 else ''
        ops = []; cur = ''; depth = 0
        for ch in rest:
            if ch in '[(': depth += 1
            if ch in '])': depth -= 1
            if ch == ',' and depth == 0:
                ops.append(cur.strip()); cur = ''
            else: cur += ch
        if cur.strip(): ops.append(cur.strip())
        mods = ''
        if ops:
            last = ops[-1].split(None, 1)
            ops[-1] = last[0]
            mods = last[1] if len(last) > 1 else ''
        self.ops = ops; self.mods = mods
        R = [regs_of(o) for o in ops]
        flat = lambda L: [x for l in L for x in l]
        if op.startswith('v_mfma'):
            self.kind = 'mfma'
            self.dst = R[0]; self.src = R[1] + R[2]; self.srcC = R[3]
            if '32x32x16' in op or '32x32x8' in op: self.passes = 8
            elif '16x16x32' in op or '16x16x16' in op: self.passes = 4
            else: raise ValueError('unknown mfma ' + op)
        elif op.startswith('v_cmpx'):
            self.kind = 'valu'; self.dst = R[0] + regs_of('exec'); self.src = flat(R[1:])
        elif op.startswith('v_permlane') and 'swap' in op:
            self.kind = 'valu'; self.dst = R[0] + R[1]; self.src = R[0] + R[1]
        elif op.startswith('v_'):
            self.kind = 'valu'
            if op == 'v_nop': return
            self.dst = list(R[0]); self.src = flat(R[1:])
            if '_co_' in op or op.startswith('v_div_scale') or op.startswith('v_mad_u64'):
                self.dst = R[0] + R[1]; self.src = flat(R[2:])
            if op.startswith(('v_fmac', 'v_pk_fmac', 'v_dot2c', 'v_writelane')) or 'dpp' in op or 'row_' in mods or 'wave_' in mods or 'quad_perm' in mods or 'PRESERVE' in mods:
                self.src = self.src + R[0]
            if op.startswith('v_cndmask') and len(ops) == 3: self.src += regs_of('vcc')
        elif op.startswith('ds_'):
            self.kind = 'ds'
            if op.startswith(('ds_read', 'ds_bpermute', 'ds_permute', 'ds_swizzle')) or '_rtn' in op:
                self.dst = R[0]; self.src = flat(R[1:])
            else:
                self.src = flat(R)
        elif op.startswith(('buffer_', 'global_')):
            self.kind = 'vmem'
            ml = mods.split()
            if op in ('buffer_inv', 'buffer_wbl2'): return
            if 'load' in op and 'lds' not in ml and 'lds' not in op:
                self.dst = R[0]; self.src = flat(R[1:])
            elif 'atomic' in op and 'sc0' in ml and op.startswith('buffer_'):
                self.dst = R[0]; self.src = flat(R)
            else:
                self.src = flat(R)
                if 'lds' in ml or 'lds' in op: self.src += regs_of('m0')
        elif op.startswith('s_'):
            self.kind = 'salu'
            if op == 's_nop':
                self.ws = int(ops[0], 0) + 1; return
            if op.startswith(('s_branch', 's_cbranch')):
                self.kind = 'branch'; self.target = ops[0]; return
            if op.startswith(('s_waitcnt', 's_barrier', 's_endpgm', 's_setprio', 's_sleep')): return
            if op.startswith('s_cmp') or op.startswith('s_bitcmp'):
                self.src = flat(R); return
            if op.startswith(('s_load', 's_memtime', 's_memrealtime', 's_buffer_load')):
                self.kind = 'smem'
            self.dst = list(R[0]) if R else []; self.src = flat(R[1:])
            if 'saveexec' in op: self.dst += regs_of('exec')

def is_dpp(i):
    return i.kind == 'valu' and ('dpp' in i.op or 'row_' in i.mods or 'wave_' in i.mods or 'quad_perm' in i.mods)

def need_between(p, c):
    n = 0
    pd = set(p.dst)
    if p.kind == 'valu':
        pv = {r for r in pd if r[0] in 'va'}
        ps = {r for r in pd if r[0] == 's'}
        if c.kind == 'mfma' and pv & set(c.src + c.srcC): n = max(n, 2)
        if c.kind == 'mfma' and ('s', 'exec_lo') in ps: n = max(n, 4)
        if c.kind == 'valu':
            cs = set(c.src)
            if p.op.startswith(TRANS) and pv & cs and not c.op.startswith(TRANS): n = max(n, 1)
            if p.op.startswith(TRANS) and pv & cs: n = max(n, 1)
            if c.op.startswith(('v_readlane', 'v_readfirstlane')) and pv & cs: n = max(n, 1)
            if c.op.startswith('v_permlane') and pv & cs: n = max(n, 2)
            if is_dpp(c) and pv & cs: n = max(n, 2)
            if is_dpp(c) and ('s', 'exec_lo') in ps: n = max(n, 5)
            if ps & cs:
                n = max(n, 4 if c.op.startswith(('v_readlane', 'v_writelane', 'v_div_fmas')) else 2)
            if ('s', 'exec_lo') in ps and c.op.startswith(('v_readlane', 'v_readfirstlane', 'v_writelane', 'v_permlane')): n = max(n, 4)
            if ('sdwa' in p.op or 'op_sel' in p.mods or 'dst_sel' in p.mods) and not p.op.startswith('v_pk') and pv & (cs | set(c.dst)): n = max(n, 1)
        if c.kind == 'vmem' and ps & set(c.src): n = max(n, 5)
        if c.kind in ('salu', 'branch', 'smem') and ps & set(c.src): n = max(n, 1)
    if p.kind == 'mfma':
        big = {2: 5, 4: 8, 8: 12, 16: 20}[p.passes]
        ovl = {2: 4, 4: 6, 8: 10, 16: 18}[p.passes]
        war = {2: 1, 4: 3, 8: 7, 16: 15}[p.passes]
        if c.kind == 'mfma':
            if pd & set(c.src): n = max(n, big)
            if pd & set(c.srcC):
                if not (c.srcC == p.dst and c.passes == p.passes): n = max(n, ovl)
            if pd & set(c.dst) and not (c.dst == p.dst and c.passes == p.passes): n = max(n, ovl)
        elif c.kind in ('valu', 'vmem', 'ds'):
            if pd & (set(c.src) | set(c.dst)): n = max(n, big)
            if c.kind == 'valu' and set(p.srcC) & set(c.dst): n = max(n, war)
    if p.kind == 'salu' and ('s', 'm0') in pd and c.kind in ('vmem', 'ds') and ('s', 'm0') in c.src: n = max(n, 1)
    if p.kind == 'vmem' and 'store' in p.op and ('x3' in p.op or 'x4' in p.op):
        data = set(regs_of(p.ops[0] if p.op.startswith('buffer_') else p.ops[1]))
        if data & set(c.dst): n = max(n, 2 if c.kind == 'valu' else 1)
    return n

MAXD = 21

class Asm:
    def __init__(self):
        self.lines = []
    def __call__(self, text):
        for l in text.split('\n'):
            l = l.strip()
            if l: self.lines.append(l)
    def label(self, name): self.lines.append(name + ':')
    def extend(self, other): self.lines.extend(other.lines)

    @staticmethod
    def _deficit(hist, c):
        d = 0; need = 0
        for p in reversed(hist):
            if p.ws == 0: continue
            if d >= MAXD: break
            n = need_between(p, c)
            if n - d > need: need = n - d
            d += p.ws
        return need

    def finalize(self, verbose=False):
        ins = [Ins(l) for l in self.lines]
        out = []
        nins = 0
        for c in ins:
            if c.ws > 0:
                hist = []
                for p in reversed(out[-60:]):
                    if p.op in ('s_branch', 's_endpgm', 's_setpc_b64'): break
                    hist.append(p)
                hist.reverse()
                need = self._deficit(hist, c)
                while need > 0:
                    k = min(need, 16)
                    out.append(Ins(f's_nop {k-1}')); need -= k; nins += 1
            out.append(c)
        changed = True
        while changed:
            changed = False
            lab = {x.label: i for i, x in enumerate(out) if x.kind == 'label'}
            for i, b in enumerate(out):
                if b.kind != 'branch': continue
                t = lab[b.target]
                hist = []
                for p in reversed(out[max(0, i-60):i+1]):
                    if p is not b and p.op in ('s_branch', 's_endpgm'): break
                    hist.append(p)
                hist.reverse()
                worst = 0; d = 0
                cur = list(hist)
                for c in out[t:t+60]:
                    if c.ws == 0: continue
                    if d >= MAXD: break
                    need = self._deficit(cur, c)
                    worst = max(worst, need)
                    cur.append(c); d += c.ws
                    if c.op in ('s_branch', 's_endpgm'): break
                if worst > 0:
                    if verbose: print(f'hazard across branch {b.text}: +{worst}')
                    k = min(worst, 16)
                    out.insert(i, Ins(f's_nop {k-1}')); nins += 1
                    changed = True
                    break
        if verbose: print('inserted nops:', nins)
        res = []
        for x in out:
            res.append(x.text if x.kind == 'label' or x.text.startswith('.') else '  ' + x.text)
        return '\n'.join(res) + '\n'
```

```python
import sys, math, struct
sys.path.insert(0, 'work')
from asmgen import *

NAME = 'concat_heads__mha_block__ssm_conv_s4d__prompt'
S = 2048; D = 448; H = 16; DH = 28
TILEB = 56 * 512
WS_Q = 0
WS_K = WS_Q + 64 * TILEB
WS_V = WS_K + 64 * TILEB
WS_O = WS_V + 64 * TILEB
WS_END = WS_O + 64 * 32768
WS_SIZE = 268435456

def f32bits(x): return struct.unpack('<I', struct.pack('<f', x))[0]
QSCALE = math.log2(math.e) / math.sqrt(DH)

def srd(a, base_s, ptr_s, nbytes):
    a(f's_mov_b32 s{base_s}, s{ptr_s}')
    a(f's_and_b32 s{base_s+1}, s{ptr_s+1}, 0xffff')
    a(f's_mov_b32 s{base_s+2}, {nbytes}')
    a(f's_mov_b32 s{base_s+3}, 0x20000')

def k_qkv(a):
    NS = 6; SLOT = 16384; DEPTH = NS - 1
    a('''
    s_cmp_ge_u32 s2, 256
    s_cbranch_scc1 Q_end
    s_load_dwordx4 s[4:7], s[0:1], 0       ; x, wqkv
    s_load_dwordx2 s[20:21], s[0:1], 96    ; ws
    v_and_b32 v1, 63, v0                   ; lane
    v_lshrrev_b32 v2, 6, v0
    v_readfirstlane_b32 s3, v2             ; wave
    s_and_b32 s22, s2, 7
    s_lshr_b32 s23, s2, 3                  ; m 0..31
    s_cmp_ge_u32 s23, 28
    s_cbranch_scc1 Q_end
    s_mul_i32 s24, s23, 37
    s_lshr_b32 s24, s24, 8                 ; m / 7
    s_mul_i32 s25, s24, 7
    s_sub_u32 s25, s23, s25                ; c = m % 7
    s_lshl_b32 s26, s22, 2
    s_add_u32 s26, s26, s24
    s_lshl_b32 s27, s24, 1
    s_add_u32 s27, s27, s25                ; rho = c + 2*(rb%4)  (0..12)
    s_sub_u32 s28, s27, 7
    s_cmp_ge_u32 s27, 7
    s_cselect_b32 s27, s28, s27
    s_waitcnt lgkmcnt(0)
    ''')
    srd(a, 8, 4, S * D * 2)
    srd(a, 12, 6, D * 3 * D * 2)
    srd(a, 16, 20, WS_END)
    a('''
    s_cmp_lt_u32 s3, 4
    s_cbranch_scc1 Q_comp
    ''')
    a('''
    s_sub_u32 s29, s3, 4                   ; lw
    v_lshrrev_b32 v3, 3, v1                ; r8
    v_and_b32 v4, 7, v1                    ; p
    s_lshl_b32 s30, s29, 4
    v_add_u32 v5, s30, v3
    v_lshrrev_b32 v6, 1, v5
    v_and_b32 v6, 7, v6
    v_xor_b32 v6, v6, v4
    v_lshlrev_b32 v6, 4, v6
    s_lshl_b32 s31, s26, 6
    v_add_u32 v7, s31, v5
    v_mul_u32_u24 v7, 896, v7
    v_add_u32 v10, v7, v6                  ; x voffset e=0
    v_xor_b32 v6, 64, v6
    v_add_u32 v11, v7, v6
    v_add_u32 v11, 7168, v11               ; x voffset e=1
    v_lshrrev_b32 v6, 1, v5
    v_and_b32 v6, 1, v6
    v_lshlrev_b32 v6, 2, v6
    v_xor_b32 v6, v6, v4
    v_lshlrev_b32 v6, 4, v6
    v_mul_u32_u24 v7, 2688, v5
    v_add_u32 v12, v7, v6
    s_lshl_b32 s31, s25, 7
    v_add_u32 v12, s31, v12                ; W voffset e=0
    v_add_u32 v13, 21504, v12
    s_lshl_b32 s32, s29, 11
    ''')
    a('s_mov_b32 s33, s27')
    for i in range(7):
        a(f'''
        s_lshl_b32 s{40+i}, s33, 7
        s_mul_i32 s{48+i}, s33, {64*2688}
        s_add_u32 s33, s33, 1
        s_cmp_eq_u32 s33, 7
        s_cselect_b32 s33, 0, s33
        ''')
    TYPE_ORDER = [1, 2, 0]
    stages = []
    for i in range(7): stages.append([('x', i), (TYPE_ORDER[0], i)])
    rest = [(TYPE_ORDER[1], i) for i in range(7)] + [(TYPE_ORDER[2], i) for i in range(7)]
    for i in range(7): stages.append(rest[2*i:2*i+2])
    NST = len(stages)
    def issue(j):
        for half, (kind, i) in enumerate(stages[j]):
            base = (j % NS) * SLOT + half * 8192
            for e in range(2):
                a(f's_add_u32 m0, s32, {base + e*1024}')
                if kind == 'x':
                    a(f'buffer_load_dwordx4 v{10+e}, s[8:11], s{40+i} offen lds')
                else:
                    if e == 0: a(f's_add_u32 s34, s{48+i}, {kind*896}')
                    a(f'buffer_load_dwordx4 v{12+e}, s[12:15], s34 offen lds')
    for j in range(DEPTH): issue(j)
    for j in range(NST):
        later = min(NST, j + DEPTH) - (j + 1)
        a(f's_waitcnt vmcnt({4*later})')
        a('s_barrier')
        if j + DEPTH < NST: issue(j + DEPTH)
    a('s_branch Q_end')
    a.label('Q_comp')
    XF = 64; ACC = [176, 192]; WB = [[208 + 4*i for i in range(8)], [8 + 4*i for i in range(8)]]
    a('''
    s_and_b32 s29, s3, 1                   ; rt
    s_lshr_b32 s30, s3, 1                  ; cg
    v_and_b32 v3, 31, v1                   ; r
    v_lshrrev_b32 v4, 5, v1                ; h
    s_lshl_b32 s31, s29, 5
    v_add_u32 v5, s31, v3
    v_lshrrev_b32 v6, 1, v5
    v_and_b32 v6, 7, v6                    ; sigma
    v_lshlrev_b32 v7, 7, v5                ; row*128
    ''')
    for st in range(4):
        a(f'''
        v_add_u32 v{40+st}, {2*st}, v4
        v_xor_b32 v{40+st}, v{40+st}, v6
        v_lshl_add_u32 v{40+st}, v{40+st}, 4, v7
        v_add_u32 v{44+st}, {3*SLOT}, v{40+st}
        ''')
    a(f'''
    v_and_b32 v6, 3, v1                    ; c4
    v_lshlrev_b32 v6, 3, v6
    v_bfe_u32 v7, v1, 4, 1                 ; g
    v_lshl_add_u32 v6, v7, 5, v6
    s_lshl_b32 s31, s30, 6
    v_add_u32 v6, s31, v6
    v_bfe_u32 v7, v1, 3, 1                 ; (r4>>1)&1
    v_lshlrev_b32 v7, 6, v7
    v_xor_b32 v6, v6, v7
    v_bfe_u32 v7, v1, 2, 2                 ; r4
    v_lshl_add_u32 v7, v4, 3, v7
    v_lshl_add_u32 v48, v7, 7, v6
    v_add_u32 v49, {3*SLOT}, v48
    s_lshl_b32 s31, s26, 1
    s_add_u32 s31, s31, s29
    s_mul_i32 s31, s31, {TILEB}
    s_lshl_b32 s33, s25, 3
    s_lshl_b32 s34, s30, 2
    s_add_u32 s33, s33, s34
    s_lshl_b32 s34, s33, 9
    s_add_u32 s34, s34, s31
    v_lshlrev_b32 v50, 4, v1
    v_add_u32 v50, s34, v50
    s_lshl_b32 s34, s33, 7
    s_add_u32 s34, s34, s31
    v_mul_u32_u24 v51, 7168, v4
    v_lshl_add_u32 v51, v3, 4, v51
    v_add_u32 v51, s34, v51
    s_mov_b32 s35, {f32bits(QSCALE)}
    ''')
    def reads(j):
        slot = j % NS
        hi = slot >= 3
        sb = (slot - 3 * hi) * SLOT
        n = 0
        for half, (kind, i) in enumerate(stages[j]):
            base = sb + half * 8192
            if kind == 'x':
                for st in range(4):
                    a(f'ds_read_b128 {v(XF + 16*i + 4*st, 4)}, v{40 + 4*hi + st} offset:{base}')
            else:
                for st in range(4):
                    r = WB[j % 2][n]; n += 1
                    for e in range(2):
                        a(f'ds_read_b64_tr_b16 {v(r + 2*e, 2)}, v{48 + hi} offset:{base + (16*st + 4*e)*128}')
    started = set()
    def epilogue(kind, acc):
        T = 52
        if kind == 0:
            for r in range(16): a(f'v_mul_f32 v{acc+r}, s35, v{acc+r}')
        for r in range(8):
            a(f'v_cvt_pk_bf16_f32 v{T+r}, v{acc+2*r}, v{acc+2*r+1}')
        if kind == 2:
            a(f's_mov_b32 s36, {WS_V}')
            a(f'buffer_store_dwordx4 {v(T,4)}, v51, s[16:19], s36 offen')
            a(f's_mov_b32 s36, {WS_V + 2*7168}')
            a(f'buffer_store_dwordx4 {v(T+4,4)}, v51, s[16:19], s36 offen')
        else:
            for q in range(2):
                a(f'v_permlane32_swap_b32 v{T+4*q}, v{T+4*q+2}')
                a(f'v_permlane32_swap_b32 v{T+4*q+1}, v{T+4*q+3}')
            a(f's_mov_b32 s36, {WS_Q if kind == 0 else WS_K}')
            a(f'buffer_store_dwordx4 {v(T,4)}, v50, s[16:19], s36 offen')
            a(f'buffer_store_dwordx4 {v(T+4,4)}, v50, s[16:19], s36 offen offset:1024')
    pending = []
    def mfmas(j):
        n = 0
        done = []
        for half, (kind, i) in enumerate(stages[j]):
            if kind == 'x': continue
            acc = ACC[TYPE_ORDER.index(kind) % 2]
            for st in range(4):
                w = WB[j % 2][n]; n += 1
                x = XF + 16*i + 4*st
                c = v(acc, 16) if kind in started else '0'
                started.add(kind)
                if kind == 2: a(f'v_mfma_f32_32x32x16_bf16 {v(acc,16)}, {v(x,4)}, {v(w,4)}, {c}')
                else:         a(f'v_mfma_f32_32x32x16_bf16 {v(acc,16)}, {v(w,4)}, {v(x,4)}, {c}')
            if i == 6: done.append((kind, acc))
        return done
    for j in range(NST):
        a('s_barrier')
        reads(j)
        if j > 0:
            for e in pending: epilogue(*e)
            pending = mfmas(j - 1)
        a('s_waitcnt lgkmcnt(0)')
    for e in pending: epilogue(*e)
    pending = mfmas(NST - 1)
    for e in pending: epilogue(*e)
    a.label('Q_end')
    a('s_endpgm')


def k_att(a):
    NB = 4
    QF = 16
    OA = 32
    SB = 64
    PB = 96
    KB = 112
    VB = KB + 8*NB
    a(f"""
    s_cmp_ge_u32 s2, 256
    s_cbranch_scc1 A_end
    s_load_dwordx2 s[20:21], s[0:1], 96    ; ws
    v_and_b32 v1, 63, v0                   ; lane
    v_lshrrev_b32 v2, 6, v0
    v_readfirstlane_b32 s3, v2             ; wave
    s_and_b32 s22, s2, 7
    s_lshl_b32 s22, s22, 1
    s_bfe_u32 s23, s2, 0x10003
    s_add_u32 s22, s22, s23                ; head
    s_lshr_b32 s23, s2, 4                  ; rbq
    s_and_b32 s24, s3, 1                   ; qg
    s_lshr_b32 s25, s3, 1                  ; kq
    s_mul_i32 s26, s22, 7
    s_lshr_b32 s26, s26, 1
    s_lshl_b32 s26, s26, 9                 ; chi0*512
    v_lshlrev_b32 v3, 4, v1
    v_add_u32 v3, s26, v3                  ; Q/K voffset
    v_and_b32 v5, 31, v1                   ; m
    v_lshrrev_b32 v6, 5, v1                ; h
    v_mul_u32_u24 v4, 7168, v6
    v_lshl_add_u32 v4, v5, 4, v4
    s_mul_i32 s27, s22, 448
    s_add_u32 s27, s27, {WS_V - WS_K}
    v_add_u32 v4, s27, v4
    v_add_u32 v7, 14336, v4                ; V voffset f1
    s_mov_b32 s40, 0x0fffffff
    s_mov_b32 s41, 0x0fffffff
    s_lshl_b32 s28, s23, 2
    s_lshl_b32 s29, s24, 1
    s_add_u32 s28, s28, s29
    s_mul_i32 s29, s28, {TILEB}
    s_add_u32 s30, s29, {TILEB}
    s_lshl_b32 s31, s25, 4
    s_waitcnt lgkmcnt(0)
    """)
    srd(a, 16, 20, WS_END)
    a(f"""
    buffer_load_dwordx4 {v(QF,4)}, v3, s[16:19], s29 offen
    buffer_load_dwordx4 {v(QF+4,4)}, v3, s[16:19], s29 offen offset:1024
    buffer_load_dwordx4 {v(QF+8,4)}, v3, s[16:19], s30 offen
    buffer_load_dwordx4 {v(QF+12,4)}, v3, s[16:19], s30 offen offset:1024
    """)
    for r in range(8*NB): a(f'v_mov_b32 v{VB+r}, 0x3f803f80')
    def nextoff():
        a(f"""
        s_mov_b32 s34, s33
        s_add_u32 s35, s32, s23
        s_and_b32 s35, s35, 15
        s_add_u32 s35, s35, s31
        s_mul_i32 s35, s35, {TILEB}
        s_add_u32 s35, s35, {WS_K}
        s_cmp_lt_u32 s32, 16
        s_cselect_b32 s33, s35, {WS_END}
        s_add_u32 s32, s32, 1
        """)
    def loadK(n):
        a(f'buffer_load_dwordx4 {v(KB+8*n,4)}, v3, s[16:19], s33 offen')
        a(f'buffer_load_dwordx4 {v(KB+8*n+4,4)}, v3, s[16:19], s33 offen offset:1024')
    def loadV(n):
        a('s_mov_b64 exec, s[40:41]')
        a(f'buffer_load_dwordx4 {v(VB+8*n,4)}, v4, s[16:19], s34 offen')
        a(f'buffer_load_dwordx4 {v(VB+8*n+4,4)}, v7, s[16:19], s34 offen')
        a('s_mov_b64 exec, -1')
    a('s_mov_b32 s32, 0\ns_mov_b32 s33, 0')
    for j in range(-NB, 0):
        nextoff(); loadK((j + NB) % NB)
        if j >= 1 - NB: loadV((j - 1 + NB) % NB)
    for r in range(32): a(f'v_mov_b32 v{OA+r}, 0')
    for r in range(16): a(f'v_mov_b32 v{PB+r}, 0')
    nout = 2 + 4*(NB-1)
    a(f"""
    s_and_b32 s36, s22, 1
    s_cmp_eq_u32 s36, 0
    s_cselect_b32 s43, -1, 0
    s_mov_b32 s42, 0
    s_cselect_b32 s44, 0, -1
    s_mov_b32 s45, 0
    s_waitcnt vmcnt({nout})
    s_mov_b64 exec, s[42:43]
    v_mov_b32 v{QF+6}, 0
    v_mov_b32 v{QF+7}, 0
    v_mov_b32 v{QF+14}, 0
    v_mov_b32 v{QF+15}, 0
    s_mov_b64 exec, s[44:45]
    v_mov_b32 v{QF+0}, 0
    v_mov_b32 v{QF+1}, 0
    v_mov_b32 v{QF+8}, 0
    v_mov_b32 v{QF+9}, 0
    s_mov_b64 exec, -1
    s_waitcnt vmcnt({nout-2})
    v_mfma_f32_32x32x16_bf16 {v(SB,16)}, {v(KB,4)}, {v(QF,4)}, 0
    v_mfma_f32_32x32x16_bf16 {v(SB,16)}, {v(KB+4,4)}, {v(QF+4,4)}, {v(SB,16)}
    s_mov_b32 s37, 0
    s_nop 9
    """)
    a('.p2align 6')
    a.label('A_loop')
    for u in range(2*NB):
        t = u % 2
        kn = ((u + 1) // 2) % NB
        vn = ((u - 1) // 2) % NB
        Sn = SB + 16*((u+1) % 2); Sc = SB + 16*(u % 2)
        Pc = PB + 8*(u % 2); Pp = PB + 8*((u+1) % 2)
        Qn = QF + 8*(1-t); On = OA + 16*(1-t)
        if u % 2 == 1:
            j = (u - 1) // 2
            nextoff(); loadK(j % NB); loadV((j - 1) % NB)
            a(f's_waitcnt vmcnt({4*(NB-1)})')
        M = [f'v_mfma_f32_32x32x16_bf16 {v(Sn,16)}, {v(KB+8*kn,4)}, {v(Qn,4)}, 0',
             f'v_mfma_f32_32x32x16_bf16 {v(Sn,16)}, {v(KB+8*kn+4,4)}, {v(Qn+4,4)}, {v(Sn,16)}',
             f'v_mfma_f32_32x32x16_bf16 {v(On,16)}, {v(VB+8*vn,4)}, {v(Pp,4)}, {v(On,16)}',
             f'v_mfma_f32_32x32x16_bf16 {v(On,16)}, {v(VB+8*vn+4,4)}, {v(Pp+4,4)}, {v(On,16)}']
        for g in range(4):
            a(M[g])
            for e in range(4): a(f'v_exp_f32 v{Sc+4*g+e}, v{Sc+4*g+e}')
            a(f'v_cvt_pk_bf16_f32 v{Pc+2*g}, v{Sc+4*g}, v{Sc+4*g+1}')
            a(f'v_cvt_pk_bf16_f32 v{Pc+2*g+1}, v{Sc+4*g+2}, v{Sc+4*g+3}')
    a(f"""
    s_add_u32 s37, s37, 1
    s_cmp_lt_u32 s37, {16//NB}
    s_cbranch_scc1 A_loop
    """)
    a(f'v_mfma_f32_32x32x16_bf16 {v(OA+16,16)}, {v(VB+8*(NB-1),4)}, {v(PB+8,4)}, {v(OA+16,16)}')
    a(f'v_mfma_f32_32x32x16_bf16 {v(OA+16,16)}, {v(VB+8*(NB-1)+4,4)}, {v(PB+12,4)}, {v(OA+16,16)}')
    a(f"""
    s_lshl_b32 s36, s24, 15
    s_lshl_b32 s38, s25, 11
    s_add_u32 s38, s38, s36
    v_lshlrev_b32 v8, 4, v1
    v_add_u32 v9, s38, v8
    s_lshl_b32 s38, s25, 13
    s_add_u32 s38, s38, s36
    v_add_u32 v10, s38, v8
    s_or_b32 s38, s25, 1
    s_lshl_b32 s38, s38, 13
    s_add_u32 s38, s38, s36
    s_add_u32 s38, s38, {1024 + 512}
    v_lshlrev_b32 v11, 4, v5
    v_add_u32 v11, s38, v11
    """)
    for own in range(4):
        for q in range(2):
            a(f'ds_write_b128 v9, {v(OA + 8*own + 4*q, 4)} offset:{own*8192 + q*1024}')
    a('s_waitcnt lgkmcnt(0)\ns_barrier')
    R = 64
    for src in range(4):
        a(f'ds_read_b32 v{12+src}, v11 offset:{src*2048}')
    for src in range(4):
        for q in range(2):
            a(f'ds_read_b128 {v(R + 8*src + 4*q, 4)}, v10 offset:{src*2048 + q*1024}')
    a(f"""
    s_and_b32 s36, s25, 1
    s_cmp_eq_u32 s36, 1
    s_cselect_b32 s43, -1, 0
    s_mov_b32 s42, 0
    s_lshr_b32 s38, s25, 1
    s_add_u32 s38, s38, s28
    s_lshl_b32 s38, s38, 15
    s_lshl_b32 s39, s22, 11
    s_add_u32 s38, s38, s39
    s_lshl_b32 s39, s36, 10
    s_add_u32 s38, s38, s39
    s_add_u32 s38, s38, {WS_O}
    s_waitcnt lgkmcnt(8)
    v_add_f32 v12, v12, v13
    v_add_f32 v14, v14, v15
    v_add_f32 v12, v12, v14
    v_rcp_f32 v12, v12
    s_waitcnt lgkmcnt(0)
    """)
    a('v_cndmask_b32 v13, v12, 0, s[42:43]')
    for r in range(8):
        a(f'v_add_f32 v{R+r}, v{R+r}, v{R+8+r}')
        a(f'v_add_f32 v{R+16+r}, v{R+16+r}, v{R+24+r}')
    for r in range(8):
        a(f'v_add_f32 v{R+r}, v{R+r}, v{R+16+r}')
    for r in range(8):
        a(f'v_mul_f32 v{R+r}, v{R+r}, v{12 if r < 4 else 13}')
    for r in range(4):
        a(f'v_cvt_pk_bf16_f32 v{R+8+r}, v{R+2*r}, v{R+2*r+1}')
    a(f'buffer_store_dwordx4 {v(R+8,4)}, v8, s[16:19], s38 offen')
    a.label('A_end')
    a('s_endpgm')


def k_out(a):
    OL = 120 * 1024
    a(f"""
    s_cmp_ge_u32 s2, 256
    s_cbranch_scc1 P_end
    s_load_dwordx2 s[4:5], s[0:1], 16      ; wo
    s_load_dwordx2 s[6:7], s[0:1], 80      ; out
    s_load_dwordx2 s[20:21], s[0:1], 96    ; ws
    v_and_b32 v1, 63, v0
    v_lshrrev_b32 v2, 6, v0
    v_readfirstlane_b32 s3, v2             ; wave
    s_and_b32 s22, s2, 7
    s_lshl_b32 s22, s22, 3
    s_lshr_b32 s23, s2, 5
    s_add_u32 s22, s22, s23
    s_bfe_u32 s23, s2, 0x20003             ; cg4
    v_lshrrev_b32 v3, 4, v1
    v_and_b32 v4, 15, v1
    v_lshlrev_b32 v5, 2, v3
    v_xor_b32 v4, v4, v5
    v_lshlrev_b32 v4, 4, v4
    v_mul_u32_u24 v3, 896, v3
    v_add_u32 v3, v3, v4
    s_lshl_b32 s24, s23, 8
    s_mul_i32 s25, s3, 3584
    s_add_u32 s24, s24, s25
    v_add_u32 v3, s24, v3
    v_lshlrev_b32 v4, 4, v1
    s_lshl_b32 s26, s3, 10                 ; wave*1024
    s_lshl_b32 s27, s22, 15
    s_add_u32 s27, s27, s26
    s_add_u32 s27, s27, {WS_O}
    v_add_u32 v5, s27, v4
    s_waitcnt lgkmcnt(0)
    """)
    srd(a, 8, 4, D * D * 2)
    srd(a, 12, 6, S * 2 * D * 2)
    srd(a, 16, 20, WS_END)
    plan = [[0, 1, 2, 3], [4, 5, 6, 7], [8, 9, 10], [11, 12, 13, 14]]
    for st in range(4):
        a(f's_add_u32 m0, s26, {OL + st*8192}')
        a(f's_mov_b32 s28, {st*8192}')
        a(f'buffer_load_dwordx4 v5, s[16:19], s28 offen lds')
        for r in plan[st]:
            a(f's_add_u32 m0, s26, {r*8192}')
            a(f's_mov_b32 s28, {r*28672}')
            a(f'buffer_load_dwordx4 v3, s[8:11], s28 offen lds')
    a(f"""
    s_and_b32 s29, s3, 3                   ; ct
    v_lshrrev_b32 v6, 5, v1                ; h
    v_bfe_u32 v7, v1, 2, 2                 ; r4
    v_xor_b32 v8, s29, v7
    v_lshlrev_b32 v8, 6, v8
    v_bfe_u32 v9, v1, 4, 1
    v_lshl_add_u32 v8, v9, 5, v8
    v_and_b32 v9, 3, v1
    v_lshl_add_u32 v8, v9, 3, v8
    v_lshl_add_u32 v9, v6, 2, v7
    v_lshl_add_u32 v8, v9, 8, v8
    v_add_u32 v9, {224*256}, v8
    v_add_u32 v10, {OL}, v4
    s_lshl_b32 s30, s23, 2
    s_add_u32 s30, s30, s29
    s_cmp_lt_u32 s30, 14
    s_cselect_b32 s31, 1, 0
    s_cmp_lt_u32 s3, 4
    s_cselect_b32 s31, s31, 0
    s_cmp_eq_u32 s31, 0
    s_cbranch_scc1 P_idle
    """)
    cnt = [1 + len(p) for p in plan]
    ACC = 16; WF = [32, 64]; OF = [96, 128]
    def reads(st):
        for hh in range(4):
            hd = 4*st + hh
            for f in range(2):
                n = 2*hh + f
                a(f'ds_read_b128 {v(OF[st%2] + 4*n, 4)}, v10 offset:{hd*2048 + f*1024}')
                for e in range(2):
                    row = 28*hd + 16*f + 8*e - (224 if hd >= 8 else 0)
                    a(f'ds_read_b64_tr_b16 {v(WF[st%2] + 4*n + 2*e, 2)}, v{9 if hd >= 8 else 8} offset:{row*256}')
    def mf(st):
        for n in range(8):
            c = '0' if (st == 0 and n == 0) else v(ACC, 16)
            a(f'v_mfma_f32_32x32x16_bf16 {v(ACC,16)}, {v(WF[st%2]+4*n,4)}, {v(OF[st%2]+4*n,4)}, {c}')
    for st in range(4):
        a(f's_waitcnt vmcnt({sum(cnt[st+1:])})')
        a('s_barrier')
        reads(st)
        if st > 0: mf(st - 1)
        a('s_waitcnt lgkmcnt(0)')
    mf(3)
    T = 40
    a(f"""
    v_and_b32 v11, 31, v1
    s_lshl_b32 s32, s22, 5
    v_add_u32 v11, s32, v11
    v_mul_u32_u24 v11, 1792, v11
    v_lshl_add_u32 v11, v6, 4, v11
    s_lshl_b32 s32, s30, 6
    """)
    for r in range(8): a(f'v_cvt_pk_bf16_f32 v{T+r}, v{ACC+2*r}, v{ACC+2*r+1}')
    for q in range(2):
        a(f'v_permlane32_swap_b32 v{T+4*q}, v{T+4*q+2}')
        a(f'v_permlane32_swap_b32 v{T+4*q+1}, v{T+4*q+3}')
    a(f'buffer_store_dwordx4 {v(T,4)}, v11, s[12:15], s32 offen')
    a(f'buffer_store_dwordx4 {v(T+4,4)}, v11, s[12:15], s32 offen offset:32')
    a('s_branch P_end')
    a.label('P_idle')
    for st in range(4):
        a(f's_waitcnt vmcnt({sum(cnt[st+1:])})')
        a('s_barrier')
    a.label('P_end')
    a('s_endpgm')


XYP = 1056; XYCH = 53 * XYP
L_G = 0; GP = 532 * 16
L_KR = 8 * GP; KRCH = 96 * 80
L_PART = L_KR + 2 * KRCH
L_T2 = L_PART + 32768; T2CH = 2624 * 2
L_UP = L_T2 + 2 * T2CH
SSM_LDS = L_UP + 528 * 16 + 16
LOG2E = math.log2(math.e)

def cmul(a, d, x, e, t):
    a(f'v_pk_mul_f32 {v(t,2)}, {v(x,2)}, {v(e,2)} op_sel:[0,0] op_sel_hi:[1,0]')
    a(f'v_pk_fma_f32 {v(d,2)}, {v(x,2)}, {v(e,2)}, {v(t,2)} op_sel:[1,1,0] op_sel_hi:[0,1,1] neg_lo:[1,0,0]')

def k_ssm(a):
    a(f"""
    s_cmp_ge_u32 s2, 256
    s_cbranch_scc1 S_end
    s_load_dwordx2 s[4:5], s[0:1], 24      ; u
    s_load_dwordx8 s[24:31], s[0:1], 32
    s_load_dwordx4 s[32:35], s[0:1], 64
    s_load_dwordx2 s[6:7], s[0:1], 80      ; out
    v_and_b32 v1, 63, v0
    v_lshrrev_b32 v2, 6, v0
    v_readfirstlane_b32 s3, v2             ; wave
    s_and_b32 s22, s2, 7
    s_lshr_b32 s23, s2, 3
    s_cmp_ge_u32 s23, 28
    s_cbranch_scc1 S_end
    s_mul_i32 s22, s22, 28
    s_add_u32 s22, s22, s23
    s_lshl_b32 s36, s22, 2
    s_lshr_b32 s37, s3, 2
    s_waitcnt lgkmcnt(0)
    s_add_u32 s32, s32, s36
    s_addc_u32 s33, s33, 0
    s_add_u32 s34, s34, s36
    s_addc_u32 s35, s35, 0
    s_load_dword s38, s[32:33], 0
    s_load_dword s39, s[34:35], 0
    """)
    srd(a, 8, 4, S * D * 2)
    srd(a, 12, 6, S * 2 * D * 2)
    for i in range(4): srd(a, 40 + 4*i, 24 + 2*i, D * 256 * 2)
    a(f"""
    s_lshl_b32 s56, s22, 10
    v_lshlrev_b32 v3, 1, v0
    v_add_u32 v3, s56, v3
    buffer_load_ushort v10, v3, s[40:43], 0 offen
    buffer_load_ushort v11, v3, s[44:47], 0 offen
    buffer_load_ushort v12, v3, s[48:51], 0 offen
    buffer_load_ushort v13, v3, s[52:55], 0 offen
    v_mul_u32_u24 v4, 3584, v0
    v_add_u32 v4, s36, v4
    buffer_load_dword v240, v4, s[8:11], 0 offen
    buffer_load_dword v241, v4, s[8:11], 0 offen offset:896
    buffer_load_dword v242, v4, s[8:11], 0 offen offset:1792
    buffer_load_dword v243, v4, s[8:11], 0 offen offset:2688
    v_and_b32 v5, 255, v0
    v_lshlrev_b32 v6, 3, v5
    v_sub_u32 v6, 2048, v6
    s_mul_i32 s57, s37, {T2CH}
    s_add_u32 s57, s57, {L_T2}
    """)
    for e in range(0, 8, 2):
        a(f"""
        v_subrev_u32 v7, {e}, v6
        v_subrev_u32 v8, {e+1}, v6
        v_cvt_f32_u32 v7, v7
        v_cvt_f32_u32 v8, v8
        v_cvt_pk_bf16_f32 v7, v7, v8
        v_and_b32 v8, 0xffff0000, v7
        v_lshlrev_b32 v7, 16, v7
        v_cvt_u32_f32 v7, v7
        v_cvt_u32_f32 v8, v8
        v_lshl_add_u32 v{244+e}, v7, 1, s57
        v_lshl_add_u32 v{245+e}, v8, 1, s57
        """)
    a(f"""
    s_waitcnt lgkmcnt(0)
    s_lshl_b32 s58, s38, 16
    s_and_b32 s59, s38, 0xffff0000
    s_cmp_eq_u32 s37, 0
    s_cselect_b32 s58, s58, s59
    v_mov_b32 v14, s58
    v_mul_f32 v14, {f32bits(LOG2E)}, v14
    v_exp_f32 v14, v14
    s_nop 0
    v_cvt_pk_bf16_f32 v14, v14, v14
    v_and_b32 v14, 0xffff0000, v14
    s_waitcnt vmcnt(4)
    v_lshlrev_b32 v10, 16, v10
    v_lshlrev_b32 v11, 16, v11
    v_lshlrev_b32 v12, 16, v12
    v_lshlrev_b32 v13, 16, v13
    v_mul_f32 v10, {f32bits(LOG2E)}, v10
    v_exp_f32 v10, v10
    v_mul_f32 v11, v11, v14                ; zi
    v_cvt_pk_bf16_f32 v10, v10, v10
    v_and_b32 v10, 0xffff0000, v10
    v_mul_f32 v10, v10, v14                ; -zr
    v_mul_f32 v10, {f32bits(-LOG2E)}, v10  ; zr*log2e
    v_mul_f32 v11, {f32bits(1/(2*math.pi))}, v11
    v_add_f32 v14, v14, v14                ; 2*dt
    v_mul_f32 v20, v12, v14                ; X0 = 2*dt*C
    v_mul_f32 v21, v13, v14
    v_and_b32 v15, 255, v0
    v_lshlrev_b32 v15, 2, v15
    s_mul_i32 s60, s37, {XYCH}
    v_add_u32 v15, s60, v15
    """)
    E1, E8, E256, E2, E4, E16, E32 = 22, 24, 26, 28, 30, 32, 34
    for (E, p) in ((E1, 1.0), (E8, 8.0), (E256, 256.0)):
        a(f"""
        v_mul_f32 v16, {f32bits(p)}, v10
        v_mul_f32 v17, {f32bits(p)}, v11
        v_exp_f32 v16, v16
        v_fract_f32 v17, v17
        v_cos_f32 v18, v17
        v_sin_f32 v19, v17
        s_nop 0
        v_mul_f32 v{E}, v16, v18
        v_mul_f32 v{E+1}, v16, v19
        """)
    tmp = [36, 38, 40, 42]; tc = [0]
    def T():
        tc[0] += 1; return tmp[tc[0] % 4]
    pk = [44, 45, 46, 47]; pc = [0]
    def putX(row, x):
        pc[0] += 1; r = pk[pc[0] % 4]
        a(f'v_cvt_pk_bf16_f32 v{r}, v{x}, -v{x+1}')
        a(f'ds_write_b32 v15, v{r} offset:{row*XYP}')
    def putY(b, y):
        pc[0] += 1; r = pk[pc[0] % 4]
        a(f'v_cvt_pk_bf16_f32 v{r}, v{y}, v{y+1}')
        a(f'ds_write_b32 v15, v{r} offset:{(21+b)*XYP}')
    cmul(a, E2, E1, E1, T()); cmul(a, E16, E8, E8, T())
    cmul(a, E4, E2, E2, T()); cmul(a, E32, E16, E16, T())
    Y = [48, 50, 52, 54]
    a(f'v_mov_b32 v{Y[0]}, 1.0\nv_mov_b32 v{Y[0]+1}, 0')
    a(f'v_mov_b32 v{Y[1]}, v{E8}\nv_mov_b32 v{Y[1]+1}, v{E8+1}')
    a(f'v_mov_b32 v{Y[2]}, v{E16}\nv_mov_b32 v{Y[2]+1}, v{E16+1}')
    cmul(a, Y[3], E16, E8, T())
    putX(0, 20)
    XC, GC, SD, SD2 = 56, 58, 60, 62
    grow = {1: 8, 2: 12, 3: 14, 4: 16, 5: 17, 6: 18, 7: 19, 8: 20}
    for step in range(8):
        for c in range(4): putY(4*step + c, Y[c])
        if step < 7:
            for c in range(4): cmul(a, Y[c], Y[c], E32, T())
            cmul(a, XC, 20 if step == 0 else XC, E1, T())
        cmul(a, GC, 20 if step == 0 else GC, E256, T())
        if step < 7: putX(step + 1, XC)
        g = step + 1
        putX(grow[g], GC)
        if g == 1:
            cmul(a, SD, GC, E2, T()); cmul(a, SD2, GC, E4, T())
            putX(9, SD); putX(10, SD2)
            cmul(a, SD, SD2, E2, T()); putX(11, SD)
        if g in (2, 3):
            cmul(a, SD, GC, E4, T()); putX(grow[g] + 1, SD)
    a(f"""
    s_mov_b32 s61, 0x05040100
    s_mov_b32 s62, 0x07060302
    v_lshlrev_b32 v16, 3, v0
    v_add_u32 v16, {L_UP + 64}, v16
    s_waitcnt vmcnt(0)
    v_perm_b32 v64, v241, v240, s61
    v_perm_b32 v65, v243, v242, s61
    v_perm_b32 v66, v241, v240, s62
    v_perm_b32 v67, v243, v242, s62
    ds_write_b64 v16, v[64:65]
    ds_write_b64 v16, v[66:67] offset:{264*16}
    v_mov_b32 v68, 0
    v_mov_b32 v69, 0
    v_mov_b32 v70, 0
    v_mov_b32 v71, 0
    v_add_u32 v17, 4, v0
    v_lshrrev_b32 v18, 3, v17
    v_and_b32 v17, 7, v17
    v_mul_u32_u24 v18, 264, v18
    v_add_u32 v17, v17, v18
    v_lshlrev_b32 v17, 4, v17
    v_add_u32 v17, {L_UP - 64}, v17
    v_cmp_gt_u32 vcc, 17, v0
    s_and_saveexec_b64 s[64:65], vcc
    ds_write_b128 v17, v[68:71]
    s_mov_b64 exec, s[64:65]
    s_bfe_u32 s63, s3, 0x10001             ; at
    s_and_b32 s66, s3, 1                   ; bt
    v_and_b32 v17, 15, v1
    v_lshrrev_b32 v18, 4, v1               ; g
    v_mul_u32_u24 v19, {XYP}, v17
    v_lshl_add_u32 v19, v18, 4, v19
    s_mul_i32 s67, s63, {16*XYP}
    s_add_u32 s67, s67, s60
    v_add_u32 v72, s67, v19                ; A (X rows)
    s_mul_i32 s67, s66, {16*XYP}
    s_add_u32 s67, s67, s60
    s_add_u32 s67, s67, {21*XYP}
    v_add_u32 v73, s67, v19                ; B (Y rows)
    """)
    ptab = {0: [[0,1,2,3],[4,5,6,7],[256,258,260,262],[512,516,768,772]],
            1: [[1024,1280,1536,1792],[2048,2304,2304,2304],[2304]*4,[2304]*4]}
    a('s_cmp_eq_u32 s63, 0')
    for g in range(4):
        a(f's_mov_b32 exec_lo, {0xffff << (16*(g%2)) if g < 2 else 0}')
        a(f's_mov_b32 exec_hi, {0xffff << (16*(g%2)) if g >= 2 else 0}')
        for r in range(4):
            a(f's_cselect_b32 s67, {ptab[0][g][r]}, {ptab[1][g][r]}') if False else None
            a(f's_mov_b32 s67, {ptab[1][g][r]}')
            a(f's_cselect_b32 s67, {ptab[0][g][r]}, s67')
            a(f'v_mov_b32 v{74+r}, s67')
    a(f"""
    s_mov_b64 exec, -1
    s_lshl_b32 s67, s66, 8
    s_add_u32 s67, s67, s57
    v_lshl_add_u32 v19, v17, 4, s67
    v_lshl_add_u32 v74, v74, 1, v19
    v_lshl_add_u32 v75, v75, 1, v19
    v_lshl_add_u32 v76, v76, 1, v19
    v_lshl_add_u32 v77, v77, 1, v19
    s_waitcnt lgkmcnt(0)
    s_barrier
    """)
    FA = 80; FB = 144; KA = 208
    for st in range(16):
        a(f'ds_read_b128 {v(FA+4*st,4)}, v72 offset:{st*64}')
        a(f'ds_read_b128 {v(FB+4*st,4)}, v73 offset:{st*64}')
        if st >= 4:
            k = st - 4
            a(f's_waitcnt lgkmcnt(8)')
            a(f'v_mfma_f32_16x16x32_bf16 {v(KA,4)}, {v(FA+4*k,4)}, {v(FB+4*k,4)}, {"0" if k == 0 else v(KA,4)}')
    for k in range(12, 16):
        a(f's_waitcnt lgkmcnt({2*(15-k)})')
        a(f'v_mfma_f32_16x16x32_bf16 {v(KA,4)}, {v(FA+4*k,4)}, {v(FB+4*k,4)}, {v(KA,4)}')
    a(f"""
    v_cvt_pk_bf16_f32 v{KA+4}, v{KA}, v{KA+1}
    v_cvt_pk_bf16_f32 v{KA+5}, v{KA+2}, v{KA+3}
    ds_write_b16 v74, v{KA+4}
    ds_write_b16_d16_hi v75, v{KA+4}
    ds_write_b16 v76, v{KA+5}
    ds_write_b16_d16_hi v77, v{KA+5}
    s_waitcnt lgkmcnt(0)
    s_barrier
    """)
    for e in range(8):
        a(f'ds_read_u16 v{88 + e}, v{244+e}')
    a(f"""
    v_lshlrev_b32 v16, 4, v0
    v_add_u32 v17, {L_UP}, v16
    ds_read_b128 v[96:99], v17
    ds_read_b128 v[100:103], v17 offset:16
    v_lshrrev_b32 v18, 2, v5
    v_mul_u32_u24 v18, 80, v18
    v_and_b32 v19, 3, v5
    v_lshl_add_u32 v18, v19, 4, v18
    s_mul_i32 s67, s37, {KRCH}
    s_add_u32 s67, s67, {L_KR}
    v_add_u32 v18, s67, v18
    v_mov_b32 v84, 0
    v_mov_b32 v85, 0
    v_mov_b32 v86, 0
    v_mov_b32 v87, 0
    v_mov_b32 v19, s57
    v_cmp_eq_u32 vcc, 0, v5
    s_and_saveexec_b64 s[64:65], vcc
    ds_read_u16 v84, v19
    s_mov_b64 exec, s[64:65]
    s_waitcnt lgkmcnt(0)
    v_lshl_or_b32 v80, v89, 16, v88
    v_lshl_or_b32 v81, v91, 16, v90
    v_lshl_or_b32 v82, v93, 16, v92
    v_lshl_or_b32 v83, v95, 16, v94
    ds_write_b128 v18, v[80:83]
    v_cmp_gt_u32 vcc, 128, v5
    s_and_saveexec_b64 s[64:65], vcc
    ds_write_b128 v18, v[84:87] offset:{64*80}
    s_mov_b64 exec, s[64:65]
    """)
    def gbuild(addr):
        d = 96; o = 104; d1 = 112; o1 = 118
        for i in range(7): a(f'v_alignbit_b32 v{o+i}, v{d+i+1}, v{d+i}, 16')
        for i in range(6): a(f'v_mov_b32 v{d1+i}, v{d+i+1}')
        for i in range(6): a(f'v_mov_b32 v{o1+i}, v{o+i+1}')
        src = {0: d, 4: d+2, 1: o, 5: o+2, 2: d1, 6: d1+2, 3: o1, 7: o1+2}
        for sft in range(8):
            a(f'ds_write_b128 v{addr}, {v(src[sft],4)} offset:{sft*GP}')
    gbuild(16)
    a(f"""
    s_cmp_lg_u32 s3, 0
    s_cbranch_scc1 S_g2done
    s_mov_b64 exec, 0xffff
    ds_read_b128 v[96:99], v17 offset:8192
    ds_read_b128 v[100:103], v17 offset:8208
    v_add_u32 v16, 8192, v16
    s_waitcnt lgkmcnt(0)
    """)
    gbuild(16)
    a('s_mov_b64 exec, -1')
    a.label('S_g2done')
    a(f"""
    s_and_b32 s63, s3, 1                   ; ch
    s_bfe_u32 s66, s3, 0x10001             ; hf
    v_and_b32 v17, 31, v1                  ; r / i'
    v_lshrrev_b32 v18, 5, v1               ; h
    v_and_b32 v19, 7, v17
    v_mul_u32_u24 v19, {GP}, v19
    v_lshrrev_b32 v20, 3, v17
    v_add_u32 v20, v20, v18
    v_lshl_add_u32 v19, v20, 4, v19
    s_mul_i32 s67, s63, {264*16}
    s_lshl_b32 s68, s66, 10
    s_add_u32 s67, s67, s68
    v_add_u32 v24, s67, v19
    v_sub_u32 v20, 31, v17
    v_mul_u32_u24 v20, 80, v20
    v_lshl_add_u32 v20, v18, 4, v20
    s_mul_i32 s67, s63, {KRCH}
    s_mul_i32 s68, s66, {16*80}
    s_add_u32 s67, s67, s68
    s_add_u32 s67, s67, {L_KR}
    v_add_u32 v25, s67, v20
    s_waitcnt lgkmcnt(0)
    s_barrier
    s_cmp_ge_u32 s3, 4
    s_cbranch_scc1 S_cdone
    """)
    Y0, Y1 = 32, 48
    def aoff(trel): return (trel + 1) * 32
    def boff(srel):
        n = srel + 65
        return (n // 2) * 80 + (n % 2) * 32
    FR = 64; NBUF = 4
    def ld(t):
        b = FR + 16 * (t % NBUF)
        a(f'ds_read_b128 {v(b,4)}, v24 offset:{aoff(t)}')
        a(f'ds_read_b128 {v(b+4,4)}, v25 offset:{boff(t)}')
        a(f'ds_read_b128 {v(b+8,4)}, v25 offset:{boff(t-64)}')
        a(f'ds_read_b128 {v(b+12,4)}, v24 offset:{aoff(t+64)}')
    def mm(t, first):
        b = FR + 16 * (t % NBUF)
        a(f'v_mfma_f32_32x32x16_bf16 {v(Y0,16)}, {v(b,4)}, {v(b+4,4)}, {"0" if first else v(Y0,16)}')
        a(f'v_mfma_f32_32x32x16_bf16 {v(Y1,16)}, {v(b,4)}, {v(b+8,4)}, {"0" if first else v(Y1,16)}')
        a(f'v_mfma_f32_32x32x16_bf16 {v(Y1,16)}, {v(b+12,4)}, {v(b+4,4)}, {v(Y1,16)}')
    a(f'ds_read_b128 v[128:131], v24 offset:{aoff(-1)}')
    a(f'ds_read_b128 v[132:135], v25 offset:{boff(-1)}')
    a(f'ds_read_b128 v[136:139], v25 offset:{boff(-65)}')
    ld(0); ld(1)
    for t in range(32):
        if t + 2 < 32: ld(t + 2)
        a(f's_waitcnt lgkmcnt({4*min(2, 31-t)})')
        mm(t, t == 0)
    a(f"""
    s_cmp_lg_u32 s66, 0
    s_cbranch_scc1 S_noextra
    v_mfma_f32_32x32x16_bf16 {v(Y0,16)}, v[128:131], v[132:135], {v(Y0,16)}
    v_mfma_f32_32x32x16_bf16 {v(Y1,16)}, v[128:131], v[136:139], {v(Y1,16)}
    """)
    a.label('S_noextra')
    a(f"""
    s_lshl_b32 s67, s3, 10
    s_add_u32 s67, s67, {L_PART}
    v_lshl_add_u32 v26, v1, 4, s67
    """)
    for own in range(8):
        a(f'ds_write_b128 v26, {v(Y0 + 4*own, 4)} offset:{own*4096}')
    a.label('S_cdone')
    a(f"""
    s_lshl_b32 s67, s3, 12
    s_add_u32 s67, s67, {L_PART}
    v_lshl_add_u32 v26, v1, 4, s67
    ; l = 1024*T + 32 i' + 8 j + 4 h
    s_lshr_b32 s67, s3, 2
    s_lshl_b32 s67, s67, 10
    s_and_b32 s68, s3, 3
    s_lshl_b32 s68, s68, 3
    s_add_u32 s67, s67, s68
    v_lshlrev_b32 v27, 5, v17
    v_lshl_add_u32 v27, v18, 2, v27
    v_add_u32 v27, s67, v27
    v_lshlrev_b32 v28, 1, v27
    v_add_u32 v28, {L_UP + 64}, v28
    v_mul_u32_u24 v27, 1792, v27
    s_add_u32 s67, s36, 896
    v_add_u32 v27, s67, v27
    s_lshl_b32 s68, s39, 16                ; D ch0
    s_and_b32 s69, s39, 0xffff0000         ; D ch1
    s_waitcnt lgkmcnt(0)
    s_barrier
    ds_read_b128 v[64:67], v26
    ds_read_b128 v[68:71], v26 offset:1024
    ds_read_b128 v[72:75], v26 offset:2048
    ds_read_b128 v[76:79], v26 offset:3072
    ds_read_b64 v[80:81], v28
    ds_read_b64 v[82:83], v28 offset:{264*16}
    s_waitcnt lgkmcnt(0)
    """)
    for e in range(4):
        a(f'v_add_f32 v{64+e}, v{64+e}, v{72+e}')
        a(f'v_add_f32 v{68+e}, v{68+e}, v{76+e}')
    for e in range(4):
        for ch in range(2):
            src = 80 + 2*ch + e//2
            if e % 2 == 0: a(f'v_lshlrev_b32 v{84+4*ch+e}, 16, v{src}')
            else: a(f'v_and_b32 v{84+4*ch+e}, 0xffff0000, v{src}')
        a(f'v_mul_f32 v{84+e}, s68, v{84+e}')
        a(f'v_mul_f32 v{88+e}, s69, v{88+e}')
    for e in range(4):
        a(f'v_cvt_pk_bf16_f32 v{92+e}, v{64+e}, v{68+e}')
        a(f'v_cvt_pk_bf16_f32 v{96+e}, v{84+e}, v{88+e}')
    for e in range(4):
        a(f'v_lshlrev_b32 v{64+e}, 16, v{92+e}')
        a(f'v_and_b32 v{68+e}, 0xffff0000, v{92+e}')
        a(f'v_lshlrev_b32 v{84+e}, 16, v{96+e}')
        a(f'v_and_b32 v{88+e}, 0xffff0000, v{96+e}')
        a(f'v_add_f32 v{64+e}, v{64+e}, v{84+e}')
        a(f'v_add_f32 v{68+e}, v{68+e}, v{88+e}')
        a(f'v_cvt_pk_bf16_f32 v{92+e}, v{64+e}, v{68+e}')
    a('s_mov_b32 s67, 3584')
    a('buffer_store_dword v92, v27, s[12:15], 0 offen')
    a('buffer_store_dword v93, v27, s[12:15], 0 offen offset:1792')
    a('buffer_store_dword v94, v27, s[12:15], s67 offen')
    a('buffer_store_dword v95, v27, s[12:15], s67 offen offset:1792')
    a.label('S_end')
    a('s_endpgm')

def kernel_text(label, fn):
    a = Asm(); fn(a)
    return f'.globl {label}\n.p2align 8\n.type {label},@function\n{label}:\n' + a.finalize()

def desc(label, vgpr=256, sgpr=102):
    acc = (vgpr + 3) // 4 * 4
    return f'''.p2align 6
.amdhsa_kernel {label}
  .amdhsa_next_free_vgpr {vgpr}
  .amdhsa_next_free_sgpr {sgpr}
  .amdhsa_accum_offset {acc}
  .amdhsa_group_segment_fixed_size 0
  .amdhsa_kernarg_size 104
  .amdhsa_user_sgpr_count 2
  .amdhsa_user_sgpr_kernarg_segment_ptr 1
  .amdhsa_system_sgpr_workgroup_id_x 1
.end_amdhsa_kernel
'''

def build(kernels, path):
    hdr = open(f'cdna_kernels/{NAME}.s.ref').read().split('\n')
    out = [l for l in hdr if l.startswith(';') and '@launch' not in l and 'Override' not in l and 'grid=ceil' not in l][:15]
    for (label, fn, grid, block, lds) in kernels:
        out.append(f'; @launch kernel={label} grid=({grid},1,1) block=({block},1,1) lds={lds}')
    out.append('.amdgcn_target "amdgcn-amd-amdhsa--gfx950"')
    out.append('.text')
    txt = '\n'.join(out) + '\n'
    for (label, fn, grid, block, lds) in kernels:
        txt += kernel_text(label, fn)
    txt += '.section .rodata,"a"\n'
    for (label, fn, grid, block, lds) in kernels:
        txt += desc(label)
    open(path, 'w').write(txt)

if __name__ == '__main__':
    kernels = [('qkv_kernel', k_qkv, 256, 512, 98304), ('att_kernel', k_att, 256, 512, 65536), ('out_kernel', k_out, 256, 512, 152*1024), ('ssm_kernel', k_ssm, 256, 512, SSM_LDS)]
    build(kernels, sys.argv[1] if len(sys.argv) > 1 else f'cdna_kernels/{NAME}.s')
```

```python
import sys, math, struct
sys.path.insert(0, 'work')
from asmgen import *

STAMPS = False
NAME = 'concat_heads__mha_block__ssm_conv_s4d__prompt'
S = 2048; D = 448; H = 16; DH = 28
TILEB = 56 * 512
F0 = 0; F1 = 1024; F2 = 2048; EPOCH = 4096; F3 = 8192
WS_Q = 16384
WS_K = WS_Q + 64 * TILEB
WS_V = WS_K + 64 * TILEB
WS_O = WS_V + 64 * TILEB
WS_UT = WS_O + 64 * 32768
WS_YT = WS_UT + 112 * 16384
WS_END = WS_YT + 224 * 8192
WS_STAMP = 16 << 20
LDS_TOTAL = 163840
POLL_LIMIT = 20000

def f32bits(x): return struct.unpack('<I', struct.pack('<f', x))[0]
QSCALE = math.log2(math.e) / math.sqrt(DH)
LOG2E = math.log2(math.e)
P_X, P_W, P_WO, P_U, P_LA, P_AI, P_CR, P_CI, P_DT, P_DS, P_OUT, P_DBG, P_WS = [64 + 2*i for i in range(13)]

def stamp(a, n):
    if STAMPS:
        a('s_memrealtime s[90:91]')
        a('s_waitcnt lgkmcnt(0)')
        a(f'v_writelane_b32 v254, s90, {n}')

def srd(a, base_s, ptr_s, nbytes):
    a(f's_mov_b32 s{base_s}, s{ptr_s}')
    a(f's_and_b32 s{base_s+1}, s{ptr_s+1}, 0xffff')
    a(f's_mov_b32 s{base_s+2}, {nbytes}')
    a(f's_mov_b32 s{base_s+3}, 0x20000')

def poll(a, name, voff, tmp, mask=-1, x4=False, sleep=4):
    if mask != -1:
        a(f's_mov_b32 exec_lo, {mask & 0xffffffff}')
        a(f's_mov_b32 exec_hi, {mask >> 32}')
    a('s_mov_b32 s62, 0')
    a.label(name)
    if x4:
        a(f'buffer_load_dwordx4 {v(tmp,4)}, v{voff}, s[16:19], 0 offen sc1')
        a('s_waitcnt vmcnt(0)')
        for i in range(4): a(f'v_xor_b32 v{tmp+i}, s20, v{tmp+i}')
        a(f'v_or3_b32 v{tmp}, v{tmp}, v{tmp+1}, v{tmp+2}')
        a(f'v_or_b32 v{tmp}, v{tmp}, v{tmp+3}')
        a(f'v_cmp_ne_u32 vcc, 0, v{tmp}')
    else:
        a(f'buffer_load_dword v{tmp}, v{voff}, s[16:19], 0 offen sc1')
        a('s_waitcnt vmcnt(0)')
        a(f'v_cmp_ne_u32 vcc, s20, v{tmp}')
    a('s_nop 4')
    a(f's_cbranch_vccz {name}_ok')
    a(f's_sleep {sleep}')
    a('s_add_u32 s62, s62, 1')
    a(f's_cmp_lt_u32 s62, {POLL_LIMIT}')
    a(f's_cbranch_scc1 {name}')
    a.label(name + '_ok')
    a('s_mov_b64 exec, -1')

def signal(a, soff, vt0, vt1):
    a(f'v_mov_b32 v{vt0}, s{soff}')
    a(f'v_mov_b32 v{vt1}, s20')
    a('s_mov_b64 exec, 1')
    a(f'buffer_store_dword v{vt1}, v{vt0}, s[16:19], 0 offen sc1')
    a('s_mov_b64 exec, -1')

def arrive(a):
    srd(a, 56, P_DBG, 256)
    a('v_mov_b32 v2, 1')
    a('s_mov_b64 exec, 1')
    a('buffer_atomic_add v2, off, s[56:59], 0 sc1')
    a('s_mov_b64 exec, -1')

def prologue(a):
    a(f"""
    s_cmp_ge_u32 s2, 256
    s_cbranch_scc1 L_end
    s_load_dwordx16 s[64:79], s[0:1], 0
    s_load_dwordx8 s[80:87], s[0:1], 64
    s_load_dwordx2 s[88:89], s[0:1], 96
    v_and_b32 v1, 63, v0
    v_lshrrev_b32 v2, 6, v0
    v_readfirstlane_b32 s3, v2
    s_and_b32 s22, s2, 7
    s_lshr_b32 s23, s2, 3
    s_mul_i32 s24, s23, 37
    s_lshr_b32 s24, s24, 8                 ; m / 7
    s_mul_i32 s25, s24, 7
    s_sub_u32 s25, s23, s25                ; c
    s_lshl_b32 s26, s22, 2
    s_add_u32 s26, s26, s24                ; rb
    s_mul_i32 s21, s22, 28
    s_add_u32 s21, s21, s23
    s_waitcnt lgkmcnt(0)
    """)
    srd(a, 16, P_WS, WS_END)
    a(f's_mov_b32 s36, {EPOCH}')
    a('buffer_load_dword v253, off, s[16:19], s36 sc1')
    srd(a, 12, P_OUT, S * 2 * D * 2)
    a("""
    s_cmp_lt_u32 s23, 28
    s_cbranch_scc1 L_full
    s_waitcnt vmcnt(0)
    v_readfirstlane_b32 s20, v253
    s_add_u32 s20, s20, 1
    s_barrier
    s_cmp_lg_u32 s3, 0
    s_cbranch_scc1 L_lite1
    """)
    arrive(a)
    a('s_sleep 64')
    att_poll(a, 'PL_f1b')
    a.label('L_lite1')
    a('s_barrier')
    a('s_branch L_att')
    a.label('L_full')

RING0 = 98304; SLOT = 16384; NS = 4; DEPTH = 3
def slot_of(j): return (j + 2) % NS

def ph_qkv(a):
    srd(a, 8, P_X, S * D * 2)
    srd(a, 4, P_W, D * 3 * D * 2)
    for i in range(4): srd(a, 40 + 4*i, P_LA + 2*i, D * 256 * 2)
    a(f"""
    s_lshl_b32 s36, s21, 2
    s_add_u32 s{P_DT}, s{P_DT}, s36
    s_addc_u32 s{P_DT+1}, s{P_DT+1}, 0
    s_add_u32 s{P_DS}, s{P_DS}, s36
    s_addc_u32 s{P_DS+1}, s{P_DS+1}, 0
    s_load_dword s38, s[{P_DT}:{P_DT+1}], 0
    s_load_dword s39, s[{P_DS}:{P_DS+1}], 0
    s_lshl_b32 s27, s24, 1
    s_add_u32 s27, s27, s25
    s_sub_u32 s28, s27, 7
    s_cmp_ge_u32 s27, 7
    s_cselect_b32 s27, s28, s27            ; rho
    s_lshl_b32 s37, s21, 10
    v_lshlrev_b32 v243, 1, v0
    v_add_u32 v243, s37, v243
    s_cmp_lt_u32 s3, 4
    s_cbranch_scc1 Q_comp
    """)
    def params():
        for i in range(4):
            a(f'buffer_load_ushort v{244+i}, v243, s[{40+4*i}:{43+4*i}], 0 offen')
    K_, V_, Q_ = 1, 2, 0
    stages = [[('x',0),(K_,0)], [(V_,0),(Q_,0)], [('x',1),(K_,1)], [(V_,1),(Q_,1)]]
    for i in range(2, 7): stages.append([('x', i), (K_, i)])
    rest = [(V_, i) for i in range(2, 7)] + [(Q_, i) for i in range(2, 7)]
    for i in range(5): stages.append(rest[2*i:2*i+2])
    NST = len(stages)
    a(f"""
    s_sub_u32 s29, s3, 4
    v_lshrrev_b32 v3, 3, v1
    v_and_b32 v4, 7, v1
    s_lshl_b32 s30, s29, 4
    v_add_u32 v5, s30, v3
    v_lshrrev_b32 v6, 1, v5
    v_and_b32 v6, 7, v6
    v_xor_b32 v6, v6, v4
    v_lshlrev_b32 v6, 4, v6
    s_lshl_b32 s31, s26, 6
    v_add_u32 v7, s31, v5
    v_mul_u32_u24 v7, 896, v7
    v_add_u32 v10, v7, v6
    v_xor_b32 v6, 64, v6
    v_add_u32 v11, v7, v6
    v_add_u32 v11, 7168, v11
    v_lshrrev_b32 v6, 1, v5
    v_and_b32 v6, 1, v6
    v_lshlrev_b32 v6, 2, v6
    v_xor_b32 v6, v6, v4
    v_lshlrev_b32 v6, 4, v6
    v_mul_u32_u24 v7, 2688, v5
    v_add_u32 v12, v7, v6
    s_lshl_b32 s31, s25, 7
    v_add_u32 v12, s31, v12
    v_add_u32 v13, 21504, v12
    s_lshl_b32 s32, s29, 11
    """)
    def chunk_off(i, kind):
        a(f's_add_u32 s33, s27, {i}')
        a(f's_sub_u32 s34, s33, 7')
        a(f's_cmp_ge_u32 s33, 7')
        a(f's_cselect_b32 s33, s34, s33')
        if kind == 'x': a('s_lshl_b32 s33, s33, 7')
        else:
            a(f's_mul_i32 s33, s33, {64*2688}')
            if kind: a(f's_add_u32 s33, s33, {kind*896}')
    def issue(j):
        for half, (kind, i) in enumerate(stages[j]):
            base = RING0 + slot_of(j) * SLOT + half * 8192
            chunk_off(i, kind)
            for e in range(2):
                a(f's_add_u32 m0, s32, {base + e*1024}')
                if kind == 'x': a(f'buffer_load_dwordx4 v{10+e}, s[8:11], s33 offen lds')
                else:           a(f'buffer_load_dwordx4 v{12+e}, s[4:7], s33 offen lds')
    for j in range(DEPTH): issue(j)
    params()
    a('s_waitcnt lgkmcnt(0)')
    for j in range(NST):
        later = min(NST, j + DEPTH) - (j + 1)
        extra = 4 if j < DEPTH else 0
        a(f's_waitcnt vmcnt({4*later + extra})')
        if j == 0: a('v_readfirstlane_b32 s20, v253\ns_add_u32 s20, s20, 1')
        a('s_barrier')
        if j == 0: stamp(a, 1)
        if j + DEPTH < NST: issue(j + DEPTH)
    a('s_branch Q_done')
    a.label('Q_comp')
    XF = 64; ACC = {K_: 176, V_: 192, Q_: 208}; WB = [[8 + 4*i for i in range(8)], [224 + 4*i for i in range(4)] + [40 + 4*i for i in range(4)]]
    srd(a, 56, P_U, S * D * 2)
    a(f"""
    ; u tile DMA: instr n = 2*wave+e covers rows 8n..8n+7 ; lane: row = 8n + l/8, pos p = l%8 holds chunk p ^ n
    v_lshrrev_b32 v3, 3, v1
    v_and_b32 v4, 7, v1
    s_lshl_b32 s29, s3, 1
    v_xor_b32 v5, s29, v4
    v_lshlrev_b32 v5, 4, v5
    s_lshl_b32 s30, s26, 6
    s_lshl_b32 s31, s3, 4
    s_add_u32 s30, s30, s31
    v_add_u32 v6, s30, v3
    v_mul_u32_u24 v6, 896, v6
    s_lshl_b32 s31, s25, 7
    v_add_u32 v6, s31, v6
    v_add_u32 v7, v6, v5
    v_xor_b32 v5, 16, v5
    v_add_u32 v6, v6, v5
    v_add_u32 v6, 7168, v6
    s_lshl_b32 s31, s3, 11
    s_mov_b32 m0, s31
    s_nop 0
    buffer_load_dwordx4 v7, s[56:59], 0 offen lds
    s_add_u32 m0, s31, 1024
    s_nop 0
    buffer_load_dwordx4 v6, s[56:59], 0 offen lds
    """)
    params()
    a(f"""
    s_and_b32 s29, s3, 1                   ; rt
    s_lshr_b32 s30, s3, 1                  ; cg
    v_and_b32 v3, 31, v1
    v_lshrrev_b32 v4, 5, v1
    s_lshl_b32 s31, s29, 5
    v_add_u32 v5, s31, v3
    v_lshrrev_b32 v6, 1, v5
    v_and_b32 v6, 7, v6
    v_lshlrev_b32 v7, 7, v5
    v_add_u32 v7, {RING0}, v7
    """)
    for st in range(4):
        a(f"""
        v_add_u32 v{56+st}, {2*st}, v4
        v_xor_b32 v{56+st}, v{56+st}, v6
        v_lshl_add_u32 v{56+st}, v{56+st}, 4, v7
        """)
    a(f"""
    v_and_b32 v6, 3, v1
    v_lshlrev_b32 v6, 3, v6
    v_bfe_u32 v7, v1, 4, 1
    v_lshl_add_u32 v6, v7, 5, v6
    s_lshl_b32 s31, s30, 6
    v_add_u32 v6, s31, v6
    v_bfe_u32 v7, v1, 3, 1
    v_lshlrev_b32 v7, 6, v7
    v_xor_b32 v6, v6, v7
    v_bfe_u32 v7, v1, 2, 2
    v_lshl_add_u32 v7, v4, 3, v7
    v_lshl_add_u32 v60, v7, 7, v6
    v_add_u32 v60, {RING0}, v60
    s_lshl_b32 s31, s26, 1
    s_add_u32 s31, s31, s29
    s_mul_i32 s31, s31, {TILEB}
    s_lshl_b32 s33, s25, 3
    s_lshl_b32 s34, s30, 2
    s_add_u32 s33, s33, s34
    s_lshl_b32 s34, s33, 9
    s_add_u32 s34, s34, s31
    v_lshlrev_b32 v61, 4, v1
    v_add_u32 v61, s34, v61
    s_lshl_b32 s34, s33, 7
    s_add_u32 s34, s34, s31
    v_mul_u32_u24 v62, 7168, v4
    v_lshl_add_u32 v62, v3, 4, v62
    v_add_u32 v62, s34, v62
    s_mov_b32 s35, {f32bits(QSCALE)}
    ; u transpose: supplier address (instr n): (8*(Q%8) + r)*128 + ((n ^ (Q%8))*16) + (Q/8)*8, Q = 4*(l/16) + l%4, r = (l%16)/4
    v_lshrrev_b32 v5, 4, v1
    v_and_b32 v6, 3, v1
    v_lshl_add_u32 v5, v5, 2, v6           ; Q
    v_and_b32 v6, 7, v5                    ; rho
    v_lshrrev_b32 v5, 3, v5                ; Q/8
    v_bfe_u32 v7, v1, 2, 2
    v_lshl_add_u32 v7, v6, 3, v7
    v_lshlrev_b32 v7, 7, v7
    v_lshl_add_u32 v7, v5, 3, v7
    s_lshl_b32 s31, s3, 1
    v_xor_b32 v6, s31, v6
    v_lshl_add_u32 v240, v6, 4, v7         ; n = 2w
    v_xor_b32 v241, 16, v240               ; n = 2w+1
    ; u^T store voffset: (16c + 2n + l/32)*16384 + 8rb*64 + (l%32)*16
    s_lshl_b32 s31, s25, 4
    s_lshl_b32 s33, s3, 2
    s_add_u32 s31, s31, s33
    s_lshl_b32 s31, s31, 14
    s_lshl_b32 s33, s26, 9
    s_add_u32 s31, s31, s33
    s_add_u32 s31, s31, {WS_UT}
    v_lshlrev_b32 v242, 14, v4
    v_lshl_add_u32 v242, v3, 4, v242
    v_add_u32 v242, s31, v242
    s_waitcnt vmcnt(6) lgkmcnt(0)
    v_readfirstlane_b32 s20, v253
    s_add_u32 s20, s20, 1
    """)
    def reads(j):
        sb = slot_of(j) * SLOT
        n = 0
        for half, (kind, i) in enumerate(stages[j]):
            base = sb + half * 8192
            if kind == 'x':
                for st in range(4):
                    a(f'ds_read_b128 {v(XF + 16*i + 4*st, 4)}, v{56 + st} offset:{base}')
            else:
                for st in range(4):
                    r = WB[j % 2][n]; n += 1
                    for e in range(2):
                        a(f'ds_read_b64_tr_b16 {v(r + 2*e, 2)}, v60 offset:{base + (16*st + 4*e)*128}')
    started = set()
    def epilogue(kind):
        acc = ACC[kind]
        out = []
        if kind == Q_:
            for r in range(16): out.append(f'v_mul_f32 v{acc+r}, s35, v{acc+r}')
        for r in range(8):
            out.append(f'v_cvt_pk_bf16_f32 v{acc+r}, v{acc+2*r}, v{acc+2*r+1}')
        T = acc
        if kind == V_:
            out.append(f's_mov_b32 s36, {WS_V}')
            out.append(f'buffer_store_dwordx4 {v(T,4)}, v62, s[16:19], s36 offen sc1')
            out.append(f's_mov_b32 s36, {WS_V + 2*7168}')
            out.append(f'buffer_store_dwordx4 {v(T+4,4)}, v62, s[16:19], s36 offen sc1')
        else:
            for q in range(2):
                out.append(f'v_permlane32_swap_b32 v{T+4*q}, v{T+4*q+2}')
                out.append(f'v_permlane32_swap_b32 v{T+4*q+1}, v{T+4*q+3}')
            out.append(f's_mov_b32 s36, {WS_Q if kind == Q_ else WS_K}')
            out.append(f'buffer_store_dwordx4 {v(T,4)}, v61, s[16:19], s36 offen sc1')
            out.append(f'buffer_store_dwordx4 {v(T+4,4)}, v61, s[16:19], s36 offen offset:1024 sc1')
        return out
    def mfmas(j, filler):
        n = 0; done = []
        for half, (kind, i) in enumerate(stages[j]):
            if kind == 'x': continue
            acc = ACC[kind]
            for st in range(4):
                w = WB[j % 2][n]; n += 1
                x = XF + 16*i + 4*st
                c = v(acc, 16) if kind in started else '0'
                started.add(kind)
                if kind == V_: a(f'v_mfma_f32_32x32x16_bf16 {v(acc,16)}, {v(x,4)}, {v(w,4)}, {c}')
                else:          a(f'v_mfma_f32_32x32x16_bf16 {v(acc,16)}, {v(w,4)}, {v(x,4)}, {c}')
                for _ in range(3):
                    if filler: a(filler.pop(0))
            if i == 6: done.append(kind)
        while filler: a(filler.pop(0))
        return done
    pending = []
    for j in range(NST):
        if j == 1: a('s_waitcnt vmcnt(4)')
        if j == 6: a('s_waitcnt vmcnt(0)')
        a('s_barrier')
        if j == 0:
            stamp(a, 1)
            a('s_cmp_lg_u32 s3, 0\ns_cbranch_scc1 Q_noarr')
            arrive(a)
            a.label('Q_noarr')
        if j == 6:
            a('s_cmp_lg_u32 s3, 0\ns_cbranch_scc1 Q_nof0')
            a(f's_lshl_b32 s36, s25, 7\ns_lshl_b32 s37, s26, 2\ns_add_u32 s36, s36, s37')
            signal(a, 36, 2, 3)
            a.label('Q_nof0')
        reads(j)
        if j == 2:
            a('ds_read_b64_tr_b16 v[248:249], v240')
            a('ds_read_b64_tr_b16 v[250:251], v240 offset:512')
            a('ds_read_b64_tr_b16 v[4:5], v241')
            a('ds_read_b64_tr_b16 v[6:7], v241 offset:512')
        if j > 0:
            fill = []
            for k in pending: fill += epilogue(k)
            pending = mfmas(j - 1, fill)
        a('s_waitcnt lgkmcnt(0)')
        if j == 2:
            a('s_mov_b32 s36, 32768')
            a('buffer_store_dwordx4 v[248:251], v242, s[16:19], 0 offen sc1')
            a('buffer_store_dwordx4 v[4:7], v242, s[16:19], s36 offen sc1')
    fill = []
    for k in pending: fill += epilogue(k)
    pending = mfmas(NST - 1, fill)
    for k in pending:
        for l in epilogue(k): a(l)
    a.label('Q_done')
    stamp(a, 2)

XYP = 1056; XYCH = 53 * XYP
GP = 532 * 16
L_KR = 8 * GP; KRCH = 96 * 80
L_PART = L_KR + 2 * KRCH; PSRC = 1152; POWN = 4 * PSRC + 32
L_T2 = L_PART + 8 * POWN; T2CH = 2624 * 2
assert L_T2 >= 114688 and L_T2 + 2*T2CH <= LDS_TOTAL

def cmul(a, d, x, e, t):
    a(f'v_pk_mul_f32 {v(t,2)}, {v(x,2)}, {v(e,2)} op_sel:[0,0] op_sel_hi:[1,0]')
    a(f'v_pk_fma_f32 {v(d,2)}, {v(x,2)}, {v(e,2)}, {v(t,2)} op_sel:[1,1,0] op_sel_hi:[0,1,1] neg_lo:[1,0,0]')

def ph_ssm(a):
    a(f"""
    s_lshr_b32 s37, s3, 2
    s_lshl_b32 s58, s38, 16
    s_and_b32 s59, s38, 0xffff0000
    s_cmp_eq_u32 s37, 0
    s_cselect_b32 s58, s58, s59
    s_cselect_b32 s60, {XYCH}, 0
    v_mov_b32 v14, s58
    v_mul_f32 v14, {f32bits(LOG2E)}, v14
    v_exp_f32 v14, v14
    v_lshlrev_b32 v10, 16, v244
    v_lshlrev_b32 v11, 16, v245
    v_lshlrev_b32 v12, 16, v246
    v_lshlrev_b32 v13, 16, v247
    v_cvt_pk_bf16_f32 v14, v14, v14
    v_and_b32 v14, 0xffff0000, v14
    v_mul_f32 v10, {f32bits(LOG2E)}, v10
    v_exp_f32 v10, v10
    v_mul_f32 v11, v11, v14
    v_cvt_pk_bf16_f32 v10, v10, v10
    v_and_b32 v10, 0xffff0000, v10
    v_mul_f32 v10, v10, v14
    v_mul_f32 v10, {f32bits(-LOG2E)}, v10
    v_mul_f32 v11, {f32bits(1/(2*math.pi))}, v11
    v_add_f32 v14, v14, v14
    v_mul_f32 v20, v12, v14
    v_mul_f32 v21, v13, v14
    v_and_b32 v5, 255, v0
    v_lshl_add_u32 v15, v5, 2, s60
    """)
    E1, E8, E256, E2, E4, E16, E32 = 22, 24, 26, 28, 30, 32, 34
    for (E, p) in ((E1, 1.0), (E8, 8.0), (E256, 256.0)):
        a(f"""
        v_mul_f32 v16, {f32bits(p)}, v10
        v_mul_f32 v17, {f32bits(p)}, v11
        v_exp_f32 v16, v16
        v_fract_f32 v17, v17
        v_cos_f32 v18, v17
        v_sin_f32 v19, v17
        v_mul_f32 v{E}, v16, v18
        v_mul_f32 v{E+1}, v16, v19
        """)
    tmp = [36, 38, 40, 42]; tc = [0]
    def T():
        tc[0] += 1; return tmp[tc[0] % 4]
    pk = [44, 45, 46, 47]; pc = [0]
    def putX(row, x):
        pc[0] += 1; r = pk[pc[0] % 4]
        a(f'v_cvt_pk_bf16_f32 v{r}, v{x}, -v{x+1}')
        a(f'ds_write_b32 v15, v{r} offset:{row*XYP}')
    def putY(b, y):
        pc[0] += 1; r = pk[pc[0] % 4]
        a(f'v_cvt_pk_bf16_f32 v{r}, v{y}, v{y+1}')
        a(f'ds_write_b32 v15, v{r} offset:{(21+b)*XYP}')
    cmul(a, E2, E1, E1, T()); cmul(a, E16, E8, E8, T())
    cmul(a, E4, E2, E2, T()); cmul(a, E32, E16, E16, T())
    Y = [48, 50, 52, 54]
    a(f'v_mov_b32 v{Y[0]}, 1.0\nv_mov_b32 v{Y[0]+1}, 0')
    a(f'v_mov_b32 v{Y[1]}, v{E8}\nv_mov_b32 v{Y[1]+1}, v{E8+1}')
    a(f'v_mov_b32 v{Y[2]}, v{E16}\nv_mov_b32 v{Y[2]+1}, v{E16+1}')
    cmul(a, Y[3], E16, E8, T())
    putX(0, 20)
    XC, GC, SD, SD2 = 56, 58, 60, 62
    grow = {1: 8, 2: 12, 3: 14, 4: 16, 5: 17, 6: 18, 7: 19, 8: 20}
    for step in range(8):
        for c in range(4): putY(4*step + c, Y[c])
        if step < 7:
            for c in range(4): cmul(a, Y[c], Y[c], E32, T())
            cmul(a, XC, 20 if step == 0 else XC, E1, T())
        cmul(a, GC, 20 if step == 0 else GC, E256, T())
        if step < 7: putX(step + 1, XC)
        g = step + 1
        putX(grow[g], GC)
        if g == 1:
            cmul(a, SD, GC, E2, T()); cmul(a, SD2, GC, E4, T())
            putX(9, SD); putX(10, SD2)
            cmul(a, SD, SD2, E2, T()); putX(11, SD)
        if g in (2, 3):
            cmul(a, SD, GC, E4, T()); putX(grow[g] + 1, SD)
    a(f"""
    v_lshlrev_b32 v6, 3, v5
    v_sub_u32 v6, 2048, v6
    s_mul_i32 s57, s37, {T2CH}
    s_add_u32 s57, s57, {L_T2}
    """)
    for e in range(0, 8, 2):
        a(f"""
        v_subrev_u32 v7, {e}, v6
        v_subrev_u32 v8, {e+1}, v6
        v_cvt_f32_u32 v7, v7
        v_cvt_f32_u32 v8, v8
        v_cvt_pk_bf16_f32 v7, v7, v8
        v_and_b32 v8, 0xffff0000, v7
        v_lshlrev_b32 v7, 16, v7
        v_cvt_u32_f32 v7, v7
        v_cvt_u32_f32 v8, v8
        v_lshl_add_u32 v{244+e}, v7, 1, s57
        v_lshl_add_u32 v{245+e}, v8, 1, s57
        """)
    a(f"""
    s_bfe_u32 s63, s3, 0x10001             ; at
    s_and_b32 s61, s3, 1                   ; bt
    v_and_b32 v17, 15, v1
    v_lshrrev_b32 v18, 4, v1
    v_mul_u32_u24 v19, {XYP}, v17
    v_lshl_add_u32 v19, v18, 4, v19
    s_mul_i32 s36, s63, {16*XYP}
    s_add_u32 s36, s36, s60
    v_add_u32 v72, s36, v19
    s_mul_i32 s36, s61, {16*XYP}
    s_add_u32 s36, s36, s60
    s_add_u32 s36, s36, {21*XYP}
    v_add_u32 v73, s36, v19
    """)
    ptab = {0: [[0,1,2,3],[4,5,6,7],[256,258,260,262],[512,516,768,772]],
            1: [[1024,1280,1536,1792],[2048,2304,2304,2304],[2304]*4,[2304]*4]}
    a('s_cmp_eq_u32 s63, 0')
    for g in range(4):
        a(f's_mov_b32 exec_lo, {0xffff << (16*(g%2)) if g < 2 else 0}')
        a(f's_mov_b32 exec_hi, {0xffff << (16*(g%2)) if g >= 2 else 0}')
        for r in range(4):
            a(f's_mov_b32 s36, {ptab[1][g][r]}')
            a(f's_cselect_b32 s36, {ptab[0][g][r]}, s36')
            a(f'v_mov_b32 v{74+r}, s36')
    a(f"""
    s_mov_b64 exec, -1
    s_lshl_b32 s36, s61, 8
    s_add_u32 s36, s36, s57
    v_lshl_add_u32 v19, v17, 4, s36
    v_lshl_add_u32 v74, v74, 1, v19
    v_lshl_add_u32 v75, v75, 1, v19
    v_lshl_add_u32 v76, v76, 1, v19
    v_lshl_add_u32 v77, v77, 1, v19
    ; u^T load voffset: d = 2*pair+ch : (d/4)*16384 + lam*64 + (d%4)*16
    s_lshl_b32 s36, s21, 1
    s_add_u32 s36, s36, s37
    s_lshr_b32 s56, s36, 2
    s_lshl_b32 s56, s56, 14
    s_and_b32 s36, s36, 3
    s_lshl_b32 s36, s36, 4
    s_add_u32 s56, s56, s36
    s_add_u32 s56, s56, {WS_UT}
    v_lshl_add_u32 v78, v5, 6, s56
    v_add_u32 v79, 64, v78
    v_mov_b32 v16, {WS_END}
    v_cmp_eq_u32 vcc, 255, v5
    v_cndmask_b32 v79, v79, v16, vcc
    s_cmp_lg_u32 s3, 4
    s_cbranch_scc1 S_nop0
    s_lshr_b32 s36, s21, 5
    s_lshl_b32 s36, s36, 7
    v_lshl_add_u32 v16, v1, 2, s36
    """)
    poll(a, 'PL_f0', 16, 17, mask=0xffffffff)
    a.label('S_nop0')
    a('s_waitcnt vmcnt(0) lgkmcnt(0)')
    a('s_barrier')
    stamp(a, 3)
    a('buffer_load_dwordx4 v[224:227], v78, s[16:19], 0 offen sc1')
    a('buffer_load_dwordx4 v[228:231], v79, s[16:19], 0 offen sc1')
    a('s_cmp_lg_u32 s3, 0\ns_cbranch_scc1 S_nof1')
    a(f's_lshl_b32 s36, s25, 7\ns_lshl_b32 s56, s26, 2\ns_add_u32 s36, s36, s56\ns_add_u32 s36, s36, {F1}')
    signal(a, 36, 16, 17)
    a.label('S_nof1')
    FA = 80; FB = 144; KA = 208
    for st in range(16):
        a(f'ds_read_b128 {v(FA+4*st,4)}, v72 offset:{st*64}')
        a(f'ds_read_b128 {v(FB+4*st,4)}, v73 offset:{st*64}')
        if st >= 4:
            k = st - 4
            a(f's_waitcnt lgkmcnt(8)')
            a(f'v_mfma_f32_16x16x32_bf16 {v(KA,4)}, {v(FA+4*k,4)}, {v(FB+4*k,4)}, {"0" if k == 0 else v(KA,4)}')
    for k in range(12, 16):
        a(f's_waitcnt lgkmcnt({2*(15-k)})')
        a(f'v_mfma_f32_16x16x32_bf16 {v(KA,4)}, {v(FA+4*k,4)}, {v(FB+4*k,4)}, {v(KA,4)}')
    a(f"""
    v_cvt_pk_bf16_f32 v{KA+4}, v{KA}, v{KA+1}
    v_cvt_pk_bf16_f32 v{KA+5}, v{KA+2}, v{KA+3}
    ds_write_b16 v74, v{KA+4}
    ds_write_b16_d16_hi v75, v{KA+4}
    ds_write_b16 v76, v{KA+5}
    ds_write_b16_d16_hi v77, v{KA+5}
    s_waitcnt lgkmcnt(0)
    s_barrier
    """)
    for e in range(8):
        a(f'ds_read_u16 v{88 + e}, v{244+e}')
    a(f"""
    v_lshrrev_b32 v18, 2, v5
    v_mul_u32_u24 v18, 80, v18
    v_and_b32 v19, 3, v5
    v_lshl_add_u32 v18, v19, 4, v18
    s_mul_i32 s36, s37, {KRCH}
    s_add_u32 s36, s36, {L_KR}
    v_add_u32 v18, s36, v18
    v_mov_b32 v84, 0
    v_mov_b32 v85, 0
    v_mov_b32 v86, 0
    v_mov_b32 v87, 0
    v_mov_b32 v19, s57
    v_cmp_eq_u32 s[40:41], 0, v5
    s_mov_b64 exec, s[40:41]
    ds_read_u16 v84, v19
    s_mov_b64 exec, -1
    s_mul_i32 s36, s37, {264*16}
    s_add_u32 s36, s36, 64
    v_lshl_add_u32 v16, v5, 4, s36
    s_waitcnt lgkmcnt(0)
    v_lshl_or_b32 v80, v89, 16, v88
    v_lshl_or_b32 v81, v91, 16, v90
    v_lshl_or_b32 v82, v93, 16, v92
    v_lshl_or_b32 v83, v95, 16, v94
    ds_write_b128 v18, v[80:83]
    v_cmp_gt_u32 vcc, 128, v5
    s_mov_b64 exec, vcc
    ds_write_b128 v18, v[84:87] offset:{64*80}
    s_mov_b64 exec, -1
    s_waitcnt vmcnt(0)
    """)
    def gbuild(addr, d):
        o = 104; d1 = 112; o1 = 118
        for i in range(7): a(f'v_alignbit_b32 v{o+i}, v{d+i+1}, v{d+i}, 16')
        for i in range(6): a(f'v_mov_b32 v{d1+i}, v{d+i+1}')
        for i in range(6): a(f'v_mov_b32 v{o1+i}, v{o+i+1}')
        src = {0: d, 4: d+2, 1: o, 5: o+2, 2: d1, 6: d1+2, 3: o1, 7: o1+2}
        for sft in range(8):
            a(f'ds_write_b128 v{addr}, {v(src[sft],4)} offset:{sft*GP}')
    gbuild(16, 224)
    a(f"""
    s_and_b32 s36, s3, 3
    s_cmp_lg_u32 s36, 0
    s_cbranch_scc1 S_g2done
    v_mov_b32 v220, 0
    v_mov_b32 v221, 0
    v_mov_b32 v222, 0
    v_mov_b32 v223, 0
    v_subrev_u32 v16, 16, v16
    s_mov_b64 exec, 1
    """)
    gbuild(16, 220)
    a('s_mov_b64 exec, -1')
    a.label('S_g2done')
    a(f"""
    s_cmp_lg_u32 s3, 1
    s_cbranch_scc1 S_g3done
    v_and_b32 v16, 3, v1
    v_cmp_eq_u32 vcc, 3, v16
    v_mov_b32 v19, 260
    v_cndmask_b32 v16, v16, v19, vcc
    v_bfe_u32 v19, v1, 2, 1                ; ch
    v_mul_u32_u24 v19, 264, v19
    v_add_u32 v16, v16, v19
    v_lshrrev_b32 v19, 3, v1               ; copy
    v_mul_u32_u24 v19, {GP}, v19
    v_lshl_add_u32 v16, v16, 4, v19
    v_mov_b32 v84, 0
    ds_write_b128 v16, v[84:87]
    """)
    a.label('S_g3done')
    a(f"""
    s_and_b32 s63, s3, 1                   ; ch
    s_bfe_u32 s61, s3, 0x10001             ; hf
    v_and_b32 v17, 31, v1
    v_lshrrev_b32 v18, 5, v1
    v_and_b32 v19, 7, v17
    v_mul_u32_u24 v19, {GP}, v19
    v_lshrrev_b32 v20, 3, v17
    v_add_u32 v20, v20, v18
    v_lshl_add_u32 v19, v20, 4, v19
    s_mul_i32 s36, s63, {264*16}
    s_lshl_b32 s56, s61, 10
    s_add_u32 s36, s36, s56
    v_add_u32 v24, s36, v19
    v_sub_u32 v20, 31, v17
    v_mul_u32_u24 v20, 80, v20
    v_lshl_add_u32 v20, v18, 4, v20
    s_mul_i32 s36, s63, {KRCH}
    s_mul_i32 s56, s61, {16*80}
    s_add_u32 s36, s36, s56
    s_add_u32 s36, s36, {L_KR}
    v_add_u32 v25, s36, v20
    s_waitcnt lgkmcnt(0)
    s_barrier
    """)
    stamp(a, 4)
    a('s_cmp_ge_u32 s3, 4\ns_cbranch_scc1 S_idle')
    Y0, Y1 = 32, 48
    def aoff(trel): return (trel + 1) * 32
    def boff(srel):
        n = srel + 65
        return (n // 2) * 80 + (n % 2) * 32
    FR = 64; NBUF = 4
    def ld(t):
        b = FR + 16 * (t % NBUF)
        a(f'ds_read_b128 {v(b,4)}, v24 offset:{aoff(t)}')
        a(f'ds_read_b128 {v(b+4,4)}, v25 offset:{boff(t)}')
        a(f'ds_read_b128 {v(b+8,4)}, v25 offset:{boff(t-64)}')
        a(f'ds_read_b128 {v(b+12,4)}, v24 offset:{aoff(t+64)}')
    def mm(t, first):
        b = FR + 16 * (t % NBUF)
        a(f'v_mfma_f32_32x32x16_bf16 {v(Y0,16)}, {v(b,4)}, {v(b+4,4)}, {"0" if first else v(Y0,16)}')
        a(f'v_mfma_f32_32x32x16_bf16 {v(Y1,16)}, {v(b,4)}, {v(b+8,4)}, {"0" if first else v(Y1,16)}')
        a(f'v_mfma_f32_32x32x16_bf16 {v(Y1,16)}, {v(b+12,4)}, {v(b+4,4)}, {v(Y1,16)}')
    a(f'ds_read_b128 v[128:131], v24 offset:{aoff(-1)}')
    a(f'ds_read_b128 v[132:135], v25 offset:{boff(-1)}')
    a(f'ds_read_b128 v[136:139], v25 offset:{boff(-65)}')
    ld(0); ld(1)
    for t in range(32):
        if t + 2 < 32: ld(t + 2)
        a(f's_waitcnt lgkmcnt({4*min(2, 31-t)})')
        mm(t, t == 0)
    a(f"""
    s_cmp_lg_u32 s61, 0
    s_cbranch_scc1 S_noextra
    v_mfma_f32_32x32x16_bf16 {v(Y0,16)}, v[128:131], v[132:135], {v(Y0,16)}
    v_mfma_f32_32x32x16_bf16 {v(Y1,16)}, v[128:131], v[136:139], {v(Y1,16)}
    """)
    a.label('S_noextra')
    a(f"""
    s_mul_i32 s36, s3, {PSRC}
    s_add_u32 s36, s36, {L_PART}
    v_lshl_add_u32 v26, v1, 4, s36
    """)
    for own in range(8):
        a(f'ds_write_b128 v26, {v(Y0 + 4*own, 4)} offset:{own*POWN}')
    a('s_branch S_cdone')
    a.label('S_idle')
    a('s_cmp_lg_u32 s3, 4\ns_cbranch_scc1 S_cdone')
    a('s_sleep 16')
    att_poll(a, 'PL_f1')
    a.label('S_cdone')
    a(f"""
    v_and_b32 v16, 1, v1                   ; ch
    v_bfe_u32 v17, v1, 1, 2                ; j
    v_lshrrev_b32 v18, 3, v1
    v_mul_u32_u24 v19, {POWN}, v17
    v_mul_u32_u24 v20, {PSRC}, v16
    v_add_u32 v19, v19, v20
    v_lshl_add_u32 v19, v18, 4, v19
    s_lshr_b32 s36, s3, 2
    s_mul_i32 s36, s36, {4*POWN}
    s_and_b32 s56, s3, 3
    s_lshl_b32 s56, s56, 7
    s_add_u32 s36, s36, s56
    s_add_u32 s36, s36, {L_PART}
    v_add_u32 v26, s36, v19
    v_lshrrev_b32 v18, 1, v1
    v_mul_u32_u24 v20, 264, v16
    v_add_u32 v18, v18, v20
    s_lshl_b32 s36, s3, 9
    s_add_u32 s36, s36, 64
    v_lshl_add_u32 v28, v18, 4, s36
    s_lshl_b32 s36, s21, 13
    s_lshl_b32 s56, s3, 10
    s_add_u32 s36, s36, s56
    s_add_u32 s36, s36, {WS_YT}
    v_lshl_add_u32 v27, v1, 4, s36
    s_lshl_b32 s56, s39, 16
    s_and_b32 s57, s39, 0xffff0000
    v_mov_b32 v29, s56
    v_mov_b32 v30, s57
    v_cmp_eq_u32 vcc, 1, v16
    v_cndmask_b32 v29, v29, v30, vcc
    s_waitcnt lgkmcnt(0)
    s_barrier
    """)
    stamp(a, 5)
    a(f"""
    ds_read_b128 v[64:67], v26
    ds_read_b128 v[68:71], v26 offset:512
    ds_read_b128 v[72:75], v26 offset:{2*PSRC}
    ds_read_b128 v[76:79], v26 offset:{2*PSRC+512}
    ds_read_b128 v[80:83], v28
    s_waitcnt lgkmcnt(0)
    s_barrier
    """)
    for e in range(8): a(f'v_add_f32 v{64+e}, v{64+e}, v{72+e}')
    for e in range(4):
        a(f'v_lshlrev_b32 v{84+2*e}, 16, v{80+e}')
        a(f'v_and_b32 v{85+2*e}, 0xffff0000, v{80+e}')
    for e in range(8): a(f'v_mul_f32 v{84+e}, v29, v{84+e}')
    for e in range(4):
        a(f'v_cvt_pk_bf16_f32 v{72+e}, v{64+2*e}, v{65+2*e}')
        a(f'v_cvt_pk_bf16_f32 v{76+e}, v{84+2*e}, v{85+2*e}')
    for e in range(4):
        a(f'v_lshlrev_b32 v{64+2*e}, 16, v{72+e}')
        a(f'v_and_b32 v{65+2*e}, 0xffff0000, v{72+e}')
        a(f'v_lshlrev_b32 v{84+2*e}, 16, v{76+e}')
        a(f'v_and_b32 v{85+2*e}, 0xffff0000, v{76+e}')
    for e in range(8): a(f'v_add_f32 v{64+e}, v{64+e}, v{84+e}')
    for e in range(4): a(f'v_cvt_pk_bf16_f32 v{72+e}, v{64+2*e}, v{65+2*e}')
    a('buffer_store_dwordx4 v[72:75], v27, s[16:19], 0 offen sc1')

def att_ids(a):
    a("""
    s_lshl_b32 s40, s22, 1
    s_and_b32 s41, s23, 1
    s_add_u32 s40, s40, s41                ; head
    s_lshr_b32 s41, s23, 1                 ; rbq
    s_mul_i32 s42, s40, 7
    s_lshr_b32 s42, s42, 1                 ; chi0
    """)

def att_poll(a, name):
    att_ids(a)
    a(f"""
    s_lshr_b32 s43, s42, 3
    s_add_u32 s44, s42, 3
    s_lshr_b32 s44, s44, 3
    s_lshl_b32 s43, s43, 7
    s_lshl_b32 s44, s44, 7
    v_mov_b32 v16, s43
    v_mov_b32 v17, s44
    v_cmp_lt_u32 vcc, 31, v1
    v_cndmask_b32 v16, v16, v17, vcc
    v_and_b32 v17, 31, v1
    v_lshl_add_u32 v16, v17, 2, v16
    v_add_u32 v16, {F1}, v16
    """)
    poll(a, name, 16, 17)

OL = 120 * 1024; YL = 152 * 1024; RED = 96 * 1024
def ph_att(a):
    NB = 4
    QF = 16; OA = 32; SB = 64; PB = 96; KB = 112; VB = KB + 8*NB
    a.label('L_att')
    att_ids(a)
    srd(a, 8, P_WO, D * D * 2)
    a(f"""
    s_and_b32 s24, s3, 1                   ; qg
    s_lshr_b32 s27, s3, 1                  ; kq
    s_lshl_b32 s43, s42, 9
    v_lshl_add_u32 v3, v1, 4, s43          ; Q/K voffset
    v_and_b32 v5, 31, v1
    v_lshrrev_b32 v6, 5, v1
    v_mul_u32_u24 v4, 7168, v6
    v_lshl_add_u32 v4, v5, 4, v4
    s_mul_i32 s43, s40, 448
    s_add_u32 s43, s43, {WS_V - WS_K}
    v_add_u32 v4, s43, v4
    v_add_u32 v7, 14336, v4
    s_mov_b32 s46, 0x0fffffff
    s_mov_b32 s47, 0x0fffffff
    s_lshl_b32 s28, s41, 2
    s_lshl_b32 s29, s24, 1
    s_add_u32 s28, s28, s29
    s_mul_i32 s29, s28, {TILEB}
    s_add_u32 s29, s29, {WS_Q}
    s_add_u32 s30, s29, {TILEB}
    s_lshl_b32 s31, s27, 4
    buffer_load_dwordx4 {v(QF,4)}, v3, s[16:19], s29 offen
    buffer_load_dwordx4 {v(QF+4,4)}, v3, s[16:19], s29 offen offset:1024
    buffer_load_dwordx4 {v(QF+8,4)}, v3, s[16:19], s30 offen
    buffer_load_dwordx4 {v(QF+12,4)}, v3, s[16:19], s30 offen offset:1024
    """)
    for r in range(8*NB): a(f'v_mov_b32 v{VB+r}, 0x3f803f80')
    def nextoff():
        a(f"""
        s_mov_b32 s34, s33
        s_add_u32 s35, s32, s41
        s_and_b32 s35, s35, 15
        s_add_u32 s35, s35, s31
        s_mul_i32 s35, s35, {TILEB}
        s_add_u32 s35, s35, {WS_K}
        s_cmp_lt_u32 s32, 16
        s_cselect_b32 s33, s35, {WS_END}
        s_add_u32 s32, s32, 1
        """)
    def loadK(n):
        a(f'buffer_load_dwordx4 {v(KB+8*n,4)}, v3, s[16:19], s33 offen')
        a(f'buffer_load_dwordx4 {v(KB+8*n+4,4)}, v3, s[16:19], s33 offen offset:1024')
    def loadV(n):
        a('s_mov_b64 exec, s[46:47]')
        a(f'buffer_load_dwordx4 {v(VB+8*n,4)}, v4, s[16:19], s34 offen')
        a(f'buffer_load_dwordx4 {v(VB+8*n+4,4)}, v7, s[16:19], s34 offen')
        a('s_mov_b64 exec, -1')
    def loadWo():
        a(f"""
        s_min_u32 s49, s48, 11
        s_lshl_b32 s50, s49, 13
        s_add_u32 m0, s50, s51
        s_mul_i32 s50, s49, 28672
        s_add_u32 s48, s48, 1
        buffer_load_dwordx4 v8, s[8:11], s50 offen lds
        """)
    a('s_mov_b32 s32, 0\ns_mov_b32 s33, 0')
    for j in range(-NB, 0):
        nextoff(); loadK((j + NB) % NB)
        if j >= 1 - NB: loadV((j - 1 + NB) % NB)
    for r in range(32): a(f'v_mov_b32 v{OA+r}, 0')
    for r in range(16): a(f'v_mov_b32 v{PB+r}, 0')
    nout = 2 + 4*(NB-1)
    a(f"""
    s_lshr_b32 s52, s40, 2
    s_lshl_b32 s53, s41, 2
    s_add_u32 s52, s52, s53
    s_and_b32 s53, s40, 3
    v_lshrrev_b32 v8, 4, v1
    v_and_b32 v9, 15, v1
    v_lshlrev_b32 v10, 2, v8
    v_xor_b32 v9, v9, v10
    v_lshlrev_b32 v9, 4, v9
    v_mul_u32_u24 v8, 896, v8
    v_add_u32 v8, v8, v9
    s_lshl_b32 s49, s53, 8
    s_mul_i32 s50, s3, 3584
    s_add_u32 s49, s49, s50
    v_add_u32 v8, s49, v8
    s_lshl_b32 s51, s3, 10
    s_mov_b32 s48, 0
    s_and_b32 s36, s40, 1
    s_cmp_eq_u32 s36, 0
    s_cselect_b32 s43, -1, 0
    s_mov_b32 s42, 0
    s_cselect_b32 s44, 0, -1
    s_mov_b32 s45, 0
    s_waitcnt vmcnt({nout})
    s_mov_b64 exec, s[42:43]
    v_mov_b32 v{QF+6}, 0
    v_mov_b32 v{QF+7}, 0
    v_mov_b32 v{QF+14}, 0
    v_mov_b32 v{QF+15}, 0
    s_mov_b64 exec, s[44:45]
    v_mov_b32 v{QF+0}, 0
    v_mov_b32 v{QF+1}, 0
    v_mov_b32 v{QF+8}, 0
    v_mov_b32 v{QF+9}, 0
    s_mov_b64 exec, -1
    s_waitcnt vmcnt({nout-2})
    v_mfma_f32_32x32x16_bf16 {v(SB,16)}, {v(KB,4)}, {v(QF,4)}, 0
    v_mfma_f32_32x32x16_bf16 {v(SB,16)}, {v(KB+4,4)}, {v(QF+4,4)}, {v(SB,16)}
    s_mov_b32 s37, 0
    s_lshl_b32 s36, s21, 5
    s_lshl_b32 s49, s3, 2
    s_add_u32 s36, s36, s49
    s_add_u32 s36, s36, {F3}
    s_cmp_lt_u32 s23, 28
    s_cselect_b32 s36, s36, {WS_END}
    """)
    signal(a, 36, 9, 10)
    stamp(a, 6)
    a('.p2align 6')
    a.label('A_loop')
    for u in range(2*NB):
        t = u % 2
        kn = ((u + 1) // 2) % NB
        vn = ((u - 1) // 2) % NB
        Sn = SB + 16*((u+1) % 2); Sc = SB + 16*(u % 2)
        Pc = PB + 8*(u % 2); Pp = PB + 8*((u+1) % 2)
        Qn = QF + 8*(1-t); On = OA + 16*(1-t)
        if u % 2 == 1:
            j = (u - 1) // 2
            nextoff(); loadK(j % NB); loadV((j - 1) % NB)
            a(f's_waitcnt vmcnt({4*(NB-1)})')
            loadWo()
        M = [f'v_mfma_f32_32x32x16_bf16 {v(Sn,16)}, {v(KB+8*kn,4)}, {v(Qn,4)}, 0',
             f'v_mfma_f32_32x32x16_bf16 {v(Sn,16)}, {v(KB+8*kn+4,4)}, {v(Qn+4,4)}, {v(Sn,16)}',
             f'v_mfma_f32_32x32x16_bf16 {v(On,16)}, {v(VB+8*vn,4)}, {v(Pp,4)}, {v(On,16)}',
             f'v_mfma_f32_32x32x16_bf16 {v(On,16)}, {v(VB+8*vn+4,4)}, {v(Pp+4,4)}, {v(On,16)}']
        for g in range(4):
            a(M[g])
            for e in range(4): a(f'v_exp_f32 v{Sc+4*g+e}, v{Sc+4*g+e}')
            a(f'v_cvt_pk_bf16_f32 v{Pc+2*g}, v{Sc+4*g}, v{Sc+4*g+1}')
            a(f'v_cvt_pk_bf16_f32 v{Pc+2*g+1}, v{Sc+4*g+2}, v{Sc+4*g+3}')
    a(f"""
    s_add_u32 s37, s37, 1
    s_cmp_lt_u32 s37, {16//NB}
    s_cbranch_scc1 A_loop
    """)
    stamp(a, 7)
    a(f'v_mfma_f32_32x32x16_bf16 {v(OA+16,16)}, {v(VB+8*(NB-1),4)}, {v(PB+8,4)}, {v(OA+16,16)}')
    a(f'v_mfma_f32_32x32x16_bf16 {v(OA+16,16)}, {v(VB+8*(NB-1)+4,4)}, {v(PB+12,4)}, {v(OA+16,16)}')
    a(f"""
    s_lshl_b32 s36, s24, 15
    s_add_u32 s36, s36, {RED}
    s_lshl_b32 s38, s27, 11
    s_add_u32 s38, s38, s36
    v_lshlrev_b32 v2, 4, v1
    v_add_u32 v9, s38, v2
    s_lshl_b32 s38, s27, 13
    s_add_u32 s38, s38, s36
    v_add_u32 v10, s38, v2
    s_or_b32 s38, s27, 1
    s_lshl_b32 s38, s38, 13
    s_add_u32 s38, s38, s36
    s_add_u32 s38, s38, {1024 + 512}
    v_lshlrev_b32 v11, 4, v5
    v_add_u32 v11, s38, v11
    """)
    for own in range(4):
        for q in range(2):
            a(f'ds_write_b128 v9, {v(OA + 8*own + 4*q, 4)} offset:{own*8192 + q*1024}')
    a('s_waitcnt lgkmcnt(0)\ns_barrier')
    R = 64
    for src in range(4):
        a(f'ds_read_b32 v{12+src}, v11 offset:{src*2048}')
    for src in range(4):
        for q in range(2):
            a(f'ds_read_b128 {v(R + 8*src + 4*q, 4)}, v10 offset:{src*2048 + q*1024}')
    a(f"""
    s_and_b32 s36, s27, 1
    s_cmp_eq_u32 s36, 1
    s_cselect_b32 s43, -1, 0
    s_mov_b32 s42, 0
    s_lshr_b32 s38, s27, 1
    s_add_u32 s38, s38, s28
    s_lshl_b32 s38, s38, 15
    s_lshl_b32 s39, s40, 11
    s_add_u32 s38, s38, s39
    s_lshl_b32 s39, s36, 10
    s_add_u32 s38, s38, s39
    s_add_u32 s38, s38, {WS_O}
    s_waitcnt lgkmcnt(8)
    v_add_f32 v12, v12, v13
    v_add_f32 v14, v14, v15
    v_add_f32 v12, v12, v14
    v_rcp_f32 v12, v12
    s_waitcnt lgkmcnt(0)
    """)
    a('v_cndmask_b32 v13, v12, 0, s[42:43]')
    for r in range(8):
        a(f'v_add_f32 v{R+r}, v{R+r}, v{R+8+r}')
        a(f'v_add_f32 v{R+16+r}, v{R+16+r}, v{R+24+r}')
    for r in range(8): a(f'v_add_f32 v{R+r}, v{R+r}, v{R+16+r}')
    for r in range(8): a(f'v_mul_f32 v{R+r}, v{R+r}, v{12 if r < 4 else 13}')
    for r in range(4): a(f'v_cvt_pk_bf16_f32 v{R+8+r}, v{R+2*r}, v{R+2*r+1}')
    a(f'buffer_store_dwordx4 {v(R+8,4)}, v2, s[16:19], s38 offen sc1')
    stamp(a, 8)

def ph_out(a):
    a(f"""
    s_cmp_lg_u32 s3, 4
    s_cbranch_scc1 P_nop3
    s_cmp_ge_u32 s23, 28
    s_cbranch_scc1 P_nop3
    s_lshl_b32 s36, s25, 10
    s_add_u32 s36, s36, {F3}
    v_add_u32 v16, s36, v2
    """)
    poll(a, 'PL_f3', 16, 20, x4=True)
    a.label('P_nop3')
    a('s_waitcnt vmcnt(0)\ns_barrier')
    a('s_cmp_lg_u32 s3, 0\ns_cbranch_scc1 P_nof2')
    a(f's_lshl_b32 s36, s41, 7\ns_lshl_b32 s37, s40, 2\ns_add_u32 s36, s36, s37\ns_add_u32 s36, s36, {F2}')
    signal(a, 36, 16, 17)
    a.label('P_nof2')
    stamp(a, 9)
    for r in (12, 13, 14):
        a(f's_add_u32 m0, s51, {r*8192}')
        a(f's_mov_b32 s50, {r*28672}')
        a(f'buffer_load_dwordx4 v8, s[8:11], s50 offen lds')
    a(f"""
    s_cmp_ge_u32 s23, 28
    s_cbranch_scc1 P_noy
    v_lshrrev_b32 v16, 1, v1
    v_lshlrev_b32 v16, 13, v16
    v_and_b32 v17, 1, v1
    v_lshl_add_u32 v16, v17, 4, v16
    s_lshl_b32 s36, s25, 18
    s_lshl_b32 s37, s26, 8
    s_add_u32 s36, s36, s37
    s_lshl_b32 s37, s3, 5
    s_add_u32 s36, s36, s37
    s_add_u32 s36, s36, {WS_YT}
    s_add_u32 m0, s51, {YL}
    s_nop 0
    buffer_load_dwordx4 v16, s[16:19], s36 offen sc1 lds
    ; tr supplier address: (8*oct + r)*16 + rq*8 (+64 for second half), Q = 4*(l/16)+l%4, oct = Q%8, rq = Q/8
    v_lshrrev_b32 v17, 4, v1
    v_and_b32 v18, 3, v1
    v_lshl_add_u32 v17, v17, 2, v18
    v_and_b32 v18, 7, v17
    v_lshrrev_b32 v17, 3, v17
    v_bfe_u32 v19, v1, 2, 2
    v_lshl_add_u32 v18, v18, 3, v19
    v_lshlrev_b32 v18, 4, v18
    v_lshl_add_u32 v18, v17, 3, v18
    s_add_u32 s36, s51, {YL}
    v_add_u32 v18, s36, v18
    ; store: row = 64rb + 8w + 4*(l/32) + l%4 ; col byte = 896 + 128c + 16*((l/4)%8)
    v_and_b32 v19, 3, v1
    v_lshl_add_u32 v19, v6, 2, v19
    s_lshl_b32 s36, s26, 6
    s_lshl_b32 s37, s3, 3
    s_add_u32 s36, s36, s37
    v_add_u32 v19, s36, v19
    v_mul_u32_u24 v19, 1792, v19
    v_bfe_u32 v17, v1, 2, 3
    v_lshl_add_u32 v19, v17, 4, v19
    s_lshl_b32 s36, s25, 7
    s_add_u32 s36, s36, 896
    s_waitcnt vmcnt(0)
    ds_read_b64_tr_b16 v[20:21], v18
    ds_read_b64_tr_b16 v[22:23], v18 offset:64
    s_waitcnt lgkmcnt(0)
    buffer_store_dwordx4 v[20:23], v19, s[12:15], s36 offen
    """)
    a.label('P_noy')
    a(f"""
    s_and_b32 s29, s3, 3                   ; ct
    v_bfe_u32 v7, v1, 2, 2
    v_xor_b32 v12, s29, v7
    v_lshlrev_b32 v12, 6, v12
    v_bfe_u32 v9, v1, 4, 1
    v_lshl_add_u32 v12, v9, 5, v12
    v_and_b32 v9, 3, v1
    v_lshl_add_u32 v12, v9, 3, v12
    v_lshl_add_u32 v9, v6, 2, v7
    v_lshl_add_u32 v12, v9, 8, v12
    v_add_u32 v13, {224*256}, v12          ; heads 8..15
    v_add_u32 v10, {OL}, v2
    s_lshl_b32 s36, s52, 15
    s_add_u32 s36, s36, s51
    s_add_u32 s36, s36, {WS_O}
    v_add_u32 v14, s36, v2
    v_and_b32 v11, 31, v1
    s_lshl_b32 s36, s52, 5
    v_add_u32 v11, s36, v11
    v_mul_u32_u24 v11, 1792, v11
    v_lshl_add_u32 v11, v6, 4, v11
    s_lshl_b32 s30, s53, 2
    s_add_u32 s30, s30, s29
    s_lshl_b32 s32, s30, 6
    s_cmp_lg_u32 s3, 0
    s_cbranch_scc1 P_nop2
    s_lshl_b32 s36, s41, 7
    s_add_u32 s36, s36, {F2}
    v_lshl_add_u32 v16, v1, 2, s36
    """)
    poll(a, 'PL_f2', 16, 17, mask=0xffff, sleep=2)
    a.label('P_nop2')
    a('s_barrier')
    stamp(a, 10)
    for st in range(4):
        a(f's_add_u32 m0, s51, {OL + st*8192}')
        a(f's_mov_b32 s50, {st*8192}')
        a(f'buffer_load_dwordx4 v14, s[16:19], s50 offen sc1 lds')
    a(f"""
    s_cmp_lt_u32 s30, 14
    s_cselect_b32 s31, 1, 0
    s_cmp_lt_u32 s3, 4
    s_cselect_b32 s31, s31, 0
    s_cmp_eq_u32 s31, 0
    s_cbranch_scc1 P_idle
    """)
    ACC = 16; WF = 32; OF = 160
    def wread(hd):
        for f in range(2):
            for e in range(2):
                row = 28*hd + 16*f + 8*e - (224 if hd >= 8 else 0)
                a(f'ds_read_b64_tr_b16 {v(WF + 8*hd + 4*f + 2*e, 2)}, v{13 if hd >= 8 else 12} offset:{row*256}')
    for hd in range(13): wread(hd)
    a('s_waitcnt vmcnt(0) lgkmcnt(0)\ns_barrier')
    stamp(a, 11)
    for hd in range(13, 16): wread(hd)
    def oread(st):
        for n in range(8):
            a(f'ds_read_b128 {v(OF + 32*(st%2) + 4*n, 4)}, v10 offset:{st*8192 + n*1024}')
    def mf(st):
        for n in range(8):
            c = '0' if (st == 0 and n == 0) else v(ACC, 16)
            a(f'v_mfma_f32_32x32x16_bf16 {v(ACC,16)}, {v(WF + 32*st + 4*n,4)}, {v(OF + 32*(st%2) + 4*n,4)}, {c}')
    oread(0)
    for st in range(4):
        a('s_waitcnt lgkmcnt(0)')
        if st < 3: oread(st + 1)
        mf(st)
    T = 40
    for r in range(8): a(f'v_cvt_pk_bf16_f32 v{T+r}, v{ACC+2*r}, v{ACC+2*r+1}')
    for q in range(2):
        a(f'v_permlane32_swap_b32 v{T+4*q}, v{T+4*q+2}')
        a(f'v_permlane32_swap_b32 v{T+4*q+1}, v{T+4*q+3}')
    a(f'buffer_store_dwordx4 {v(T,4)}, v11, s[12:15], s32 offen')
    a(f'buffer_store_dwordx4 {v(T+4,4)}, v11, s[12:15], s32 offen offset:32')
    a('s_branch P_fin')
    a.label('P_idle')
    a('s_waitcnt vmcnt(0)\ns_barrier')
    a('s_cmp_lg_u32 s2, 0\ns_cbranch_scc1 P_fin\ns_cmp_lg_u32 s3, 4\ns_cbranch_scc1 P_fin')
    srd(a, 56, P_DBG, 256)
    a('s_mov_b64 exec, 1\ns_mov_b32 s62, 0')
    a.label('PL_ep')
    a(f"""
    buffer_load_dword v17, off, s[56:59], 0 sc1
    s_waitcnt vmcnt(0)
    v_cmp_ne_u32 vcc, 0x100, v17
    s_nop 4
    s_cbranch_vccz PL_ep_ok
    s_sleep 4
    s_add_u32 s62, s62, 1
    s_cmp_lt_u32 s62, {POLL_LIMIT}
    s_cbranch_scc1 PL_ep
    """)
    a.label('PL_ep_ok')
    a(f's_mov_b32 s36, {EPOCH}')
    signal(a, 36, 16, 17)
    a.label('P_fin')

def kernel(a):
    if STAMPS:
        a('v_mov_b32 v254, 0')
        stamp(a, 0)
    prologue(a)
    ph_qkv(a)
    ph_ssm(a)
    ph_att(a)
    ph_out(a)
    if STAMPS:
        a('s_waitcnt vmcnt(0)')
        stamp(a, 12)
        a(f"""
        s_mov_b32 s18, {WS_STAMP + (1<<20)}
        s_lshl_b32 s36, s2, 3
        s_add_u32 s36, s36, s3
        s_lshl_b32 s36, s36, 6
        s_add_u32 s36, s36, {WS_STAMP}
        v_lshl_add_u32 v2, v1, 2, s36
        s_mov_b64 exec, 0xffff
        buffer_store_dword v254, v2, s[16:19], 0 offen
        """)
    a.label('L_end')
    a('s_endpgm')

def build(path):
    hdr = open(f'cdna_kernels/{NAME}.s.ref').read().split('\n')
    out = [l for l in hdr if l.startswith(';') and '@launch' not in l][:16]
    out.append(f'; @launch grid=(256,1,1) block=(512,1,1) lds={LDS_TOTAL}')
    out.append('.amdgcn_target "amdgcn-amd-amdhsa--gfx950"')
    out.append('.text')
    label = NAME + '_kernel'
    a = Asm(); kernel(a)
    txt = '\n'.join(out) + f'\n.globl {label}\n.p2align 8\n.type {label},@function\n{label}:\n' + a.finalize()
    txt += f'''.section .rodata,"a"
.p2align 6
.amdhsa_kernel {label}
  .amdhsa_next_free_vgpr 256
  .amdhsa_next_free_sgpr 102
  .amdhsa_accum_offset 256
  .amdhsa_group_segment_fixed_size 0
  .amdhsa_kernarg_size 104
  .amdhsa_user_sgpr_count 2
  .amdhsa_user_sgpr_kernarg_segment_ptr 1
  .amdhsa_system_sgpr_workgroup_id_x 1
.end_amdhsa_kernel
'''
    open(path, 'w').write(txt)

if __name__ == '__main__':
    if '--stamps' in sys.argv: STAMPS = True; sys.argv.remove('--stamps')
    build(sys.argv[1] if len(sys.argv) > 1 else f'cdna_kernels/{NAME}.s')
```

```python
import sys, math, struct
sys.path.insert(0, 'work')
from asmgen import *

STAMPS = False
NAME = 'concat_heads__mha_block__ssm_conv_s4d__prompt'
S = 2048; D = 448; H = 16; DH = 28
TILEB = 56 * 512
F0 = 0; F1 = 1024; F2 = 2048; EPOCH = 4096; F3 = 8192
WS_Q = 16384
WS_K = WS_Q + 64 * TILEB
WS_V = WS_K + 64 * TILEB
WS_O = WS_V + 64 * TILEB
WS_UT = WS_O + 64 * 32768
WS_YT = WS_UT + 112 * 16384
WS_END = WS_YT + 224 * 8192
WS_STAMP = 16 << 20
LDS_TOTAL = 163840
POLL_LIMIT = 20000

def f32bits(x): return struct.unpack('<I', struct.pack('<f', x))[0]
QSCALE = math.log2(math.e) / math.sqrt(DH)
LOG2E = math.log2(math.e)
P_X, P_W, P_WO, P_U, P_LA, P_AI, P_CR, P_CI, P_DT, P_DS, P_OUT, P_DBG, P_WS = [64 + 2*i for i in range(13)]

def stamp(a, n):
    if STAMPS:
        a('s_memrealtime s[90:91]')
        a('s_waitcnt lgkmcnt(0)')
        a(f'v_writelane_b32 v254, s90, {n}')

def srd(a, base_s, ptr_s, nbytes):
    a(f's_mov_b32 s{base_s}, s{ptr_s}')
    a(f's_and_b32 s{base_s+1}, s{ptr_s+1}, 0xffff')
    a(f's_mov_b32 s{base_s+2}, {nbytes}')
    a(f's_mov_b32 s{base_s+3}, 0x20000')

def poll(a, name, voff, tmp, mask=-1, x4=False, sleep=4):
    if mask != -1:
        a(f's_mov_b32 exec_lo, {mask & 0xffffffff}')
        a(f's_mov_b32 exec_hi, {mask >> 32}')
    a('s_mov_b32 s62, 0')
    a.label(name)
    if x4:
        a(f'buffer_load_dwordx4 {v(tmp,4)}, v{voff}, s[16:19], 0 offen sc1')
        a('s_waitcnt vmcnt(0)')
        for i in range(4): a(f'v_xor_b32 v{tmp+i}, s20, v{tmp+i}')
        a(f'v_or3_b32 v{tmp}, v{tmp}, v{tmp+1}, v{tmp+2}')
        a(f'v_or_b32 v{tmp}, v{tmp}, v{tmp+3}')
        a(f'v_cmp_ne_u32 vcc, 0, v{tmp}')
    else:
        a(f'buffer_load_dword v{tmp}, v{voff}, s[16:19], 0 offen sc1')
        a('s_waitcnt vmcnt(0)')
        a(f'v_cmp_ne_u32 vcc, s20, v{tmp}')
    a('s_nop 4')
    a(f's_cbranch_vccz {name}_ok')
    a(f's_sleep {sleep}')
    a('s_add_u32 s62, s62, 1')
    a(f's_cmp_lt_u32 s62, {POLL_LIMIT}')
    a(f's_cbranch_scc1 {name}')
    a.label(name + '_ok')
    a('s_mov_b64 exec, -1')

def signal(a, soff, vt0, vt1):
    a(f'v_mov_b32 v{vt0}, s{soff}')
    a(f'v_mov_b32 v{vt1}, s20')
    a('s_mov_b64 exec, 1')
    a(f'buffer_store_dword v{vt1}, v{vt0}, s[16:19], 0 offen sc1')
    a('s_mov_b64 exec, -1')

def arrive(a):
    srd(a, 56, P_DBG, 256)
    a('v_mov_b32 v2, 1')
    a('s_mov_b64 exec, 1')
    a('buffer_atomic_add v2, off, s[56:59], 0 sc1')
    a('s_mov_b64 exec, -1')

def prologue(a):
    a(f"""
    s_cmp_ge_u32 s2, 256
    s_cbranch_scc1 L_end
    s_load_dwordx16 s[64:79], s[0:1], 0
    s_load_dwordx8 s[80:87], s[0:1], 64
    s_load_dwordx2 s[88:89], s[0:1], 96
    v_and_b32 v1, 63, v0
    v_lshrrev_b32 v2, 6, v0
    v_readfirstlane_b32 s3, v2
    s_and_b32 s22, s2, 7
    s_lshr_b32 s23, s2, 3
    s_mul_i32 s24, s23, 37
    s_lshr_b32 s24, s24, 8                 ; m / 7
    s_mul_i32 s25, s24, 7
    s_sub_u32 s25, s23, s25                ; c
    s_lshl_b32 s26, s22, 2
    s_add_u32 s26, s26, s24                ; rb
    s_mul_i32 s21, s22, 28
    s_add_u32 s21, s21, s23
    s_waitcnt lgkmcnt(0)
    """)
    srd(a, 16, P_WS, WS_END)
    a(f's_mov_b32 s36, {EPOCH}')
    a('buffer_load_dword v253, off, s[16:19], s36 sc1')
    srd(a, 12, P_OUT, S * 2 * D * 2)
    a("""
    s_cmp_lt_u32 s23, 28
    s_cbranch_scc1 L_full
    s_waitcnt vmcnt(0)
    v_readfirstlane_b32 s20, v253
    s_add_u32 s20, s20, 1
    s_barrier
    s_cmp_lg_u32 s3, 0
    s_cbranch_scc1 L_lite1
    """)
    arrive(a)
    a('s_sleep 64')
    att_poll(a, 'PL_f1b')
    a.label('L_lite1')
    a('s_barrier')
    a('s_branch L_att')
    a.label('L_full')

RING0 = 98304; SLOT = 16384; NS = 4; DEPTH = 3
def slot_of(j): return (j + 2) % NS

def ph_qkv(a):
    srd(a, 8, P_X, S * D * 2)
    srd(a, 4, P_W, D * 3 * D * 2)
    for i in range(4): srd(a, 40 + 4*i, P_LA + 2*i, D * 256 * 2)
    a(f"""
    s_lshl_b32 s36, s21, 2
    s_add_u32 s{P_DT}, s{P_DT}, s36
    s_addc_u32 s{P_DT+1}, s{P_DT+1}, 0
    s_add_u32 s{P_DS}, s{P_DS}, s36
    s_addc_u32 s{P_DS+1}, s{P_DS+1}, 0
    s_load_dword s38, s[{P_DT}:{P_DT+1}], 0
    s_load_dword s39, s[{P_DS}:{P_DS+1}], 0
    s_lshl_b32 s27, s24, 1
    s_add_u32 s27, s27, s25
    s_sub_u32 s28, s27, 7
    s_cmp_ge_u32 s27, 7
    s_cselect_b32 s27, s28, s27            ; rho
    s_lshl_b32 s37, s21, 10
    v_lshlrev_b32 v243, 1, v0
    v_add_u32 v243, s37, v243
    s_cmp_lt_u32 s3, 4
    s_cbranch_scc1 Q_comp
    """)
    def params():
        for i in range(4):
            a(f'buffer_load_ushort v{244+i}, v243, s[{40+4*i}:{43+4*i}], 0 offen')
    K_, V_, Q_ = 1, 2, 0
    stages = [[('x',0),(K_,0)], [(V_,0),(Q_,0)], [('x',1),(K_,1)], [(V_,1),(Q_,1)]]
    for i in range(2, 7): stages.append([('x', i), (K_, i)])
    rest = [(V_, i) for i in range(2, 7)] + [(Q_, i) for i in range(2, 7)]
    for i in range(5): stages.append(rest[2*i:2*i+2])
    NST = len(stages)
    a(f"""
    s_sub_u32 s29, s3, 4
    v_lshrrev_b32 v3, 3, v1
    v_and_b32 v4, 7, v1
    s_lshl_b32 s30, s29, 4
    v_add_u32 v5, s30, v3
    v_lshrrev_b32 v6, 1, v5
    v_and_b32 v6, 7, v6
    v_xor_b32 v6, v6, v4
    v_lshlrev_b32 v6, 4, v6
    s_lshl_b32 s31, s26, 6
    v_add_u32 v7, s31, v5
    v_mul_u32_u24 v7, 896, v7
    v_add_u32 v10, v7, v6
    v_xor_b32 v6, 64, v6
    v_add_u32 v11, v7, v6
    v_add_u32 v11, 7168, v11
    v_lshrrev_b32 v6, 1, v5
    v_and_b32 v6, 1, v6
    v_lshlrev_b32 v6, 2, v6
    v_xor_b32 v6, v6, v4
    v_lshlrev_b32 v6, 4, v6
    v_mul_u32_u24 v7, 2688, v5
    v_add_u32 v12, v7, v6
    s_lshl_b32 s31, s25, 7
    v_add_u32 v12, s31, v12
    v_add_u32 v13, 21504, v12
    s_lshl_b32 s32, s29, 11
    """)
    def chunk_off(i, kind):
        a(f's_add_u32 s33, s27, {i}')
        a(f's_sub_u32 s34, s33, 7')
        a(f's_cmp_ge_u32 s33, 7')
        a(f's_cselect_b32 s33, s34, s33')
        if kind == 'x': a('s_lshl_b32 s33, s33, 7')
        else:
            a(f's_mul_i32 s33, s33, {64*2688}')
            if kind: a(f's_add_u32 s33, s33, {kind*896}')
    def issue(j):
        for half, (kind, i) in enumerate(stages[j]):
            base = RING0 + slot_of(j) * SLOT + half * 8192
            chunk_off(i, kind)
            for e in range(2):
                a(f's_add_u32 m0, s32, {base + e*1024}')
                if kind == 'x': a(f'buffer_load_dwordx4 v{10+e}, s[8:11], s33 offen lds')
                else:           a(f'buffer_load_dwordx4 v{12+e}, s[4:7], s33 offen lds')
    for j in range(DEPTH): issue(j)
    params()
    a('s_waitcnt lgkmcnt(0)')
    for j in range(NST):
        later = min(NST, j + DEPTH) - (j + 1)
        extra = 4 if j < DEPTH else 0
        a(f's_waitcnt vmcnt({4*later + extra})')
        if j == 0: a('v_readfirstlane_b32 s20, v253\ns_add_u32 s20, s20, 1')
        a('s_barrier')
        if j == 0: stamp(a, 1)
        if j + DEPTH < NST: issue(j + DEPTH)
    a('s_branch Q_done')
    a.label('Q_comp')
    XF = 64; ACC = {K_: 176, V_: 192, Q_: 208}; WB = [[8 + 4*i for i in range(8)], [224 + 4*i for i in range(4)] + [40 + 4*i for i in range(4)]]
    srd(a, 56, P_U, S * D * 2)
    a(f"""
    ; u tile DMA: instr n = 2*wave+e covers rows 8n..8n+7 ; lane: row = 8n + l/8, pos p = l%8 holds chunk p ^ n
    v_lshrrev_b32 v3, 3, v1
    v_and_b32 v4, 7, v1
    s_lshl_b32 s29, s3, 1
    v_xor_b32 v5, s29, v4
    v_lshlrev_b32 v5, 4, v5
    s_lshl_b32 s30, s26, 6
    s_lshl_b32 s31, s3, 4
    s_add_u32 s30, s30, s31
    v_add_u32 v6, s30, v3
    v_mul_u32_u24 v6, 896, v6
    s_lshl_b32 s31, s25, 7
    v_add_u32 v6, s31, v6
    v_add_u32 v7, v6, v5
    v_xor_b32 v5, 16, v5
    v_add_u32 v6, v6, v5
    v_add_u32 v6, 7168, v6
    s_lshl_b32 s31, s3, 11
    s_mov_b32 m0, s31
    s_nop 0
    buffer_load_dwordx4 v7, s[56:59], 0 offen lds
    s_add_u32 m0, s31, 1024
    s_nop 0
    buffer_load_dwordx4 v6, s[56:59], 0 offen lds
    """)
    params()
    a(f"""
    s_and_b32 s29, s3, 1                   ; rt
    s_lshr_b32 s30, s3, 1                  ; cg
    v_and_b32 v3, 31, v1
    v_lshrrev_b32 v4, 5, v1
    s_lshl_b32 s31, s29, 5
    v_add_u32 v5, s31, v3
    v_lshrrev_b32 v6, 1, v5
    v_and_b32 v6, 7, v6
    v_lshlrev_b32 v7, 7, v5
    v_add_u32 v7, {RING0}, v7
    """)
    for st in range(4):
        a(f"""
        v_add_u32 v{56+st}, {2*st}, v4
        v_xor_b32 v{56+st}, v{56+st}, v6
        v_lshl_add_u32 v{56+st}, v{56+st}, 4, v7
        """)
    a(f"""
    v_and_b32 v6, 3, v1
    v_lshlrev_b32 v6, 3, v6
    v_bfe_u32 v7, v1, 4, 1
    v_lshl_add_u32 v6, v7, 5, v6
    s_lshl_b32 s31, s30, 6
    v_add_u32 v6, s31, v6
    v_bfe_u32 v7, v1, 3, 1
    v_lshlrev_b32 v7, 6, v7
    v_xor_b32 v6, v6, v7
    v_bfe_u32 v7, v1, 2, 2
    v_lshl_add_u32 v7, v4, 3, v7
    v_lshl_add_u32 v60, v7, 7, v6
    v_add_u32 v60, {RING0}, v60
    s_lshl_b32 s31, s26, 1
    s_add_u32 s31, s31, s29
    s_mul_i32 s31, s31, {TILEB}
    s_lshl_b32 s33, s25, 3
    s_lshl_b32 s34, s30, 2
    s_add_u32 s33, s33, s34
    s_lshl_b32 s34, s33, 9
    s_add_u32 s34, s34, s31
    v_lshlrev_b32 v61, 4, v1
    v_add_u32 v61, s34, v61
    s_lshl_b32 s34, s33, 7
    s_add_u32 s34, s34, s31
    v_mul_u32_u24 v62, 7168, v4
    v_lshl_add_u32 v62, v3, 4, v62
    v_add_u32 v62, s34, v62
    s_mov_b32 s35, {f32bits(QSCALE)}
    ; u transpose: supplier address (instr n): (8*(Q%8) + r)*128 + ((n ^ (Q%8))*16) + (Q/8)*8, Q = 4*(l/16) + l%4, r = (l%16)/4
    v_lshrrev_b32 v5, 4, v1
    v_and_b32 v6, 3, v1
    v_lshl_add_u32 v5, v5, 2, v6           ; Q
    v_and_b32 v6, 7, v5                    ; rho
    v_lshrrev_b32 v5, 3, v5                ; Q/8
    v_bfe_u32 v7, v1, 2, 2
    v_lshl_add_u32 v7, v6, 3, v7
    v_lshlrev_b32 v7, 7, v7
    v_lshl_add_u32 v7, v5, 3, v7
    s_lshl_b32 s31, s3, 1
    v_xor_b32 v6, s31, v6
    v_lshl_add_u32 v240, v6, 4, v7         ; n = 2w
    v_xor_b32 v241, 16, v240               ; n = 2w+1
    ; u^T store voffset: (16c + 2n + l/32)*16384 + 8rb*64 + (l%32)*16
    s_lshl_b32 s31, s25, 4
    s_lshl_b32 s33, s3, 2
    s_add_u32 s31, s31, s33
    s_lshl_b32 s31, s31, 14
    s_lshl_b32 s33, s26, 9
    s_add_u32 s31, s31, s33
    s_add_u32 s31, s31, {WS_UT}
    v_lshlrev_b32 v242, 14, v4
    v_lshl_add_u32 v242, v3, 4, v242
    v_add_u32 v242, s31, v242
    s_waitcnt vmcnt(6) lgkmcnt(0)
    v_readfirstlane_b32 s20, v253
    s_add_u32 s20, s20, 1
    """)
    def reads(j):
        sb = slot_of(j) * SLOT
        n = 0
        for half, (kind, i) in enumerate(stages[j]):
            base = sb + half * 8192
            if kind == 'x':
                for st in range(4):
                    a(f'ds_read_b128 {v(XF + 16*i + 4*st, 4)}, v{56 + st} offset:{base}')
            else:
                for st in range(4):
                    r = WB[j % 2][n]; n += 1
                    for e in range(2):
                        a(f'ds_read_b64_tr_b16 {v(r + 2*e, 2)}, v60 offset:{base + (16*st + 4*e)*128}')
    started = set()
    def epilogue(kind):
        acc = ACC[kind]
        out = []
        if kind == Q_:
            for r in range(16): out.append(f'v_mul_f32 v{acc+r}, s35, v{acc+r}')
        for r in range(8):
            out.append(f'v_cvt_pk_bf16_f32 v{acc+r}, v{acc+2*r}, v{acc+2*r+1}')
        T = acc
        if kind == V_:
            out.append(f's_mov_b32 s36, {WS_V}')
            out.append(f'buffer_store_dwordx4 {v(T,4)}, v62, s[16:19], s36 offen sc1')
            out.append(f's_mov_b32 s36, {WS_V + 2*7168}')
            out.append(f'buffer_store_dwordx4 {v(T+4,4)}, v62, s[16:19], s36 offen sc1')
        else:
            for q in range(2):
                out.append(f'v_permlane32_swap_b32 v{T+4*q}, v{T+4*q+2}')
                out.append(f'v_permlane32_swap_b32 v{T+4*q+1}, v{T+4*q+3}')
            out.append(f's_mov_b32 s36, {WS_Q if kind == Q_ else WS_K}')
            out.append(f'buffer_store_dwordx4 {v(T,4)}, v61, s[16:19], s36 offen sc1')
            out.append(f'buffer_store_dwordx4 {v(T+4,4)}, v61, s[16:19], s36 offen offset:1024 sc1')
        return out
    def mfmas(j, filler):
        n = 0; done = []
        for half, (kind, i) in enumerate(stages[j]):
            if kind == 'x': continue
            acc = ACC[kind]
            for st in range(4):
                w = WB[j % 2][n]; n += 1
                x = XF + 16*i + 4*st
                c = v(acc, 16) if kind in started else '0'
                started.add(kind)
                if kind == V_: a(f'v_mfma_f32_32x32x16_bf16 {v(acc,16)}, {v(x,4)}, {v(w,4)}, {c}')
                else:          a(f'v_mfma_f32_32x32x16_bf16 {v(acc,16)}, {v(w,4)}, {v(x,4)}, {c}')
                for _ in range(3):
                    if filler: a(filler.pop(0))
            if i == 6: done.append(kind)
        while filler: a(filler.pop(0))
        return done
    pending = []
    for j in range(NST):
        if j == 1: a('s_waitcnt vmcnt(4)')
        if j == 6: a('s_waitcnt vmcnt(0)')
        a('s_barrier')
        if j == 0:
            stamp(a, 1)
            a('s_cmp_lg_u32 s3, 0\ns_cbranch_scc1 Q_noarr')
            arrive(a)
            a.label('Q_noarr')
        if j == 6:
            a('s_cmp_lg_u32 s3, 0\ns_cbranch_scc1 Q_nof0')
            a(f's_lshl_b32 s36, s25, 7\ns_lshl_b32 s37, s26, 2\ns_add_u32 s36, s36, s37')
            signal(a, 36, 2, 3)
            a.label('Q_nof0')
        reads(j)
        if j == 2:
            a('ds_read_b64_tr_b16 v[248:249], v240')
            a('ds_read_b64_tr_b16 v[250:251], v240 offset:512')
            a('ds_read_b64_tr_b16 v[4:5], v241')
            a('ds_read_b64_tr_b16 v[6:7], v241 offset:512')
        if j > 0:
            fill = []
            for k in pending: fill += epilogue(k)
            pending = mfmas(j - 1, fill)
        a('s_waitcnt lgkmcnt(0)')
        if j == 2:
            a('s_mov_b32 s36, 32768')
            a('buffer_store_dwordx4 v[248:251], v242, s[16:19], 0 offen sc1')
            a('buffer_store_dwordx4 v[4:7], v242, s[16:19], s36 offen sc1')
    fill = []
    for k in pending: fill += epilogue(k)
    pending = mfmas(NST - 1, fill)
    for k in pending:
        for l in epilogue(k): a(l)
    a.label('Q_done')
    stamp(a, 2)

XYP = 1056; XYCH = 53 * XYP
GP = 532 * 16
L_KR = 8 * GP; KRCH = 96 * 80
L_PART = L_KR + 2 * KRCH; PSRC = 1152; POWN = 4 * PSRC + 32
L_T2 = L_PART + 8 * POWN; T2CH = 2624 * 2
assert L_T2 >= 114688 and L_T2 + 2*T2CH <= LDS_TOTAL

def cmul(a, d, x, e, t):
    a(f'v_pk_mul_f32 {v(t,2)}, {v(x,2)}, {v(e,2)} op_sel:[0,0] op_sel_hi:[1,0]')
    a(f'v_pk_fma_f32 {v(d,2)}, {v(x,2)}, {v(e,2)}, {v(t,2)} op_sel:[1,1,0] op_sel_hi:[0,1,1] neg_lo:[1,0,0]')

def ph_ssm(a):
    a(f"""
    s_lshr_b32 s37, s3, 2
    s_lshl_b32 s58, s38, 16
    s_and_b32 s59, s38, 0xffff0000
    s_cmp_eq_u32 s37, 0
    s_cselect_b32 s58, s58, s59
    s_cselect_b32 s60, {XYCH}, 0
    v_mov_b32 v14, s58
    v_mul_f32 v14, {f32bits(LOG2E)}, v14
    v_exp_f32 v14, v14
    v_lshlrev_b32 v10, 16, v244
    v_lshlrev_b32 v11, 16, v245
    v_lshlrev_b32 v12, 16, v246
    v_lshlrev_b32 v13, 16, v247
    v_cvt_pk_bf16_f32 v14, v14, v14
    v_and_b32 v14, 0xffff0000, v14
    v_mul_f32 v10, {f32bits(LOG2E)}, v10
    v_exp_f32 v10, v10
    v_mul_f32 v11, v11, v14
    v_cvt_pk_bf16_f32 v10, v10, v10
    v_and_b32 v10, 0xffff0000, v10
    v_mul_f32 v10, v10, v14
    v_mul_f32 v10, {f32bits(-LOG2E)}, v10
    v_mul_f32 v11, {f32bits(1/(2*math.pi))}, v11
    v_add_f32 v14, v14, v14
    v_mul_f32 v20, v12, v14
    v_mul_f32 v21, v13, v14
    v_and_b32 v5, 255, v0
    v_lshl_add_u32 v15, v5, 2, s60
    """)
    E1, E8, E256, E2, E4, E16, E32 = 22, 24, 26, 28, 30, 32, 34
    for (E, p) in ((E1, 1.0), (E8, 8.0), (E256, 256.0)):
        a(f"""
        v_mul_f32 v16, {f32bits(p)}, v10
        v_mul_f32 v17, {f32bits(p)}, v11
        v_exp_f32 v16, v16
        v_fract_f32 v17, v17
        v_cos_f32 v18, v17
        v_sin_f32 v19, v17
        v_mul_f32 v{E}, v16, v18
        v_mul_f32 v{E+1}, v16, v19
        """)
    tmp = [36, 38, 40, 42]; tc = [0]
    def T():
        tc[0] += 1; return tmp[tc[0] % 4]
    pk = [44, 45, 46, 47]; pc = [0]
    def putX(row, x):
        pc[0] += 1; r = pk[pc[0] % 4]
        a(f'v_cvt_pk_bf16_f32 v{r}, v{x}, -v{x+1}')
        a(f'ds_write_b32 v15, v{r} offset:{row*XYP}')
    def putY(b, y):
        pc[0] += 1; r = pk[pc[0] % 4]
        a(f'v_cvt_pk_bf16_f32 v{r}, v{y}, v{y+1}')
        a(f'ds_write_b32 v15, v{r} offset:{(21+b)*XYP}')
    cmul(a, E2, E1, E1, T()); cmul(a, E16, E8, E8, T())
    cmul(a, E4, E2, E2, T()); cmul(a, E32, E16, E16, T())
    Y = [48, 50, 52, 54]
    a(f'v_mov_b32 v{Y[0]}, 1.0\nv_mov_b32 v{Y[0]+1}, 0')
    a(f'v_mov_b32 v{Y[1]}, v{E8}\nv_mov_b32 v{Y[1]+1}, v{E8+1}')
    a(f'v_mov_b32 v{Y[2]}, v{E16}\nv_mov_b32 v{Y[2]+1}, v{E16+1}')
    cmul(a, Y[3], E16, E8, T())
    putX(0, 20)
    XC, GC, SD, SD2 = 56, 58, 60, 62
    grow = {1: 8, 2: 12, 3: 14, 4: 16, 5: 17, 6: 18, 7: 19, 8: 20}
    for step in range(8):
        for c in range(4): putY(4*step + c, Y[c])
        if step < 7:
            for c in range(4): cmul(a, Y[c], Y[c], E32, T())
            cmul(a, XC, 20 if step == 0 else XC, E1, T())
        cmul(a, GC, 20 if step == 0 else GC, E256, T())
        if step < 7: putX(step + 1, XC)
        g = step + 1
        putX(grow[g], GC)
        if g == 1:
            cmul(a, SD, GC, E2, T()); cmul(a, SD2, GC, E4, T())
            putX(9, SD); putX(10, SD2)
            cmul(a, SD, SD2, E2, T()); putX(11, SD)
        if g in (2, 3):
            cmul(a, SD, GC, E4, T()); putX(grow[g] + 1, SD)
    a(f"""
    v_lshlrev_b32 v6, 3, v5
    v_sub_u32 v6, 2048, v6
    s_mul_i32 s57, s37, {T2CH}
    s_add_u32 s57, s57, {L_T2}
    """)
    for e in range(0, 8, 2):
        a(f"""
        v_subrev_u32 v7, {e}, v6
        v_subrev_u32 v8, {e+1}, v6
        v_cvt_f32_u32 v7, v7
        v_cvt_f32_u32 v8, v8
        v_cvt_pk_bf16_f32 v7, v7, v8
        v_and_b32 v8, 0xffff0000, v7
        v_lshlrev_b32 v7, 16, v7
        v_cvt_u32_f32 v7, v7
        v_cvt_u32_f32 v8, v8
        v_lshl_add_u32 v{244+e}, v7, 1, s57
        v_lshl_add_u32 v{245+e}, v8, 1, s57
        """)
    a(f"""
    s_bfe_u32 s63, s3, 0x10001             ; at
    s_and_b32 s61, s3, 1                   ; bt
    v_and_b32 v17, 15, v1
    v_lshrrev_b32 v18, 4, v1
    v_mul_u32_u24 v19, {XYP}, v17
    v_lshl_add_u32 v19, v18, 4, v19
    s_mul_i32 s36, s63, {16*XYP}
    s_add_u32 s36, s36, s60
    v_add_u32 v72, s36, v19
    s_mul_i32 s36, s61, {16*XYP}
    s_add_u32 s36, s36, s60
    s_add_u32 s36, s36, {21*XYP}
    v_add_u32 v73, s36, v19
    """)
    ptab = {0: [[0,1,2,3],[4,5,6,7],[256,258,260,262],[512,516,768,772]],
            1: [[1024,1280,1536,1792],[2048,2304,2304,2304],[2304]*4,[2304]*4]}
    a('s_cmp_eq_u32 s63, 0')
    for g in range(4):
        a(f's_mov_b32 exec_lo, {0xffff << (16*(g%2)) if g < 2 else 0}')
        a(f's_mov_b32 exec_hi, {0xffff << (16*(g%2)) if g >= 2 else 0}')
        for r in range(4):
            a(f's_mov_b32 s36, {ptab[1][g][r]}')
            a(f's_cselect_b32 s36, {ptab[0][g][r]}, s36')
            a(f'v_mov_b32 v{74+r}, s36')
    a(f"""
    s_mov_b64 exec, -1
    s_lshl_b32 s36, s61, 8
    s_add_u32 s36, s36, s57
    v_lshl_add_u32 v19, v17, 4, s36
    v_lshl_add_u32 v74, v74, 1, v19
    v_lshl_add_u32 v75, v75, 1, v19
    v_lshl_add_u32 v76, v76, 1, v19
    v_lshl_add_u32 v77, v77, 1, v19
    ; u^T load voffset: d = 2*pair+ch : (d/4)*16384 + lam*64 + (d%4)*16
    s_lshl_b32 s36, s21, 1
    s_add_u32 s36, s36, s37
    s_lshr_b32 s56, s36, 2
    s_lshl_b32 s56, s56, 14
    s_and_b32 s36, s36, 3
    s_lshl_b32 s36, s36, 4
    s_add_u32 s56, s56, s36
    s_add_u32 s56, s56, {WS_UT}
    v_lshl_add_u32 v78, v5, 6, s56
    v_add_u32 v79, 64, v78
    v_mov_b32 v16, {WS_END}
    v_cmp_eq_u32 vcc, 255, v5
    v_cndmask_b32 v79, v79, v16, vcc
    s_cmp_lg_u32 s3, 4
    s_cbranch_scc1 S_nop0
    s_lshr_b32 s36, s21, 5
    s_lshl_b32 s36, s36, 7
    v_lshl_add_u32 v16, v1, 2, s36
    """)
    poll(a, 'PL_f0', 16, 17, mask=0xffffffff)
    a.label('S_nop0')
    a('s_waitcnt vmcnt(0) lgkmcnt(0)')
    a('s_barrier')
    stamp(a, 3)
    a('buffer_load_dwordx4 v[224:227], v78, s[16:19], 0 offen sc1')
    a('buffer_load_dwordx4 v[228:231], v79, s[16:19], 0 offen sc1')
    a('s_cmp_lg_u32 s3, 0\ns_cbranch_scc1 S_nof1')
    a(f's_lshl_b32 s36, s25, 7\ns_lshl_b32 s56, s26, 2\ns_add_u32 s36, s36, s56\ns_add_u32 s36, s36, {F1}')
    signal(a, 36, 16, 17)
    a.label('S_nof1')
    FA = 80; FB = 144; KA = 208
    for st in range(16):
        a(f'ds_read_b128 {v(FA+4*st,4)}, v72 offset:{st*64}')
        a(f'ds_read_b128 {v(FB+4*st,4)}, v73 offset:{st*64}')
        if st >= 4:
            k = st - 4
            a(f's_waitcnt lgkmcnt(8)')
            a(f'v_mfma_f32_16x16x32_bf16 {v(KA,4)}, {v(FA+4*k,4)}, {v(FB+4*k,4)}, {"0" if k == 0 else v(KA,4)}')
    for k in range(12, 16):
        a(f's_waitcnt lgkmcnt({2*(15-k)})')
        a(f'v_mfma_f32_16x16x32_bf16 {v(KA,4)}, {v(FA+4*k,4)}, {v(FB+4*k,4)}, {v(KA,4)}')
    a(f"""
    v_cvt_pk_bf16_f32 v{KA+4}, v{KA}, v{KA+1}
    v_cvt_pk_bf16_f32 v{KA+5}, v{KA+2}, v{KA+3}
    ds_write_b16 v74, v{KA+4}
    ds_write_b16_d16_hi v75, v{KA+4}
    ds_write_b16 v76, v{KA+5}
    ds_write_b16_d16_hi v77, v{KA+5}
    s_waitcnt lgkmcnt(0)
    s_barrier
    """)
    for e in range(8):
        a(f'ds_read_u16 v{88 + e}, v{244+e}')
    a(f"""
    v_lshrrev_b32 v18, 2, v5
    v_mul_u32_u24 v18, 80, v18
    v_and_b32 v19, 3, v5
    v_lshl_add_u32 v18, v19, 4, v18
    s_mul_i32 s36, s37, {KRCH}
    s_add_u32 s36, s36, {L_KR}
    v_add_u32 v18, s36, v18
    v_mov_b32 v84, 0
    v_mov_b32 v85, 0
    v_mov_b32 v86, 0
    v_mov_b32 v87, 0
    v_mov_b32 v19, s57
    v_cmp_eq_u32 s[40:41], 0, v5
    s_mov_b64 exec, s[40:41]
    ds_read_u16 v84, v19
    s_mov_b64 exec, -1
    s_mul_i32 s36, s37, {264*16}
    s_add_u32 s36, s36, 64
    v_lshl_add_u32 v16, v5, 4, s36
    s_waitcnt lgkmcnt(0)
    v_lshl_or_b32 v80, v89, 16, v88
    v_lshl_or_b32 v81, v91, 16, v90
    v_lshl_or_b32 v82, v93, 16, v92
    v_lshl_or_b32 v83, v95, 16, v94
    ds_write_b128 v18, v[80:83]
    v_cmp_gt_u32 vcc, 128, v5
    s_mov_b64 exec, vcc
    ds_write_b128 v18, v[84:87] offset:{64*80}
    s_mov_b64 exec, -1
    s_waitcnt vmcnt(0)
    """)
    def gbuild(addr, d):
        o = 104; d1 = 112; o1 = 118
        for i in range(7): a(f'v_alignbit_b32 v{o+i}, v{d+i+1}, v{d+i}, 16')
        for i in range(6): a(f'v_mov_b32 v{d1+i}, v{d+i+1}')
        for i in range(6): a(f'v_mov_b32 v{o1+i}, v{o+i+1}')
        src = {0: d, 4: d+2, 1: o, 5: o+2, 2: d1, 6: d1+2, 3: o1, 7: o1+2}
        for sft in range(8):
            a(f'ds_write_b128 v{addr}, {v(src[sft],4)} offset:{sft*GP}')
    gbuild(16, 224)
    a(f"""
    s_and_b32 s36, s3, 3
    s_cmp_lg_u32 s36, 0
    s_cbranch_scc1 S_g2done
    v_mov_b32 v220, 0
    v_mov_b32 v221, 0
    v_mov_b32 v222, 0
    v_mov_b32 v223, 0
    v_subrev_u32 v16, 16, v16
    s_mov_b64 exec, 1
    """)
    gbuild(16, 220)
    a('s_mov_b64 exec, -1')
    a.label('S_g2done')
    a(f"""
    s_cmp_lg_u32 s3, 1
    s_cbranch_scc1 S_g3done
    v_and_b32 v16, 3, v1
    v_cmp_eq_u32 vcc, 3, v16
    v_mov_b32 v19, 260
    v_cndmask_b32 v16, v16, v19, vcc
    v_bfe_u32 v19, v1, 2, 1                ; ch
    v_mul_u32_u24 v19, 264, v19
    v_add_u32 v16, v16, v19
    v_lshrrev_b32 v19, 3, v1               ; copy
    v_mul_u32_u24 v19, {GP}, v19
    v_lshl_add_u32 v16, v16, 4, v19
    v_mov_b32 v84, 0
    ds_write_b128 v16, v[84:87]
    """)
    a.label('S_g3done')
    a(f"""
    s_and_b32 s63, s3, 1                   ; ch
    s_bfe_u32 s61, s3, 0x10001             ; hf
    v_and_b32 v17, 31, v1
    v_lshrrev_b32 v18, 5, v1
    v_and_b32 v19, 7, v17
    v_mul_u32_u24 v19, {GP}, v19
    v_lshrrev_b32 v20, 3, v17
    v_add_u32 v20, v20, v18
    v_lshl_add_u32 v19, v20, 4, v19
    s_mul_i32 s36, s63, {264*16}
    s_lshl_b32 s56, s61, 10
    s_add_u32 s36, s36, s56
    v_add_u32 v24, s36, v19
    v_sub_u32 v20, 31, v17
    v_mul_u32_u24 v20, 80, v20
    v_lshl_add_u32 v20, v18, 4, v20
    s_mul_i32 s36, s63, {KRCH}
    s_mul_i32 s56, s61, {16*80}
    s_add_u32 s36, s36, s56
    s_add_u32 s36, s36, {L_KR}
    v_add_u32 v25, s36, v20
    s_waitcnt lgkmcnt(0)
    s_barrier
    """)
    stamp(a, 4)
    a('s_cmp_ge_u32 s3, 4\ns_cbranch_scc1 S_idle')
    Y0, Y1 = 32, 48
    def aoff(trel): return (trel + 1) * 32
    def boff(srel):
        n = srel + 65
        return (n // 2) * 80 + (n % 2) * 32
    FR = 64; NBUF = 4
    def ld(t):
        b = FR + 16 * (t % NBUF)
        a(f'ds_read_b128 {v(b,4)}, v24 offset:{aoff(t)}')
        a(f'ds_read_b128 {v(b+4,4)}, v25 offset:{boff(t)}')
        a(f'ds_read_b128 {v(b+8,4)}, v25 offset:{boff(t-64)}')
        a(f'ds_read_b128 {v(b+12,4)}, v24 offset:{aoff(t+64)}')
    def mm(t, first):
        b = FR + 16 * (t % NBUF)
        a(f'v_mfma_f32_32x32x16_bf16 {v(Y0,16)}, {v(b,4)}, {v(b+4,4)}, {"0" if first else v(Y0,16)}')
        a(f'v_mfma_f32_32x32x16_bf16 {v(Y1,16)}, {v(b,4)}, {v(b+8,4)}, {"0" if first else v(Y1,16)}')
        a(f'v_mfma_f32_32x32x16_bf16 {v(Y1,16)}, {v(b+12,4)}, {v(b+4,4)}, {v(Y1,16)}')
    a(f'ds_read_b128 v[128:131], v24 offset:{aoff(-1)}')
    a(f'ds_read_b128 v[132:135], v25 offset:{boff(-1)}')
    a(f'ds_read_b128 v[136:139], v25 offset:{boff(-65)}')
    ld(0); ld(1)
    for t in range(32):
        if t + 2 < 32: ld(t + 2)
        a(f's_waitcnt lgkmcnt({4*min(2, 31-t)})')
        mm(t, t == 0)
    a(f"""
    s_cmp_lg_u32 s61, 0
    s_cbranch_scc1 S_noextra
    v_mfma_f32_32x32x16_bf16 {v(Y0,16)}, v[128:131], v[132:135], {v(Y0,16)}
    v_mfma_f32_32x32x16_bf16 {v(Y1,16)}, v[128:131], v[136:139], {v(Y1,16)}
    """)
    a.label('S_noextra')
    a(f"""
    s_mul_i32 s36, s3, {PSRC}
    s_add_u32 s36, s36, {L_PART}
    v_lshl_add_u32 v26, v1, 4, s36
    """)
    for own in range(8):
        a(f'ds_write_b128 v26, {v(Y0 + 4*own, 4)} offset:{own*POWN}')
    a('s_branch S_cdone')
    a.label('S_idle')
    a('s_cmp_lg_u32 s3, 4\ns_cbranch_scc1 S_cdone')
    a('s_sleep 16')
    att_poll(a, 'PL_f1')
    a.label('S_cdone')
    a(f"""
    v_and_b32 v16, 1, v1                   ; ch
    v_bfe_u32 v17, v1, 1, 2                ; j
    v_lshrrev_b32 v18, 3, v1
    v_mul_u32_u24 v19, {POWN}, v17
    v_mul_u32_u24 v20, {PSRC}, v16
    v_add_u32 v19, v19, v20
    v_lshl_add_u32 v19, v18, 4, v19
    s_lshr_b32 s36, s3, 2
    s_mul_i32 s36, s36, {4*POWN}
    s_and_b32 s56, s3, 3
    s_lshl_b32 s56, s56, 7
    s_add_u32 s36, s36, s56
    s_add_u32 s36, s36, {L_PART}
    v_add_u32 v26, s36, v19
    v_lshrrev_b32 v18, 1, v1
    v_mul_u32_u24 v20, 264, v16
    v_add_u32 v18, v18, v20
    s_lshl_b32 s36, s3, 9
    s_add_u32 s36, s36, 64
    v_lshl_add_u32 v28, v18, 4, s36
    s_lshl_b32 s36, s21, 13
    s_lshl_b32 s56, s3, 10
    s_add_u32 s36, s36, s56
    s_add_u32 s36, s36, {WS_YT}
    v_lshl_add_u32 v27, v1, 4, s36
    s_lshl_b32 s56, s39, 16
    s_and_b32 s57, s39, 0xffff0000
    v_mov_b32 v29, s56
    v_mov_b32 v30, s57
    v_cmp_eq_u32 vcc, 1, v16
    v_cndmask_b32 v29, v29, v30, vcc
    s_waitcnt lgkmcnt(0)
    s_barrier
    """)
    stamp(a, 5)
    a(f"""
    ds_read_b128 v[64:67], v26
    ds_read_b128 v[68:71], v26 offset:512
    ds_read_b128 v[72:75], v26 offset:{2*PSRC}
    ds_read_b128 v[76:79], v26 offset:{2*PSRC+512}
    ds_read_b128 v[80:83], v28
    s_waitcnt lgkmcnt(0)
    s_barrier
    """)
    for e in range(8): a(f'v_add_f32 v{64+e}, v{64+e}, v{72+e}')
    for e in range(4):
        a(f'v_lshlrev_b32 v{84+2*e}, 16, v{80+e}')
        a(f'v_and_b32 v{85+2*e}, 0xffff0000, v{80+e}')
    for e in range(8): a(f'v_mul_f32 v{84+e}, v29, v{84+e}')
    for e in range(4):
        a(f'v_cvt_pk_bf16_f32 v{72+e}, v{64+2*e}, v{65+2*e}')
        a(f'v_cvt_pk_bf16_f32 v{76+e}, v{84+2*e}, v{85+2*e}')
    for e in range(4):
        a(f'v_lshlrev_b32 v{64+2*e}, 16, v{72+e}')
        a(f'v_and_b32 v{65+2*e}, 0xffff0000, v{72+e}')
        a(f'v_lshlrev_b32 v{84+2*e}, 16, v{76+e}')
        a(f'v_and_b32 v{85+2*e}, 0xffff0000, v{76+e}')
    for e in range(8): a(f'v_add_f32 v{64+e}, v{64+e}, v{84+e}')
    for e in range(4): a(f'v_cvt_pk_bf16_f32 v{72+e}, v{64+2*e}, v{65+2*e}')
    a('buffer_store_dwordx4 v[72:75], v27, s[16:19], 0 offen sc1')

def att_ids(a):
    a("""
    s_lshl_b32 s40, s22, 1
    s_and_b32 s41, s23, 1
    s_add_u32 s40, s40, s41                ; head
    s_lshr_b32 s41, s23, 1                 ; rbq
    s_mul_i32 s42, s40, 7
    s_lshr_b32 s42, s42, 1                 ; chi0
    """)

def att_poll(a, name):
    att_ids(a)
    a(f"""
    s_lshr_b32 s43, s42, 3
    s_add_u32 s44, s42, 3
    s_lshr_b32 s44, s44, 3
    s_lshl_b32 s43, s43, 7
    s_lshl_b32 s44, s44, 7
    v_mov_b32 v16, s43
    v_mov_b32 v17, s44
    v_cmp_lt_u32 vcc, 31, v1
    v_cndmask_b32 v16, v16, v17, vcc
    v_and_b32 v17, 31, v1
    v_lshl_add_u32 v16, v17, 2, v16
    v_add_u32 v16, {F1}, v16
    """)
    poll(a, name, 16, 17)

OL = 120 * 1024; YL = 152 * 1024; RED = 96 * 1024
def ph_att(a):
    NB = 4
    QF = 16; OA = 32; SB = 64; PB = 96; KB = 112; VB = KB + 8*NB
    a.label('L_att')
    att_ids(a)
    srd(a, 8, P_WO, D * D * 2)
    a(f"""
    s_and_b32 s24, s3, 1                   ; qg
    s_lshr_b32 s27, s3, 1                  ; kq
    s_lshl_b32 s43, s42, 9
    v_lshl_add_u32 v3, v1, 4, s43          ; Q/K voffset
    v_and_b32 v5, 31, v1
    v_lshrrev_b32 v6, 5, v1
    v_mul_u32_u24 v4, 7168, v6
    v_lshl_add_u32 v4, v5, 4, v4
    s_mul_i32 s43, s40, 448
    s_add_u32 s43, s43, {WS_V - WS_K}
    v_add_u32 v4, s43, v4
    v_add_u32 v7, 14336, v4
    s_mov_b32 s46, 0x0fffffff
    s_mov_b32 s47, 0x0fffffff
    s_lshl_b32 s28, s41, 2
    s_lshl_b32 s29, s24, 1
    s_add_u32 s28, s28, s29
    s_mul_i32 s29, s28, {TILEB}
    s_add_u32 s29, s29, {WS_Q}
    s_add_u32 s30, s29, {TILEB}
    s_lshl_b32 s31, s27, 4
    buffer_load_dwordx4 {v(QF,4)}, v3, s[16:19], s29 offen
    buffer_load_dwordx4 {v(QF+4,4)}, v3, s[16:19], s29 offen offset:1024
    buffer_load_dwordx4 {v(QF+8,4)}, v3, s[16:19], s30 offen
    buffer_load_dwordx4 {v(QF+12,4)}, v3, s[16:19], s30 offen offset:1024
    """)
    for r in range(8*NB): a(f'v_mov_b32 v{VB+r}, 0x3f803f80')
    def nextoff():
        a(f"""
        s_mov_b32 s34, s33
        s_add_u32 s35, s32, s41
        s_and_b32 s35, s35, 15
        s_add_u32 s35, s35, s31
        s_mul_i32 s35, s35, {TILEB}
        s_add_u32 s35, s35, {WS_K}
        s_cmp_lt_u32 s32, 16
        s_cselect_b32 s33, s35, {WS_END}
        s_add_u32 s32, s32, 1
        """)
    def loadK(n):
        a(f'buffer_load_dwordx4 {v(KB+8*n,4)}, v3, s[16:19], s33 offen')
        a(f'buffer_load_dwordx4 {v(KB+8*n+4,4)}, v3, s[16:19], s33 offen offset:1024')
    def loadV(n):
        a('s_mov_b64 exec, s[46:47]')
        a(f'buffer_load_dwordx4 {v(VB+8*n,4)}, v4, s[16:19], s34 offen')
        a(f'buffer_load_dwordx4 {v(VB+8*n+4,4)}, v7, s[16:19], s34 offen')
        a('s_mov_b64 exec, -1')
    def loadWo():
        a(f"""
        s_min_u32 s49, s48, 11
        s_lshl_b32 s50, s49, 13
        s_add_u32 m0, s50, s51
        s_mul_i32 s50, s49, 28672
        s_add_u32 s48, s48, 1
        buffer_load_dwordx4 v8, s[8:11], s50 offen lds
        """)
    a('s_mov_b32 s32, 0\ns_mov_b32 s33, 0')
    for j in range(-NB, 0):
        nextoff(); loadK((j + NB) % NB)
        if j >= 1 - NB: loadV((j - 1 + NB) % NB)
    for r in range(32): a(f'v_mov_b32 v{OA+r}, 0')
    for r in range(16): a(f'v_mov_b32 v{PB+r}, 0')
    nout = 2 + 4*(NB-1)
    a(f"""
    s_lshr_b32 s52, s40, 2
    s_lshl_b32 s53, s41, 2
    s_add_u32 s52, s52, s53
    s_and_b32 s53, s40, 3
    v_lshrrev_b32 v8, 4, v1
    v_and_b32 v9, 15, v1
    v_lshlrev_b32 v10, 2, v8
    v_xor_b32 v9, v9, v10
    v_lshlrev_b32 v9, 4, v9
    v_mul_u32_u24 v8, 896, v8
    v_add_u32 v8, v8, v9
    s_lshl_b32 s49, s53, 8
    s_mul_i32 s50, s3, 3584
    s_add_u32 s49, s49, s50
    v_add_u32 v8, s49, v8
    s_lshl_b32 s51, s3, 10
    s_mov_b32 s48, 0
    s_and_b32 s36, s40, 1
    s_cmp_eq_u32 s36, 0
    s_cselect_b32 s43, -1, 0
    s_mov_b32 s42, 0
    s_cselect_b32 s44, 0, -1
    s_mov_b32 s45, 0
    s_waitcnt vmcnt({nout})
    s_mov_b64 exec, s[42:43]
    v_mov_b32 v{QF+6}, 0
    v_mov_b32 v{QF+7}, 0
    v_mov_b32 v{QF+14}, 0
    v_mov_b32 v{QF+15}, 0
    s_mov_b64 exec, s[44:45]
    v_mov_b32 v{QF+0}, 0
    v_mov_b32 v{QF+1}, 0
    v_mov_b32 v{QF+8}, 0
    v_mov_b32 v{QF+9}, 0
    s_mov_b64 exec, -1
    s_waitcnt vmcnt({nout-2})
    v_mfma_f32_32x32x16_bf16 {v(SB,16)}, {v(KB,4)}, {v(QF,4)}, 0
    v_mfma_f32_32x32x16_bf16 {v(SB,16)}, {v(KB+4,4)}, {v(QF+4,4)}, {v(SB,16)}
    s_mov_b32 s37, 0
    s_lshl_b32 s36, s21, 5
    s_lshl_b32 s49, s3, 2
    s_add_u32 s36, s36, s49
    s_add_u32 s36, s36, {F3}
    s_cmp_lt_u32 s23, 28
    s_cselect_b32 s36, s36, {WS_END}
    """)
    signal(a, 36, 9, 10)
    stamp(a, 6)
    a('.p2align 6')
    a.label('A_loop')
    for u in range(2*NB):
        t = u % 2
        kn = ((u + 1) // 2) % NB
        vn = ((u - 1) // 2) % NB
        Sn = SB + 16*((u+1) % 2); Sc = SB + 16*(u % 2)
        Pc = PB + 8*(u % 2); Pp = PB + 8*((u+1) % 2)
        Qn = QF + 8*(1-t); On = OA + 16*(1-t)
        if u % 2 == 1:
            j = (u - 1) // 2
            nextoff(); loadK(j % NB); loadV((j - 1) % NB)
            a(f's_waitcnt vmcnt({4*(NB-1)})')
            loadWo()
        M = [f'v_mfma_f32_32x32x16_bf16 {v(Sn,16)}, {v(KB+8*kn,4)}, {v(Qn,4)}, 0',
             f'v_mfma_f32_32x32x16_bf16 {v(Sn,16)}, {v(KB+8*kn+4,4)}, {v(Qn+4,4)}, {v(Sn,16)}',
             f'v_mfma_f32_32x32x16_bf16 {v(On,16)}, {v(VB+8*vn,4)}, {v(Pp,4)}, {v(On,16)}',
             f'v_mfma_f32_32x32x16_bf16 {v(On,16)}, {v(VB+8*vn+4,4)}, {v(Pp+4,4)}, {v(On,16)}']
        for g in range(4):
            a(M[g])
            for e in range(4): a(f'v_exp_f32 v{Sc+4*g+e}, v{Sc+4*g+e}')
            a(f'v_cvt_pk_bf16_f32 v{Pc+2*g}, v{Sc+4*g}, v{Sc+4*g+1}')
            a(f'v_cvt_pk_bf16_f32 v{Pc+2*g+1}, v{Sc+4*g+2}, v{Sc+4*g+3}')
    a(f"""
    s_add_u32 s37, s37, 1
    s_cmp_lt_u32 s37, {16//NB}
    s_cbranch_scc1 A_loop
    """)
    stamp(a, 7)
    a(f'v_mfma_f32_32x32x16_bf16 {v(OA+16,16)}, {v(VB+8*(NB-1),4)}, {v(PB+8,4)}, {v(OA+16,16)}')
    a(f'v_mfma_f32_32x32x16_bf16 {v(OA+16,16)}, {v(VB+8*(NB-1)+4,4)}, {v(PB+12,4)}, {v(OA+16,16)}')
    a(f"""
    s_lshl_b32 s36, s24, 15
    s_add_u32 s36, s36, {RED}
    s_lshl_b32 s38, s27, 11
    s_add_u32 s38, s38, s36
    v_lshlrev_b32 v2, 4, v1
    v_add_u32 v9, s38, v2
    s_lshl_b32 s38, s27, 13
    s_add_u32 s38, s38, s36
    v_add_u32 v10, s38, v2
    s_or_b32 s38, s27, 1
    s_lshl_b32 s38, s38, 13
    s_add_u32 s38, s38, s36
    s_add_u32 s38, s38, {1024 + 512}
    v_lshlrev_b32 v11, 4, v5
    v_add_u32 v11, s38, v11
    """)
    for own in range(4):
        for q in range(2):
            a(f'ds_write_b128 v9, {v(OA + 8*own + 4*q, 4)} offset:{own*8192 + q*1024}')
    a('s_waitcnt lgkmcnt(0)\ns_barrier')
    R = 64
    for src in range(4):
        a(f'ds_read_b32 v{12+src}, v11 offset:{src*2048}')
    for src in range(4):
        for q in range(2):
            a(f'ds_read_b128 {v(R + 8*src + 4*q, 4)}, v10 offset:{src*2048 + q*1024}')
    a(f"""
    s_and_b32 s36, s27, 1
    s_cmp_eq_u32 s36, 1
    s_cselect_b32 s43, -1, 0
    s_mov_b32 s42, 0
    s_lshr_b32 s38, s27, 1
    s_add_u32 s38, s38, s28
    s_lshl_b32 s38, s38, 15
    s_lshl_b32 s39, s40, 11
    s_add_u32 s38, s38, s39
    s_lshl_b32 s39, s36, 10
    s_add_u32 s38, s38, s39
    s_add_u32 s38, s38, {WS_O}
    s_waitcnt lgkmcnt(8)
    v_add_f32 v12, v12, v13
    v_add_f32 v14, v14, v15
    v_add_f32 v12, v12, v14
    v_rcp_f32 v12, v12
    s_waitcnt lgkmcnt(0)
    """)
    a('v_cndmask_b32 v13, v12, 0, s[42:43]')
    for r in range(8):
        a(f'v_add_f32 v{R+r}, v{R+r}, v{R+8+r}')
        a(f'v_add_f32 v{R+16+r}, v{R+16+r}, v{R+24+r}')
    for r in range(8): a(f'v_add_f32 v{R+r}, v{R+r}, v{R+16+r}')
    for r in range(8): a(f'v_mul_f32 v{R+r}, v{R+r}, v{12 if r < 4 else 13}')
    for r in range(4): a(f'v_cvt_pk_bf16_f32 v{R+8+r}, v{R+2*r}, v{R+2*r+1}')
    a(f'buffer_store_dwordx4 {v(R+8,4)}, v2, s[16:19], s38 offen sc1')
    stamp(a, 8)

def ph_out(a):
    a(f"""
    s_cmp_lg_u32 s3, 4
    s_cbranch_scc1 P_nop3
    s_cmp_ge_u32 s23, 28
    s_cbranch_scc1 P_nop3
    s_lshl_b32 s36, s25, 10
    s_add_u32 s36, s36, {F3}
    v_add_u32 v16, s36, v2
    """)
    poll(a, 'PL_f3', 16, 20, x4=True)
    a.label('P_nop3')
    a('s_waitcnt vmcnt(0)\ns_barrier')
    a('s_cmp_lg_u32 s3, 0\ns_cbranch_scc1 P_nof2')
    a(f's_lshl_b32 s36, s41, 7\ns_lshl_b32 s37, s40, 2\ns_add_u32 s36, s36, s37\ns_add_u32 s36, s36, {F2}')
    signal(a, 36, 16, 17)
    a.label('P_nof2')
    stamp(a, 9)
    for r in (12, 13, 14):
        a(f's_add_u32 m0, s51, {r*8192}')
        a(f's_mov_b32 s50, {r*28672}')
        a(f'buffer_load_dwordx4 v8, s[8:11], s50 offen lds')
    a(f"""
    s_cmp_ge_u32 s23, 28
    s_cbranch_scc1 P_noy
    v_lshrrev_b32 v16, 1, v1
    v_lshlrev_b32 v16, 13, v16
    v_and_b32 v17, 1, v1
    v_lshl_add_u32 v16, v17, 4, v16
    s_lshl_b32 s36, s25, 18
    s_lshl_b32 s37, s26, 8
    s_add_u32 s36, s36, s37
    s_lshl_b32 s37, s3, 5
    s_add_u32 s36, s36, s37
    s_add_u32 s36, s36, {WS_YT}
    s_add_u32 m0, s51, {YL}
    s_nop 0
    buffer_load_dwordx4 v16, s[16:19], s36 offen sc1 lds
    ; tr supplier address: (8*oct + r)*16 + rq*8 (+64 for second half), Q = 4*(l/16)+l%4, oct = Q%8, rq = Q/8
    v_lshrrev_b32 v17, 4, v1
    v_and_b32 v18, 3, v1
    v_lshl_add_u32 v17, v17, 2, v18
    v_and_b32 v18, 7, v17
    v_lshrrev_b32 v17, 3, v17
    v_bfe_u32 v19, v1, 2, 2
    v_lshl_add_u32 v18, v18, 3, v19
    v_lshlrev_b32 v18, 4, v18
    v_lshl_add_u32 v18, v17, 3, v18
    s_add_u32 s36, s51, {YL}
    v_add_u32 v18, s36, v18
    ; store: row = 64rb + 8w + 4*(l/32) + l%4 ; col byte = 896 + 128c + 16*((l/4)%8)
    v_and_b32 v19, 3, v1
    v_lshl_add_u32 v19, v6, 2, v19
    s_lshl_b32 s36, s26, 6
    s_lshl_b32 s37, s3, 3
    s_add_u32 s36, s36, s37
    v_add_u32 v19, s36, v19
    v_mul_u32_u24 v19, 1792, v19
    v_bfe_u32 v17, v1, 2, 3
    v_lshl_add_u32 v19, v17, 4, v19
    s_lshl_b32 s36, s25, 7
    s_add_u32 s36, s36, 896
    s_waitcnt vmcnt(0)
    ds_read_b64_tr_b16 v[20:21], v18
    ds_read_b64_tr_b16 v[22:23], v18 offset:64
    s_waitcnt lgkmcnt(0)
    buffer_store_dwordx4 v[20:23], v19, s[12:15], s36 offen
    """)
    a.label('P_noy')
    a(f"""
    s_and_b32 s29, s3, 3                   ; ct
    v_bfe_u32 v7, v1, 2, 2
    v_xor_b32 v12, s29, v7
    v_lshlrev_b32 v12, 6, v12
    v_bfe_u32 v9, v1, 4, 1
    v_lshl_add_u32 v12, v9, 5, v12
    v_and_b32 v9, 3, v1
    v_lshl_add_u32 v12, v9, 3, v12
    v_lshl_add_u32 v9, v6, 2, v7
    v_lshl_add_u32 v12, v9, 8, v12
    v_add_u32 v13, {224*256}, v12          ; heads 8..15
    v_add_u32 v10, {OL}, v2
    s_lshl_b32 s36, s52, 15
    s_add_u32 s36, s36, s51
    s_add_u32 s36, s36, {WS_O}
    v_add_u32 v14, s36, v2
    v_and_b32 v11, 31, v1
    s_lshl_b32 s36, s52, 5
    v_add_u32 v11, s36, v11
    v_mul_u32_u24 v11, 1792, v11
    v_lshl_add_u32 v11, v6, 4, v11
    s_lshl_b32 s30, s53, 2
    s_add_u32 s30, s30, s29
    s_lshl_b32 s32, s30, 6
    s_cmp_lg_u32 s3, 0
    s_cbranch_scc1 P_nop2
    s_lshl_b32 s36, s41, 7
    s_add_u32 s36, s36, {F2}
    v_lshl_add_u32 v16, v1, 2, s36
    """)
    poll(a, 'PL_f2', 16, 17, mask=0xffff, sleep=2)
    a.label('P_nop2')
    a('s_barrier')
    stamp(a, 10)
    for st in range(4):
        a(f's_add_u32 m0, s51, {OL + st*8192}')
        a(f's_mov_b32 s50, {st*8192}')
        a(f'buffer_load_dwordx4 v14, s[16:19], s50 offen sc1 lds')
    a(f"""
    s_cmp_lt_u32 s30, 14
    s_cselect_b32 s31, 1, 0
    s_cmp_lt_u32 s3, 4
    s_cselect_b32 s31, s31, 0
    s_cmp_eq_u32 s31, 0
    s_cbranch_scc1 P_idle
    """)
    ACC = 16; WF = 32; OF = 160
    def wread(hd):
        for f in range(2):
            for e in range(2):
                row = 28*hd + 16*f + 8*e - (224 if hd >= 8 else 0)
                a(f'ds_read_b64_tr_b16 {v(WF + 8*hd + 4*f + 2*e, 2)}, v{13 if hd >= 8 else 12} offset:{row*256}')
    for hd in range(13): wread(hd)
    a('s_waitcnt vmcnt(0) lgkmcnt(0)\ns_barrier')
    stamp(a, 11)
    for hd in range(13, 16): wread(hd)
    def oread(st):
        for n in range(8):
            a(f'ds_read_b128 {v(OF + 32*(st%2) + 4*n, 4)}, v10 offset:{st*8192 + n*1024}')
    def mf(st):
        for n in range(8):
            c = '0' if (st == 0 and n == 0) else v(ACC, 16)
            a(f'v_mfma_f32_32x32x16_bf16 {v(ACC,16)}, {v(WF + 32*st + 4*n,4)}, {v(OF + 32*(st%2) + 4*n,4)}, {c}')
    oread(0)
    for st in range(4):
        a('s_waitcnt lgkmcnt(0)')
        if st < 3: oread(st + 1)
        mf(st)
    T = 40
    for r in range(8): a(f'v_cvt_pk_bf16_f32 v{T+r}, v{ACC+2*r}, v{ACC+2*r+1}')
    for q in range(2):
        a(f'v_permlane32_swap_b32 v{T+4*q}, v{T+4*q+2}')
        a(f'v_permlane32_swap_b32 v{T+4*q+1}, v{T+4*q+3}')
    a(f'buffer_store_dwordx4 {v(T,4)}, v11, s[12:15], s32 offen')
    a(f'buffer_store_dwordx4 {v(T+4,4)}, v11, s[12:15], s32 offen offset:32')
    a('s_branch P_fin')
    a.label('P_idle')
    a('s_waitcnt vmcnt(0)\ns_barrier')
    a('s_cmp_lg_u32 s2, 0\ns_cbranch_scc1 P_fin\ns_cmp_lg_u32 s3, 4\ns_cbranch_scc1 P_fin')
    srd(a, 56, P_DBG, 256)
    a('s_mov_b64 exec, 1\ns_mov_b32 s62, 0')
    a.label('PL_ep')
    a(f"""
    buffer_load_dword v17, off, s[56:59], 0 sc1
    s_waitcnt vmcnt(0)
    v_cmp_ne_u32 vcc, 0x100, v17
    s_nop 4
    s_cbranch_vccz PL_ep_ok
    s_sleep 4
    s_add_u32 s62, s62, 1
    s_cmp_lt_u32 s62, {POLL_LIMIT}
    s_cbranch_scc1 PL_ep
    """)
    a.label('PL_ep_ok')
    a(f's_mov_b32 s36, {EPOCH}')
    signal(a, 36, 16, 17)
    a.label('P_fin')

def kernel(a):
    if STAMPS:
        a('v_mov_b32 v254, 0')
        stamp(a, 0)
    prologue(a)
    ph_qkv(a)
    ph_ssm(a)
    ph_att(a)
    ph_out(a)
    if STAMPS:
        a('s_waitcnt vmcnt(0)')
        stamp(a, 12)
        a(f"""
        s_mov_b32 s18, {WS_STAMP + (1<<20)}
        s_lshl_b32 s36, s2, 3
        s_add_u32 s36, s36, s3
        s_lshl_b32 s36, s36, 6
        s_add_u32 s36, s36, {WS_STAMP}
        v_lshl_add_u32 v2, v1, 2, s36
        s_mov_b64 exec, 0xffff
        buffer_store_dword v254, v2, s[16:19], 0 offen
        s_cmp_lg_u32 s2, 100
        s_cbranch_scc1 L_end
        s_cmp_lg_u32 s3, 0
        s_cbranch_scc1 L_end
        v_readfirstlane_b32 s36, v254
        v_lshlrev_b32 v2, 2, v1
        v_subrev_u32 v254, s36, v254
        s_mov_b64 exec, 0x7ffe
        """)
        srd(a, 56, P_DBG, 256)
        a('buffer_store_dword v254, v2, s[56:59], 0 offen')
    a.label('L_end')
    a('s_endpgm')

def build(path):
    hdr = open(f'cdna_kernels/{NAME}.s.ref').read().split('\n')
    out = [l for l in hdr if l.startswith(';') and '@launch' not in l][:16]
    out.append(f'; @launch grid=(256,1,1) block=(512,1,1) lds={LDS_TOTAL}')
    out.append('.amdgcn_target "amdgcn-amd-amdhsa--gfx950"')
    out.append('.text')
    label = NAME + '_kernel'
    a = Asm(); kernel(a)
    txt = '\n'.join(out) + f'\n.globl {label}\n.p2align 8\n.type {label},@function\n{label}:\n' + a.finalize()
    txt += f'''.section .rodata,"a"
.p2align 6
.amdhsa_kernel {label}
  .amdhsa_next_free_vgpr 256
  .amdhsa_next_free_sgpr 102
  .amdhsa_accum_offset 256
  .amdhsa_group_segment_fixed_size 0
  .amdhsa_kernarg_size 104
  .amdhsa_user_sgpr_count 2
  .amdhsa_user_sgpr_kernarg_segment_ptr 1
  .amdhsa_system_sgpr_workgroup_id_x 1
.end_amdhsa_kernel
'''
    open(path, 'w').write(txt)

if __name__ == '__main__':
    if '--stamps' in sys.argv: STAMPS = True; sys.argv.remove('--stamps')
    build(sys.argv[1] if len(sys.argv) > 1 else f'cdna_kernels/{NAME}.s')
```

```python
import sys, math, struct, os, re
DBG = os.environ.get('DBG', '')
sys.path.insert(0, 'work')
from asmgen import *

STAMPS = False
NAME = 'concat_heads__mha_block__ssm_conv_s4d__prompt'
S = 2048; D = 448; H = 16; DH = 28
TILEB = 56 * 512
F0 = 0; F1 = 4096; F2 = 8192; EPOCH = 10240; F3 = 12288
WS_Q = 32768
WS_K = WS_Q + 64 * TILEB
WS_V = WS_K + 64 * TILEB
WS_O = WS_V + 64 * TILEB
WS_UT = WS_O + 64 * 32768
WS_YT = WS_UT + 112 * 16384
WS_END = WS_YT + 224 * 8192
WS_STAMP = 16 << 20
LDS_TOTAL = 163840
POLL_LIMIT = 20000
PRIO_IT = 3
NA = int(os.environ.get('NA', 20))
PRIO_LEFT = int(os.environ.get('PRIO_LEFT', 1))
CONV_PRIO = int(os.environ.get('CONV_PRIO', 1))
PRIO_CMP = 'lt'
SCHED_C = [3, 3, 3, 1, 1]
U_ISS = 1; U_TR = 5; F0_SIG = 11
F0_TRY = (7, 10)
F0_LAG = 2
PRE_ST = int(os.environ.get('PRE_ST', 3))
CONV_T0 = 18
XMOD = os.environ.get('XMOD', '')
F1_SLEEP = 8
KG_CUT = float(os.environ.get('KG_CUT', 0.6))
LD_PER = int(os.environ.get('LD_PER', 50))

def f32bits(x): return struct.unpack('<I', struct.pack('<f', x))[0]
QSCALE = math.log2(math.e) / math.sqrt(DH)
LOG2E = math.log2(math.e)
P_X, P_W, P_WO, P_U, P_LA, P_AI, P_CR, P_CI, P_DT, P_DS, P_OUT, P_DBG, P_WS = [64 + 2*i for i in range(13)]

def stamp(a, n):
    if STAMPS:
        a('s_memrealtime s[90:91]')
        a('s_waitcnt lgkmcnt(0)')
        a(f'v_writelane_b32 v254, s90, {n}')

def srd(a, base_s, ptr_s, nbytes):
    a(f's_mov_b32 s{base_s}, s{ptr_s}')
    a(f's_and_b32 s{base_s+1}, s{ptr_s+1}, 0xffff')
    a(f's_mov_b32 s{base_s+2}, {nbytes}')
    a(f's_mov_b32 s{base_s+3}, 0x20000')

def poll(a, name, voff, tmp, mask=-1, x4=False, sleep=4):
    if mask != -1:
        a(f's_mov_b32 exec_lo, {mask & 0xffffffff}')
        a(f's_mov_b32 exec_hi, {mask >> 32}')
    a('s_mov_b32 s62, 0')
    a.label(name)
    if x4:
        a(f'buffer_load_dwordx4 {v(tmp,4)}, v{voff}, s[16:19], 0 offen sc1')
        a('s_waitcnt vmcnt(0)')
        for i in range(4): a(f'v_xor_b32 v{tmp+i}, s20, v{tmp+i}')
        a(f'v_or3_b32 v{tmp}, v{tmp}, v{tmp+1}, v{tmp+2}')
        a(f'v_or_b32 v{tmp}, v{tmp}, v{tmp+3}')
        a(f'v_cmp_ne_u32 vcc, 0, v{tmp}')
    else:
        a(f'buffer_load_dword v{tmp}, v{voff}, s[16:19], 0 offen sc1')
        a('s_waitcnt vmcnt(0)')
        a(f'v_cmp_ne_u32 vcc, s20, v{tmp}')
    a('s_nop 4')
    a(f's_cbranch_vccz {name}_ok')
    a(f's_sleep {sleep}')
    a('s_add_u32 s62, s62, 1')
    a(f's_cmp_lt_u32 s62, {POLL_LIMIT}')
    a(f's_cbranch_scc1 {name}')
    a.label(name + '_ok')
    a('s_mov_b64 exec, -1')

def signal(a, soff, vt0, vt1):
    a(f'v_mov_b32 v{vt0}, s{soff}')
    a(f'v_mov_b32 v{vt1}, s20')
    a('s_mov_b64 exec, 1')
    a(f'buffer_store_dword v{vt1}, v{vt0}, s[16:19], 0 offen sc1')
    a('s_mov_b64 exec, -1')


CV, C1 = 250, 251
def garrive(a, off):
    a('s_mov_b64 exec, 1')
    a(f'ds_add_u32 v{CV}, v{C1} offset:{off}')
    a('s_mov_b64 exec, -1')
_gw = [0]
def gwait(a, off, target, tmp):
    _gw[0] += 1; name = f'GW{_gw[0]}'
    a.label(name)
    a(f'ds_read_b32 v{tmp}, v{CV} offset:{off}')
    a('s_waitcnt lgkmcnt(0)')
    a(f'v_readfirstlane_b32 s62, v{tmp}')
    a(f's_cmp_ge_u32 s62, {target}')
    a(f's_cbranch_scc1 {name}_ok')
    a('s_sleep 1')
    a('s_add_u32 s95, s95, 1')
    a('s_cmp_lt_u32 s95, 0x200000')
    a(f's_cbranch_scc1 {name}')
    a.label(name + '_ok')

def prologue(a):
    a(f"""
    s_cmp_ge_u32 s2, 256
    s_cbranch_scc1 L_end
    s_load_dwordx16 s[64:79], s[0:1], 0
    s_load_dwordx8 s[80:87], s[0:1], 64
    s_load_dwordx2 s[88:89], s[0:1], 96
    v_and_b32 v1, 63, v0
    v_lshrrev_b32 v2, 6, v0
    v_readfirstlane_b32 s3, v2
    s_and_b32 s22, s2, 7
    s_lshr_b32 s23, s2, 3
    s_and_b32 s27, s22, 1                  ; odd
    s_lshr_b32 s24, s23, 3                 ; cl' (0..3)
    s_lshl_b32 s25, s27, 2
    s_add_u32 s25, s25, s24
    s_and_b32 s26, s23, 7                  ; rbl
    s_lshl_b32 s28, s26, 1
    s_add_u32 s28, s28, s27
    s_cmp_eq_u32 s24, 3
    s_cselect_b32 s25, 3, s25
    s_cselect_b32 s26, s28, s26
    s_lshl_b32 s24, s24, 1
    s_add_u32 s24, s24, s26
    s_lshr_b32 s28, s22, 1
    s_lshl_b32 s28, s28, 3
    s_add_u32 s26, s26, s28                ; rb
    s_mul_i32 s21, s22, 28
    s_add_u32 s21, s21, s23
    s_cmp_lt_u32 s23, 28
    s_cbranch_scc1 L_full
    s_waitcnt lgkmcnt(0)
    """)
    srd(a, 4, P_W, D * 3 * D * 2)
    a(f"""
    s_sub_u32 s36, s23, 28
    s_lshl_b32 s36, s36, 3
    s_add_u32 s36, s36, s3
    s_mul_i32 s36, s36, {42*896}
    s_add_u32 s36, s36, 384
    v_lshrrev_b32 v2, 3, v1
    v_mul_u32_u24 v2, 896, v2
    v_and_b32 v3, 7, v1
    v_lshl_add_u32 v2, v3, 4, v2
    v_add_u32 v2, s36, v2
    """)
    for i in range(6):
        a(f's_mov_b32 s36, {min(8*i, 34)*896}')
        a(f'buffer_load_dwordx4 {v(64+4*i,4)}, v2, s[4:7], s36 offen')
    srd(a, 16, P_WS, WS_END)
    srd(a, 12, P_OUT, S * 2 * D * 2)
    a(f"""
    s_mov_b32 s36, {EPOCH}
    buffer_load_dword v253, off, s[16:19], s36 sc1
    s_waitcnt vmcnt(0)
    v_readfirstlane_b32 s20, v253
    s_add_u32 s20, s20, 1
    {'s_endpgm' if 'gemmonly' in DBG else ''}
    s_sleep 60
    s_sub_u32 s36, s23, 28
    s_lshl_b32 s36, s36, 3
    s_add_u32 s36, s36, s3
    s_mul_i32 s36, s36, 12544
    v_lshl_add_u32 v2, v1, 4, s36
    """)
    srd(a, 8, P_WO, D * D * 2)
    for i in range(13):
        a(f's_mov_b32 s36, {1024*i}')
        a(f'buffer_load_dwordx4 {v(64+4*i,4)}, v2, s[8:11], s36 offen')
    a("""
    s_waitcnt vmcnt(0)
    """)
    att_poll_addr(a, 176)
    a.label('L_lite0')
    su, _ = att_pre_groups()
    emit_groups(a, su)
    a('s_cmp_lg_u32 s3, 0\ns_cbranch_scc1 L_lite1')
    poll(a, 'PL_f1b', 176, 180, x4=True, sleep=8)
    a.label('L_lite1')
    a('s_barrier')
    a('s_branch L_pre')
    a.label('L_full')

RING0 = 65536; SLOT = 16384; NS = 4; DEPTH = 3
def slot_of(j): return (j + 2) % NS
XYP = 1056; XYCH = 53 * XYP
GP = 532 * 16; GCH = 260 * 16
L_UT = 0
L_T2 = 114688; TP = 328; T2CH = 8 * TP * 2; T2ZERO = 7 * TP + 324
L_U = 8 * GP; UCH = 96 * 80
L_CTL = L_U + 2 * UCH
L_TAB = 139264; L_EP = L_TAB - 16
assert L_CTL + 16 <= 98304 and L_T2 + 2*T2CH <= L_EP and L_TAB + 6*4096 <= LDS_TOTAL
L_PART = 131072; PSRC = 1024; POWN = 4096

def cmul(o, d, x, e, t):
    o.append(f'v_pk_mul_f32 {v(t,2)}, {v(x,2)}, {v(e,2)} op_sel:[0,0] op_sel_hi:[1,0]')
    o.append(f'v_pk_fma_f32 {v(d,2)}, {v(x,2)}, {v(e,2)}, {v(t,2)} op_sel:[1,1,0] op_sel_hi:[0,1,1] neg_lo:[1,0,0]')

def lines(txt): return [l.strip() for l in txt.split('\n') if l.strip()]

_KM = [{}, {}]
def _mk():
    pairs_pre = [20, 22, 24, 26, 28, 30, 32, 34, 36, 38, 40, 42, 48, 50, 52, 54]
    for i, r in enumerate(pairs_pre):
        b1 = 64 + 2*i; b0 = 64 + 2*i if i < 8 else 208 + 2*(i-8)
        _KM[1][r] = b1; _KM[1][r+1] = b1 + 1; _KM[0][r] = b0; _KM[0][r+1] = b0 + 1
    for i, r in enumerate([2, 3, 4, 5, 6, 7, 8, 9]): _KM[1][r] = 176 + i
    _KM[0][8] = 244; _KM[0][9] = 245
    for i, r in enumerate([68, 69, 70, 71]): _KM[1][r] = 184 + i; _KM[0][r] = 184 + i
_mk()
def kmap(l, ch):
    M = _KM[ch]
    def one(m): return f'v{M.get(int(m.group(1)), int(m.group(1)))}'
    def rng(m):
        lo = int(m.group(1)); hi = int(m.group(2)); n = M.get(lo, lo); return f'v[{n}:{n+hi-lo}]'
    l = re.sub(r'v\[(\d+):(\d+)\]', rng, l)
    return re.sub(r'\bv(\d+)\b', one, l)

def kgen(ch):
    P = 240
    pre = lines(f"""
    {'s_lshl_b32 s58, s38, 16' if ch == 0 else 's_and_b32 s58, s38, 0xffff0000'}
    v_mov_b32 v4, s58
    v_mul_f32 v4, {f32bits(LOG2E)}, v4
    v_exp_f32 v4, v4
    v_lshlrev_b32 v2, 16, v{P}
    v_lshlrev_b32 v3, 16, v{P+1}
    v_lshlrev_b32 v20, 16, v{P+2}
    v_lshlrev_b32 v21, 16, v{P+3}
    v_cvt_pk_bf16_f32 v4, v4, v4
    v_mul_f32 v2, {f32bits(LOG2E)}, v2
    v_exp_f32 v2, v2
    v_and_b32 v4, 0xffff0000, v4
    v_mul_f32 v3, v3, v4
    v_cvt_pk_bf16_f32 v2, v2, v2
    v_and_b32 v2, 0xffff0000, v2
    v_mul_f32 v2, v2, v4
    v_mul_f32 v2, {f32bits(-LOG2E)}, v2
    v_mul_f32 v3, {f32bits(1/(2*math.pi))}, v3
    v_add_f32 v4, v4, v4
    v_mul_f32 v20, v20, v4
    v_mul_f32 v21, v21, v4
    """)
    E1, E8, E256, E2, E4, E16, E32 = 22, 24, 26, 28, 30, 32, 34
    for (E, p) in ((E1, 1.0), (E8, 8.0), (E256, 256.0)):
        pre += lines(f"""
        v_mul_f32 v6, {f32bits(p)}, v2
        v_mul_f32 v7, {f32bits(p)}, v3
        v_exp_f32 v6, v6
        v_fract_f32 v7, v7
        v_cos_f32 v8, v7
        v_sin_f32 v9, v7
        v_mul_f32 v{E}, v6, v8
        v_mul_f32 v{E+1}, v6, v9
        """)
    cmul(pre, E2, E1, E1, 6); cmul(pre, E16, E8, E8, 8)
    cmul(pre, E4, E2, E2, 6); cmul(pre, E32, E16, E16, 8)
    Y = [48, 50, 52, 54]
    def put(o, row, x, r, neg=False):
        o.append(f'v_cvt_pk_bf16_f32 v{r}, v{x}, {"-" if neg else ""}v{x+1}')
        o.append(f'ds_write_addtid_b32 v{r} offset:{row*XYP}')
    chains = []
    for c in range(4):
        o = []
        cur = {0: None, 1: E8, 2: E16, 3: Y[3]}[c]
        if c == 3: cmul(o, Y[3], E16, E8, 36 + 2*c)
        for step in range(8):
            if cur is None:
                o.append(f'v_mov_b32 v{44+c}, 0x3f80')
                o.append(f'ds_write_addtid_b32 v{44+c} offset:{21*XYP}')
                cur = E32; continue
            put(o, 21 + 4*step + c, cur, 44 + c)
            if step < 7: cmul(o, Y[c], cur, E32, 36 + 2*c); cur = Y[c]
        chains.append(o)
    XC, GC, SD, SD2 = 56, 58, 60, 62
    o = []
    put(o, 0, 20, 68, True)
    for step in range(7):
        cmul(o, XC, 20 if step == 0 else XC, E1, 6); put(o, step + 1, XC, 68, True)
    chains.append(o)
    grow = {1: 8, 2: 12, 3: 14, 4: 16, 5: 17, 6: 18, 7: 19, 8: 20}
    G = [58, 10, 12, 58, 58, 58, 58, 58]
    G = [10, 12, 18, 58, 58, 58, 58, 58]
    o = []
    for step in range(8):
        cmul(o, G[step], 20 if step == 0 else G[step-1], E256, 8); put(o, grow[step+1], G[step], 69, True)
    chains.append(o)
    o = [None]*12
    cmul(o, SD, G[0], E2, 70); put(o, 9, SD, 5, True)
    cmul(o, SD2, G[0], E4, 70); put(o, 10, SD2, 5, True)
    cmul(o, SD, SD2, E2, 70); put(o, 11, SD, 5, True)
    cmul(o, SD2, G[1], E4, 70); put(o, 13, SD2, 5, True)
    cmul(o, SD, G[2], E4, 70); put(o, 15, SD, 5, True)
    chains.append(o)
    body = []
    for k in range(max(len(c) for c in chains)):
        for c in chains:
            if k < len(c) and c[k] is not None: body.append(c[k])
    return [kmap(l, ch) for l in pre], [kmap(l, ch) for l in body]

def kmfma(ch):
    FA = 80; FB = 144; KA = 208
    o = []
    for st in range(16):
        o.append(f'ds_read_b128 {v(FA+4*st,4)}, v20 offset:{st*64 + (1-ch)*XYCH}')
        o.append(f'ds_read_b128 {v(FB+4*st,4)}, v21 offset:{st*64 + (1-ch)*XYCH}')
        if st >= 4:
            k = st - 4
            o.append(f's_waitcnt lgkmcnt(8)')
            o.append(f'v_mfma_f32_16x16x32_bf16 {v(KA,4)}, {v(FA+4*k,4)}, {v(FB+4*k,4)}, {"0" if k == 0 else v(KA,4)}')
    for k in range(12, 16):
        o.append(f's_waitcnt lgkmcnt({2*(15-k)})')
        o.append(f'v_mfma_f32_16x16x32_bf16 {v(KA,4)}, {v(FA+4*k,4)}, {v(FB+4*k,4)}, {v(KA,4)}')
    fin = lines(f"""
    v_cvt_pk_bf16_f32 v{KA+4}, v{KA}, v{KA+1}
    v_cvt_pk_bf16_f32 v{KA+5}, v{KA+2}, v{KA+3}
    ds_write_b16 v22, v{KA+4} offset:{ch*T2CH}
    ds_write_b16_d16_hi v23, v{KA+4} offset:{ch*T2CH}
    ds_write_b16 v24, v{KA+5} offset:{ch*T2CH}
    ds_write_b16_d16_hi v25, v{KA+5} offset:{ch*T2CH}
    """)
    return o, fin

def gbuild(ch):
    B = 64
    g = B; d = B + 16; o_ = B + 24; d1 = B + 32; o1 = B + 38
    p0 = [f'ds_read_u16 v{g+i}, v{224+i} offset:{ch*T2CH}' for i in range(15)]
    p1 = [f'v_lshl_or_b32 v{d+i}, v{g+2*i+1}, 16, v{g+2*i}' for i in range(7)]
    p1 += [f'v_lshl_or_b32 v{o_+i}, v{g+2*i+2}, 16, v{g+2*i+1}' for i in range(7)]
    p1 += [f'v_lshl_or_b32 v{d1+i}, v{g+2*i+3}, 16, v{g+2*i+2}' for i in range(6)]
    p1 += [f'v_lshl_or_b32 v{o1+i}, v{g+2*i+4}, 16, v{g+2*i+3}' for i in range(6)]
    src = {0: d, 4: d+2, 1: o_, 5: o_+2, 2: d1, 6: d1+2, 3: o1, 7: o1+2}
    p2 = [f'ds_write_b128 v249, {v(src[t],4)} offset:{(7-t)*GP + ch*GCH}' for t in range(8)]
    return p0, p1, p2

K_, V_, Q_ = 1, 2, 0
TA, TB, TC = Q_, K_, V_
stages = [[('x',0),(TA,0)], [(TB,0),(TC,0)], [('x',1),('x',2)], [(TA,1),(TA,2)]]
for _i in range(3, 7): stages.append([('x', _i), (TA, _i)])
_rest = [(TB, i) for i in range(1, 7)] + [(TC, i) for i in range(1, 7)]
for _i in range(6): stages.append(_rest[2*_i:2*_i+2])
NST = len(stages)

def ph_front(a):
    a(f"""
    s_mov_b32 s95, 0
    s_lshl_b32 s37, s21, 10
    v_lshl_add_u32 v248, v0, 1, s37
    s_lshl_b32 s36, s21, 2
    v_lshrrev_b32 v3, 3, v1
    v_and_b32 v4, 7, v1
    s_and_b32 s29, s3, 3                   ; lw
    s_cmp_lt_u32 s3, 4
    s_cbranch_scc1 Q_comp
    """)
    loader_waves(a)
    a.label('Q_comp')
    comp_waves(a)

def params(a, vo=248):
    for i in range(4):
        srd(a, 56, P_LA + 2*i, D * 256 * 2)
        a(f'buffer_load_ushort v{240+i}, v{vo}, s[56:59], 0 offen nt')
    a(f"""
    s_lshl_b32 s36, s21, 2
    s_add_u32 s{P_DT}, s{P_DT}, s36
    s_addc_u32 s{P_DT+1}, s{P_DT+1}, 0
    s_add_u32 s{P_DS}, s{P_DS}, s36
    s_addc_u32 s{P_DS+1}, s{P_DS+1}, 0
    s_load_dword s38, s[{P_DT}:{P_DT+1}], 0
    s_load_dword s39, s[{P_DS}:{P_DS+1}], 0
    """)

def ssm_head(ch):
    pre, body = kgen(ch)
    h = lines(f"""
    s_lshl_b32 s36, s29, 8
    s_add_u32 m0, s36, {(1-ch)*XYCH}
    v_and_b32 v14, 255, v0
    v_lshlrev_b32 v249, 4, v14
    v_add_u32 v15, {L_TAB}, v249
    v_add_u32 v249, 48, v249
    v_mov_b32 v{CV}, {L_CTL}
    v_mov_b32 v{C1}, 1
    """)
    tab = [f'ds_read_b128 v[20:23], v15 offset:{4*4096}', f'ds_read_b128 v[24:27], v15 offset:{5*4096}']
    tab += [f'ds_read_b128 {v(224+4*q,4)}, v15 offset:{q*4096}' for q in range(4)]
    return h + body + tab

def ssm_common(a, ch, before_b1, before_b2, after_b2, before_bc):
    m, fin = kmfma(ch); g = gbuild(ch)
    before_b1()
    a('s_waitcnt lgkmcnt(0)\ns_barrier')
    stamp(a, 3)
    for l in m: a(l)
    a(f"""
    v_mov_b32 v32, 0
    v_mov_b32 v33, 0
    v_mov_b32 v34, 0
    v_mov_b32 v35, 0
    v_mov_b32 v9, {L_T2 + 2*T2ZERO + ch*T2CH}
    ds_write_b32 v9, v32
    """)
    for l in fin: a(l)
    before_b2()
    a('s_waitcnt lgkmcnt(0)\ns_barrier')
    stamp(a, 14)
    for l in g[0]: a(l)
    after_b2()
    a('s_waitcnt lgkmcnt(0)')
    for l in g[1] + g[2]: a(l)
    before_bc()
    a('s_waitcnt lgkmcnt(0)\ns_barrier')
    stamp(a, 4)

UV = [220, 221, 222, 252, 255]
def loader_waves(a):
    a(f"""
    s_sub_u32 s28, s24, 7
    s_cmp_ge_u32 s24, 7
    s_cselect_b32 s27, s28, s24            ; rho
    s_lshl_b32 s30, s29, 4
    v_add_u32 v5, s30, v3
    v_lshrrev_b32 v6, 1, v5
    v_and_b32 v6, 7, v6
    v_xor_b32 v6, v6, v4
    v_lshlrev_b32 v6, 4, v6
    s_lshl_b32 s30, s26, 6
    v_add_u32 v7, s30, v5
    v_mul_u32_u24 v7, 896, v7
    v_add_u32 v244, v7, v6
    v_xor_b32 v6, 64, v6
    v_add_u32 v245, v7, v6
    v_add_u32 v245, 7168, v245
    v_lshrrev_b32 v6, 1, v5
    v_and_b32 v6, 1, v6
    v_lshlrev_b32 v6, 2, v6
    v_xor_b32 v6, v6, v4
    v_lshlrev_b32 v6, 4, v6
    v_mul_u32_u24 v7, 2688, v5
    v_add_u32 v246, v7, v6
    s_lshl_b32 s30, s25, 7
    v_add_u32 v246, s30, v246
    v_add_u32 v247, 21504, v246
    s_lshl_b32 s32, s29, 11
    s_lshl_b32 s40, s27, 7
    s_mul_i32 s48, s27, {64*2688}
    s_waitcnt lgkmcnt(0)
    """)
    srd(a, 8, P_X, S * D * 2)
    srd(a, 4, P_W, D * 3 * D * 2)
    def issue(j):
        for half, (kind, i) in enumerate(stages[j]):
            base = RING0 + slot_of(j) * SLOT + half * 8192
            for e in range(2):
                a(f's_add_u32 m0, s32, {base + e*1024}')
                if kind == 'x':
                    a(f'buffer_load_dwordx4 v{244+e}, s[8:11], s{40+i} offen {XMOD} lds')
                else:
                    so = f's{48+i}'
                    if kind:
                        so = 's33'
                        if e == 0: a(f's_add_u32 s33, s{48+i}, {kind*896}')
                    a(f'buffer_load_dwordx4 v{246+e}, s[4:7], {so} offen lds')
    vm = []
    def waitfor(tag):
        last = max(i for i, t in enumerate(vm) if t == tag)
        a(f's_waitcnt vmcnt({len(vm) - 1 - last})')
    for j in range(2): issue(j); vm += [j]*4
    for i in range(1, 7):
        a(f's_add_u32 s27, s27, 1\ns_cmp_eq_u32 s27, 7\ns_cselect_b32 s27, 0, s27\ns_lshl_b32 s{40+i}, s27, 7\ns_mul_i32 s{48+i}, s27, {64*2688}')
    srd(a, 16, P_WS, WS_END)
    srd(a, 12, P_OUT, S * 2 * D * 2)
    t = Asm()
    t(f"""
    s_bfe_u32 s63, s3, 0x10001             ; hf
    s_and_b32 s61, s3, 1
    v_and_b32 v2, 7, v1
    v_lshrrev_b32 v3, 3, v1
    v_mul_u32_u24 v2, {GP}, v2
    v_lshl_add_u32 v217, v3, 4, v2
    v_cmp_lt_u32 vcc, 2, v3
    v_add_u32 v2, {GCH - 48}, v217
    v_cndmask_b32 v217, v217, v2, vcc
    s_lshl_b32 s36, s21, 1
    s_lshr_b32 s56, s36, 2
    s_lshl_b32 s56, s56, 14
    s_and_b32 s36, s36, 3
    s_lshl_b32 s36, s36, 4
    s_add_u32 s56, s56, s36
    s_add_u32 s56, s56, {WS_UT}
    s_mov_b32 s92, s56
    """)
    for k in range(5):
        t(f"""
        v_add_u32 v2, {64*k}, v1
        v_mul_u32_u24 v3, 205, v2
        v_lshrrev_b32 v3, 10, v3
        v_mul_u32_u24 v4, 5, v3
        v_sub_u32 v4, v2, v4
        v_min_u32 v4, 3, v4
        v_lshl_add_u32 v3, v3, 2, v4
        v_lshlrev_b32 v{UV[k]}, 6, v3
        """)
    t(f"""
    s_lshr_b32 s36, s21, 5
    s_lshl_b32 s36, s36, 9
    v_and_b32 v17, 31, v1
    v_lshl_add_u32 v223, v17, 4, s36
    v_lshrrev_b32 v18, 5, v1
    v_and_b32 v19, 7, v17
    v_mul_u32_u24 v19, {GP}, v19
    v_lshrrev_b32 v2, 3, v17
    v_sub_u32 v2, v2, v18
    v_add_u32 v2, 1, v2
    v_lshl_add_u32 v19, v2, 4, v19
    s_mul_i32 s36, s61, {GCH}
    s_lshl_b32 s56, s63, 10
    s_add_u32 s36, s36, s56
    v_add_u32 v218, s36, v19
    v_mul_u32_u24 v2, 80, v17
    v_lshl_add_u32 v2, v18, 4, v2
    s_mul_i32 s36, s61, {UCH}
    s_mul_i32 s56, s63, {16*80}
    s_sub_u32 s36, s36, s56
    s_add_u32 s36, s36, {L_U + 17*80}
    v_add_u32 v219, s36, v2
    """)
    for l in t.lines: a(l)
    for j in range(2, PRE_ST): issue(j); vm += [j]*4
    issued = max(2, PRE_ST)
    pre, _ = kgen(1)
    extra = lines(f"""
    v_mov_b32 v2, {L_EP}
    ds_read_b32 v2, v2
    s_waitcnt lgkmcnt(0)
    v_readfirstlane_b32 s20, v2
    """) + pre
    head = ssm_head(1)
    for j in range(NST):
        waitfor(j)
        if j == 0: stamp(a, 13)
        a('s_barrier')
        if j == 0: stamp(a, 1)
        if 'gemmonly' in DBG and j in (2, 4, 6, 8, 10, 12, 13): stamp(a, {2:3, 4:4, 6:5, 8:6, 10:7, 12:8, 13:9}[j])
        while issued < NST and issued <= j + DEPTH:
            issue(issued); vm += [issued]*4; issued += 1
        if j == 0:
            params(a); vm += ['p']*4
        if j in (8, 9, 10):
            k = -(-len(extra) // (11 - j))
            for l in extra[:k]: a(l)
            extra = extra[k:]
        if j in (11, 12):
            for l in head[:LD_PER]: a(l)
            head = head[LD_PER:]
    for l in head: a(l)
    stamp(a, 2)
    if 'gemmonly' in DBG: a('s_branch P_fin')
    def nop(): pass
    def start():
        a('s_cmp_lg_u32 s3, 4\ns_cbranch_scc1 Q_nof0a')
        a('buffer_load_dwordx4 v[28:31], v223, s[16:19], 0 offen sc1')
        a.label('Q_nof0a')
    def udma():
        a('s_add_u32 s93, s92, 16')
        for ch in range(2):
            for k in range(5):
                a(f's_mov_b32 m0, {L_U + 32*80 + ch*UCH + 1024*k}')
                a(f'buffer_load_dwordx4 v{UV[k]}, s[16:19], s{92+ch} offen sc1 lds')
    def b2():
        a('s_mov_b32 s60, 0')
        a('s_cmp_lg_u32 s3, 4\ns_cbranch_scc1 Q_nof0')
        a('s_waitcnt vmcnt(0)')
        for i in range(4): a(f'v_xor_b32 v{28+i}, s20, v{28+i}')
        a('v_or3_b32 v28, v28, v29, v30\nv_or_b32 v28, v28, v31\nv_cmp_ne_u32 vcc, 0, v28')
        a('s_mov_b32 s60, 1\ns_nop 3\ns_cbranch_vccnz Q_nof0')
        udma()
        a('s_mov_b32 s60, 0')
        a.label('Q_nof0')
        a(f"""
        v_lshlrev_b32 v36, 4, v14
        v_add_u32 v36, {L_U}, v36
        v_cmp_gt_u32 vcc, 160, v14
        s_mov_b64 exec, vcc
        ds_write_b128 v36, v[32:35]
        ds_write_b128 v36, v[32:35] offset:{UCH}
        s_mov_b64 exec, -1
        s_mov_b32 exec_hi, 0xffff
        ds_write_b128 v217, v[32:35]
        s_mov_b32 exec_hi, -1
        ds_write2_b32 v{CV}, v32, v33 offset0:1 offset1:3
        """)
    def bc():
        a('s_cmp_eq_u32 s60, 0\ns_cbranch_scc1 Q_nof1')
        poll(a, 'PL_f0', 223, 28, x4=True, sleep=1)
        udma()
        a.label('Q_nof1')
        a('s_waitcnt vmcnt(0)')
    ssm_common(a, 1, start, nop, b2, bc)
    if CONV_PRIO: a('s_setprio 1')
    SC = 4; sc = [0]
    def sarr():
        a('s_waitcnt lgkmcnt(0)'); garrive(a, SC); sc[0] += 4
    Y0, Y1 = 176, 192
    FR = 32; NBUF = 4
    def boff(n): return (n // 2) * 80 + (n % 2) * 32
    def ld(t):
        b = FR + 16 * (t % NBUF)
        return [f'ds_read_b128 {v(b,4)}, v218 offset:{32*t}',
                f'ds_read_b128 {v(b+4,4)}, v219 offset:{boff(31-t)}',
                f'ds_read_b128 {v(b+8,4)}, v219 offset:{boff(31-t) + 2560}',
                f'ds_read_b128 {v(b+12,4)}, v218 offset:{32*t + 2048}']
    def mm(t, first):
        b = FR + 16 * (t % NBUF)
        return [f'v_mfma_f32_32x32x16_bf16 {v(Y0,16)}, {v(b,4)}, {v(b+4,4)}, {"0" if first else v(Y0,16)}',
                f'v_mfma_f32_32x32x16_bf16 {v(Y1,16)}, {v(b,4)}, {v(b+8,4)}, {"0" if first else v(Y1,16)}',
                f'v_mfma_f32_32x32x16_bf16 {v(Y1,16)}, {v(b+12,4)}, {v(b+4,4)}, {v(Y1,16)}']
    for l in ld(0) + ld(1): a(l)
    t_ = Asm(); ssm_epi_setup(t_)
    t_(f's_mul_i32 s36, s29, {PSRC}\ns_add_u32 s36, s36, {L_PART}\nv_lshl_add_u32 v216, v1, 4, s36')
    fillA = [[l] for l in t_.lines]
    su, fillB = att_pre_groups()
    fillA += su
    T0 = CONV_T0
    def take(q, k):
        for _ in range(k):
            if q:
                for l in q.pop(0): a(l)
    perA = -(-len(fillA) // (3*T0)); perB = -(-len(fillB) // (3*(30 - T0)))
    for t in range(32):
        if t == T0:
            gwait(a, 12, 1, 2)
        else:
            a(f's_waitcnt lgkmcnt({4 if t < 31 else 0})')
        L = ld(t + 2) if t + 2 < 32 else []
        M = mm(t, t == 0)
        q, per = (fillA, perA) if t < T0 else (fillB, perB)
        a(M[0])
        for l in L[:2]: a(l)
        take(q, per)
        a(M[1])
        for l in L[2:]: a(l)
        take(q, per)
        a(M[2])
        take(q, per)
    assert not fillA and not fillB
    a('s_setprio 1')
    for own in range(8):
        a(f'ds_write_b128 v216, {v(Y0 + 4*own, 4)} offset:{own*POWN}')
    sarr()
    emit_groups(a, att_zero())
    gwait(a, SC, sc[0], 2)
    stamp(a, 5)
    ssm_epi_reads(a)
    sarr()
    ssm_epi(a)
    gwait(a, SC, sc[0], 2)
    a('s_branch L_att')

def comp_waves(a):
    XF = 64; ACC = {K_: 176, V_: 192, Q_: 208}; WB = [[8 + 4*i for i in range(8)], [224 + 4*i for i in range(4)] + [40 + 4*i for i in range(4)]]
    a(f"""
    s_lshl_b32 s28, s3, 1
    v_xor_b32 v5, s28, v4
    v_lshlrev_b32 v5, 4, v5
    s_lshl_b32 s30, s26, 6
    s_lshl_b32 s31, s3, 4
    s_add_u32 s30, s30, s31
    v_add_u32 v6, s30, v3
    v_mul_u32_u24 v6, 896, v6
    s_lshl_b32 s31, s25, 7
    v_add_u32 v6, s31, v6
    v_add_u32 v246, v6, v5
    v_xor_b32 v5, 16, v5
    v_add_u32 v6, v6, v5
    v_add_u32 v247, 7168, v6
    s_lshl_b32 s31, s3, 11
    s_add_u32 s32, s31, {L_UT}
    s_waitcnt lgkmcnt(0)
    """)
    srd(a, 16, P_WS, WS_END)
    a(f"""
    s_cmp_lg_u32 s3, 0
    s_cbranch_scc1 Q_noep0
    s_mov_b32 s33, {EPOCH}
    buffer_load_dword v253, off, s[16:19], s33 sc1
    """)
    a.label('Q_noep0')
    srd(a, 12, P_OUT, S * 2 * D * 2)
    a(f"""
    v_and_b32 v5, 1, v1
    v_bfe_u32 v6, v1, 1, 1
    v_lshrrev_b32 v7, 4, v1
    v_add_u32 v2, s28, v5
    v_xor_b32 v7, v7, v2
    v_lshlrev_b32 v7, 4, v7
    v_lshl_add_u32 v7, v6, 3, v7
    v_bfe_u32 v6, v1, 2, 2
    v_lshl_add_u32 v6, v5, 3, v6
    v_lshl_add_u32 v7, v6, 7, v7
    s_add_u32 s31, s31, {L_UT}
    v_add_u32 v249, s31, v7
    v_xor_b32 v252, 64, v249
    s_lshl_b32 s31, s25, 18
    s_lshl_b32 s33, s26, 9
    s_add_u32 s31, s31, s33
    s_lshl_b32 s33, s3, 7
    s_add_u32 s31, s31, s33
    s_add_u32 s31, s31, {WS_UT}
    v_lshlrev_b32 v255, 14, v3
    v_lshl_add_u32 v255, v4, 4, v255
    v_add_u32 v255, s31, v255
    v_lshlrev_b32 v6, 3, v0
    v_add_u32 v6, 7, v6
    v_mov_b32 v9, {L_T2 + 2*T2ZERO}
    v_mov_b32 v17, {L_T2}
    v_mov_b32 v18, {TP}
    """)
    for i in range(0, 15, 2):
        a(f"""
        v_subrev_u32 v7, {i}, v6
        v_subrev_u32 v8, {i+1}, v6
        v_cvt_f32_i32 v2, v7
        v_cvt_f32_i32 v5, v8
        v_cvt_pk_bf16_f32 v2, v2, v5
        v_and_b32 v5, 0xffff0000, v2
        v_lshlrev_b32 v2, 16, v2
        v_cvt_i32_f32 v2, v2
        v_cvt_i32_f32 v5, v5
        v_and_b32 v7, 7, v2
        v_and_b32 v8, 7, v5
        v_lshrrev_b32 v2, 3, v2
        v_lshrrev_b32 v5, 3, v5
        v_mad_u32_u24 v2, v7, v18, v2
        v_mad_u32_u24 v5, v8, v18, v5
        v_lshl_add_u32 v{64+i}, v2, 1, v17
        v_lshl_add_u32 v{65+i}, v5, 1, v17
        """)
    a('v_cmp_eq_u32 vcc, 0, v0')
    for i in range(8, 15): a(f'v_cndmask_b32 v{64+i}, v{64+i}, v9, vcc')
    a(f"""
    s_bfe_u32 s63, s3, 0x10001
    s_and_b32 s61, s3, 1
    v_and_b32 v17, 15, v1
    v_lshrrev_b32 v18, 4, v1
    v_mul_u32_u24 v19, {XYP}, v17
    v_lshl_add_u32 v19, v18, 4, v19
    s_mul_i32 s36, s63, {16*XYP}
    v_add_u32 v80, s36, v19
    s_mul_i32 s36, s61, {16*XYP}
    s_add_u32 s36, s36, {21*XYP}
    v_add_u32 v81, s36, v19
    """)
    ptab = {0: [[0,1,2,3],[4,5,6,7],[256,258,260,262],[512,516,768,772]],
            1: [[1024,1280,1536,1792],[2048,2304,2304,2304],[2304]*4,[2304]*4]}
    a('s_cmp_eq_u32 s63, 0')
    for g in range(4):
        a(f's_mov_b32 exec_lo, {0xffff << (16*(g%2)) if g < 2 else 0}')
        a(f's_mov_b32 exec_hi, {0xffff << (16*(g%2)) if g >= 2 else 0}')
        for r in range(4):
            ix = lambda p: (p & 7) * TP + (p >> 3)
            a(f's_mov_b32 s36, {ix(ptab[1][g][r])}')
            a(f's_cselect_b32 s36, {ix(ptab[0][g][r])}, s36')
            a(f'v_mov_b32 v{82+r}, s36')
    a(f"""
    s_mov_b64 exec, -1
    s_lshl_b32 s36, s61, 5
    s_add_u32 s36, s36, {L_T2}
    v_lshl_add_u32 v19, v17, 1, s36
    v_lshl_add_u32 v82, v82, 1, v19
    v_lshl_add_u32 v83, v83, 1, v19
    v_lshl_add_u32 v84, v84, 1, v19
    v_lshl_add_u32 v85, v85, 1, v19
    v_lshlrev_b32 v19, 4, v0
    v_add_u32 v19, {L_TAB}, v19
    """)
    for q in range(6): a(f'ds_write_b128 v19, {v(64+4*q,4)} offset:{q*4096}')
    a(f"""
    s_and_b32 s27, s3, 1                   ; rt
    s_lshr_b32 s30, s3, 1                  ; cg
    v_and_b32 v3, 31, v1
    v_lshrrev_b32 v4, 5, v1
    s_lshl_b32 s31, s27, 5
    v_add_u32 v5, s31, v3
    v_lshrrev_b32 v6, 1, v5
    v_and_b32 v6, 7, v6
    v_lshlrev_b32 v7, 7, v5
    v_add_u32 v7, {RING0}, v7
    """)
    for st in range(4):
        a(f"""
        v_add_u32 v{56+st}, {2*st}, v4
        v_xor_b32 v{56+st}, v{56+st}, v6
        v_lshl_add_u32 v{56+st}, v{56+st}, 4, v7
        """)
    a(f"""
    v_and_b32 v6, 3, v1
    v_lshlrev_b32 v6, 3, v6
    v_bfe_u32 v7, v1, 4, 1
    v_lshl_add_u32 v6, v7, 5, v6
    s_lshl_b32 s31, s30, 6
    v_add_u32 v6, s31, v6
    v_bfe_u32 v7, v1, 3, 1
    v_lshlrev_b32 v7, 6, v7
    v_xor_b32 v6, v6, v7
    v_bfe_u32 v7, v1, 2, 2
    v_lshl_add_u32 v7, v4, 3, v7
    v_lshl_add_u32 v60, v7, 7, v6
    v_add_u32 v60, {RING0}, v60
    s_lshl_b32 s31, s26, 1
    s_add_u32 s31, s31, s27
    s_mul_i32 s31, s31, {TILEB}
    s_lshl_b32 s33, s25, 3
    s_lshl_b32 s34, s30, 2
    s_add_u32 s33, s33, s34
    s_lshl_b32 s34, s33, 9
    s_add_u32 s34, s34, s31
    v_lshlrev_b32 v61, 4, v1
    v_add_u32 v61, s34, v61
    s_lshl_b32 s34, s33, 7
    s_add_u32 s34, s34, s31
    v_mul_u32_u24 v62, 7168, v4
    v_lshl_add_u32 v62, v3, 4, v62
    v_add_u32 v62, s34, v62
    s_mov_b32 s35, {f32bits(QSCALE)}
    s_lshl_b32 s60, s25, 9
    s_lshl_b32 s61, s26, 4
    s_add_u32 s60, s60, s61
    s_lshl_b32 s61, s3, 2
    s_add_u32 s60, s60, s61
    v_mov_b32 v63, {L_EP}
    s_cmp_lg_u32 s3, 0
    s_cbranch_scc1 Q_noep
    s_waitcnt vmcnt(0)
    v_add_u32 v253, 1, v253
    ds_write_b32 v63, v253
    """)
    a.label('Q_noep')
    a('s_waitcnt lgkmcnt(0)')
    stamp(a, 13)
    def reads(j):
        sb = slot_of(j) * SLOT
        n = 0; o = []
        for half, (kind, i) in enumerate(stages[j]):
            base = sb + half * 8192
            if kind == 'x':
                for st in range(4):
                    o.append(f'ds_read_b128 {v(XF + 16*i + 4*st, 4)}, v{56 + st} offset:{base}')
            else:
                for st in range(4):
                    r = WB[j % 2][n]; n += 1
                    for e in range(2):
                        o.append(f'ds_read_b64_tr_b16 {v(r + 2*e, 2)}, v60 offset:{base + (16*st + 4*e)*128}')
        return o
    started = set()
    def epilogue(kind):
        acc = ACC[kind]; out = []
        if kind == Q_:
            for r in range(16): out.append(f'v_mul_f32 v{acc+r}, s35, v{acc+r}')
        for r in range(8): out.append(f'v_cvt_pk_bf16_f32 v{acc+r}, v{acc+2*r}, v{acc+2*r+1}')
        T = acc
        if kind == V_:
            out.append(f's_mov_b32 s36, {WS_V}')
            out.append(f'buffer_store_dwordx4 {v(T,4)}, v62, s[16:19], s36 offen sc1')
            out.append(f's_mov_b32 s36, {WS_V + 2*7168}')
            out.append(f'buffer_store_dwordx4 {v(T+4,4)}, v62, s[16:19], s36 offen sc1')
        else:
            for q in range(2):
                out.append(f'v_permlane32_swap_b32 v{T+4*q}, v{T+4*q+2}')
                out.append(f'v_permlane32_swap_b32 v{T+4*q+1}, v{T+4*q+3}')
            out.append(f's_mov_b32 s36, {WS_Q if kind == Q_ else WS_K}')
            out.append(f'buffer_store_dwordx4 {v(T,4)}, v61, s[16:19], s36 offen sc1')
            out.append(f'buffer_store_dwordx4 {v(T+4,4)}, v61, s[16:19], s36 offen offset:1024 sc1')
        return out
    def mlist(j):
        n = 0; done = []; o = []
        for half, (kind, i) in enumerate(stages[j]):
            if kind == 'x': continue
            acc = ACC[kind]
            for st in range(4):
                w = WB[j % 2][n]; n += 1
                x = XF + 16*i + 4*st
                c = v(acc, 16) if kind in started else '0'
                started.add(kind)
                if kind == V_: o.append(f'v_mfma_f32_32x32x16_bf16 {v(acc,16)}, {v(x,4)}, {v(w,4)}, {c}')
                else:          o.append(f'v_mfma_f32_32x32x16_bf16 {v(acc,16)}, {v(w,4)}, {v(x,4)}, {c}')
            if i == 6: done.append(kind)
        return o, done
    def weave(ms, rd, fill):
        nm = len(ms)
        per = -(-len(rd) // max(nm - 2, 1))
        fper = -(-len(fill) // max(nm - 2, 1))
        for k, m in enumerate(ms):
            a(m)
            for _ in range(per):
                if rd: a(rd.pop(0))
            if k >= 2:
                for _ in range(fper):
                    if fill: a(fill.pop(0))
        for l in rd + fill: a(l)
    pending = []
    pre, _ = kgen(0)
    prep = [pre[:len(pre)//2], pre[len(pre)//2:]]
    for j in range(NST):
        a('s_barrier')
        if j == 0: stamp(a, 1)
        rd = reads(j); ms = []; fill = []
        if j == 0: rd.append('ds_read_b32 v253, v63')
        if j > 0:
            for k in pending: fill += epilogue(k)
            ms, pending = mlist(j - 1)
        if j == 7: a('s_waitcnt vmcnt(2)')
        if j in (7, 8): fill += prep[j - 7]
        if j == U_TR:
            a('s_waitcnt vmcnt(4)')
            rd += ['ds_read_b64_tr_b16 v[160:161], v249', 'ds_read_b64_tr_b16 v[162:163], v249 offset:512',
                   'ds_read_b64_tr_b16 v[164:165], v252', 'ds_read_b64_tr_b16 v[166:167], v252 offset:512']
        if j == U_TR + 1:
            fill = [f's_mov_b32 s36, {8*16384}', 'buffer_store_dwordx4 v[160:163], v255, s[16:19], 0 offen sc1',
                    'buffer_store_dwordx4 v[164:167], v255, s[16:19], s36 offen sc1'] + fill
        if 'nocomp' in DBG: ms = []; rd = rd[-1:]; fill = []
        if j == F0_SIG:
            a('v_readfirstlane_b32 s20, v253')
            a('s_waitcnt vmcnt(2)')
            signal(a, 60, 2, 3)
        weave(ms, rd, fill)
        if j == U_ISS:
            srd(a, 56, P_U, S * D * 2)
            a('s_mov_b32 m0, s32\ns_nop 0\nbuffer_load_dwordx4 v246, s[56:59], 0 offen nt lds')
            a('s_add_u32 m0, s32, 1024\ns_nop 0\nbuffer_load_dwordx4 v247, s[56:59], 0 offen nt lds')
            params(a)
        if False:
            a('v_readfirstlane_b32 s20, v253')
            a('s_waitcnt vmcnt(0)')
            signal(a, 60, 2, 3)
        a('s_waitcnt lgkmcnt(0)')
    fill = []
    for k in pending: fill += epilogue(k)
    ms, pending = mlist(NST - 1)
    weave(ms, [], fill)
    for k in pending:
        for l in epilogue(k): a(l)
    stamp(a, 2)
    if 'gemmonly' in DBG: a('s_branch P_fin')
    sc_, ve_, lds_ = att_split()
    def nop(): pass
    head = ssm_head(0)
    cut = int(len(head) * KG_CUT)
    scl = [l for g in sc_ for l in g]
    def mix(lst):
        for i, l in enumerate(lst):
            a(l)
            if i >= 2 and i % 2 == 0 and scl: a(scl.pop(0))
    FL = 252
    a('s_cmp_lg_u32 s3, 0\ns_cbranch_scc1 Q_np0')
    att_poll_addr(a, FL)
    a.label('Q_np0')
    a(f's_add_u32 s60, s60, {F1}')
    mix(head[:cut])
    a('s_waitcnt vmcnt(0)')
    signal(a, 60, 2, 3)
    mix(head[cut:])
    for l in scl: a(l)
    def b2():
        a('s_cmp_lg_u32 s3, 0\ns_cbranch_scc1 Q_np2')
        a(f'buffer_load_dwordx4 v[244:247], v{FL}, s[16:19], 0 offen sc1')
        a.label('Q_np2')
    ssm_common(a, 0, nop, nop, b2, nop)
    emit_groups(a, ve_)
    a('s_cmp_lg_u32 s3, 0\ns_cbranch_scc1 Q_w1')
    a('s_waitcnt vmcnt(0)')
    for i in range(4): a(f'v_xor_b32 v{244+i}, s20, v{244+i}')
    a('v_or3_b32 v244, v244, v245, v246\nv_or_b32 v244, v244, v247\nv_cmp_ne_u32 vcc, 0, v244')
    a('s_nop 4\ns_cbranch_vccz Q_w0')
    poll(a, 'PL_f1', FL, 244, x4=True, sleep=1)
    a.label('Q_w0')
    a(f'ds_write_b32 v{CV}, v{C1} offset:12')
    a('s_branch L_pre')
    a.label('Q_w1')
    gwait(a, 12, 1, 2)
    a.label('L_pre')
    stamp(a, 5)
    emit_groups(a, lds_ + att_zero())

EB = 176
EA = EB + 56
ET = 96
def ssm_epi_setup(a):
    a(f"""
    v_and_b32 v{ET}, 1, v1                      ; ch
    v_bfe_u32 v{ET+1}, v1, 1, 2                 ; j
    v_lshrrev_b32 v{ET+2}, 3, v1
    v_mul_u32_u24 v{ET+3}, {POWN}, v{ET+1}
    v_mul_u32_u24 v{ET+4}, {PSRC}, v{ET}
    v_add_u32 v{ET+3}, v{ET+3}, v{ET+4}
    v_lshl_add_u32 v{ET+3}, v{ET+2}, 4, v{ET+3}
    s_lshl_b32 s60, s29, 7
    s_add_u32 s36, s60, {L_PART}
    v_add_u32 v{EA}, s36, v{ET+3}
    v_mul_u32_u24 v{ET+2}, 80, v{ET+2}
    v_lshl_add_u32 v{ET+2}, v{ET+1}, 4, v{ET+2}
    v_mul_u32_u24 v{ET+4}, {UCH}, v{ET}
    v_add_u32 v{ET+2}, v{ET+2}, v{ET+4}
    s_mul_i32 s36, s29, 640
    s_add_u32 s36, s36, {L_U + 32*80}
    v_add_u32 v{EA+1}, s36, v{ET+2}             ; u chunk
    s_lshl_b32 s36, s21, 13
    s_lshl_b32 s60, s29, 10
    s_add_u32 s36, s36, s60
    s_add_u32 s36, s36, {WS_YT}
    v_lshl_add_u32 v{EA+2}, v1, 4, s36
    s_lshl_b32 s60, s39, 16
    s_and_b32 s61, s39, 0xffff0000
    v_mov_b32 v{EA+3}, s60
    v_mov_b32 v{ET+4}, s61
    v_cmp_eq_u32 vcc, 1, v{ET}
    v_cndmask_b32 v{EA+3}, v{EA+3}, v{ET+4}, vcc
    """)

def ssm_epi_reads(a):
    for p in range(2):
        E = EB + 28*p; o = p*4*POWN
        a(f"""
        ds_read_b128 {v(E,4)}, v{EA} offset:{o}
        ds_read_b128 {v(E+4,4)}, v{EA} offset:{o+512}
        ds_read_b128 {v(E+8,4)}, v{EA} offset:{o+2*PSRC}
        ds_read_b128 {v(E+12,4)}, v{EA} offset:{o+2*PSRC+512}
        ds_read_b128 {v(E+16,4)}, v{EA+1} offset:{p*2560}
        """)

def ssm_epi(a):
    a('s_mov_b32 s36, 4096')
    for p in range(2):
        A = EB + 28*p; B = A + 8; U = A + 16; C = A + 20
        for e in range(8): a(f'v_add_f32 v{A+e}, v{A+e}, v{B+e}')
        for e in range(4):
            a(f'v_lshlrev_b32 v{C+2*e}, 16, v{U+e}')
            a(f'v_and_b32 v{C+1+2*e}, 0xffff0000, v{U+e}')
        for e in range(8): a(f'v_mul_f32 v{C+e}, v{EA+3}, v{C+e}')
        for e in range(4):
            a(f'v_cvt_pk_bf16_f32 v{B+e}, v{A+2*e}, v{A+1+2*e}')
            a(f'v_cvt_pk_bf16_f32 v{B+4+e}, v{C+2*e}, v{C+1+2*e}')
        for e in range(4):
            a(f'v_lshlrev_b32 v{A+2*e}, 16, v{B+e}')
            a(f'v_and_b32 v{A+1+2*e}, 0xffff0000, v{B+e}')
            a(f'v_lshlrev_b32 v{C+2*e}, 16, v{B+4+e}')
            a(f'v_and_b32 v{C+1+2*e}, 0xffff0000, v{B+4+e}')
        for e in range(8): a(f'v_add_f32 v{A+e}, v{A+e}, v{C+e}')
        for e in range(4): a(f'v_cvt_pk_bf16_f32 v{B+e}, v{A+2*e}, v{A+1+2*e}')
        a(f'buffer_store_dwordx4 {v(B,4)}, v{EA+2}, s[16:19], {"s36" if p else "0"} offen sc1')

def att_ids(a):
    a("""
    s_lshl_b32 s40, s22, 1
    s_and_b32 s41, s23, 1
    s_add_u32 s40, s40, s41                ; head
    s_lshr_b32 s41, s23, 1                 ; rbq
    s_mul_i32 s42, s40, 7
    s_lshr_b32 s42, s42, 1                 ; chi0
    """)

def att_poll_addr(a, r):
    att_ids(a)
    a(f"""
    s_lshr_b32 s43, s42, 3
    s_add_u32 s44, s42, 3
    s_lshr_b32 s44, s44, 3
    s_lshl_b32 s43, s43, 9
    s_lshl_b32 s44, s44, 9
    v_mov_b32 v{r}, s43
    v_mov_b32 v{r+1}, s44
    v_cmp_lt_u32 vcc, 31, v1
    v_cndmask_b32 v{r}, v{r}, v{r+1}, vcc
    v_and_b32 v{r+1}, 31, v1
    v_lshl_add_u32 v{r}, v{r+1}, 4, v{r}
    v_add_u32 v{r}, {F1}, v{r}
    """)

def att_poll(a, name):
    att_poll_addr(a, 16)
    poll(a, name, 16, 20, x4=True, sleep=8)

OL = 120 * 1024; YL = 152 * 1024; RED = 96 * 1024
NB = 4
QF = 16; OA = 32; SB = 64; PB = 96; KB = 112; VB = KB + 8*NB
def advK(a):
    a(f's_add_u32 s33, s33, {TILEB}')
    a('s_cmp_eq_u32 s33, s55')
    a('s_cselect_b32 s33, s54, s33')
def loadK(a, n):
    a(f'buffer_load_dwordx4 {v(KB+8*n,4)}, v3, s[4:7], s33 offen')
    a(f'buffer_load_dwordx4 {v(KB+8*n+4,4)}, v3, s[4:7], s33 offen offset:1024')
def loadV(a, n):
    a('s_mov_b64 exec, s[46:47]')
    a(f'buffer_load_dwordx4 {v(VB+8*n,4)}, v4, s[56:59], s33 offen')
    a(f'buffer_load_dwordx4 {v(VB+8*n+4,4)}, v7, s[56:59], s33 offen')
    a('s_mov_b64 exec, -1')

def att_pre_groups():
    def G(fn, *args):
        t = Asm(); fn(t, *args); return t.lines
    def singles(txt): return [[l] for l in lines(txt)]
    p1 = [[l] for l in G(att_ids) + G(srd, 4, P_WS, WS_END)]
    p1 += singles(f"""
    s_and_b32 s24, s3, 1                   ; qg
    s_lshr_b32 s27, s3, 1
    s_cmp_lt_u32 s23, 28
    s_cselect_b32 s34, {NA}, 16
    s_sub_u32 s35, 32, s34
    s_min_u32 s54, s27, 2
    s_mul_i32 s54, s54, s34
    s_cmp_eq_u32 s27, 3
    s_cselect_b32 s55, s35, 0
    s_add_u32 s54, s54, s55
    s_cmp_lt_u32 s3, 4
    s_cselect_b32 s34, s34, s35
    s_lshr_b32 s35, s34, 2
    s_lshl_b32 s96, s42, 9
    v_lshl_add_u32 v3, v1, 4, s96          ; Q/K voffset
    s_lshl_b32 s28, s41, 2
    s_lshl_b32 s31, s24, 1
    s_add_u32 s28, s28, s31
    s_mul_i32 s31, s28, {TILEB}
    s_add_u32 s31, s31, {WS_Q}
    s_add_u32 s30, s31, {TILEB}
    s_mul_i32 s54, s54, {TILEB}
    s_add_u32 s54, s54, {WS_K}
    s_mul_i32 s55, s34, {TILEB}
    s_add_u32 s55, s55, s54
    s_mul_i32 s33, s41, s34
    s_lshr_b32 s33, s33, 4
    s_mul_i32 s33, s33, {TILEB}
    s_add_u32 s33, s33, s54
    buffer_load_dwordx4 {v(QF,4)}, v3, s[16:19], s31 offen
    buffer_load_dwordx4 {v(QF+4,4)}, v3, s[16:19], s31 offen offset:1024
    """)
    p1 += [[l] for l in G(loadK, 0)]
    p1 += singles(f"""
    buffer_load_dwordx4 {v(QF+8,4)}, v3, s[16:19], s30 offen
    buffer_load_dwordx4 {v(QF+12,4)}, v3, s[16:19], s30 offen offset:1024
    v_and_b32 v5, 31, v1
    v_lshrrev_b32 v6, 5, v1
    v_mul_u32_u24 v4, 7168, v6
    v_lshl_add_u32 v4, v5, 4, v4
    s_mul_i32 s97, s40, 448
    s_add_u32 s97, s97, {WS_V - WS_K}
    v_add_u32 v4, s97, v4
    v_add_u32 v7, 14336, v4
    s_mov_b32 s46, 0x0fffffff
    s_mov_b32 s47, 0x0fffffff
    """)
    p1 += [[l] for l in G(srd, 56, P_WS, WS_END)]
    p2 = []
    for n in range(NB):
        dst = p1 if n == 0 else p2
        if n == 0:
            dst += [['v_cmp_eq_u32 vcc, 28, v5'], ['v_mov_b32 v12, 0x3f803f80'], ['v_cndmask_b32 v12, 0, v12, vcc'], ['v_mov_b32 v13, v12']]
        dst += [[f'v_mov_b64 {v(VB+8*n+r,2)}, v[12:13]'] for r in range(0, 8, 2)]
        if n < NB - 1:
            dst += [G(loadV, n), G(advK)] + [[l] for l in G(loadK, n + 1)]
    p2 += [[l] for l in G(srd, 8, P_WO, D * D * 2)]
    p2 += singles(f"""
    s_lshr_b32 s52, s40, 2
    s_lshl_b32 s53, s41, 2
    s_add_u32 s52, s52, s53
    s_and_b32 s53, s40, 3                  ; cg4
    v_lshrrev_b32 v8, 4, v1
    v_and_b32 v9, 15, v1
    v_lshlrev_b32 v10, 2, v8
    v_xor_b32 v9, v9, v10
    v_lshlrev_b32 v9, 4, v9
    v_mul_u32_u24 v8, 896, v8
    v_add_u32 v8, v8, v9
    s_lshl_b32 s98, s53, 8
    v_add_u32 v8, s98, v8
    s_lshl_b32 s51, s3, 10
    s_and_b32 s49, s3, 3
    s_lshl_b32 s48, s49, 10
    s_mul_i32 s50, s49, 3584
    s_and_b32 s49, s40, 1
    s_cmp_eq_u32 s49, 0
    s_cselect_b32 s43, -1, 0
    s_mov_b32 s42, 0
    s_cselect_b32 s44, 0, -1
    s_mov_b32 s45, 0
    s_lshl_b32 s32, s21, 4
    s_and_b32 s49, s3, 3
    s_lshl_b32 s49, s49, 2
    s_add_u32 s32, s32, s49
    s_add_u32 s32, s32, {F3}
    s_cmp_lt_u32 s23, 28
    s_cselect_b32 s32, s32, {WS_END}
    s_mov_b32 s37, 0
    """)
    allg = p1 + p2
    isld = lambda g: any(l.startswith('buffer_') for l in g) or g[0].startswith(f's_add_u32 s33, s33, {TILEB}')
    setup = [g for g in allg if not isld(g)]
    loads = [g for g in allg if isld(g)]
    return setup, loads

def att_split():
    su, ld = att_pre_groups()
    sc = [g for g in su if g[0].startswith('s_')]
    ve = [g for g in su if not g[0].startswith('s_')]
    return sc, ve, ld

def emit_groups(a, gs):
    for g in gs:
        for l in g: a(l)

def att_zero():
    return [[f'v_mov_b64 {v(OA+r,2)}, 0'] for r in range(0, 32, 2)] + [[f'v_mov_b64 {v(PB+8+r,2)}, 0'] for r in range(0, 8, 2)] + [[f'v_mov_b64 {v(SB+28+r,2)}, 0'] for r in range(0, 4, 2)]

def ph_att(a):
    a.label('L_att')
    a(f's_cmp_{PRIO_CMP}_u32 s3, 4\ns_cbranch_scc1 A_noprio\ns_setprio 1')
    a.label('A_noprio')
    nout = 4*(NB-1)
    a(f"""
    s_waitcnt vmcnt({nout})
    s_mov_b64 exec, s[42:43]
    v_mov_b32 v{QF+6}, 0
    v_mov_b32 v{QF+7}, 0
    v_mov_b32 v{QF+14}, 0
    v_mov_b32 v{QF+15}, 0
    s_mov_b64 exec, s[44:45]
    v_mov_b32 v{QF+0}, 0
    v_mov_b32 v{QF+1}, 0
    v_mov_b32 v{QF+8}, 0
    v_mov_b32 v{QF+9}, 0
    s_mov_b64 exec, -1
    v_mfma_f32_32x32x16_bf16 {v(SB,16)}, {v(KB,4)}, {v(QF,4)}, 0
    v_mfma_f32_32x32x16_bf16 {v(SB,16)}, {v(KB+4,4)}, {v(QF+4,4)}, {v(SB,16)}
    s_nop 9
    """)
    stamp(a, 6)
    a('.p2align 6')
    a.label('A_loop')
    for u in range(2*NB):
        t = u % 2
        kn = ((u + 1) // 2) % NB
        vn = ((u - 1) // 2) % NB
        Sn = SB + 16*((u+1) % 2); Sc = SB + 16*(u % 2)
        Pc = PB + 8*(u % 2); Pp = PB + 8*((u+1) % 2)
        Qn = QF + 8*(1-t); On = OA + 16*(1-t)
        if u % 2 == 1:
            j = (u - 1) // 2
            loadV(a, (j - 1) % NB); advK(a); loadK(a, j % NB)
            if j == 0: a('s_mov_b32 s58, s6')
            a(f's_waitcnt vmcnt({4*(NB-1)})')
        M = [f'v_mfma_f32_32x32x16_bf16 {v(Sn,16)}, {v(KB+8*kn,4)}, {v(Qn,4)}, 0',
             f'v_mfma_f32_32x32x16_bf16 {v(Sn,16)}, {v(KB+8*kn+4,4)}, {v(Qn+4,4)}, {v(Sn,16)}',
             f'v_mfma_f32_32x32x16_bf16 {v(On,16)}, {v(VB+8*vn,4)}, {v(Pp,4)}, {v(On,16)}',
             f'v_mfma_f32_32x32x16_bf16 {v(On,16)}, {v(VB+8*vn+4,4)}, {v(Pp+4,4)}, {v(On,16)}']
        M = [M[2], M[0], M[1], M[3]]
        for g in range(4):
            a(M[g])
            for e in range(4):
                a(f'v_exp_f32 v{Sc+4*g+e}, v{Sc+4*g+e}')
                if e in (0, 2):
                    h = e // 2
                    if g > 0: a(f'v_cvt_pk_bf16_f32 v{Pc+2*(g-1)+h}, v{Sc+4*(g-1)+2*h}, v{Sc+4*(g-1)+2*h+1}')
                    else:     a(f'v_cvt_pk_bf16_f32 v{Pp+6+h}, v{Sn+12+2*h}, v{Sn+13+2*h}')
    a(f"""
    s_add_u32 s37, s37, 1
    s_cmp_eq_u32 s37, s35
    s_cbranch_scc1 A_exit
    s_add_u32 s49, s37, 1
    s_cmp_eq_u32 s49, s35
    s_cselect_b32 s6, 0, s6
    s_cmp_lt_u32 s3, 4
    s_cbranch_scc1 A_loop
    s_cmp_gt_u32 s37, 2
    s_cbranch_scc1 A_b0
    """)
    for r in range(12):
        a(f"""
        s_mov_b32 m0, s48
        s_add_u32 s48, s48, 4096
        buffer_load_dwordx4 v8, s[8:11], s50 offen lds
        s_add_u32 s50, s50, 14336
        """)
    a.label('A_b0')
    a(f"""
    s_add_u32 s49, s37, {PRIO_LEFT}
    s_cmp_lt_u32 s49, s35
    s_cbranch_scc1 A_b1
    s_setprio 0
    """)
    a.label('A_b1')
    a('s_cmp_lg_u32 s37, 1\ns_cbranch_scc1 A_loop')
    signal(a, 32, 9, 10)
    a('s_branch A_loop')
    a.label('A_exit')
    a('s_setprio 0')
    stamp(a, 7)
    a(f'v_cvt_pk_bf16_f32 v{PB+14}, v{SB+28}, v{SB+29}')
    a(f'v_cvt_pk_bf16_f32 v{PB+15}, v{SB+30}, v{SB+31}')
    a(f'v_mfma_f32_32x32x16_bf16 {v(OA+16,16)}, {v(VB+8*(NB-1),4)}, {v(PB+8,4)}, {v(OA+16,16)}')
    a(f'v_mfma_f32_32x32x16_bf16 {v(OA+16,16)}, {v(VB+8*(NB-1)+4,4)}, {v(PB+12,4)}, {v(OA+16,16)}')
    a(f"""
    s_lshl_b32 s36, s24, 14
    s_add_u32 s36, s36, {RED}
    s_lshr_b32 s38, s27, 1
    s_lshl_b32 s38, s38, 15
    s_and_b32 s39, s27, 1
    s_lshl_b32 s39, s39, 11
    s_add_u32 s38, s38, s39
    s_add_u32 s38, s38, s36
    v_lshlrev_b32 v2, 4, v1
    v_add_u32 v9, s38, v2
    s_lshl_b32 s38, s27, 12
    s_add_u32 s38, s38, s36
    v_add_u32 v10, s38, v2
    s_or_b32 s38, s27, 1
    s_lshl_b32 s38, s38, 12
    s_add_u32 s38, s38, s36
    s_add_u32 s38, s38, {1024 + 512}
    v_lshlrev_b32 v11, 4, v5
    v_add_u32 v11, s38, v11
    """)
    for own in range(4):
        for q in range(2):
            a(f'ds_write_b128 v9, {v(OA + 8*own + 4*q, 4)} offset:{own*4096 + q*1024}')
    a('s_waitcnt lgkmcnt(0)\ns_barrier')
    R = 64
    so = lambda src: (src >> 1) * 32768 + (src & 1) * 2048
    for src in range(4):
        a(f'ds_read_b32 v{12+src}, v11 offset:{so(src)}')
    for src in range(4):
        for q in range(2):
            a(f'ds_read_b128 {v(R + 8*src + 4*q, 4)}, v10 offset:{so(src) + q*1024}')
    a(f"""
    s_and_b32 s36, s27, 1
    s_cmp_eq_u32 s36, 1
    s_cselect_b32 s43, -1, 0
    s_mov_b32 s42, 0
    s_lshr_b32 s38, s27, 1
    s_add_u32 s38, s38, s28
    s_lshl_b32 s38, s38, 15
    s_lshl_b32 s39, s40, 11
    s_add_u32 s38, s38, s39
    s_lshl_b32 s39, s36, 10
    s_add_u32 s38, s38, s39
    s_add_u32 s38, s38, {WS_O}
    s_waitcnt lgkmcnt(8)
    v_add_f32 v12, v12, v13
    v_add_f32 v14, v14, v15
    v_add_f32 v12, v12, v14
    v_rcp_f32 v12, v12
    s_waitcnt lgkmcnt(0)
    """)
    a('v_cndmask_b32 v13, v12, 0, s[42:43]')
    for r in range(8):
        a(f'v_add_f32 v{R+r}, v{R+r}, v{R+8+r}')
        a(f'v_add_f32 v{R+16+r}, v{R+16+r}, v{R+24+r}')
    for r in range(8): a(f'v_add_f32 v{R+r}, v{R+r}, v{R+16+r}')
    for r in range(8): a(f'v_mul_f32 v{R+r}, v{R+r}, v{12 if r < 4 else 13}')
    for r in range(4): a(f'v_cvt_pk_bf16_f32 v{R+8+r}, v{R+2*r}, v{R+2*r+1}')
    a(f'buffer_store_dwordx4 {v(R+8,4)}, v2, s[16:19], s38 offen sc1')
    stamp(a, 8)

def ph_out(a):
    a(f"""
    s_cmp_lg_u32 s3, 4
    s_cbranch_scc1 P_nop3
    s_cmp_ge_u32 s23, 28
    s_cbranch_scc1 P_nop3
    s_lshl_b32 s36, s25, 9
    s_add_u32 s36, s36, {F3}
    v_add_u32 v16, s36, v2
    """)
    poll(a, 'PL_f3', 16, 20, mask=0xffffffff, x4=True)
    a.label('P_nop3')
    a('s_waitcnt vmcnt(0)\ns_barrier')
    a('s_cmp_lg_u32 s3, 0\ns_cbranch_scc1 P_nof2')
    a(f's_lshl_b32 s36, s41, 7\ns_lshl_b32 s37, s40, 2\ns_add_u32 s36, s36, s37\ns_add_u32 s36, s36, {F2}')
    signal(a, 36, 16, 17)
    a.label('P_nof2')
    stamp(a, 9)
    for r in (12, 13, 14):
        a(f's_add_u32 m0, s51, {r*8192}')
        a(f's_mul_i32 s50, s3, 3584')
        a(f's_add_u32 s50, s50, {r*28672}')
        if r == 14: a(f's_min_u32 s50, s50, {D*D*2}')
        a(f'buffer_load_dwordx4 v8, s[8:11], s50 offen lds')
    a(f"""
    s_cmp_ge_u32 s23, 28
    s_cbranch_scc1 P_noy
    v_lshrrev_b32 v16, 1, v1
    v_lshlrev_b32 v16, 13, v16
    v_and_b32 v17, 1, v1
    v_lshl_add_u32 v16, v17, 4, v16
    s_lshl_b32 s36, s25, 18
    s_lshl_b32 s37, s26, 8
    s_add_u32 s36, s36, s37
    s_lshl_b32 s37, s3, 5
    s_add_u32 s36, s36, s37
    s_add_u32 s36, s36, {WS_YT}
    s_add_u32 m0, s51, {YL}
    s_nop 0
    buffer_load_dwordx4 v16, s[16:19], s36 offen sc1 lds
    ; tr supplier address: (8*oct + r)*16 + rq*8 (+64 for second half), Q = 4*(l/16)+l%4, oct = Q%8, rq = Q/8
    v_lshrrev_b32 v17, 4, v1
    v_and_b32 v18, 3, v1
    v_lshl_add_u32 v17, v17, 2, v18
    v_and_b32 v18, 7, v17
    v_lshrrev_b32 v17, 3, v17
    v_bfe_u32 v19, v1, 2, 2
    v_lshl_add_u32 v18, v18, 3, v19
    v_lshlrev_b32 v18, 4, v18
    v_lshl_add_u32 v18, v17, 3, v18
    s_add_u32 s36, s51, {YL}
    v_add_u32 v18, s36, v18
    ; store: row = 64rb + 8w + 4*(l/32) + l%4 ; col byte = 896 + 128c + 16*((l/4)%8)
    v_and_b32 v19, 3, v1
    v_lshl_add_u32 v19, v6, 2, v19
    s_lshl_b32 s36, s26, 6
    s_lshl_b32 s37, s3, 3
    s_add_u32 s36, s36, s37
    v_add_u32 v19, s36, v19
    v_mul_u32_u24 v19, 1792, v19
    v_bfe_u32 v17, v1, 2, 3
    v_lshl_add_u32 v19, v17, 4, v19
    s_lshl_b32 s36, s25, 7
    s_add_u32 s36, s36, 896
    s_waitcnt vmcnt(0)
    ds_read_b64_tr_b16 v[20:21], v18
    ds_read_b64_tr_b16 v[22:23], v18 offset:64
    s_waitcnt lgkmcnt(0)
    buffer_store_dwordx4 v[20:23], v19, s[12:15], s36 offen
    """)
    a.label('P_noy')
    a(f"""
    s_and_b32 s29, s3, 3                   ; ct
    v_bfe_u32 v7, v1, 2, 2
    v_xor_b32 v12, s29, v7
    v_lshlrev_b32 v12, 6, v12
    v_bfe_u32 v9, v1, 4, 1
    v_lshl_add_u32 v12, v9, 5, v12
    v_and_b32 v9, 3, v1
    v_lshl_add_u32 v12, v9, 3, v12
    v_lshl_add_u32 v9, v6, 2, v7
    v_lshl_add_u32 v12, v9, 8, v12
    v_add_u32 v13, {224*256}, v12          ; heads 8..15
    v_add_u32 v10, {OL}, v2
    s_lshl_b32 s36, s52, 15
    s_add_u32 s36, s36, s51
    s_add_u32 s36, s36, {WS_O}
    v_add_u32 v14, s36, v2
    v_and_b32 v11, 31, v1
    s_lshl_b32 s36, s52, 5
    v_add_u32 v11, s36, v11
    v_mul_u32_u24 v11, 1792, v11
    v_lshl_add_u32 v11, v6, 4, v11
    s_lshl_b32 s30, s53, 2
    s_add_u32 s30, s30, s29
    s_lshl_b32 s32, s30, 6
    s_cmp_lg_u32 s3, 0
    s_cbranch_scc1 P_nop2
    s_lshl_b32 s36, s41, 7
    s_add_u32 s36, s36, {F2}
    v_lshl_add_u32 v16, v1, 2, s36
    """)
    poll(a, 'PL_f2', 16, 17, mask=0xffff, sleep=2)
    a.label('P_nop2')
    a('s_barrier')
    stamp(a, 10)
    for st in range(4):
        a(f's_add_u32 m0, s51, {OL + st*8192}')
        a(f's_mov_b32 s50, {st*8192}')
        a(f'buffer_load_dwordx4 v14, s[16:19], s50 offen sc1 lds')
    a(f"""
    s_cmp_lt_u32 s30, 14
    s_cselect_b32 s31, 1, 0
    s_cmp_lt_u32 s3, 4
    s_cselect_b32 s31, s31, 0
    s_cmp_eq_u32 s31, 0
    s_cbranch_scc1 P_idle
    """)
    ACC = 16; WF = 32; OF = 160
    def wread(hd):
        for f in range(2):
            for e in range(2):
                row = 28*hd + 16*f + 8*e - (224 if hd >= 8 else 0)
                a(f'ds_read_b64_tr_b16 {v(WF + 8*hd + 4*f + 2*e, 2)}, v{13 if hd >= 8 else 12} offset:{row*256}')
    for hd in range(13): wread(hd)
    a('s_waitcnt vmcnt(0) lgkmcnt(0)\ns_barrier')
    stamp(a, 11)
    for hd in range(13, 16): wread(hd)
    def oread(st):
        for n in range(8):
            a(f'ds_read_b128 {v(OF + 32*(st%2) + 4*n, 4)}, v10 offset:{st*8192 + n*1024}')
    def mf(st):
        for n in range(8):
            c = '0' if (st == 0 and n == 0) else v(ACC, 16)
            a(f'v_mfma_f32_32x32x16_bf16 {v(ACC,16)}, {v(WF + 32*st + 4*n,4)}, {v(OF + 32*(st%2) + 4*n,4)}, {c}')
    oread(0)
    for st in range(4):
        a('s_waitcnt lgkmcnt(0)')
        if st < 3: oread(st + 1)
        mf(st)
    T = 40
    for r in range(8): a(f'v_cvt_pk_bf16_f32 v{T+r}, v{ACC+2*r}, v{ACC+2*r+1}')
    for q in range(2):
        a(f'v_permlane32_swap_b32 v{T+4*q}, v{T+4*q+2}')
        a(f'v_permlane32_swap_b32 v{T+4*q+1}, v{T+4*q+3}')
    a(f'buffer_store_dwordx4 {v(T,4)}, v11, s[12:15], s32 offen')
    a(f'buffer_store_dwordx4 {v(T+4,4)}, v11, s[12:15], s32 offen offset:32')
    a('s_branch P_fin')
    a.label('P_idle')
    a('s_waitcnt vmcnt(0)\ns_barrier')
    a('s_cmp_lg_u32 s2, 240\ns_cbranch_scc1 P_fin\ns_cmp_lg_u32 s3, 4\ns_cbranch_scc1 P_fin')
    a(f'v_lshlrev_b32 v16, 2, v1\nv_add_u32 v16, {F2 + 14*128}, v16')
    poll(a, 'PL_ep', 16, 17, mask=0xffff, sleep=2)
    a(f's_mov_b32 s36, {EPOCH}')
    signal(a, 36, 16, 17)
    a.label('P_fin')

def kernel(a):
    if STAMPS:
        a('v_mov_b32 v254, 0')
        stamp(a, 0)
    prologue(a)
    ph_front(a)
    ph_att(a)
    ph_out(a)
    if STAMPS:
        a('s_waitcnt vmcnt(0)')
        stamp(a, 12)
        a(f"""
        s_mov_b32 s18, {WS_STAMP + (1<<20)}
        s_lshl_b32 s36, s2, 3
        s_add_u32 s36, s36, s3
        s_lshl_b32 s36, s36, 6
        s_add_u32 s36, s36, {WS_STAMP}
        v_lshl_add_u32 v2, v1, 2, s36
        s_mov_b64 exec, 0xffff
        buffer_store_dword v254, v2, s[16:19], 0 offen
        s_cmp_lg_u32 s2, 100
        s_cbranch_scc1 L_end
        s_cmp_lg_u32 s3, 0
        s_cbranch_scc1 L_end
        v_readfirstlane_b32 s36, v254
        v_lshlrev_b32 v2, 2, v1
        v_subrev_u32 v254, s36, v254
        s_mov_b64 exec, 0x7ffe
        """)
        srd(a, 56, P_DBG, 256)
        a('buffer_store_dword v254, v2, s[56:59], 0 offen')
    a.label('L_end')
    a('s_endpgm')

def build(path):
    hdr = open(f'cdna_kernels/{NAME}.s.ref').read().split('\n')
    out = [l for l in hdr if l.startswith(';') and '@launch' not in l][:16]
    out.append(f'; @launch grid=(256,1,1) block=(512,1,1) lds={LDS_TOTAL}')
    out.append('.amdgcn_target "amdgcn-amd-amdhsa--gfx950"')
    out.append('.text')
    label = NAME + '_kernel'
    a = Asm(); kernel(a)
    txt = '\n'.join(out) + f'\n.globl {label}\n.p2align 8\n.type {label},@function\n{label}:\n' + a.finalize()
    txt += f'''.section .rodata,"a"
.p2align 6
.amdhsa_kernel {label}
  .amdhsa_next_free_vgpr 256
  .amdhsa_next_free_sgpr 102
  .amdhsa_accum_offset 256
  .amdhsa_group_segment_fixed_size 0
  .amdhsa_kernarg_size 104
  .amdhsa_user_sgpr_count 2
  .amdhsa_user_sgpr_kernarg_segment_ptr 1
  .amdhsa_system_sgpr_workgroup_id_x 1
.end_amdhsa_kernel
'''
    open(path, 'w').write(txt)

if __name__ == '__main__':
    if '--stamps' in sys.argv: STAMPS = True; sys.argv.remove('--stamps')
    build(sys.argv[1] if len(sys.argv) > 1 else f'cdna_kernels/{NAME}.s')
```

```python
import sys, math, struct, os, re
DBG = os.environ.get('DBG', '')
sys.path.insert(0, 'work')
from asmgen import *

STAMPS = False
NAME = 'concat_heads__mha_block__ssm_conv_s4d__prompt'
S = 2048; D = 448; H = 16; DH = 28
TILEB = 56 * 512
F0 = 0; F1 = 4096; F2 = 8192; EPOCH = 10240; F3 = 12288
WS_Q = 32768
WS_K = WS_Q + 64 * TILEB
WS_V = WS_K + 64 * TILEB
WS_O = WS_V + 64 * TILEB
WS_UT = WS_O + 64 * 32768
WS_YT = WS_UT + 112 * 16384
WS_END = WS_YT + 224 * 8192
WS_STAMP = 16 << 20
LDS_TOTAL = 163840
POLL_LIMIT = 20000
PRIO_IT = 3
SPREAD = int(os.environ.get('SPREAD', 1))
CODE_KB = [1]
CODE_PF = int(os.environ.get('CODE_PF', 1))
NA = int(os.environ.get('NA', 20))
PRIO_LEFT = int(os.environ.get('PRIO_LEFT', 1))
CONV_PRIO = int(os.environ.get('CONV_PRIO', 1))
PRIO_CMP = 'lt'
SCHED_C = [3, 3, 3, 1, 1]
U_ISS = 1; U_TR = 5; F0_SIG = 11
F0_TRY = (7, 10)
F0_LAG = 2
PRE_ST = int(os.environ.get('PRE_ST', 3))
CONV_T0 = 18
XMOD = os.environ.get('XMOD', '')
F1_SLEEP = 8
KG_CUT = float(os.environ.get('KG_CUT', 0.6))
LD_PER = int(os.environ.get('LD_PER', 50))

def f32bits(x): return struct.unpack('<I', struct.pack('<f', x))[0]
QSCALE = math.log2(math.e) / math.sqrt(DH)
LOG2E = math.log2(math.e)
P_X, P_W, P_WO, P_U, P_LA, P_AI, P_CR, P_CI, P_DT, P_DS, P_OUT, P_DBG, P_WS = [64 + 2*i for i in range(13)]

def stamp(a, n):
    if STAMPS:
        a('s_memrealtime s[90:91]')
        a('s_waitcnt lgkmcnt(0)')
        a(f'v_writelane_b32 v254, s90, {n}')

def srd(a, base_s, ptr_s, nbytes):
    a(f's_mov_b32 s{base_s}, s{ptr_s}')
    a(f's_and_b32 s{base_s+1}, s{ptr_s+1}, 0xffff')
    a(f's_mov_b32 s{base_s+2}, {nbytes}')
    a(f's_mov_b32 s{base_s+3}, 0x20000')

def poll(a, name, voff, tmp, mask=-1, x4=False, sleep=4):
    if mask != -1:
        a(f's_mov_b32 exec_lo, {mask & 0xffffffff}')
        a(f's_mov_b32 exec_hi, {mask >> 32}')
    a('s_mov_b32 s62, 0')
    a.label(name)
    if x4:
        a(f'buffer_load_dwordx4 {v(tmp,4)}, v{voff}, s[16:19], 0 offen sc1')
        a('s_waitcnt vmcnt(0)')
        for i in range(4): a(f'v_xor_b32 v{tmp+i}, s20, v{tmp+i}')
        a(f'v_or3_b32 v{tmp}, v{tmp}, v{tmp+1}, v{tmp+2}')
        a(f'v_or_b32 v{tmp}, v{tmp}, v{tmp+3}')
        a(f'v_cmp_ne_u32 vcc, 0, v{tmp}')
    else:
        a(f'buffer_load_dword v{tmp}, v{voff}, s[16:19], 0 offen sc1')
        a('s_waitcnt vmcnt(0)')
        a(f'v_cmp_ne_u32 vcc, s20, v{tmp}')
    a('s_nop 4')
    a(f's_cbranch_vccz {name}_ok')
    a(f's_sleep {sleep}')
    a('s_add_u32 s62, s62, 1')
    a(f's_cmp_lt_u32 s62, {POLL_LIMIT}')
    a(f's_cbranch_scc1 {name}')
    a.label(name + '_ok')
    a('s_mov_b64 exec, -1')

def signal(a, soff, vt0, vt1):
    a(f'v_mov_b32 v{vt0}, s{soff}')
    a(f'v_mov_b32 v{vt1}, s20')
    a('s_mov_b64 exec, 1')
    a(f'buffer_store_dword v{vt1}, v{vt0}, s[16:19], 0 offen sc1')
    a('s_mov_b64 exec, -1')


CV, C1 = 250, 251
def garrive(a, off):
    a('s_mov_b64 exec, 1')
    a(f'ds_add_u32 v{CV}, v{C1} offset:{off}')
    a('s_mov_b64 exec, -1')
_gw = [0]
def gwait(a, off, target, tmp):
    _gw[0] += 1; name = f'GW{_gw[0]}'
    a.label(name)
    a(f'ds_read_b32 v{tmp}, v{CV} offset:{off}')
    a('s_waitcnt lgkmcnt(0)')
    a(f'v_readfirstlane_b32 s62, v{tmp}')
    a(f's_cmp_ge_u32 s62, {target}')
    a(f's_cbranch_scc1 {name}_ok')
    a('s_sleep 1')
    a('s_add_u32 s95, s95, 1')
    a('s_cmp_lt_u32 s95, 0x200000')
    a(f's_cbranch_scc1 {name}')
    a.label(name + '_ok')

def prologue(a):
    a(f"""
    s_cmp_ge_u32 s2, 256
    s_cbranch_scc1 L_end
    s_load_dwordx16 s[64:79], s[0:1], 0
    s_load_dwordx8 s[80:87], s[0:1], 64
    s_load_dwordx2 s[88:89], s[0:1], 96
    v_and_b32 v1, 63, v0
    v_lshrrev_b32 v2, 6, v0
    v_readfirstlane_b32 s3, v2
    s_and_b32 s22, s2, 7
    s_lshr_b32 s23, s2, 3
    """)
    if CODE_PF:
        a(f"""
        s_getpc_b64 s[96:97]
        s_and_b32 s96, s96, 0xffffff00
        s_and_b32 s98, s23, 3
        s_lshl_b32 s98, s98, 3
        s_add_u32 s98, s98, s3
        s_min_u32 s98, s98, {CODE_KB[0]}
        s_lshl_b32 s98, s98, 10
        v_lshl_add_u32 v2, v1, 4, s98
        global_load_dwordx4 v[192:195], v2, s[96:97]
        """)
    a(f"""
    s_and_b32 s27, s22, 1                  ; odd
    s_lshr_b32 s24, s23, 3                 ; cl' (0..3)
    s_lshl_b32 s25, s27, 2
    s_add_u32 s25, s25, s24
    s_and_b32 s26, s23, 7                  ; rbl
    s_lshl_b32 s28, s26, 1
    s_add_u32 s28, s28, s27
    s_cmp_eq_u32 s24, 3
    s_cselect_b32 s25, 3, s25
    s_cselect_b32 s26, s28, s26
    s_lshl_b32 s24, s24, 1
    s_add_u32 s24, s24, s26
    s_lshr_b32 s28, s22, 1
    s_lshl_b32 s28, s28, 3
    s_add_u32 s26, s26, s28                ; rb
    s_mul_i32 s21, s22, 28
    s_add_u32 s21, s21, s23
    s_cmp_lt_u32 s23, 28
    s_cbranch_scc1 L_full
    s_waitcnt lgkmcnt(0)
    """)
    srd(a, 4, P_W, D * 3 * D * 2)
    a(f"""
    s_sub_u32 s36, s23, 28
    s_lshl_b32 s36, s36, 3
    s_add_u32 s36, s36, s3
    s_mul_i32 s36, s36, {42*896}
    s_add_u32 s36, s36, 384
    v_lshrrev_b32 v2, 3, v1
    v_mul_u32_u24 v2, 896, v2
    v_and_b32 v3, 7, v1
    v_lshl_add_u32 v2, v3, 4, v2
    v_add_u32 v2, s36, v2
    """)
    for i in range(6):
        a(f's_mov_b32 s36, {min(8*i, 34)*896}')
        a(f'buffer_load_dwordx4 {v(64+4*i,4)}, v2, s[4:7], s36 offen')
    srd(a, 16, P_WS, WS_END)
    srd(a, 12, P_OUT, S * 2 * D * 2)
    a(f"""
    s_mov_b32 s36, {EPOCH}
    buffer_load_dword v253, off, s[16:19], s36 sc1
    s_waitcnt vmcnt(0)
    v_readfirstlane_b32 s20, v253
    s_add_u32 s20, s20, 1
    {'s_endpgm' if 'gemmonly' in DBG else ''}
    s_sleep 60
    s_sub_u32 s36, s23, 28
    s_lshl_b32 s36, s36, 3
    s_add_u32 s36, s36, s3
    s_mul_i32 s36, s36, 12544
    v_lshl_add_u32 v2, v1, 4, s36
    """)
    srd(a, 8, P_WO, D * D * 2)
    for i in range(13):
        a(f's_mov_b32 s36, {1024*i}')
        a(f'buffer_load_dwordx4 {v(64+4*i,4)}, v2, s[8:11], s36 offen')
    a("""
    s_waitcnt vmcnt(0)
    """)
    att_poll_addr(a, 176)
    a.label('L_lite0')
    su, _ = att_pre_groups()
    emit_groups(a, su)
    a('s_cmp_lg_u32 s3, 0\ns_cbranch_scc1 L_lite1')
    poll(a, 'PL_f1b', 176, 180, x4=True, sleep=8)
    a.label('L_lite1')
    a('s_barrier')
    a('s_branch L_pre')
    a.label('L_full')

RING0 = 65536; SLOT = 16384; NS = 4; DEPTH = 3
def slot_of(j): return (j + 2) % NS
XYP = 1056; XYCH = 53 * XYP
GP = 8384; GCH = 260 * 16
L_UT = 0
L_T2 = 114688; TP = 328; T2CH = 8 * TP * 2
L_U = 131072; UCH = 96 * 80
L_TAB = 147456; L_EP = L_TAB - 16
L_PART = 49152; PSRC = 1024; POWN = 4096
L_CTL = L_PART + 32768
assert 4*GP <= L_PART and L_T2 + 2*T2CH <= L_U and L_U + 2*UCH <= L_EP and L_TAB + 4*4096 <= LDS_TOTAL

def cmul(o, d, x, e, t):
    o.append(f'v_pk_mul_f32 {v(t,2)}, {v(x,2)}, {v(e,2)} op_sel:[0,0] op_sel_hi:[1,0]')
    o.append(f'v_pk_fma_f32 {v(d,2)}, {v(x,2)}, {v(e,2)}, {v(t,2)} op_sel:[1,1,0] op_sel_hi:[0,1,1] neg_lo:[1,0,0]')

def lines(txt): return [l.strip() for l in txt.split('\n') if l.strip()]

_KM = [{}, {}]
def _mk():
    pairs_pre = [20, 22, 24, 26, 28, 30, 32, 34, 36, 38, 40, 42, 48, 50, 52, 54]
    for i, r in enumerate(pairs_pre):
        b1 = 64 + 2*i; b0 = 64 + 2*i if i < 8 else 208 + 2*(i-8)
        _KM[1][r] = b1; _KM[1][r+1] = b1 + 1; _KM[0][r] = b0; _KM[0][r+1] = b0 + 1
    for i, r in enumerate([2, 3, 4, 5, 6, 7, 8, 9]): _KM[1][r] = 176 + i
    _KM[0][8] = 244; _KM[0][9] = 245
    for i, r in enumerate([68, 69, 70, 71]): _KM[1][r] = 184 + i; _KM[0][r] = 184 + i
_mk()
def kmap(l, ch):
    M = _KM[ch]
    def one(m): return f'v{M.get(int(m.group(1)), int(m.group(1)))}'
    def rng(m):
        lo = int(m.group(1)); hi = int(m.group(2)); n = M.get(lo, lo); return f'v[{n}:{n+hi-lo}]'
    l = re.sub(r'v\[(\d+):(\d+)\]', rng, l)
    return re.sub(r'\bv(\d+)\b', one, l)

def kgen(ch):
    P = 240
    pre = lines(f"""
    {'s_lshl_b32 s58, s38, 16' if ch == 0 else 's_and_b32 s58, s38, 0xffff0000'}
    v_mov_b32 v4, s58
    v_mul_f32 v4, {f32bits(LOG2E)}, v4
    v_exp_f32 v4, v4
    v_lshlrev_b32 v2, 16, v{P}
    v_lshlrev_b32 v3, 16, v{P+1}
    v_lshlrev_b32 v20, 16, v{P+2}
    v_lshlrev_b32 v21, 16, v{P+3}
    v_cvt_pk_bf16_f32 v4, v4, v4
    v_mul_f32 v2, {f32bits(LOG2E)}, v2
    v_exp_f32 v2, v2
    v_and_b32 v4, 0xffff0000, v4
    v_mul_f32 v3, v3, v4
    v_cvt_pk_bf16_f32 v2, v2, v2
    v_and_b32 v2, 0xffff0000, v2
    v_mul_f32 v2, v2, v4
    v_mul_f32 v2, {f32bits(-LOG2E)}, v2
    v_mul_f32 v3, {f32bits(1/(2*math.pi))}, v3
    v_add_f32 v4, v4, v4
    v_mul_f32 v20, v20, v4
    v_mul_f32 v21, v21, v4
    """)
    E1, E8, E256, E2, E4, E16, E32 = 22, 24, 26, 28, 30, 32, 34
    for (E, p) in ((E1, 1.0), (E8, 8.0), (E256, 256.0)):
        pre += lines(f"""
        v_mul_f32 v6, {f32bits(p)}, v2
        v_mul_f32 v7, {f32bits(p)}, v3
        v_exp_f32 v6, v6
        v_fract_f32 v7, v7
        v_cos_f32 v8, v7
        v_sin_f32 v9, v7
        v_mul_f32 v{E}, v6, v8
        v_mul_f32 v{E+1}, v6, v9
        """)
    cmul(pre, E2, E1, E1, 6); cmul(pre, E16, E8, E8, 8)
    cmul(pre, E4, E2, E2, 6); cmul(pre, E32, E16, E16, 8)
    Y = [48, 50, 52, 54]
    def put(o, row, x, r, neg=False):
        o.append(f'v_cvt_pk_bf16_f32 v{r}, v{x}, {"-" if neg else ""}v{x+1}')
        o.append(f'ds_write_addtid_b32 v{r} offset:{row*XYP}')
    chains = []
    for c in range(4):
        o = []
        cur = {0: None, 1: E8, 2: E16, 3: Y[3]}[c]
        if c == 3: cmul(o, Y[3], E16, E8, 36 + 2*c)
        for step in range(8):
            if cur is None:
                o.append(f'v_mov_b32 v{44+c}, 0x3f80')
                o.append(f'ds_write_addtid_b32 v{44+c} offset:{21*XYP}')
                cur = E32; continue
            put(o, 21 + 4*step + c, cur, 44 + c)
            if step < 7: cmul(o, Y[c], cur, E32, 36 + 2*c); cur = Y[c]
        chains.append(o)
    XC, GC, SD, SD2 = 56, 58, 60, 62
    o = []
    put(o, 0, 20, 68, True)
    for step in range(7):
        cmul(o, XC, 20 if step == 0 else XC, E1, 6); put(o, step + 1, XC, 68, True)
    chains.append(o)
    grow = {1: 8, 2: 12, 3: 14, 4: 16, 5: 17, 6: 18, 7: 19, 8: 20}
    G = [58, 10, 12, 58, 58, 58, 58, 58]
    G = [10, 12, 18, 58, 58, 58, 58, 58]
    o = []
    for step in range(8):
        cmul(o, G[step], 20 if step == 0 else G[step-1], E256, 8); put(o, grow[step+1], G[step], 69, True)
    chains.append(o)
    o = [None]*12
    cmul(o, SD, G[0], E2, 70); put(o, 9, SD, 5, True)
    cmul(o, SD2, G[0], E4, 70); put(o, 10, SD2, 5, True)
    cmul(o, SD, SD2, E2, 70); put(o, 11, SD, 5, True)
    cmul(o, SD2, G[1], E4, 70); put(o, 13, SD2, 5, True)
    cmul(o, SD, G[2], E4, 70); put(o, 15, SD, 5, True)
    chains.append(o)
    body = []
    for k in range(max(len(c) for c in chains)):
        for c in chains:
            if k < len(c) and c[k] is not None: body.append(c[k])
    return [kmap(l, ch) for l in pre], [kmap(l, ch) for l in body]

def kmfma(ch):
    FA = 80; FB = 144; KA = 208
    o = []
    for st in range(16):
        o.append(f'ds_read_b128 {v(FA+4*st,4)}, v20 offset:{st*64 + (1-ch)*XYCH}')
        o.append(f'ds_read_b128 {v(FB+4*st,4)}, v21 offset:{st*64 + (1-ch)*XYCH}')
        if st >= 4:
            k = st - 4
            o.append(f's_waitcnt lgkmcnt(8)')
            o.append(f'v_mfma_f32_16x16x32_bf16 {v(KA,4)}, {v(FA+4*k,4)}, {v(FB+4*k,4)}, {"0" if k == 0 else v(KA,4)}')
    for k in range(12, 16):
        o.append(f's_waitcnt lgkmcnt({2*(15-k)})')
        o.append(f'v_mfma_f32_16x16x32_bf16 {v(KA,4)}, {v(FA+4*k,4)}, {v(FB+4*k,4)}, {v(KA,4)}')
    fin = lines(f"""
    v_cvt_pk_bf16_f32 v{KA+4}, v{KA}, v{KA+1}
    v_cvt_pk_bf16_f32 v{KA+5}, v{KA+2}, v{KA+3}
    ds_write_b16 v22, v{KA+4} offset:{ch*T2CH}
    ds_write_b16_d16_hi v23, v{KA+4} offset:{ch*T2CH}
    ds_write_b16 v24, v{KA+5} offset:{ch*T2CH}
    ds_write_b16_d16_hi v25, v{KA+5} offset:{ch*T2CH}
    """)
    return o, fin

def gbuild(ch):
    g = 64; d = 80
    p0 = [f'ds_read_u16 v{g+i}, v{224+i} offset:{ch*T2CH}' for i in range(11)]
    p1 = []
    for t in range(4):
        p1 += [f'v_lshl_or_b32 v{d+4*t+i}, v{g+t+2*i+1}, 16, v{g+t+2*i}' for i in range(4)]
        p1 += [f'ds_write_b128 v249, {v(d+4*t,4)} offset:{t*GP + ch*GCH}']
    return p0, p1, []

K_, V_, Q_ = 1, 2, 0
TA, TB, TC = Q_, K_, V_
stages = [[('x',0),(TA,0)], [(TB,0),(TC,0)], [('x',1),('x',2)], [(TA,1),(TA,2)]]
for _i in range(3, 7): stages.append([('x', _i), (TA, _i)])
_rest = [(TB, i) for i in range(1, 7)] + [(TC, i) for i in range(1, 7)]
for _i in range(6): stages.append(_rest[2*_i:2*_i+2])
NST = len(stages)

def ph_front(a):
    a(f"""
    s_mov_b32 s95, 0
    s_lshl_b32 s37, s21, 10
    v_lshl_add_u32 v248, v0, 1, s37
    s_lshl_b32 s36, s21, 2
    v_lshrrev_b32 v3, 3, v1
    v_and_b32 v4, 7, v1
    s_and_b32 s29, s3, 3                   ; lw
    s_bfe_u32 s63, s3, 0x10001
    s_and_b32 s61, s3, 1
    s_mul_i32 s99, s63, {16*XYP}
    s_mul_i32 s100, s61, {16*XYP}
    s_add_u32 s100, s100, {21*XYP}
    s_cmp_lt_u32 s3, 4
    s_cbranch_scc1 Q_comp
    """)
    loader_waves(a)
    a.label('Q_comp')
    comp_waves(a)

def params(a, vo=248):
    for i in range(4):
        srd(a, 56, P_LA + 2*i, D * 256 * 2)
        a(f'buffer_load_ushort v{240+i}, v{vo}, s[56:59], 0 offen nt')
    a(f"""
    s_lshl_b32 s36, s21, 2
    s_add_u32 s{P_DT}, s{P_DT}, s36
    s_addc_u32 s{P_DT+1}, s{P_DT+1}, 0
    s_add_u32 s{P_DS}, s{P_DS}, s36
    s_addc_u32 s{P_DS+1}, s{P_DS+1}, 0
    s_load_dword s38, s[{P_DT}:{P_DT+1}], 0
    s_load_dword s39, s[{P_DS}:{P_DS+1}], 0
    """)

def ssm_head(ch):
    pre, body = kgen(ch)
    h = lines(f"""
    s_lshl_b32 s36, s29, 8
    s_add_u32 m0, s36, {(1-ch)*XYCH}
    v_and_b32 v14, 255, v0
    v_lshlrev_b32 v249, 4, v14
    v_add_u32 v15, {L_TAB}, v249
    v_and_b32 v20, 15, v1
    v_lshrrev_b32 v21, 4, v1
    v_mul_u32_u24 v20, {XYP}, v20
    v_lshl_add_u32 v20, v21, 4, v20
    v_add_u32 v21, s100, v20
    v_add_u32 v20, s99, v20
    v_mov_b32 v{CV}, {L_CTL}
    v_mov_b32 v{C1}, 1
    """)
    tab = [f'ds_read_b128 v[22:25], v15 offset:{3*4096}']
    tab += [f'ds_read_b128 {v(224+4*q,4)}, v15 offset:{q*4096}' for q in range(3)]
    return h + body + tab

def ssm_common(a, ch, before_b1, before_b2, after_b2, before_bc):
    m, fin = kmfma(ch); g = gbuild(ch)
    before_b1()
    a('s_waitcnt lgkmcnt(0)\ns_barrier')
    stamp(a, 3)
    for l in m: a(l)
    a(f"""
    v_mov_b32 v32, 0
    v_mov_b32 v33, 0
    v_mov_b32 v34, 0
    v_mov_b32 v35, 0
    v_and_b32 v9, 7, v1
    v_mul_u32_u24 v9, {2*TP}, v9
    v_add_u32 v9, {L_T2 + 2*(TP-1) + ch*T2CH}, v9
    ds_write_b16 v9, v32
    """)
    for l in fin: a(l)
    before_b2()
    a('s_waitcnt lgkmcnt(0)\ns_barrier')
    stamp(a, 14)
    for l in g[0]: a(l)
    after_b2()
    a('s_waitcnt lgkmcnt(0)')
    for l in g[1] + g[2]: a(l)
    before_bc()
    a('s_waitcnt lgkmcnt(0)\ns_barrier')
    stamp(a, 4)

UV = [220, 221, 222, 252, 255]
def loader_waves(a):
    a(f"""
    s_sub_u32 s28, s24, 7
    s_cmp_ge_u32 s24, 7
    s_cselect_b32 s27, s28, s24            ; rho
    s_lshl_b32 s30, s29, 4
    v_add_u32 v5, s30, v3
    v_lshrrev_b32 v6, 1, v5
    v_and_b32 v6, 7, v6
    v_xor_b32 v6, v6, v4
    v_lshlrev_b32 v6, 4, v6
    s_lshl_b32 s30, s26, 6
    v_add_u32 v7, s30, v5
    v_mul_u32_u24 v7, 896, v7
    v_add_u32 v244, v7, v6
    v_xor_b32 v6, 64, v6
    v_add_u32 v245, v7, v6
    v_add_u32 v245, 7168, v245
    v_lshrrev_b32 v6, 1, v5
    v_and_b32 v6, 1, v6
    v_lshlrev_b32 v6, 2, v6
    v_xor_b32 v6, v6, v4
    v_lshlrev_b32 v6, 4, v6
    v_mul_u32_u24 v7, 2688, v5
    v_add_u32 v246, v7, v6
    s_lshl_b32 s30, s25, 7
    v_add_u32 v246, s30, v246
    v_add_u32 v247, 21504, v246
    s_lshl_b32 s32, s29, 11
    s_lshl_b32 s40, s27, 7
    s_mul_i32 s48, s27, {64*2688}
    s_waitcnt lgkmcnt(0)
    """)
    srd(a, 8, P_X, S * D * 2)
    srd(a, 4, P_W, D * 3 * D * 2)
    def issue(j):
        for half, (kind, i) in enumerate(stages[j]):
            base = RING0 + slot_of(j) * SLOT + half * 8192
            for e in range(2):
                a(f's_add_u32 m0, s32, {base + e*1024}')
                if kind == 'x':
                    a(f'buffer_load_dwordx4 v{244+e}, s[8:11], s{40+i} offen {XMOD} lds')
                else:
                    so = f's{48+i}'
                    if kind:
                        so = 's33'
                        if e == 0: a(f's_add_u32 s33, s{48+i}, {kind*896}')
                    a(f'buffer_load_dwordx4 v{246+e}, s[4:7], {so} offen lds')
    vm = []
    def waitfor(tag):
        last = max(i for i, t in enumerate(vm) if t == tag)
        a(f's_waitcnt vmcnt({len(vm) - 1 - last})')
    for j in range(2): issue(j); vm += [j]*4
    for i in range(1, 7):
        a(f's_add_u32 s27, s27, 1\ns_cmp_eq_u32 s27, 7\ns_cselect_b32 s27, 0, s27\ns_lshl_b32 s{40+i}, s27, 7\ns_mul_i32 s{48+i}, s27, {64*2688}')
    srd(a, 16, P_WS, WS_END)
    srd(a, 12, P_OUT, S * 2 * D * 2)
    t = Asm()
    t(f"""
    s_movk_i32 s101, 4096
    v_and_b32 v2, 3, v1
    v_mul_u32_u24 v2, {GP}, v2
    v_bfe_u32 v3, v1, 2, 2
    v_lshl_add_u32 v2, v3, 4, v2
    v_bfe_u32 v3, v1, 4, 1
    v_mul_u32_u24 v3, {GCH}, v3
    v_add3_u32 v217, v2, v3, s101
    s_lshl_b32 s36, s21, 1
    s_lshr_b32 s56, s36, 2
    s_lshl_b32 s56, s56, 14
    s_and_b32 s36, s36, 3
    s_lshl_b32 s36, s36, 4
    s_add_u32 s56, s56, s36
    s_add_u32 s56, s56, {WS_UT}
    s_mov_b32 s92, s56
    """)
    for k in range(5):
        t(f"""
        v_add_u32 v2, {64*k}, v1
        v_mul_u32_u24 v3, 205, v2
        v_lshrrev_b32 v3, 10, v3
        v_mul_u32_u24 v4, 5, v3
        v_sub_u32 v4, v2, v4
        v_min_u32 v4, 3, v4
        v_lshl_add_u32 v3, v3, 2, v4
        v_lshlrev_b32 v{UV[k]}, 6, v3
        """)
    t(f"""
    s_lshr_b32 s36, s21, 5
    s_lshl_b32 s36, s36, 9
    v_and_b32 v17, 31, v1
    v_lshl_add_u32 v223, v17, 4, s36
    v_lshrrev_b32 v18, 5, v1
    v_and_b32 v19, 3, v17
    v_sub_u32 v19, 3, v19
    v_mul_u32_u24 v19, {GP}, v19
    v_lshrrev_b32 v2, 2, v17
    v_lshlrev_b32 v3, 1, v18
    v_sub_u32 v2, v3, v2
    v_lshl_add_u32 v19, v2, 3, v19
    s_mul_i32 s36, s61, {GCH}
    s_lshl_b32 s56, s63, 10
    s_sub_u32 s36, s36, s56
    s_add_u32 s36, s36, {8*511 - 32*94}
    v_add_u32 v218, s36, v19
    v_mul_u32_u24 v2, 80, v17
    v_lshl_add_u32 v2, v18, 4, v2
    s_mul_i32 s36, s61, {UCH}
    s_mul_i32 s56, s63, {16*80}
    s_sub_u32 s36, s36, s56
    s_add_u32 s36, s36, {L_U + 17*80}
    v_add_u32 v219, s36, v2
    v_mov_b64 v[32:33], 0
    v_mov_b64 v[34:35], 0
    v_and_b32 v14, 255, v0
    v_lshlrev_b32 v36, 4, v14
    v_add_u32 v36, {L_U}, v36
    v_cmp_gt_u32 vcc, 160, v14
    s_mov_b64 exec, vcc
    ds_write_b128 v36, v[32:35]
    ds_write_b128 v36, v[32:35] offset:{UCH}
    s_mov_b64 exec, -1
    """)
    for l in t.lines: a(l)
    for j in range(2, PRE_ST): issue(j); vm += [j]*4
    issued = max(2, PRE_ST)
    pre, _ = kgen(1)
    extra = lines(f"""
    v_mov_b32 v2, {L_EP}
    ds_read_b32 v2, v2
    s_waitcnt lgkmcnt(0)
    v_readfirstlane_b32 s20, v2
    """) + pre
    head = ssm_head(1)
    for j in range(NST):
        waitfor(j)
        if j == 0: stamp(a, 13)
        a('s_barrier')
        if j == 0: stamp(a, 1)
        if 'gemmonly' in DBG and j in (2, 4, 6, 8, 10, 12, 13): stamp(a, {2:3, 4:4, 6:5, 8:6, 10:7, 12:8, 13:9}[j])
        while issued < NST and issued <= j + DEPTH:
            issue(issued); vm += [issued]*4; issued += 1
        if j == 0:
            params(a); vm += ['p']*4
        if j in (8, 9, 10):
            k = -(-len(extra) // (11 - j))
            for l in extra[:k]: a(l)
            extra = extra[k:]
        if j in (11, 12):
            for l in head[:LD_PER]: a(l)
            head = head[LD_PER:]
    a('s_cmp_eq_u32 s3, 4\ns_cselect_b32 s60, 1, 0\ns_cbranch_scc0 Q_nof0a')
    a('buffer_load_dwordx4 v[28:31], v223, s[16:19], 0 offen sc1')
    a.label('Q_nof0a')
    for l in head: a(l)
    stamp(a, 2)
    if 'gemmonly' in DBG: a('s_branch P_fin')
    def nop(): pass
    def udma():
        a('s_add_u32 s93, s92, 16')
        for ch in range(2):
            for k in range(5):
                a(f's_mov_b32 m0, {L_U + 32*80 + ch*UCH + 1024*k}')
                a(f'buffer_load_dwordx4 v{UV[k]}, s[16:19], s{92+ch} offen sc1 lds')
    def look(tag, last=False):
        a(f's_cmp_eq_u32 s60, 0\ns_cbranch_scc1 Q_lk{tag}')
        if last:
            poll(a, 'PL_f0', 223, 28, x4=True, sleep=1)
        else:
            a('s_waitcnt vmcnt(0)')
            for i in range(4): a(f'v_xor_b32 v{28+i}, s20, v{28+i}')
            a('v_or3_b32 v28, v28, v29, v30\nv_or_b32 v28, v28, v31\nv_cmp_ne_u32 vcc, 0, v28')
            a(f's_nop 4\ns_cbranch_vccz Q_lg{tag}')
            a('buffer_load_dwordx4 v[28:31], v223, s[16:19], 0 offen sc1')
            a(f's_branch Q_lk{tag}')
            a.label(f'Q_lg{tag}')
        a('s_call_b64 s[96:97], Q_udma')
        a.label(f'Q_lk{tag}')
    def b2():
        look('b')
        a(f"""
        s_mov_b32 exec_hi, 0
        ds_write_b128 v217, v[32:35]
        s_mov_b32 exec_hi, -1
        ds_write2_b32 v{CV}, v32, v33 offset0:1 offset1:3
        """)
    def bc():
        look('c', True)
        a('s_waitcnt vmcnt(0)')
    ssm_common(a, 1, lambda: look('a'), nop, b2, bc)
    if CONV_PRIO: a('s_setprio 1')
    SC = 4; sc = [0]
    def sarr():
        a('s_waitcnt lgkmcnt(0)'); garrive(a, SC); sc[0] += 4
    Y0, Y1 = 176, 192
    FR = 32; NBUF = 4
    def boff(n): return (n // 2) * 80 + (n % 2) * 32
    def ld(t):
        b = FR + 16 * (t % NBUF); ao = 32*(31-t)
        return [f'ds_read_b64 {v(b,2)}, v218 offset:{ao + 2048}',
                f'ds_read_b64 {v(b+2,2)}, v218 offset:{ao + 2056}',
                f'ds_read_b128 {v(b+4,4)}, v219 offset:{boff(31-t)}',
                f'ds_read_b128 {v(b+8,4)}, v219 offset:{boff(31-t) + 2560}',
                f'ds_read_b64 {v(b+12,2)}, v218 offset:{ao}',
                f'ds_read_b64 {v(b+14,2)}, v218 offset:{ao + 8}']
    def mm(t, first):
        b = FR + 16 * (t % NBUF)
        return [f'v_mfma_f32_32x32x16_bf16 {v(Y0,16)}, {v(b,4)}, {v(b+4,4)}, {"0" if first else v(Y0,16)}',
                f'v_mfma_f32_32x32x16_bf16 {v(Y1,16)}, {v(b,4)}, {v(b+8,4)}, {"0" if first else v(Y1,16)}',
                f'v_mfma_f32_32x32x16_bf16 {v(Y1,16)}, {v(b+12,4)}, {v(b+4,4)}, {v(Y1,16)}']
    for l in ld(0) + ld(1): a(l)
    t_ = Asm(); ssm_epi_setup(t_)
    t_(f's_mul_i32 s36, s29, {PSRC}\ns_add_u32 s36, s36, {L_PART}\nv_lshl_add_u32 v216, v1, 4, s36')
    fillA = [[l] for l in t_.lines]
    su, fillB = att_pre_groups()
    fillA += su
    T0 = CONV_T0
    def take(q, k):
        for _ in range(k):
            if q:
                for l in q.pop(0): a(l)
    perA = -(-len(fillA) // (3*T0)); perB = -(-len(fillB) // (3*(30 - T0)))
    for t in range(32):
        if t == T0:
            gwait(a, 12, 1, 2)
        else:
            a(f's_waitcnt lgkmcnt({6 if t < 31 else 0})')
        L = ld(t + 2) if t + 2 < 32 else []
        M = mm(t, t == 0)
        q, per = (fillA, perA) if t < T0 else (fillB, perB)
        a(M[0])
        for l in L[:2]: a(l)
        take(q, per)
        a(M[1])
        for l in L[2:4]: a(l)
        take(q, per)
        a(M[2])
        for l in L[4:]: a(l)
        take(q, per)
    assert not fillA and not fillB
    a('s_setprio 1')
    for own in range(8):
        a(f'ds_write_b128 v216, {v(Y0 + 4*own, 4)} offset:{own*POWN}')
    sarr()
    emit_groups(a, att_zero())
    gwait(a, SC, sc[0], 2)
    stamp(a, 5)
    ssm_epi_reads(a)
    sarr()
    ssm_epi(a)
    gwait(a, SC, sc[0], 2)
    a('s_branch L_att')
    a.label('Q_udma')
    udma()
    a('s_mov_b32 s60, 0\ns_setpc_b64 s[96:97]')

def comp_waves(a):
    XF = 64; ACC = {K_: 176, V_: 192, Q_: 208}; WB = [[8 + 4*i for i in range(8)], [224 + 4*i for i in range(4)] + [40 + 4*i for i in range(4)]]
    a(f"""
    s_lshl_b32 s28, s3, 1
    v_xor_b32 v5, s28, v4
    v_lshlrev_b32 v5, 4, v5
    s_lshl_b32 s30, s26, 6
    s_lshl_b32 s31, s3, 4
    s_add_u32 s30, s30, s31
    v_add_u32 v6, s30, v3
    v_mul_u32_u24 v6, 896, v6
    s_lshl_b32 s31, s25, 7
    v_add_u32 v6, s31, v6
    v_add_u32 v246, v6, v5
    v_xor_b32 v5, 16, v5
    v_add_u32 v6, v6, v5
    v_add_u32 v247, 7168, v6
    s_lshl_b32 s31, s3, 11
    s_add_u32 s32, s31, {L_UT}
    s_waitcnt lgkmcnt(0)
    """)
    srd(a, 16, P_WS, WS_END)
    a(f"""
    s_cmp_lg_u32 s3, 0
    s_cbranch_scc1 Q_noep0
    s_mov_b32 s33, {EPOCH}
    buffer_load_dword v253, off, s[16:19], s33 sc1
    """)
    a.label('Q_noep0')
    srd(a, 12, P_OUT, S * 2 * D * 2)
    a(f"""
    v_and_b32 v5, 1, v1
    v_bfe_u32 v6, v1, 1, 1
    v_lshrrev_b32 v7, 4, v1
    v_add_u32 v2, s28, v5
    v_xor_b32 v7, v7, v2
    v_lshlrev_b32 v7, 4, v7
    v_lshl_add_u32 v7, v6, 3, v7
    v_bfe_u32 v6, v1, 2, 2
    v_lshl_add_u32 v6, v5, 3, v6
    v_lshl_add_u32 v7, v6, 7, v7
    s_add_u32 s31, s31, {L_UT}
    v_add_u32 v249, s31, v7
    v_xor_b32 v252, 64, v249
    s_lshl_b32 s31, s25, 18
    s_lshl_b32 s33, s26, 9
    s_add_u32 s31, s31, s33
    s_lshl_b32 s33, s3, 7
    s_add_u32 s31, s31, s33
    s_add_u32 s31, s31, {WS_UT}
    v_lshlrev_b32 v255, 14, v3
    v_lshl_add_u32 v255, v4, 4, v255
    v_add_u32 v255, s31, v255
    v_lshlrev_b32 v6, 3, v0
    v_sub_u32 v6, 2047, v6
    v_mov_b32 v17, {L_T2}
    v_mov_b32 v18, {TP}
    v_lshlrev_b32 v19, 4, v0
    v_add_u32 v19, {L_TAB}, v19
    s_mov_b32 s36, 0
    """)
    a.label('Q_tab')
    for i in (0, 2):
        a(f"""
        v_subrev_u32 v7, {i}, v6
        v_subrev_u32 v8, {i+1}, v6
        v_cvt_f32_i32 v2, v7
        v_cvt_f32_i32 v5, v8
        v_cvt_pk_bf16_f32 v2, v2, v5
        v_and_b32 v5, 0xffff0000, v2
        v_lshlrev_b32 v2, 16, v2
        v_cvt_i32_f32 v2, v2
        v_cvt_i32_f32 v5, v5
        v_and_b32 v7, 7, v2
        v_and_b32 v8, 7, v5
        v_ashrrev_i32 v2, 3, v2
        v_ashrrev_i32 v5, 3, v5
        v_mad_u32_u24 v2, v7, v18, v2
        v_mad_u32_u24 v5, v8, v18, v5
        v_lshl_add_u32 v{64+i}, v2, 1, v17
        v_lshl_add_u32 v{65+i}, v5, 1, v17
        """)
    a(f"""
    ds_write_b128 v19, v[64:67]
    v_add_u32 v19, 4096, v19
    v_subrev_u32 v6, 4, v6
    s_add_u32 s36, s36, 1
    s_cmp_lt_u32 s36, 3
    s_cbranch_scc1 Q_tab
    v_and_b32 v17, 15, v1
    """)
    ix = lambda p: (p & 7) * TP + (p >> 3)
    def pk(b, s1, s2): assert b < 4096 and s1 < 1024 and s2 < 1024; return b | (s1 << 12) | (s2 << 22)
    t0 = [pk(0, TP, 2*TP), pk(4*TP, TP, 2*TP), None, None]
    a('s_cmp_eq_u32 s63, 0')
    ptab = {0: [[0,1,2,3],[4,5,6,7],[256,258,260,262],[512,516,768,772]],
            1: [[1024,1280,1536,1792],[2048,2304,2304,2304],[2304]*4,[2304]*4]}
    for g in range(4):
        lo = lambda at: ix(ptab[at][g][0]) | (ix(ptab[at][g][1]) << 16)
        hi = lambda at: ix(ptab[at][g][2]) | (ix(ptab[at][g][3]) << 16)
        a(f's_mov_b32 exec_lo, {0xffff << (16*(g%2)) if g < 2 else 0}')
        a(f's_mov_b32 exec_hi, {0xffff << (16*(g%2)) if g >= 2 else 0}')
        a(f's_mov_b32 s36, {lo(1)}\ns_cselect_b32 s36, {lo(0)}, s36\nv_mov_b32 v68, s36')
        a(f's_mov_b32 s36, {hi(1)}\ns_cselect_b32 s36, {hi(0)}, s36\nv_mov_b32 v70, s36')
    a(f"""
    s_mov_b64 exec, -1
    s_lshl_b32 s36, s61, 5
    s_add_u32 s36, s36, {L_T2}
    v_lshl_add_u32 v18, v17, 1, s36
    v_lshrrev_b32 v69, 16, v68
    v_lshrrev_b32 v71, 16, v70
    v_and_b32 v68, 0xffff, v68
    v_and_b32 v70, 0xffff, v70
    v_lshl_add_u32 v68, v68, 1, v18
    v_lshl_add_u32 v69, v69, 1, v18
    v_lshl_add_u32 v70, v70, 1, v18
    v_lshl_add_u32 v71, v71, 1, v18
    ds_write_b128 v19, v[68:71]
    s_and_b32 s27, s3, 1                   ; rt
    s_lshr_b32 s30, s3, 1                  ; cg
    v_and_b32 v3, 31, v1
    v_lshrrev_b32 v4, 5, v1
    s_lshl_b32 s31, s27, 5
    v_add_u32 v5, s31, v3
    v_lshrrev_b32 v6, 1, v5
    v_and_b32 v6, 7, v6
    v_lshlrev_b32 v7, 7, v5
    v_add_u32 v7, {RING0}, v7
    """)
    for st in range(4):
        a(f"""
        v_add_u32 v{56+st}, {2*st}, v4
        v_xor_b32 v{56+st}, v{56+st}, v6
        v_lshl_add_u32 v{56+st}, v{56+st}, 4, v7
        """)
    a(f"""
    v_and_b32 v6, 3, v1
    v_lshlrev_b32 v6, 3, v6
    v_bfe_u32 v7, v1, 4, 1
    v_lshl_add_u32 v6, v7, 5, v6
    s_lshl_b32 s31, s30, 6
    v_add_u32 v6, s31, v6
    v_bfe_u32 v7, v1, 3, 1
    v_lshlrev_b32 v7, 6, v7
    v_xor_b32 v6, v6, v7
    v_bfe_u32 v7, v1, 2, 2
    v_lshl_add_u32 v7, v4, 3, v7
    v_lshl_add_u32 v60, v7, 7, v6
    v_add_u32 v60, {RING0}, v60
    s_lshl_b32 s31, s26, 1
    s_add_u32 s31, s31, s27
    s_mul_i32 s31, s31, {TILEB}
    s_lshl_b32 s33, s25, 3
    s_lshl_b32 s34, s30, 2
    s_add_u32 s33, s33, s34
    s_lshl_b32 s34, s33, 9
    s_add_u32 s34, s34, s31
    v_lshlrev_b32 v61, 4, v1
    v_add_u32 v61, s34, v61
    s_lshl_b32 s34, s33, 7
    s_add_u32 s34, s34, s31
    v_mul_u32_u24 v62, 7168, v4
    v_lshl_add_u32 v62, v3, 4, v62
    v_add_u32 v62, s34, v62
    s_mov_b32 s35, {f32bits(QSCALE)}
    s_lshl_b32 s60, s25, 9
    s_lshl_b32 s61, s26, 4
    s_add_u32 s60, s60, s61
    s_lshl_b32 s61, s3, 2
    s_add_u32 s60, s60, s61
    v_mov_b32 v63, {L_EP}
    s_cmp_lg_u32 s3, 0
    s_cbranch_scc1 Q_noep
    s_waitcnt vmcnt(0)
    v_add_u32 v253, 1, v253
    ds_write_b32 v63, v253
    """)
    a.label('Q_noep')
    a('s_waitcnt vmcnt(0) lgkmcnt(0)')
    stamp(a, 13)
    def reads(j):
        sb = slot_of(j) * SLOT
        n = 0; o = []
        for half, (kind, i) in enumerate(stages[j]):
            base = sb + half * 8192
            if kind == 'x':
                for st in range(4):
                    o.append(f'ds_read_b128 {v(XF + 16*i + 4*st, 4)}, v{56 + st} offset:{base}')
            else:
                for st in range(4):
                    r = WB[j % 2][n]; n += 1
                    for e in range(2):
                        o.append(f'ds_read_b64_tr_b16 {v(r + 2*e, 2)}, v60 offset:{base + (16*st + 4*e)*128}')
        return o
    started = set()
    def epilogue(kind):
        acc = ACC[kind]; out = []
        if kind == Q_:
            for r in range(16): out.append(f'v_mul_f32 v{acc+r}, s35, v{acc+r}')
        for r in range(8): out.append(f'v_cvt_pk_bf16_f32 v{acc+r}, v{acc+2*r}, v{acc+2*r+1}')
        T = acc
        if kind == V_:
            out.append(f's_mov_b32 s36, {WS_V}')
            out.append(f'buffer_store_dwordx4 {v(T,4)}, v62, s[16:19], s36 offen sc1')
            out.append(f's_mov_b32 s36, {WS_V + 2*7168}')
            out.append(f'buffer_store_dwordx4 {v(T+4,4)}, v62, s[16:19], s36 offen sc1')
        else:
            for q in range(2):
                out.append(f'v_permlane32_swap_b32 v{T+4*q}, v{T+4*q+2}')
                out.append(f'v_permlane32_swap_b32 v{T+4*q+1}, v{T+4*q+3}')
            out.append(f's_mov_b32 s36, {WS_Q if kind == Q_ else WS_K}')
            out.append(f'buffer_store_dwordx4 {v(T,4)}, v61, s[16:19], s36 offen sc1')
            out.append(f'buffer_store_dwordx4 {v(T+4,4)}, v61, s[16:19], s36 offen offset:1024 sc1')
        return out
    def mlist(j):
        n = 0; done = []; o = []
        for half, (kind, i) in enumerate(stages[j]):
            if kind == 'x': continue
            acc = ACC[kind]
            for st in range(4):
                w = WB[j % 2][n]; n += 1
                x = XF + 16*i + 4*st
                c = v(acc, 16) if kind in started else '0'
                started.add(kind)
                if kind == V_: o.append(f'v_mfma_f32_32x32x16_bf16 {v(acc,16)}, {v(x,4)}, {v(w,4)}, {c}')
                else:          o.append(f'v_mfma_f32_32x32x16_bf16 {v(acc,16)}, {v(w,4)}, {v(x,4)}, {c}')
            if i == 6: done.append(kind)
        return o, done
    def weave(ms, rd, fill):
        nm = len(ms)
        per = -(-len(rd) // max(nm - 2, 1))
        fper = -(-len(fill) // max(nm - 2, 1))
        for k, m in enumerate(ms):
            a(m)
            for _ in range(per):
                if rd: a(rd.pop(0))
            if k >= 2:
                for _ in range(fper):
                    if fill: a(fill.pop(0))
        for l in rd + fill: a(l)
    pending = []
    pre, _ = kgen(0)
    prep = [pre[:len(pre)//2], pre[len(pre)//2:]]
    for j in range(NST):
        a('s_barrier')
        if j == 0: stamp(a, 1)
        rd = reads(j); ms = []; fill = []
        if j == 0: rd.append('ds_read_b32 v253, v63')
        if j > 0:
            for k in pending: fill += epilogue(k)
            ms, pending = mlist(j - 1)
        if j == 7: a('s_waitcnt vmcnt(2)')
        if j in (7, 8): fill += prep[j - 7]
        if j == U_TR:
            a('s_waitcnt vmcnt(4)')
            rd += ['ds_read_b64_tr_b16 v[160:161], v249', 'ds_read_b64_tr_b16 v[162:163], v249 offset:512',
                   'ds_read_b64_tr_b16 v[164:165], v252', 'ds_read_b64_tr_b16 v[166:167], v252 offset:512']
        if j == U_TR + 1:
            fill = [f's_mov_b32 s36, {8*16384}', 'buffer_store_dwordx4 v[160:163], v255, s[16:19], 0 offen sc1',
                    'buffer_store_dwordx4 v[164:167], v255, s[16:19], s36 offen sc1'] + fill
        if 'nocomp' in DBG: ms = []; rd = rd[-1:]; fill = []
        if j == F0_SIG:
            a('v_readfirstlane_b32 s20, v253')
            a('s_waitcnt vmcnt(2)')
            signal(a, 60, 2, 3)
        weave(ms, rd, fill)
        if j == U_ISS:
            srd(a, 56, P_U, S * D * 2)
            a('s_mov_b32 m0, s32\ns_nop 0\nbuffer_load_dwordx4 v246, s[56:59], 0 offen nt lds')
            a('s_add_u32 m0, s32, 1024\ns_nop 0\nbuffer_load_dwordx4 v247, s[56:59], 0 offen nt lds')
            params(a)
        if False:
            a('v_readfirstlane_b32 s20, v253')
            a('s_waitcnt vmcnt(0)')
            signal(a, 60, 2, 3)
        a('s_waitcnt lgkmcnt(0)')
    fill = []
    for k in pending: fill += epilogue(k)
    ms, pending = mlist(NST - 1)
    weave(ms, [], fill)
    for k in pending:
        for l in epilogue(k): a(l)
    stamp(a, 2)
    if 'gemmonly' in DBG: a('s_branch P_fin')
    sc_, ve_, lds_ = att_split()
    def nop(): pass
    head = ssm_head(0)
    cut = int(len(head) * KG_CUT)
    scl = [l for g in sc_ for l in g]
    def mix(lst):
        for i, l in enumerate(lst):
            a(l)
            if i >= 2 and i % 2 == 0 and scl: a(scl.pop(0))
    FL = 252
    a('s_cmp_lg_u32 s3, 0\ns_cbranch_scc1 Q_np0')
    att_poll_addr(a, FL)
    a.label('Q_np0')
    a(f's_add_u32 s60, s60, {F1}')
    mix(head[:cut])
    a('s_waitcnt vmcnt(0)')
    signal(a, 60, 2, 3)
    mix(head[cut:])
    for l in scl: a(l)
    def b2():
        a('s_cmp_lg_u32 s3, 0\ns_cbranch_scc1 Q_np2')
        a(f'buffer_load_dwordx4 v[244:247], v{FL}, s[16:19], 0 offen sc1')
        a.label('Q_np2')
    ssm_common(a, 0, nop, nop, b2, nop)
    emit_groups(a, ve_)
    a('s_cmp_lg_u32 s3, 0\ns_cbranch_scc1 Q_w1')
    a('s_waitcnt vmcnt(0)')
    for i in range(4): a(f'v_xor_b32 v{244+i}, s20, v{244+i}')
    a('v_or3_b32 v244, v244, v245, v246\nv_or_b32 v244, v244, v247\nv_cmp_ne_u32 vcc, 0, v244')
    a('s_nop 4\ns_cbranch_vccz Q_w0')
    poll(a, 'PL_f1', FL, 244, x4=True, sleep=1)
    a.label('Q_w0')
    a(f'ds_write_b32 v{CV}, v{C1} offset:12')
    a('s_branch L_pre')
    a.label('Q_w1')
    gwait(a, 12, 1, 2)
    a.label('L_pre')
    stamp(a, 5)
    emit_groups(a, lds_ + att_zero())

EB = 176
EA = EB + 56
ET = 96
def ssm_epi_setup(a):
    a(f"""
    v_and_b32 v{ET}, 1, v1                      ; ch
    v_bfe_u32 v{ET+1}, v1, 1, 2                 ; j
    v_lshrrev_b32 v{ET+2}, 3, v1
    v_mul_u32_u24 v{ET+3}, {POWN}, v{ET+1}
    v_mul_u32_u24 v{ET+4}, {PSRC}, v{ET}
    v_add_u32 v{ET+3}, v{ET+3}, v{ET+4}
    v_lshl_add_u32 v{ET+3}, v{ET+2}, 4, v{ET+3}
    s_lshl_b32 s60, s29, 7
    s_add_u32 s36, s60, {L_PART}
    v_add_u32 v{EA}, s36, v{ET+3}
    v_mul_u32_u24 v{ET+2}, 80, v{ET+2}
    v_lshl_add_u32 v{ET+2}, v{ET+1}, 4, v{ET+2}
    v_mul_u32_u24 v{ET+4}, {UCH}, v{ET}
    v_add_u32 v{ET+2}, v{ET+2}, v{ET+4}
    s_mul_i32 s36, s29, 640
    s_add_u32 s36, s36, {L_U + 32*80}
    v_add_u32 v{EA+1}, s36, v{ET+2}             ; u chunk
    s_lshl_b32 s36, s21, 13
    s_lshl_b32 s60, s29, 10
    s_add_u32 s36, s36, s60
    s_add_u32 s36, s36, {WS_YT}
    v_lshl_add_u32 v{EA+2}, v1, 4, s36
    s_lshl_b32 s60, s39, 16
    s_and_b32 s61, s39, 0xffff0000
    v_mov_b32 v{EA+3}, s60
    v_mov_b32 v{ET+4}, s61
    v_cmp_eq_u32 vcc, 1, v{ET}
    v_cndmask_b32 v{EA+3}, v{EA+3}, v{ET+4}, vcc
    """)

def ssm_epi_reads(a):
    for p in range(2):
        E = EB + 28*p; o = p*4*POWN
        a(f"""
        ds_read_b128 {v(E,4)}, v{EA} offset:{o}
        ds_read_b128 {v(E+4,4)}, v{EA} offset:{o+512}
        ds_read_b128 {v(E+8,4)}, v{EA} offset:{o+2*PSRC}
        ds_read_b128 {v(E+12,4)}, v{EA} offset:{o+2*PSRC+512}
        ds_read_b128 {v(E+16,4)}, v{EA+1} offset:{p*2560}
        """)

def ssm_epi(a):
    a('s_mov_b32 s36, 4096')
    for p in range(2):
        A = EB + 28*p; B = A + 8; U = A + 16; C = A + 20
        for e in range(8): a(f'v_add_f32 v{A+e}, v{A+e}, v{B+e}')
        for e in range(4):
            a(f'v_lshlrev_b32 v{C+2*e}, 16, v{U+e}')
            a(f'v_and_b32 v{C+1+2*e}, 0xffff0000, v{U+e}')
        for e in range(8): a(f'v_mul_f32 v{C+e}, v{EA+3}, v{C+e}')
        for e in range(4):
            a(f'v_cvt_pk_bf16_f32 v{B+e}, v{A+2*e}, v{A+1+2*e}')
            a(f'v_cvt_pk_bf16_f32 v{B+4+e}, v{C+2*e}, v{C+1+2*e}')
        for e in range(4):
            a(f'v_lshlrev_b32 v{A+2*e}, 16, v{B+e}')
            a(f'v_and_b32 v{A+1+2*e}, 0xffff0000, v{B+e}')
            a(f'v_lshlrev_b32 v{C+2*e}, 16, v{B+4+e}')
            a(f'v_and_b32 v{C+1+2*e}, 0xffff0000, v{B+4+e}')
        for e in range(8): a(f'v_add_f32 v{A+e}, v{A+e}, v{C+e}')
        for e in range(4): a(f'v_cvt_pk_bf16_f32 v{B+e}, v{A+2*e}, v{A+1+2*e}')
        a(f'buffer_store_dwordx4 {v(B,4)}, v{EA+2}, s[16:19], {"s36" if p else "0"} offen sc1')

def att_ids(a):
    a("""
    s_lshl_b32 s40, s22, 1
    s_and_b32 s41, s23, 1
    s_add_u32 s40, s40, s41                ; head
    s_lshr_b32 s41, s23, 1                 ; rbq
    s_mul_i32 s42, s40, 7
    s_lshr_b32 s42, s42, 1                 ; chi0
    """)

def att_poll_addr(a, r):
    att_ids(a)
    a(f"""
    s_lshr_b32 s43, s42, 3
    s_add_u32 s44, s42, 3
    s_lshr_b32 s44, s44, 3
    s_lshl_b32 s43, s43, 9
    s_lshl_b32 s44, s44, 9
    v_mov_b32 v{r}, s43
    v_mov_b32 v{r+1}, s44
    v_cmp_lt_u32 vcc, 31, v1
    v_cndmask_b32 v{r}, v{r}, v{r+1}, vcc
    v_and_b32 v{r+1}, 31, v1
    v_lshl_add_u32 v{r}, v{r+1}, 4, v{r}
    v_add_u32 v{r}, {F1}, v{r}
    """)

def att_poll(a, name):
    att_poll_addr(a, 16)
    poll(a, name, 16, 20, x4=True, sleep=8)

OL = 120 * 1024; YL = 152 * 1024; RED = 96 * 1024
NB = 4
QF = 16; OA = 32; SB = 64; PB = 96; KB = 112; VB = KB + 8*NB
def advK(a):
    a(f's_add_u32 s33, s33, {TILEB}')
    a('s_cmp_eq_u32 s33, s55')
    a('s_cselect_b32 s33, s54, s33')
def loadK(a, n):
    a(f'buffer_load_dwordx4 {v(KB+8*n,4)}, v3, s[4:7], s33 offen')
    a(f'buffer_load_dwordx4 {v(KB+8*n+4,4)}, v3, s[4:7], s33 offen offset:1024')
def loadV(a, n):
    a('s_mov_b64 exec, s[46:47]')
    a(f'buffer_load_dwordx4 {v(VB+8*n,4)}, v4, s[56:59], s33 offen')
    a(f'buffer_load_dwordx4 {v(VB+8*n+4,4)}, v7, s[56:59], s33 offen')
    a('s_mov_b64 exec, -1')

def att_pre_groups():
    def G(fn, *args):
        t = Asm(); fn(t, *args); return t.lines
    def singles(txt): return [[l] for l in lines(txt)]
    p1 = [[l] for l in G(att_ids) + G(srd, 4, P_WS, WS_END)]
    p1 += singles(f"""
    s_and_b32 s24, s3, 1                   ; qg
    s_lshr_b32 s27, s3, 1
    s_cmp_lt_u32 s23, 28
    s_cselect_b32 s34, {NA}, 16
    s_sub_u32 s35, 32, s34
    s_min_u32 s54, s27, 2
    s_mul_i32 s54, s54, s34
    s_cmp_eq_u32 s27, 3
    s_cselect_b32 s55, s35, 0
    s_add_u32 s54, s54, s55
    s_cmp_lt_u32 s3, 4
    s_cselect_b32 s34, s34, s35
    s_lshr_b32 s35, s34, 2
    s_lshl_b32 s96, s42, 9
    v_lshl_add_u32 v3, v1, 4, s96          ; Q/K voffset
    s_lshl_b32 s28, s41, 2
    s_lshl_b32 s31, s24, 1
    s_add_u32 s28, s28, s31
    s_mul_i32 s31, s28, {TILEB}
    s_add_u32 s31, s31, {WS_Q}
    s_add_u32 s30, s31, {TILEB}
    s_mul_i32 s54, s54, {TILEB}
    s_add_u32 s54, s54, {WS_K}
    s_mul_i32 s55, s34, {TILEB}
    s_add_u32 s55, s55, s54
    s_mul_i32 s33, s41, s34
    s_lshr_b32 s33, s33, 4
    s_mul_i32 s33, s33, {TILEB}
    s_add_u32 s33, s33, s54
    buffer_load_dwordx4 {v(QF,4)}, v3, s[16:19], s31 offen
    buffer_load_dwordx4 {v(QF+4,4)}, v3, s[16:19], s31 offen offset:1024
    """)
    p1 += [[l] for l in G(loadK, 0)]
    p1 += singles(f"""
    buffer_load_dwordx4 {v(QF+8,4)}, v3, s[16:19], s30 offen
    buffer_load_dwordx4 {v(QF+12,4)}, v3, s[16:19], s30 offen offset:1024
    v_and_b32 v5, 31, v1
    v_lshrrev_b32 v6, 5, v1
    v_mul_u32_u24 v4, 7168, v6
    v_lshl_add_u32 v4, v5, 4, v4
    s_mul_i32 s97, s40, 448
    s_add_u32 s97, s97, {WS_V - WS_K}
    v_add_u32 v4, s97, v4
    v_add_u32 v7, 14336, v4
    s_mov_b32 s46, 0x0fffffff
    s_mov_b32 s47, 0x0fffffff
    """)
    p1 += [[l] for l in G(srd, 56, P_WS, WS_END)]
    p2 = []
    for n in range(NB):
        dst = p1 if n == 0 else p2
        if n == 0:
            dst += [['v_cmp_eq_u32 vcc, 28, v5'], ['v_mov_b32 v12, 0x3f803f80'], ['v_cndmask_b32 v12, 0, v12, vcc'], ['v_mov_b32 v13, v12']]
        dst += [[f'v_mov_b64 {v(VB+8*n+r,2)}, v[12:13]'] for r in range(0, 8, 2)]
        if n < NB - 1:
            dst += [G(loadV, n), G(advK)] + [[l] for l in G(loadK, n + 1)]
    p2 += [[l] for l in G(srd, 8, P_WO, D * D * 2)]
    p2 += singles(f"""
    s_lshr_b32 s52, s40, 2
    s_lshl_b32 s53, s41, 2
    s_add_u32 s52, s52, s53
    s_and_b32 s53, s40, 3                  ; cg4
    v_lshrrev_b32 v8, 4, v1
    v_and_b32 v9, 15, v1
    v_lshlrev_b32 v10, 2, v8
    v_xor_b32 v9, v9, v10
    v_lshlrev_b32 v9, 4, v9
    v_mul_u32_u24 v8, 896, v8
    v_add_u32 v8, v8, v9
    s_lshl_b32 s98, s53, 8
    v_add_u32 v8, s98, v8
    s_lshl_b32 s51, s3, 10
    s_and_b32 s49, s3, 3
    s_lshl_b32 s48, s49, 10
    s_mul_i32 s50, s49, 3584
    s_and_b32 s49, s40, 1
    s_cmp_eq_u32 s49, 0
    s_cselect_b32 s43, -1, 0
    s_mov_b32 s42, 0
    s_cselect_b32 s44, 0, -1
    s_mov_b32 s45, 0
    s_lshl_b32 s32, s21, 4
    s_and_b32 s49, s3, 3
    s_lshl_b32 s49, s49, 2
    s_add_u32 s32, s32, s49
    s_add_u32 s32, s32, {F3}
    s_cmp_lt_u32 s23, 28
    s_cselect_b32 s32, s32, {WS_END}
    s_mov_b32 s37, 0
    """)
    allg = p1 + p2
    isld = lambda g: any(l.startswith('buffer_') for l in g) or g[0].startswith(f's_add_u32 s33, s33, {TILEB}')
    setup = [g for g in allg if not isld(g)]
    loads = [g for g in allg if isld(g)]
    return setup, loads

def att_split():
    su, ld = att_pre_groups()
    sc = [g for g in su if g[0].startswith('s_')]
    ve = [g for g in su if not g[0].startswith('s_')]
    return sc, ve, ld

def emit_groups(a, gs):
    for g in gs:
        for l in g: a(l)

def att_zero():
    return [[f'v_mov_b64 {v(OA+r,2)}, 0'] for r in range(0, 32, 2)] + [[f'v_mov_b64 {v(PB+8+r,2)}, 0'] for r in range(0, 8, 2)] + [[f'v_mov_b64 {v(SB+28+r,2)}, 0'] for r in range(0, 4, 2)]

def ph_att(a):
    a.label('L_att')
    a(f's_cmp_{PRIO_CMP}_u32 s3, 4\ns_cbranch_scc1 A_noprio\ns_setprio 1')
    a.label('A_noprio')
    nout = 4*(NB-1)
    a(f"""
    s_waitcnt vmcnt({nout})
    s_mov_b64 exec, s[42:43]
    v_mov_b32 v{QF+6}, 0
    v_mov_b32 v{QF+7}, 0
    v_mov_b32 v{QF+14}, 0
    v_mov_b32 v{QF+15}, 0
    s_mov_b64 exec, s[44:45]
    v_mov_b32 v{QF+0}, 0
    v_mov_b32 v{QF+1}, 0
    v_mov_b32 v{QF+8}, 0
    v_mov_b32 v{QF+9}, 0
    s_mov_b64 exec, -1
    v_mfma_f32_32x32x16_bf16 {v(SB,16)}, {v(KB,4)}, {v(QF,4)}, 0
    v_mfma_f32_32x32x16_bf16 {v(SB,16)}, {v(KB+4,4)}, {v(QF+4,4)}, {v(SB,16)}
    s_nop 9
    """)
    stamp(a, 6)
    a('.p2align 6')
    a.label('A_loop')
    for u in range(2*NB):
        t = u % 2
        kn = ((u + 1) // 2) % NB
        vn = ((u - 1) // 2) % NB
        Sn = SB + 16*((u+1) % 2); Sc = SB + 16*(u % 2)
        Pc = PB + 8*(u % 2); Pp = PB + 8*((u+1) % 2)
        Qn = QF + 8*(1-t); On = OA + 16*(1-t)
        ins = {}
        if u % 2 == 1:
            j = (u - 1) // 2
            if SPREAD == 0:
                loadV(a, (j - 1) % NB); advK(a); loadK(a, j % NB)
                if j == 0: a('s_mov_b32 s58, s6')
                a(f's_waitcnt vmcnt({4*(NB-1)})')
            else:
                a(f's_waitcnt vmcnt({4*(NB-2)})')
                t1 = Asm(); loadV(t1, (j - 1) % NB); t2 = Asm(); advK(t2); t3 = Asm(); loadK(t3, j % NB)
                if j == 0: t2('s_mov_b32 s58, s6')
                if SPREAD == 1: ins = {(0, 1): t1.lines, (1, 1): t2.lines, (2, 1): t3.lines[:1], (3, 1): t3.lines[1:]}
                else: ins = {(0, 1): t1.lines[:2] + t1.lines[3:], (1, 1): t1.lines[:1] + t1.lines[2:], (1, 3): t2.lines, (2, 1): t3.lines[:1], (3, 1): t3.lines[1:]}
        M = [f'v_mfma_f32_32x32x16_bf16 {v(Sn,16)}, {v(KB+8*kn,4)}, {v(Qn,4)}, 0',
             f'v_mfma_f32_32x32x16_bf16 {v(Sn,16)}, {v(KB+8*kn+4,4)}, {v(Qn+4,4)}, {v(Sn,16)}',
             f'v_mfma_f32_32x32x16_bf16 {v(On,16)}, {v(VB+8*vn,4)}, {v(Pp,4)}, {v(On,16)}',
             f'v_mfma_f32_32x32x16_bf16 {v(On,16)}, {v(VB+8*vn+4,4)}, {v(Pp+4,4)}, {v(On,16)}']
        M = [M[2], M[0], M[1], M[3]]
        for g in range(4):
            a(M[g])
            for e in range(4):
                a(f'v_exp_f32 v{Sc+4*g+e}, v{Sc+4*g+e}')
                for l in ins.get((g, e), []): a(l)
                if e in (0, 2):
                    h = e // 2
                    if g > 0: a(f'v_cvt_pk_bf16_f32 v{Pc+2*(g-1)+h}, v{Sc+4*(g-1)+2*h}, v{Sc+4*(g-1)+2*h+1}')
                    else:     a(f'v_cvt_pk_bf16_f32 v{Pp+6+h}, v{Sn+12+2*h}, v{Sn+13+2*h}')
    a(f"""
    s_add_u32 s37, s37, 1
    s_cmp_eq_u32 s37, s35
    s_cbranch_scc1 A_exit
    s_add_u32 s49, s37, 1
    s_cmp_eq_u32 s49, s35
    s_cselect_b32 s6, 0, s6
    s_cmp_lt_u32 s3, 4
    s_cbranch_scc1 A_loop
    s_cmp_gt_u32 s37, 2
    s_cbranch_scc1 A_b0
    """)
    for r in range(0 if 'nowo' in DBG else 12):
        a(f"""
        s_mov_b32 m0, s48
        s_add_u32 s48, s48, 4096
        buffer_load_dwordx4 v8, s[8:11], s50 offen lds
        s_add_u32 s50, s50, 14336
        """)
    a.label('A_b0')
    a(f"""
    s_add_u32 s49, s37, {PRIO_LEFT}
    s_cmp_lt_u32 s49, s35
    s_cbranch_scc1 A_b1
    s_setprio 0
    """)
    a.label('A_b1')
    a('s_cmp_lg_u32 s37, 1\ns_cbranch_scc1 A_loop')
    signal(a, 32, 9, 10)
    a('s_branch A_loop')
    a.label('A_exit')
    a('s_setprio 0')
    stamp(a, 7)
    a(f'v_cvt_pk_bf16_f32 v{PB+14}, v{SB+28}, v{SB+29}')
    a(f'v_cvt_pk_bf16_f32 v{PB+15}, v{SB+30}, v{SB+31}')
    a(f'v_mfma_f32_32x32x16_bf16 {v(OA+16,16)}, {v(VB+8*(NB-1),4)}, {v(PB+8,4)}, {v(OA+16,16)}')
    a(f'v_mfma_f32_32x32x16_bf16 {v(OA+16,16)}, {v(VB+8*(NB-1)+4,4)}, {v(PB+12,4)}, {v(OA+16,16)}')
    a('s_mov_b32 s94, 0')
    a.label('A_red')
    a(f"""
    s_lshl_b32 s36, s24, 14
    s_add_u32 s36, s36, {RED}
    s_lshr_b32 s38, s27, 1
    s_lshl_b32 s38, s38, 15
    s_and_b32 s39, s27, 1
    s_lshl_b32 s39, s39, 11
    s_add_u32 s38, s38, s39
    s_add_u32 s38, s38, s36
    v_lshlrev_b32 v2, 4, v1
    v_add_u32 v9, s38, v2
    s_lshl_b32 s38, s27, 12
    s_add_u32 s38, s38, s36
    v_add_u32 v10, s38, v2
    s_or_b32 s38, s27, 1
    s_lshl_b32 s38, s38, 12
    s_add_u32 s38, s38, s36
    s_add_u32 s38, s38, {1024 + 512}
    v_lshlrev_b32 v11, 4, v5
    v_add_u32 v11, s38, v11
    """)
    for own in range(4):
        for q in range(2):
            a(f'ds_write_b128 v9, {v(OA + 8*own + 4*q, 4)} offset:{own*4096 + q*1024}')
    a('s_waitcnt lgkmcnt(0)\ns_barrier')
    R = 64
    so = lambda src: (src >> 1) * 32768 + (src & 1) * 2048
    for src in range(4):
        a(f'ds_read_b32 v{12+src}, v11 offset:{so(src)}')
    for src in range(4):
        for q in range(2):
            a(f'ds_read_b128 {v(R + 8*src + 4*q, 4)}, v10 offset:{so(src) + q*1024}')
    a(f"""
    s_and_b32 s36, s27, 1
    s_cmp_eq_u32 s36, 1
    s_cselect_b32 s43, -1, 0
    s_mov_b32 s42, 0
    s_lshr_b32 s38, s27, 1
    s_add_u32 s38, s38, s28
    s_lshl_b32 s38, s38, 15
    s_lshl_b32 s39, s40, 11
    s_add_u32 s38, s38, s39
    s_lshl_b32 s39, s36, 10
    s_add_u32 s38, s38, s39
    s_add_u32 s38, s38, {WS_O}
    s_waitcnt lgkmcnt(8)
    v_add_f32 v12, v12, v13
    v_add_f32 v14, v14, v15
    v_add_f32 v12, v12, v14
    v_rcp_f32 v12, v12
    s_waitcnt lgkmcnt(0)
    """)
    a('v_cndmask_b32 v13, v12, 0, s[42:43]')
    for r in range(8):
        a(f'v_add_f32 v{R+r}, v{R+r}, v{R+8+r}')
        a(f'v_add_f32 v{R+16+r}, v{R+16+r}, v{R+24+r}')
    for r in range(8): a(f'v_add_f32 v{R+r}, v{R+r}, v{R+16+r}')
    for r in range(8): a(f'v_mul_f32 v{R+r}, v{R+r}, v{12 if r < 4 else 13}')
    for r in range(4): a(f'v_cvt_pk_bf16_f32 v{R+8+r}, v{R+2*r}, v{R+2*r+1}')
    a(f'buffer_store_dwordx4 {v(R+8,4)}, v2, s[16:19], s38 offen sc1')
    stamp(a, 8)
    a(f"""
    v_lshlrev_b32 v11, 13, v6
    v_lshl_add_u32 v11, v5, 4, v11
    v_add_u32 v11, {RED + 4096 + 1024 + 512}, v11
    """)
    for qg in range(2):
        for src in range(4):
            a(f'ds_read_b32 v{80+4*qg+src}, v11 offset:{qg*16384 + so(src)}')
    a(f"""
    s_mov_b32 s36, {f32bits(2.0**-30)}
    s_mov_b32 s37, {f32bits(2.0**40)}
    s_waitcnt lgkmcnt(0)
    v_add_f32 v80, v80, v81
    v_add_f32 v82, v82, v83
    v_add_f32 v84, v84, v85
    v_add_f32 v86, v86, v87
    v_add_f32 v80, v80, v82
    v_add_f32 v84, v84, v86
    v_cmp_nle_f32 vcc, s36, v80
    v_cmp_nge_f32 s[42:43], s37, v80
    v_cmp_nle_f32 s[44:45], s36, v84
    v_cmp_nge_f32 s[60:61], s37, v84
    s_or_b64 s[42:43], s[42:43], vcc
    s_or_b64 s[44:45], s[44:45], s[60:61]
    s_or_b64 s[42:43], s[42:43], s[44:45]
    s_cbranch_scc1 A_slow
    """)
    a.label('A_done')

def ph_slow(a):
    MX = 192
    a.label('A_slow')
    a(f"""
    s_cmp_lg_u32 s94, 0
    s_cbranch_scc1 A_done
    s_waitcnt vmcnt(0)
    s_barrier
    s_mov_b32 s6, s18
    s_mov_b32 s58, s18
    v_mov_b32 v{MX}, 0xff800000
    v_mov_b32 v{MX+1}, 0xff800000
    """)
    for r in range(0, 32, 2): a(f'v_mov_b64 {v(OA+r,2)}, 0')
    a.label('AS_pass')
    a('s_mov_b32 s37, 0')
    a.label('AS_tile')
    loadK(a, 0); loadV(a, 0); advK(a)
    a('s_waitcnt vmcnt(0)')
    for t in range(2):
        Sx = SB + 16*t
        a(f'v_mfma_f32_32x32x16_bf16 {v(Sx,16)}, {v(KB,4)}, {v(QF+8*t,4)}, 0')
        a(f'v_mfma_f32_32x32x16_bf16 {v(Sx,16)}, {v(KB+4,4)}, {v(QF+8*t+4,4)}, {v(Sx,16)}')
    a('s_nop 15\ns_cmp_lg_u32 s94, 0\ns_cbranch_scc1 AS_p1')
    for t in range(2):
        for r in range(0, 16, 2): a(f'v_max3_f32 v{MX+t}, v{SB+16*t+r}, v{SB+16*t+r+1}, v{MX+t}')
    a('s_branch AS_next')
    a.label('AS_p1')
    for t in range(2):
        Sx = SB + 16*t; Px = PB + 8*t
        for r in range(16): a(f'v_sub_f32 v{Sx+r}, v{Sx+r}, v{MX+t}')
        for r in range(16): a(f'v_exp_f32 v{Sx+r}, v{Sx+r}')
        for r in range(8): a(f'v_cvt_pk_bf16_f32 v{Px+r}, v{Sx+2*r}, v{Sx+2*r+1}')
        a(f'v_mfma_f32_32x32x16_bf16 {v(OA+16*t,16)}, {v(VB,4)}, {v(Px,4)}, {v(OA+16*t,16)}')
        a(f'v_mfma_f32_32x32x16_bf16 {v(OA+16*t,16)}, {v(VB+4,4)}, {v(Px+4,4)}, {v(OA+16*t,16)}')
    a.label('AS_next')
    a(f"""
    s_nop 15
    s_add_u32 s37, s37, 1
    s_cmp_lt_u32 s37, s34
    s_cbranch_scc1 AS_tile
    s_cmp_lg_u32 s94, 0
    s_cbranch_scc1 A_red
    s_lshl_b32 s36, s24, 11
    s_add_u32 s36, s36, {RED}
    s_lshl_b32 s38, s27, 9
    s_add_u32 s38, s38, s36
    v_lshl_add_u32 v9, v1, 3, s38
    ds_write_b64 v9, {v(MX,2)}
    v_lshl_add_u32 v9, v5, 3, s36
    s_waitcnt lgkmcnt(0)
    s_barrier
    """)
    for k in range(8): a(f'ds_read_b64 {v(SB+2*k,2)}, v9 offset:{256*k}')
    a('s_waitcnt lgkmcnt(0)')
    for t in range(2):
        for k in range(0, 8, 2): a(f'v_max3_f32 v{MX+t}, v{SB+2*k+t}, v{SB+2*k+2+t}, v{MX+t}')
    a('s_mov_b32 s94, 1\ns_barrier\ns_branch AS_pass')

def ph_out(a):
    a(f"""
    s_cmp_lg_u32 s3, 4
    s_cbranch_scc1 P_nop3
    s_cmp_ge_u32 s23, 28
    s_cbranch_scc1 P_nop3
    s_lshl_b32 s36, s25, 9
    s_add_u32 s36, s36, {F3}
    v_add_u32 v16, s36, v2
    """)
    poll(a, 'PL_f3', 16, 20, mask=0xffffffff, x4=True)
    a.label('P_nop3')
    a('s_waitcnt vmcnt(0)\ns_barrier')
    a('s_cmp_lg_u32 s3, 0\ns_cbranch_scc1 P_nof2')
    a(f's_lshl_b32 s36, s41, 7\ns_lshl_b32 s37, s40, 2\ns_add_u32 s36, s36, s37\ns_add_u32 s36, s36, {F2}')
    signal(a, 36, 16, 17)
    a.label('P_nof2')
    stamp(a, 9)
    for r in (12, 13, 14):
        a(f's_add_u32 m0, s51, {r*8192}')
        a(f's_mul_i32 s50, s3, 3584')
        a(f's_add_u32 s50, s50, {r*28672}')
        if r == 14: a(f's_min_u32 s50, s50, {D*D*2}')
        a(f'buffer_load_dwordx4 v8, s[8:11], s50 offen lds')
    a(f"""
    s_cmp_ge_u32 s23, 28
    s_cbranch_scc1 P_noy
    v_lshrrev_b32 v16, 1, v1
    v_lshlrev_b32 v16, 13, v16
    v_and_b32 v17, 1, v1
    v_lshl_add_u32 v16, v17, 4, v16
    s_lshl_b32 s36, s25, 18
    s_lshl_b32 s37, s26, 8
    s_add_u32 s36, s36, s37
    s_lshl_b32 s37, s3, 5
    s_add_u32 s36, s36, s37
    s_add_u32 s36, s36, {WS_YT}
    s_add_u32 m0, s51, {YL}
    s_nop 0
    buffer_load_dwordx4 v16, s[16:19], s36 offen sc1 lds
    ; tr supplier address: (8*oct + r)*16 + rq*8 (+64 for second half), Q = 4*(l/16)+l%4, oct = Q%8, rq = Q/8
    v_lshrrev_b32 v17, 4, v1
    v_and_b32 v18, 3, v1
    v_lshl_add_u32 v17, v17, 2, v18
    v_and_b32 v18, 7, v17
    v_lshrrev_b32 v17, 3, v17
    v_bfe_u32 v19, v1, 2, 2
    v_lshl_add_u32 v18, v18, 3, v19
    v_lshlrev_b32 v18, 4, v18
    v_lshl_add_u32 v18, v17, 3, v18
    s_add_u32 s36, s51, {YL}
    v_add_u32 v18, s36, v18
    ; store: row = 64rb + 8w + 4*(l/32) + l%4 ; col byte = 896 + 128c + 16*((l/4)%8)
    v_and_b32 v19, 3, v1
    v_lshl_add_u32 v19, v6, 2, v19
    s_lshl_b32 s36, s26, 6
    s_lshl_b32 s37, s3, 3
    s_add_u32 s36, s36, s37
    v_add_u32 v19, s36, v19
    v_mul_u32_u24 v19, 1792, v19
    v_bfe_u32 v17, v1, 2, 3
    v_lshl_add_u32 v19, v17, 4, v19
    s_lshl_b32 s36, s25, 7
    s_add_u32 s36, s36, 896
    s_waitcnt vmcnt(0)
    ds_read_b64_tr_b16 v[20:21], v18
    ds_read_b64_tr_b16 v[22:23], v18 offset:64
    s_waitcnt lgkmcnt(0)
    buffer_store_dwordx4 v[20:23], v19, s[12:15], s36 offen
    """)
    a.label('P_noy')
    a(f"""
    s_and_b32 s29, s3, 3                   ; ct
    v_bfe_u32 v7, v1, 2, 2
    v_xor_b32 v12, s29, v7
    v_lshlrev_b32 v12, 6, v12
    v_bfe_u32 v9, v1, 4, 1
    v_lshl_add_u32 v12, v9, 5, v12
    v_and_b32 v9, 3, v1
    v_lshl_add_u32 v12, v9, 3, v12
    v_lshl_add_u32 v9, v6, 2, v7
    v_lshl_add_u32 v12, v9, 8, v12
    v_add_u32 v13, {224*256}, v12          ; heads 8..15
    v_add_u32 v10, {OL}, v2
    s_lshl_b32 s36, s52, 15
    s_add_u32 s36, s36, s51
    s_add_u32 s36, s36, {WS_O}
    v_add_u32 v14, s36, v2
    v_and_b32 v11, 31, v1
    s_lshl_b32 s36, s52, 5
    v_add_u32 v11, s36, v11
    v_mul_u32_u24 v11, 1792, v11
    v_lshl_add_u32 v11, v6, 4, v11
    s_lshl_b32 s30, s53, 2
    s_add_u32 s30, s30, s29
    s_lshl_b32 s32, s30, 6
    s_cmp_lg_u32 s3, 0
    s_cbranch_scc1 P_nop2
    s_lshl_b32 s36, s41, 7
    s_add_u32 s36, s36, {F2}
    v_lshl_add_u32 v16, v1, 2, s36
    """)
    poll(a, 'PL_f2', 16, 17, mask=0xffff, sleep=2)
    a.label('P_nop2')
    a('s_barrier')
    stamp(a, 10)
    for st in range(4):
        a(f's_add_u32 m0, s51, {OL + st*8192}')
        a(f's_mov_b32 s50, {st*8192}')
        a(f'buffer_load_dwordx4 v14, s[16:19], s50 offen sc1 lds')
    a(f"""
    s_cmp_lt_u32 s30, 14
    s_cselect_b32 s31, 1, 0
    s_cmp_lt_u32 s3, 4
    s_cselect_b32 s31, s31, 0
    s_cmp_eq_u32 s31, 0
    s_cbranch_scc1 P_idle
    """)
    ACC = 16; WF = 32; OF = 160
    def wread(hd):
        for f in range(2):
            for e in range(2):
                row = 28*hd + 16*f + 8*e - (224 if hd >= 8 else 0)
                a(f'ds_read_b64_tr_b16 {v(WF + 8*hd + 4*f + 2*e, 2)}, v{13 if hd >= 8 else 12} offset:{row*256}')
    for hd in range(13): wread(hd)
    a('s_waitcnt vmcnt(0) lgkmcnt(0)\ns_barrier')
    stamp(a, 11)
    for hd in range(13, 16): wread(hd)
    def oread(st):
        for n in range(8):
            a(f'ds_read_b128 {v(OF + 32*(st%2) + 4*n, 4)}, v10 offset:{st*8192 + n*1024}')
    def mf(st):
        for n in range(8):
            c = '0' if (st == 0 and n == 0) else v(ACC, 16)
            a(f'v_mfma_f32_32x32x16_bf16 {v(ACC,16)}, {v(WF + 32*st + 4*n,4)}, {v(OF + 32*(st%2) + 4*n,4)}, {c}')
    oread(0)
    for st in range(4):
        a('s_waitcnt lgkmcnt(0)')
        if st < 3: oread(st + 1)
        mf(st)
    T = 40
    for r in range(8): a(f'v_cvt_pk_bf16_f32 v{T+r}, v{ACC+2*r}, v{ACC+2*r+1}')
    for q in range(2):
        a(f'v_permlane32_swap_b32 v{T+4*q}, v{T+4*q+2}')
        a(f'v_permlane32_swap_b32 v{T+4*q+1}, v{T+4*q+3}')
    a(f'buffer_store_dwordx4 {v(T,4)}, v11, s[12:15], s32 offen')
    a(f'buffer_store_dwordx4 {v(T+4,4)}, v11, s[12:15], s32 offen offset:32')
    a('s_branch P_fin')
    a.label('P_idle')
    a('s_waitcnt vmcnt(0)\ns_barrier')
    a('s_cmp_lg_u32 s2, 240\ns_cbranch_scc1 P_fin\ns_cmp_lg_u32 s3, 4\ns_cbranch_scc1 P_fin')
    a(f'v_lshlrev_b32 v16, 2, v1\nv_add_u32 v16, {F2 + 14*128}, v16')
    poll(a, 'PL_ep', 16, 17, mask=0xffff, sleep=2)
    a(f's_mov_b32 s36, {EPOCH}')
    signal(a, 36, 16, 17)
    a.label('P_fin')

def kernel(a):
    if STAMPS:
        a('v_mov_b32 v254, 0')
        stamp(a, 0)
    prologue(a)
    ph_front(a)
    ph_att(a)
    ph_out(a)
    if STAMPS:
        a('s_waitcnt vmcnt(0)')
        stamp(a, 12)
        a(f"""
        s_mov_b32 s18, {WS_STAMP + (1<<20)}
        s_lshl_b32 s36, s2, 3
        s_add_u32 s36, s36, s3
        s_lshl_b32 s36, s36, 6
        s_add_u32 s36, s36, {WS_STAMP}
        v_lshl_add_u32 v2, v1, 2, s36
        s_mov_b64 exec, 0xffff
        buffer_store_dword v254, v2, s[16:19], 0 offen
        s_cmp_lg_u32 s2, 100
        s_cbranch_scc1 L_end
        s_cmp_lg_u32 s3, 0
        s_cbranch_scc1 L_end
        v_readfirstlane_b32 s36, v254
        v_lshlrev_b32 v2, 2, v1
        v_subrev_u32 v254, s36, v254
        s_mov_b64 exec, 0x7ffe
        """)
        srd(a, 56, P_DBG, 256)
        a('buffer_store_dword v254, v2, s[56:59], 0 offen')
    a.label('L_end')
    a('s_endpgm')
    ph_slow(a)

def build(path):
    hdr = open(f'cdna_kernels/{NAME}.s.ref').read().split('\n')
    out = [l for l in hdr if l.startswith(';') and '@launch' not in l][:16]
    out.append(f'; @launch grid=(256,1,1) block=(512,1,1) lds={LDS_TOTAL}')
    out.append('.amdgcn_target "amdgcn-amd-amdhsa--gfx950"')
    out.append('.text')
    label = NAME + '_kernel'
    a = Asm(); kernel(a)
    txt = '\n'.join(out) + f'\n.globl {label}\n.p2align 8\n.type {label},@function\n{label}:\n' + a.finalize()
    txt += f'''.section .rodata,"a"
.p2align 6
.amdhsa_kernel {label}
  .amdhsa_next_free_vgpr 256
  .amdhsa_next_free_sgpr 102
  .amdhsa_accum_offset 256
  .amdhsa_group_segment_fixed_size 0
  .amdhsa_kernarg_size 104
  .amdhsa_user_sgpr_count 2
  .amdhsa_user_sgpr_kernarg_segment_ptr 1
  .amdhsa_system_sgpr_workgroup_id_x 1
.end_amdhsa_kernel
'''
    open(path, 'w').write(txt)

if __name__ == '__main__':
    if '--stamps' in sys.argv: STAMPS = True; sys.argv.remove('--stamps')
    path = sys.argv[1] if len(sys.argv) > 1 else f'cdna_kernels/{NAME}.s'
    build(path)
    import subprocess
    subprocess.run(['clang', '-x', 'assembler', '-target', 'amdgcn-amd-amdhsa', '-mcpu=gfx950', '-c', path, '-o', '_sz.o'], check=True)
    hdr = subprocess.run(['llvm-objdump', '-h', '_sz.o'], capture_output=True, text=True).stdout
    size = int([l for l in hdr.splitlines() if '.text' in l][0].split()[2], 16)
    CODE_KB[0] = size // 1024 - 1
    _gw[0] = 0
    build(path)
    print('code bytes', size)
```

```python
import sys, math, struct, os, re
DBG = os.environ.get('DBG', '')
sys.path.insert(0, 'work')
from asmgen import *

STAMPS = False
NAME = 'concat_heads__mha_block__ssm_conv_s4d__prompt'
S = 2048; D = 448; H = 16; DH = 28
TILEB = 56 * 512
FS = int(os.environ.get('FS', 4))
F0 = 0; F1 = 32768; F2 = 65536; EPOCH = 98304; F3 = 102400
WS_Q = 131072
WS_K = WS_Q + 64 * TILEB
WS_V = WS_K + 64 * TILEB
WS_O = WS_V + 64 * TILEB
WS_UT = WS_O + 64 * 32768
WS_YT = WS_UT + 112 * 16384
WS_END = WS_YT + 224 * 8192
WS_STAMP = 16 << 20
LDS_TOTAL = 163840
POLL_LIMIT = 20000
PRIO_IT = 3
KM_J = int(os.environ.get('KM_J', 1))
BPRE_J = int(os.environ.get('BPRE_J', 0))
A_SLEEP = int(os.environ.get('A_SLEEP', 3))
FILL_MAX = int(os.environ.get('FILL_MAX', 16))
YMOD = os.environ.get('YMOD', '')
OMOD = os.environ.get('OMOD', '')
SPREAD = int(os.environ.get('SPREAD', 1))
CODE_KB = [1]
CODE_PF = int(os.environ.get('CODE_PF', 1))
NA = int(os.environ.get('NA', 20))
PRIO_LEFT = int(os.environ.get('PRIO_LEFT', 1))
CONV_PRIO = int(os.environ.get('CONV_PRIO', 1))
PRIO_CMP = 'lt'
SCHED_C = [3, 3, 3, 1, 1]
U_ISS = int(os.environ.get('U_ISS', 0)); U_TR = int(os.environ.get('U_TR', 3)); F0_SIG = int(os.environ.get('F0_SIG', 8))
F0_TRY = (7, 10)
F0_LAG = 2
PRE_ST = int(os.environ.get('PRE_ST', 4))
CONV_T0 = 18
XMOD = os.environ.get('XMOD', '')
F1_SLEEP = 8
KG_CUT = float(os.environ.get('KG_CUT', 0.4))
LD_PER = int(os.environ.get('LD_PER', 50))

def f32bits(x): return struct.unpack('<I', struct.pack('<f', x))[0]
QSCALE = math.log2(math.e) / math.sqrt(DH)
LOG2E = math.log2(math.e)
P_X, P_W, P_WO, P_U, P_LA, P_AI, P_CR, P_CI, P_DT, P_DS, P_OUT, P_DBG, P_WS = [64 + 2*i for i in range(13)]

def stamp(a, n):
    if STAMPS:
        a('s_memrealtime s[90:91]')
        a('s_waitcnt lgkmcnt(0)')
        a(f'v_writelane_b32 v254, s90, {n}')

def srd(a, base_s, ptr_s, nbytes):
    a(f's_mov_b32 s{base_s}, s{ptr_s}')
    a(f's_and_b32 s{base_s+1}, s{ptr_s+1}, 0xffff')
    a(f's_mov_b32 s{base_s+2}, {nbytes}')
    a(f's_mov_b32 s{base_s+3}, 0x20000')

def poll(a, name, voff, tmp, mask=-1, x4=False, sleep=4):
    if mask != -1:
        a(f's_mov_b32 exec_lo, {mask & 0xffffffff}')
        a(f's_mov_b32 exec_hi, {mask >> 32}')
    a('s_mov_b32 s62, 0')
    a.label(name)
    if x4:
        a(f'buffer_load_dwordx4 {v(tmp,4)}, v{voff}, s[16:19], 0 offen sc1')
        a('s_waitcnt vmcnt(0)')
        for i in range(4): a(f'v_xor_b32 v{tmp+i}, s20, v{tmp+i}')
        a(f'v_or3_b32 v{tmp}, v{tmp}, v{tmp+1}, v{tmp+2}')
        a(f'v_or_b32 v{tmp}, v{tmp}, v{tmp+3}')
        a(f'v_cmp_ne_u32 vcc, 0, v{tmp}')
    else:
        a(f'buffer_load_dword v{tmp}, v{voff}, s[16:19], 0 offen sc1')
        a('s_waitcnt vmcnt(0)')
        a(f'v_cmp_ne_u32 vcc, s20, v{tmp}')
    a('s_nop 4')
    a(f's_cbranch_vccz {name}_ok')
    a(f's_sleep {sleep}')
    a('s_add_u32 s62, s62, 1')
    a(f's_cmp_lt_u32 s62, {POLL_LIMIT}')
    a(f's_cbranch_scc1 {name}')
    a.label(name + '_ok')
    a('s_mov_b64 exec, -1')

def signal(a, soff, vt0, vt1):
    a(f'v_mov_b32 v{vt0}, s{soff}')
    a(f'v_mov_b32 v{vt1}, s20')
    a('s_mov_b64 exec, 1')
    a(f'buffer_store_dword v{vt1}, v{vt0}, s[16:19], 0 offen sc1')
    a('s_mov_b64 exec, -1')


CV, C1 = 250, 251
def garrive(a, off):
    a('s_mov_b64 exec, 1')
    a(f'ds_add_u32 v{CV}, v{C1} offset:{off}')
    a('s_mov_b64 exec, -1')
_gw = [0]
def gwait(a, off, target, tmp):
    _gw[0] += 1; name = f'GW{_gw[0]}'
    a.label(name)
    a(f'ds_read_b32 v{tmp}, v{CV} offset:{off}')
    a('s_waitcnt lgkmcnt(0)')
    a(f'v_readfirstlane_b32 s62, v{tmp}')
    a(f's_cmp_ge_u32 s62, {target}')
    a(f's_cbranch_scc1 {name}_ok')
    a('s_sleep 1')
    a('s_add_u32 s95, s95, 1')
    a('s_cmp_lt_u32 s95, 0x200000')
    a(f's_cbranch_scc1 {name}')
    a.label(name + '_ok')

def prologue(a):
    a(f"""
    s_cmp_ge_u32 s2, 256
    s_cbranch_scc1 L_end
    s_load_dwordx16 s[64:79], s[0:1], 0
    s_load_dwordx8 s[80:87], s[0:1], 64
    s_load_dwordx2 s[88:89], s[0:1], 96
    v_and_b32 v1, 63, v0
    v_lshrrev_b32 v2, 6, v0
    v_readfirstlane_b32 s3, v2
    s_and_b32 s22, s2, 7
    s_lshr_b32 s23, s2, 3
    """)
    if CODE_PF:
        a(f"""
        s_getpc_b64 s[96:97]
        s_and_b32 s96, s96, 0xffffff00
        s_and_b32 s98, s23, 3
        s_lshl_b32 s98, s98, 3
        s_add_u32 s98, s98, s3
        s_min_u32 s98, s98, {CODE_KB[0]}
        s_lshl_b32 s98, s98, 10
        v_lshl_add_u32 v2, v1, 4, s98
        global_load_dwordx4 v[192:195], v2, s[96:97]
        """)
    a(f"""
    s_and_b32 s27, s22, 1                  ; odd
    s_lshr_b32 s24, s23, 3                 ; cl' (0..3)
    s_lshl_b32 s25, s27, 2
    s_add_u32 s25, s25, s24
    s_and_b32 s26, s23, 7                  ; rbl
    s_lshl_b32 s28, s26, 1
    s_add_u32 s28, s28, s27
    s_cmp_eq_u32 s24, 3
    s_cselect_b32 s25, 3, s25
    s_cselect_b32 s26, s28, s26
    s_lshl_b32 s24, s24, 1
    s_add_u32 s24, s24, s26
    s_lshr_b32 s28, s22, 1
    s_lshl_b32 s28, s28, 3
    s_add_u32 s26, s26, s28                ; rb
    s_mul_i32 s21, s22, 28
    s_add_u32 s21, s21, s23
    s_cmp_lt_u32 s23, 28
    s_cbranch_scc1 L_full
    s_waitcnt lgkmcnt(0)
    """)
    srd(a, 4, P_W, D * 3 * D * 2)
    a(f"""
    s_sub_u32 s36, s23, 28
    s_lshl_b32 s36, s36, 3
    s_add_u32 s36, s36, s3
    s_mul_i32 s36, s36, {14*2688}
    v_lshrrev_b32 v2, 3, v1
    v_min_u32 v4, 5, v2
    v_mul_u32_u24 v2, 2688, v2
    v_mul_u32_u24 v4, 2688, v4
    v_and_b32 v3, 7, v1
    v_lshl_add_u32 v2, v3, 4, v2
    v_lshl_add_u32 v4, v3, 4, v4
    s_add_u32 s37, s36, {TA*896 + 384}
    buffer_load_dwordx4 v[64:67], v2, s[4:7], s37 offen
    s_add_u32 s37, s37, {8*2688}
    buffer_load_dwordx4 v[68:71], v4, s[4:7], s37 offen
    v_lshrrev_b32 v2, 5, v1
    v_mul_u32_u24 v2, 2688, v2
    v_and_b32 v3, 31, v1
    v_lshl_add_u32 v2, v3, 4, v2
    s_mul_i32 s37, s27, 384
    s_add_u32 s36, s36, s37
    """)
    for n, ty in enumerate((TB, TC)):
        for i in range(7):
            a(f's_add_u32 s37, s36, {ty*896 + 2*i*2688}')
            a(f'buffer_load_dwordx4 {v(72+28*n+4*i,4)}, v2, s[4:7], s37 offen')
    srd(a, 16, P_WS, WS_END)
    srd(a, 12, P_OUT, S * 2 * D * 2)
    a(f"""
    s_mov_b32 s36, {EPOCH}
    buffer_load_dword v253, off, s[16:19], s36 sc1
    s_waitcnt vmcnt(0)
    v_readfirstlane_b32 s20, v253
    s_add_u32 s20, s20, 1
    {'s_endpgm' if 'gemmonly' in DBG else ''}
    s_sleep 60
    s_sub_u32 s36, s23, 28
    s_lshl_b32 s36, s36, 3
    s_add_u32 s36, s36, s3
    s_mul_i32 s36, s36, 12544
    v_lshl_add_u32 v2, v1, 4, s36
    """)
    srd(a, 8, P_WO, D * D * 2)
    for i in range(13):
        a(f's_mov_b32 s36, {1024*i}')
        a(f'buffer_load_dwordx4 {v(64+4*i,4)}, v2, s[8:11], s36 offen')
    a("""
    s_waitcnt vmcnt(0)
    """)
    att_poll_addr(a, 176)
    a.label('L_lite0')
    su, _ = att_pre_groups()
    emit_groups(a, su)
    a('s_cmp_lg_u32 s3, 0\ns_cbranch_scc1 L_lite1')
    poll(a, 'PL_f1a', 176, 180, mask=1 << 63, x4=True, sleep=8)
    poll(a, 'PL_f1b', 176, 180, x4=True, sleep=2)
    a.label('L_lite1')
    a('s_barrier')
    a('s_branch L_pre')
    a.label('L_full')

RING0 = 65536; SLOT = 16384; NS = 4; DEPTH = 3
def slot_of(j): return (j + 2) % NS
XYP = 1056; XYCH = 53 * XYP
GP = 8384; GCH = 260 * 16
L_T2 = 57344; TP = 328; T2CH = 57344
L_CTL = L_T2 + 8 * TP * 2
L_EP = L_CTL + 8
L_G = 62976
L_U = 131072; UCH = 96 * 80
L_TAB = 147456
L_PART = 0; PSRC = 1024; POWN = 4096
assert L_CTL + 16 <= L_G and L_G + 4*GP <= 98304 and L_U + 2*UCH <= L_TAB and XYCH <= L_T2

def cmul(o, d, x, e, t):
    o.append(f'v_pk_mul_f32 {v(t,2)}, {v(x,2)}, {v(e,2)} op_sel:[0,0] op_sel_hi:[1,0]')
    o.append(f'v_pk_fma_f32 {v(d,2)}, {v(x,2)}, {v(e,2)}, {v(t,2)} op_sel:[1,1,0] op_sel_hi:[0,1,1] neg_lo:[1,0,0]')

def lines(txt): return [l.strip() for l in txt.split('\n') if l.strip()]

_KM = {}
def _mk():
    pairs_pre = [20, 22, 24, 26, 28, 30, 32, 34, 36, 38, 40, 42, 48, 50, 52, 54]
    for i, r in enumerate(pairs_pre): _KM[r] = 64 + 2*i; _KM[r+1] = 65 + 2*i
    for i, r in enumerate([2, 3, 4, 5, 6, 7, 8, 9]): _KM[r] = 176 + i
    for i, r in enumerate([68, 69, 70, 71]): _KM[r] = 184 + i
    for i, r in enumerate(range(56, 64)): _KM[r] = 96 + i
_mk()
def kmap(l, ch):
    M = _KM
    def one(m): return f'v{M.get(int(m.group(1)), int(m.group(1)))}'
    def rng(m):
        lo = int(m.group(1)); hi = int(m.group(2)); n = M.get(lo, lo); return f'v[{n}:{n+hi-lo}]'
    l = re.sub(r'v\[(\d+):(\d+)\]', rng, l)
    return re.sub(r'\bv(\d+)\b', one, l)

def kgen(ch):
    P = 240
    pre = lines(f"""
    v_mov_b32 v4, s38
    v_mul_f32 v4, {f32bits(LOG2E)}, v4
    v_exp_f32 v4, v4
    v_lshlrev_b32 v2, 16, v{P}
    v_lshlrev_b32 v3, 16, v{P+1}
    v_lshlrev_b32 v20, 16, v{P+2}
    v_lshlrev_b32 v21, 16, v{P+3}
    v_cvt_pk_bf16_f32 v4, v4, v4
    v_mul_f32 v2, {f32bits(LOG2E)}, v2
    v_exp_f32 v2, v2
    v_and_b32 v4, 0xffff0000, v4
    v_mul_f32 v3, v3, v4
    v_cvt_pk_bf16_f32 v2, v2, v2
    v_and_b32 v2, 0xffff0000, v2
    v_mul_f32 v2, v2, v4
    v_mul_f32 v2, {f32bits(-LOG2E)}, v2
    v_mul_f32 v3, {f32bits(1/(2*math.pi))}, v3
    v_add_f32 v4, v4, v4
    v_mul_f32 v20, v20, v4
    v_mul_f32 v21, v21, v4
    """)
    E1, E8, E256, E2, E4, E16, E32 = 22, 24, 26, 28, 30, 32, 34
    for (E, p) in ((E1, 1.0), (E8, 8.0), (E256, 256.0)):
        pre += lines(f"""
        v_mul_f32 v6, {f32bits(p)}, v2
        v_mul_f32 v7, {f32bits(p)}, v3
        v_exp_f32 v6, v6
        v_fract_f32 v7, v7
        v_cos_f32 v8, v7
        v_sin_f32 v9, v7
        v_mul_f32 v{E}, v6, v8
        v_mul_f32 v{E+1}, v6, v9
        """)
    cmul(pre, E2, E1, E1, 6); cmul(pre, E16, E8, E8, 8)
    cmul(pre, E4, E2, E2, 6); cmul(pre, E32, E16, E16, 8)
    Y = [48, 50, 52, 54]
    def put(o, row, x, r, neg=False):
        o.append(f'v_cvt_pk_bf16_f32 v{r}, v{x}, {"-" if neg else ""}v{x+1}')
        o.append(f'ds_write_addtid_b32 v{r} offset:{row*XYP}')
    chains = []
    for c in range(4):
        o = []
        cur = {0: None, 1: E8, 2: E16, 3: Y[3]}[c]
        if c == 3: cmul(o, Y[3], E16, E8, 36 + 2*c)
        for step in range(8):
            if cur is None:
                o.append(f'v_mov_b32 v{44+c}, 0x3f80')
                o.append(f'ds_write_addtid_b32 v{44+c} offset:{21*XYP}')
                cur = E32; continue
            put(o, 21 + 4*step + c, cur, 44 + c)
            if step < 7: cmul(o, Y[c], cur, E32, 36 + 2*c); cur = Y[c]
        chains.append(o)
    XC, GC, SD, SD2 = 56, 58, 60, 62
    o = []
    put(o, 0, 20, 68, True)
    for step in range(7):
        cmul(o, XC, 20 if step == 0 else XC, E1, 6); put(o, step + 1, XC, 68, True)
    chains.append(o)
    grow = {1: 8, 2: 12, 3: 14, 4: 16, 5: 17, 6: 18, 7: 19, 8: 20}
    G = [58, 10, 12, 58, 58, 58, 58, 58]
    G = [10, 12, 18, 58, 58, 58, 58, 58]
    o = []
    for step in range(8):
        cmul(o, G[step], 20 if step == 0 else G[step-1], E256, 8); put(o, grow[step+1], G[step], 69, True)
    chains.append(o)
    o = [None]*12
    cmul(o, SD, G[0], E2, 70); put(o, 9, SD, 5, True)
    cmul(o, SD2, G[0], E4, 70); put(o, 10, SD2, 5, True)
    cmul(o, SD, SD2, E2, 70); put(o, 11, SD, 5, True)
    cmul(o, SD2, G[1], E4, 70); put(o, 13, SD2, 5, True)
    cmul(o, SD, G[2], E4, 70); put(o, 15, SD, 5, True)
    chains.append(o)
    body = []
    for k in range(max(len(c) for c in chains)):
        for c in chains:
            if k < len(c) and c[k] is not None: body.append(c[k])
    return [kmap(l, ch) for l in pre], [kmap(l, ch) for l in body]

def kmfma():
    FA = 112; FB = 144; KA = 176; NBF = 8
    o = lines(f"""
    v_and_b32 v182, 255, v0
    v_lshlrev_b32 v182, 4, v182
    v_add_u32 v182, {L_TAB + 3*4096}, v182
    ds_read_b128 v[184:187], v182
    v_and_b32 v182, 15, v1
    v_lshrrev_b32 v183, 4, v1
    v_mul_u32_u24 v182, {XYP}, v182
    v_lshl_add_u32 v182, v183, 4, v182
    v_add_u32 v183, s100, v182
    v_add_u32 v182, s99, v182
    """)
    LA = 5
    for st in range(16 + LA):
        if st < 16:
            o.append(f'ds_read_b128 {v(FA+4*(st%NBF),4)}, v182 offset:{st*64}')
            o.append(f'ds_read_b128 {v(FB+4*(st%NBF),4)}, v183 offset:{st*64}')
        if st >= LA:
            k = st - LA
            o.append(f's_waitcnt lgkmcnt({2*min(LA, 15-k)})')
            o.append(f'v_mfma_f32_16x16x32_bf16 {v(KA,4)}, {v(FA+4*(k%NBF),4)}, {v(FB+4*(k%NBF),4)}, {"0" if k == 0 else v(KA,4)}')
    o += lines(f"""
    v_add_u32 v184, s36, v184
    v_add_u32 v185, s36, v185
    v_add_u32 v186, s36, v186
    v_add_u32 v187, s36, v187
    v_and_b32 v182, 7, v1
    v_mul_u32_u24 v182, {2*TP}, v182
    v_add_u32 v182, s36, v182
    v_mov_b32 v183, 0
    ds_write_b16 v182, v183 offset:{L_T2 + 2*(TP-1)}
    v_cvt_pk_bf16_f32 v{KA+4}, v{KA}, v{KA+1}
    v_cvt_pk_bf16_f32 v{KA+5}, v{KA+2}, v{KA+3}
    ds_write_b16 v184, v{KA+4}
    ds_write_b16_d16_hi v185, v{KA+4}
    ds_write_b16 v186, v{KA+5}
    ds_write_b16_d16_hi v187, v{KA+5}
    s_waitcnt lgkmcnt(0)
    """)
    return o

def subroutines(a):
    pre, body = kgen(0)
    for name, code in (('SUB_KPRE', pre), ('SUB_KBODY', ['s_lshl_b32 m0, s29, 8', 's_nop 0'] + body), ('SUB_KMFMA', kmfma())):
        a.label(name)
        for l in code: a(l)
        a('s_setpc_b64 s[96:97]')
def call(a, name): a(f's_call_b64 s[96:97], {name}')

def gbuild(a, ch, copies):
    g = 64; d = 80
    lo = min(copies); hi = max(copies) + 8
    for i in range(lo, hi): a(f'ds_read_u16 v{g+i}, v{224+i} offset:{ch*T2CH}')
    a('s_waitcnt lgkmcnt(0)')
    for t in copies:
        for i in range(4): a(f'v_lshl_or_b32 v{d+4*t+i}, v{g+t+2*i+1}, 16, v{g+t+2*i}')
        a(f'ds_write_b128 v249, {v(d+4*t,4)} offset:{t*GP + ch*GCH}')

def gtabs(a):
    a(f"""
    v_and_b32 v14, 255, v0
    v_lshlrev_b32 v249, 4, v14
    v_add_u32 v15, {L_TAB}, v249
    v_add_u32 v249, {L_G}, v249
    """)
    for q in range(3): a(f'ds_read_b128 {v(224+4*q,4)}, v15 offset:{q*4096}')

K_, V_, Q_ = 1, 2, 0
TA, TB, TC = Q_, K_, V_
stages = [[('x',0),(TA,0)], [('x',1),('x',2)], [(TA,1),(TA,2)]]
for _i in range(3, 7): stages.append([('x', _i), (TA, _i)])
_rest = [(TB, i) for i in range(7)] + [(TC, i) for i in range(7)]
for _i in range(7): stages.append(_rest[2*_i:2*_i+2])
NST = len(stages)

def ph_front(a):
    a(f"""
    s_mov_b32 s95, 0
    v_mov_b32 v{CV}, {L_CTL}
    v_mov_b32 v{C1}, 1
    s_lshl_b32 s37, s21, 10
    v_lshl_add_u32 v248, v0, 1, s37
    s_lshl_b32 s36, s21, 2
    v_lshrrev_b32 v3, 3, v1
    v_and_b32 v4, 7, v1
    s_and_b32 s29, s3, 3                   ; lw
    s_bfe_u32 s63, s3, 0x10001
    s_and_b32 s61, s3, 1
    s_mul_i32 s99, s63, {16*XYP}
    s_mul_i32 s100, s61, {16*XYP}
    s_add_u32 s100, s100, {21*XYP}
    s_cmp_lt_u32 s3, 4
    s_cbranch_scc1 Q_comp
    """)
    loader_waves(a)
    a.label('Q_comp')
    comp_waves(a)

def params(a, vo=248):
    for i in range(4):
        srd(a, 56, P_LA + 2*i, D * 256 * 2)
        a(f'buffer_load_ushort v{240+i}, v{vo}, s[56:59], 0 offen nt')
    a(f"""
    s_lshl_b32 s36, s21, 2
    s_add_u32 s{P_DT}, s{P_DT}, s36
    s_addc_u32 s{P_DT+1}, s{P_DT+1}, 0
    s_add_u32 s{P_DS}, s{P_DS}, s36
    s_addc_u32 s{P_DS+1}, s{P_DS+1}, 0
    s_load_dword s38, s[{P_DT}:{P_DT+1}], 0
    s_load_dword s39, s[{P_DS}:{P_DS+1}], 0
    """)

UV = [220, 221, 222, 252, 255]
def loader_waves(a):
    a(f"""
    s_sub_u32 s28, s24, 7
    s_cmp_ge_u32 s24, 7
    s_cselect_b32 s27, s28, s24            ; rho
    s_lshl_b32 s30, s29, 4
    v_add_u32 v5, s30, v3
    v_lshrrev_b32 v6, 1, v5
    v_and_b32 v6, 7, v6
    v_xor_b32 v6, v6, v4
    v_lshlrev_b32 v6, 4, v6
    s_lshl_b32 s30, s26, 6
    v_add_u32 v7, s30, v5
    v_mul_u32_u24 v7, 896, v7
    v_add_u32 v244, v7, v6
    v_xor_b32 v6, 64, v6
    v_add_u32 v245, v7, v6
    v_add_u32 v245, 7168, v245
    v_lshrrev_b32 v6, 1, v5
    v_and_b32 v6, 1, v6
    v_lshlrev_b32 v6, 2, v6
    v_xor_b32 v6, v6, v4
    v_lshlrev_b32 v6, 4, v6
    v_mul_u32_u24 v7, 2688, v5
    v_add_u32 v246, v7, v6
    s_lshl_b32 s30, s25, 7
    v_add_u32 v246, s30, v246
    v_add_u32 v247, 21504, v246
    s_lshl_b32 s32, s29, 11
    s_lshl_b32 s40, s27, 7
    s_mul_i32 s48, s27, {64*2688}
    s_waitcnt lgkmcnt(0)
    """)
    srd(a, 8, P_X, S * D * 2)
    srd(a, 4, P_W, D * 3 * D * 2)
    def issue(j):
        for half, (kind, i) in enumerate(stages[j]):
            base = RING0 + slot_of(j) * SLOT + half * 8192
            for e in range(2):
                a(f's_add_u32 m0, s32, {base + e*1024}')
                if kind == 'x':
                    a(f'buffer_load_dwordx4 v{244+e}, s[8:11], s{40+i} offen {XMOD} lds')
                else:
                    so = f's{48+i}'
                    if kind:
                        so = 's33'
                        if e == 0: a(f's_add_u32 s33, s{48+i}, {kind*896}')
                    a(f'buffer_load_dwordx4 v{246+e}, s[4:7], {so} offen lds')
    vm = []
    def waitfor(tag):
        last = max(i for i, t in enumerate(vm) if t == tag)
        a(f's_waitcnt vmcnt({len(vm) - 1 - last})')
    params(a); vm += ['p']*4
    issue(0); vm += [0]*4
    for i in range(1, 7):
        if i == 3: issue(1); vm += [1]*4
        a(f's_add_u32 s27, s27, 1\ns_cmp_eq_u32 s27, 7\ns_cselect_b32 s27, 0, s27\ns_lshl_b32 s{40+i}, s27, 7\ns_mul_i32 s{48+i}, s27, {64*2688}')
    srd(a, 16, P_WS, WS_END)
    srd(a, 12, P_OUT, S * 2 * D * 2)
    t = Asm()
    t(f"""
    s_mov_b32 s101, {L_G + 4096}
    v_and_b32 v2, 3, v1
    v_mul_u32_u24 v2, {GP}, v2
    v_bfe_u32 v3, v1, 2, 2
    v_lshl_add_u32 v2, v3, 4, v2
    v_bfe_u32 v3, v1, 4, 1
    v_mul_u32_u24 v3, {GCH}, v3
    v_add3_u32 v217, v2, v3, s101
    s_lshl_b32 s36, s21, 1
    s_lshr_b32 s56, s36, 2
    s_lshl_b32 s56, s56, 14
    s_and_b32 s36, s36, 3
    s_lshl_b32 s36, s36, 4
    s_add_u32 s56, s56, s36
    s_add_u32 s56, s56, {WS_UT}
    s_mov_b32 s92, s56
    """)
    for k in range(5):
        t(f"""
        v_add_u32 v2, {64*k}, v1
        v_mul_u32_u24 v3, 205, v2
        v_lshrrev_b32 v3, 10, v3
        v_mul_u32_u24 v4, 5, v3
        v_sub_u32 v4, v2, v4
        v_min_u32 v4, 3, v4
        v_lshl_add_u32 v3, v3, 2, v4
        v_lshlrev_b32 v{UV[k]}, 6, v3
        """)
    t(f"""
    s_lshr_b32 s36, s21, 5
    s_lshl_b32 s36, s36, {FS+5}
    v_and_b32 v17, 31, v1
    v_lshl_add_u32 v223, v17, {FS}, s36
    v_lshrrev_b32 v18, 5, v1
    v_and_b32 v19, 3, v17
    v_sub_u32 v19, 3, v19
    v_mul_u32_u24 v19, {GP}, v19
    v_lshrrev_b32 v2, 2, v17
    v_lshlrev_b32 v3, 1, v18
    v_sub_u32 v2, v3, v2
    v_lshl_add_u32 v19, v2, 3, v19
    s_mul_i32 s36, s61, {GCH}
    s_lshl_b32 s56, s63, 10
    s_sub_u32 s36, s36, s56
    s_add_u32 s36, s36, {L_G + 8*511 - 32*94}
    v_add_u32 v218, s36, v19
    v_mul_u32_u24 v2, 80, v17
    v_lshl_add_u32 v2, v18, 4, v2
    s_mul_i32 s36, s61, {UCH}
    s_mul_i32 s56, s63, {16*80}
    s_sub_u32 s36, s36, s56
    s_add_u32 s36, s36, {L_U + 17*80}
    v_add_u32 v219, s36, v2
    v_mov_b64 v[32:33], 0
    v_mov_b64 v[34:35], 0
    v_and_b32 v14, 255, v0
    v_lshlrev_b32 v36, 4, v14
    v_add_u32 v36, {L_U}, v36
    v_cmp_gt_u32 vcc, 160, v14
    s_mov_b64 exec, vcc
    ds_write_b128 v36, v[32:35]
    ds_write_b128 v36, v[32:35] offset:{UCH}
    s_mov_b64 exec, -1
    ds_write2_b32 v{CV}, v32, v33 offset0:1 offset1:3
    ds_write_b32 v{CV}, v32
    """)
    for l in t.lines: a(l)
    a('s_waitcnt lgkmcnt(0)')
    for j in range(2, PRE_ST): issue(j); vm += [j]*4
    issued = max(2, PRE_ST)
    for j in range(NST):
        waitfor(j)
        if j == 0: stamp(a, 13)
        a('s_barrier')
        if j == 0: stamp(a, 1)
        if 'gemmonly' in DBG and j >= 5: stamp(a, j - 2)
        while issued < NST and issued <= j + DEPTH:
            issue(issued); vm += [issued]*4; issued += 1
        if j == BPRE_J:
            a('s_and_b32 s38, s38, 0xffff0000')
            call(a, 'SUB_KPRE')
        if j == 11:
            a(f'ds_read_b32 v2, v{CV} offset:8')
            gtabs(a)
            a('s_waitcnt lgkmcnt(0)\nv_readfirstlane_b32 s20, v2')
    a('s_cmp_eq_u32 s3, 4\ns_cselect_b32 s60, 1, 0\ns_cbranch_scc0 Q_nof0a')
    a('buffer_load_dwordx4 v[28:31], v223, s[16:19], 0 offen sc1')
    a.label('Q_nof0a')
    call(a, 'SUB_KBODY')
    stamp(a, 2)
    if 'gemmonly' in DBG: a('s_branch P_fin')
    def nop(): pass
    def udma():
        a('s_add_u32 s93, s92, 16')
        for ch in range(2):
            for k in range(5):
                a(f's_mov_b32 m0, {L_U + 32*80 + ch*UCH + 1024*k}')
                a(f'buffer_load_dwordx4 v{UV[k]}, s[16:19], s{92+ch} offen sc1 lds')
    def look(tag, last=False):
        a(f's_cmp_eq_u32 s60, 0\ns_cbranch_scc1 Q_lk{tag}')
        if last:
            poll(a, 'PL_f0', 223, 28, x4=True, sleep=1)
        else:
            a('s_waitcnt vmcnt(0)')
            for i in range(4): a(f'v_xor_b32 v{28+i}, s20, v{28+i}')
            a('v_or3_b32 v28, v28, v29, v30\nv_or_b32 v28, v28, v31\nv_cmp_ne_u32 vcc, 0, v28')
            a(f's_nop 4\ns_cbranch_vccz Q_lg{tag}')
            a('buffer_load_dwordx4 v[28:31], v223, s[16:19], 0 offen sc1')
            a(f's_branch Q_lk{tag}')
            a.label(f'Q_lg{tag}')
        a('s_call_b64 s[96:97], Q_udma')
        a.label(f'Q_lk{tag}')
    look('a')
    a('s_waitcnt lgkmcnt(0)\ns_barrier')
    stamp(a, 3)
    a(f's_mov_b32 s36, {T2CH}')
    call(a, 'SUB_KMFMA')
    a('s_barrier')
    stamp(a, 14)
    a('s_mov_b32 exec_hi, 0\nds_write_b128 v217, v[32:35]\ns_mov_b32 exec_hi, -1')
    gbuild(a, 1, (2, 3))
    a('s_waitcnt lgkmcnt(0)\ns_barrier')
    a('s_cmp_lg_u32 s3, 4\ns_cbranch_scc1 Q_uw')
    look('c', True)
    a('s_waitcnt vmcnt(0)')
    a(f'ds_write_b32 v{CV}, v{C1}')
    a('s_branch Q_ug')
    a.label('Q_uw')
    gwait(a, 0, 1, 2)
    a.label('Q_ug')
    stamp(a, 4)
    if CONV_PRIO: a('s_setprio 1')
    SC = 4; sc = [0]
    def sarr():
        a('s_waitcnt lgkmcnt(0)'); garrive(a, SC); sc[0] += 4
    Y0, Y1 = 176, 192
    FR = 32; NBUF = 4
    def boff(n): return (n // 2) * 80 + (n % 2) * 32
    def ld(t):
        b = FR + 16 * (t % NBUF); ao = 32*(31-t)
        return [f'ds_read_b64 {v(b,2)}, v218 offset:{ao + 2048}',
                f'ds_read_b64 {v(b+2,2)}, v218 offset:{ao + 2056}',
                f'ds_read_b128 {v(b+4,4)}, v219 offset:{boff(31-t)}',
                f'ds_read_b128 {v(b+8,4)}, v219 offset:{boff(31-t) + 2560}',
                f'ds_read_b64 {v(b+12,2)}, v218 offset:{ao}',
                f'ds_read_b64 {v(b+14,2)}, v218 offset:{ao + 8}']
    def mm(t, first):
        b = FR + 16 * (t % NBUF)
        return [f'v_mfma_f32_32x32x16_bf16 {v(Y0,16)}, {v(b,4)}, {v(b+4,4)}, {"0" if first else v(Y0,16)}',
                f'v_mfma_f32_32x32x16_bf16 {v(Y1,16)}, {v(b,4)}, {v(b+8,4)}, {"0" if first else v(Y1,16)}',
                f'v_mfma_f32_32x32x16_bf16 {v(Y1,16)}, {v(b+12,4)}, {v(b+4,4)}, {v(Y1,16)}']
    for l in ld(0) + ld(1): a(l)
    t_ = Asm(); ssm_epi_setup(t_)
    t_(f's_mul_i32 s36, s29, {PSRC}\ns_add_u32 s36, s36, {L_PART}\nv_lshl_add_u32 v216, v1, 4, s36')
    fillA = [[l] for l in t_.lines]
    su, fillB = att_pre_groups()
    fillA += su
    T0 = CONV_T0
    def take(q, k):
        for _ in range(k):
            if q:
                for l in q.pop(0): a(l)
    perA = -(-len(fillA) // (3*T0)); perB = -(-len(fillB) // (3*(30 - T0)))
    for t in range(32):
        if t == T0:
            gwait(a, 12, 1, 2)
        else:
            a(f's_waitcnt lgkmcnt({6 if t < 31 else 0})')
        L = ld(t + 2) if t + 2 < 32 else []
        M = mm(t, t == 0)
        q, per = (fillA, perA) if t < T0 else (fillB, perB)
        a(M[0])
        for l in L[:2]: a(l)
        take(q, per)
        a(M[1])
        for l in L[2:4]: a(l)
        take(q, per)
        a(M[2])
        for l in L[4:]: a(l)
        take(q, per)
    assert not fillA and not fillB
    a('s_setprio 1')
    for own in range(8):
        a(f'ds_write_b128 v216, {v(Y0 + 4*own, 4)} offset:{own*POWN}')
    sarr()
    emit_groups(a, att_zero())
    gwait(a, SC, sc[0], 2)
    stamp(a, 5)
    ssm_epi_reads(a)
    sarr()
    ssm_epi(a)
    gwait(a, SC, sc[0], 2)
    a('s_branch L_att')
    a.label('Q_udma')
    udma()
    a('s_mov_b32 s60, 0\ns_setpc_b64 s[96:97]')

def comp_waves(a):
    XF = 64; ACC = {K_: 176, V_: 192, Q_: 208}; WB = [[8 + 4*i for i in range(8)], [224 + 4*i for i in range(4)] + [40 + 4*i for i in range(4)]]
    a(f"""
    s_lshl_b32 s28, s3, 1
    v_xor_b32 v5, s28, v4
    v_lshlrev_b32 v5, 4, v5
    s_lshl_b32 s30, s26, 6
    s_lshl_b32 s31, s3, 4
    s_add_u32 s30, s30, s31
    v_add_u32 v6, s30, v3
    v_mul_u32_u24 v6, 896, v6
    s_lshl_b32 s31, s25, 7
    v_add_u32 v6, s31, v6
    v_add_u32 v246, v6, v5
    v_xor_b32 v5, 16, v5
    v_add_u32 v6, v6, v5
    v_add_u32 v247, 7168, v6
    s_and_b32 s31, s3, 1
    s_lshl_b32 s31, s31, 11
    s_lshr_b32 s32, s3, 1
    s_mul_i32 s32, s32, {UCH}
    s_add_u32 s31, s31, s32
    s_add_u32 s31, s31, {L_U + 2560}
    s_mov_b32 s32, s31
    s_waitcnt lgkmcnt(0)
    """)
    params(a)
    srd(a, 16, P_WS, WS_END)
    a(f"""
    s_cmp_lg_u32 s3, 0
    s_cbranch_scc1 Q_noep0
    s_mov_b32 s33, {EPOCH}
    buffer_load_dword v253, off, s[16:19], s33 sc1
    """)
    a.label('Q_noep0')
    srd(a, 12, P_OUT, S * 2 * D * 2)
    a(f"""
    v_and_b32 v5, 1, v1
    v_bfe_u32 v6, v1, 1, 1
    v_lshrrev_b32 v7, 4, v1
    v_add_u32 v2, s28, v5
    v_xor_b32 v7, v7, v2
    v_lshlrev_b32 v7, 4, v7
    v_lshl_add_u32 v7, v6, 3, v7
    v_bfe_u32 v6, v1, 2, 2
    v_lshl_add_u32 v6, v5, 3, v6
    v_lshl_add_u32 v7, v6, 7, v7
    v_add_u32 v249, s31, v7
    v_xor_b32 v252, 64, v249
    s_lshl_b32 s31, s25, 18
    s_lshl_b32 s33, s26, 9
    s_add_u32 s31, s31, s33
    s_lshl_b32 s33, s3, 7
    s_add_u32 s31, s31, s33
    s_add_u32 s31, s31, {WS_UT}
    v_lshlrev_b32 v255, 14, v3
    v_lshl_add_u32 v255, v4, 4, v255
    v_add_u32 v255, s31, v255
    v_lshlrev_b32 v6, 3, v0
    v_sub_u32 v6, 2047, v6
    v_mov_b32 v17, {L_T2}
    v_mov_b32 v18, {TP}
    v_lshlrev_b32 v19, 4, v0
    v_add_u32 v19, {L_TAB}, v19
    s_mov_b32 s36, 0
    """)
    a.label('Q_tab')
    for i in (0, 2):
        a(f"""
        v_subrev_u32 v7, {i}, v6
        v_subrev_u32 v8, {i+1}, v6
        v_cvt_f32_i32 v2, v7
        v_cvt_f32_i32 v5, v8
        v_cvt_pk_bf16_f32 v2, v2, v5
        v_and_b32 v5, 0xffff0000, v2
        v_lshlrev_b32 v2, 16, v2
        v_cvt_i32_f32 v2, v2
        v_cvt_i32_f32 v5, v5
        v_and_b32 v7, 7, v2
        v_and_b32 v8, 7, v5
        v_ashrrev_i32 v2, 3, v2
        v_ashrrev_i32 v5, 3, v5
        v_mad_u32_u24 v2, v7, v18, v2
        v_mad_u32_u24 v5, v8, v18, v5
        v_lshl_add_u32 v{64+i}, v2, 1, v17
        v_lshl_add_u32 v{65+i}, v5, 1, v17
        """)
    a(f"""
    ds_write_b128 v19, v[64:67]
    v_add_u32 v19, 4096, v19
    v_subrev_u32 v6, 4, v6
    s_add_u32 s36, s36, 1
    s_cmp_lt_u32 s36, 3
    s_cbranch_scc1 Q_tab
    v_and_b32 v17, 15, v1
    """)
    ix = lambda p: (p & 7) * TP + (p >> 3)
    def pk(b, s1, s2): assert b < 4096 and s1 < 1024 and s2 < 1024; return b | (s1 << 12) | (s2 << 22)
    t0 = [pk(0, TP, 2*TP), pk(4*TP, TP, 2*TP), None, None]
    a('s_cmp_eq_u32 s63, 0')
    ptab = {0: [[0,1,2,3],[4,5,6,7],[256,258,260,262],[512,516,768,772]],
            1: [[1024,1280,1536,1792],[2048,2304,2304,2304],[2304]*4,[2304]*4]}
    for g in range(4):
        lo = lambda at: ix(ptab[at][g][0]) | (ix(ptab[at][g][1]) << 16)
        hi = lambda at: ix(ptab[at][g][2]) | (ix(ptab[at][g][3]) << 16)
        a(f's_mov_b32 exec_lo, {0xffff << (16*(g%2)) if g < 2 else 0}')
        a(f's_mov_b32 exec_hi, {0xffff << (16*(g%2)) if g >= 2 else 0}')
        a(f's_mov_b32 s36, {lo(1)}\ns_cselect_b32 s36, {lo(0)}, s36\nv_mov_b32 v68, s36')
        a(f's_mov_b32 s36, {hi(1)}\ns_cselect_b32 s36, {hi(0)}, s36\nv_mov_b32 v70, s36')
    a(f"""
    s_mov_b64 exec, -1
    s_lshl_b32 s36, s61, 5
    s_add_u32 s36, s36, {L_T2}
    v_lshl_add_u32 v18, v17, 1, s36
    v_lshrrev_b32 v69, 16, v68
    v_lshrrev_b32 v71, 16, v70
    v_and_b32 v68, 0xffff, v68
    v_and_b32 v70, 0xffff, v70
    v_lshl_add_u32 v68, v68, 1, v18
    v_lshl_add_u32 v69, v69, 1, v18
    v_lshl_add_u32 v70, v70, 1, v18
    v_lshl_add_u32 v71, v71, 1, v18
    ds_write_b128 v19, v[68:71]
    s_and_b32 s27, s3, 1                   ; rt
    s_lshr_b32 s30, s3, 1                  ; cg
    v_and_b32 v3, 31, v1
    v_lshrrev_b32 v4, 5, v1
    s_lshl_b32 s31, s27, 5
    v_add_u32 v5, s31, v3
    v_lshrrev_b32 v6, 1, v5
    v_and_b32 v6, 7, v6
    v_lshlrev_b32 v7, 7, v5
    v_add_u32 v7, {RING0}, v7
    """)
    for st in range(4):
        a(f"""
        v_add_u32 v{56+st}, {2*st}, v4
        v_xor_b32 v{56+st}, v{56+st}, v6
        v_lshl_add_u32 v{56+st}, v{56+st}, 4, v7
        """)
    a(f"""
    v_and_b32 v6, 3, v1
    v_lshlrev_b32 v6, 3, v6
    v_bfe_u32 v7, v1, 4, 1
    v_lshl_add_u32 v6, v7, 5, v6
    s_lshl_b32 s31, s30, 6
    v_add_u32 v6, s31, v6
    v_bfe_u32 v7, v1, 3, 1
    v_lshlrev_b32 v7, 6, v7
    v_xor_b32 v6, v6, v7
    v_bfe_u32 v7, v1, 2, 2
    v_lshl_add_u32 v7, v4, 3, v7
    v_lshl_add_u32 v60, v7, 7, v6
    v_add_u32 v60, {RING0}, v60
    s_lshl_b32 s31, s26, 1
    s_add_u32 s31, s31, s27
    s_mul_i32 s31, s31, {TILEB}
    s_lshl_b32 s33, s25, 3
    s_lshl_b32 s34, s30, 2
    s_add_u32 s33, s33, s34
    s_lshl_b32 s34, s33, 9
    s_add_u32 s34, s34, s31
    v_lshlrev_b32 v61, 4, v1
    v_add_u32 v61, s34, v61
    s_lshl_b32 s34, s33, 7
    s_add_u32 s34, s34, s31
    v_mul_u32_u24 v62, 7168, v4
    v_lshl_add_u32 v62, v3, 4, v62
    v_add_u32 v62, s34, v62
    s_mov_b32 s35, {f32bits(QSCALE)}
    s_lshl_b32 s60, s25, {FS+5}
    s_lshl_b32 s61, s26, {FS}
    s_add_u32 s60, s60, s61
    s_lshl_b32 s61, s3, 2
    s_add_u32 s60, s60, s61
    v_mov_b32 v63, {L_EP}
    s_cmp_lg_u32 s3, 0
    s_cbranch_scc1 Q_noep
    s_waitcnt vmcnt(0)
    v_add_u32 v253, 1, v253
    ds_write_b32 v63, v253
    """)
    a.label('Q_noep')
    a('s_waitcnt vmcnt(0) lgkmcnt(0)')
    a('s_lshl_b32 s38, s38, 16')
    call(a, 'SUB_KPRE'); call(a, 'SUB_KBODY')
    a('s_waitcnt lgkmcnt(0)')
    stamp(a, 13)
    def reads(j):
        sb = slot_of(j) * SLOT
        n = 0; o = []
        for half, (kind, i) in enumerate(stages[j]):
            base = sb + half * 8192
            if kind == 'x':
                for st in range(4):
                    o.append(f'ds_read_b128 {v(XF + 16*i + 4*st, 4)}, v{56 + st} offset:{base}')
            else:
                for st in range(4):
                    r = WB[j % 2][n]; n += 1
                    for e in range(2):
                        o.append(f'ds_read_b64_tr_b16 {v(r + 2*e, 2)}, v60 offset:{base + (16*st + 4*e)*128}')
        return o
    started = set()
    def epilogue(kind):
        acc = ACC[kind]; out = []
        if kind == Q_:
            for r in range(16): out.append(f'v_mul_f32 v{acc+r}, s35, v{acc+r}')
        for r in range(8): out.append(f'v_cvt_pk_bf16_f32 v{acc+r}, v{acc+2*r}, v{acc+2*r+1}')
        T = acc
        if kind == V_:
            out.append(f's_mov_b32 s36, {WS_V}')
            out.append(f'buffer_store_dwordx4 {v(T,4)}, v62, s[16:19], s36 offen sc1')
            out.append(f's_mov_b32 s36, {WS_V + 2*7168}')
            out.append(f'buffer_store_dwordx4 {v(T+4,4)}, v62, s[16:19], s36 offen sc1')
        else:
            for q in range(2):
                out.append(f'v_permlane32_swap_b32 v{T+4*q}, v{T+4*q+2}')
                out.append(f'v_permlane32_swap_b32 v{T+4*q+1}, v{T+4*q+3}')
            out.append(f's_mov_b32 s36, {WS_Q if kind == Q_ else WS_K}')
            out.append(f'buffer_store_dwordx4 {v(T,4)}, v61, s[16:19], s36 offen sc1')
            out.append(f'buffer_store_dwordx4 {v(T+4,4)}, v61, s[16:19], s36 offen offset:1024 sc1')
        return out
    def mlist(j):
        n = 0; done = []; o = []
        for half, (kind, i) in enumerate(stages[j]):
            if kind == 'x': continue
            acc = ACC[kind]
            for st in range(4):
                w = WB[j % 2][n]; n += 1
                x = XF + 16*i + 4*st
                c = v(acc, 16) if kind in started else '0'
                started.add(kind)
                if kind == V_: o.append(f'v_mfma_f32_32x32x16_bf16 {v(acc,16)}, {v(x,4)}, {v(w,4)}, {c}')
                else:          o.append(f'v_mfma_f32_32x32x16_bf16 {v(acc,16)}, {v(w,4)}, {v(x,4)}, {c}')
            if i == 6: done.append(kind)
        return o, done
    def weave(ms, rd, fill):
        nm = len(ms)
        per = -(-len(rd) // max(nm - 2, 1))
        fper = -(-len(fill) // max(nm - 2, 1))
        for k, m in enumerate(ms):
            a(m)
            for _ in range(per):
                if rd: a(rd.pop(0))
            if k >= 2:
                for _ in range(fper):
                    if fill: a(fill.pop(0))
        for l in rd + fill: a(l)
    pending = []; carry = []
    pre, _ = kgen(0)
    prep = [pre[:len(pre)//2], pre[len(pre)//2:]]
    for j in range(NST):
        a('s_barrier')
        if j == 0: stamp(a, 1)
        rd = reads(j); ms = []; fill = carry; carry = []
        if j == 0: rd.append('ds_read_b32 v253, v63')
        if j > 0:
            for k in pending: fill += epilogue(k)
            ms, pending = mlist(j - 1)
        if j == U_TR:
            a('s_waitcnt vmcnt(0)')
            rd += ['ds_read_b64_tr_b16 v[192:193], v249', 'ds_read_b64_tr_b16 v[194:195], v249 offset:512',
                   'ds_read_b64_tr_b16 v[196:197], v252', 'ds_read_b64_tr_b16 v[198:199], v252 offset:512']
        if j == U_TR + 1:
            fill = [f's_mov_b32 s36, {8*16384}', 'buffer_store_dwordx4 v[192:195], v255, s[16:19], 0 offen sc1',
                    'buffer_store_dwordx4 v[196:199], v255, s[16:19], s36 offen sc1'] + fill
        if 'nocomp' in DBG: ms = []; rd = rd[-1:]; fill = []
        if 'nofill' in DBG: fill = []
        if 'nord' in DBG: rd = rd[-1:]
        if j == F0_SIG and 'nofill' not in DBG:
            a('v_readfirstlane_b32 s20, v253')
            a(f's_waitcnt vmcnt({0 if F0_SIG <= 9 else 2})')
            signal(a, 60, 2, 3)
        if len(fill) > FILL_MAX and j < NST - 1:
            carry = fill[FILL_MAX:]; fill = fill[:FILL_MAX]
        weave(ms, rd, fill)
        if j == U_ISS:
            srd(a, 56, P_U, S * D * 2)
            a('s_mov_b32 m0, s32\ns_nop 0\nbuffer_load_dwordx4 v246, s[56:59], 0 offen nt lds')
            a('s_add_u32 m0, s32, 1024\ns_nop 0\nbuffer_load_dwordx4 v247, s[56:59], 0 offen nt lds')
        if j == KM_J:
            a('s_waitcnt lgkmcnt(0)\ns_mov_b32 s36, 0')
            call(a, 'SUB_KMFMA')
        if False:
            a('v_readfirstlane_b32 s20, v253')
            a('s_waitcnt vmcnt(0)')
            signal(a, 60, 2, 3)
        a('s_waitcnt lgkmcnt(0)')
    fill = []
    for k in pending: fill += epilogue(k)
    ms, pending = mlist(NST - 1)
    weave(ms, [], fill)
    for k in pending:
        for l in epilogue(k): a(l)
    stamp(a, 2)
    if 'gemmonly' in DBG: a('s_branch P_fin')
    sc_, ve_, lds_ = att_split()
    def nop(): pass
    FL = 252
    gtabs(a)
    att_poll_addr(a, FL)
    emit_groups(a, sc_)
    a(f's_add_u32 s60, s60, {F1}')
    a('s_waitcnt vmcnt(0)')
    signal(a, 60, 2, 3)
    a('s_waitcnt lgkmcnt(0)\ns_barrier')
    stamp(a, 3)
    gbuild(a, 0, (0, 1, 2, 3))
    emit_groups(a, ve_)
    a('s_barrier')
    stamp(a, 14)
    gbuild(a, 1, (0, 1))
    a('s_waitcnt lgkmcnt(0)\ns_barrier')
    stamp(a, 4)
    a('s_setprio 2')
    a('s_cmp_lg_u32 s3, 0\ns_cbranch_scc1 Q_w1')
    poll(a, 'PL_f1', FL, 244, x4=True, sleep=A_SLEEP)
    a.label('Q_w0')
    a(f'ds_write_b32 v{CV}, v{C1} offset:12')
    a('s_branch L_pre')
    a.label('Q_w1')
    gwait(a, 12, 1, 2)
    a.label('L_pre')
    stamp(a, 5)
    emit_groups(a, lds_[:10] + att_zero())
    att_first(a, 4)
    emit_groups(a, lds_[10:])
    a('s_setprio 0')
    a('s_branch L_att2')

EB = 176
EA = EB + 56
ET = 96
def ssm_epi_setup(a):
    a(f"""
    v_and_b32 v{ET}, 1, v1                      ; ch
    v_bfe_u32 v{ET+1}, v1, 1, 2                 ; j
    v_lshrrev_b32 v{ET+2}, 3, v1
    v_mul_u32_u24 v{ET+3}, {POWN}, v{ET+1}
    v_mul_u32_u24 v{ET+4}, {PSRC}, v{ET}
    v_add_u32 v{ET+3}, v{ET+3}, v{ET+4}
    v_lshl_add_u32 v{ET+3}, v{ET+2}, 4, v{ET+3}
    s_lshl_b32 s60, s29, 7
    s_add_u32 s36, s60, {L_PART}
    v_add_u32 v{EA}, s36, v{ET+3}
    v_mul_u32_u24 v{ET+2}, 80, v{ET+2}
    v_lshl_add_u32 v{ET+2}, v{ET+1}, 4, v{ET+2}
    v_mul_u32_u24 v{ET+4}, {UCH}, v{ET}
    v_add_u32 v{ET+2}, v{ET+2}, v{ET+4}
    s_mul_i32 s36, s29, 640
    s_add_u32 s36, s36, {L_U + 32*80}
    v_add_u32 v{EA+1}, s36, v{ET+2}             ; u chunk
    s_lshl_b32 s36, s21, 13
    s_lshl_b32 s60, s29, 10
    s_add_u32 s36, s36, s60
    s_add_u32 s36, s36, {WS_YT}
    v_lshl_add_u32 v{EA+2}, v1, 4, s36
    s_lshl_b32 s60, s39, 16
    s_and_b32 s61, s39, 0xffff0000
    v_mov_b32 v{EA+3}, s60
    v_mov_b32 v{ET+4}, s61
    v_cmp_eq_u32 vcc, 1, v{ET}
    v_cndmask_b32 v{EA+3}, v{EA+3}, v{ET+4}, vcc
    """)

def ssm_epi_reads(a):
    for p in range(2):
        E = EB + 28*p; o = p*4*POWN
        a(f"""
        ds_read_b128 {v(E,4)}, v{EA} offset:{o}
        ds_read_b128 {v(E+4,4)}, v{EA} offset:{o+512}
        ds_read_b128 {v(E+8,4)}, v{EA} offset:{o+2*PSRC}
        ds_read_b128 {v(E+12,4)}, v{EA} offset:{o+2*PSRC+512}
        ds_read_b128 {v(E+16,4)}, v{EA+1} offset:{p*2560}
        """)

def ssm_epi(a):
    a('s_mov_b32 s36, 4096')
    for p in range(2):
        A = EB + 28*p; B = A + 8; U = A + 16; C = A + 20
        for e in range(8): a(f'v_add_f32 v{A+e}, v{A+e}, v{B+e}')
        for e in range(4):
            a(f'v_lshlrev_b32 v{C+2*e}, 16, v{U+e}')
            a(f'v_and_b32 v{C+1+2*e}, 0xffff0000, v{U+e}')
        for e in range(8): a(f'v_mul_f32 v{C+e}, v{EA+3}, v{C+e}')
        for e in range(4):
            a(f'v_cvt_pk_bf16_f32 v{B+e}, v{A+2*e}, v{A+1+2*e}')
            a(f'v_cvt_pk_bf16_f32 v{B+4+e}, v{C+2*e}, v{C+1+2*e}')
        for e in range(4):
            a(f'v_lshlrev_b32 v{A+2*e}, 16, v{B+e}')
            a(f'v_and_b32 v{A+1+2*e}, 0xffff0000, v{B+e}')
            a(f'v_lshlrev_b32 v{C+2*e}, 16, v{B+4+e}')
            a(f'v_and_b32 v{C+1+2*e}, 0xffff0000, v{B+4+e}')
        for e in range(8): a(f'v_add_f32 v{A+e}, v{A+e}, v{C+e}')
        for e in range(4): a(f'v_cvt_pk_bf16_f32 v{B+e}, v{A+2*e}, v{A+1+2*e}')
        a(f'buffer_store_dwordx4 {v(B,4)}, v{EA+2}, s[16:19], {"s36" if p else "0"} offen sc1')

def att_ids(a):
    a("""
    s_lshl_b32 s40, s22, 1
    s_and_b32 s41, s23, 1
    s_add_u32 s40, s40, s41                ; head
    s_lshr_b32 s41, s23, 1                 ; rbq
    s_mul_i32 s42, s40, 7
    s_lshr_b32 s42, s42, 1                 ; chi0
    """)

def att_poll_addr(a, r):
    att_ids(a)
    a(f"""
    s_lshr_b32 s43, s42, 3
    s_add_u32 s44, s42, 3
    s_lshr_b32 s44, s44, 3
    s_lshl_b32 s43, s43, {FS+5}
    s_lshl_b32 s44, s44, {FS+5}
    v_mov_b32 v{r}, s43
    v_mov_b32 v{r+1}, s44
    v_cmp_lt_u32 vcc, 31, v1
    v_cndmask_b32 v{r}, v{r}, v{r+1}, vcc
    v_and_b32 v{r+1}, 31, v1
    v_lshl_add_u32 v{r}, v{r+1}, {FS}, v{r}
    v_add_u32 v{r}, {F1}, v{r}
    """)

def att_poll(a, name):
    att_poll_addr(a, 16)
    poll(a, name, 16, 20, x4=True, sleep=8)

OL = 120 * 1024; YL = 152 * 1024; RED = 96 * 1024
NB = 4
QF = 16; OA = 32; SB = 64; PB = 96; KB = 112; VB = KB + 8*NB
def advK(a):
    a(f's_add_u32 s33, s33, {TILEB}')
    a('s_cmp_eq_u32 s33, s55')
    a('s_cselect_b32 s33, s54, s33')
def loadK(a, n):
    a(f'buffer_load_dwordx4 {v(KB+8*n,4)}, v3, s[4:7], s33 offen')
    a(f'buffer_load_dwordx4 {v(KB+8*n+4,4)}, v3, s[4:7], s33 offen offset:1024')
def loadV(a, n):
    a('s_mov_b64 exec, s[46:47]')
    a(f'buffer_load_dwordx4 {v(VB+8*n,4)}, v4, s[56:59], s33 offen')
    a(f'buffer_load_dwordx4 {v(VB+8*n+4,4)}, v7, s[56:59], s33 offen')
    a('s_mov_b64 exec, -1')

def att_pre_groups():
    def G(fn, *args):
        t = Asm(); fn(t, *args); return t.lines
    def singles(txt): return [[l] for l in lines(txt)]
    p1 = [[l] for l in G(att_ids) + G(srd, 4, P_WS, WS_END)]
    p1 += singles(f"""
    s_and_b32 s24, s3, 1                   ; qg
    s_lshr_b32 s27, s3, 1
    s_cmp_lt_u32 s23, 28
    s_cselect_b32 s34, {NA}, 16
    s_sub_u32 s35, 32, s34
    s_min_u32 s54, s27, 2
    s_mul_i32 s54, s54, s34
    s_cmp_eq_u32 s27, 3
    s_cselect_b32 s55, s35, 0
    s_add_u32 s54, s54, s55
    s_cmp_lt_u32 s3, 4
    s_cselect_b32 s34, s34, s35
    s_lshr_b32 s35, s34, 2
    s_lshl_b32 s96, s42, 9
    v_lshl_add_u32 v3, v1, 4, s96          ; Q/K voffset
    s_lshl_b32 s28, s41, 2
    s_lshl_b32 s31, s24, 1
    s_add_u32 s28, s28, s31
    s_mul_i32 s31, s28, {TILEB}
    s_add_u32 s31, s31, {WS_Q}
    s_add_u32 s30, s31, {TILEB}
    s_mul_i32 s54, s54, {TILEB}
    s_add_u32 s54, s54, {WS_K}
    s_mul_i32 s55, s34, {TILEB}
    s_add_u32 s55, s55, s54
    s_mul_i32 s33, s41, s34
    s_lshr_b32 s33, s33, 4
    s_mul_i32 s33, s33, {TILEB}
    s_add_u32 s33, s33, s54
    buffer_load_dwordx4 {v(QF,4)}, v3, s[16:19], s31 offen
    buffer_load_dwordx4 {v(QF+4,4)}, v3, s[16:19], s31 offen offset:1024
    """)
    p1 += [[l] for l in G(loadK, 0)]
    p1 += singles(f"""
    buffer_load_dwordx4 {v(QF+8,4)}, v3, s[16:19], s30 offen
    buffer_load_dwordx4 {v(QF+12,4)}, v3, s[16:19], s30 offen offset:1024
    v_and_b32 v5, 31, v1
    v_lshrrev_b32 v6, 5, v1
    v_mul_u32_u24 v4, 7168, v6
    v_lshl_add_u32 v4, v5, 4, v4
    s_mul_i32 s97, s40, 448
    s_add_u32 s97, s97, {WS_V - WS_K}
    v_add_u32 v4, s97, v4
    v_add_u32 v7, 14336, v4
    s_mov_b32 s46, 0x0fffffff
    s_mov_b32 s47, 0x0fffffff
    """)
    p1 += [[l] for l in G(srd, 56, P_WS, WS_END)]
    p2 = []
    for n in range(NB):
        dst = p1 if n == 0 else p2
        if n == 0:
            dst += [['v_cmp_eq_u32 vcc, 28, v5'], ['v_mov_b32 v12, 0x3f803f80'], ['v_cndmask_b32 v12, 0, v12, vcc'], ['v_mov_b32 v13, v12']]
        dst += [[f'v_mov_b64 {v(VB+8*n+r,2)}, v[12:13]'] for r in range(0, 8, 2)]
        if n < NB - 1:
            dst += [G(loadV, n), G(advK)] + [[l] for l in G(loadK, n + 1)]
    p2 += [[l] for l in G(srd, 8, P_WO, D * D * 2)]
    p2 += singles(f"""
    s_lshr_b32 s52, s40, 2
    s_lshl_b32 s53, s41, 2
    s_add_u32 s52, s52, s53
    s_and_b32 s53, s40, 3                  ; cg4
    v_lshrrev_b32 v8, 4, v1
    v_and_b32 v9, 15, v1
    v_lshlrev_b32 v10, 2, v8
    v_xor_b32 v9, v9, v10
    v_lshlrev_b32 v9, 4, v9
    v_mul_u32_u24 v8, 896, v8
    v_add_u32 v8, v8, v9
    s_lshl_b32 s98, s53, 8
    v_add_u32 v8, s98, v8
    s_lshl_b32 s51, s3, 10
    s_and_b32 s49, s3, 3
    s_lshl_b32 s48, s49, 10
    s_mul_i32 s50, s49, 3584
    s_and_b32 s49, s40, 1
    s_cmp_eq_u32 s49, 0
    s_cselect_b32 s43, -1, 0
    s_mov_b32 s42, 0
    s_cselect_b32 s44, 0, -1
    s_mov_b32 s45, 0
    s_lshl_b32 s32, s21, 4
    s_and_b32 s49, s3, 3
    s_lshl_b32 s49, s49, 2
    s_add_u32 s32, s32, s49
    s_add_u32 s32, s32, {F3}
    s_cmp_lt_u32 s23, 28
    s_cselect_b32 s32, s32, {WS_END}
    s_mov_b32 s37, 0
    """)
    allg = p1 + p2
    isld = lambda g: any(l.startswith('buffer_') for l in g) or g[0].startswith(f's_add_u32 s33, s33, {TILEB}')
    setup = [g for g in allg if not isld(g)]
    loads = [g for g in allg if isld(g)]
    return setup, loads

def att_split():
    su, ld = att_pre_groups()
    sc = [g for g in su if g[0].startswith('s_')]
    ve = [g for g in su if not g[0].startswith('s_')]
    return sc, ve, ld

def emit_groups(a, gs):
    for g in gs:
        for l in g: a(l)

def att_zero():
    return [[f'v_mov_b64 {v(OA+r,2)}, 0'] for r in range(0, 32, 2)] + [[f'v_mov_b64 {v(PB+8+r,2)}, 0'] for r in range(0, 8, 2)] + [[f'v_mov_b64 {v(SB+28+r,2)}, 0'] for r in range(0, 4, 2)]

def att_first(a, nout):
    a(f"""
    s_waitcnt vmcnt({nout})
    s_mov_b64 exec, s[42:43]
    v_mov_b32 v{QF+6}, 0
    v_mov_b32 v{QF+7}, 0
    v_mov_b32 v{QF+14}, 0
    v_mov_b32 v{QF+15}, 0
    s_mov_b64 exec, s[44:45]
    v_mov_b32 v{QF+0}, 0
    v_mov_b32 v{QF+1}, 0
    v_mov_b32 v{QF+8}, 0
    v_mov_b32 v{QF+9}, 0
    s_mov_b64 exec, -1
    v_mfma_f32_32x32x16_bf16 {v(SB,16)}, {v(KB,4)}, {v(QF,4)}, 0
    v_mfma_f32_32x32x16_bf16 {v(SB,16)}, {v(KB+4,4)}, {v(QF+4,4)}, {v(SB,16)}
    """)

def ph_att(a):
    a.label('L_att')
    att_first(a, 4*(NB-1))
    a('s_nop 9')
    a.label('L_att2')
    a(f's_cmp_{PRIO_CMP}_u32 s3, 4\ns_cbranch_scc1 A_noprio\ns_setprio 1')
    a.label('A_noprio')
    stamp(a, 6)
    a('.p2align 6')
    a.label('A_loop')
    for u in range(2*NB):
        t = u % 2
        kn = ((u + 1) // 2) % NB
        vn = ((u - 1) // 2) % NB
        Sn = SB + 16*((u+1) % 2); Sc = SB + 16*(u % 2)
        Pc = PB + 8*(u % 2); Pp = PB + 8*((u+1) % 2)
        Qn = QF + 8*(1-t); On = OA + 16*(1-t)
        ins = {}
        if u % 2 == 1:
            j = (u - 1) // 2
            if SPREAD == 0:
                loadV(a, (j - 1) % NB); advK(a); loadK(a, j % NB)
                if j == 0: a('s_mov_b32 s58, s6')
                a(f's_waitcnt vmcnt({4*(NB-1)})')
            else:
                a(f's_waitcnt vmcnt({4*(NB-2)})')
                t1 = Asm(); loadV(t1, (j - 1) % NB); t2 = Asm(); advK(t2); t3 = Asm(); loadK(t3, j % NB)
                if j == 0: t2('s_mov_b32 s58, s6')
                if SPREAD == 1: ins = {(0, 1): t1.lines, (1, 1): t2.lines, (2, 1): t3.lines[:1], (3, 1): t3.lines[1:]}
                else: ins = {(0, 1): t1.lines[:2] + t1.lines[3:], (1, 1): t1.lines[:1] + t1.lines[2:], (1, 3): t2.lines, (2, 1): t3.lines[:1], (3, 1): t3.lines[1:]}
        M = [f'v_mfma_f32_32x32x16_bf16 {v(Sn,16)}, {v(KB+8*kn,4)}, {v(Qn,4)}, 0',
             f'v_mfma_f32_32x32x16_bf16 {v(Sn,16)}, {v(KB+8*kn+4,4)}, {v(Qn+4,4)}, {v(Sn,16)}',
             f'v_mfma_f32_32x32x16_bf16 {v(On,16)}, {v(VB+8*vn,4)}, {v(Pp,4)}, {v(On,16)}',
             f'v_mfma_f32_32x32x16_bf16 {v(On,16)}, {v(VB+8*vn+4,4)}, {v(Pp+4,4)}, {v(On,16)}']
        M = [M[2], M[0], M[1], M[3]]
        for g in range(4):
            a(M[g])
            for e in range(4):
                a(f'v_exp_f32 v{Sc+4*g+e}, v{Sc+4*g+e}')
                for l in ins.get((g, e), []): a(l)
                if e in (0, 2):
                    h = e // 2
                    if g > 0: a(f'v_cvt_pk_bf16_f32 v{Pc+2*(g-1)+h}, v{Sc+4*(g-1)+2*h}, v{Sc+4*(g-1)+2*h+1}')
                    else:     a(f'v_cvt_pk_bf16_f32 v{Pp+6+h}, v{Sn+12+2*h}, v{Sn+13+2*h}')
    a(f"""
    s_add_u32 s37, s37, 1
    s_cmp_eq_u32 s37, s35
    s_cbranch_scc1 A_exit
    s_add_u32 s49, s37, 1
    s_cmp_eq_u32 s49, s35
    s_cselect_b32 s6, 0, s6
    s_cmp_lt_u32 s3, 4
    s_cbranch_scc1 A_loop
    s_cmp_gt_u32 s37, 2
    s_cbranch_scc1 A_b0
    """)
    for r in range(0 if 'nowo' in DBG else 12):
        a(f"""
        s_mov_b32 m0, s48
        s_add_u32 s48, s48, 4096
        buffer_load_dwordx4 v8, s[8:11], s50 offen lds
        s_add_u32 s50, s50, 14336
        """)
    a.label('A_b0')
    a(f"""
    s_add_u32 s49, s37, {PRIO_LEFT}
    s_cmp_lt_u32 s49, s35
    s_cbranch_scc1 A_b1
    s_setprio 0
    """)
    a.label('A_b1')
    a('s_cmp_lg_u32 s37, 1\ns_cbranch_scc1 A_loop')
    signal(a, 32, 9, 10)
    a('s_branch A_loop')
    a.label('A_exit')
    a('s_setprio 0')
    stamp(a, 7)
    a(f'v_cvt_pk_bf16_f32 v{PB+14}, v{SB+28}, v{SB+29}')
    a(f'v_cvt_pk_bf16_f32 v{PB+15}, v{SB+30}, v{SB+31}')
    a(f'v_mfma_f32_32x32x16_bf16 {v(OA+16,16)}, {v(VB+8*(NB-1),4)}, {v(PB+8,4)}, {v(OA+16,16)}')
    a(f'v_mfma_f32_32x32x16_bf16 {v(OA+16,16)}, {v(VB+8*(NB-1)+4,4)}, {v(PB+12,4)}, {v(OA+16,16)}')
    a('s_mov_b32 s94, 0')
    a.label('A_red')
    a(f"""
    s_lshl_b32 s36, s24, 14
    s_add_u32 s36, s36, {RED}
    s_lshr_b32 s38, s27, 1
    s_lshl_b32 s38, s38, 15
    s_and_b32 s39, s27, 1
    s_lshl_b32 s39, s39, 11
    s_add_u32 s38, s38, s39
    s_add_u32 s38, s38, s36
    v_lshlrev_b32 v2, 4, v1
    v_add_u32 v9, s38, v2
    s_lshl_b32 s38, s27, 12
    s_add_u32 s38, s38, s36
    v_add_u32 v10, s38, v2
    s_or_b32 s38, s27, 1
    s_lshl_b32 s38, s38, 12
    s_add_u32 s38, s38, s36
    s_add_u32 s38, s38, {1024 + 512}
    v_lshlrev_b32 v11, 4, v5
    v_add_u32 v11, s38, v11
    """)
    for own in range(4):
        for q in range(2):
            a(f'ds_write_b128 v9, {v(OA + 8*own + 4*q, 4)} offset:{own*4096 + q*1024}')
    a('s_waitcnt lgkmcnt(0)\ns_barrier')
    R = 64
    so = lambda src: (src >> 1) * 32768 + (src & 1) * 2048
    for src in range(4):
        a(f'ds_read_b32 v{12+src}, v11 offset:{so(src)}')
    for src in range(4):
        for q in range(2):
            a(f'ds_read_b128 {v(R + 8*src + 4*q, 4)}, v10 offset:{so(src) + q*1024}')
    a(f"""
    s_and_b32 s36, s27, 1
    s_cmp_eq_u32 s36, 1
    s_cselect_b32 s43, -1, 0
    s_mov_b32 s42, 0
    s_lshr_b32 s38, s27, 1
    s_add_u32 s38, s38, s28
    s_lshl_b32 s38, s38, 15
    s_lshl_b32 s39, s40, 11
    s_add_u32 s38, s38, s39
    s_lshl_b32 s39, s36, 10
    s_add_u32 s38, s38, s39
    s_add_u32 s38, s38, {WS_O}
    s_waitcnt lgkmcnt(8)
    v_add_f32 v12, v12, v13
    v_add_f32 v14, v14, v15
    v_add_f32 v12, v12, v14
    v_rcp_f32 v12, v12
    s_waitcnt lgkmcnt(0)
    """)
    a('v_cndmask_b32 v13, v12, 0, s[42:43]')
    for r in range(8):
        a(f'v_add_f32 v{R+r}, v{R+r}, v{R+8+r}')
        a(f'v_add_f32 v{R+16+r}, v{R+16+r}, v{R+24+r}')
    for r in range(8): a(f'v_add_f32 v{R+r}, v{R+r}, v{R+16+r}')
    for r in range(8): a(f'v_mul_f32 v{R+r}, v{R+r}, v{12 if r < 4 else 13}')
    for r in range(4): a(f'v_cvt_pk_bf16_f32 v{R+8+r}, v{R+2*r}, v{R+2*r+1}')
    a(f'buffer_store_dwordx4 {v(R+8,4)}, v2, s[16:19], s38 offen sc1')
    stamp(a, 8)
    a(f"""
    v_lshlrev_b32 v11, 13, v6
    v_lshl_add_u32 v11, v5, 4, v11
    v_add_u32 v11, {RED + 4096 + 1024 + 512}, v11
    """)
    for qg in range(2):
        for src in range(4):
            a(f'ds_read_b32 v{80+4*qg+src}, v11 offset:{qg*16384 + so(src)}')
    a(f"""
    s_mov_b32 s36, {f32bits(2.0**-30)}
    s_mov_b32 s37, {f32bits(2.0**40)}
    s_waitcnt lgkmcnt(0)
    v_add_f32 v80, v80, v81
    v_add_f32 v82, v82, v83
    v_add_f32 v84, v84, v85
    v_add_f32 v86, v86, v87
    v_add_f32 v80, v80, v82
    v_add_f32 v84, v84, v86
    v_cmp_nle_f32 vcc, s36, v80
    v_cmp_nge_f32 s[42:43], s37, v80
    v_cmp_nle_f32 s[44:45], s36, v84
    v_cmp_nge_f32 s[60:61], s37, v84
    s_or_b64 s[42:43], s[42:43], vcc
    s_or_b64 s[44:45], s[44:45], s[60:61]
    s_or_b64 s[42:43], s[42:43], s[44:45]
    s_cbranch_scc1 A_slow
    """)
    a.label('A_done')

def ph_slow(a):
    MX = 192
    a.label('A_slow')
    a(f"""
    s_cmp_lg_u32 s94, 0
    s_cbranch_scc1 A_done
    s_waitcnt vmcnt(0)
    s_barrier
    s_mov_b32 s6, s18
    s_mov_b32 s58, s18
    v_mov_b32 v{MX}, 0xff800000
    v_mov_b32 v{MX+1}, 0xff800000
    """)
    for r in range(0, 32, 2): a(f'v_mov_b64 {v(OA+r,2)}, 0')
    a.label('AS_pass')
    a('s_mov_b32 s37, 0')
    a.label('AS_tile')
    loadK(a, 0); loadV(a, 0); advK(a)
    a('s_waitcnt vmcnt(0)')
    for t in range(2):
        Sx = SB + 16*t
        a(f'v_mfma_f32_32x32x16_bf16 {v(Sx,16)}, {v(KB,4)}, {v(QF+8*t,4)}, 0')
        a(f'v_mfma_f32_32x32x16_bf16 {v(Sx,16)}, {v(KB+4,4)}, {v(QF+8*t+4,4)}, {v(Sx,16)}')
    a('s_nop 15\ns_cmp_lg_u32 s94, 0\ns_cbranch_scc1 AS_p1')
    for t in range(2):
        for r in range(0, 16, 2): a(f'v_max3_f32 v{MX+t}, v{SB+16*t+r}, v{SB+16*t+r+1}, v{MX+t}')
    a('s_branch AS_next')
    a.label('AS_p1')
    for t in range(2):
        Sx = SB + 16*t; Px = PB + 8*t
        for r in range(16): a(f'v_sub_f32 v{Sx+r}, v{Sx+r}, v{MX+t}')
        for r in range(16): a(f'v_exp_f32 v{Sx+r}, v{Sx+r}')
        for r in range(8): a(f'v_cvt_pk_bf16_f32 v{Px+r}, v{Sx+2*r}, v{Sx+2*r+1}')
        a(f'v_mfma_f32_32x32x16_bf16 {v(OA+16*t,16)}, {v(VB,4)}, {v(Px,4)}, {v(OA+16*t,16)}')
        a(f'v_mfma_f32_32x32x16_bf16 {v(OA+16*t,16)}, {v(VB+4,4)}, {v(Px+4,4)}, {v(OA+16*t,16)}')
    a.label('AS_next')
    a(f"""
    s_nop 15
    s_add_u32 s37, s37, 1
    s_cmp_lt_u32 s37, s34
    s_cbranch_scc1 AS_tile
    s_cmp_lg_u32 s94, 0
    s_cbranch_scc1 A_red
    s_lshl_b32 s36, s24, 11
    s_add_u32 s36, s36, {RED}
    s_lshl_b32 s38, s27, 9
    s_add_u32 s38, s38, s36
    v_lshl_add_u32 v9, v1, 3, s38
    ds_write_b64 v9, {v(MX,2)}
    v_lshl_add_u32 v9, v5, 3, s36
    s_waitcnt lgkmcnt(0)
    s_barrier
    """)
    for k in range(8): a(f'ds_read_b64 {v(SB+2*k,2)}, v9 offset:{256*k}')
    a('s_waitcnt lgkmcnt(0)')
    for t in range(2):
        for k in range(0, 8, 2): a(f'v_max3_f32 v{MX+t}, v{SB+2*k+t}, v{SB+2*k+2+t}, v{MX+t}')
    a('s_mov_b32 s94, 1\ns_barrier\ns_branch AS_pass')

def ph_out(a):
    a(f"""
    s_cmp_lg_u32 s3, 4
    s_cbranch_scc1 P_nop3
    s_cmp_ge_u32 s23, 28
    s_cbranch_scc1 P_nop3
    s_lshl_b32 s36, s25, 9
    s_add_u32 s36, s36, {F3}
    v_add_u32 v16, s36, v2
    """)
    poll(a, 'PL_f3', 16, 20, mask=0xffffffff, x4=True)
    a.label('P_nop3')
    a('s_waitcnt vmcnt(0)\ns_barrier')
    a('s_cmp_lg_u32 s3, 0\ns_cbranch_scc1 P_nof2')
    a(f's_lshl_b32 s36, s41, {FS+4}\ns_lshl_b32 s37, s40, {FS}\ns_add_u32 s36, s36, s37\ns_add_u32 s36, s36, {F2}')
    signal(a, 36, 16, 17)
    a.label('P_nof2')
    stamp(a, 9)
    for r in (12, 13, 14):
        a(f's_add_u32 m0, s51, {r*8192}')
        a(f's_mul_i32 s50, s3, 3584')
        a(f's_add_u32 s50, s50, {r*28672}')
        if r == 14: a(f's_min_u32 s50, s50, {D*D*2}')
        a(f'buffer_load_dwordx4 v8, s[8:11], s50 offen lds')
    a(f"""
    s_cmp_ge_u32 s23, 28
    s_cbranch_scc1 P_noy
    v_lshrrev_b32 v16, 1, v1
    v_lshlrev_b32 v16, 13, v16
    v_and_b32 v17, 1, v1
    v_lshl_add_u32 v16, v17, 4, v16
    s_lshl_b32 s36, s25, 18
    s_lshl_b32 s37, s26, 8
    s_add_u32 s36, s36, s37
    s_lshl_b32 s37, s3, 5
    s_add_u32 s36, s36, s37
    s_add_u32 s36, s36, {WS_YT}
    s_add_u32 m0, s51, {YL}
    s_nop 0
    buffer_load_dwordx4 v16, s[16:19], s36 offen sc1 lds
    ; tr supplier address: (8*oct + r)*16 + rq*8 (+64 for second half), Q = 4*(l/16)+l%4, oct = Q%8, rq = Q/8
    v_lshrrev_b32 v17, 4, v1
    v_and_b32 v18, 3, v1
    v_lshl_add_u32 v17, v17, 2, v18
    v_and_b32 v18, 7, v17
    v_lshrrev_b32 v17, 3, v17
    v_bfe_u32 v19, v1, 2, 2
    v_lshl_add_u32 v18, v18, 3, v19
    v_lshlrev_b32 v18, 4, v18
    v_lshl_add_u32 v18, v17, 3, v18
    s_add_u32 s36, s51, {YL}
    v_add_u32 v18, s36, v18
    ; store: row = 64rb + 8w + 4*(l/32) + l%4 ; col byte = 896 + 128c + 16*((l/4)%8)
    v_and_b32 v19, 3, v1
    v_lshl_add_u32 v19, v6, 2, v19
    s_lshl_b32 s36, s26, 6
    s_lshl_b32 s37, s3, 3
    s_add_u32 s36, s36, s37
    v_add_u32 v19, s36, v19
    v_mul_u32_u24 v19, 1792, v19
    v_bfe_u32 v17, v1, 2, 3
    v_lshl_add_u32 v19, v17, 4, v19
    s_lshl_b32 s36, s25, 7
    s_add_u32 s36, s36, 896
    s_waitcnt vmcnt(0)
    ds_read_b64_tr_b16 v[20:21], v18
    ds_read_b64_tr_b16 v[22:23], v18 offset:64
    s_waitcnt lgkmcnt(0)
    buffer_store_dwordx4 v[20:23], v19, s[12:15], s36 offen {YMOD}
    """)
    a.label('P_noy')
    a(f"""
    s_and_b32 s29, s3, 3                   ; ct
    v_bfe_u32 v7, v1, 2, 2
    v_xor_b32 v12, s29, v7
    v_lshlrev_b32 v12, 6, v12
    v_bfe_u32 v9, v1, 4, 1
    v_lshl_add_u32 v12, v9, 5, v12
    v_and_b32 v9, 3, v1
    v_lshl_add_u32 v12, v9, 3, v12
    v_lshl_add_u32 v9, v6, 2, v7
    v_lshl_add_u32 v12, v9, 8, v12
    v_add_u32 v13, {224*256}, v12          ; heads 8..15
    v_add_u32 v10, {OL}, v2
    s_lshl_b32 s36, s52, 15
    s_add_u32 s36, s36, s51
    s_add_u32 s36, s36, {WS_O}
    v_add_u32 v14, s36, v2
    v_and_b32 v11, 31, v1
    s_lshl_b32 s36, s52, 5
    v_add_u32 v11, s36, v11
    v_mul_u32_u24 v11, 1792, v11
    v_lshl_add_u32 v11, v6, 4, v11
    s_lshl_b32 s30, s53, 2
    s_add_u32 s30, s30, s29
    s_lshl_b32 s32, s30, 6
    s_cmp_lg_u32 s3, 0
    s_cbranch_scc1 P_nop2
    s_lshl_b32 s36, s41, {FS+4}
    s_add_u32 s36, s36, {F2}
    v_lshl_add_u32 v16, v1, {FS}, s36
    """)
    poll(a, 'PL_f2', 16, 17, mask=0xffff, sleep=2)
    a.label('P_nop2')
    a('s_barrier')
    stamp(a, 10)
    for st in range(4):
        a(f's_add_u32 m0, s51, {OL + st*8192}')
        a(f's_mov_b32 s50, {st*8192}')
        a(f'buffer_load_dwordx4 v14, s[16:19], s50 offen sc1 lds')
    a(f"""
    s_cmp_lt_u32 s30, 14
    s_cselect_b32 s31, 1, 0
    s_cmp_lt_u32 s3, 4
    s_cselect_b32 s31, s31, 0
    s_cmp_eq_u32 s31, 0
    s_cbranch_scc1 P_idle
    """)
    ACC = 16; WF = 32; OF = 160
    def wread(hd):
        for f in range(2):
            for e in range(2):
                row = 28*hd + 16*f + 8*e - (224 if hd >= 8 else 0)
                a(f'ds_read_b64_tr_b16 {v(WF + 8*hd + 4*f + 2*e, 2)}, v{13 if hd >= 8 else 12} offset:{row*256}')
    for hd in range(13): wread(hd)
    a('s_waitcnt vmcnt(0) lgkmcnt(0)\ns_barrier')
    stamp(a, 11)
    for hd in range(13, 16): wread(hd)
    def oread(st):
        for n in range(8):
            a(f'ds_read_b128 {v(OF + 32*(st%2) + 4*n, 4)}, v10 offset:{st*8192 + n*1024}')
    def mf(st):
        for n in range(8):
            c = '0' if (st == 0 and n == 0) else v(ACC, 16)
            a(f'v_mfma_f32_32x32x16_bf16 {v(ACC,16)}, {v(WF + 32*st + 4*n,4)}, {v(OF + 32*(st%2) + 4*n,4)}, {c}')
    oread(0)
    for st in range(4):
        a('s_waitcnt lgkmcnt(0)')
        if st < 3: oread(st + 1)
        mf(st)
    T = 40
    for r in range(8): a(f'v_cvt_pk_bf16_f32 v{T+r}, v{ACC+2*r}, v{ACC+2*r+1}')
    for q in range(2):
        a(f'v_permlane32_swap_b32 v{T+4*q}, v{T+4*q+2}')
        a(f'v_permlane32_swap_b32 v{T+4*q+1}, v{T+4*q+3}')
    a(f'buffer_store_dwordx4 {v(T,4)}, v11, s[12:15], s32 offen {OMOD}')
    a(f'buffer_store_dwordx4 {v(T+4,4)}, v11, s[12:15], s32 offen offset:32 {OMOD}')
    a('s_branch P_fin')
    a.label('P_idle')
    a('s_waitcnt vmcnt(0)\ns_barrier')
    a('s_cmp_lg_u32 s2, 240\ns_cbranch_scc1 P_fin\ns_cmp_lg_u32 s3, 4\ns_cbranch_scc1 P_fin')
    a(f'v_lshlrev_b32 v16, {FS}, v1\nv_add_u32 v16, {F2 + (14 << (FS+4))}, v16')
    poll(a, 'PL_ep', 16, 17, mask=0xffff, sleep=2)
    a(f's_mov_b32 s36, {EPOCH}')
    signal(a, 36, 16, 17)
    a.label('P_fin')

def kernel(a):
    if STAMPS:
        a('v_mov_b32 v254, 0')
        stamp(a, 0)
    prologue(a)
    ph_front(a)
    ph_att(a)
    ph_out(a)
    if STAMPS:
        a('s_waitcnt vmcnt(0)')
        stamp(a, 12)
        a(f"""
        s_mov_b32 s18, {WS_STAMP + (1<<20)}
        s_lshl_b32 s36, s2, 3
        s_add_u32 s36, s36, s3
        s_lshl_b32 s36, s36, 6
        s_add_u32 s36, s36, {WS_STAMP}
        v_lshl_add_u32 v2, v1, 2, s36
        s_mov_b64 exec, 0xffff
        buffer_store_dword v254, v2, s[16:19], 0 offen
        s_cmp_lg_u32 s2, 100
        s_cbranch_scc1 L_end
        s_cmp_lg_u32 s3, 0
        s_cbranch_scc1 L_end
        v_readfirstlane_b32 s36, v254
        v_lshlrev_b32 v2, 2, v1
        v_subrev_u32 v254, s36, v254
        s_mov_b64 exec, 0x7ffe
        """)
        srd(a, 56, P_DBG, 256)
        a('buffer_store_dword v254, v2, s[56:59], 0 offen')
    a.label('L_end')
    a('s_endpgm')
    subroutines(a)
    ph_slow(a)

def build(path):
    hdr = open(f'cdna_kernels/{NAME}.s.ref').read().split('\n')
    out = [l for l in hdr if l.startswith(';') and '@launch' not in l][:16]
    out.append(f'; @launch grid=(256,1,1) block=(512,1,1) lds={LDS_TOTAL}')
    out.append('.amdgcn_target "amdgcn-amd-amdhsa--gfx950"')
    out.append('.text')
    label = NAME + '_kernel'
    a = Asm(); kernel(a)
    txt = '\n'.join(out) + f'\n.globl {label}\n.p2align 8\n.type {label},@function\n{label}:\n' + a.finalize()
    txt += f'''.section .rodata,"a"
.p2align 6
.amdhsa_kernel {label}
  .amdhsa_next_free_vgpr 256
  .amdhsa_next_free_sgpr 102
  .amdhsa_accum_offset 256
  .amdhsa_group_segment_fixed_size 0
  .amdhsa_kernarg_size 104
  .amdhsa_user_sgpr_count 2
  .amdhsa_user_sgpr_kernarg_segment_ptr 1
  .amdhsa_system_sgpr_workgroup_id_x 1
.end_amdhsa_kernel
'''
    open(path, 'w').write(txt)

if __name__ == '__main__':
    if '--stamps' in sys.argv: STAMPS = True; sys.argv.remove('--stamps')
    path = sys.argv[1] if len(sys.argv) > 1 else f'cdna_kernels/{NAME}.s'
    build(path)
    import subprocess
    subprocess.run(['clang', '-x', 'assembler', '-target', 'amdgcn-amd-amdhsa', '-mcpu=gfx950', '-c', path, '-o', '_sz.o'], check=True)
    hdr = subprocess.run(['llvm-objdump', '-h', '_sz.o'], capture_output=True, text=True).stdout
    size = int([l for l in hdr.splitlines() if '.text' in l][0].split()[2], 16)
    CODE_KB[0] = size // 1024 - 1
    _gw[0] = 0
    build(path)
    print('code bytes', size)
```

```python
import sys, math, struct, os, re
DBG = os.environ.get('DBG', '')
sys.path.insert(0, 'work')
from asmgen import *

STAMPS = False
NAME = 'concat_heads__mha_block__ssm_conv_s4d__prompt'
S = 2048; D = 448; H = 16; DH = 28
TILEB = 56 * 512
FS = int(os.environ.get('FS', 4))
F0 = 0; F1 = 32768; F2 = 65536; EPOCH = 98304; F3 = 102400
WS_Q = 131072
WS_K = WS_Q + 64 * TILEB
WS_V = WS_K + 64 * TILEB
WS_O = WS_V + 64 * TILEB
WS_UT = WS_O + 64 * 32768
WS_YT = WS_UT + 112 * 16384
WS_END = WS_YT + 224 * 8192
WS_STAMP = 16 << 20
LDS_TOTAL = 163840
POLL_LIMIT = 20000
PRIO_IT = 3
FILL_MAX = int(os.environ.get('FILL_MAX', 16))
YMOD = os.environ.get('YMOD', '')
OMOD = os.environ.get('OMOD', '')
SPREAD = int(os.environ.get('SPREAD', 1))
CODE_KB = [1]
CODE_PF = int(os.environ.get('CODE_PF', 1))
NA = int(os.environ.get('NA', 20))
PRIO_LEFT = int(os.environ.get('PRIO_LEFT', 1))
CONV_PRIO = int(os.environ.get('CONV_PRIO', 1))
PRIO_CMP = 'lt'
SCHED_C = [3, 3, 3, 1, 1]
U_ISS = int(os.environ.get('U_ISS', 0)); U_TR = int(os.environ.get('U_TR', 3)); F0_SIG = int(os.environ.get('F0_SIG', 8))
F0_TRY = (7, 10)
F0_LAG = 2
PRE_ST = int(os.environ.get('PRE_ST', 3))
CONV_T0 = 18
XMOD = os.environ.get('XMOD', '')
F1_SLEEP = 8
KG_CUT = float(os.environ.get('KG_CUT', 0.4))
LD_PER = int(os.environ.get('LD_PER', 50))

def f32bits(x): return struct.unpack('<I', struct.pack('<f', x))[0]
QSCALE = math.log2(math.e) / math.sqrt(DH)
LOG2E = math.log2(math.e)
P_X, P_W, P_WO, P_U, P_LA, P_AI, P_CR, P_CI, P_DT, P_DS, P_OUT, P_DBG, P_WS = [64 + 2*i for i in range(13)]

DIAG = int(os.environ.get('DIAG', -1))
def stamp(a, n):
    if STAMPS or (DIAG >= 0 and n in (0, DIAG)):
        a('s_memrealtime s[90:91]')
        a('s_waitcnt lgkmcnt(0)')
        a(f'v_writelane_b32 v254, s90, {n}')

def srd(a, base_s, ptr_s, nbytes):
    a(f's_mov_b32 s{base_s}, s{ptr_s}')
    a(f's_and_b32 s{base_s+1}, s{ptr_s+1}, 0xffff')
    a(f's_mov_b32 s{base_s+2}, {nbytes}')
    a(f's_mov_b32 s{base_s+3}, 0x20000')

def poll(a, name, voff, tmp, mask=-1, x4=False, sleep=4):
    if mask != -1:
        a(f's_mov_b32 exec_lo, {mask & 0xffffffff}')
        a(f's_mov_b32 exec_hi, {mask >> 32}')
    a('s_mov_b32 s62, 0')
    a.label(name)
    if x4:
        a(f'buffer_load_dwordx4 {v(tmp,4)}, v{voff}, s[16:19], 0 offen sc1')
        a('s_waitcnt vmcnt(0)')
        for i in range(4): a(f'v_xor_b32 v{tmp+i}, s20, v{tmp+i}')
        a(f'v_or3_b32 v{tmp}, v{tmp}, v{tmp+1}, v{tmp+2}')
        a(f'v_or_b32 v{tmp}, v{tmp}, v{tmp+3}')
        a(f'v_cmp_ne_u32 vcc, 0, v{tmp}')
    else:
        a(f'buffer_load_dword v{tmp}, v{voff}, s[16:19], 0 offen sc1')
        a('s_waitcnt vmcnt(0)')
        a(f'v_cmp_ne_u32 vcc, s20, v{tmp}')
    a('s_nop 4')
    a(f's_cbranch_vccz {name}_ok')
    a(f's_sleep {sleep}')
    a('s_add_u32 s62, s62, 1')
    a(f's_cmp_lt_u32 s62, {POLL_LIMIT}')
    a(f's_cbranch_scc1 {name}')
    a.label(name + '_ok')
    a('s_mov_b64 exec, -1')

def signal(a, soff, vt0, vt1):
    a(f'v_mov_b32 v{vt0}, s{soff}')
    a(f'v_mov_b32 v{vt1}, s20')
    a('s_mov_b64 exec, 1')
    a(f'buffer_store_dword v{vt1}, v{vt0}, s[16:19], 0 offen sc1')
    a('s_mov_b64 exec, -1')


CV, C1 = 250, 251
def garrive(a, off):
    a('s_mov_b64 exec, 1')
    a(f'ds_add_u32 v{CV}, v{C1} offset:{off}')
    a('s_mov_b64 exec, -1')
_gw = [0]
def gwait(a, off, target, tmp):
    _gw[0] += 1; name = f'GW{_gw[0]}'
    a.label(name)
    a(f'ds_read_b32 v{tmp}, v{CV} offset:{off}')
    a('s_waitcnt lgkmcnt(0)')
    a(f'v_readfirstlane_b32 s62, v{tmp}')
    a(f's_cmp_ge_u32 s62, {target}')
    a(f's_cbranch_scc1 {name}_ok')
    a('s_sleep 1')
    a('s_add_u32 s95, s95, 1')
    a('s_cmp_lt_u32 s95, 0x200000')
    a(f's_cbranch_scc1 {name}')
    a.label(name + '_ok')

def prologue(a):
    a(f"""
    s_cmp_ge_u32 s2, 256
    s_cbranch_scc1 L_end
    s_load_dwordx16 s[64:79], s[0:1], 0
    s_load_dwordx8 s[80:87], s[0:1], 64
    s_load_dwordx2 s[88:89], s[0:1], 96
    v_and_b32 v1, 63, v0
    v_lshrrev_b32 v2, 6, v0
    v_readfirstlane_b32 s3, v2
    s_and_b32 s22, s2, 7
    s_lshr_b32 s23, s2, 3
    """)
    if CODE_PF:
        a(f"""
        s_getpc_b64 s[96:97]
        s_and_b32 s96, s96, 0xffffff00
        s_and_b32 s98, s23, 3
        s_lshl_b32 s98, s98, 3
        s_add_u32 s98, s98, s3
        s_min_u32 s98, s98, {CODE_KB[0]}
        s_lshl_b32 s98, s98, 10
        v_lshl_add_u32 v2, v1, 4, s98
        global_load_dwordx4 v[192:195], v2, s[96:97]
        """)
    a(f"""
    s_and_b32 s27, s22, 1                  ; odd
    s_lshr_b32 s24, s23, 3                 ; cl' (0..3)
    s_lshl_b32 s25, s27, 2
    s_add_u32 s25, s25, s24
    s_and_b32 s26, s23, 7                  ; rbl
    s_lshl_b32 s28, s26, 1
    s_add_u32 s28, s28, s27
    s_cmp_eq_u32 s24, 3
    s_cselect_b32 s25, 3, s25
    s_cselect_b32 s26, s28, s26
    s_lshl_b32 s24, s24, 1
    s_add_u32 s24, s24, s26
    s_lshr_b32 s28, s22, 1
    s_lshl_b32 s28, s28, 3
    s_add_u32 s26, s26, s28                ; rb
    s_mul_i32 s21, s22, 28
    s_add_u32 s21, s21, s23
    s_cmp_lt_u32 s23, 28
    s_cbranch_scc1 L_full
    s_waitcnt lgkmcnt(0)
    """)
    srd(a, 4, P_W, D * 3 * D * 2)
    a(f"""
    s_sub_u32 s36, s23, 28
    s_lshl_b32 s36, s36, 3
    s_add_u32 s36, s36, s3
    s_mul_i32 s36, s36, {14*2688}
    v_lshrrev_b32 v2, 3, v1
    v_min_u32 v4, 5, v2
    v_mul_u32_u24 v2, 2688, v2
    v_mul_u32_u24 v4, 2688, v4
    v_and_b32 v3, 7, v1
    v_lshl_add_u32 v2, v3, 4, v2
    v_lshl_add_u32 v4, v3, 4, v4
    s_add_u32 s37, s36, {TA*896 + 384}
    buffer_load_dwordx4 v[64:67], v2, s[4:7], s37 offen
    s_add_u32 s37, s37, {8*2688}
    buffer_load_dwordx4 v[68:71], v4, s[4:7], s37 offen
    v_lshrrev_b32 v2, 5, v1
    v_mul_u32_u24 v2, 2688, v2
    v_and_b32 v3, 31, v1
    v_lshl_add_u32 v2, v3, 4, v2
    s_mul_i32 s37, s27, 384
    s_add_u32 s36, s36, s37
    """)
    for n, ty in enumerate((TB, TC)):
        for i in range(7):
            a(f's_add_u32 s37, s36, {ty*896 + 2*i*2688}')
            a(f'buffer_load_dwordx4 {v(72+28*n+4*i,4)}, v2, s[4:7], s37 offen')
    srd(a, 16, P_WS, WS_END)
    srd(a, 12, P_OUT, S * 2 * D * 2)
    a(f"""
    s_mov_b32 s36, {EPOCH}
    buffer_load_dword v253, off, s[16:19], s36 sc1
    s_waitcnt vmcnt(0)
    v_readfirstlane_b32 s20, v253
    s_add_u32 s20, s20, 1
    {'s_endpgm' if 'gemmonly' in DBG else ''}
    s_sleep 60
    s_sub_u32 s36, s23, 28
    s_lshl_b32 s36, s36, 3
    s_add_u32 s36, s36, s3
    s_mul_i32 s36, s36, 12544
    v_lshl_add_u32 v2, v1, 4, s36
    """)
    srd(a, 8, P_WO, D * D * 2)
    for i in range(13):
        a(f's_mov_b32 s36, {1024*i}')
        a(f'buffer_load_dwordx4 {v(64+4*i,4)}, v2, s[8:11], s36 offen')
    a("""
    s_waitcnt vmcnt(0)
    """)
    att_poll_addr(a, 176)
    a.label('L_lite0')
    su, _ = att_pre_groups()
    emit_groups(a, su)
    a('s_cmp_lg_u32 s3, 0\ns_cbranch_scc1 L_lite1')
    poll(a, 'PL_f1a', 176, 180, mask=1 << 63, x4=True, sleep=8)
    poll(a, 'PL_f1b', 176, 180, x4=True, sleep=2)
    a.label('L_lite1')
    a('s_barrier')
    a('s_branch L_pre')
    a.label('L_full')

RING0 = 65536; SLOT = 16384; NS = 4; DEPTH = 3
def slot_of(j): return (j + 2) % NS
XYP = 1056; XYCH = 53 * XYP
GP = 8384; GCH = 260 * 16
L_UT = 0
L_T2 = 114688; TP = 328; T2CH = 8 * TP * 2
L_U = 131072; UCH = 96 * 80
L_TAB = 147456; L_EP = L_TAB - 16
L_PART = 49152; PSRC = 1024; POWN = 4096
L_CTL = L_PART + 32768
assert 4*GP <= L_PART and L_T2 + 2*T2CH <= L_U and L_U + 2*UCH <= L_EP and L_TAB + 4*4096 <= LDS_TOTAL

def cmul(o, d, x, e, t):
    o.append(f'v_pk_mul_f32 {v(t,2)}, {v(x,2)}, {v(e,2)} op_sel:[0,0] op_sel_hi:[1,0]')
    o.append(f'v_pk_fma_f32 {v(d,2)}, {v(x,2)}, {v(e,2)}, {v(t,2)} op_sel:[1,1,0] op_sel_hi:[0,1,1] neg_lo:[1,0,0]')

def lines(txt): return [l.strip() for l in txt.split('\n') if l.strip()]

_KM = [{}, {}]
def _mk():
    pairs_pre = [20, 22, 24, 26, 28, 30, 32, 34, 36, 38, 40, 42, 48, 50, 52, 54]
    for i, r in enumerate(pairs_pre):
        b1 = 64 + 2*i; b0 = 64 + 2*i if i < 8 else 208 + 2*(i-8)
        _KM[1][r] = b1; _KM[1][r+1] = b1 + 1; _KM[0][r] = b0; _KM[0][r+1] = b0 + 1
    for i, r in enumerate([2, 3, 4, 5, 6, 7, 8, 9]): _KM[1][r] = 176 + i
    _KM[0][8] = 244; _KM[0][9] = 245
    for i, r in enumerate([68, 69, 70, 71]): _KM[1][r] = 184 + i; _KM[0][r] = 184 + i
_mk()
def kmap(l, ch):
    M = _KM[ch]
    def one(m): return f'v{M.get(int(m.group(1)), int(m.group(1)))}'
    def rng(m):
        lo = int(m.group(1)); hi = int(m.group(2)); n = M.get(lo, lo); return f'v[{n}:{n+hi-lo}]'
    l = re.sub(r'v\[(\d+):(\d+)\]', rng, l)
    return re.sub(r'\bv(\d+)\b', one, l)

def kgen(ch):
    P = 240
    pre = lines(f"""
    {'s_lshl_b32 s58, s38, 16' if ch == 0 else 's_and_b32 s58, s38, 0xffff0000'}
    v_mov_b32 v4, s58
    v_mul_f32 v4, {f32bits(LOG2E)}, v4
    v_exp_f32 v4, v4
    v_lshlrev_b32 v2, 16, v{P}
    v_lshlrev_b32 v3, 16, v{P+1}
    v_lshlrev_b32 v20, 16, v{P+2}
    v_lshlrev_b32 v21, 16, v{P+3}
    v_cvt_pk_bf16_f32 v4, v4, v4
    v_mul_f32 v2, {f32bits(LOG2E)}, v2
    v_exp_f32 v2, v2
    v_and_b32 v4, 0xffff0000, v4
    v_mul_f32 v3, v3, v4
    v_cvt_pk_bf16_f32 v2, v2, v2
    v_and_b32 v2, 0xffff0000, v2
    v_mul_f32 v2, v2, v4
    v_mul_f32 v2, {f32bits(-LOG2E)}, v2
    v_mul_f32 v3, {f32bits(1/(2*math.pi))}, v3
    v_add_f32 v4, v4, v4
    v_mul_f32 v20, v20, v4
    v_mul_f32 v21, v21, v4
    """)
    E1, E8, E256, E2, E4, E16, E32 = 22, 24, 26, 28, 30, 32, 34
    for (E, p) in ((E1, 1.0), (E8, 8.0), (E256, 256.0)):
        pre += lines(f"""
        v_mul_f32 v6, {f32bits(p)}, v2
        v_mul_f32 v7, {f32bits(p)}, v3
        v_exp_f32 v6, v6
        v_fract_f32 v7, v7
        v_cos_f32 v8, v7
        v_sin_f32 v9, v7
        v_mul_f32 v{E}, v6, v8
        v_mul_f32 v{E+1}, v6, v9
        """)
    cmul(pre, E2, E1, E1, 6); cmul(pre, E16, E8, E8, 8)
    cmul(pre, E4, E2, E2, 6); cmul(pre, E32, E16, E16, 8)
    Y = [48, 50, 52, 54]
    def put(o, row, x, r, neg=False):
        o.append(f'v_cvt_pk_bf16_f32 v{r}, v{x}, {"-" if neg else ""}v{x+1}')
        o.append(f'ds_write_addtid_b32 v{r} offset:{row*XYP}')
    chains = []
    for c in range(4):
        o = []
        cur = {0: None, 1: E8, 2: E16, 3: Y[3]}[c]
        if c == 3: cmul(o, Y[3], E16, E8, 36 + 2*c)
        for step in range(8):
            if cur is None:
                o.append(f'v_mov_b32 v{44+c}, 0x3f80')
                o.append(f'ds_write_addtid_b32 v{44+c} offset:{21*XYP}')
                cur = E32; continue
            put(o, 21 + 4*step + c, cur, 44 + c)
            if step < 7: cmul(o, Y[c], cur, E32, 36 + 2*c); cur = Y[c]
        chains.append(o)
    XC, GC, SD, SD2 = 56, 58, 60, 62
    o = []
    put(o, 0, 20, 68, True)
    for step in range(7):
        cmul(o, XC, 20 if step == 0 else XC, E1, 6); put(o, step + 1, XC, 68, True)
    chains.append(o)
    grow = {1: 8, 2: 12, 3: 14, 4: 16, 5: 17, 6: 18, 7: 19, 8: 20}
    G = [58, 10, 12, 58, 58, 58, 58, 58]
    G = [10, 12, 18, 58, 58, 58, 58, 58]
    o = []
    for step in range(8):
        cmul(o, G[step], 20 if step == 0 else G[step-1], E256, 8); put(o, grow[step+1], G[step], 69, True)
    chains.append(o)
    o = [None]*12
    cmul(o, SD, G[0], E2, 70); put(o, 9, SD, 5, True)
    cmul(o, SD2, G[0], E4, 70); put(o, 10, SD2, 5, True)
    cmul(o, SD, SD2, E2, 70); put(o, 11, SD, 5, True)
    cmul(o, SD2, G[1], E4, 70); put(o, 13, SD2, 5, True)
    cmul(o, SD, G[2], E4, 70); put(o, 15, SD, 5, True)
    chains.append(o)
    body = []
    for k in range(max(len(c) for c in chains)):
        for c in chains:
            if k < len(c) and c[k] is not None: body.append(c[k])
    return [kmap(l, ch) for l in pre], [kmap(l, ch) for l in body]

def kmfma(ch):
    FA = 80; FB = 144; KA = 208
    o = []
    for st in range(16):
        o.append(f'ds_read_b128 {v(FA+4*st,4)}, v20 offset:{st*64 + (1-ch)*XYCH}')
        o.append(f'ds_read_b128 {v(FB+4*st,4)}, v21 offset:{st*64 + (1-ch)*XYCH}')
        if st >= 4:
            k = st - 4
            o.append(f's_waitcnt lgkmcnt(8)')
            o.append(f'v_mfma_f32_16x16x32_bf16 {v(KA,4)}, {v(FA+4*k,4)}, {v(FB+4*k,4)}, {"0" if k == 0 else v(KA,4)}')
    for k in range(12, 16):
        o.append(f's_waitcnt lgkmcnt({2*(15-k)})')
        o.append(f'v_mfma_f32_16x16x32_bf16 {v(KA,4)}, {v(FA+4*k,4)}, {v(FB+4*k,4)}, {v(KA,4)}')
    fin = lines(f"""
    v_cvt_pk_bf16_f32 v{KA+4}, v{KA}, v{KA+1}
    v_cvt_pk_bf16_f32 v{KA+5}, v{KA+2}, v{KA+3}
    ds_write_b16 v22, v{KA+4} offset:{ch*T2CH}
    ds_write_b16_d16_hi v23, v{KA+4} offset:{ch*T2CH}
    ds_write_b16 v24, v{KA+5} offset:{ch*T2CH}
    ds_write_b16_d16_hi v25, v{KA+5} offset:{ch*T2CH}
    """)
    return o, fin

def gbuild(ch):
    g = 64; d = 80
    p0 = [f'ds_read_u16 v{g+i}, v{224+i} offset:{ch*T2CH}' for i in range(11)]
    p1 = []
    for t in range(4):
        p1 += [f'v_lshl_or_b32 v{d+4*t+i}, v{g+t+2*i+1}, 16, v{g+t+2*i}' for i in range(4)]
        p1 += [f'ds_write_b128 v249, {v(d+4*t,4)} offset:{t*GP + ch*GCH}']
    return p0, p1, []

K_, V_, Q_ = 1, 2, 0
TA, TB, TC = Q_, K_, V_
stages = [[('x',0),(TA,0)], [('x',1),('x',2)], [(TA,1),(TA,2)]]
for _i in range(3, 7): stages.append([('x', _i), (TA, _i)])
_rest = [(TB, i) for i in range(7)] + [(TC, i) for i in range(7)]
for _i in range(7): stages.append(_rest[2*_i:2*_i+2])
NST = len(stages)

def ph_front(a):
    a(f"""
    s_mov_b32 s95, 0
    s_lshl_b32 s37, s21, 10
    v_lshl_add_u32 v248, v0, 1, s37
    s_lshl_b32 s36, s21, 2
    v_lshrrev_b32 v3, 3, v1
    v_and_b32 v4, 7, v1
    s_and_b32 s29, s3, 3                   ; lw
    s_bfe_u32 s63, s3, 0x10001
    s_and_b32 s61, s3, 1
    s_mul_i32 s99, s63, {16*XYP}
    s_mul_i32 s100, s61, {16*XYP}
    s_add_u32 s100, s100, {21*XYP}
    s_cmp_lt_u32 s3, 4
    s_cbranch_scc1 Q_comp
    """)
    loader_waves(a)
    a.label('Q_comp')
    comp_waves(a)

def params(a, vo=248):
    for i in range(4):
        srd(a, 56, P_LA + 2*i, D * 256 * 2)
        a(f'buffer_load_ushort v{240+i}, v{vo}, s[56:59], 0 offen nt')
    a(f"""
    s_lshl_b32 s36, s21, 2
    s_add_u32 s{P_DT}, s{P_DT}, s36
    s_addc_u32 s{P_DT+1}, s{P_DT+1}, 0
    s_add_u32 s{P_DS}, s{P_DS}, s36
    s_addc_u32 s{P_DS+1}, s{P_DS+1}, 0
    s_load_dword s38, s[{P_DT}:{P_DT+1}], 0
    s_load_dword s39, s[{P_DS}:{P_DS+1}], 0
    """)

def ssm_head(ch):
    pre, body = kgen(ch)
    h = lines(f"""
    s_lshl_b32 s36, s29, 8
    s_add_u32 m0, s36, {(1-ch)*XYCH}
    v_and_b32 v14, 255, v0
    v_lshlrev_b32 v249, 4, v14
    v_add_u32 v15, {L_TAB}, v249
    v_and_b32 v20, 15, v1
    v_lshrrev_b32 v21, 4, v1
    v_mul_u32_u24 v20, {XYP}, v20
    v_lshl_add_u32 v20, v21, 4, v20
    v_add_u32 v21, s100, v20
    v_add_u32 v20, s99, v20
    v_mov_b32 v{CV}, {L_CTL}
    v_mov_b32 v{C1}, 1
    """)
    tab = [f'ds_read_b128 v[22:25], v15 offset:{3*4096}']
    tab += [f'ds_read_b128 {v(224+4*q,4)}, v15 offset:{q*4096}' for q in range(3)]
    return h + body + tab

def ssm_common(a, ch, before_b1, before_b2, after_b2, before_bc):
    m, fin = kmfma(ch); g = gbuild(ch)
    before_b1()
    a('s_waitcnt lgkmcnt(0)\ns_barrier')
    stamp(a, 3)
    for l in m: a(l)
    a(f"""
    v_mov_b32 v32, 0
    v_mov_b32 v33, 0
    v_mov_b32 v34, 0
    v_mov_b32 v35, 0
    v_and_b32 v9, 7, v1
    v_mul_u32_u24 v9, {2*TP}, v9
    v_add_u32 v9, {L_T2 + 2*(TP-1) + ch*T2CH}, v9
    ds_write_b16 v9, v32
    """)
    for l in fin: a(l)
    before_b2()
    a('s_waitcnt lgkmcnt(0)\ns_barrier')
    stamp(a, 14)
    for l in g[0]: a(l)
    after_b2()
    a('s_waitcnt lgkmcnt(0)')
    for l in g[1] + g[2]: a(l)
    before_bc()
    a('s_waitcnt lgkmcnt(0)\ns_barrier')
    stamp(a, 4)

UV = [220, 221, 222, 252, 255]
def loader_waves(a):
    a(f"""
    s_sub_u32 s28, s24, 7
    s_cmp_ge_u32 s24, 7
    s_cselect_b32 s27, s28, s24            ; rho
    s_lshl_b32 s30, s29, 4
    v_add_u32 v5, s30, v3
    v_lshrrev_b32 v6, 1, v5
    v_and_b32 v6, 7, v6
    v_xor_b32 v6, v6, v4
    v_lshlrev_b32 v6, 4, v6
    s_lshl_b32 s30, s26, 6
    v_add_u32 v7, s30, v5
    v_mul_u32_u24 v7, 896, v7
    v_add_u32 v244, v7, v6
    v_xor_b32 v6, 64, v6
    v_add_u32 v245, v7, v6
    v_add_u32 v245, 7168, v245
    v_lshrrev_b32 v6, 1, v5
    v_and_b32 v6, 1, v6
    v_lshlrev_b32 v6, 2, v6
    v_xor_b32 v6, v6, v4
    v_lshlrev_b32 v6, 4, v6
    v_mul_u32_u24 v7, 2688, v5
    v_add_u32 v246, v7, v6
    s_lshl_b32 s30, s25, 7
    v_add_u32 v246, s30, v246
    v_add_u32 v247, 21504, v246
    s_lshl_b32 s32, s29, 11
    s_lshl_b32 s40, s27, 7
    s_mul_i32 s48, s27, {64*2688}
    s_waitcnt lgkmcnt(0)
    """)
    srd(a, 8, P_X, S * D * 2)
    srd(a, 4, P_W, D * 3 * D * 2)
    def issue(j):
        for half, (kind, i) in enumerate(stages[j]):
            base = RING0 + slot_of(j) * SLOT + half * 8192
            for e in range(2):
                a(f's_add_u32 m0, s32, {base + e*1024}')
                if kind == 'x':
                    a(f'buffer_load_dwordx4 v{244+e}, s[8:11], s{40+i} offen {XMOD} lds')
                else:
                    so = f's{48+i}'
                    if kind:
                        so = 's33'
                        if e == 0: a(f's_add_u32 s33, s{48+i}, {kind*896}')
                    a(f'buffer_load_dwordx4 v{246+e}, s[4:7], {so} offen lds')
    vm = []
    def waitfor(tag):
        last = max(i for i, t in enumerate(vm) if t == tag)
        a(f's_waitcnt vmcnt({len(vm) - 1 - last})')
    issue(0); vm += [0]*4
    for i in range(1, 7):
        if i == 3: issue(1); vm += [1]*4
        a(f's_add_u32 s27, s27, 1\ns_cmp_eq_u32 s27, 7\ns_cselect_b32 s27, 0, s27\ns_lshl_b32 s{40+i}, s27, 7\ns_mul_i32 s{48+i}, s27, {64*2688}')
    srd(a, 16, P_WS, WS_END)
    srd(a, 12, P_OUT, S * 2 * D * 2)
    t = Asm()
    t(f"""
    s_movk_i32 s101, 4096
    v_and_b32 v2, 3, v1
    v_mul_u32_u24 v2, {GP}, v2
    v_bfe_u32 v3, v1, 2, 2
    v_lshl_add_u32 v2, v3, 4, v2
    v_bfe_u32 v3, v1, 4, 1
    v_mul_u32_u24 v3, {GCH}, v3
    v_add3_u32 v217, v2, v3, s101
    s_lshl_b32 s36, s21, 1
    s_lshr_b32 s56, s36, 2
    s_lshl_b32 s56, s56, 14
    s_and_b32 s36, s36, 3
    s_lshl_b32 s36, s36, 4
    s_add_u32 s56, s56, s36
    s_add_u32 s56, s56, {WS_UT}
    s_mov_b32 s92, s56
    """)
    for k in range(5):
        t(f"""
        v_add_u32 v2, {64*k}, v1
        v_mul_u32_u24 v3, 205, v2
        v_lshrrev_b32 v3, 10, v3
        v_mul_u32_u24 v4, 5, v3
        v_sub_u32 v4, v2, v4
        v_min_u32 v4, 3, v4
        v_lshl_add_u32 v3, v3, 2, v4
        v_lshlrev_b32 v{UV[k]}, 6, v3
        """)
    t(f"""
    s_lshr_b32 s36, s21, 5
    s_lshl_b32 s36, s36, {FS+5}
    v_and_b32 v17, 31, v1
    v_lshl_add_u32 v223, v17, {FS}, s36
    v_lshrrev_b32 v18, 5, v1
    v_and_b32 v19, 3, v17
    v_sub_u32 v19, 3, v19
    v_mul_u32_u24 v19, {GP}, v19
    v_lshrrev_b32 v2, 2, v17
    v_lshlrev_b32 v3, 1, v18
    v_sub_u32 v2, v3, v2
    v_lshl_add_u32 v19, v2, 3, v19
    s_mul_i32 s36, s61, {GCH}
    s_lshl_b32 s56, s63, 10
    s_sub_u32 s36, s36, s56
    s_add_u32 s36, s36, {8*511 - 32*94}
    v_add_u32 v218, s36, v19
    v_mul_u32_u24 v2, 80, v17
    v_lshl_add_u32 v2, v18, 4, v2
    s_mul_i32 s36, s61, {UCH}
    s_mul_i32 s56, s63, {16*80}
    s_sub_u32 s36, s36, s56
    s_add_u32 s36, s36, {L_U + 17*80}
    v_add_u32 v219, s36, v2
    v_mov_b64 v[32:33], 0
    v_mov_b64 v[34:35], 0
    v_and_b32 v14, 255, v0
    v_lshlrev_b32 v36, 4, v14
    v_add_u32 v36, {L_U}, v36
    v_cmp_gt_u32 vcc, 160, v14
    s_mov_b64 exec, vcc
    ds_write_b128 v36, v[32:35]
    ds_write_b128 v36, v[32:35] offset:{UCH}
    s_mov_b64 exec, -1
    """)
    for l in t.lines: a(l)
    for j in range(2, PRE_ST): issue(j); vm += [j]*4
    issued = max(2, PRE_ST)
    pre, _ = kgen(1)
    extra = lines(f"""
    v_mov_b32 v2, {L_EP}
    ds_read_b32 v2, v2
    s_waitcnt lgkmcnt(0)
    v_readfirstlane_b32 s20, v2
    """) + pre
    head = ssm_head(1)
    for j in range(NST):
        waitfor(j)
        if j == 0: stamp(a, 13)
        a('s_barrier')
        if j == 0: stamp(a, 1)
        if 'gemmonly' in DBG and j >= 5: stamp(a, j - 2)
        while issued < NST and issued <= j + DEPTH:
            if 'nodma' not in DBG: issue(issued)
            vm += [issued]*4; issued += 1
        if j == 0:
            params(a); vm += ['p']*4
        if j in (8, 9, 10) and 'noextra' not in DBG:
            k = -(-len(extra) // (11 - j))
            for l in extra[:k]: a(l)
            extra = extra[k:]
        if j in (11, 12):
            for l in head[:LD_PER]: a(l)
            head = head[LD_PER:]
    a('s_cmp_eq_u32 s3, 4\ns_cselect_b32 s60, 1, 0\ns_cbranch_scc0 Q_nof0a')
    a('buffer_load_dwordx4 v[28:31], v223, s[16:19], 0 offen sc1')
    a.label('Q_nof0a')
    for l in head: a(l)
    stamp(a, 2)
    if 'gemmonly' in DBG: a('s_branch P_fin')
    def nop(): pass
    def udma():
        a('s_add_u32 s93, s92, 16')
        for ch in range(2):
            for k in range(5):
                a(f's_mov_b32 m0, {L_U + 32*80 + ch*UCH + 1024*k}')
                a(f'buffer_load_dwordx4 v{UV[k]}, s[16:19], s{92+ch} offen sc1 lds')
    def look(tag, last=False):
        a(f's_cmp_eq_u32 s60, 0\ns_cbranch_scc1 Q_lk{tag}')
        if last:
            poll(a, 'PL_f0', 223, 28, x4=True, sleep=1)
        else:
            a('s_waitcnt vmcnt(0)')
            for i in range(4): a(f'v_xor_b32 v{28+i}, s20, v{28+i}')
            a('v_or3_b32 v28, v28, v29, v30\nv_or_b32 v28, v28, v31\nv_cmp_ne_u32 vcc, 0, v28')
            a(f's_nop 4\ns_cbranch_vccz Q_lg{tag}')
            a('buffer_load_dwordx4 v[28:31], v223, s[16:19], 0 offen sc1')
            a(f's_branch Q_lk{tag}')
            a.label(f'Q_lg{tag}')
        a('s_call_b64 s[96:97], Q_udma')
        a.label(f'Q_lk{tag}')
    def b2():
        look('b')
        a(f"""
        s_mov_b32 exec_hi, 0
        ds_write_b128 v217, v[32:35]
        s_mov_b32 exec_hi, -1
        ds_write2_b32 v{CV}, v32, v33 offset0:1 offset1:3
        """)
    def bc():
        look('c', True)
        a('s_waitcnt vmcnt(0)')
    ssm_common(a, 1, lambda: look('a'), nop, b2, bc)
    if CONV_PRIO: a('s_setprio 1')
    SC = 4; sc = [0]
    def sarr():
        a('s_waitcnt lgkmcnt(0)'); garrive(a, SC); sc[0] += 4
    Y0, Y1 = 176, 192
    FR = 32; NBUF = 4
    def boff(n): return (n // 2) * 80 + (n % 2) * 32
    def ld(t):
        b = FR + 16 * (t % NBUF); ao = 32*(31-t)
        return [f'ds_read_b64 {v(b,2)}, v218 offset:{ao + 2048}',
                f'ds_read_b64 {v(b+2,2)}, v218 offset:{ao + 2056}',
                f'ds_read_b128 {v(b+4,4)}, v219 offset:{boff(31-t)}',
                f'ds_read_b128 {v(b+8,4)}, v219 offset:{boff(31-t) + 2560}',
                f'ds_read_b64 {v(b+12,2)}, v218 offset:{ao}',
                f'ds_read_b64 {v(b+14,2)}, v218 offset:{ao + 8}']
    def mm(t, first):
        b = FR + 16 * (t % NBUF)
        return [f'v_mfma_f32_32x32x16_bf16 {v(Y0,16)}, {v(b,4)}, {v(b+4,4)}, {"0" if first else v(Y0,16)}',
                f'v_mfma_f32_32x32x16_bf16 {v(Y1,16)}, {v(b,4)}, {v(b+8,4)}, {"0" if first else v(Y1,16)}',
                f'v_mfma_f32_32x32x16_bf16 {v(Y1,16)}, {v(b+12,4)}, {v(b+4,4)}, {v(Y1,16)}']
    for l in ld(0) + ld(1): a(l)
    t_ = Asm(); ssm_epi_setup(t_)
    t_(f's_mul_i32 s36, s29, {PSRC}\ns_add_u32 s36, s36, {L_PART}\nv_lshl_add_u32 v216, v1, 4, s36')
    fillA = [[l] for l in t_.lines]
    su, fillB = att_pre_groups()
    fillA += su
    T0 = CONV_T0
    def take(q, k):
        for _ in range(k):
            if q:
                for l in q.pop(0): a(l)
    perA = -(-len(fillA) // (3*T0)); perB = -(-len(fillB) // (3*(30 - T0)))
    for t in range(32):
        if t == T0:
            gwait(a, 12, 1, 2)
        else:
            a(f's_waitcnt lgkmcnt({6 if t < 31 else 0})')
        L = ld(t + 2) if t + 2 < 32 else []
        M = mm(t, t == 0)
        q, per = (fillA, perA) if t < T0 else (fillB, perB)
        a(M[0])
        for l in L[:2]: a(l)
        take(q, per)
        a(M[1])
        for l in L[2:4]: a(l)
        take(q, per)
        a(M[2])
        for l in L[4:]: a(l)
        take(q, per)
    assert not fillA and not fillB
    a('s_setprio 1')
    for own in range(8):
        a(f'ds_write_b128 v216, {v(Y0 + 4*own, 4)} offset:{own*POWN}')
    sarr()
    emit_groups(a, att_zero())
    gwait(a, SC, sc[0], 2)
    stamp(a, 5)
    ssm_epi_reads(a)
    sarr()
    ssm_epi(a)
    gwait(a, SC, sc[0], 2)
    a('s_branch L_att')
    a.label('Q_udma')
    udma()
    a('s_mov_b32 s60, 0\ns_setpc_b64 s[96:97]')

def comp_waves(a):
    XF = 64; ACC = {K_: 176, V_: 192, Q_: 208}; WB = [[8 + 4*i for i in range(8)], [224 + 4*i for i in range(4)] + [40 + 4*i for i in range(4)]]
    a(f"""
    s_lshl_b32 s28, s3, 1
    v_xor_b32 v5, s28, v4
    v_lshlrev_b32 v5, 4, v5
    s_lshl_b32 s30, s26, 6
    s_lshl_b32 s31, s3, 4
    s_add_u32 s30, s30, s31
    v_add_u32 v6, s30, v3
    v_mul_u32_u24 v6, 896, v6
    s_lshl_b32 s31, s25, 7
    v_add_u32 v6, s31, v6
    v_add_u32 v246, v6, v5
    v_xor_b32 v5, 16, v5
    v_add_u32 v6, v6, v5
    v_add_u32 v247, 7168, v6
    s_lshl_b32 s31, s3, 11
    s_add_u32 s32, s31, {L_UT}
    s_waitcnt lgkmcnt(0)
    """)
    srd(a, 16, P_WS, WS_END)
    a(f"""
    s_cmp_lg_u32 s3, 0
    s_cbranch_scc1 Q_noep0
    s_mov_b32 s33, {EPOCH}
    buffer_load_dword v253, off, s[16:19], s33 sc1
    """)
    a.label('Q_noep0')
    srd(a, 12, P_OUT, S * 2 * D * 2)
    a(f"""
    v_and_b32 v5, 1, v1
    v_bfe_u32 v6, v1, 1, 1
    v_lshrrev_b32 v7, 4, v1
    v_add_u32 v2, s28, v5
    v_xor_b32 v7, v7, v2
    v_lshlrev_b32 v7, 4, v7
    v_lshl_add_u32 v7, v6, 3, v7
    v_bfe_u32 v6, v1, 2, 2
    v_lshl_add_u32 v6, v5, 3, v6
    v_lshl_add_u32 v7, v6, 7, v7
    s_add_u32 s31, s31, {L_UT}
    v_add_u32 v249, s31, v7
    v_xor_b32 v252, 64, v249
    s_lshl_b32 s31, s25, 18
    s_lshl_b32 s33, s26, 9
    s_add_u32 s31, s31, s33
    s_lshl_b32 s33, s3, 7
    s_add_u32 s31, s31, s33
    s_add_u32 s31, s31, {WS_UT}
    v_lshlrev_b32 v255, 14, v3
    v_lshl_add_u32 v255, v4, 4, v255
    v_add_u32 v255, s31, v255
    v_lshlrev_b32 v6, 3, v0
    v_sub_u32 v6, 2047, v6
    v_mov_b32 v17, {L_T2}
    v_mov_b32 v18, {TP}
    v_lshlrev_b32 v19, 4, v0
    v_add_u32 v19, {L_TAB}, v19
    s_mov_b32 s36, 0
    """)
    a.label('Q_tab')
    for i in (0, 2):
        a(f"""
        v_subrev_u32 v7, {i}, v6
        v_subrev_u32 v8, {i+1}, v6
        v_cvt_f32_i32 v2, v7
        v_cvt_f32_i32 v5, v8
        v_cvt_pk_bf16_f32 v2, v2, v5
        v_and_b32 v5, 0xffff0000, v2
        v_lshlrev_b32 v2, 16, v2
        v_cvt_i32_f32 v2, v2
        v_cvt_i32_f32 v5, v5
        v_and_b32 v7, 7, v2
        v_and_b32 v8, 7, v5
        v_ashrrev_i32 v2, 3, v2
        v_ashrrev_i32 v5, 3, v5
        v_mad_u32_u24 v2, v7, v18, v2
        v_mad_u32_u24 v5, v8, v18, v5
        v_lshl_add_u32 v{64+i}, v2, 1, v17
        v_lshl_add_u32 v{65+i}, v5, 1, v17
        """)
    a(f"""
    ds_write_b128 v19, v[64:67]
    v_add_u32 v19, 4096, v19
    v_subrev_u32 v6, 4, v6
    s_add_u32 s36, s36, 1
    s_cmp_lt_u32 s36, 3
    s_cbranch_scc1 Q_tab
    v_and_b32 v17, 15, v1
    """)
    ix = lambda p: (p & 7) * TP + (p >> 3)
    def pk(b, s1, s2): assert b < 4096 and s1 < 1024 and s2 < 1024; return b | (s1 << 12) | (s2 << 22)
    t0 = [pk(0, TP, 2*TP), pk(4*TP, TP, 2*TP), None, None]
    a('s_cmp_eq_u32 s63, 0')
    ptab = {0: [[0,1,2,3],[4,5,6,7],[256,258,260,262],[512,516,768,772]],
            1: [[1024,1280,1536,1792],[2048,2304,2304,2304],[2304]*4,[2304]*4]}
    for g in range(4):
        lo = lambda at: ix(ptab[at][g][0]) | (ix(ptab[at][g][1]) << 16)
        hi = lambda at: ix(ptab[at][g][2]) | (ix(ptab[at][g][3]) << 16)
        a(f's_mov_b32 exec_lo, {0xffff << (16*(g%2)) if g < 2 else 0}')
        a(f's_mov_b32 exec_hi, {0xffff << (16*(g%2)) if g >= 2 else 0}')
        a(f's_mov_b32 s36, {lo(1)}\ns_cselect_b32 s36, {lo(0)}, s36\nv_mov_b32 v68, s36')
        a(f's_mov_b32 s36, {hi(1)}\ns_cselect_b32 s36, {hi(0)}, s36\nv_mov_b32 v70, s36')
    a(f"""
    s_mov_b64 exec, -1
    s_lshl_b32 s36, s61, 5
    s_add_u32 s36, s36, {L_T2}
    v_lshl_add_u32 v18, v17, 1, s36
    v_lshrrev_b32 v69, 16, v68
    v_lshrrev_b32 v71, 16, v70
    v_and_b32 v68, 0xffff, v68
    v_and_b32 v70, 0xffff, v70
    v_lshl_add_u32 v68, v68, 1, v18
    v_lshl_add_u32 v69, v69, 1, v18
    v_lshl_add_u32 v70, v70, 1, v18
    v_lshl_add_u32 v71, v71, 1, v18
    ds_write_b128 v19, v[68:71]
    s_and_b32 s27, s3, 1                   ; rt
    s_lshr_b32 s30, s3, 1                  ; cg
    v_and_b32 v3, 31, v1
    v_lshrrev_b32 v4, 5, v1
    s_lshl_b32 s31, s27, 5
    v_add_u32 v5, s31, v3
    v_lshrrev_b32 v6, 1, v5
    v_and_b32 v6, 7, v6
    v_lshlrev_b32 v7, 7, v5
    v_add_u32 v7, {RING0}, v7
    """)
    for st in range(4):
        a(f"""
        v_add_u32 v{56+st}, {2*st}, v4
        v_xor_b32 v{56+st}, v{56+st}, v6
        v_lshl_add_u32 v{56+st}, v{56+st}, 4, v7
        """)
    a(f"""
    v_and_b32 v6, 3, v1
    v_lshlrev_b32 v6, 3, v6
    v_bfe_u32 v7, v1, 4, 1
    v_lshl_add_u32 v6, v7, 5, v6
    s_lshl_b32 s31, s30, 6
    v_add_u32 v6, s31, v6
    v_bfe_u32 v7, v1, 3, 1
    v_lshlrev_b32 v7, 6, v7
    v_xor_b32 v6, v6, v7
    v_bfe_u32 v7, v1, 2, 2
    v_lshl_add_u32 v7, v4, 3, v7
    v_lshl_add_u32 v60, v7, 7, v6
    v_add_u32 v60, {RING0}, v60
    s_lshl_b32 s31, s26, 1
    s_add_u32 s31, s31, s27
    s_mul_i32 s31, s31, {TILEB}
    s_lshl_b32 s33, s25, 3
    s_lshl_b32 s34, s30, 2
    s_add_u32 s33, s33, s34
    s_lshl_b32 s34, s33, 9
    s_add_u32 s34, s34, s31
    v_lshlrev_b32 v61, 4, v1
    v_add_u32 v61, s34, v61
    s_lshl_b32 s34, s33, 7
    s_add_u32 s34, s34, s31
    v_mul_u32_u24 v62, 7168, v4
    v_lshl_add_u32 v62, v3, 4, v62
    v_add_u32 v62, s34, v62
    s_mov_b32 s35, {f32bits(QSCALE)}
    s_lshl_b32 s60, s25, {FS+5}
    s_lshl_b32 s61, s26, {FS}
    s_add_u32 s60, s60, s61
    s_lshl_b32 s61, s3, 2
    s_add_u32 s60, s60, s61
    v_mov_b32 v63, {L_EP}
    s_cmp_lg_u32 s3, 0
    s_cbranch_scc1 Q_noep
    s_waitcnt vmcnt(0)
    v_add_u32 v253, 1, v253
    ds_write_b32 v63, v253
    """)
    a.label('Q_noep')
    a('s_waitcnt vmcnt(0) lgkmcnt(0)')
    stamp(a, 13)
    def reads(j):
        sb = slot_of(j) * SLOT
        n = 0; o = []
        for half, (kind, i) in enumerate(stages[j]):
            base = sb + half * 8192
            if kind == 'x':
                for st in range(4):
                    o.append(f'ds_read_b128 {v(XF + 16*i + 4*st, 4)}, v{56 + st} offset:{base}')
            else:
                for st in range(4):
                    r = WB[j % 2][n]; n += 1
                    for e in range(2):
                        o.append(f'ds_read_b64_tr_b16 {v(r + 2*e, 2)}, v60 offset:{base + (16*st + 4*e)*128}')
        return o
    started = set()
    def epilogue(kind):
        acc = ACC[kind]; out = []
        if kind == Q_:
            for r in range(16): out.append(f'v_mul_f32 v{acc+r}, s35, v{acc+r}')
        for r in range(8): out.append(f'v_cvt_pk_bf16_f32 v{acc+r}, v{acc+2*r}, v{acc+2*r+1}')
        T = acc
        if kind == V_:
            out.append(f's_mov_b32 s36, {WS_V}')
            out.append(f'buffer_store_dwordx4 {v(T,4)}, v62, s[16:19], s36 offen sc1')
            out.append(f's_mov_b32 s36, {WS_V + 2*7168}')
            out.append(f'buffer_store_dwordx4 {v(T+4,4)}, v62, s[16:19], s36 offen sc1')
        else:
            for q in range(2):
                out.append(f'v_permlane32_swap_b32 v{T+4*q}, v{T+4*q+2}')
                out.append(f'v_permlane32_swap_b32 v{T+4*q+1}, v{T+4*q+3}')
            out.append(f's_mov_b32 s36, {WS_Q if kind == Q_ else WS_K}')
            out.append(f'buffer_store_dwordx4 {v(T,4)}, v61, s[16:19], s36 offen sc1')
            out.append(f'buffer_store_dwordx4 {v(T+4,4)}, v61, s[16:19], s36 offen offset:1024 sc1')
        return out
    def mlist(j):
        n = 0; done = []; o = []
        for half, (kind, i) in enumerate(stages[j]):
            if kind == 'x': continue
            acc = ACC[kind]
            for st in range(4):
                w = WB[j % 2][n]; n += 1
                x = XF + 16*i + 4*st
                c = v(acc, 16) if kind in started else '0'
                started.add(kind)
                if kind == V_: o.append(f'v_mfma_f32_32x32x16_bf16 {v(acc,16)}, {v(x,4)}, {v(w,4)}, {c}')
                else:          o.append(f'v_mfma_f32_32x32x16_bf16 {v(acc,16)}, {v(w,4)}, {v(x,4)}, {c}')
            if i == 6: done.append(kind)
        return o, done
    def weave(ms, rd, fill):
        nm = len(ms)
        per = -(-len(rd) // max(nm - 2, 1))
        fper = -(-len(fill) // max(nm - 2, 1))
        for k, m in enumerate(ms):
            a(m)
            for _ in range(per):
                if rd: a(rd.pop(0))
            if k >= 2:
                for _ in range(fper):
                    if fill: a(fill.pop(0))
        for l in rd + fill: a(l)
    pending = []; carry = []
    pre, _ = kgen(0)
    prep = [pre[:len(pre)//2], pre[len(pre)//2:]]
    for j in range(NST):
        a('s_barrier')
        if j == 0: stamp(a, 1)
        rd = reads(j); ms = []; fill = carry; carry = []
        if j == 0: rd.append('ds_read_b32 v253, v63')
        if j > 0:
            for k in pending: fill += epilogue(k)
            ms, pending = mlist(j - 1)
        if j == U_TR:
            a('s_waitcnt vmcnt(4)')
            rd += ['ds_read_b64_tr_b16 v[192:193], v249', 'ds_read_b64_tr_b16 v[194:195], v249 offset:512',
                   'ds_read_b64_tr_b16 v[196:197], v252', 'ds_read_b64_tr_b16 v[198:199], v252 offset:512']
        if j == U_TR + 1:
            fill = [f's_mov_b32 s36, {8*16384}', 'buffer_store_dwordx4 v[192:195], v255, s[16:19], 0 offen sc1',
                    'buffer_store_dwordx4 v[196:199], v255, s[16:19], s36 offen sc1'] + fill
        if 'nocomp' in DBG: ms = []; rd = rd[-1:]; fill = []
        if 'nofill' in DBG: fill = []
        if 'nord' in DBG: rd = rd[-1:]
        if j == F0_SIG and 'nofill' not in DBG:
            a('v_readfirstlane_b32 s20, v253')
            a(f's_waitcnt vmcnt({0 if F0_SIG <= 9 else 2})')
            signal(a, 60, 2, 3)
        if len(fill) > FILL_MAX and j < NST - 1:
            carry = fill[FILL_MAX:]; fill = fill[:FILL_MAX]
        weave(ms, rd, fill)
        if j == U_ISS:
            srd(a, 56, P_U, S * D * 2)
            a('s_mov_b32 m0, s32\ns_nop 0\nbuffer_load_dwordx4 v246, s[56:59], 0 offen nt lds')
            a('s_add_u32 m0, s32, 1024\ns_nop 0\nbuffer_load_dwordx4 v247, s[56:59], 0 offen nt lds')
            params(a)
        if False:
            a('v_readfirstlane_b32 s20, v253')
            a('s_waitcnt vmcnt(0)')
            signal(a, 60, 2, 3)
        a('s_waitcnt lgkmcnt(0)')
    fill = []
    for k in pending: fill += epilogue(k)
    ms, pending = mlist(NST - 1)
    weave(ms, [], fill)
    for k in pending:
        for l in epilogue(k): a(l)
    stamp(a, 2)
    if 'gemmonly' in DBG: a('s_branch P_fin')
    sc_, ve_, lds_ = att_split()
    def nop(): pass
    head = ssm_head(0)
    head = head[:2] + pre[:1] + head[2:10] + pre[1:] + head[10:]
    cut = int(len(head) * KG_CUT)
    scl = [l for g in sc_ for l in g]
    def mix(lst):
        for i, l in enumerate(lst):
            a(l)
            if i >= 14 and i % 2 == 0 and scl: a(scl.pop(0))
    FL = 252
    a('s_cmp_lg_u32 s3, 0\ns_cbranch_scc1 Q_np0')
    att_poll_addr(a, FL)
    a.label('Q_np0')
    a(f's_add_u32 s60, s60, {F1}')
    mix(head[:cut])
    a('s_waitcnt vmcnt(0)')
    signal(a, 60, 2, 3)
    mix(head[cut:])
    for l in scl: a(l)
    def b2():
        a('s_cmp_lg_u32 s3, 0\ns_cbranch_scc1 Q_np2')
        a(f'buffer_load_dwordx4 v[244:247], v{FL}, s[16:19], 0 offen sc1')
        a.label('Q_np2')
    ssm_common(a, 0, nop, nop, b2, nop)
    a('s_setprio 2')
    emit_groups(a, ve_)
    a('s_cmp_lg_u32 s3, 0\ns_cbranch_scc1 Q_w1')
    a('s_waitcnt vmcnt(0)')
    for i in range(4): a(f'v_xor_b32 v{244+i}, s20, v{244+i}')
    a('v_or3_b32 v244, v244, v245, v246\nv_or_b32 v244, v244, v247\nv_cmp_ne_u32 vcc, 0, v244')
    a('s_nop 4\ns_cbranch_vccz Q_w0')
    poll(a, 'PL_f1', FL, 244, x4=True, sleep=1)
    a.label('Q_w0')
    a(f'ds_write_b32 v{CV}, v{C1} offset:12')
    a('s_branch L_pre')
    a.label('Q_w1')
    gwait(a, 12, 1, 2)
    a.label('L_pre')
    stamp(a, 5)
    emit_groups(a, lds_[:10] + att_zero())
    att_first(a, 4)
    emit_groups(a, lds_[10:])
    a('s_setprio 0')
    a('s_branch L_att2')

EB = 176
EA = EB + 56
ET = 96
def ssm_epi_setup(a):
    a(f"""
    v_and_b32 v{ET}, 1, v1                      ; ch
    v_bfe_u32 v{ET+1}, v1, 1, 2                 ; j
    v_lshrrev_b32 v{ET+2}, 3, v1
    v_mul_u32_u24 v{ET+3}, {POWN}, v{ET+1}
    v_mul_u32_u24 v{ET+4}, {PSRC}, v{ET}
    v_add_u32 v{ET+3}, v{ET+3}, v{ET+4}
    v_lshl_add_u32 v{ET+3}, v{ET+2}, 4, v{ET+3}
    s_lshl_b32 s60, s29, 7
    s_add_u32 s36, s60, {L_PART}
    v_add_u32 v{EA}, s36, v{ET+3}
    v_mul_u32_u24 v{ET+2}, 80, v{ET+2}
    v_lshl_add_u32 v{ET+2}, v{ET+1}, 4, v{ET+2}
    v_mul_u32_u24 v{ET+4}, {UCH}, v{ET}
    v_add_u32 v{ET+2}, v{ET+2}, v{ET+4}
    s_mul_i32 s36, s29, 640
    s_add_u32 s36, s36, {L_U + 32*80}
    v_add_u32 v{EA+1}, s36, v{ET+2}             ; u chunk
    s_lshl_b32 s36, s21, 13
    s_lshl_b32 s60, s29, 10
    s_add_u32 s36, s36, s60
    s_add_u32 s36, s36, {WS_YT}
    v_lshl_add_u32 v{EA+2}, v1, 4, s36
    s_lshl_b32 s60, s39, 16
    s_and_b32 s61, s39, 0xffff0000
    v_mov_b32 v{EA+3}, s60
    v_mov_b32 v{ET+4}, s61
    v_cmp_eq_u32 vcc, 1, v{ET}
    v_cndmask_b32 v{EA+3}, v{EA+3}, v{ET+4}, vcc
    """)

def ssm_epi_reads(a):
    for p in range(2):
        E = EB + 28*p; o = p*4*POWN
        a(f"""
        ds_read_b128 {v(E,4)}, v{EA} offset:{o}
        ds_read_b128 {v(E+4,4)}, v{EA} offset:{o+512}
        ds_read_b128 {v(E+8,4)}, v{EA} offset:{o+2*PSRC}
        ds_read_b128 {v(E+12,4)}, v{EA} offset:{o+2*PSRC+512}
        ds_read_b128 {v(E+16,4)}, v{EA+1} offset:{p*2560}
        """)

def ssm_epi(a):
    a('s_mov_b32 s36, 4096')
    for p in range(2):
        A = EB + 28*p; B = A + 8; U = A + 16; C = A + 20
        for e in range(8): a(f'v_add_f32 v{A+e}, v{A+e}, v{B+e}')
        for e in range(4):
            a(f'v_lshlrev_b32 v{C+2*e}, 16, v{U+e}')
            a(f'v_and_b32 v{C+1+2*e}, 0xffff0000, v{U+e}')
        for e in range(8): a(f'v_mul_f32 v{C+e}, v{EA+3}, v{C+e}')
        for e in range(4):
            a(f'v_cvt_pk_bf16_f32 v{B+e}, v{A+2*e}, v{A+1+2*e}')
            a(f'v_cvt_pk_bf16_f32 v{B+4+e}, v{C+2*e}, v{C+1+2*e}')
        for e in range(4):
            a(f'v_lshlrev_b32 v{A+2*e}, 16, v{B+e}')
            a(f'v_and_b32 v{A+1+2*e}, 0xffff0000, v{B+e}')
            a(f'v_lshlrev_b32 v{C+2*e}, 16, v{B+4+e}')
            a(f'v_and_b32 v{C+1+2*e}, 0xffff0000, v{B+4+e}')
        for e in range(8): a(f'v_add_f32 v{A+e}, v{A+e}, v{C+e}')
        for e in range(4): a(f'v_cvt_pk_bf16_f32 v{B+e}, v{A+2*e}, v{A+1+2*e}')
        a(f'buffer_store_dwordx4 {v(B,4)}, v{EA+2}, s[16:19], {"s36" if p else "0"} offen sc1')

def att_ids(a):
    a("""
    s_lshl_b32 s40, s22, 1
    s_and_b32 s41, s23, 1
    s_add_u32 s40, s40, s41                ; head
    s_lshr_b32 s41, s23, 1                 ; rbq
    s_mul_i32 s42, s40, 7
    s_lshr_b32 s42, s42, 1                 ; chi0
    """)

def att_poll_addr(a, r):
    att_ids(a)
    a(f"""
    s_lshr_b32 s43, s42, 3
    s_add_u32 s44, s42, 3
    s_lshr_b32 s44, s44, 3
    s_lshl_b32 s43, s43, {FS+5}
    s_lshl_b32 s44, s44, {FS+5}
    v_mov_b32 v{r}, s43
    v_mov_b32 v{r+1}, s44
    v_cmp_lt_u32 vcc, 31, v1
    v_cndmask_b32 v{r}, v{r}, v{r+1}, vcc
    v_and_b32 v{r+1}, 31, v1
    v_lshl_add_u32 v{r}, v{r+1}, {FS}, v{r}
    v_add_u32 v{r}, {F1}, v{r}
    """)

def att_poll(a, name):
    att_poll_addr(a, 16)
    poll(a, name, 16, 20, x4=True, sleep=8)

OL = 120 * 1024; YL = 152 * 1024; RED = 96 * 1024
NB = 4
QF = 16; OA = 32; SB = 64; PB = 96; KB = 112; VB = KB + 8*NB
def advK(a):
    a(f's_add_u32 s33, s33, {TILEB}')
    a('s_cmp_eq_u32 s33, s55')
    a('s_cselect_b32 s33, s54, s33')
def loadK(a, n):
    a(f'buffer_load_dwordx4 {v(KB+8*n,4)}, v3, s[4:7], s33 offen')
    a(f'buffer_load_dwordx4 {v(KB+8*n+4,4)}, v3, s[4:7], s33 offen offset:1024')
def loadV(a, n):
    a('s_mov_b64 exec, s[46:47]')
    a(f'buffer_load_dwordx4 {v(VB+8*n,4)}, v4, s[56:59], s33 offen')
    a(f'buffer_load_dwordx4 {v(VB+8*n+4,4)}, v7, s[56:59], s33 offen')
    a('s_mov_b64 exec, -1')

def att_pre_groups():
    def G(fn, *args):
        t = Asm(); fn(t, *args); return t.lines
    def singles(txt): return [[l] for l in lines(txt)]
    p1 = [[l] for l in G(att_ids) + G(srd, 4, P_WS, WS_END)]
    p1 += singles(f"""
    s_and_b32 s24, s3, 1                   ; qg
    s_lshr_b32 s27, s3, 1
    s_cmp_lt_u32 s23, 28
    s_cselect_b32 s34, {NA}, 16
    s_sub_u32 s35, 32, s34
    s_min_u32 s54, s27, 2
    s_mul_i32 s54, s54, s34
    s_cmp_eq_u32 s27, 3
    s_cselect_b32 s55, s35, 0
    s_add_u32 s54, s54, s55
    s_cmp_lt_u32 s3, 4
    s_cselect_b32 s34, s34, s35
    s_lshr_b32 s35, s34, 2
    s_lshl_b32 s96, s42, 9
    v_lshl_add_u32 v3, v1, 4, s96          ; Q/K voffset
    s_lshl_b32 s28, s41, 2
    s_lshl_b32 s31, s24, 1
    s_add_u32 s28, s28, s31
    s_mul_i32 s31, s28, {TILEB}
    s_add_u32 s31, s31, {WS_Q}
    s_add_u32 s30, s31, {TILEB}
    s_mul_i32 s54, s54, {TILEB}
    s_add_u32 s54, s54, {WS_K}
    s_mul_i32 s55, s34, {TILEB}
    s_add_u32 s55, s55, s54
    s_mul_i32 s33, s41, s34
    s_lshr_b32 s33, s33, 4
    s_mul_i32 s33, s33, {TILEB}
    s_add_u32 s33, s33, s54
    buffer_load_dwordx4 {v(QF,4)}, v3, s[16:19], s31 offen
    buffer_load_dwordx4 {v(QF+4,4)}, v3, s[16:19], s31 offen offset:1024
    """)
    p1 += [[l] for l in G(loadK, 0)]
    p1 += singles(f"""
    buffer_load_dwordx4 {v(QF+8,4)}, v3, s[16:19], s30 offen
    buffer_load_dwordx4 {v(QF+12,4)}, v3, s[16:19], s30 offen offset:1024
    v_and_b32 v5, 31, v1
    v_lshrrev_b32 v6, 5, v1
    v_mul_u32_u24 v4, 7168, v6
    v_lshl_add_u32 v4, v5, 4, v4
    s_mul_i32 s97, s40, 448
    s_add_u32 s97, s97, {WS_V - WS_K}
    v_add_u32 v4, s97, v4
    v_add_u32 v7, 14336, v4
    s_mov_b32 s46, 0x0fffffff
    s_mov_b32 s47, 0x0fffffff
    """)
    p1 += [[l] for l in G(srd, 56, P_WS, WS_END)]
    p2 = []
    for n in range(NB):
        dst = p1 if n == 0 else p2
        if n == 0:
            dst += [['v_cmp_eq_u32 vcc, 28, v5'], ['v_mov_b32 v12, 0x3f803f80'], ['v_cndmask_b32 v12, 0, v12, vcc'], ['v_mov_b32 v13, v12']]
        dst += [[f'v_mov_b64 {v(VB+8*n+r,2)}, v[12:13]'] for r in range(0, 8, 2)]
        if n < NB - 1:
            dst += [G(loadV, n), G(advK)] + [[l] for l in G(loadK, n + 1)]
    p2 += [[l] for l in G(srd, 8, P_WO, D * D * 2)]
    p2 += singles(f"""
    s_lshr_b32 s52, s40, 2
    s_lshl_b32 s53, s41, 2
    s_add_u32 s52, s52, s53
    s_and_b32 s53, s40, 3                  ; cg4
    v_lshrrev_b32 v8, 4, v1
    v_and_b32 v9, 15, v1
    v_lshlrev_b32 v10, 2, v8
    v_xor_b32 v9, v9, v10
    v_lshlrev_b32 v9, 4, v9
    v_mul_u32_u24 v8, 896, v8
    v_add_u32 v8, v8, v9
    s_lshl_b32 s98, s53, 8
    v_add_u32 v8, s98, v8
    s_lshl_b32 s51, s3, 10
    s_and_b32 s49, s3, 3
    s_lshl_b32 s48, s49, 10
    s_mul_i32 s50, s49, 3584
    s_and_b32 s49, s40, 1
    s_cmp_eq_u32 s49, 0
    s_cselect_b32 s43, -1, 0
    s_mov_b32 s42, 0
    s_cselect_b32 s44, 0, -1
    s_mov_b32 s45, 0
    s_lshl_b32 s32, s21, 4
    s_and_b32 s49, s3, 3
    s_lshl_b32 s49, s49, 2
    s_add_u32 s32, s32, s49
    s_add_u32 s32, s32, {F3}
    s_cmp_lt_u32 s23, 28
    s_cselect_b32 s32, s32, {WS_END}
    s_mov_b32 s37, 0
    """)
    allg = p1 + p2
    isld = lambda g: any(l.startswith('buffer_') for l in g) or g[0].startswith(f's_add_u32 s33, s33, {TILEB}')
    setup = [g for g in allg if not isld(g)]
    loads = [g for g in allg if isld(g)]
    return setup, loads

def att_split():
    su, ld = att_pre_groups()
    sc = [g for g in su if g[0].startswith('s_')]
    ve = [g for g in su if not g[0].startswith('s_')]
    return sc, ve, ld

def emit_groups(a, gs):
    for g in gs:
        for l in g: a(l)

def att_zero():
    return [[f'v_mov_b64 {v(OA+r,2)}, 0'] for r in range(0, 32, 2)] + [[f'v_mov_b64 {v(PB+8+r,2)}, 0'] for r in range(0, 8, 2)] + [[f'v_mov_b64 {v(SB+28+r,2)}, 0'] for r in range(0, 4, 2)]

def att_first(a, nout):
    a(f"""
    s_waitcnt vmcnt({nout})
    s_mov_b64 exec, s[42:43]
    v_mov_b32 v{QF+6}, 0
    v_mov_b32 v{QF+7}, 0
    v_mov_b32 v{QF+14}, 0
    v_mov_b32 v{QF+15}, 0
    s_mov_b64 exec, s[44:45]
    v_mov_b32 v{QF+0}, 0
    v_mov_b32 v{QF+1}, 0
    v_mov_b32 v{QF+8}, 0
    v_mov_b32 v{QF+9}, 0
    s_mov_b64 exec, -1
    v_mfma_f32_32x32x16_bf16 {v(SB,16)}, {v(KB,4)}, {v(QF,4)}, 0
    v_mfma_f32_32x32x16_bf16 {v(SB,16)}, {v(KB+4,4)}, {v(QF+4,4)}, {v(SB,16)}
    """)

def ph_att(a):
    a.label('L_att')
    att_first(a, 4*(NB-1))
    a('s_nop 9')
    a.label('L_att2')
    a(f's_cmp_{PRIO_CMP}_u32 s3, 4\ns_cbranch_scc1 A_noprio\ns_setprio 1')
    a.label('A_noprio')
    stamp(a, 6)
    a('.p2align 6')
    a.label('A_loop')
    for u in range(2*NB):
        t = u % 2
        kn = ((u + 1) // 2) % NB
        vn = ((u - 1) // 2) % NB
        Sn = SB + 16*((u+1) % 2); Sc = SB + 16*(u % 2)
        Pc = PB + 8*(u % 2); Pp = PB + 8*((u+1) % 2)
        Qn = QF + 8*(1-t); On = OA + 16*(1-t)
        ins = {}
        if u % 2 == 1:
            j = (u - 1) // 2
            if SPREAD == 0:
                loadV(a, (j - 1) % NB); advK(a); loadK(a, j % NB)
                if j == 0: a('s_mov_b32 s58, s6')
                a(f's_waitcnt vmcnt({4*(NB-1)})')
            else:
                a(f's_waitcnt vmcnt({4*(NB-2)})')
                t1 = Asm(); loadV(t1, (j - 1) % NB); t2 = Asm(); advK(t2); t3 = Asm(); loadK(t3, j % NB)
                if j == 0: t2('s_mov_b32 s58, s6')
                if SPREAD == 1: ins = {(0, 1): t1.lines, (1, 1): t2.lines, (2, 1): t3.lines[:1], (3, 1): t3.lines[1:]}
                else: ins = {(0, 1): t1.lines[:2] + t1.lines[3:], (1, 1): t1.lines[:1] + t1.lines[2:], (1, 3): t2.lines, (2, 1): t3.lines[:1], (3, 1): t3.lines[1:]}
        M = [f'v_mfma_f32_32x32x16_bf16 {v(Sn,16)}, {v(KB+8*kn,4)}, {v(Qn,4)}, 0',
             f'v_mfma_f32_32x32x16_bf16 {v(Sn,16)}, {v(KB+8*kn+4,4)}, {v(Qn+4,4)}, {v(Sn,16)}',
             f'v_mfma_f32_32x32x16_bf16 {v(On,16)}, {v(VB+8*vn,4)}, {v(Pp,4)}, {v(On,16)}',
             f'v_mfma_f32_32x32x16_bf16 {v(On,16)}, {v(VB+8*vn+4,4)}, {v(Pp+4,4)}, {v(On,16)}']
        M = [M[2], M[0], M[1], M[3]]
        for g in range(4):
            a(M[g])
            for e in range(4):
                a(f'v_exp_f32 v{Sc+4*g+e}, v{Sc+4*g+e}')
                for l in ins.get((g, e), []): a(l)
                if e in (0, 2):
                    h = e // 2
                    if g > 0: a(f'v_cvt_pk_bf16_f32 v{Pc+2*(g-1)+h}, v{Sc+4*(g-1)+2*h}, v{Sc+4*(g-1)+2*h+1}')
                    else:     a(f'v_cvt_pk_bf16_f32 v{Pp+6+h}, v{Sn+12+2*h}, v{Sn+13+2*h}')
    a(f"""
    s_add_u32 s37, s37, 1
    s_cmp_eq_u32 s37, s35
    s_cbranch_scc1 A_exit
    s_add_u32 s49, s37, 1
    s_cmp_eq_u32 s49, s35
    s_cselect_b32 s6, 0, s6
    s_cmp_lt_u32 s3, 4
    s_cbranch_scc1 A_loop
    s_cmp_gt_u32 s37, 2
    s_cbranch_scc1 A_b0
    """)
    for r in range(0 if 'nowo' in DBG else 12):
        a(f"""
        s_mov_b32 m0, s48
        s_add_u32 s48, s48, 4096
        buffer_load_dwordx4 v8, s[8:11], s50 offen lds
        s_add_u32 s50, s50, 14336
        """)
    a.label('A_b0')
    a(f"""
    s_add_u32 s49, s37, {PRIO_LEFT}
    s_cmp_lt_u32 s49, s35
    s_cbranch_scc1 A_b1
    s_setprio 0
    """)
    a.label('A_b1')
    a('s_cmp_lg_u32 s37, 1\ns_cbranch_scc1 A_loop')
    signal(a, 32, 9, 10)
    a('s_branch A_loop')
    a.label('A_exit')
    a('s_setprio 0')
    stamp(a, 7)
    a(f'v_cvt_pk_bf16_f32 v{PB+14}, v{SB+28}, v{SB+29}')
    a(f'v_cvt_pk_bf16_f32 v{PB+15}, v{SB+30}, v{SB+31}')
    a(f'v_mfma_f32_32x32x16_bf16 {v(OA+16,16)}, {v(VB+8*(NB-1),4)}, {v(PB+8,4)}, {v(OA+16,16)}')
    a(f'v_mfma_f32_32x32x16_bf16 {v(OA+16,16)}, {v(VB+8*(NB-1)+4,4)}, {v(PB+12,4)}, {v(OA+16,16)}')
    a('s_mov_b32 s94, 0')
    a.label('A_red')
    a(f"""
    s_lshl_b32 s36, s24, 14
    s_add_u32 s36, s36, {RED}
    s_lshr_b32 s38, s27, 1
    s_lshl_b32 s38, s38, 15
    s_and_b32 s39, s27, 1
    s_lshl_b32 s39, s39, 11
    s_add_u32 s38, s38, s39
    s_add_u32 s38, s38, s36
    v_lshlrev_b32 v2, 4, v1
    v_add_u32 v9, s38, v2
    s_lshl_b32 s38, s27, 12
    s_add_u32 s38, s38, s36
    v_add_u32 v10, s38, v2
    s_or_b32 s38, s27, 1
    s_lshl_b32 s38, s38, 12
    s_add_u32 s38, s38, s36
    s_add_u32 s38, s38, {1024 + 512}
    v_lshlrev_b32 v11, 4, v5
    v_add_u32 v11, s38, v11
    """)
    for own in range(4):
        for q in range(2):
            a(f'ds_write_b128 v9, {v(OA + 8*own + 4*q, 4)} offset:{own*4096 + q*1024}')
    a('s_waitcnt lgkmcnt(0)\ns_barrier')
    R = 64
    so = lambda src: (src >> 1) * 32768 + (src & 1) * 2048
    for src in range(4):
        a(f'ds_read_b32 v{12+src}, v11 offset:{so(src)}')
    for src in range(4):
        for q in range(2):
            a(f'ds_read_b128 {v(R + 8*src + 4*q, 4)}, v10 offset:{so(src) + q*1024}')
    a(f"""
    s_and_b32 s36, s27, 1
    s_cmp_eq_u32 s36, 1
    s_cselect_b32 s43, -1, 0
    s_mov_b32 s42, 0
    s_lshr_b32 s38, s27, 1
    s_add_u32 s38, s38, s28
    s_lshl_b32 s38, s38, 15
    s_lshl_b32 s39, s40, 11
    s_add_u32 s38, s38, s39
    s_lshl_b32 s39, s36, 10
    s_add_u32 s38, s38, s39
    s_add_u32 s38, s38, {WS_O}
    s_waitcnt lgkmcnt(8)
    v_add_f32 v12, v12, v13
    v_add_f32 v14, v14, v15
    v_add_f32 v12, v12, v14
    v_rcp_f32 v12, v12
    s_waitcnt lgkmcnt(0)
    """)
    a('v_cndmask_b32 v13, v12, 0, s[42:43]')
    for r in range(8):
        a(f'v_add_f32 v{R+r}, v{R+r}, v{R+8+r}')
        a(f'v_add_f32 v{R+16+r}, v{R+16+r}, v{R+24+r}')
    for r in range(8): a(f'v_add_f32 v{R+r}, v{R+r}, v{R+16+r}')
    for r in range(8): a(f'v_mul_f32 v{R+r}, v{R+r}, v{12 if r < 4 else 13}')
    for r in range(4): a(f'v_cvt_pk_bf16_f32 v{R+8+r}, v{R+2*r}, v{R+2*r+1}')
    a(f'buffer_store_dwordx4 {v(R+8,4)}, v2, s[16:19], s38 offen sc1')
    stamp(a, 8)
    a(f"""
    v_lshlrev_b32 v11, 13, v6
    v_lshl_add_u32 v11, v5, 4, v11
    v_add_u32 v11, {RED + 4096 + 1024 + 512}, v11
    """)
    for qg in range(2):
        for src in range(4):
            a(f'ds_read_b32 v{80+4*qg+src}, v11 offset:{qg*16384 + so(src)}')
    a(f"""
    s_mov_b32 s36, {f32bits(2.0**-30)}
    s_mov_b32 s37, {f32bits(2.0**40)}
    s_waitcnt lgkmcnt(0)
    v_add_f32 v80, v80, v81
    v_add_f32 v82, v82, v83
    v_add_f32 v84, v84, v85
    v_add_f32 v86, v86, v87
    v_add_f32 v80, v80, v82
    v_add_f32 v84, v84, v86
    v_cmp_nle_f32 vcc, s36, v80
    v_cmp_nge_f32 s[42:43], s37, v80
    v_cmp_nle_f32 s[44:45], s36, v84
    v_cmp_nge_f32 s[60:61], s37, v84
    s_or_b64 s[42:43], s[42:43], vcc
    s_or_b64 s[44:45], s[44:45], s[60:61]
    s_or_b64 s[42:43], s[42:43], s[44:45]
    s_cbranch_scc1 A_slow
    """)
    a.label('A_done')

def ph_slow(a):
    MX = 192
    a.label('A_slow')
    a(f"""
    s_cmp_lg_u32 s94, 0
    s_cbranch_scc1 A_done
    s_waitcnt vmcnt(0)
    s_barrier
    s_mov_b32 s6, s18
    s_mov_b32 s58, s18
    v_mov_b32 v{MX}, 0xff800000
    v_mov_b32 v{MX+1}, 0xff800000
    """)
    for r in range(0, 32, 2): a(f'v_mov_b64 {v(OA+r,2)}, 0')
    a.label('AS_pass')
    a('s_mov_b32 s37, 0')
    a.label('AS_tile')
    loadK(a, 0); loadV(a, 0); advK(a)
    a('s_waitcnt vmcnt(0)')
    for t in range(2):
        Sx = SB + 16*t
        a(f'v_mfma_f32_32x32x16_bf16 {v(Sx,16)}, {v(KB,4)}, {v(QF+8*t,4)}, 0')
        a(f'v_mfma_f32_32x32x16_bf16 {v(Sx,16)}, {v(KB+4,4)}, {v(QF+8*t+4,4)}, {v(Sx,16)}')
    a('s_nop 15\ns_cmp_lg_u32 s94, 0\ns_cbranch_scc1 AS_p1')
    for t in range(2):
        for r in range(0, 16, 2): a(f'v_max3_f32 v{MX+t}, v{SB+16*t+r}, v{SB+16*t+r+1}, v{MX+t}')
    a('s_branch AS_next')
    a.label('AS_p1')
    for t in range(2):
        Sx = SB + 16*t; Px = PB + 8*t
        for r in range(16): a(f'v_sub_f32 v{Sx+r}, v{Sx+r}, v{MX+t}')
        for r in range(16): a(f'v_exp_f32 v{Sx+r}, v{Sx+r}')
        for r in range(8): a(f'v_cvt_pk_bf16_f32 v{Px+r}, v{Sx+2*r}, v{Sx+2*r+1}')
        a(f'v_mfma_f32_32x32x16_bf16 {v(OA+16*t,16)}, {v(VB,4)}, {v(Px,4)}, {v(OA+16*t,16)}')
        a(f'v_mfma_f32_32x32x16_bf16 {v(OA+16*t,16)}, {v(VB+4,4)}, {v(Px+4,4)}, {v(OA+16*t,16)}')
    a.label('AS_next')
    a(f"""
    s_nop 15
    s_add_u32 s37, s37, 1
    s_cmp_lt_u32 s37, s34
    s_cbranch_scc1 AS_tile
    s_cmp_lg_u32 s94, 0
    s_cbranch_scc1 A_red
    s_lshl_b32 s36, s24, 11
    s_add_u32 s36, s36, {RED}
    s_lshl_b32 s38, s27, 9
    s_add_u32 s38, s38, s36
    v_lshl_add_u32 v9, v1, 3, s38
    ds_write_b64 v9, {v(MX,2)}
    v_lshl_add_u32 v9, v5, 3, s36
    s_waitcnt lgkmcnt(0)
    s_barrier
    """)
    for k in range(8): a(f'ds_read_b64 {v(SB+2*k,2)}, v9 offset:{256*k}')
    a('s_waitcnt lgkmcnt(0)')
    for t in range(2):
        for k in range(0, 8, 2): a(f'v_max3_f32 v{MX+t}, v{SB+2*k+t}, v{SB+2*k+2+t}, v{MX+t}')
    a('s_mov_b32 s94, 1\ns_barrier\ns_branch AS_pass')

def ph_out(a):
    a(f"""
    s_cmp_lg_u32 s3, 4
    s_cbranch_scc1 P_nop3
    s_cmp_ge_u32 s23, 28
    s_cbranch_scc1 P_nop3
    s_lshl_b32 s36, s25, 9
    s_add_u32 s36, s36, {F3}
    v_add_u32 v16, s36, v2
    """)
    poll(a, 'PL_f3', 16, 20, mask=0xffffffff, x4=True)
    a.label('P_nop3')
    a('s_waitcnt vmcnt(0)\ns_barrier')
    a('s_cmp_lg_u32 s3, 0\ns_cbranch_scc1 P_nof2')
    a(f's_lshl_b32 s36, s41, {FS+4}\ns_lshl_b32 s37, s40, {FS}\ns_add_u32 s36, s36, s37\ns_add_u32 s36, s36, {F2}')
    signal(a, 36, 16, 17)
    a.label('P_nof2')
    stamp(a, 9)
    for r in (12, 13, 14):
        a(f's_add_u32 m0, s51, {r*8192}')
        a(f's_mul_i32 s50, s3, 3584')
        a(f's_add_u32 s50, s50, {r*28672}')
        if r == 14: a(f's_min_u32 s50, s50, {D*D*2}')
        a(f'buffer_load_dwordx4 v8, s[8:11], s50 offen lds')
    a(f"""
    s_cmp_ge_u32 s23, 28
    s_cbranch_scc1 P_noy
    v_lshrrev_b32 v16, 1, v1
    v_lshlrev_b32 v16, 13, v16
    v_and_b32 v17, 1, v1
    v_lshl_add_u32 v16, v17, 4, v16
    s_lshl_b32 s36, s25, 18
    s_lshl_b32 s37, s26, 8
    s_add_u32 s36, s36, s37
    s_lshl_b32 s37, s3, 5
    s_add_u32 s36, s36, s37
    s_add_u32 s36, s36, {WS_YT}
    s_add_u32 m0, s51, {YL}
    s_nop 0
    buffer_load_dwordx4 v16, s[16:19], s36 offen sc1 lds
    ; tr supplier address: (8*oct + r)*16 + rq*8 (+64 for second half), Q = 4*(l/16)+l%4, oct = Q%8, rq = Q/8
    v_lshrrev_b32 v17, 4, v1
    v_and_b32 v18, 3, v1
    v_lshl_add_u32 v17, v17, 2, v18
    v_and_b32 v18, 7, v17
    v_lshrrev_b32 v17, 3, v17
    v_bfe_u32 v19, v1, 2, 2
    v_lshl_add_u32 v18, v18, 3, v19
    v_lshlrev_b32 v18, 4, v18
    v_lshl_add_u32 v18, v17, 3, v18
    s_add_u32 s36, s51, {YL}
    v_add_u32 v18, s36, v18
    ; store: row = 64rb + 8w + 4*(l/32) + l%4 ; col byte = 896 + 128c + 16*((l/4)%8)
    v_and_b32 v19, 3, v1
    v_lshl_add_u32 v19, v6, 2, v19
    s_lshl_b32 s36, s26, 6
    s_lshl_b32 s37, s3, 3
    s_add_u32 s36, s36, s37
    v_add_u32 v19, s36, v19
    v_mul_u32_u24 v19, 1792, v19
    v_bfe_u32 v17, v1, 2, 3
    v_lshl_add_u32 v19, v17, 4, v19
    s_lshl_b32 s36, s25, 7
    s_add_u32 s36, s36, 896
    s_waitcnt vmcnt(0)
    ds_read_b64_tr_b16 v[20:21], v18
    ds_read_b64_tr_b16 v[22:23], v18 offset:64
    s_waitcnt lgkmcnt(0)
    buffer_store_dwordx4 v[20:23], v19, s[12:15], s36 offen {YMOD}
    """)
    a.label('P_noy')
    a(f"""
    s_and_b32 s29, s3, 3                   ; ct
    v_bfe_u32 v7, v1, 2, 2
    v_xor_b32 v12, s29, v7
    v_lshlrev_b32 v12, 6, v12
    v_bfe_u32 v9, v1, 4, 1
    v_lshl_add_u32 v12, v9, 5, v12
    v_and_b32 v9, 3, v1
    v_lshl_add_u32 v12, v9, 3, v12
    v_lshl_add_u32 v9, v6, 2, v7
    v_lshl_add_u32 v12, v9, 8, v12
    v_add_u32 v13, {224*256}, v12          ; heads 8..15
    v_add_u32 v10, {OL}, v2
    s_lshl_b32 s36, s52, 15
    s_add_u32 s36, s36, s51
    s_add_u32 s36, s36, {WS_O}
    v_add_u32 v14, s36, v2
    v_and_b32 v11, 31, v1
    s_lshl_b32 s36, s52, 5
    v_add_u32 v11, s36, v11
    v_mul_u32_u24 v11, 1792, v11
    v_lshl_add_u32 v11, v6, 4, v11
    s_lshl_b32 s30, s53, 2
    s_add_u32 s30, s30, s29
    s_lshl_b32 s32, s30, 6
    s_cmp_lg_u32 s3, 0
    s_cbranch_scc1 P_nop2
    s_lshl_b32 s36, s41, {FS+4}
    s_add_u32 s36, s36, {F2}
    v_lshl_add_u32 v16, v1, {FS}, s36
    """)
    poll(a, 'PL_f2', 16, 17, mask=0xffff, sleep=2)
    a.label('P_nop2')
    a('s_barrier')
    stamp(a, 10)
    for st in range(4):
        a(f's_add_u32 m0, s51, {OL + st*8192}')
        a(f's_mov_b32 s50, {st*8192}')
        a(f'buffer_load_dwordx4 v14, s[16:19], s50 offen sc1 lds')
    a(f"""
    s_cmp_lt_u32 s30, 14
    s_cselect_b32 s31, 1, 0
    s_cmp_lt_u32 s3, 4
    s_cselect_b32 s31, s31, 0
    s_cmp_eq_u32 s31, 0
    s_cbranch_scc1 P_idle
    """)
    ACC = 16; WF = 32; OF = 160
    def wread(hd):
        for f in range(2):
            for e in range(2):
                row = 28*hd + 16*f + 8*e - (224 if hd >= 8 else 0)
                a(f'ds_read_b64_tr_b16 {v(WF + 8*hd + 4*f + 2*e, 2)}, v{13 if hd >= 8 else 12} offset:{row*256}')
    for hd in range(13): wread(hd)
    a('s_waitcnt vmcnt(0) lgkmcnt(0)\ns_barrier')
    stamp(a, 11)
    for hd in range(13, 16): wread(hd)
    def oread(st):
        for n in range(8):
            a(f'ds_read_b128 {v(OF + 32*(st%2) + 4*n, 4)}, v10 offset:{st*8192 + n*1024}')
    def mf(st):
        for n in range(8):
            c = '0' if (st == 0 and n == 0) else v(ACC, 16)
            a(f'v_mfma_f32_32x32x16_bf16 {v(ACC,16)}, {v(WF + 32*st + 4*n,4)}, {v(OF + 32*(st%2) + 4*n,4)}, {c}')
    oread(0)
    for st in range(4):
        a('s_waitcnt lgkmcnt(0)')
        if st < 3: oread(st + 1)
        mf(st)
    T = 40
    for r in range(8): a(f'v_cvt_pk_bf16_f32 v{T+r}, v{ACC+2*r}, v{ACC+2*r+1}')
    for q in range(2):
        a(f'v_permlane32_swap_b32 v{T+4*q}, v{T+4*q+2}')
        a(f'v_permlane32_swap_b32 v{T+4*q+1}, v{T+4*q+3}')
    a(f'buffer_store_dwordx4 {v(T,4)}, v11, s[12:15], s32 offen {OMOD}')
    a(f'buffer_store_dwordx4 {v(T+4,4)}, v11, s[12:15], s32 offen offset:32 {OMOD}')
    a('s_branch P_fin')
    a.label('P_idle')
    a('s_waitcnt vmcnt(0)\ns_barrier')
    a('s_cmp_lg_u32 s2, 240\ns_cbranch_scc1 P_fin\ns_cmp_lg_u32 s3, 4\ns_cbranch_scc1 P_fin')
    a(f'v_lshlrev_b32 v16, {FS}, v1\nv_add_u32 v16, {F2 + (14 << (FS+4))}, v16')
    poll(a, 'PL_ep', 16, 17, mask=0xffff, sleep=2)
    a(f's_mov_b32 s36, {EPOCH}')
    signal(a, 36, 16, 17)
    a.label('P_fin')

def kernel(a):
    if STAMPS or DIAG >= 0:
        a('v_mov_b32 v254, 0')
        stamp(a, 0)
    prologue(a)
    ph_front(a)
    ph_att(a)
    ph_out(a)
    if DIAG >= 0:
        a('s_waitcnt vmcnt(0)')
        stamp(a, 12)
        a(f"""
        s_cmp_lg_u32 s3, {int(os.environ.get('DIAGW', 0))}
        s_cbranch_scc1 L_end
        s_cmp_ge_u32 s23, 28
        s_cbranch_scc1 L_end
        v_readlane_b32 s36, v254, 0
        v_readlane_b32 s37, v254, {DIAG}
        s_memrealtime s[90:91]
        s_waitcnt lgkmcnt(0)
        s_sub_u32 s36, s37, s36
        s_min_u32 s36, s36, 10000
        s_mov_b32 s37, s90
        """)
        a.label('D_spin')
        a("""
        s_memrealtime s[90:91]
        s_waitcnt lgkmcnt(0)
        s_sub_u32 s38, s90, s37
        s_cmp_lt_u32 s38, s36
        s_cbranch_scc1 D_spin
        """)
    if STAMPS:
        a('s_waitcnt vmcnt(0)')
        stamp(a, 12)
        a(f"""
        s_mov_b32 s18, {WS_STAMP + (1<<20)}
        s_lshl_b32 s36, s2, 3
        s_add_u32 s36, s36, s3
        s_lshl_b32 s36, s36, 6
        s_add_u32 s36, s36, {WS_STAMP}
        v_lshl_add_u32 v2, v1, 2, s36
        s_mov_b64 exec, 0xffff
        buffer_store_dword v254, v2, s[16:19], 0 offen
        s_cmp_lg_u32 s2, 100
        s_cbranch_scc1 L_end
        s_cmp_lg_u32 s3, 0
        s_cbranch_scc1 L_end
        v_readfirstlane_b32 s36, v254
        v_lshlrev_b32 v2, 2, v1
        v_subrev_u32 v254, s36, v254
        s_mov_b64 exec, 0x7ffe
        """)
        srd(a, 56, P_DBG, 256)
        a('buffer_store_dword v254, v2, s[56:59], 0 offen')
    a.label('L_end')
    a('s_endpgm')
    ph_slow(a)

def build(path):
    hdr = open(f'cdna_kernels/{NAME}.s.ref').read().split('\n')
    out = [l for l in hdr if l.startswith(';') and '@launch' not in l][:16]
    out.append(f'; @launch grid=(256,1,1) block=(512,1,1) lds={LDS_TOTAL}')
    out.append('.amdgcn_target "amdgcn-amd-amdhsa--gfx950"')
    out.append('.text')
    label = NAME + '_kernel'
    a = Asm(); kernel(a)
    txt = '\n'.join(out) + f'\n.globl {label}\n.p2align 8\n.type {label},@function\n{label}:\n' + a.finalize()
    txt += f'''.section .rodata,"a"
.p2align 6
.amdhsa_kernel {label}
  .amdhsa_next_free_vgpr 256
  .amdhsa_next_free_sgpr 102
  .amdhsa_accum_offset 256
  .amdhsa_group_segment_fixed_size 0
  .amdhsa_kernarg_size 104
  .amdhsa_user_sgpr_count 2
  .amdhsa_user_sgpr_kernarg_segment_ptr 1
  .amdhsa_system_sgpr_workgroup_id_x 1
.end_amdhsa_kernel
'''
    open(path, 'w').write(txt)

if __name__ == '__main__':
    if '--stamps' in sys.argv: STAMPS = True; sys.argv.remove('--stamps')
    path = sys.argv[1] if len(sys.argv) > 1 else f'cdna_kernels/{NAME}.s'
    build(path)
    import subprocess
    subprocess.run(['clang', '-x', 'assembler', '-target', 'amdgcn-amd-amdhsa', '-mcpu=gfx950', '-c', path, '-o', '_sz.o'], check=True)
    hdr = subprocess.run(['llvm-objdump', '-h', '_sz.o'], capture_output=True, text=True).stdout
    size = int([l for l in hdr.splitlines() if '.text' in l][0].split()[2], 16)
    CODE_KB[0] = size // 1024 - 1
    _gw[0] = 0
    build(path)
    print('code bytes', size)
```

```python
import sys, math, struct, os, re
DBG = os.environ.get('DBG', '')
sys.path.insert(0, 'work')
from asmgen import *

STAMPS = False
NAME = 'concat_heads__mha_block__ssm_conv_s4d__prompt'
S = 2048; D = 448; H = 16; DH = 28
TILEB = 56 * 512
FS = int(os.environ.get('FS', 4))
F0 = 0; F1 = 32768; F2 = 65536; EPOCH = 98304; F3 = 102400
WS_Q = 131072
WS_K = WS_Q + 64 * TILEB
WS_V = WS_K + 64 * TILEB
WS_O = WS_V + 64 * TILEB
WS_UT = WS_O + 64 * 32768
WS_YT = WS_UT + 112 * 16384
WS_END = WS_YT + 224 * 8192
WS_STAMP = 16 << 20
LDS_TOTAL = 163840
POLL_LIMIT = 20000
PRIO_IT = 3
FILL_MAX = int(os.environ.get('FILL_MAX', 16))
YMOD = os.environ.get('YMOD', '')
OMOD = os.environ.get('OMOD', '')
SPREAD = int(os.environ.get('SPREAD', 1))
CODE_KB = [1]
CODE_PF = int(os.environ.get('CODE_PF', 1))
NA = int(os.environ.get('NA', 20))
PRIO_LEFT = int(os.environ.get('PRIO_LEFT', 1))
CONV_PRIO = int(os.environ.get('CONV_PRIO', 1))
PRIO_CMP = 'lt'
SCHED_C = [3, 3, 3, 1, 1]
U_ISS = int(os.environ.get('U_ISS', 0)); U_TR = int(os.environ.get('U_TR', 3)); F0_SIG = int(os.environ.get('F0_SIG', 8))
F0_TRY = (7, 10)
F0_LAG = 2
PRE_ST = int(os.environ.get('PRE_ST', 3))
CONV_T0 = 18
XMOD = os.environ.get('XMOD', '')
F1_SLEEP = 8
KG_CUT = float(os.environ.get('KG_CUT', 0.4))
LD_PER = int(os.environ.get('LD_PER', 50))

def f32bits(x): return struct.unpack('<I', struct.pack('<f', x))[0]
QSCALE = math.log2(math.e) / math.sqrt(DH)
LOG2E = math.log2(math.e)
P_X, P_W, P_WO, P_U, P_LA, P_AI, P_CR, P_CI, P_DT, P_DS, P_OUT, P_DBG, P_WS = [64 + 2*i for i in range(13)]

def stamp(a, n):
    if STAMPS:
        a('s_memrealtime s[90:91]')
        a('s_waitcnt lgkmcnt(0)')
        a(f'v_writelane_b32 v254, s90, {n}')

def srd(a, base_s, ptr_s, nbytes):
    a(f's_mov_b32 s{base_s}, s{ptr_s}')
    a(f's_and_b32 s{base_s+1}, s{ptr_s+1}, 0xffff')
    a(f's_mov_b32 s{base_s+2}, {nbytes}')
    a(f's_mov_b32 s{base_s+3}, 0x20000')

def poll(a, name, voff, tmp, mask=-1, x4=False, sleep=4):
    if mask != -1:
        a(f's_mov_b32 exec_lo, {mask & 0xffffffff}')
        a(f's_mov_b32 exec_hi, {mask >> 32}')
    a('s_mov_b32 s62, 0')
    a.label(name)
    if x4:
        a(f'buffer_load_dwordx4 {v(tmp,4)}, v{voff}, s[16:19], 0 offen sc1')
        a('s_waitcnt vmcnt(0)')
        for i in range(4): a(f'v_xor_b32 v{tmp+i}, s20, v{tmp+i}')
        a(f'v_or3_b32 v{tmp}, v{tmp}, v{tmp+1}, v{tmp+2}')
        a(f'v_or_b32 v{tmp}, v{tmp}, v{tmp+3}')
        a(f'v_cmp_ne_u32 vcc, 0, v{tmp}')
    else:
        a(f'buffer_load_dword v{tmp}, v{voff}, s[16:19], 0 offen sc1')
        a('s_waitcnt vmcnt(0)')
        a(f'v_cmp_ne_u32 vcc, s20, v{tmp}')
    a('s_nop 4')
    a(f's_cbranch_vccz {name}_ok')
    a(f's_sleep {sleep}')
    a('s_add_u32 s62, s62, 1')
    a(f's_cmp_lt_u32 s62, {POLL_LIMIT}')
    a(f's_cbranch_scc1 {name}')
    a.label(name + '_ok')
    a('s_mov_b64 exec, -1')

def signal(a, soff, vt0, vt1):
    a(f'v_mov_b32 v{vt0}, s{soff}')
    a(f'v_mov_b32 v{vt1}, s20')
    a('s_mov_b64 exec, 1')
    a(f'buffer_store_dword v{vt1}, v{vt0}, s[16:19], 0 offen sc1')
    a('s_mov_b64 exec, -1')


CV, C1 = 250, 251
def garrive(a, off):
    a('s_mov_b64 exec, 1')
    a(f'ds_add_u32 v{CV}, v{C1} offset:{off}')
    a('s_mov_b64 exec, -1')
_gw = [0]
def gwait(a, off, target, tmp):
    _gw[0] += 1; name = f'GW{_gw[0]}'
    a.label(name)
    a(f'ds_read_b32 v{tmp}, v{CV} offset:{off}')
    a('s_waitcnt lgkmcnt(0)')
    a(f'v_readfirstlane_b32 s62, v{tmp}')
    a(f's_cmp_ge_u32 s62, {target}')
    a(f's_cbranch_scc1 {name}_ok')
    a('s_sleep 1')
    a('s_add_u32 s95, s95, 1')
    a('s_cmp_lt_u32 s95, 0x200000')
    a(f's_cbranch_scc1 {name}')
    a.label(name + '_ok')

def prologue(a):
    a(f"""
    s_cmp_ge_u32 s2, 256
    s_cbranch_scc1 L_end
    s_load_dwordx16 s[64:79], s[0:1], 0
    s_load_dwordx8 s[80:87], s[0:1], 64
    s_load_dwordx2 s[88:89], s[0:1], 96
    v_and_b32 v1, 63, v0
    v_lshrrev_b32 v2, 6, v0
    v_readfirstlane_b32 s3, v2
    s_and_b32 s22, s2, 7
    s_lshr_b32 s23, s2, 3
    """)
    if CODE_PF:
        a(f"""
        s_getpc_b64 s[96:97]
        s_and_b32 s96, s96, 0xffffff00
        s_and_b32 s98, s23, 3
        s_lshl_b32 s98, s98, 3
        s_add_u32 s98, s98, s3
        s_min_u32 s98, s98, {CODE_KB[0]}
        s_lshl_b32 s98, s98, 10
        v_lshl_add_u32 v2, v1, 4, s98
        global_load_dwordx4 v[192:195], v2, s[96:97]
        """)
    a(f"""
    s_and_b32 s27, s22, 1                  ; odd
    s_lshr_b32 s24, s23, 3                 ; cl' (0..3)
    s_lshl_b32 s25, s27, 2
    s_add_u32 s25, s25, s24
    s_and_b32 s26, s23, 7                  ; rbl
    s_lshl_b32 s28, s26, 1
    s_add_u32 s28, s28, s27
    s_cmp_eq_u32 s24, 3
    s_cselect_b32 s25, 3, s25
    s_cselect_b32 s26, s28, s26
    s_lshl_b32 s24, s24, 1
    s_add_u32 s24, s24, s26
    s_lshr_b32 s28, s22, 1
    s_lshl_b32 s28, s28, 3
    s_add_u32 s26, s26, s28                ; rb
    s_mul_i32 s21, s22, 28
    s_add_u32 s21, s21, s23
    s_cmp_lt_u32 s23, 28
    s_cbranch_scc1 L_full
    s_waitcnt lgkmcnt(0)
    """)
    srd(a, 4, P_W, D * 3 * D * 2)
    a(f"""
    s_sub_u32 s36, s23, 28
    s_lshl_b32 s36, s36, 3
    s_add_u32 s36, s36, s3
    s_mul_i32 s36, s36, {14*2688}
    v_lshrrev_b32 v2, 3, v1
    v_min_u32 v4, 5, v2
    v_mul_u32_u24 v2, 2688, v2
    v_mul_u32_u24 v4, 2688, v4
    v_and_b32 v3, 7, v1
    v_lshl_add_u32 v2, v3, 4, v2
    v_lshl_add_u32 v4, v3, 4, v4
    s_add_u32 s37, s36, {TA*896 + 384}
    buffer_load_dwordx4 v[64:67], v2, s[4:7], s37 offen
    s_add_u32 s37, s37, {8*2688}
    buffer_load_dwordx4 v[68:71], v4, s[4:7], s37 offen
    v_lshrrev_b32 v2, 5, v1
    v_mul_u32_u24 v2, 2688, v2
    v_and_b32 v3, 31, v1
    v_lshl_add_u32 v2, v3, 4, v2
    s_mul_i32 s37, s27, 384
    s_add_u32 s36, s36, s37
    """)
    for n, ty in enumerate((TB, TC)):
        for i in range(7):
            a(f's_add_u32 s37, s36, {ty*896 + 2*i*2688}')
            a(f'buffer_load_dwordx4 {v(72+28*n+4*i,4)}, v2, s[4:7], s37 offen')
    srd(a, 16, P_WS, WS_END)
    srd(a, 12, P_OUT, S * 2 * D * 2)
    a(f"""
    s_mov_b32 s36, {EPOCH}
    buffer_load_dword v253, off, s[16:19], s36 sc1
    s_waitcnt vmcnt(0)
    v_readfirstlane_b32 s20, v253
    s_add_u32 s20, s20, 1
    {'s_endpgm' if 'gemmonly' in DBG else ''}
    s_sleep 60
    s_sub_u32 s36, s23, 28
    s_lshl_b32 s36, s36, 3
    s_add_u32 s36, s36, s3
    s_mul_i32 s36, s36, 12544
    v_lshl_add_u32 v2, v1, 4, s36
    """)
    srd(a, 8, P_WO, D * D * 2)
    for i in range(13):
        a(f's_mov_b32 s36, {1024*i}')
        a(f'buffer_load_dwordx4 {v(64+4*i,4)}, v2, s[8:11], s36 offen')
    a("""
    s_waitcnt vmcnt(0)
    """)
    att_poll_addr(a, 176)
    a.label('L_lite0')
    su, _ = att_pre_groups()
    emit_groups(a, su)
    a('s_cmp_lg_u32 s3, 0\ns_cbranch_scc1 L_lite1')
    poll(a, 'PL_f1a', 176, 180, mask=1 << 63, x4=True, sleep=8)
    poll(a, 'PL_f1b', 176, 180, x4=True, sleep=2)
    a.label('L_lite1')
    a('s_barrier')
    a('s_branch L_pre')
    a.label('L_full')

RING0 = 65536; SLOT = 16384; NS = 4; DEPTH = 3
def slot_of(j): return (j + 2) % NS
XYP = 1056; XYCH = 53 * XYP
GP = 8384; GCH = 260 * 16
L_UT = 0
L_T2 = 114688; TP = 328; T2CH = 8 * TP * 2
L_U = 131072; UCH = 96 * 80
L_TAB = 147456; L_EP = L_TAB - 16
L_PART = 49152; PSRC = 1024; POWN = 4096
L_CTL = L_PART + 32768
assert 4*GP <= L_PART and L_T2 + 2*T2CH <= L_U and L_U + 2*UCH <= L_EP and L_TAB + 4*4096 <= LDS_TOTAL

def cmul(o, d, x, e, t):
    o.append(f'v_pk_mul_f32 {v(t,2)}, {v(x,2)}, {v(e,2)} op_sel:[0,0] op_sel_hi:[1,0]')
    o.append(f'v_pk_fma_f32 {v(d,2)}, {v(x,2)}, {v(e,2)}, {v(t,2)} op_sel:[1,1,0] op_sel_hi:[0,1,1] neg_lo:[1,0,0]')

def lines(txt): return [l.strip() for l in txt.split('\n') if l.strip()]

_KM = [{}, {}]
def _mk():
    pairs_pre = [20, 22, 24, 26, 28, 30, 32, 34, 36, 38, 40, 42, 48, 50, 52, 54]
    for i, r in enumerate(pairs_pre):
        b1 = 64 + 2*i; b0 = 64 + 2*i if i < 8 else 208 + 2*(i-8)
        _KM[1][r] = b1; _KM[1][r+1] = b1 + 1; _KM[0][r] = b0; _KM[0][r+1] = b0 + 1
    for i, r in enumerate([2, 3, 4, 5, 6, 7, 8, 9]): _KM[1][r] = 176 + i
    _KM[0][8] = 244; _KM[0][9] = 245
    for i, r in enumerate([68, 69, 70, 71]): _KM[1][r] = 184 + i; _KM[0][r] = 184 + i
_mk()
def kmap(l, ch):
    M = _KM[ch]
    def one(m): return f'v{M.get(int(m.group(1)), int(m.group(1)))}'
    def rng(m):
        lo = int(m.group(1)); hi = int(m.group(2)); n = M.get(lo, lo); return f'v[{n}:{n+hi-lo}]'
    l = re.sub(r'v\[(\d+):(\d+)\]', rng, l)
    return re.sub(r'\bv(\d+)\b', one, l)

def kgen(ch):
    P = 240
    pre = lines(f"""
    {'s_lshl_b32 s58, s38, 16' if ch == 0 else 's_and_b32 s58, s38, 0xffff0000'}
    v_mov_b32 v4, s58
    v_mul_f32 v4, {f32bits(LOG2E)}, v4
    v_exp_f32 v4, v4
    v_lshlrev_b32 v2, 16, v{P}
    v_lshlrev_b32 v3, 16, v{P+1}
    v_lshlrev_b32 v20, 16, v{P+2}
    v_lshlrev_b32 v21, 16, v{P+3}
    v_cvt_pk_bf16_f32 v4, v4, v4
    v_mul_f32 v2, {f32bits(LOG2E)}, v2
    v_exp_f32 v2, v2
    v_and_b32 v4, 0xffff0000, v4
    v_mul_f32 v3, v3, v4
    v_cvt_pk_bf16_f32 v2, v2, v2
    v_and_b32 v2, 0xffff0000, v2
    v_mul_f32 v2, v2, v4
    v_mul_f32 v2, {f32bits(-LOG2E)}, v2
    v_mul_f32 v3, {f32bits(1/(2*math.pi))}, v3
    v_add_f32 v4, v4, v4
    v_mul_f32 v20, v20, v4
    v_mul_f32 v21, v21, v4
    """)
    E1, E8, E256, E2, E4, E16, E32 = 22, 24, 26, 28, 30, 32, 34
    for (E, p) in ((E1, 1.0), (E8, 8.0), (E256, 256.0)):
        pre += lines(f"""
        v_mul_f32 v6, {f32bits(p)}, v2
        v_mul_f32 v7, {f32bits(p)}, v3
        v_exp_f32 v6, v6
        v_fract_f32 v7, v7
        v_cos_f32 v8, v7
        v_sin_f32 v9, v7
        v_mul_f32 v{E}, v6, v8
        v_mul_f32 v{E+1}, v6, v9
        """)
    cmul(pre, E2, E1, E1, 6); cmul(pre, E16, E8, E8, 8)
    cmul(pre, E4, E2, E2, 6); cmul(pre, E32, E16, E16, 8)
    Y = [48, 50, 52, 54]
    def put(o, row, x, r, neg=False):
        o.append(f'v_cvt_pk_bf16_f32 v{r}, v{x}, {"-" if neg else ""}v{x+1}')
        o.append(f'ds_write_addtid_b32 v{r} offset:{row*XYP}')
    chains = []
    for c in range(4):
        o = []
        cur = {0: None, 1: E8, 2: E16, 3: Y[3]}[c]
        if c == 3: cmul(o, Y[3], E16, E8, 36 + 2*c)
        for step in range(8):
            if cur is None:
                o.append(f'v_mov_b32 v{44+c}, 0x3f80')
                o.append(f'ds_write_addtid_b32 v{44+c} offset:{21*XYP}')
                cur = E32; continue
            put(o, 21 + 4*step + c, cur, 44 + c)
            if step < 7: cmul(o, Y[c], cur, E32, 36 + 2*c); cur = Y[c]
        chains.append(o)
    XC, GC, SD, SD2 = 56, 58, 60, 62
    o = []
    put(o, 0, 20, 68, True)
    for step in range(7):
        cmul(o, XC, 20 if step == 0 else XC, E1, 6); put(o, step + 1, XC, 68, True)
    chains.append(o)
    grow = {1: 8, 2: 12, 3: 14, 4: 16, 5: 17, 6: 18, 7: 19, 8: 20}
    G = [58, 10, 12, 58, 58, 58, 58, 58]
    G = [10, 12, 18, 58, 58, 58, 58, 58]
    o = []
    for step in range(8):
        cmul(o, G[step], 20 if step == 0 else G[step-1], E256, 8); put(o, grow[step+1], G[step], 69, True)
    chains.append(o)
    o = [None]*12
    cmul(o, SD, G[0], E2, 70); put(o, 9, SD, 5, True)
    cmul(o, SD2, G[0], E4, 70); put(o, 10, SD2, 5, True)
    cmul(o, SD, SD2, E2, 70); put(o, 11, SD, 5, True)
    cmul(o, SD2, G[1], E4, 70); put(o, 13, SD2, 5, True)
    cmul(o, SD, G[2], E4, 70); put(o, 15, SD, 5, True)
    chains.append(o)
    body = []
    for k in range(max(len(c) for c in chains)):
        for c in chains:
            if k < len(c) and c[k] is not None: body.append(c[k])
    return [kmap(l, ch) for l in pre], [kmap(l, ch) for l in body]

def kmfma(ch):
    FA = 80; FB = 144; KA = 208
    o = []
    for st in range(16):
        o.append(f'ds_read_b128 {v(FA+4*st,4)}, v20 offset:{st*64 + (1-ch)*XYCH}')
        o.append(f'ds_read_b128 {v(FB+4*st,4)}, v21 offset:{st*64 + (1-ch)*XYCH}')
        if st >= 4:
            k = st - 4
            o.append(f's_waitcnt lgkmcnt(8)')
            o.append(f'v_mfma_f32_16x16x32_bf16 {v(KA,4)}, {v(FA+4*k,4)}, {v(FB+4*k,4)}, {"0" if k == 0 else v(KA,4)}')
    for k in range(12, 16):
        o.append(f's_waitcnt lgkmcnt({2*(15-k)})')
        o.append(f'v_mfma_f32_16x16x32_bf16 {v(KA,4)}, {v(FA+4*k,4)}, {v(FB+4*k,4)}, {v(KA,4)}')
    fin = lines(f"""
    v_cvt_pk_bf16_f32 v{KA+4}, v{KA}, v{KA+1}
    v_cvt_pk_bf16_f32 v{KA+5}, v{KA+2}, v{KA+3}
    ds_write_b16 v22, v{KA+4} offset:{ch*T2CH}
    ds_write_b16_d16_hi v23, v{KA+4} offset:{ch*T2CH}
    ds_write_b16 v24, v{KA+5} offset:{ch*T2CH}
    ds_write_b16_d16_hi v25, v{KA+5} offset:{ch*T2CH}
    """)
    return o, fin

def gbuild(ch):
    g = 64; d = 80
    p0 = [f'ds_read_u16 v{g+i}, v{224+i} offset:{ch*T2CH}' for i in range(11)]
    p1 = []
    for t in range(4):
        p1 += [f'v_lshl_or_b32 v{d+4*t+i}, v{g+t+2*i+1}, 16, v{g+t+2*i}' for i in range(4)]
        p1 += [f'ds_write_b128 v249, {v(d+4*t,4)} offset:{t*GP + ch*GCH}']
    return p0, p1, []

K_, V_, Q_ = 1, 2, 0
TA, TB, TC = Q_, K_, V_
stages = [[('x',0),(TA,0)], [('x',1),('x',2)], [(TA,1),(TA,2)]]
for _i in range(3, 7): stages.append([('x', _i), (TA, _i)])
_rest = [(TB, i) for i in range(7)] + [(TC, i) for i in range(7)]
for _i in range(7): stages.append(_rest[2*_i:2*_i+2])
NST = len(stages)

def ph_front(a):
    a(f"""
    s_mov_b32 s95, 0
    s_lshl_b32 s37, s21, 10
    v_lshl_add_u32 v248, v0, 1, s37
    s_lshl_b32 s36, s21, 2
    v_lshrrev_b32 v3, 3, v1
    v_and_b32 v4, 7, v1
    s_and_b32 s29, s3, 3                   ; lw
    s_bfe_u32 s63, s3, 0x10001
    s_and_b32 s61, s3, 1
    s_mul_i32 s99, s63, {16*XYP}
    s_mul_i32 s100, s61, {16*XYP}
    s_add_u32 s100, s100, {21*XYP}
    s_cmp_lt_u32 s3, 4
    s_cbranch_scc1 Q_comp
    """)
    loader_waves(a)
    a.label('Q_comp')
    comp_waves(a)

def params(a, vo=248):
    for i in range(4):
        srd(a, 56, P_LA + 2*i, D * 256 * 2)
        a(f'buffer_load_ushort v{240+i}, v{vo}, s[56:59], 0 offen nt')
    a(f"""
    s_lshl_b32 s36, s21, 2
    s_add_u32 s{P_DT}, s{P_DT}, s36
    s_addc_u32 s{P_DT+1}, s{P_DT+1}, 0
    s_add_u32 s{P_DS}, s{P_DS}, s36
    s_addc_u32 s{P_DS+1}, s{P_DS+1}, 0
    s_load_dword s38, s[{P_DT}:{P_DT+1}], 0
    s_load_dword s39, s[{P_DS}:{P_DS+1}], 0
    """)

def ssm_head(ch):
    pre, body = kgen(ch)
    h = lines(f"""
    s_lshl_b32 s36, s29, 8
    s_add_u32 m0, s36, {(1-ch)*XYCH}
    v_and_b32 v14, 255, v0
    v_lshlrev_b32 v249, 4, v14
    v_add_u32 v15, {L_TAB}, v249
    v_and_b32 v20, 15, v1
    v_lshrrev_b32 v21, 4, v1
    v_mul_u32_u24 v20, {XYP}, v20
    v_lshl_add_u32 v20, v21, 4, v20
    v_add_u32 v21, s100, v20
    v_add_u32 v20, s99, v20
    v_mov_b32 v{CV}, {L_CTL}
    v_mov_b32 v{C1}, 1
    """)
    tab = [f'ds_read_b128 v[22:25], v15 offset:{3*4096}']
    tab += [f'ds_read_b128 {v(224+4*q,4)}, v15 offset:{q*4096}' for q in range(3)]
    return h + body + tab

def ssm_common(a, ch, before_b1, before_b2, after_b2, before_bc):
    m, fin = kmfma(ch); g = gbuild(ch)
    before_b1()
    a('s_waitcnt lgkmcnt(0)\ns_barrier')
    stamp(a, 3)
    for l in m: a(l)
    a(f"""
    v_mov_b32 v32, 0
    v_mov_b32 v33, 0
    v_mov_b32 v34, 0
    v_mov_b32 v35, 0
    v_and_b32 v9, 7, v1
    v_mul_u32_u24 v9, {2*TP}, v9
    v_add_u32 v9, {L_T2 + 2*(TP-1) + ch*T2CH}, v9
    ds_write_b16 v9, v32
    """)
    for l in fin: a(l)
    before_b2()
    a('s_waitcnt lgkmcnt(0)\ns_barrier')
    stamp(a, 14)
    for l in g[0]: a(l)
    after_b2()
    a('s_waitcnt lgkmcnt(0)')
    for l in g[1] + g[2]: a(l)
    before_bc()
    a('s_waitcnt lgkmcnt(0)\ns_barrier')
    stamp(a, 4)

UV = [220, 221, 222, 252, 255]
def loader_waves(a):
    a(f"""
    s_sub_u32 s28, s24, 7
    s_cmp_ge_u32 s24, 7
    s_cselect_b32 s27, s28, s24            ; rho
    s_lshl_b32 s30, s29, 4
    v_add_u32 v5, s30, v3
    v_lshrrev_b32 v6, 1, v5
    v_and_b32 v6, 7, v6
    v_xor_b32 v6, v6, v4
    v_lshlrev_b32 v6, 4, v6
    s_lshl_b32 s30, s26, 6
    v_add_u32 v7, s30, v5
    v_mul_u32_u24 v7, 896, v7
    v_add_u32 v244, v7, v6
    v_xor_b32 v6, 64, v6
    v_add_u32 v245, v7, v6
    v_add_u32 v245, 7168, v245
    v_lshrrev_b32 v6, 1, v5
    v_and_b32 v6, 1, v6
    v_lshlrev_b32 v6, 2, v6
    v_xor_b32 v6, v6, v4
    v_lshlrev_b32 v6, 4, v6
    v_mul_u32_u24 v7, 2688, v5
    v_add_u32 v246, v7, v6
    s_lshl_b32 s30, s25, 7
    v_add_u32 v246, s30, v246
    v_add_u32 v247, 21504, v246
    s_lshl_b32 s32, s29, 11
    s_lshl_b32 s40, s27, 7
    s_mul_i32 s48, s27, {64*2688}
    s_waitcnt lgkmcnt(0)
    """)
    srd(a, 8, P_X, S * D * 2)
    srd(a, 4, P_W, D * 3 * D * 2)
    def issue(j):
        for half, (kind, i) in enumerate(stages[j]):
            base = RING0 + slot_of(j) * SLOT + half * 8192
            for e in range(2):
                a(f's_add_u32 m0, s32, {base + e*1024}')
                if kind == 'x':
                    a(f'buffer_load_dwordx4 v{244+e}, s[8:11], s{40+i} offen {XMOD} lds')
                else:
                    so = f's{48+i}'
                    if kind:
                        so = 's33'
                        if e == 0: a(f's_add_u32 s33, s{48+i}, {kind*896}')
                    a(f'buffer_load_dwordx4 v{246+e}, s[4:7], {so} offen lds')
    vm = []
    def waitfor(tag):
        last = max(i for i, t in enumerate(vm) if t == tag)
        a(f's_waitcnt vmcnt({len(vm) - 1 - last})')
    issue(0); vm += [0]*4
    for i in range(1, 7):
        if i == 3: issue(1); vm += [1]*4
        a(f's_add_u32 s27, s27, 1\ns_cmp_eq_u32 s27, 7\ns_cselect_b32 s27, 0, s27\ns_lshl_b32 s{40+i}, s27, 7\ns_mul_i32 s{48+i}, s27, {64*2688}')
    srd(a, 16, P_WS, WS_END)
    srd(a, 12, P_OUT, S * 2 * D * 2)
    t = Asm()
    t(f"""
    s_movk_i32 s101, 4096
    v_and_b32 v2, 3, v1
    v_mul_u32_u24 v2, {GP}, v2
    v_bfe_u32 v3, v1, 2, 2
    v_lshl_add_u32 v2, v3, 4, v2
    v_bfe_u32 v3, v1, 4, 1
    v_mul_u32_u24 v3, {GCH}, v3
    v_add3_u32 v217, v2, v3, s101
    s_lshl_b32 s36, s21, 1
    s_lshr_b32 s56, s36, 2
    s_lshl_b32 s56, s56, 14
    s_and_b32 s36, s36, 3
    s_lshl_b32 s36, s36, 4
    s_add_u32 s56, s56, s36
    s_add_u32 s56, s56, {WS_UT}
    s_mov_b32 s92, s56
    """)
    for k in range(5):
        t(f"""
        v_add_u32 v2, {64*k}, v1
        v_mul_u32_u24 v3, 205, v2
        v_lshrrev_b32 v3, 10, v3
        v_mul_u32_u24 v4, 5, v3
        v_sub_u32 v4, v2, v4
        v_min_u32 v4, 3, v4
        v_lshl_add_u32 v3, v3, 2, v4
        v_lshlrev_b32 v{UV[k]}, 6, v3
        """)
    t(f"""
    s_lshr_b32 s36, s21, 5
    s_lshl_b32 s36, s36, {FS+5}
    v_and_b32 v17, 31, v1
    v_lshl_add_u32 v223, v17, {FS}, s36
    v_lshrrev_b32 v18, 5, v1
    v_and_b32 v19, 3, v17
    v_sub_u32 v19, 3, v19
    v_mul_u32_u24 v19, {GP}, v19
    v_lshrrev_b32 v2, 2, v17
    v_lshlrev_b32 v3, 1, v18
    v_sub_u32 v2, v3, v2
    v_lshl_add_u32 v19, v2, 3, v19
    s_mul_i32 s36, s61, {GCH}
    s_lshl_b32 s56, s63, 10
    s_sub_u32 s36, s36, s56
    s_add_u32 s36, s36, {8*511 - 32*94}
    v_add_u32 v218, s36, v19
    v_mul_u32_u24 v2, 80, v17
    v_lshl_add_u32 v2, v18, 4, v2
    s_mul_i32 s36, s61, {UCH}
    s_mul_i32 s56, s63, {16*80}
    s_sub_u32 s36, s36, s56
    s_add_u32 s36, s36, {L_U + 17*80}
    v_add_u32 v219, s36, v2
    v_mov_b64 v[32:33], 0
    v_mov_b64 v[34:35], 0
    v_and_b32 v14, 255, v0
    v_lshlrev_b32 v36, 4, v14
    v_add_u32 v36, {L_U}, v36
    v_cmp_gt_u32 vcc, 160, v14
    s_mov_b64 exec, vcc
    ds_write_b128 v36, v[32:35]
    ds_write_b128 v36, v[32:35] offset:{UCH}
    s_mov_b64 exec, -1
    """)
    for l in t.lines: a(l)
    for j in range(2, PRE_ST): issue(j); vm += [j]*4
    issued = max(2, PRE_ST)
    pre, _ = kgen(1)
    extra = lines(f"""
    v_mov_b32 v2, {L_EP}
    ds_read_b32 v2, v2
    s_waitcnt lgkmcnt(0)
    v_readfirstlane_b32 s20, v2
    """) + pre
    head = ssm_head(1)
    for j in range(NST):
        waitfor(j)
        if j == 0: stamp(a, 13)
        a('s_barrier')
        if j == 0: stamp(a, 1)
        if 'gemmonly' in DBG and j >= 5: stamp(a, j - 2)
        while issued < NST and issued <= j + DEPTH:
            if 'nodma' not in DBG: issue(issued)
            vm += [issued]*4; issued += 1
        if j == 0:
            params(a); vm += ['p']*4
        if j in (8, 9, 10) and 'noextra' not in DBG:
            k = -(-len(extra) // (11 - j))
            for l in extra[:k]: a(l)
            extra = extra[k:]
        if j in (11, 12):
            for l in head[:LD_PER]: a(l)
            head = head[LD_PER:]
    a('s_cmp_eq_u32 s3, 4\ns_cselect_b32 s60, 1, 0\ns_cbranch_scc0 Q_nof0a')
    a('buffer_load_dwordx4 v[28:31], v223, s[16:19], 0 offen sc1')
    a.label('Q_nof0a')
    for l in head: a(l)
    stamp(a, 2)
    if 'gemmonly' in DBG: a('s_branch P_fin')
    def nop(): pass
    def udma():
        a('s_add_u32 s93, s92, 16')
        for ch in range(2):
            for k in range(5):
                a(f's_mov_b32 m0, {L_U + 32*80 + ch*UCH + 1024*k}')
                a(f'buffer_load_dwordx4 v{UV[k]}, s[16:19], s{92+ch} offen sc1 lds')
    def look(tag, last=False):
        a(f's_cmp_eq_u32 s60, 0\ns_cbranch_scc1 Q_lk{tag}')
        if last:
            poll(a, 'PL_f0', 223, 28, x4=True, sleep=1)
        else:
            a('s_waitcnt vmcnt(0)')
            for i in range(4): a(f'v_xor_b32 v{28+i}, s20, v{28+i}')
            a('v_or3_b32 v28, v28, v29, v30\nv_or_b32 v28, v28, v31\nv_cmp_ne_u32 vcc, 0, v28')
            a(f's_nop 4\ns_cbranch_vccz Q_lg{tag}')
            a('buffer_load_dwordx4 v[28:31], v223, s[16:19], 0 offen sc1')
            a(f's_branch Q_lk{tag}')
            a.label(f'Q_lg{tag}')
        a('s_call_b64 s[96:97], Q_udma')
        a.label(f'Q_lk{tag}')
    def b2():
        look('b')
        a(f"""
        s_mov_b32 exec_hi, 0
        ds_write_b128 v217, v[32:35]
        s_mov_b32 exec_hi, -1
        ds_write2_b32 v{CV}, v32, v33 offset0:1 offset1:3
        """)
    def bc():
        look('c', True)
        a('s_waitcnt vmcnt(0)')
    ssm_common(a, 1, lambda: look('a'), nop, b2, bc)
    if CONV_PRIO: a('s_setprio 1')
    SC = 4; sc = [0]
    def sarr():
        a('s_waitcnt lgkmcnt(0)'); garrive(a, SC); sc[0] += 4
    Y0, Y1 = 176, 192
    FR = 32; NBUF = 4
    def boff(n): return (n // 2) * 80 + (n % 2) * 32
    def ld(t):
        b = FR + 16 * (t % NBUF); ao = 32*(31-t)
        return [f'ds_read_b64 {v(b,2)}, v218 offset:{ao + 2048}',
                f'ds_read_b64 {v(b+2,2)}, v218 offset:{ao + 2056}',
                f'ds_read_b128 {v(b+4,4)}, v219 offset:{boff(31-t)}',
                f'ds_read_b128 {v(b+8,4)}, v219 offset:{boff(31-t) + 2560}',
                f'ds_read_b64 {v(b+12,2)}, v218 offset:{ao}',
                f'ds_read_b64 {v(b+14,2)}, v218 offset:{ao + 8}']
    def mm(t, first):
        b = FR + 16 * (t % NBUF)
        return [f'v_mfma_f32_32x32x16_bf16 {v(Y0,16)}, {v(b,4)}, {v(b+4,4)}, {"0" if first else v(Y0,16)}',
                f'v_mfma_f32_32x32x16_bf16 {v(Y1,16)}, {v(b,4)}, {v(b+8,4)}, {"0" if first else v(Y1,16)}',
                f'v_mfma_f32_32x32x16_bf16 {v(Y1,16)}, {v(b+12,4)}, {v(b+4,4)}, {v(Y1,16)}']
    for l in ld(0) + ld(1): a(l)
    t_ = Asm(); ssm_epi_setup(t_)
    t_(f's_mul_i32 s36, s29, {PSRC}\ns_add_u32 s36, s36, {L_PART}\nv_lshl_add_u32 v216, v1, 4, s36')
    fillA = [[l] for l in t_.lines]
    su, fillB = att_pre_groups()
    fillA += su
    T0 = CONV_T0
    def take(q, k):
        for _ in range(k):
            if q:
                for l in q.pop(0): a(l)
    perA = -(-len(fillA) // (3*T0)); perB = -(-len(fillB) // (3*(30 - T0)))
    for t in range(32):
        if t == T0:
            gwait(a, 12, 1, 2)
        else:
            a(f's_waitcnt lgkmcnt({6 if t < 31 else 0})')
        L = ld(t + 2) if t + 2 < 32 else []
        M = mm(t, t == 0)
        q, per = (fillA, perA) if t < T0 else (fillB, perB)
        a(M[0])
        for l in L[:2]: a(l)
        take(q, per)
        a(M[1])
        for l in L[2:4]: a(l)
        take(q, per)
        a(M[2])
        for l in L[4:]: a(l)
        take(q, per)
    assert not fillA and not fillB
    a('s_setprio 1')
    for own in range(8):
        a(f'ds_write_b128 v216, {v(Y0 + 4*own, 4)} offset:{own*POWN}')
    sarr()
    emit_groups(a, att_zero())
    gwait(a, SC, sc[0], 2)
    stamp(a, 5)
    ssm_epi_reads(a)
    sarr()
    ssm_epi(a)
    gwait(a, SC, sc[0], 2)
    a('s_branch L_att')
    a.label('Q_udma')
    udma()
    a('s_mov_b32 s60, 0\ns_setpc_b64 s[96:97]')

def comp_waves(a):
    XF = 64; ACC = {K_: 176, V_: 192, Q_: 208}; WB = [[8 + 4*i for i in range(8)], [224 + 4*i for i in range(4)] + [40 + 4*i for i in range(4)]]
    a(f"""
    s_lshl_b32 s28, s3, 1
    v_xor_b32 v5, s28, v4
    v_lshlrev_b32 v5, 4, v5
    s_lshl_b32 s30, s26, 6
    s_lshl_b32 s31, s3, 4
    s_add_u32 s30, s30, s31
    v_add_u32 v6, s30, v3
    v_mul_u32_u24 v6, 896, v6
    s_lshl_b32 s31, s25, 7
    v_add_u32 v6, s31, v6
    v_add_u32 v246, v6, v5
    v_xor_b32 v5, 16, v5
    v_add_u32 v6, v6, v5
    v_add_u32 v247, 7168, v6
    s_lshl_b32 s31, s3, 11
    s_add_u32 s32, s31, {L_UT}
    s_waitcnt lgkmcnt(0)
    """)
    srd(a, 16, P_WS, WS_END)
    a(f"""
    s_cmp_lg_u32 s3, 0
    s_cbranch_scc1 Q_noep0
    s_mov_b32 s33, {EPOCH}
    buffer_load_dword v253, off, s[16:19], s33 sc1
    """)
    a.label('Q_noep0')
    srd(a, 12, P_OUT, S * 2 * D * 2)
    a(f"""
    v_and_b32 v5, 1, v1
    v_bfe_u32 v6, v1, 1, 1
    v_lshrrev_b32 v7, 4, v1
    v_add_u32 v2, s28, v5
    v_xor_b32 v7, v7, v2
    v_lshlrev_b32 v7, 4, v7
    v_lshl_add_u32 v7, v6, 3, v7
    v_bfe_u32 v6, v1, 2, 2
    v_lshl_add_u32 v6, v5, 3, v6
    v_lshl_add_u32 v7, v6, 7, v7
    s_add_u32 s31, s31, {L_UT}
    v_add_u32 v249, s31, v7
    v_xor_b32 v252, 64, v249
    s_lshl_b32 s31, s25, 18
    s_lshl_b32 s33, s26, 9
    s_add_u32 s31, s31, s33
    s_lshl_b32 s33, s3, 7
    s_add_u32 s31, s31, s33
    s_add_u32 s31, s31, {WS_UT}
    v_lshlrev_b32 v255, 14, v3
    v_lshl_add_u32 v255, v4, 4, v255
    v_add_u32 v255, s31, v255
    v_lshlrev_b32 v6, 3, v0
    v_sub_u32 v6, 2047, v6
    v_mov_b32 v17, {L_T2}
    v_mov_b32 v18, {TP}
    v_lshlrev_b32 v19, 4, v0
    v_add_u32 v19, {L_TAB}, v19
    s_mov_b32 s36, 0
    """)
    a.label('Q_tab')
    for i in (0, 2):
        a(f"""
        v_subrev_u32 v7, {i}, v6
        v_subrev_u32 v8, {i+1}, v6
        v_cvt_f32_i32 v2, v7
        v_cvt_f32_i32 v5, v8
        v_cvt_pk_bf16_f32 v2, v2, v5
        v_and_b32 v5, 0xffff0000, v2
        v_lshlrev_b32 v2, 16, v2
        v_cvt_i32_f32 v2, v2
        v_cvt_i32_f32 v5, v5
        v_and_b32 v7, 7, v2
        v_and_b32 v8, 7, v5
        v_ashrrev_i32 v2, 3, v2
        v_ashrrev_i32 v5, 3, v5
        v_mad_u32_u24 v2, v7, v18, v2
        v_mad_u32_u24 v5, v8, v18, v5
        v_lshl_add_u32 v{64+i}, v2, 1, v17
        v_lshl_add_u32 v{65+i}, v5, 1, v17
        """)
    a(f"""
    ds_write_b128 v19, v[64:67]
    v_add_u32 v19, 4096, v19
    v_subrev_u32 v6, 4, v6
    s_add_u32 s36, s36, 1
    s_cmp_lt_u32 s36, 3
    s_cbranch_scc1 Q_tab
    v_and_b32 v17, 15, v1
    """)
    ix = lambda p: (p & 7) * TP + (p >> 3)
    def pk(b, s1, s2): assert b < 4096 and s1 < 1024 and s2 < 1024; return b | (s1 << 12) | (s2 << 22)
    t0 = [pk(0, TP, 2*TP), pk(4*TP, TP, 2*TP), None, None]
    a('s_cmp_eq_u32 s63, 0')
    ptab = {0: [[0,1,2,3],[4,5,6,7],[256,258,260,262],[512,516,768,772]],
            1: [[1024,1280,1536,1792],[2048,2304,2304,2304],[2304]*4,[2304]*4]}
    for g in range(4):
        lo = lambda at: ix(ptab[at][g][0]) | (ix(ptab[at][g][1]) << 16)
        hi = lambda at: ix(ptab[at][g][2]) | (ix(ptab[at][g][3]) << 16)
        a(f's_mov_b32 exec_lo, {0xffff << (16*(g%2)) if g < 2 else 0}')
        a(f's_mov_b32 exec_hi, {0xffff << (16*(g%2)) if g >= 2 else 0}')
        a(f's_mov_b32 s36, {lo(1)}\ns_cselect_b32 s36, {lo(0)}, s36\nv_mov_b32 v68, s36')
        a(f's_mov_b32 s36, {hi(1)}\ns_cselect_b32 s36, {hi(0)}, s36\nv_mov_b32 v70, s36')
    a(f"""
    s_mov_b64 exec, -1
    s_lshl_b32 s36, s61, 5
    s_add_u32 s36, s36, {L_T2}
    v_lshl_add_u32 v18, v17, 1, s36
    v_lshrrev_b32 v69, 16, v68
    v_lshrrev_b32 v71, 16, v70
    v_and_b32 v68, 0xffff, v68
    v_and_b32 v70, 0xffff, v70
    v_lshl_add_u32 v68, v68, 1, v18
    v_lshl_add_u32 v69, v69, 1, v18
    v_lshl_add_u32 v70, v70, 1, v18
    v_lshl_add_u32 v71, v71, 1, v18
    ds_write_b128 v19, v[68:71]
    s_and_b32 s27, s3, 1                   ; rt
    s_lshr_b32 s30, s3, 1                  ; cg
    v_and_b32 v3, 31, v1
    v_lshrrev_b32 v4, 5, v1
    s_lshl_b32 s31, s27, 5
    v_add_u32 v5, s31, v3
    v_lshrrev_b32 v6, 1, v5
    v_and_b32 v6, 7, v6
    v_lshlrev_b32 v7, 7, v5
    v_add_u32 v7, {RING0}, v7
    """)
    for st in range(4):
        a(f"""
        v_add_u32 v{56+st}, {2*st}, v4
        v_xor_b32 v{56+st}, v{56+st}, v6
        v_lshl_add_u32 v{56+st}, v{56+st}, 4, v7
        """)
    a(f"""
    v_and_b32 v6, 3, v1
    v_lshlrev_b32 v6, 3, v6
    v_bfe_u32 v7, v1, 4, 1
    v_lshl_add_u32 v6, v7, 5, v6
    s_lshl_b32 s31, s30, 6
    v_add_u32 v6, s31, v6
    v_bfe_u32 v7, v1, 3, 1
    v_lshlrev_b32 v7, 6, v7
    v_xor_b32 v6, v6, v7
    v_bfe_u32 v7, v1, 2, 2
    v_lshl_add_u32 v7, v4, 3, v7
    v_lshl_add_u32 v60, v7, 7, v6
    v_add_u32 v60, {RING0}, v60
    s_lshl_b32 s31, s26, 1
    s_add_u32 s31, s31, s27
    s_mul_i32 s31, s31, {TILEB}
    s_lshl_b32 s33, s25, 3
    s_lshl_b32 s34, s30, 2
    s_add_u32 s33, s33, s34
    s_lshl_b32 s34, s33, 9
    s_add_u32 s34, s34, s31
    v_lshlrev_b32 v61, 4, v1
    v_add_u32 v61, s34, v61
    s_lshl_b32 s34, s33, 7
    s_add_u32 s34, s34, s31
    v_mul_u32_u24 v62, 7168, v4
    v_lshl_add_u32 v62, v3, 4, v62
    v_add_u32 v62, s34, v62
    s_mov_b32 s35, {f32bits(QSCALE)}
    s_lshl_b32 s60, s25, {FS+5}
    s_lshl_b32 s61, s26, {FS}
    s_add_u32 s60, s60, s61
    s_lshl_b32 s61, s3, 2
    s_add_u32 s60, s60, s61
    v_mov_b32 v63, {L_EP}
    s_cmp_lg_u32 s3, 0
    s_cbranch_scc1 Q_noep
    s_waitcnt vmcnt(0)
    v_add_u32 v253, 1, v253
    ds_write_b32 v63, v253
    """)
    a.label('Q_noep')
    a('s_waitcnt vmcnt(0) lgkmcnt(0)')
    stamp(a, 13)
    def reads(j):
        sb = slot_of(j) * SLOT
        n = 0; o = []
        for half, (kind, i) in enumerate(stages[j]):
            base = sb + half * 8192
            if kind == 'x':
                for st in range(4):
                    o.append(f'ds_read_b128 {v(XF + 16*i + 4*st, 4)}, v{56 + st} offset:{base}')
            else:
                for st in range(4):
                    r = WB[j % 2][n]; n += 1
                    for e in range(2):
                        o.append(f'ds_read_b64_tr_b16 {v(r + 2*e, 2)}, v60 offset:{base + (16*st + 4*e)*128}')
        return o
    started = set()
    def epilogue(kind):
        acc = ACC[kind]; out = []
        if kind == Q_:
            for r in range(16): out.append(f'v_mul_f32 v{acc+r}, s35, v{acc+r}')
        for r in range(8): out.append(f'v_cvt_pk_bf16_f32 v{acc+r}, v{acc+2*r}, v{acc+2*r+1}')
        T = acc
        if kind == V_:
            out.append(f's_mov_b32 s36, {WS_V}')
            out.append(f'buffer_store_dwordx4 {v(T,4)}, v62, s[16:19], s36 offen sc1')
            out.append(f's_mov_b32 s36, {WS_V + 2*7168}')
            out.append(f'buffer_store_dwordx4 {v(T+4,4)}, v62, s[16:19], s36 offen sc1')
        else:
            for q in range(2):
                out.append(f'v_permlane32_swap_b32 v{T+4*q}, v{T+4*q+2}')
                out.append(f'v_permlane32_swap_b32 v{T+4*q+1}, v{T+4*q+3}')
            out.append(f's_mov_b32 s36, {WS_Q if kind == Q_ else WS_K}')
            out.append(f'buffer_store_dwordx4 {v(T,4)}, v61, s[16:19], s36 offen sc1')
            out.append(f'buffer_store_dwordx4 {v(T+4,4)}, v61, s[16:19], s36 offen offset:1024 sc1')
        return out
    def mlist(j):
        n = 0; done = []; o = []
        for half, (kind, i) in enumerate(stages[j]):
            if kind == 'x': continue
            acc = ACC[kind]
            for st in range(4):
                w = WB[j % 2][n]; n += 1
                x = XF + 16*i + 4*st
                c = v(acc, 16) if kind in started else '0'
                started.add(kind)
                if kind == V_: o.append(f'v_mfma_f32_32x32x16_bf16 {v(acc,16)}, {v(x,4)}, {v(w,4)}, {c}')
                else:          o.append(f'v_mfma_f32_32x32x16_bf16 {v(acc,16)}, {v(w,4)}, {v(x,4)}, {c}')
            if i == 6: done.append(kind)
        return o, done
    def weave(ms, rd, fill):
        nm = len(ms)
        per = -(-len(rd) // max(nm - 2, 1))
        fper = -(-len(fill) // max(nm - 2, 1))
        for k, m in enumerate(ms):
            a(m)
            for _ in range(per):
                if rd: a(rd.pop(0))
            if k >= 2:
                for _ in range(fper):
                    if fill: a(fill.pop(0))
        for l in rd + fill: a(l)
    pending = []; carry = []
    pre, _ = kgen(0)
    prep = [pre[:len(pre)//2], pre[len(pre)//2:]]
    for j in range(NST):
        a('s_barrier')
        if j == 0: stamp(a, 1)
        rd = reads(j); ms = []; fill = carry; carry = []
        if j == 0: rd.append('ds_read_b32 v253, v63')
        if j > 0:
            for k in pending: fill += epilogue(k)
            ms, pending = mlist(j - 1)
        if j == U_TR:
            a('s_waitcnt vmcnt(4)')
            rd += ['ds_read_b64_tr_b16 v[192:193], v249', 'ds_read_b64_tr_b16 v[194:195], v249 offset:512',
                   'ds_read_b64_tr_b16 v[196:197], v252', 'ds_read_b64_tr_b16 v[198:199], v252 offset:512']
        if j == U_TR + 1:
            fill = [f's_mov_b32 s36, {8*16384}', 'buffer_store_dwordx4 v[192:195], v255, s[16:19], 0 offen sc1',
                    'buffer_store_dwordx4 v[196:199], v255, s[16:19], s36 offen sc1'] + fill
        if 'nocomp' in DBG: ms = []; rd = rd[-1:]; fill = []
        if 'nofill' in DBG: fill = []
        if 'nord' in DBG: rd = rd[-1:]
        if j == F0_SIG and 'nofill' not in DBG:
            a('v_readfirstlane_b32 s20, v253')
            a(f's_waitcnt vmcnt({0 if F0_SIG <= 9 else 2})')
            signal(a, 60, 2, 3)
        if len(fill) > FILL_MAX and j < NST - 1:
            carry = fill[FILL_MAX:]; fill = fill[:FILL_MAX]
        weave(ms, rd, fill)
        if j == U_ISS:
            srd(a, 56, P_U, S * D * 2)
            a('s_mov_b32 m0, s32\ns_nop 0\nbuffer_load_dwordx4 v246, s[56:59], 0 offen nt lds')
            a('s_add_u32 m0, s32, 1024\ns_nop 0\nbuffer_load_dwordx4 v247, s[56:59], 0 offen nt lds')
            params(a)
        if False:
            a('v_readfirstlane_b32 s20, v253')
            a('s_waitcnt vmcnt(0)')
            signal(a, 60, 2, 3)
        a('s_waitcnt lgkmcnt(0)')
    fill = []
    for k in pending: fill += epilogue(k)
    ms, pending = mlist(NST - 1)
    weave(ms, [], fill)
    for k in pending:
        for l in epilogue(k): a(l)
    stamp(a, 2)
    if 'gemmonly' in DBG: a('s_branch P_fin')
    sc_, ve_, lds_ = att_split()
    def nop(): pass
    head = ssm_head(0)
    head = head[:2] + pre[:1] + head[2:10] + pre[1:] + head[10:]
    cut = int(len(head) * KG_CUT)
    scl = [l for g in sc_ for l in g]
    def mix(lst):
        for i, l in enumerate(lst):
            a(l)
            if i >= 14 and i % 2 == 0 and scl: a(scl.pop(0))
    FL = 252
    a('s_cmp_lg_u32 s3, 0\ns_cbranch_scc1 Q_np0')
    att_poll_addr(a, FL)
    a.label('Q_np0')
    a(f's_add_u32 s60, s60, {F1}')
    mix(head[:cut])
    a('s_waitcnt vmcnt(0)')
    signal(a, 60, 2, 3)
    mix(head[cut:])
    for l in scl: a(l)
    def b2():
        a('s_cmp_lg_u32 s3, 0\ns_cbranch_scc1 Q_np2')
        a(f'buffer_load_dwordx4 v[244:247], v{FL}, s[16:19], 0 offen sc1')
        a.label('Q_np2')
    ssm_common(a, 0, nop, nop, b2, nop)
    a('s_setprio 2')
    emit_groups(a, ve_)
    a('s_cmp_lg_u32 s3, 0\ns_cbranch_scc1 Q_w1')
    a('s_waitcnt vmcnt(0)')
    for i in range(4): a(f'v_xor_b32 v{244+i}, s20, v{244+i}')
    a('v_or3_b32 v244, v244, v245, v246\nv_or_b32 v244, v244, v247\nv_cmp_ne_u32 vcc, 0, v244')
    a('s_nop 4\ns_cbranch_vccz Q_w0')
    poll(a, 'PL_f1', FL, 244, x4=True, sleep=1)
    a.label('Q_w0')
    a(f'ds_write_b32 v{CV}, v{C1} offset:12')
    a('s_branch L_pre')
    a.label('Q_w1')
    gwait(a, 12, 1, 2)
    a.label('L_pre')
    stamp(a, 5)
    emit_groups(a, lds_[:10] + att_zero())
    att_first(a, 4)
    emit_groups(a, lds_[10:])
    a('s_setprio 0')
    a('s_branch L_att2')

EB = 176
EA = EB + 56
ET = 96
def ssm_epi_setup(a):
    a(f"""
    v_and_b32 v{ET}, 1, v1                      ; ch
    v_bfe_u32 v{ET+1}, v1, 1, 2                 ; j
    v_lshrrev_b32 v{ET+2}, 3, v1
    v_mul_u32_u24 v{ET+3}, {POWN}, v{ET+1}
    v_mul_u32_u24 v{ET+4}, {PSRC}, v{ET}
    v_add_u32 v{ET+3}, v{ET+3}, v{ET+4}
    v_lshl_add_u32 v{ET+3}, v{ET+2}, 4, v{ET+3}
    s_lshl_b32 s60, s29, 7
    s_add_u32 s36, s60, {L_PART}
    v_add_u32 v{EA}, s36, v{ET+3}
    v_mul_u32_u24 v{ET+2}, 80, v{ET+2}
    v_lshl_add_u32 v{ET+2}, v{ET+1}, 4, v{ET+2}
    v_mul_u32_u24 v{ET+4}, {UCH}, v{ET}
    v_add_u32 v{ET+2}, v{ET+2}, v{ET+4}
    s_mul_i32 s36, s29, 640
    s_add_u32 s36, s36, {L_U + 32*80}
    v_add_u32 v{EA+1}, s36, v{ET+2}             ; u chunk
    s_lshl_b32 s36, s21, 13
    s_lshl_b32 s60, s29, 10
    s_add_u32 s36, s36, s60
    s_add_u32 s36, s36, {WS_YT}
    v_lshl_add_u32 v{EA+2}, v1, 4, s36
    s_lshl_b32 s60, s39, 16
    s_and_b32 s61, s39, 0xffff0000
    v_mov_b32 v{EA+3}, s60
    v_mov_b32 v{ET+4}, s61
    v_cmp_eq_u32 vcc, 1, v{ET}
    v_cndmask_b32 v{EA+3}, v{EA+3}, v{ET+4}, vcc
    """)

def ssm_epi_reads(a):
    for p in range(2):
        E = EB + 28*p; o = p*4*POWN
        a(f"""
        ds_read_b128 {v(E,4)}, v{EA} offset:{o}
        ds_read_b128 {v(E+4,4)}, v{EA} offset:{o+512}
        ds_read_b128 {v(E+8,4)}, v{EA} offset:{o+2*PSRC}
        ds_read_b128 {v(E+12,4)}, v{EA} offset:{o+2*PSRC+512}
        ds_read_b128 {v(E+16,4)}, v{EA+1} offset:{p*2560}
        """)

def ssm_epi(a):
    a('s_mov_b32 s36, 4096')
    for p in range(2):
        A = EB + 28*p; B = A + 8; U = A + 16; C = A + 20
        for e in range(8): a(f'v_add_f32 v{A+e}, v{A+e}, v{B+e}')
        for e in range(4):
            a(f'v_lshlrev_b32 v{C+2*e}, 16, v{U+e}')
            a(f'v_and_b32 v{C+1+2*e}, 0xffff0000, v{U+e}')
        for e in range(8): a(f'v_mul_f32 v{C+e}, v{EA+3}, v{C+e}')
        for e in range(4):
            a(f'v_cvt_pk_bf16_f32 v{B+e}, v{A+2*e}, v{A+1+2*e}')
            a(f'v_cvt_pk_bf16_f32 v{B+4+e}, v{C+2*e}, v{C+1+2*e}')
        for e in range(4):
            a(f'v_lshlrev_b32 v{A+2*e}, 16, v{B+e}')
            a(f'v_and_b32 v{A+1+2*e}, 0xffff0000, v{B+e}')
            a(f'v_lshlrev_b32 v{C+2*e}, 16, v{B+4+e}')
            a(f'v_and_b32 v{C+1+2*e}, 0xffff0000, v{B+4+e}')
        for e in range(8): a(f'v_add_f32 v{A+e}, v{A+e}, v{C+e}')
        for e in range(4): a(f'v_cvt_pk_bf16_f32 v{B+e}, v{A+2*e}, v{A+1+2*e}')
        a(f'buffer_store_dwordx4 {v(B,4)}, v{EA+2}, s[16:19], {"s36" if p else "0"} offen sc1')

def att_ids(a):
    a("""
    s_lshl_b32 s40, s22, 1
    s_and_b32 s41, s23, 1
    s_add_u32 s40, s40, s41                ; head
    s_lshr_b32 s41, s23, 1                 ; rbq
    s_mul_i32 s42, s40, 7
    s_lshr_b32 s42, s42, 1                 ; chi0
    """)

def att_poll_addr(a, r):
    att_ids(a)
    a(f"""
    s_lshr_b32 s43, s42, 3
    s_add_u32 s44, s42, 3
    s_lshr_b32 s44, s44, 3
    s_lshl_b32 s43, s43, {FS+5}
    s_lshl_b32 s44, s44, {FS+5}
    v_mov_b32 v{r}, s43
    v_mov_b32 v{r+1}, s44
    v_cmp_lt_u32 vcc, 31, v1
    v_cndmask_b32 v{r}, v{r}, v{r+1}, vcc
    v_and_b32 v{r+1}, 31, v1
    v_lshl_add_u32 v{r}, v{r+1}, {FS}, v{r}
    v_add_u32 v{r}, {F1}, v{r}
    """)

def att_poll(a, name):
    att_poll_addr(a, 16)
    poll(a, name, 16, 20, x4=True, sleep=8)

OL = 120 * 1024; YL = 152 * 1024; RED = 96 * 1024
NB = 4
QF = 16; OA = 32; SB = 64; PB = 96; KB = 112; VB = KB + 8*NB
def advK(a):
    a(f's_add_u32 s33, s33, {TILEB}')
    a('s_cmp_eq_u32 s33, s55')
    a('s_cselect_b32 s33, s54, s33')
def loadK(a, n):
    a(f'buffer_load_dwordx4 {v(KB+8*n,4)}, v3, s[4:7], s33 offen')
    a(f'buffer_load_dwordx4 {v(KB+8*n+4,4)}, v3, s[4:7], s33 offen offset:1024')
def loadV(a, n):
    a('s_mov_b64 exec, s[46:47]')
    a(f'buffer_load_dwordx4 {v(VB+8*n,4)}, v4, s[56:59], s33 offen')
    a(f'buffer_load_dwordx4 {v(VB+8*n+4,4)}, v7, s[56:59], s33 offen')
    a('s_mov_b64 exec, -1')

def att_pre_groups():
    def G(fn, *args):
        t = Asm(); fn(t, *args); return t.lines
    def singles(txt): return [[l] for l in lines(txt)]
    p1 = [[l] for l in G(att_ids) + G(srd, 4, P_WS, WS_END)]
    p1 += singles(f"""
    s_and_b32 s24, s3, 1                   ; qg
    s_lshr_b32 s27, s3, 1
    s_cmp_lt_u32 s23, 28
    s_cselect_b32 s34, {NA}, 16
    s_sub_u32 s35, 32, s34
    s_min_u32 s54, s27, 2
    s_mul_i32 s54, s54, s34
    s_cmp_eq_u32 s27, 3
    s_cselect_b32 s55, s35, 0
    s_add_u32 s54, s54, s55
    s_cmp_lt_u32 s3, 4
    s_cselect_b32 s34, s34, s35
    s_lshr_b32 s35, s34, 2
    s_lshl_b32 s96, s42, 9
    v_lshl_add_u32 v3, v1, 4, s96          ; Q/K voffset
    s_lshl_b32 s28, s41, 2
    s_lshl_b32 s31, s24, 1
    s_add_u32 s28, s28, s31
    s_mul_i32 s31, s28, {TILEB}
    s_add_u32 s31, s31, {WS_Q}
    s_add_u32 s30, s31, {TILEB}
    s_mul_i32 s54, s54, {TILEB}
    s_add_u32 s54, s54, {WS_K}
    s_mul_i32 s55, s34, {TILEB}
    s_add_u32 s55, s55, s54
    s_mul_i32 s33, s41, s34
    s_lshr_b32 s33, s33, 4
    s_mul_i32 s33, s33, {TILEB}
    s_add_u32 s33, s33, s54
    buffer_load_dwordx4 {v(QF,4)}, v3, s[16:19], s31 offen
    buffer_load_dwordx4 {v(QF+4,4)}, v3, s[16:19], s31 offen offset:1024
    """)
    p1 += [[l] for l in G(loadK, 0)]
    p1 += singles(f"""
    buffer_load_dwordx4 {v(QF+8,4)}, v3, s[16:19], s30 offen
    buffer_load_dwordx4 {v(QF+12,4)}, v3, s[16:19], s30 offen offset:1024
    v_and_b32 v5, 31, v1
    v_lshrrev_b32 v6, 5, v1
    v_mul_u32_u24 v4, 7168, v6
    v_lshl_add_u32 v4, v5, 4, v4
    s_mul_i32 s97, s40, 448
    s_add_u32 s97, s97, {WS_V - WS_K}
    v_add_u32 v4, s97, v4
    v_add_u32 v7, 14336, v4
    s_mov_b32 s46, 0x0fffffff
    s_mov_b32 s47, 0x0fffffff
    """)
    p1 += [[l] for l in G(srd, 56, P_WS, WS_END)]
    p2 = []
    for n in range(NB):
        dst = p1 if n == 0 else p2
        if n == 0:
            dst += [['v_cmp_eq_u32 vcc, 28, v5'], ['v_mov_b32 v12, 0x3f803f80'], ['v_cndmask_b32 v12, 0, v12, vcc'], ['v_mov_b32 v13, v12']]
        dst += [[f'v_mov_b64 {v(VB+8*n+r,2)}, v[12:13]'] for r in range(0, 8, 2)]
        if n < NB - 1:
            dst += [G(loadV, n), G(advK)] + [[l] for l in G(loadK, n + 1)]
    p2 += [[l] for l in G(srd, 8, P_WO, D * D * 2)]
    p2 += singles(f"""
    s_lshr_b32 s52, s40, 2
    s_lshl_b32 s53, s41, 2
    s_add_u32 s52, s52, s53
    s_and_b32 s53, s40, 3                  ; cg4
    v_lshrrev_b32 v8, 4, v1
    v_and_b32 v9, 15, v1
    v_lshlrev_b32 v10, 2, v8
    v_xor_b32 v9, v9, v10
    v_lshlrev_b32 v9, 4, v9
    v_mul_u32_u24 v8, 896, v8
    v_add_u32 v8, v8, v9
    s_lshl_b32 s98, s53, 8
    v_add_u32 v8, s98, v8
    s_lshl_b32 s51, s3, 10
    s_and_b32 s49, s3, 3
    s_lshl_b32 s48, s49, 10
    s_mul_i32 s50, s49, 3584
    s_and_b32 s49, s40, 1
    s_cmp_eq_u32 s49, 0
    s_cselect_b32 s43, -1, 0
    s_mov_b32 s42, 0
    s_cselect_b32 s44, 0, -1
    s_mov_b32 s45, 0
    s_lshl_b32 s32, s21, 4
    s_and_b32 s49, s3, 3
    s_lshl_b32 s49, s49, 2
    s_add_u32 s32, s32, s49
    s_add_u32 s32, s32, {F3}
    s_cmp_lt_u32 s23, 28
    s_cselect_b32 s32, s32, {WS_END}
    s_mov_b32 s37, 0
    """)
    allg = p1 + p2
    isld = lambda g: any(l.startswith('buffer_') for l in g) or g[0].startswith(f's_add_u32 s33, s33, {TILEB}')
    setup = [g for g in allg if not isld(g)]
    loads = [g for g in allg if isld(g)]
    return setup, loads

def att_split():
    su, ld = att_pre_groups()
    sc = [g for g in su if g[0].startswith('s_')]
    ve = [g for g in su if not g[0].startswith('s_')]
    return sc, ve, ld

def emit_groups(a, gs):
    for g in gs:
        for l in g: a(l)

def att_zero():
    return [[f'v_mov_b64 {v(OA+r,2)}, 0'] for r in range(0, 32, 2)] + [[f'v_mov_b64 {v(PB+8+r,2)}, 0'] for r in range(0, 8, 2)] + [[f'v_mov_b64 {v(SB+28+r,2)}, 0'] for r in range(0, 4, 2)]

def att_first(a, nout):
    a(f"""
    s_waitcnt vmcnt({nout})
    s_mov_b64 exec, s[42:43]
    v_mov_b32 v{QF+6}, 0
    v_mov_b32 v{QF+7}, 0
    v_mov_b32 v{QF+14}, 0
    v_mov_b32 v{QF+15}, 0
    s_mov_b64 exec, s[44:45]
    v_mov_b32 v{QF+0}, 0
    v_mov_b32 v{QF+1}, 0
    v_mov_b32 v{QF+8}, 0
    v_mov_b32 v{QF+9}, 0
    s_mov_b64 exec, -1
    v_mfma_f32_32x32x16_bf16 {v(SB,16)}, {v(KB,4)}, {v(QF,4)}, 0
    v_mfma_f32_32x32x16_bf16 {v(SB,16)}, {v(KB+4,4)}, {v(QF+4,4)}, {v(SB,16)}
    """)

def ph_att(a):
    a.label('L_att')
    att_first(a, 4*(NB-1))
    a('s_nop 9')
    a.label('L_att2')
    a(f's_cmp_{PRIO_CMP}_u32 s3, 4\ns_cbranch_scc1 A_noprio\ns_setprio 1')
    a.label('A_noprio')
    stamp(a, 6)
    a('.p2align 6')
    a.label('A_loop')
    for u in range(2*NB):
        t = u % 2
        kn = ((u + 1) // 2) % NB
        vn = ((u - 1) // 2) % NB
        Sn = SB + 16*((u+1) % 2); Sc = SB + 16*(u % 2)
        Pc = PB + 8*(u % 2); Pp = PB + 8*((u+1) % 2)
        Qn = QF + 8*(1-t); On = OA + 16*(1-t)
        ins = {}
        if u % 2 == 1:
            j = (u - 1) // 2
            if SPREAD == 0:
                loadV(a, (j - 1) % NB); advK(a); loadK(a, j % NB)
                if j == 0: a('s_mov_b32 s58, s6')
                a(f's_waitcnt vmcnt({4*(NB-1)})')
            else:
                a(f's_waitcnt vmcnt({4*(NB-2)})')
                t1 = Asm(); loadV(t1, (j - 1) % NB); t2 = Asm(); advK(t2); t3 = Asm(); loadK(t3, j % NB)
                if j == 0: t2('s_mov_b32 s58, s6')
                if SPREAD == 1: ins = {(0, 1): t1.lines, (1, 1): t2.lines, (2, 1): t3.lines[:1], (3, 1): t3.lines[1:]}
                else: ins = {(0, 1): t1.lines[:2] + t1.lines[3:], (1, 1): t1.lines[:1] + t1.lines[2:], (1, 3): t2.lines, (2, 1): t3.lines[:1], (3, 1): t3.lines[1:]}
        M = [f'v_mfma_f32_32x32x16_bf16 {v(Sn,16)}, {v(KB+8*kn,4)}, {v(Qn,4)}, 0',
             f'v_mfma_f32_32x32x16_bf16 {v(Sn,16)}, {v(KB+8*kn+4,4)}, {v(Qn+4,4)}, {v(Sn,16)}',
             f'v_mfma_f32_32x32x16_bf16 {v(On,16)}, {v(VB+8*vn,4)}, {v(Pp,4)}, {v(On,16)}',
             f'v_mfma_f32_32x32x16_bf16 {v(On,16)}, {v(VB+8*vn+4,4)}, {v(Pp+4,4)}, {v(On,16)}']
        M = [M[2], M[0], M[1], M[3]]
        for g in range(4):
            a(M[g])
            for e in range(4):
                a(f'v_exp_f32 v{Sc+4*g+e}, v{Sc+4*g+e}')
                for l in ins.get((g, e), []): a(l)
                if e in (0, 2):
                    h = e // 2
                    if g > 0: a(f'v_cvt_pk_bf16_f32 v{Pc+2*(g-1)+h}, v{Sc+4*(g-1)+2*h}, v{Sc+4*(g-1)+2*h+1}')
                    else:     a(f'v_cvt_pk_bf16_f32 v{Pp+6+h}, v{Sn+12+2*h}, v{Sn+13+2*h}')
    a(f"""
    s_add_u32 s37, s37, 1
    s_cmp_eq_u32 s37, s35
    s_cbranch_scc1 A_exit
    s_add_u32 s49, s37, 1
    s_cmp_eq_u32 s49, s35
    s_cselect_b32 s6, 0, s6
    s_cmp_lt_u32 s3, 4
    s_cbranch_scc1 A_loop
    s_cmp_gt_u32 s37, 2
    s_cbranch_scc1 A_b0
    """)
    for r in range(0 if 'nowo' in DBG else 12):
        a(f"""
        s_mov_b32 m0, s48
        s_add_u32 s48, s48, 4096
        buffer_load_dwordx4 v8, s[8:11], s50 offen lds
        s_add_u32 s50, s50, 14336
        """)
    a.label('A_b0')
    a(f"""
    s_add_u32 s49, s37, {PRIO_LEFT}
    s_cmp_lt_u32 s49, s35
    s_cbranch_scc1 A_b1
    s_setprio 0
    """)
    a.label('A_b1')
    a('s_cmp_lg_u32 s37, 1\ns_cbranch_scc1 A_loop')
    signal(a, 32, 9, 10)
    a('s_branch A_loop')
    a.label('A_exit')
    a('s_setprio 0')
    stamp(a, 7)
    a(f'v_cvt_pk_bf16_f32 v{PB+14}, v{SB+28}, v{SB+29}')
    a(f'v_cvt_pk_bf16_f32 v{PB+15}, v{SB+30}, v{SB+31}')
    a(f'v_mfma_f32_32x32x16_bf16 {v(OA+16,16)}, {v(VB+8*(NB-1),4)}, {v(PB+8,4)}, {v(OA+16,16)}')
    a(f'v_mfma_f32_32x32x16_bf16 {v(OA+16,16)}, {v(VB+8*(NB-1)+4,4)}, {v(PB+12,4)}, {v(OA+16,16)}')
    a('s_mov_b32 s94, 0')
    a.label('A_red')
    a(f"""
    s_lshl_b32 s36, s24, 14
    s_add_u32 s36, s36, {RED}
    s_lshr_b32 s38, s27, 1
    s_lshl_b32 s38, s38, 15
    s_and_b32 s39, s27, 1
    s_lshl_b32 s39, s39, 11
    s_add_u32 s38, s38, s39
    s_add_u32 s38, s38, s36
    v_lshlrev_b32 v2, 4, v1
    v_add_u32 v9, s38, v2
    s_lshl_b32 s38, s27, 12
    s_add_u32 s38, s38, s36
    v_add_u32 v10, s38, v2
    s_or_b32 s38, s27, 1
    s_lshl_b32 s38, s38, 12
    s_add_u32 s38, s38, s36
    s_add_u32 s38, s38, {1024 + 512}
    v_lshlrev_b32 v11, 4, v5
    v_add_u32 v11, s38, v11
    """)
    for own in range(4):
        for q in range(2):
            a(f'ds_write_b128 v9, {v(OA + 8*own + 4*q, 4)} offset:{own*4096 + q*1024}')
    a('s_waitcnt lgkmcnt(0)\ns_barrier')
    R = 64
    so = lambda src: (src >> 1) * 32768 + (src & 1) * 2048
    for src in range(4):
        a(f'ds_read_b32 v{12+src}, v11 offset:{so(src)}')
    for src in range(4):
        for q in range(2):
            a(f'ds_read_b128 {v(R + 8*src + 4*q, 4)}, v10 offset:{so(src) + q*1024}')
    a(f"""
    s_and_b32 s36, s27, 1
    s_cmp_eq_u32 s36, 1
    s_cselect_b32 s43, -1, 0
    s_mov_b32 s42, 0
    s_lshr_b32 s38, s27, 1
    s_add_u32 s38, s38, s28
    s_lshl_b32 s38, s38, 15
    s_lshl_b32 s39, s40, 11
    s_add_u32 s38, s38, s39
    s_lshl_b32 s39, s36, 10
    s_add_u32 s38, s38, s39
    s_add_u32 s38, s38, {WS_O}
    s_waitcnt lgkmcnt(8)
    v_add_f32 v12, v12, v13
    v_add_f32 v14, v14, v15
    v_add_f32 v12, v12, v14
    v_rcp_f32 v12, v12
    s_waitcnt lgkmcnt(0)
    """)
    a('v_cndmask_b32 v13, v12, 0, s[42:43]')
    for r in range(8):
        a(f'v_add_f32 v{R+r}, v{R+r}, v{R+8+r}')
        a(f'v_add_f32 v{R+16+r}, v{R+16+r}, v{R+24+r}')
    for r in range(8): a(f'v_add_f32 v{R+r}, v{R+r}, v{R+16+r}')
    for r in range(8): a(f'v_mul_f32 v{R+r}, v{R+r}, v{12 if r < 4 else 13}')
    for r in range(4): a(f'v_cvt_pk_bf16_f32 v{R+8+r}, v{R+2*r}, v{R+2*r+1}')
    a(f'buffer_store_dwordx4 {v(R+8,4)}, v2, s[16:19], s38 offen sc1')
    stamp(a, 8)
    a(f"""
    v_lshlrev_b32 v11, 13, v6
    v_lshl_add_u32 v11, v5, 4, v11
    v_add_u32 v11, {RED + 4096 + 1024 + 512}, v11
    """)
    for qg in range(2):
        for src in range(4):
            a(f'ds_read_b32 v{80+4*qg+src}, v11 offset:{qg*16384 + so(src)}')
    a(f"""
    s_mov_b32 s36, {f32bits(2.0**-30)}
    s_mov_b32 s37, {f32bits(2.0**40)}
    s_waitcnt lgkmcnt(0)
    v_add_f32 v80, v80, v81
    v_add_f32 v82, v82, v83
    v_add_f32 v84, v84, v85
    v_add_f32 v86, v86, v87
    v_add_f32 v80, v80, v82
    v_add_f32 v84, v84, v86
    v_cmp_nle_f32 vcc, s36, v80
    v_cmp_nge_f32 s[42:43], s37, v80
    v_cmp_nle_f32 s[44:45], s36, v84
    v_cmp_nge_f32 s[60:61], s37, v84
    s_or_b64 s[42:43], s[42:43], vcc
    s_or_b64 s[44:45], s[44:45], s[60:61]
    s_or_b64 s[42:43], s[42:43], s[44:45]
    s_cbranch_scc1 A_slow
    """)
    a.label('A_done')

def ph_slow(a):
    MX = 192
    a.label('A_slow')
    a(f"""
    s_cmp_lg_u32 s94, 0
    s_cbranch_scc1 A_done
    s_waitcnt vmcnt(0)
    s_barrier
    s_mov_b32 s6, s18
    s_mov_b32 s58, s18
    v_mov_b32 v{MX}, 0xff800000
    v_mov_b32 v{MX+1}, 0xff800000
    """)
    for r in range(0, 32, 2): a(f'v_mov_b64 {v(OA+r,2)}, 0')
    a.label('AS_pass')
    a('s_mov_b32 s37, 0')
    a.label('AS_tile')
    loadK(a, 0); loadV(a, 0); advK(a)
    a('s_waitcnt vmcnt(0)')
    for t in range(2):
        Sx = SB + 16*t
        a(f'v_mfma_f32_32x32x16_bf16 {v(Sx,16)}, {v(KB,4)}, {v(QF+8*t,4)}, 0')
        a(f'v_mfma_f32_32x32x16_bf16 {v(Sx,16)}, {v(KB+4,4)}, {v(QF+8*t+4,4)}, {v(Sx,16)}')
    a('s_nop 15\ns_cmp_lg_u32 s94, 0\ns_cbranch_scc1 AS_p1')
    for t in range(2):
        for r in range(0, 16, 2): a(f'v_max3_f32 v{MX+t}, v{SB+16*t+r}, v{SB+16*t+r+1}, v{MX+t}')
    a('s_branch AS_next')
    a.label('AS_p1')
    for t in range(2):
        Sx = SB + 16*t; Px = PB + 8*t
        for r in range(16): a(f'v_sub_f32 v{Sx+r}, v{Sx+r}, v{MX+t}')
        for r in range(16): a(f'v_exp_f32 v{Sx+r}, v{Sx+r}')
        for r in range(8): a(f'v_cvt_pk_bf16_f32 v{Px+r}, v{Sx+2*r}, v{Sx+2*r+1}')
        a(f'v_mfma_f32_32x32x16_bf16 {v(OA+16*t,16)}, {v(VB,4)}, {v(Px,4)}, {v(OA+16*t,16)}')
        a(f'v_mfma_f32_32x32x16_bf16 {v(OA+16*t,16)}, {v(VB+4,4)}, {v(Px+4,4)}, {v(OA+16*t,16)}')
    a.label('AS_next')
    a(f"""
    s_nop 15
    s_add_u32 s37, s37, 1
    s_cmp_lt_u32 s37, s34
    s_cbranch_scc1 AS_tile
    s_cmp_lg_u32 s94, 0
    s_cbranch_scc1 A_red
    s_lshl_b32 s36, s24, 11
    s_add_u32 s36, s36, {RED}
    s_lshl_b32 s38, s27, 9
    s_add_u32 s38, s38, s36
    v_lshl_add_u32 v9, v1, 3, s38
    ds_write_b64 v9, {v(MX,2)}
    v_lshl_add_u32 v9, v5, 3, s36
    s_waitcnt lgkmcnt(0)
    s_barrier
    """)
    for k in range(8): a(f'ds_read_b64 {v(SB+2*k,2)}, v9 offset:{256*k}')
    a('s_waitcnt lgkmcnt(0)')
    for t in range(2):
        for k in range(0, 8, 2): a(f'v_max3_f32 v{MX+t}, v{SB+2*k+t}, v{SB+2*k+2+t}, v{MX+t}')
    a('s_mov_b32 s94, 1\ns_barrier\ns_branch AS_pass')

def ph_out(a):
    a(f"""
    s_cmp_lg_u32 s3, 4
    s_cbranch_scc1 P_nop3
    s_cmp_ge_u32 s23, 28
    s_cbranch_scc1 P_nop3
    s_lshl_b32 s36, s25, 9
    s_add_u32 s36, s36, {F3}
    v_add_u32 v16, s36, v2
    """)
    poll(a, 'PL_f3', 16, 20, mask=0xffffffff, x4=True)
    a.label('P_nop3')
    a('s_waitcnt vmcnt(0)\ns_barrier')
    a('s_cmp_lg_u32 s3, 0\ns_cbranch_scc1 P_nof2')
    a(f's_lshl_b32 s36, s41, {FS+4}\ns_lshl_b32 s37, s40, {FS}\ns_add_u32 s36, s36, s37\ns_add_u32 s36, s36, {F2}')
    signal(a, 36, 16, 17)
    a.label('P_nof2')
    stamp(a, 9)
    for r in (12, 13, 14):
        a(f's_add_u32 m0, s51, {r*8192}')
        a(f's_mul_i32 s50, s3, 3584')
        a(f's_add_u32 s50, s50, {r*28672}')
        if r == 14: a(f's_min_u32 s50, s50, {D*D*2}')
        a(f'buffer_load_dwordx4 v8, s[8:11], s50 offen lds')
    a(f"""
    s_cmp_ge_u32 s23, 28
    s_cbranch_scc1 P_noy
    v_lshrrev_b32 v16, 1, v1
    v_lshlrev_b32 v16, 13, v16
    v_and_b32 v17, 1, v1
    v_lshl_add_u32 v16, v17, 4, v16
    s_lshl_b32 s36, s25, 18
    s_lshl_b32 s37, s26, 8
    s_add_u32 s36, s36, s37
    s_lshl_b32 s37, s3, 5
    s_add_u32 s36, s36, s37
    s_add_u32 s36, s36, {WS_YT}
    s_add_u32 m0, s51, {YL}
    s_nop 0
    buffer_load_dwordx4 v16, s[16:19], s36 offen sc1 lds
    ; tr supplier address: (8*oct + r)*16 + rq*8 (+64 for second half), Q = 4*(l/16)+l%4, oct = Q%8, rq = Q/8
    v_lshrrev_b32 v17, 4, v1
    v_and_b32 v18, 3, v1
    v_lshl_add_u32 v17, v17, 2, v18
    v_and_b32 v18, 7, v17
    v_lshrrev_b32 v17, 3, v17
    v_bfe_u32 v19, v1, 2, 2
    v_lshl_add_u32 v18, v18, 3, v19
    v_lshlrev_b32 v18, 4, v18
    v_lshl_add_u32 v18, v17, 3, v18
    s_add_u32 s36, s51, {YL}
    v_add_u32 v18, s36, v18
    ; store: row = 64rb + 8w + 4*(l/32) + l%4 ; col byte = 896 + 128c + 16*((l/4)%8)
    v_and_b32 v19, 3, v1
    v_lshl_add_u32 v19, v6, 2, v19
    s_lshl_b32 s36, s26, 6
    s_lshl_b32 s37, s3, 3
    s_add_u32 s36, s36, s37
    v_add_u32 v19, s36, v19
    v_mul_u32_u24 v19, 1792, v19
    v_bfe_u32 v17, v1, 2, 3
    v_lshl_add_u32 v19, v17, 4, v19
    s_lshl_b32 s36, s25, 7
    s_add_u32 s36, s36, 896
    s_waitcnt vmcnt(0)
    ds_read_b64_tr_b16 v[20:21], v18
    ds_read_b64_tr_b16 v[22:23], v18 offset:64
    s_waitcnt lgkmcnt(0)
    buffer_store_dwordx4 v[20:23], v19, s[12:15], s36 offen {YMOD}
    """)
    a.label('P_noy')
    a(f"""
    s_and_b32 s29, s3, 3                   ; ct
    v_bfe_u32 v7, v1, 2, 2
    v_xor_b32 v12, s29, v7
    v_lshlrev_b32 v12, 6, v12
    v_bfe_u32 v9, v1, 4, 1
    v_lshl_add_u32 v12, v9, 5, v12
    v_and_b32 v9, 3, v1
    v_lshl_add_u32 v12, v9, 3, v12
    v_lshl_add_u32 v9, v6, 2, v7
    v_lshl_add_u32 v12, v9, 8, v12
    v_add_u32 v13, {224*256}, v12          ; heads 8..15
    v_add_u32 v10, {OL}, v2
    s_lshl_b32 s36, s52, 15
    s_add_u32 s36, s36, s51
    s_add_u32 s36, s36, {WS_O}
    v_add_u32 v14, s36, v2
    v_and_b32 v11, 31, v1
    s_lshl_b32 s36, s52, 5
    v_add_u32 v11, s36, v11
    v_mul_u32_u24 v11, 1792, v11
    v_lshl_add_u32 v11, v6, 4, v11
    s_lshl_b32 s30, s53, 2
    s_add_u32 s30, s30, s29
    s_lshl_b32 s32, s30, 6
    s_cmp_lg_u32 s3, 0
    s_cbranch_scc1 P_nop2
    s_lshl_b32 s36, s41, {FS+4}
    s_add_u32 s36, s36, {F2}
    v_lshl_add_u32 v16, v1, {FS}, s36
    """)
    poll(a, 'PL_f2', 16, 17, mask=0xffff, sleep=2)
    a.label('P_nop2')
    a('s_barrier')
    stamp(a, 10)
    for st in range(4):
        a(f's_add_u32 m0, s51, {OL + st*8192}')
        a(f's_mov_b32 s50, {st*8192}')
        a(f'buffer_load_dwordx4 v14, s[16:19], s50 offen sc1 lds')
    a(f"""
    s_cmp_lt_u32 s30, 14
    s_cselect_b32 s31, 1, 0
    s_cmp_lt_u32 s3, 4
    s_cselect_b32 s31, s31, 0
    s_cmp_eq_u32 s31, 0
    s_cbranch_scc1 P_idle
    """)
    ACC = 16; WF = 32; OF = 160
    def wread(hd):
        for f in range(2):
            for e in range(2):
                row = 28*hd + 16*f + 8*e - (224 if hd >= 8 else 0)
                a(f'ds_read_b64_tr_b16 {v(WF + 8*hd + 4*f + 2*e, 2)}, v{13 if hd >= 8 else 12} offset:{row*256}')
    for hd in range(13): wread(hd)
    a('s_waitcnt vmcnt(0) lgkmcnt(0)\ns_barrier')
    stamp(a, 11)
    for hd in range(13, 16): wread(hd)
    def oread(st):
        for n in range(8):
            a(f'ds_read_b128 {v(OF + 32*(st%2) + 4*n, 4)}, v10 offset:{st*8192 + n*1024}')
    def mf(st):
        for n in range(8):
            c = '0' if (st == 0 and n == 0) else v(ACC, 16)
            a(f'v_mfma_f32_32x32x16_bf16 {v(ACC,16)}, {v(WF + 32*st + 4*n,4)}, {v(OF + 32*(st%2) + 4*n,4)}, {c}')
    oread(0)
    for st in range(4):
        a('s_waitcnt lgkmcnt(0)')
        if st < 3: oread(st + 1)
        mf(st)
    T = 40
    for r in range(8): a(f'v_cvt_pk_bf16_f32 v{T+r}, v{ACC+2*r}, v{ACC+2*r+1}')
    for q in range(2):
        a(f'v_permlane32_swap_b32 v{T+4*q}, v{T+4*q+2}')
        a(f'v_permlane32_swap_b32 v{T+4*q+1}, v{T+4*q+3}')
    a(f'buffer_store_dwordx4 {v(T,4)}, v11, s[12:15], s32 offen {OMOD}')
    a(f'buffer_store_dwordx4 {v(T+4,4)}, v11, s[12:15], s32 offen offset:32 {OMOD}')
    a('s_branch P_fin')
    a.label('P_idle')
    a('s_waitcnt vmcnt(0)\ns_barrier')
    a('s_cmp_lg_u32 s2, 240\ns_cbranch_scc1 P_fin\ns_cmp_lg_u32 s3, 4\ns_cbranch_scc1 P_fin')
    a(f'v_lshlrev_b32 v16, {FS}, v1\nv_add_u32 v16, {F2 + (14 << (FS+4))}, v16')
    poll(a, 'PL_ep', 16, 17, mask=0xffff, sleep=2)
    a(f's_mov_b32 s36, {EPOCH}')
    signal(a, 36, 16, 17)
    a.label('P_fin')

def kernel(a):
    if STAMPS:
        a('v_mov_b32 v254, 0')
        stamp(a, 0)
    prologue(a)
    ph_front(a)
    ph_att(a)
    ph_out(a)
    if STAMPS:
        a('s_waitcnt vmcnt(0)')
        stamp(a, 12)
        a(f"""
        s_mov_b32 s18, {WS_STAMP + (1<<20)}
        s_lshl_b32 s36, s2, 3
        s_add_u32 s36, s36, s3
        s_lshl_b32 s36, s36, 6
        s_add_u32 s36, s36, {WS_STAMP}
        v_lshl_add_u32 v2, v1, 2, s36
        s_mov_b64 exec, 0xffff
        buffer_store_dword v254, v2, s[16:19], 0 offen
        s_cmp_lg_u32 s2, 100
        s_cbranch_scc1 L_end
        s_cmp_lg_u32 s3, 0
        s_cbranch_scc1 L_end
        v_readfirstlane_b32 s36, v254
        v_lshlrev_b32 v2, 2, v1
        v_subrev_u32 v254, s36, v254
        s_mov_b64 exec, 0x7ffe
        """)
        srd(a, 56, P_DBG, 256)
        a('buffer_store_dword v254, v2, s[56:59], 0 offen')
    a.label('L_end')
    a('s_endpgm')
    ph_slow(a)

def build(path):
    hdr = open(f'cdna_kernels/{NAME}.s.ref').read().split('\n')
    out = [l for l in hdr if l.startswith(';') and '@launch' not in l][:16]
    out.append(f'; @launch grid=(256,1,1) block=(512,1,1) lds={LDS_TOTAL}')
    out.append('.amdgcn_target "amdgcn-amd-amdhsa--gfx950"')
    out.append('.text')
    label = NAME + '_kernel'
    a = Asm(); kernel(a)
    txt = '\n'.join(out) + f'\n.globl {label}\n.p2align 8\n.type {label},@function\n{label}:\n' + a.finalize()
    txt += f'''.section .rodata,"a"
.p2align 6
.amdhsa_kernel {label}
  .amdhsa_next_free_vgpr 256
  .amdhsa_next_free_sgpr 102
  .amdhsa_accum_offset 256
  .amdhsa_group_segment_fixed_size 0
  .amdhsa_kernarg_size 104
  .amdhsa_user_sgpr_count 2
  .amdhsa_user_sgpr_kernarg_segment_ptr 1
  .amdhsa_system_sgpr_workgroup_id_x 1
.end_amdhsa_kernel
'''
    open(path, 'w').write(txt)

if __name__ == '__main__':
    if '--stamps' in sys.argv: STAMPS = True; sys.argv.remove('--stamps')
    path = sys.argv[1] if len(sys.argv) > 1 else f'cdna_kernels/{NAME}.s'
    build(path)
    import subprocess
    subprocess.run(['clang', '-x', 'assembler', '-target', 'amdgcn-amd-amdhsa', '-mcpu=gfx950', '-c', path, '-o', '_sz.o'], check=True)
    hdr = subprocess.run(['llvm-objdump', '-h', '_sz.o'], capture_output=True, text=True).stdout
    size = int([l for l in hdr.splitlines() if '.text' in l][0].split()[2], 16)
    CODE_KB[0] = size // 1024 - 1
    _gw[0] = 0
    build(path)
    print('code bytes', size)
```

```python
import sys, math, struct, os, re
DBG = os.environ.get('DBG', '')
sys.path.insert(0, 'work')
from asmgen import *

STAMPS = False
NAME = 'concat_heads__mha_block__ssm_conv_s4d__prompt'
S = 2048; D = 448; H = 16; DH = 28
TILEB = 56 * 512
FS = int(os.environ.get('FS', 4))
F0 = 0; F1 = 32768; F2 = 65536; EPOCH = 98304; F3 = 102400
WS_Q = 131072
WS_K = WS_Q + 64 * TILEB
WS_V = WS_K + 64 * TILEB
WS_O = WS_V + 64 * TILEB
WS_UT = WS_O + 64 * 32768
WS_YT = WS_UT + 112 * 16384
WS_END = WS_YT + 224 * 8192
WS_STAMP = 16 << 20
LDS_TOTAL = 163840
POLL_LIMIT = 20000
PRIO_IT = 3
LITE_SLEEP = int(os.environ.get('LITE_SLEEP', 10))
B_PRE = int(os.environ.get('B_PRE', 30))
B_LAST = int(os.environ.get('B_LAST', 9))
D_PER = int(os.environ.get('D_PER', 0))
PKMUL = int(os.environ.get('PKMUL', 1))
NBP = int(os.environ.get('NBP', 7))
KM_PTS = eval(os.environ.get('KM_PTS', '(7, 13)'))
B_PRIO = int(os.environ.get('B_PRIO', 1))
KM_SPLIT = int(os.environ.get('KM_SPLIT', 10))
A_SLEEP0 = int(os.environ.get('A_SLEEP0', 12))
KM_J = int(os.environ.get('KM_J', 1))
BPRE_J = int(os.environ.get('BPRE_J', 0))
A_SLEEP = int(os.environ.get('A_SLEEP', 3))
FILL_MAX = int(os.environ.get('FILL_MAX', 16))
YMOD = os.environ.get('YMOD', '')
OMOD = os.environ.get('OMOD', '')
SPREAD = int(os.environ.get('SPREAD', 1))
CODE_KB = [1]
CODE_PF = int(os.environ.get('CODE_PF', 1))
NA = int(os.environ.get('NA', 16))
PRIO_LEFT = int(os.environ.get('PRIO_LEFT', 1))
CONV_PRIO = int(os.environ.get('CONV_PRIO', 1))
PRIO_CMP = 'lt'
SCHED_C = [3, 3, 3, 1, 1]
U_ISS = int(os.environ.get('U_ISS', -1)); U_TR = int(os.environ.get('U_TR', 8)); F0_SIG = int(os.environ.get('F0_SIG', 12))
F0_TRY = (7, 10)
F0_LAG = 2
PRE_ST = int(os.environ.get('PRE_ST', 2))
CONV_T0 = int(os.environ.get('CONV_T0', 22))
XMOD = os.environ.get('XMOD', '')
F1_SLEEP = 8
KG_CUT = float(os.environ.get('KG_CUT', 0.4))
LD_PER = int(os.environ.get('LD_PER', 50))

def f32bits(x): return struct.unpack('<I', struct.pack('<f', x))[0]
QSCALE = math.log2(math.e) / math.sqrt(DH)
LOG2E = math.log2(math.e)
P_X, P_W, P_WO, P_U, P_LA, P_AI, P_CR, P_CI, P_DT, P_DS, P_OUT, P_DBG, P_WS = [64 + 2*i for i in range(13)]

DIAG = int(os.environ.get('DIAG', -1))
def stamp(a, n):
    if STAMPS or (DIAG >= 0 and n in (0, DIAG)):
        a('s_memrealtime s[90:91]')
        a('s_waitcnt lgkmcnt(0)')
        a(f'v_writelane_b32 v254, s90, {n}')

def srd(a, base_s, ptr_s, nbytes):
    a(f's_mov_b32 s{base_s}, s{ptr_s}')
    a(f's_and_b32 s{base_s+1}, s{ptr_s+1}, 0xffff')
    a(f's_mov_b32 s{base_s+2}, {nbytes}')
    a(f's_mov_b32 s{base_s+3}, 0x20000')

def poll(a, name, voff, tmp, mask=-1, x4=False, sleep=4):
    if mask != -1:
        a(f's_mov_b32 exec_lo, {mask & 0xffffffff}')
        a(f's_mov_b32 exec_hi, {mask >> 32}')
    a('s_mov_b32 s62, 0')
    a.label(name)
    if x4:
        a(f'buffer_load_dwordx4 {v(tmp,4)}, v{voff}, s[16:19], 0 offen sc1')
        a('s_waitcnt vmcnt(0)')
        for i in range(4): a(f'v_xor_b32 v{tmp+i}, s20, v{tmp+i}')
        a(f'v_or3_b32 v{tmp}, v{tmp}, v{tmp+1}, v{tmp+2}')
        a(f'v_or_b32 v{tmp}, v{tmp}, v{tmp+3}')
        a(f'v_cmp_ne_u32 vcc, 0, v{tmp}')
    else:
        a(f'buffer_load_dword v{tmp}, v{voff}, s[16:19], 0 offen sc1')
        a('s_waitcnt vmcnt(0)')
        a(f'v_cmp_ne_u32 vcc, s20, v{tmp}')
    a('s_nop 4')
    a(f's_cbranch_vccz {name}_ok')
    a(f's_sleep {sleep}')
    a('s_add_u32 s62, s62, 1')
    a(f's_cmp_lt_u32 s62, {POLL_LIMIT}')
    a(f's_cbranch_scc1 {name}')
    a.label(name + '_ok')
    a('s_mov_b64 exec, -1')

def signal(a, soff, vt0, vt1):
    a(f'v_mov_b32 v{vt0}, s{soff}')
    a(f'v_mov_b32 v{vt1}, s20')
    a('s_mov_b64 exec, 1')
    a(f'buffer_store_dword v{vt1}, v{vt0}, s[16:19], 0 offen sc1')
    a('s_mov_b64 exec, -1')


CV, C1 = 250, 251
def garrive(a, off):
    a('s_mov_b64 exec, 1')
    a(f'ds_add_u32 v{CV}, v{C1} offset:{off}')
    a('s_mov_b64 exec, -1')
_gw = [0]
def gwait(a, off, target, tmp):
    _gw[0] += 1; name = f'GW{_gw[0]}'
    a.label(name)
    a(f'ds_read_b32 v{tmp}, v{CV} offset:{off}')
    a('s_waitcnt lgkmcnt(0)')
    a(f'v_readfirstlane_b32 s62, v{tmp}')
    a(f's_cmp_ge_u32 s62, {target}')
    a(f's_cbranch_scc1 {name}_ok')
    a('s_sleep 1')
    a('s_add_u32 s95, s95, 1')
    a('s_cmp_lt_u32 s95, 0x200000')
    a(f's_cbranch_scc1 {name}')
    a.label(name + '_ok')

def prologue(a):
    a(f"""
    s_cmp_ge_u32 s2, 256
    s_cbranch_scc1 L_end
    s_load_dwordx16 s[64:79], s[0:1], 0
    s_load_dwordx8 s[80:87], s[0:1], 64
    s_load_dwordx2 s[88:89], s[0:1], 96
    v_and_b32 v1, 63, v0
    v_lshrrev_b32 v2, 6, v0
    v_readfirstlane_b32 s3, v2
    s_and_b32 s22, s2, 7
    s_lshr_b32 s23, s2, 3
    """)
    if CODE_PF:
        a(f"""
        s_getpc_b64 s[96:97]
        s_and_b32 s96, s96, 0xffffff00
        s_and_b32 s98, s23, 3
        s_lshl_b32 s98, s98, 3
        s_add_u32 s98, s98, s3
        s_min_u32 s98, s98, {CODE_KB[0]}
        s_lshl_b32 s98, s98, 10
        v_lshl_add_u32 v2, v1, 4, s98
        global_load_dwordx4 v[192:195], v2, s[96:97]
        """)
    a(f"""
    s_and_b32 s27, s22, 1                  ; odd
    s_lshr_b32 s24, s23, 3                 ; cl' (0..3)
    s_lshl_b32 s25, s27, 2
    s_add_u32 s25, s25, s24
    s_and_b32 s26, s23, 7                  ; rbl
    s_lshl_b32 s28, s26, 1
    s_add_u32 s28, s28, s27
    s_cmp_eq_u32 s24, 3
    s_cselect_b32 s25, 3, s25
    s_cselect_b32 s26, s28, s26
    s_lshl_b32 s24, s24, 1
    s_add_u32 s24, s24, s26
    s_lshr_b32 s28, s22, 1
    s_lshl_b32 s28, s28, 3
    s_add_u32 s26, s26, s28                ; rb
    s_mul_i32 s21, s22, 28
    s_add_u32 s21, s21, s23
    s_cmp_lt_u32 s23, 28
    s_cbranch_scc1 L_full
    s_waitcnt lgkmcnt(0)
    """)
    srd(a, 4, P_W, D * 3 * D * 2)
    a(f"""
    s_sub_u32 s36, s23, 28
    s_lshl_b32 s36, s36, 3
    s_add_u32 s36, s36, s3
    s_mul_i32 s36, s36, {14*2688}
    v_lshrrev_b32 v2, 3, v1
    v_min_u32 v4, 5, v2
    v_mul_u32_u24 v2, 2688, v2
    v_mul_u32_u24 v4, 2688, v4
    v_and_b32 v3, 7, v1
    v_lshl_add_u32 v2, v3, 4, v2
    v_lshl_add_u32 v4, v3, 4, v4
    s_add_u32 s37, s36, {TA*896 + 384}
    buffer_load_dwordx4 v[64:67], v2, s[4:7], s37 offen
    s_add_u32 s37, s37, {8*2688}
    buffer_load_dwordx4 v[68:71], v4, s[4:7], s37 offen
    v_lshrrev_b32 v2, 5, v1
    v_mul_u32_u24 v2, 2688, v2
    v_and_b32 v3, 31, v1
    v_lshl_add_u32 v2, v3, 4, v2
    s_mul_i32 s37, s27, 384
    s_add_u32 s36, s36, s37
    """)
    for n, ty in enumerate((TB, TC)):
        for i in range(7):
            a(f's_add_u32 s37, s36, {ty*896 + 2*i*2688}')
            a(f'buffer_load_dwordx4 {v(72+28*n+4*i,4)}, v2, s[4:7], s37 offen')
    srd(a, 16, P_WS, WS_END)
    srd(a, 12, P_OUT, S * 2 * D * 2)
    a(f"""
    s_mov_b32 s36, {EPOCH}
    buffer_load_dword v253, off, s[16:19], s36 sc1
    s_waitcnt vmcnt(0)
    v_readfirstlane_b32 s20, v253
    s_add_u32 s20, s20, 1
    {'s_endpgm' if 'gemmonly' in DBG else ''}
    s_sleep {LITE_SLEEP}
    s_sub_u32 s36, s23, 28
    s_lshl_b32 s36, s36, 3
    s_add_u32 s36, s36, s3
    s_mul_i32 s36, s36, 12544
    v_lshl_add_u32 v2, v1, 4, s36
    """)
    srd(a, 8, P_WO, D * D * 2)
    for i in range(13):
        a(f's_mov_b32 s36, {1024*i}')
        a(f'buffer_load_dwordx4 {v(64+4*i,4)}, v2, s[8:11], s36 offen')
    a("""
    s_waitcnt vmcnt(0)
    """)
    att_poll_addr(a, 176)
    a.label('L_lite0')
    su, _ = att_pre_groups()
    emit_groups(a, su)
    a('s_cmp_lg_u32 s3, 0\ns_cbranch_scc1 L_lite1')
    poll(a, 'PL_f1a', 176, 180, mask=1 << 63, x4=True, sleep=8)
    poll(a, 'PL_f1b', 176, 180, x4=True, sleep=2)
    a.label('L_lite1')
    a('s_barrier')
    a('s_branch L_pre')
    a.label('L_full')

RING0 = 65536; SLOT = 16384; NS = 4; DEPTH = 3
def slot_of(j): return (j + 2) % NS
XYP = 1056; XYCH = 53 * XYP
GP = 8384; GCH = 260 * 16
L_G = 0
L_T2 = 114688; TP = 328; T2CH = 8 * TP * 2
L_U = 131072; UCH = 96 * 80
L_CTL = L_U + 2 * UCH
L_TAB = 147456
L_PART = 49152; PSRC = 1024; POWN = 4096
assert L_CTL + 16 <= L_TAB and 4*GP <= L_PART and 2*XYCH <= L_T2

def cmul(o, d, x, e, t):
    if PKMUL:
        o.append(f'v_pk_mul_f32 {v(t,2)}, {v(x,2)}, {v(e,2)} op_sel:[0,0] op_sel_hi:[1,0]')
        o.append(f'v_pk_fma_f32 {v(d,2)}, {v(x,2)}, {v(e,2)}, {v(t,2)} op_sel:[1,1,0] op_sel_hi:[0,1,1] neg_lo:[1,0,0]')
    else:
        o.append(f'v_mul_f32 v{t}, v{x+1}, v{e+1}')
        o.append(f'v_mul_f32 v{t+1}, v{x}, v{e+1}')
        o.append(f'v_fma_f32 v{d}, v{x}, v{e}, -v{t}')
        o.append(f'v_fma_f32 v{d+1}, v{x+1}, v{e}, v{t+1}')

def lines(txt): return [l.strip() for l in txt.split('\n') if l.strip()]

_KM = {}
PKB = [64, 117]
def _mk():
    pairs_pre = [20, 22, 24, 26, 28, 30, 32, 34, 36, 38, 40, 42, 48, 50, 52, 54]
    for i, r in enumerate(pairs_pre): _KM[r] = 170 + 2*i; _KM[r+1] = 171 + 2*i
    for i, r in enumerate([2, 3, 4, 5, 6, 7, 8, 9]): _KM[r] = 202 + i
    _KM[70] = 48; _KM[71] = 49
    for i, r in enumerate(range(56, 64)): _KM[r] = 40 + i
    for c in range(2):
        for row in range(53): _KM[1000 + 100*c + row] = PKB[c] + row
_mk()
def kmap(l, ch):
    M = _KM
    def one(m): return f'v{M.get(int(m.group(1)), int(m.group(1)))}'
    def rng(m):
        lo = int(m.group(1)); hi = int(m.group(2)); n = M.get(lo, lo); return f'v[{n}:{n+hi-lo}]'
    l = re.sub(r'v\[(\d+):(\d+)\]', rng, l)
    return re.sub(r'\bv(\d+)\b', one, l)

def kgen(ch):
    P = 240 + 4*ch
    pre = lines(f"""
    {'s_lshl_b32 s58, s38, 16' if ch == 0 else 's_and_b32 s58, s38, 0xffff0000'}
    v_mov_b32 v4, s58
    v_mul_f32 v4, {f32bits(LOG2E)}, v4
    v_exp_f32 v4, v4
    v_lshlrev_b32 v2, 16, v{P}
    v_lshlrev_b32 v3, 16, v{P+1}
    v_lshlrev_b32 v20, 16, v{P+2}
    v_lshlrev_b32 v21, 16, v{P+3}
    v_cvt_pk_bf16_f32 v4, v4, v4
    v_mul_f32 v2, {f32bits(LOG2E)}, v2
    v_exp_f32 v2, v2
    v_and_b32 v4, 0xffff0000, v4
    v_mul_f32 v3, v3, v4
    v_cvt_pk_bf16_f32 v2, v2, v2
    v_and_b32 v2, 0xffff0000, v2
    v_mul_f32 v2, v2, v4
    v_mul_f32 v2, {f32bits(-LOG2E)}, v2
    v_mul_f32 v3, {f32bits(1/(2*math.pi))}, v3
    v_add_f32 v4, v4, v4
    v_mul_f32 v20, v20, v4
    v_mul_f32 v21, v21, v4
    """)
    E1, E8, E256, E2, E4, E16, E32 = 22, 24, 26, 28, 30, 32, 34
    for (E, p) in ((E1, 1.0), (E8, 8.0), (E256, 256.0)):
        pre += lines(f"""
        v_mul_f32 v6, {f32bits(p)}, v2
        v_mul_f32 v7, {f32bits(p)}, v3
        v_exp_f32 v6, v6
        v_fract_f32 v7, v7
        v_cos_f32 v8, v7
        v_sin_f32 v9, v7
        v_mul_f32 v{E}, v6, v8
        v_mul_f32 v{E+1}, v6, v9
        """)
    cmul(pre, E2, E1, E1, 6); cmul(pre, E16, E8, E8, 8)
    cmul(pre, E4, E2, E2, 6); cmul(pre, E32, E16, E16, 8)
    Y = [48, 50, 52, 54]
    def put(o, row, x, r, neg=False):
        o.append(f'v_cvt_pk_bf16_f32 v{1000+100*ch+row}, v{x}, {"-" if neg else ""}v{x+1}')
    chains = []
    for c in range(4):
        o = []
        cur = {0: None, 1: E8, 2: E16, 3: Y[3]}[c]
        if c == 3: cmul(o, Y[3], E16, E8, 36 + 2*c)
        for step in range(8):
            if cur is None:
                o.append(f'v_mov_b32 v{1000+100*ch+21}, 0x3f80')
                cur = E32; continue
            put(o, 21 + 4*step + c, cur, 44 + c)
            if step < 7: cmul(o, Y[c], cur, E32, 36 + 2*c); cur = Y[c]
        chains.append(o)
    XC, GC, SD, SD2 = 56, 58, 60, 62
    o = []
    put(o, 0, 20, 68, True)
    for step in range(7):
        cmul(o, XC, 20 if step == 0 else XC, E1, 6); put(o, step + 1, XC, 68, True)
    chains.append(o)
    grow = {1: 8, 2: 12, 3: 14, 4: 16, 5: 17, 6: 18, 7: 19, 8: 20}
    G = [58, 10, 12, 58, 58, 58, 58, 58]
    G = [10, 12, 18, 58, 58, 58, 58, 58]
    o = []
    for step in range(8):
        cmul(o, G[step], 20 if step == 0 else G[step-1], E256, 8); put(o, grow[step+1], G[step], 69, True)
    chains.append(o)
    o = [None]*(9 if PKMUL else 15)
    cmul(o, SD, G[0], E2, 70); put(o, 9, SD, 5, True)
    cmul(o, SD2, G[0], E4, 70); put(o, 10, SD2, 5, True)
    cmul(o, SD, SD2, E2, 70); put(o, 11, SD, 5, True)
    cmul(o, SD2, G[1], E4, 70); put(o, 13, SD2, 5, True)
    cmul(o, SD, G[2], E4, 70); put(o, 15, SD, 5, True)
    chains.append(o)
    body = []
    for k in range(max(len(c) for c in chains)):
        for c in chains:
            if k < len(c) and c[k] is not None: body.append(c[k])
    return [kmap(l, ch) for l in pre], [kmap(l, ch) for l in body]

def kmfma():
    FA = 112; FB = 144; KA = 176; NBF = 8
    o = []
    LA = 5
    for st in range(16 + LA):
        if st < 16:
            o.append(f'ds_read_b128 {v(FA+4*(st%NBF),4)}, v20 offset:{st*64}')
            o.append(f'ds_read_b128 {v(FB+4*(st%NBF),4)}, v21 offset:{st*64}')
        if st >= LA:
            k = st - LA
            o.append(f's_waitcnt lgkmcnt({2*min(LA, 15-k)})')
            o.append(f'v_mfma_f32_16x16x32_bf16 {v(KA,4)}, {v(FA+4*(k%NBF),4)}, {v(FB+4*(k%NBF),4)}, {"0" if k == 0 else v(KA,4)}')
    o += lines(f"""
    ds_write_b16 v26, v32
    v_cvt_pk_bf16_f32 v{KA+4}, v{KA}, v{KA+1}
    v_cvt_pk_bf16_f32 v{KA+5}, v{KA+2}, v{KA+3}
    ds_write_b16 v22, v{KA+4}
    ds_write_b16_d16_hi v23, v{KA+4}
    ds_write_b16 v24, v{KA+5}
    ds_write_b16_d16_hi v25, v{KA+5}
    s_waitcnt lgkmcnt(0)
    """)
    return o

def subroutines(a):
    a.label('SUB_KMFMA')
    for l in kmfma(): a(l)
    a('s_setpc_b64 s[90:91]')

def kmaddr(a, ch):
    a(f"""
    v_and_b32 v20, 15, v1
    v_lshrrev_b32 v21, 4, v1
    v_mul_u32_u24 v20, {XYP}, v20
    v_lshl_add_u32 v20, v21, 4, v20
    s_and_b32 s36, s3, 1
    s_mul_i32 s36, s36, {16*XYP}
    s_add_u32 s36, s36, {21*XYP + (1-ch)*XYCH}
    v_add_u32 v21, s36, v20
    s_mul_i32 s36, s63, {16*XYP}
    s_add_u32 s36, s36, {(1-ch)*XYCH}
    v_add_u32 v20, s36, v20
    v_and_b32 v26, 7, v1
    v_mul_u32_u24 v26, {2*TP}, v26
    v_add_u32 v26, {L_T2 + 2*(TP-1) + ch*T2CH}, v26
    v_mov_b32 v32, 0
    """)
def call(a, name): a(f's_call_b64 s[90:91], {name}')

def gbuild(a, ch, copies):
    g = 64; d = 80
    lo = min(copies); hi = max(copies) + 8
    for i in range(lo, hi): a(f'ds_read_u16 v{g+i}, v{224+i} offset:{ch*T2CH}')
    a('s_waitcnt lgkmcnt(0)')
    for t in copies:
        for i in range(4): a(f'v_lshl_or_b32 v{d+4*t+i}, v{g+t+2*i+1}, 16, v{g+t+2*i}')
        a(f'ds_write_b128 v249, {v(d+4*t,4)} offset:{t*GP + ch*GCH}')

def gtabs(a):
    a(f"""
    v_and_b32 v14, 255, v0
    v_lshlrev_b32 v249, 4, v14
    v_add_u32 v15, {L_TAB}, v249
    """)
    for q in range(3): a(f'ds_read_b128 {v(224+4*q,4)}, v15 offset:{q*4096}')
    a(f'ds_read_b128 v[22:25], v15 offset:{3*4096}')

K_, V_, Q_ = 1, 2, 0
TA, TB, TC = Q_, K_, V_
stages = [[('x',0),(TA,0)], [('x',1),('x',2)], [(TA,1),(TA,2)]]
for _i in range(3, 7): stages.append([('x', _i), (TA, _i)])
_rest = [(TB, i) for i in range(7)] + [(TC, i) for i in range(7)]
for _i in range(7): stages.append(_rest[2*_i:2*_i+2])
NST = len(stages)

def ph_front(a):
    a(f"""
    s_mov_b32 s95, 0
    v_mov_b32 v{CV}, {L_CTL}
    v_mov_b32 v{C1}, 1
    v_lshrrev_b32 v3, 3, v1
    v_and_b32 v4, 7, v1
    s_and_b32 s29, s3, 3                   ; lw
    s_bfe_u32 s63, s3, 0x10001
    s_and_b32 s61, s3, 1
    s_cmp_lt_u32 s3, 4
    s_cbranch_scc1 Q_comp
    """)
    ssm_waves(a)
    a.label('Q_comp')
    comp_waves(a)

UV = [220, 221, 222, 252, 255]
def ssm_waves(a):
    a(f"""
    s_setprio {B_PRIO}
    v_and_b32 v14, 255, v0
    s_lshl_b32 s37, s21, 10
    v_lshl_add_u32 v248, v14, 1, s37
    s_lshl_b32 s28, s29, 1
    v_xor_b32 v5, s28, v4
    v_lshlrev_b32 v5, 4, v5
    s_lshl_b32 s30, s26, 6
    s_lshl_b32 s31, s29, 4
    s_add_u32 s30, s30, s31
    v_add_u32 v6, s30, v3
    v_mul_u32_u24 v6, 896, v6
    s_lshl_b32 s31, s25, 7
    v_add_u32 v6, s31, v6
    v_add_u32 v7, v6, v5
    v_xor_b32 v5, 16, v5
    v_add_u32 v6, v6, v5
    v_add_u32 v6, 7168, v6
    s_lshl_b32 s31, s61, 11
    s_mul_i32 s32, s63, {UCH}
    s_add_u32 s31, s31, s32
    s_add_u32 s31, s31, {L_U + 2560}
    s_mov_b32 m0, s31
    s_lshl_b32 s36, s21, 2
    s_waitcnt lgkmcnt(0)
    """)
    for i in range(4):
        srd(a, 40 + 4*i, P_LA + 2*i, D * 256 * 2)
        a(f'buffer_load_ushort v{240+i}, v248, s[{40+4*i}:{43+4*i}], 0 offen nt')
        a(f'buffer_load_ushort v{244+i}, v248, s[{40+4*i}:{43+4*i}], 0 offen offset:512 nt')
    srd(a, 8, P_U, S * D * 2)
    a(f"""
    v_mov_b32 v54, v7
    v_mov_b32 v55, v6
    s_mov_b32 s34, s31
    """)
    if U_ISS < 0:
        a('buffer_load_dwordx4 v54, s[8:11], 0 offen nt lds')
        a('s_add_u32 m0, s34, 1024\ns_nop 0\nbuffer_load_dwordx4 v55, s[8:11], 0 offen nt lds')
    a(f"""
    s_add_u32 s{P_DT}, s{P_DT}, s36
    s_addc_u32 s{P_DT+1}, s{P_DT+1}, 0
    s_add_u32 s{P_DS}, s{P_DS}, s36
    s_addc_u32 s{P_DS+1}, s{P_DS+1}, 0
    s_load_dword s38, s[{P_DT}:{P_DT+1}], 0
    s_load_dword s39, s[{P_DS}:{P_DS+1}], 0
    """)
    srd(a, 16, P_WS, WS_END)
    a(f"""
    s_cmp_lg_u32 s3, 4
    s_cbranch_scc1 Q_noep0
    s_mov_b32 s33, {EPOCH}
    buffer_load_dword v253, off, s[16:19], s33 sc1
    """)
    a.label('Q_noep0')
    srd(a, 12, P_OUT, S * 2 * D * 2)
    a(f"""
    v_and_b32 v5, 1, v1
    v_bfe_u32 v6, v1, 1, 1
    v_lshrrev_b32 v7, 4, v1
    v_add_u32 v2, s28, v5
    v_xor_b32 v7, v7, v2
    v_lshlrev_b32 v7, 4, v7
    v_lshl_add_u32 v7, v6, 3, v7
    v_bfe_u32 v6, v1, 2, 2
    v_lshl_add_u32 v6, v5, 3, v6
    v_lshl_add_u32 v7, v6, 7, v7
    v_add_u32 v50, s31, v7
    v_xor_b32 v51, 64, v50
    s_lshl_b32 s31, s25, 18
    s_lshl_b32 s33, s26, 9
    s_add_u32 s31, s31, s33
    s_lshl_b32 s33, s29, 7
    s_add_u32 s31, s31, s33
    s_add_u32 s31, s31, {WS_UT}
    v_lshlrev_b32 v52, 14, v3
    v_lshl_add_u32 v52, v4, 4, v52
    v_add_u32 v52, s31, v52
    s_lshl_b32 s35, s25, {FS+5}
    s_lshl_b32 s33, s26, {FS}
    s_add_u32 s35, s35, s33
    s_lshl_b32 s33, s29, 2
    s_add_u32 s35, s35, s33
    """)
    kmaddr(a, 1)
    t = Asm()
    t(f"""
    s_mov_b32 s101, {L_G + 4096}
    v_and_b32 v2, 3, v1
    v_mul_u32_u24 v2, {GP}, v2
    v_bfe_u32 v3, v1, 2, 2
    v_lshl_add_u32 v2, v3, 4, v2
    v_bfe_u32 v3, v1, 4, 1
    v_mul_u32_u24 v3, {GCH}, v3
    v_add3_u32 v217, v2, v3, s101
    s_lshl_b32 s36, s21, 1
    s_lshr_b32 s56, s36, 2
    s_lshl_b32 s56, s56, 14
    s_and_b32 s36, s36, 3
    s_lshl_b32 s36, s36, 4
    s_add_u32 s56, s56, s36
    s_add_u32 s56, s56, {WS_UT}
    s_mov_b32 s92, s56
    """)
    for k in range(5):
        t(f"""
        v_add_u32 v2, {64*k}, v1
        v_mul_u32_u24 v3, 205, v2
        v_lshrrev_b32 v3, 10, v3
        v_mul_u32_u24 v4, 5, v3
        v_sub_u32 v4, v2, v4
        v_min_u32 v4, 3, v4
        v_lshl_add_u32 v3, v3, 2, v4
        v_lshlrev_b32 v{UV[k]}, 6, v3
        """)
    t(f"""
    s_lshr_b32 s36, s21, 5
    s_lshl_b32 s36, s36, {FS+5}
    v_and_b32 v17, 31, v1
    v_lshl_add_u32 v223, v17, {FS}, s36
    v_lshrrev_b32 v18, 5, v1
    v_and_b32 v19, 3, v17
    v_sub_u32 v19, 3, v19
    v_mul_u32_u24 v19, {GP}, v19
    v_lshrrev_b32 v2, 2, v17
    v_lshlrev_b32 v3, 1, v18
    v_sub_u32 v2, v3, v2
    v_lshl_add_u32 v19, v2, 3, v19
    s_mul_i32 s36, s61, {GCH}
    s_lshl_b32 s56, s63, 10
    s_sub_u32 s36, s36, s56
    s_add_u32 s36, s36, {L_G + 8*511 - 32*94}
    v_add_u32 v218, s36, v19
    v_mul_u32_u24 v2, 80, v17
    v_lshl_add_u32 v2, v18, 4, v2
    s_mul_i32 s36, s61, {UCH}
    s_mul_i32 s56, s63, {16*80}
    s_sub_u32 s36, s36, s56
    s_add_u32 s36, s36, {L_U + 17*80}
    v_add_u32 v219, s36, v2
    v_mov_b64 v[32:33], 0
    v_mov_b64 v[34:35], 0
    v_and_b32 v14, 255, v0
    v_lshlrev_b32 v36, 4, v14
    v_add_u32 v36, {L_U}, v36
    v_cmp_gt_u32 vcc, 160, v14
    s_mov_b64 exec, vcc
    ds_write_b128 v36, v[32:35]
    ds_write_b128 v36, v[32:35] offset:{UCH}
    s_mov_b64 exec, -1
    ds_write2_b32 v{CV}, v32, v33 offset0:1 offset1:3
    ds_write_b32 v{CV}, v32
    """)
    for l in t.lines: a(l)
    stamp(a, 13)
    if 'nob' in DBG:
        for _ in range(14): a('s_barrier')
        a('s_branch P_fin')
    a(f's_waitcnt vmcnt({2 if U_ISS < 0 else 0}) lgkmcnt(0)')
    p0, b0 = kgen(0); p1, b1 = kgen(1)
    work = p1 + b1 + p0 + b0
    dump = {c: [f'ds_write_addtid_b32 v{PKB[c]+row} offset:{row*XYP}' for row in range(53)] for c in range(2)}
    for l in work[:B_PRE]: a(l)
    work = work[B_PRE:]
    for j in range(NST):
        a('s_barrier')
        if j == 0:
            stamp(a, 1)
            a('s_setprio 0')
            gtabs(a)
        if j == 2:
            a(f's_cmp_lg_u32 s3, 4\ns_cbranch_scc1 Q_noep\ns_waitcnt vmcnt(0)\nv_add_u32 v253, 1, v253\nds_write_b32 v{CV}, v253 offset:8\ns_waitcnt lgkmcnt(0)')
            a.label('Q_noep')
        if j == 3: a(f'ds_read_b32 v253, v{CV} offset:8')
        if j == F0_SIG:
            a('s_waitcnt vmcnt(0)')
            signal(a, 35, 2, 3)
        if j == U_ISS:
            a('s_mov_b32 m0, s34\ns_nop 0\nbuffer_load_dwordx4 v54, s[8:11], 0 offen nt lds')
            a('s_add_u32 m0, s34, 1024\ns_nop 0\nbuffer_load_dwordx4 v55, s[8:11], 0 offen nt lds')
        if j == U_TR:
            a(f"""
            s_waitcnt vmcnt(0)
            ds_read_b64_tr_b16 v[54:55], v50
            ds_read_b64_tr_b16 v[56:57], v50 offset:512
            ds_read_b64_tr_b16 v[58:59], v51
            ds_read_b64_tr_b16 v[60:61], v51 offset:512
            s_mov_b32 s36, {8*16384}
            s_lshl_b32 m0, s29, 8
            s_waitcnt lgkmcnt(0)
            buffer_store_dwordx4 v[54:57], v52, s[16:19], 0 offen sc1
            buffer_store_dwordx4 v[58:61], v52, s[16:19], s36 offen sc1
            v_readfirstlane_b32 s20, v253
            """)
            for r in range(22, 26): a(f'v_add_u32 v{r}, {T2CH}, v{r}')
        if j <= B_LAST:
            k = -(-len(work) // (B_LAST + 1 - j))
            for l in work[:k]: a(l)
            work = work[k:]
        if U_TR < j < NST - 1:
            for l in dump[1][:D_PER]: a(l)
            dump[1] = dump[1][D_PER:]
    assert not work
    for l in dump[1]: a(l)
    a(f's_lshl_b32 s36, s29, 8\ns_add_u32 m0, s36, {XYCH}\ns_nop 0')
    for l in dump[0]: a(l)
    a('s_cmp_eq_u32 s3, 4\ns_cselect_b32 s60, 1, 0\ns_cbranch_scc0 Q_nof0a')
    a('buffer_load_dwordx4 v[28:31], v223, s[16:19], 0 offen sc1')
    a.label('Q_nof0a')
    stamp(a, 2)
    if 'gemmonly' in DBG: a('s_branch P_fin')
    def nop(): pass
    def udma():
        a('s_add_u32 s93, s92, 16')
        for ch in range(2):
            for k in range(5):
                a(f's_mov_b32 m0, {L_U + 32*80 + ch*UCH + 1024*k}')
                a(f'buffer_load_dwordx4 v{UV[k]}, s[16:19], s{92+ch} offen sc1 lds')
    def look(tag, last=False):
        a(f's_cmp_eq_u32 s60, 0\ns_cbranch_scc1 Q_lk{tag}')
        if last:
            poll(a, 'PL_f0', 223, 28, x4=True, sleep=1)
        else:
            a('s_waitcnt vmcnt(0)')
            for i in range(4): a(f'v_xor_b32 v{28+i}, s20, v{28+i}')
            a('v_or3_b32 v28, v28, v29, v30\nv_or_b32 v28, v28, v31\nv_cmp_ne_u32 vcc, 0, v28')
            a(f's_nop 4\ns_cbranch_vccz Q_lg{tag}')
            a('buffer_load_dwordx4 v[28:31], v223, s[16:19], 0 offen sc1')
            a(f's_branch Q_lk{tag}')
            a.label(f'Q_lg{tag}')
        a('s_call_b64 s[96:97], Q_udma')
        a.label(f'Q_lk{tag}')
    a('s_waitcnt lgkmcnt(0)\ns_barrier')
    stamp(a, 3)
    call(a, 'SUB_KMFMA')
    look('b')
    a('s_barrier')
    stamp(a, 14)
    a('s_mov_b32 exec_hi, 0\nds_write_b128 v217, v[32:35]\ns_mov_b32 exec_hi, -1')
    gbuild(a, 1, (0, 1, 2, 3))
    a('s_waitcnt lgkmcnt(0)\ns_barrier')
    look('a')
    a('s_cmp_lg_u32 s3, 4\ns_cbranch_scc1 Q_uw')
    look('c', True)
    a('s_waitcnt vmcnt(0)')
    a(f'ds_write_b32 v{CV}, v{C1}')
    a('s_branch Q_ug')
    a.label('Q_uw')
    gwait(a, 0, 1, 2)
    a.label('Q_ug')
    stamp(a, 4)
    if CONV_PRIO: a('s_setprio 1')
    SC = 4; sc = [0]
    def sarr():
        a('s_waitcnt lgkmcnt(0)'); garrive(a, SC); sc[0] += 4
    Y0, Y1 = 176, 192
    FR = 32; NBUF = 4
    def boff(n): return (n // 2) * 80 + (n % 2) * 32
    def ld(t):
        b = FR + 16 * (t % NBUF); ao = 32*(31-t)
        return [f'ds_read_b64 {v(b,2)}, v218 offset:{ao + 2048}',
                f'ds_read_b64 {v(b+2,2)}, v218 offset:{ao + 2056}',
                f'ds_read_b128 {v(b+4,4)}, v219 offset:{boff(31-t)}',
                f'ds_read_b128 {v(b+8,4)}, v219 offset:{boff(31-t) + 2560}',
                f'ds_read_b64 {v(b+12,2)}, v218 offset:{ao}',
                f'ds_read_b64 {v(b+14,2)}, v218 offset:{ao + 8}']
    def mm(t, first):
        b = FR + 16 * (t % NBUF)
        return [f'v_mfma_f32_32x32x16_bf16 {v(Y0,16)}, {v(b,4)}, {v(b+4,4)}, {"0" if first else v(Y0,16)}',
                f'v_mfma_f32_32x32x16_bf16 {v(Y1,16)}, {v(b,4)}, {v(b+8,4)}, {"0" if first else v(Y1,16)}',
                f'v_mfma_f32_32x32x16_bf16 {v(Y1,16)}, {v(b+12,4)}, {v(b+4,4)}, {v(Y1,16)}']
    for l in ld(0) + ld(1): a(l)
    t_ = Asm(); ssm_epi_setup(t_)
    t_(f's_mul_i32 s36, s29, {PSRC}\ns_add_u32 s36, s36, {L_PART}\nv_lshl_add_u32 v216, v1, 4, s36')
    fillA = [[l] for l in t_.lines]
    su, fillB = att_pre_groups()
    fillA += su
    T0 = CONV_T0
    def take(q, k):
        for _ in range(k):
            if q:
                for l in q.pop(0): a(l)
    if T0 >= 32: fillB = []
    perA = -(-len(fillA) // (3*min(T0, 30))); perB = -(-len(fillB) // (3*max(30 - T0, 1)))
    for t in range(32):
        if t == T0:
            gwait(a, 12, 1, 2)
        else:
            a(f's_waitcnt lgkmcnt({6 if t < 31 else 0})')
        L = ld(t + 2) if t + 2 < 32 else []
        M = mm(t, t == 0)
        q, per = (fillA, perA) if t < T0 else (fillB, perB)
        a(M[0])
        for l in L[:2]: a(l)
        take(q, per)
        a(M[1])
        for l in L[2:4]: a(l)
        take(q, per)
        a(M[2])
        for l in L[4:]: a(l)
        take(q, per)
    assert not fillA and not fillB
    a('s_setprio 1')
    for own in range(8):
        a(f'ds_write_b128 v216, {v(Y0 + 4*own, 4)} offset:{own*POWN}')
    sarr()
    if T0 < 32: emit_groups(a, att_zero())
    gwait(a, SC, sc[0], 2)
    stamp(a, 9 if T0 >= 32 else 5)
    ssm_epi_reads(a)
    sarr()
    ssm_epi(a)
    gwait(a, SC, sc[0], 2)
    a('s_branch L_att' if T0 < 32 else 's_branch Q_w1')
    a.label('Q_udma')
    udma()
    a('s_mov_b32 s60, 0\ns_setpc_b64 s[96:97]')

def comp_waves(a):
    XF = 64; ACC = {K_: 176, V_: 192, Q_: 208}; WB = [[8 + 4*i for i in range(8)], [224 + 4*i for i in range(4)] + [40 + 4*i for i in range(4)]]
    a(f"""
    s_sub_u32 s28, s24, 7
    s_cmp_ge_u32 s24, 7
    s_cselect_b32 s27, s28, s24            ; rho
    s_lshl_b32 s30, s29, 4
    v_add_u32 v5, s30, v3
    v_lshrrev_b32 v6, 1, v5
    v_and_b32 v6, 7, v6
    v_xor_b32 v6, v6, v4
    v_lshlrev_b32 v6, 4, v6
    s_lshl_b32 s30, s26, 6
    v_add_u32 v7, s30, v5
    v_mul_u32_u24 v7, 896, v7
    v_add_u32 v244, v7, v6
    v_xor_b32 v6, 64, v6
    v_add_u32 v245, v7, v6
    v_add_u32 v245, 7168, v245
    v_lshrrev_b32 v6, 1, v5
    v_and_b32 v6, 1, v6
    v_lshlrev_b32 v6, 2, v6
    v_xor_b32 v6, v6, v4
    v_lshlrev_b32 v6, 4, v6
    v_mul_u32_u24 v7, 2688, v5
    v_add_u32 v246, v7, v6
    s_lshl_b32 s30, s25, 7
    v_add_u32 v246, s30, v246
    v_add_u32 v247, 21504, v246
    s_lshl_b32 s32, s29, 11
    s_lshl_b32 s40, s27, 7
    s_mul_i32 s48, s27, {64*2688}
    s_waitcnt lgkmcnt(0)
    """)
    srd(a, 8, P_X, S * D * 2)
    srd(a, 4, P_W, D * 3 * D * 2)
    def issue(j):
        o = []
        for half, (kind, i) in enumerate(stages[j]):
            base = RING0 + slot_of(j) * SLOT + half * 8192
            for e in range(2):
                g = [f's_add_u32 m0, s32, {base + e*1024}']
                if kind == 'x':
                    g.append(f'buffer_load_dwordx4 v{244+e}, s[8:11], s{40+i} offen {XMOD} lds')
                else:
                    so = f's{48+i}'
                    if kind:
                        so = 's37'
                        if e == 0: g.append(f's_add_u32 s37, s{48+i}, {kind*896}')
                    g.append(f'buffer_load_dwordx4 v{246+e}, s[4:7], {so} offen lds')
                o.append(g)
        return o
    vm = []
    def waitfor(tag):
        last = max(i for i, t in enumerate(vm) if t == tag)
        a(f's_waitcnt vmcnt({len(vm) - 1 - last})')
    def em(l, tag='st'):
        a(l)
        if l.startswith('buffer_'): vm.append(tag)
    def issue_now(j):
        for g in issue(j):
            for l in g: em(l, j)
    issue_now(0)
    for i in range(1, 7):
        if i == 3: issue_now(1)
        a(f's_add_u32 s27, s27, 1\ns_cmp_eq_u32 s27, 7\ns_cselect_b32 s27, 0, s27\ns_lshl_b32 s{40+i}, s27, 7\ns_mul_i32 s{48+i}, s27, {64*2688}')
    srd(a, 16, P_WS, WS_END)
    srd(a, 12, P_OUT, S * 2 * D * 2)
    a(f"""
    v_lshlrev_b32 v6, 3, v0
    v_sub_u32 v6, 2047, v6
    v_mov_b32 v17, {L_T2}
    v_mov_b32 v18, {TP}
    v_lshlrev_b32 v19, 4, v0
    v_add_u32 v19, {L_TAB}, v19
    s_mov_b32 s36, 0
    """)
    a.label('Q_tab')
    for i in (0, 2):
        a(f"""
        v_subrev_u32 v7, {i}, v6
        v_subrev_u32 v8, {i+1}, v6
        v_cvt_f32_i32 v2, v7
        v_cvt_f32_i32 v5, v8
        v_cvt_pk_bf16_f32 v2, v2, v5
        v_and_b32 v5, 0xffff0000, v2
        v_lshlrev_b32 v2, 16, v2
        v_cvt_i32_f32 v2, v2
        v_cvt_i32_f32 v5, v5
        v_and_b32 v7, 7, v2
        v_and_b32 v8, 7, v5
        v_ashrrev_i32 v2, 3, v2
        v_ashrrev_i32 v5, 3, v5
        v_mad_u32_u24 v2, v7, v18, v2
        v_mad_u32_u24 v5, v8, v18, v5
        v_lshl_add_u32 v{64+i}, v2, 1, v17
        v_lshl_add_u32 v{65+i}, v5, 1, v17
        """)
    a(f"""
    ds_write_b128 v19, v[64:67]
    v_add_u32 v19, 4096, v19
    v_subrev_u32 v6, 4, v6
    s_add_u32 s36, s36, 1
    s_cmp_lt_u32 s36, 3
    s_cbranch_scc1 Q_tab
    v_and_b32 v17, 15, v1
    """)
    ix = lambda p: (p & 7) * TP + (p >> 3)
    def pk(b, s1, s2): assert b < 4096 and s1 < 1024 and s2 < 1024; return b | (s1 << 12) | (s2 << 22)
    t0 = [pk(0, TP, 2*TP), pk(4*TP, TP, 2*TP), None, None]
    a('s_cmp_eq_u32 s63, 0')
    ptab = {0: [[0,1,2,3],[4,5,6,7],[256,258,260,262],[512,516,768,772]],
            1: [[1024,1280,1536,1792],[2048,2304,2304,2304],[2304]*4,[2304]*4]}
    for g in range(4):
        lo = lambda at: ix(ptab[at][g][0]) | (ix(ptab[at][g][1]) << 16)
        hi = lambda at: ix(ptab[at][g][2]) | (ix(ptab[at][g][3]) << 16)
        a(f's_mov_b32 exec_lo, {0xffff << (16*(g%2)) if g < 2 else 0}')
        a(f's_mov_b32 exec_hi, {0xffff << (16*(g%2)) if g >= 2 else 0}')
        a(f's_mov_b32 s36, {lo(1)}\ns_cselect_b32 s36, {lo(0)}, s36\nv_mov_b32 v68, s36')
        a(f's_mov_b32 s36, {hi(1)}\ns_cselect_b32 s36, {hi(0)}, s36\nv_mov_b32 v70, s36')
    a(f"""
    s_mov_b64 exec, -1
    s_lshl_b32 s36, s61, 5
    s_add_u32 s36, s36, {L_T2}
    v_lshl_add_u32 v18, v17, 1, s36
    v_lshrrev_b32 v69, 16, v68
    v_lshrrev_b32 v71, 16, v70
    v_and_b32 v68, 0xffff, v68
    v_and_b32 v70, 0xffff, v70
    v_lshl_add_u32 v68, v68, 1, v18
    v_lshl_add_u32 v69, v69, 1, v18
    v_lshl_add_u32 v70, v70, 1, v18
    v_lshl_add_u32 v71, v71, 1, v18
    ds_write_b128 v19, v[68:71]
    s_and_b32 s27, s3, 1                   ; rt
    s_lshr_b32 s30, s3, 1                  ; cg
    v_and_b32 v3, 31, v1
    v_lshrrev_b32 v4, 5, v1
    s_lshl_b32 s31, s27, 5
    v_add_u32 v5, s31, v3
    v_lshrrev_b32 v6, 1, v5
    v_and_b32 v6, 7, v6
    v_lshlrev_b32 v7, 7, v5
    v_add_u32 v7, {RING0}, v7
    """)
    for st in range(4):
        a(f"""
        v_add_u32 v{56+st}, {2*st}, v4
        v_xor_b32 v{56+st}, v{56+st}, v6
        v_lshl_add_u32 v{56+st}, v{56+st}, 4, v7
        """)
    a(f"""
    v_and_b32 v6, 3, v1
    v_lshlrev_b32 v6, 3, v6
    v_bfe_u32 v7, v1, 4, 1
    v_lshl_add_u32 v6, v7, 5, v6
    s_lshl_b32 s31, s30, 6
    v_add_u32 v6, s31, v6
    v_bfe_u32 v7, v1, 3, 1
    v_lshlrev_b32 v7, 6, v7
    v_xor_b32 v6, v6, v7
    v_bfe_u32 v7, v1, 2, 2
    v_lshl_add_u32 v7, v4, 3, v7
    v_lshl_add_u32 v60, v7, 7, v6
    v_add_u32 v60, {RING0}, v60
    s_lshl_b32 s31, s26, 1
    s_add_u32 s31, s31, s27
    s_mul_i32 s31, s31, {TILEB}
    s_lshl_b32 s33, s25, 3
    s_lshl_b32 s34, s30, 2
    s_add_u32 s33, s33, s34
    s_lshl_b32 s34, s33, 9
    s_add_u32 s34, s34, s31
    v_lshlrev_b32 v61, 4, v1
    v_add_u32 v61, s34, v61
    s_lshl_b32 s34, s33, 7
    s_add_u32 s34, s34, s31
    v_mul_u32_u24 v62, 7168, v4
    v_lshl_add_u32 v62, v3, 4, v62
    v_add_u32 v62, s34, v62
    s_mov_b32 s35, {f32bits(QSCALE)}
    s_lshl_b32 s60, s25, {FS+5}
    s_lshl_b32 s61, s26, {FS}
    s_add_u32 s60, s60, s61
    s_lshl_b32 s61, s3, 2
    s_add_u32 s60, s60, s61
    s_add_u32 s60, s60, {F1}
    """)
    if PRE_ST >= 3: issue_now(2)
    a('s_waitcnt lgkmcnt(0)')
    stamp(a, 13)
    def reads(j):
        sb = slot_of(j) * SLOT
        n = 0; o = []
        for half, (kind, i) in enumerate(stages[j]):
            base = sb + half * 8192
            if kind == 'x':
                for st in range(4):
                    o.append(f'ds_read_b128 {v(XF + 16*i + 4*st, 4)}, v{56 + st} offset:{base}')
            else:
                for st in range(4):
                    r = WB[j % 2][n]; n += 1
                    for e in range(2):
                        o.append(f'ds_read_b64_tr_b16 {v(r + 2*e, 2)}, v60 offset:{base + (16*st + 4*e)*128}')
        return o
    started = set()
    def epilogue(kind):
        acc = ACC[kind]; out = []
        if kind == Q_:
            for r in range(16): out.append(f'v_mul_f32 v{acc+r}, s35, v{acc+r}')
        for r in range(8): out.append(f'v_cvt_pk_bf16_f32 v{acc+r}, v{acc+2*r}, v{acc+2*r+1}')
        T = acc
        if kind == V_:
            out.append(f's_mov_b32 s36, {WS_V}')
            out.append(f'buffer_store_dwordx4 {v(T,4)}, v62, s[16:19], s36 offen sc1')
            out.append(f's_mov_b32 s36, {WS_V + 2*7168}')
            out.append(f'buffer_store_dwordx4 {v(T+4,4)}, v62, s[16:19], s36 offen sc1')
        else:
            for q in range(2):
                out.append(f'v_permlane32_swap_b32 v{T+4*q}, v{T+4*q+2}')
                out.append(f'v_permlane32_swap_b32 v{T+4*q+1}, v{T+4*q+3}')
            out.append(f's_mov_b32 s36, {WS_Q if kind == Q_ else WS_K}')
            out.append(f'buffer_store_dwordx4 {v(T,4)}, v61, s[16:19], s36 offen sc1')
            out.append(f'buffer_store_dwordx4 {v(T+4,4)}, v61, s[16:19], s36 offen offset:1024 sc1')
        return out
    def mlist(j):
        n = 0; done = []; o = []
        for half, (kind, i) in enumerate(stages[j]):
            if kind == 'x': continue
            acc = ACC[kind]
            for st in range(4):
                w = WB[j % 2][n]; n += 1
                x = XF + 16*i + 4*st
                c = v(acc, 16) if kind in started else '0'
                started.add(kind)
                if kind == V_: o.append(f'v_mfma_f32_32x32x16_bf16 {v(acc,16)}, {v(x,4)}, {v(w,4)}, {c}')
                else:          o.append(f'v_mfma_f32_32x32x16_bf16 {v(acc,16)}, {v(w,4)}, {v(x,4)}, {c}')
            if i == 6: done.append(kind)
        return o, done
    def weave(ms, rd, fill, dm, tag):
        nm = len(ms)
        slots = max(nm, 4)
        per = -(-len(rd) // max(slots - 2, 1))
        fper = -(-len(fill) // max(nm - 2, 1))
        dstep = slots // 4
        for k in range(slots):
            if k < nm: a(ms[k])
            if dm and k % dstep == 0:
                for l in dm.pop(0): em(l, tag)
            for _ in range(per):
                if rd: a(rd.pop(0))
            if k >= 2:
                for _ in range(fper):
                    if fill: em(fill.pop(0))
        for l in rd + fill: em(l)
    pending = []; carry = []
    for j in range(NST):
        waitfor(j)
        a('s_barrier')
        if j == 0: stamp(a, 1)
        if 'gemmonly' in DBG and j in (1,2,4,6,8,10,11,12,13): stamp(a, 3 + (1,2,4,6,8,10,11,12,13).index(j))
        rd = reads(j); ms = []; fill = carry; carry = []
        if j == 5: rd.append(f'ds_read_b32 v253, v{CV} offset:8')
        if j > 0:
            for k in pending: fill += epilogue(k)
            ms, pending = mlist(j - 1)
        if j == 0 and PRE_ST < 3: issue_now(2)
        dm = issue(j + DEPTH) if j + DEPTH < NST else []
        if dm:
            k = next((i for i, l in enumerate(fill) if l.startswith(('buffer_', 's_mov_b32 s36'))), len(fill))
            carry = fill[k:]; fill = fill[:k]
        if len(fill) > FILL_MAX and j < NST - 1:
            carry = fill[FILL_MAX:] + carry; fill = fill[:FILL_MAX]
        weave(ms, rd, fill, dm, j + DEPTH)
        a('s_waitcnt lgkmcnt(0)')
    fill = carry
    for k in pending: fill += epilogue(k)
    ms, pending = mlist(NST - 1)
    weave(ms, [], fill, [], None)
    for k in pending:
        for l in epilogue(k): a(l)
    stamp(a, 2)
    if 'gemmonly' in DBG: a('s_branch P_fin')
    sc_, ve_, lds_ = att_split()
    FL = 252
    a('v_readfirstlane_b32 s20, v253')
    gtabs(a)
    kmaddr(a, 0)
    att_poll_addr(a, FL)
    emit_groups(a, sc_)
    a('s_waitcnt vmcnt(0)')
    signal(a, 60, 2, 3)
    a('s_waitcnt lgkmcnt(0)\ns_barrier')
    stamp(a, 3)
    call(a, 'SUB_KMFMA')
    a('s_barrier')
    stamp(a, 14)
    gbuild(a, 0, (0, 1, 2, 3))
    a('s_waitcnt lgkmcnt(0)\ns_barrier')
    stamp(a, 4)
    emit_groups(a, ve_)
    a('s_setprio 2')
    a('s_cmp_lg_u32 s3, 0\ns_cbranch_scc1 Q_w1')
    poll(a, 'PL_f1', FL, 244, x4=True, sleep=A_SLEEP)
    a.label('Q_w0')
    a(f'ds_write_b32 v{CV}, v{C1} offset:12')
    a('s_branch L_pre')
    a.label('Q_w1')
    gwait(a, 12, 1, 2)
    a.label('L_pre')
    stamp(a, 5)
    emit_groups(a, lds_[:10] + att_zero())
    att_first(a, 4)
    emit_groups(a, lds_[10:])
    a('s_setprio 0')
    a('s_branch L_att2')

EB = 176
EA = EB + 56
ET = 96
def ssm_epi_setup(a):
    a(f"""
    v_and_b32 v{ET}, 1, v1                      ; ch
    v_bfe_u32 v{ET+1}, v1, 1, 2                 ; j
    v_lshrrev_b32 v{ET+2}, 3, v1
    v_mul_u32_u24 v{ET+3}, {POWN}, v{ET+1}
    v_mul_u32_u24 v{ET+4}, {PSRC}, v{ET}
    v_add_u32 v{ET+3}, v{ET+3}, v{ET+4}
    v_lshl_add_u32 v{ET+3}, v{ET+2}, 4, v{ET+3}
    s_lshl_b32 s60, s29, 7
    s_add_u32 s36, s60, {L_PART}
    v_add_u32 v{EA}, s36, v{ET+3}
    v_mul_u32_u24 v{ET+2}, 80, v{ET+2}
    v_lshl_add_u32 v{ET+2}, v{ET+1}, 4, v{ET+2}
    v_mul_u32_u24 v{ET+4}, {UCH}, v{ET}
    v_add_u32 v{ET+2}, v{ET+2}, v{ET+4}
    s_mul_i32 s36, s29, 640
    s_add_u32 s36, s36, {L_U + 32*80}
    v_add_u32 v{EA+1}, s36, v{ET+2}             ; u chunk
    s_lshl_b32 s36, s21, 13
    s_lshl_b32 s60, s29, 10
    s_add_u32 s36, s36, s60
    s_add_u32 s36, s36, {WS_YT}
    v_lshl_add_u32 v{EA+2}, v1, 4, s36
    s_lshl_b32 s60, s39, 16
    s_and_b32 s61, s39, 0xffff0000
    v_mov_b32 v{EA+3}, s60
    v_mov_b32 v{ET+4}, s61
    v_cmp_eq_u32 vcc, 1, v{ET}
    v_cndmask_b32 v{EA+3}, v{EA+3}, v{ET+4}, vcc
    """)

def ssm_epi_reads(a):
    for p in range(2):
        E = EB + 28*p; o = p*4*POWN
        a(f"""
        ds_read_b128 {v(E,4)}, v{EA} offset:{o}
        ds_read_b128 {v(E+4,4)}, v{EA} offset:{o+512}
        ds_read_b128 {v(E+8,4)}, v{EA} offset:{o+2*PSRC}
        ds_read_b128 {v(E+12,4)}, v{EA} offset:{o+2*PSRC+512}
        ds_read_b128 {v(E+16,4)}, v{EA+1} offset:{p*2560}
        """)

def ssm_epi(a):
    a('s_mov_b32 s36, 4096')
    for p in range(2):
        A = EB + 28*p; B = A + 8; U = A + 16; C = A + 20
        for e in range(8): a(f'v_add_f32 v{A+e}, v{A+e}, v{B+e}')
        for e in range(4):
            a(f'v_lshlrev_b32 v{C+2*e}, 16, v{U+e}')
            a(f'v_and_b32 v{C+1+2*e}, 0xffff0000, v{U+e}')
        for e in range(8): a(f'v_mul_f32 v{C+e}, v{EA+3}, v{C+e}')
        for e in range(4):
            a(f'v_cvt_pk_bf16_f32 v{B+e}, v{A+2*e}, v{A+1+2*e}')
            a(f'v_cvt_pk_bf16_f32 v{B+4+e}, v{C+2*e}, v{C+1+2*e}')
        for e in range(4):
            a(f'v_lshlrev_b32 v{A+2*e}, 16, v{B+e}')
            a(f'v_and_b32 v{A+1+2*e}, 0xffff0000, v{B+e}')
            a(f'v_lshlrev_b32 v{C+2*e}, 16, v{B+4+e}')
            a(f'v_and_b32 v{C+1+2*e}, 0xffff0000, v{B+4+e}')
        for e in range(8): a(f'v_add_f32 v{A+e}, v{A+e}, v{C+e}')
        for e in range(4): a(f'v_cvt_pk_bf16_f32 v{B+e}, v{A+2*e}, v{A+1+2*e}')
        a(f'buffer_store_dwordx4 {v(B,4)}, v{EA+2}, s[16:19], {"s36" if p else "0"} offen sc1')

def att_ids(a):
    a("""
    s_lshl_b32 s40, s22, 1
    s_and_b32 s41, s23, 1
    s_add_u32 s40, s40, s41                ; head
    s_lshr_b32 s41, s23, 1                 ; rbq
    s_mul_i32 s42, s40, 7
    s_lshr_b32 s42, s42, 1                 ; chi0
    """)

def att_poll_addr(a, r):
    att_ids(a)
    a(f"""
    s_lshr_b32 s43, s42, 3
    s_add_u32 s44, s42, 3
    s_lshr_b32 s44, s44, 3
    s_lshl_b32 s43, s43, {FS+5}
    s_lshl_b32 s44, s44, {FS+5}
    v_mov_b32 v{r}, s43
    v_mov_b32 v{r+1}, s44
    v_cmp_lt_u32 vcc, 31, v1
    v_cndmask_b32 v{r}, v{r}, v{r+1}, vcc
    v_and_b32 v{r+1}, 31, v1
    v_lshl_add_u32 v{r}, v{r+1}, {FS}, v{r}
    v_add_u32 v{r}, {F1}, v{r}
    """)

def att_poll(a, name):
    att_poll_addr(a, 16)
    poll(a, name, 16, 20, x4=True, sleep=8)

OL = 120 * 1024; YL = 152 * 1024; RED = 96 * 1024
NB = 4
QF = 16; OA = 32; SB = 64; PB = 96; KB = 112; VB = KB + 8*NB
def advK(a):
    a(f's_add_u32 s33, s33, {TILEB}')
    a('s_cmp_eq_u32 s33, s55')
    a('s_cselect_b32 s33, s54, s33')
def loadK(a, n):
    a(f'buffer_load_dwordx4 {v(KB+8*n,4)}, v3, s[4:7], s33 offen')
    a(f'buffer_load_dwordx4 {v(KB+8*n+4,4)}, v3, s[4:7], s33 offen offset:1024')
def loadV(a, n):
    a('s_mov_b64 exec, s[46:47]')
    a(f'buffer_load_dwordx4 {v(VB+8*n,4)}, v4, s[56:59], s33 offen')
    a(f'buffer_load_dwordx4 {v(VB+8*n+4,4)}, v7, s[56:59], s33 offen')
    a('s_mov_b64 exec, -1')

def att_pre_groups():
    def G(fn, *args):
        t = Asm(); fn(t, *args); return t.lines
    def singles(txt): return [[l] for l in lines(txt)]
    p1 = [[l] for l in G(att_ids) + G(srd, 4, P_WS, WS_END)]
    p1 += singles(f"""
    s_and_b32 s24, s3, 1                   ; qg
    s_lshr_b32 s27, s3, 1
    s_cmp_lt_u32 s23, 28
    s_cselect_b32 s34, {NA}, 16
    s_sub_u32 s35, 32, s34
    s_min_u32 s54, s27, 2
    s_mul_i32 s54, s54, s34
    s_cmp_eq_u32 s27, 3
    s_cselect_b32 s55, s35, 0
    s_add_u32 s54, s54, s55
    s_cmp_lt_u32 s3, 4
    s_cselect_b32 s34, s34, s35
    s_lshr_b32 s35, s34, 2
    s_lshl_b32 s96, s42, 9
    v_lshl_add_u32 v3, v1, 4, s96          ; Q/K voffset
    s_lshl_b32 s28, s41, 2
    s_lshl_b32 s31, s24, 1
    s_add_u32 s28, s28, s31
    s_mul_i32 s31, s28, {TILEB}
    s_add_u32 s31, s31, {WS_Q}
    s_add_u32 s30, s31, {TILEB}
    s_mul_i32 s54, s54, {TILEB}
    s_add_u32 s54, s54, {WS_K}
    s_mul_i32 s55, s34, {TILEB}
    s_add_u32 s55, s55, s54
    s_mul_i32 s33, s41, s34
    s_lshr_b32 s33, s33, 4
    s_mul_i32 s33, s33, {TILEB}
    s_add_u32 s33, s33, s54
    buffer_load_dwordx4 {v(QF,4)}, v3, s[16:19], s31 offen
    buffer_load_dwordx4 {v(QF+4,4)}, v3, s[16:19], s31 offen offset:1024
    """)
    p1 += [[l] for l in G(loadK, 0)]
    p1 += singles(f"""
    buffer_load_dwordx4 {v(QF+8,4)}, v3, s[16:19], s30 offen
    buffer_load_dwordx4 {v(QF+12,4)}, v3, s[16:19], s30 offen offset:1024
    v_and_b32 v5, 31, v1
    v_lshrrev_b32 v6, 5, v1
    v_mul_u32_u24 v4, 7168, v6
    v_lshl_add_u32 v4, v5, 4, v4
    s_mul_i32 s97, s40, 448
    s_add_u32 s97, s97, {WS_V - WS_K}
    v_add_u32 v4, s97, v4
    v_add_u32 v7, 14336, v4
    s_mov_b32 s46, 0x0fffffff
    s_mov_b32 s47, 0x0fffffff
    """)
    p1 += [[l] for l in G(srd, 56, P_WS, WS_END)]
    p2 = []
    for n in range(NB):
        dst = p1 if n == 0 else p2
        if n == 0:
            dst += [['v_cmp_eq_u32 vcc, 28, v5'], ['v_mov_b32 v12, 0x3f803f80'], ['v_cndmask_b32 v12, 0, v12, vcc'], ['v_mov_b32 v13, v12']]
        dst += [[f'v_mov_b64 {v(VB+8*n+r,2)}, v[12:13]'] for r in range(0, 8, 2)]
        if n < NB - 1:
            dst += [G(loadV, n), G(advK)] + [[l] for l in G(loadK, n + 1)]
    p2 += [[l] for l in G(srd, 8, P_WO, D * D * 2)]
    p2 += singles(f"""
    s_lshr_b32 s52, s40, 2
    s_lshl_b32 s53, s41, 2
    s_add_u32 s52, s52, s53
    s_and_b32 s53, s40, 3                  ; cg4
    v_lshrrev_b32 v8, 4, v1
    v_and_b32 v9, 15, v1
    v_lshlrev_b32 v10, 2, v8
    v_xor_b32 v9, v9, v10
    v_lshlrev_b32 v9, 4, v9
    v_mul_u32_u24 v8, 896, v8
    v_add_u32 v8, v8, v9
    s_lshl_b32 s98, s53, 8
    v_add_u32 v8, s98, v8
    s_lshl_b32 s51, s3, 10
    s_and_b32 s49, s3, 3
    s_lshl_b32 s48, s49, 10
    s_mul_i32 s50, s49, 3584
    s_and_b32 s49, s40, 1
    s_cmp_eq_u32 s49, 0
    s_cselect_b32 s43, -1, 0
    s_mov_b32 s42, 0
    s_cselect_b32 s44, 0, -1
    s_mov_b32 s45, 0
    s_lshl_b32 s32, s21, 4
    s_and_b32 s49, s3, 3
    s_lshl_b32 s49, s49, 2
    s_add_u32 s32, s32, s49
    s_add_u32 s32, s32, {F3}
    s_cmp_lt_u32 s23, 28
    s_cselect_b32 s32, s32, {WS_END}
    s_mov_b32 s37, 0
    """)
    allg = p1 + p2
    isld = lambda g: any(l.startswith('buffer_') for l in g) or g[0].startswith(f's_add_u32 s33, s33, {TILEB}')
    setup = [g for g in allg if not isld(g)]
    loads = [g for g in allg if isld(g)]
    return setup, loads

def att_split():
    su, ld = att_pre_groups()
    sc = [g for g in su if g[0].startswith('s_')]
    ve = [g for g in su if not g[0].startswith('s_')]
    return sc, ve, ld

def emit_groups(a, gs):
    for g in gs:
        for l in g: a(l)

def att_zero():
    return [[f'v_mov_b64 {v(OA+r,2)}, 0'] for r in range(0, 32, 2)] + [[f'v_mov_b64 {v(PB+8+r,2)}, 0'] for r in range(0, 8, 2)] + [[f'v_mov_b64 {v(SB+28+r,2)}, 0'] for r in range(0, 4, 2)]

def att_first(a, nout):
    a(f"""
    s_waitcnt vmcnt({nout})
    s_mov_b64 exec, s[42:43]
    v_mov_b32 v{QF+6}, 0
    v_mov_b32 v{QF+7}, 0
    v_mov_b32 v{QF+14}, 0
    v_mov_b32 v{QF+15}, 0
    s_mov_b64 exec, s[44:45]
    v_mov_b32 v{QF+0}, 0
    v_mov_b32 v{QF+1}, 0
    v_mov_b32 v{QF+8}, 0
    v_mov_b32 v{QF+9}, 0
    s_mov_b64 exec, -1
    v_mfma_f32_32x32x16_bf16 {v(SB,16)}, {v(KB,4)}, {v(QF,4)}, 0
    v_mfma_f32_32x32x16_bf16 {v(SB,16)}, {v(KB+4,4)}, {v(QF+4,4)}, {v(SB,16)}
    """)

def ph_att(a):
    a.label('L_att')
    att_first(a, 4*(NB-1))
    a('s_nop 9')
    a.label('L_att2')
    a(f's_cmp_{PRIO_CMP}_u32 s3, 4\ns_cbranch_scc1 A_noprio\ns_setprio 1')
    a.label('A_noprio')
    stamp(a, 6)
    a('.p2align 6')
    a.label('A_loop')
    for u in range(2*NB):
        t = u % 2
        kn = ((u + 1) // 2) % NB
        vn = ((u - 1) // 2) % NB
        Sn = SB + 16*((u+1) % 2); Sc = SB + 16*(u % 2)
        Pc = PB + 8*(u % 2); Pp = PB + 8*((u+1) % 2)
        Qn = QF + 8*(1-t); On = OA + 16*(1-t)
        ins = {}
        if u % 2 == 1:
            j = (u - 1) // 2
            if SPREAD == 0:
                loadV(a, (j - 1) % NB); advK(a); loadK(a, j % NB)
                if j == 0: a('s_mov_b32 s58, s6')
                a(f's_waitcnt vmcnt({4*(NB-1)})')
            else:
                a(f's_waitcnt vmcnt({4*(NB-2)})')
                t1 = Asm(); loadV(t1, (j - 1) % NB); t2 = Asm(); advK(t2); t3 = Asm(); loadK(t3, j % NB)
                if j == 0: t2('s_mov_b32 s58, s6')
                if SPREAD == 1: ins = {(0, 1): t1.lines, (1, 1): t2.lines, (2, 1): t3.lines[:1], (3, 1): t3.lines[1:]}
                else: ins = {(0, 1): t1.lines[:2] + t1.lines[3:], (1, 1): t1.lines[:1] + t1.lines[2:], (1, 3): t2.lines, (2, 1): t3.lines[:1], (3, 1): t3.lines[1:]}
        M = [f'v_mfma_f32_32x32x16_bf16 {v(Sn,16)}, {v(KB+8*kn,4)}, {v(Qn,4)}, 0',
             f'v_mfma_f32_32x32x16_bf16 {v(Sn,16)}, {v(KB+8*kn+4,4)}, {v(Qn+4,4)}, {v(Sn,16)}',
             f'v_mfma_f32_32x32x16_bf16 {v(On,16)}, {v(VB+8*vn,4)}, {v(Pp,4)}, {v(On,16)}',
             f'v_mfma_f32_32x32x16_bf16 {v(On,16)}, {v(VB+8*vn+4,4)}, {v(Pp+4,4)}, {v(On,16)}']
        M = [M[2], M[0], M[1], M[3]]
        for g in range(4):
            a(M[g])
            for e in range(4):
                a(f'v_exp_f32 v{Sc+4*g+e}, v{Sc+4*g+e}')
                for l in ins.get((g, e), []): a(l)
                if e in (0, 2):
                    h = e // 2
                    if g > 0: a(f'v_cvt_pk_bf16_f32 v{Pc+2*(g-1)+h}, v{Sc+4*(g-1)+2*h}, v{Sc+4*(g-1)+2*h+1}')
                    else:     a(f'v_cvt_pk_bf16_f32 v{Pp+6+h}, v{Sn+12+2*h}, v{Sn+13+2*h}')
    a(f"""
    s_add_u32 s37, s37, 1
    s_cmp_eq_u32 s37, s35
    s_cbranch_scc1 A_exit
    s_add_u32 s49, s37, 1
    s_cmp_eq_u32 s49, s35
    s_cselect_b32 s6, 0, s6
    s_cmp_lt_u32 s3, 4
    s_cbranch_scc1 A_loop
    s_cmp_gt_u32 s37, 2
    s_cbranch_scc1 A_b0
    """)
    for r in range(0 if 'nowo' in DBG else 12):
        a(f"""
        s_mov_b32 m0, s48
        s_add_u32 s48, s48, 4096
        buffer_load_dwordx4 v8, s[8:11], s50 offen lds
        s_add_u32 s50, s50, 14336
        """)
    a.label('A_b0')
    a(f"""
    s_add_u32 s49, s37, {PRIO_LEFT}
    s_cmp_lt_u32 s49, s35
    s_cbranch_scc1 A_b1
    s_setprio 0
    """)
    a.label('A_b1')
    a('s_cmp_lg_u32 s37, 1\ns_cbranch_scc1 A_loop')
    signal(a, 32, 9, 10)
    a('s_branch A_loop')
    a.label('A_exit')
    a('s_setprio 0')
    stamp(a, 7)
    a(f'v_cvt_pk_bf16_f32 v{PB+14}, v{SB+28}, v{SB+29}')
    a(f'v_cvt_pk_bf16_f32 v{PB+15}, v{SB+30}, v{SB+31}')
    a(f'v_mfma_f32_32x32x16_bf16 {v(OA+16,16)}, {v(VB+8*(NB-1),4)}, {v(PB+8,4)}, {v(OA+16,16)}')
    a(f'v_mfma_f32_32x32x16_bf16 {v(OA+16,16)}, {v(VB+8*(NB-1)+4,4)}, {v(PB+12,4)}, {v(OA+16,16)}')
    a('s_mov_b32 s94, 0')
    a.label('A_red')
    a(f"""
    s_lshl_b32 s36, s24, 14
    s_add_u32 s36, s36, {RED}
    s_lshr_b32 s38, s27, 1
    s_lshl_b32 s38, s38, 15
    s_and_b32 s39, s27, 1
    s_lshl_b32 s39, s39, 11
    s_add_u32 s38, s38, s39
    s_add_u32 s38, s38, s36
    v_lshlrev_b32 v2, 4, v1
    v_add_u32 v9, s38, v2
    s_lshl_b32 s38, s27, 12
    s_add_u32 s38, s38, s36
    v_add_u32 v10, s38, v2
    s_or_b32 s38, s27, 1
    s_lshl_b32 s38, s38, 12
    s_add_u32 s38, s38, s36
    s_add_u32 s38, s38, {1024 + 512}
    v_lshlrev_b32 v11, 4, v5
    v_add_u32 v11, s38, v11
    """)
    for own in range(4):
        for q in range(2):
            a(f'ds_write_b128 v9, {v(OA + 8*own + 4*q, 4)} offset:{own*4096 + q*1024}')
    a('s_waitcnt lgkmcnt(0)\ns_barrier')
    R = 64
    so = lambda src: (src >> 1) * 32768 + (src & 1) * 2048
    for src in range(4):
        a(f'ds_read_b32 v{12+src}, v11 offset:{so(src)}')
    for src in range(4):
        for q in range(2):
            a(f'ds_read_b128 {v(R + 8*src + 4*q, 4)}, v10 offset:{so(src) + q*1024}')
    a(f"""
    s_and_b32 s36, s27, 1
    s_cmp_eq_u32 s36, 1
    s_cselect_b32 s43, -1, 0
    s_mov_b32 s42, 0
    s_lshr_b32 s38, s27, 1
    s_add_u32 s38, s38, s28
    s_lshl_b32 s38, s38, 15
    s_lshl_b32 s39, s40, 11
    s_add_u32 s38, s38, s39
    s_lshl_b32 s39, s36, 10
    s_add_u32 s38, s38, s39
    s_add_u32 s38, s38, {WS_O}
    s_waitcnt lgkmcnt(8)
    v_add_f32 v12, v12, v13
    v_add_f32 v14, v14, v15
    v_add_f32 v12, v12, v14
    v_rcp_f32 v12, v12
    s_waitcnt lgkmcnt(0)
    """)
    a('v_cndmask_b32 v13, v12, 0, s[42:43]')
    for r in range(8):
        a(f'v_add_f32 v{R+r}, v{R+r}, v{R+8+r}')
        a(f'v_add_f32 v{R+16+r}, v{R+16+r}, v{R+24+r}')
    for r in range(8): a(f'v_add_f32 v{R+r}, v{R+r}, v{R+16+r}')
    for r in range(8): a(f'v_mul_f32 v{R+r}, v{R+r}, v{12 if r < 4 else 13}')
    for r in range(4): a(f'v_cvt_pk_bf16_f32 v{R+8+r}, v{R+2*r}, v{R+2*r+1}')
    a(f'buffer_store_dwordx4 {v(R+8,4)}, v2, s[16:19], s38 offen sc1')
    stamp(a, 8)
    a(f"""
    v_lshlrev_b32 v11, 13, v6
    v_lshl_add_u32 v11, v5, 4, v11
    v_add_u32 v11, {RED + 4096 + 1024 + 512}, v11
    """)
    for qg in range(2):
        for src in range(4):
            a(f'ds_read_b32 v{80+4*qg+src}, v11 offset:{qg*16384 + so(src)}')
    a(f"""
    s_mov_b32 s36, {f32bits(2.0**-30)}
    s_mov_b32 s37, {f32bits(2.0**40)}
    s_waitcnt lgkmcnt(0)
    v_add_f32 v80, v80, v81
    v_add_f32 v82, v82, v83
    v_add_f32 v84, v84, v85
    v_add_f32 v86, v86, v87
    v_add_f32 v80, v80, v82
    v_add_f32 v84, v84, v86
    v_cmp_nle_f32 vcc, s36, v80
    v_cmp_nge_f32 s[42:43], s37, v80
    v_cmp_nle_f32 s[44:45], s36, v84
    v_cmp_nge_f32 s[60:61], s37, v84
    s_or_b64 s[42:43], s[42:43], vcc
    s_or_b64 s[44:45], s[44:45], s[60:61]
    s_or_b64 s[42:43], s[42:43], s[44:45]
    s_cbranch_scc1 A_slow
    """)
    a.label('A_done')

def ph_slow(a):
    MX = 192
    a.label('A_slow')
    a(f"""
    s_cmp_lg_u32 s94, 0
    s_cbranch_scc1 A_done
    s_waitcnt vmcnt(0)
    s_barrier
    s_mov_b32 s6, s18
    s_mov_b32 s58, s18
    v_mov_b32 v{MX}, 0xff800000
    v_mov_b32 v{MX+1}, 0xff800000
    """)
    for r in range(0, 32, 2): a(f'v_mov_b64 {v(OA+r,2)}, 0')
    a.label('AS_pass')
    a('s_mov_b32 s37, 0')
    a.label('AS_tile')
    loadK(a, 0); loadV(a, 0); advK(a)
    a('s_waitcnt vmcnt(0)')
    for t in range(2):
        Sx = SB + 16*t
        a(f'v_mfma_f32_32x32x16_bf16 {v(Sx,16)}, {v(KB,4)}, {v(QF+8*t,4)}, 0')
        a(f'v_mfma_f32_32x32x16_bf16 {v(Sx,16)}, {v(KB+4,4)}, {v(QF+8*t+4,4)}, {v(Sx,16)}')
    a('s_nop 15\ns_cmp_lg_u32 s94, 0\ns_cbranch_scc1 AS_p1')
    for t in range(2):
        for r in range(0, 16, 2): a(f'v_max3_f32 v{MX+t}, v{SB+16*t+r}, v{SB+16*t+r+1}, v{MX+t}')
    a('s_branch AS_next')
    a.label('AS_p1')
    for t in range(2):
        Sx = SB + 16*t; Px = PB + 8*t
        for r in range(16): a(f'v_sub_f32 v{Sx+r}, v{Sx+r}, v{MX+t}')
        for r in range(16): a(f'v_exp_f32 v{Sx+r}, v{Sx+r}')
        for r in range(8): a(f'v_cvt_pk_bf16_f32 v{Px+r}, v{Sx+2*r}, v{Sx+2*r+1}')
        a(f'v_mfma_f32_32x32x16_bf16 {v(OA+16*t,16)}, {v(VB,4)}, {v(Px,4)}, {v(OA+16*t,16)}')
        a(f'v_mfma_f32_32x32x16_bf16 {v(OA+16*t,16)}, {v(VB+4,4)}, {v(Px+4,4)}, {v(OA+16*t,16)}')
    a.label('AS_next')
    a(f"""
    s_nop 15
    s_add_u32 s37, s37, 1
    s_cmp_lt_u32 s37, s34
    s_cbranch_scc1 AS_tile
    s_cmp_lg_u32 s94, 0
    s_cbranch_scc1 A_red
    s_lshl_b32 s36, s24, 11
    s_add_u32 s36, s36, {RED}
    s_lshl_b32 s38, s27, 9
    s_add_u32 s38, s38, s36
    v_lshl_add_u32 v9, v1, 3, s38
    ds_write_b64 v9, {v(MX,2)}
    v_lshl_add_u32 v9, v5, 3, s36
    s_waitcnt lgkmcnt(0)
    s_barrier
    """)
    for k in range(8): a(f'ds_read_b64 {v(SB+2*k,2)}, v9 offset:{256*k}')
    a('s_waitcnt lgkmcnt(0)')
    for t in range(2):
        for k in range(0, 8, 2): a(f'v_max3_f32 v{MX+t}, v{SB+2*k+t}, v{SB+2*k+2+t}, v{MX+t}')
    a('s_mov_b32 s94, 1\ns_barrier\ns_branch AS_pass')

def ph_out(a):
    a(f"""
    s_cmp_lg_u32 s3, 4
    s_cbranch_scc1 P_nop3
    s_cmp_ge_u32 s23, 28
    s_cbranch_scc1 P_nop3
    s_lshl_b32 s36, s25, 9
    s_add_u32 s36, s36, {F3}
    v_add_u32 v16, s36, v2
    """)
    poll(a, 'PL_f3', 16, 20, mask=0xffffffff, x4=True)
    a.label('P_nop3')
    a('s_waitcnt vmcnt(0)\ns_barrier')
    a('s_cmp_lg_u32 s3, 0\ns_cbranch_scc1 P_nof2')
    a(f's_lshl_b32 s36, s41, {FS+4}\ns_lshl_b32 s37, s40, {FS}\ns_add_u32 s36, s36, s37\ns_add_u32 s36, s36, {F2}')
    signal(a, 36, 16, 17)
    a.label('P_nof2')
    for r in (12, 13, 14):
        a(f's_add_u32 m0, s51, {r*8192}')
        a(f's_mul_i32 s50, s3, 3584')
        a(f's_add_u32 s50, s50, {r*28672}')
        if r == 14: a(f's_min_u32 s50, s50, {D*D*2}')
        a(f'buffer_load_dwordx4 v8, s[8:11], s50 offen lds')
    a(f"""
    s_cmp_ge_u32 s23, 28
    s_cbranch_scc1 P_noy
    v_lshrrev_b32 v16, 1, v1
    v_lshlrev_b32 v16, 13, v16
    v_and_b32 v17, 1, v1
    v_lshl_add_u32 v16, v17, 4, v16
    s_lshl_b32 s36, s25, 18
    s_lshl_b32 s37, s26, 8
    s_add_u32 s36, s36, s37
    s_lshl_b32 s37, s3, 5
    s_add_u32 s36, s36, s37
    s_add_u32 s36, s36, {WS_YT}
    s_add_u32 m0, s51, {YL}
    s_nop 0
    buffer_load_dwordx4 v16, s[16:19], s36 offen sc1 lds
    ; tr supplier address: (8*oct + r)*16 + rq*8 (+64 for second half), Q = 4*(l/16)+l%4, oct = Q%8, rq = Q/8
    v_lshrrev_b32 v17, 4, v1
    v_and_b32 v18, 3, v1
    v_lshl_add_u32 v17, v17, 2, v18
    v_and_b32 v18, 7, v17
    v_lshrrev_b32 v17, 3, v17
    v_bfe_u32 v19, v1, 2, 2
    v_lshl_add_u32 v18, v18, 3, v19
    v_lshlrev_b32 v18, 4, v18
    v_lshl_add_u32 v18, v17, 3, v18
    s_add_u32 s36, s51, {YL}
    v_add_u32 v18, s36, v18
    ; store: row = 64rb + 8w + 4*(l/32) + l%4 ; col byte = 896 + 128c + 16*((l/4)%8)
    v_and_b32 v19, 3, v1
    v_lshl_add_u32 v19, v6, 2, v19
    s_lshl_b32 s36, s26, 6
    s_lshl_b32 s37, s3, 3
    s_add_u32 s36, s36, s37
    v_add_u32 v19, s36, v19
    v_mul_u32_u24 v19, 1792, v19
    v_bfe_u32 v17, v1, 2, 3
    v_lshl_add_u32 v19, v17, 4, v19
    s_lshl_b32 s36, s25, 7
    s_add_u32 s36, s36, 896
    s_waitcnt vmcnt(0)
    ds_read_b64_tr_b16 v[20:21], v18
    ds_read_b64_tr_b16 v[22:23], v18 offset:64
    s_waitcnt lgkmcnt(0)
    buffer_store_dwordx4 v[20:23], v19, s[12:15], s36 offen {YMOD}
    """)
    a.label('P_noy')
    a(f"""
    s_and_b32 s29, s3, 3                   ; ct
    v_bfe_u32 v7, v1, 2, 2
    v_xor_b32 v12, s29, v7
    v_lshlrev_b32 v12, 6, v12
    v_bfe_u32 v9, v1, 4, 1
    v_lshl_add_u32 v12, v9, 5, v12
    v_and_b32 v9, 3, v1
    v_lshl_add_u32 v12, v9, 3, v12
    v_lshl_add_u32 v9, v6, 2, v7
    v_lshl_add_u32 v12, v9, 8, v12
    v_add_u32 v13, {224*256}, v12          ; heads 8..15
    v_add_u32 v10, {OL}, v2
    s_lshl_b32 s36, s52, 15
    s_add_u32 s36, s36, s51
    s_add_u32 s36, s36, {WS_O}
    v_add_u32 v14, s36, v2
    v_and_b32 v11, 31, v1
    s_lshl_b32 s36, s52, 5
    v_add_u32 v11, s36, v11
    v_mul_u32_u24 v11, 1792, v11
    v_lshl_add_u32 v11, v6, 4, v11
    s_lshl_b32 s30, s53, 2
    s_add_u32 s30, s30, s29
    s_lshl_b32 s32, s30, 6
    s_cmp_lg_u32 s3, 0
    s_cbranch_scc1 P_nop2
    s_lshl_b32 s36, s41, {FS+4}
    s_add_u32 s36, s36, {F2}
    v_lshl_add_u32 v16, v1, {FS}, s36
    """)
    poll(a, 'PL_f2', 16, 17, mask=0xffff, sleep=2)
    a.label('P_nop2')
    a('s_barrier')
    stamp(a, 10)
    for st in range(4):
        a(f's_add_u32 m0, s51, {OL + st*8192}')
        a(f's_mov_b32 s50, {st*8192}')
        a(f'buffer_load_dwordx4 v14, s[16:19], s50 offen sc1 lds')
    a(f"""
    s_cmp_lt_u32 s30, 14
    s_cselect_b32 s31, 1, 0
    s_cmp_lt_u32 s3, 4
    s_cselect_b32 s31, s31, 0
    s_cmp_eq_u32 s31, 0
    s_cbranch_scc1 P_idle
    """)
    ACC = 16; WF = 32; OF = 160
    def wread(hd):
        for f in range(2):
            for e in range(2):
                row = 28*hd + 16*f + 8*e - (224 if hd >= 8 else 0)
                a(f'ds_read_b64_tr_b16 {v(WF + 8*hd + 4*f + 2*e, 2)}, v{13 if hd >= 8 else 12} offset:{row*256}')
    for hd in range(13): wread(hd)
    a('s_waitcnt vmcnt(0) lgkmcnt(0)\ns_barrier')
    stamp(a, 11)
    for hd in range(13, 16): wread(hd)
    def oread(st):
        for n in range(8):
            a(f'ds_read_b128 {v(OF + 32*(st%2) + 4*n, 4)}, v10 offset:{st*8192 + n*1024}')
    def mf(st):
        for n in range(8):
            c = '0' if (st == 0 and n == 0) else v(ACC, 16)
            a(f'v_mfma_f32_32x32x16_bf16 {v(ACC,16)}, {v(WF + 32*st + 4*n,4)}, {v(OF + 32*(st%2) + 4*n,4)}, {c}')
    oread(0)
    for st in range(4):
        a('s_waitcnt lgkmcnt(0)')
        if st < 3: oread(st + 1)
        mf(st)
    T = 40
    for r in range(8): a(f'v_cvt_pk_bf16_f32 v{T+r}, v{ACC+2*r}, v{ACC+2*r+1}')
    for q in range(2):
        a(f'v_permlane32_swap_b32 v{T+4*q}, v{T+4*q+2}')
        a(f'v_permlane32_swap_b32 v{T+4*q+1}, v{T+4*q+3}')
    a(f'buffer_store_dwordx4 {v(T,4)}, v11, s[12:15], s32 offen {OMOD}')
    a(f'buffer_store_dwordx4 {v(T+4,4)}, v11, s[12:15], s32 offen offset:32 {OMOD}')
    a('s_branch P_fin')
    a.label('P_idle')
    a('s_waitcnt vmcnt(0)\ns_barrier')
    a('s_cmp_lg_u32 s2, 240\ns_cbranch_scc1 P_fin\ns_cmp_lg_u32 s3, 4\ns_cbranch_scc1 P_fin')
    a(f'v_lshlrev_b32 v16, {FS}, v1\nv_add_u32 v16, {F2 + (14 << (FS+4))}, v16')
    poll(a, 'PL_ep', 16, 17, mask=0xffff, sleep=2)
    a(f's_mov_b32 s36, {EPOCH}')
    signal(a, 36, 16, 17)
    a.label('P_fin')

def kernel(a):
    if STAMPS or DIAG >= 0:
        a('v_mov_b32 v254, 0')
        stamp(a, 0)
    prologue(a)
    ph_front(a)
    ph_att(a)
    ph_out(a)
    if DIAG >= 0:
        a('s_waitcnt vmcnt(0)')
        stamp(a, 12)
        a(f"""
        s_cmp_lg_u32 s3, {int(os.environ.get('DIAGW', 0))}
        s_cbranch_scc1 L_end
        s_cmp_ge_u32 s23, 28
        s_cbranch_scc1 L_end
        v_readlane_b32 s36, v254, 0
        v_readlane_b32 s37, v254, {DIAG}
        s_memrealtime s[90:91]
        s_waitcnt lgkmcnt(0)
        s_sub_u32 s36, s37, s36
        s_min_u32 s36, s36, 10000
        s_mov_b32 s37, s90
        """)
        a.label('D_spin')
        a("""
        s_memrealtime s[90:91]
        s_waitcnt lgkmcnt(0)
        s_sub_u32 s38, s90, s37
        s_cmp_lt_u32 s38, s36
        s_cbranch_scc1 D_spin
        """)
    if STAMPS:
        a('s_waitcnt vmcnt(0)')
        stamp(a, 12)
        a(f"""
        s_mov_b32 s18, {WS_STAMP + (1<<20)}
        s_lshl_b32 s36, s2, 3
        s_add_u32 s36, s36, s3
        s_lshl_b32 s36, s36, 6
        s_add_u32 s36, s36, {WS_STAMP}
        v_lshl_add_u32 v2, v1, 2, s36
        s_mov_b64 exec, 0xffff
        buffer_store_dword v254, v2, s[16:19], 0 offen
        s_cmp_lg_u32 s2, 100
        s_cbranch_scc1 L_end
        s_cmp_lg_u32 s3, 0
        s_cbranch_scc1 L_end
        v_readfirstlane_b32 s36, v254
        v_lshlrev_b32 v2, 2, v1
        v_subrev_u32 v254, s36, v254
        s_mov_b64 exec, 0x7ffe
        """)
        srd(a, 56, P_DBG, 256)
        a('buffer_store_dword v254, v2, s[56:59], 0 offen')
    a.label('L_end')
    a('s_endpgm')
    subroutines(a)
    ph_slow(a)

def build(path):
    hdr = open(f'cdna_kernels/{NAME}.s.ref').read().split('\n')
    out = [l for l in hdr if l.startswith(';') and '@launch' not in l][:16]
    out.append(f'; @launch grid=(256,1,1) block=(512,1,1) lds={LDS_TOTAL}')
    out.append('.amdgcn_target "amdgcn-amd-amdhsa--gfx950"')
    out.append('.text')
    label = NAME + '_kernel'
    a = Asm(); kernel(a)
    txt = '\n'.join(out) + f'\n.globl {label}\n.p2align 8\n.type {label},@function\n{label}:\n' + a.finalize()
    txt += f'''.section .rodata,"a"
.p2align 6
.amdhsa_kernel {label}
  .amdhsa_next_free_vgpr 256
  .amdhsa_next_free_sgpr 102
  .amdhsa_accum_offset 256
  .amdhsa_group_segment_fixed_size 0
  .amdhsa_kernarg_size 104
  .amdhsa_user_sgpr_count 2
  .amdhsa_user_sgpr_kernarg_segment_ptr 1
  .amdhsa_system_sgpr_workgroup_id_x 1
.end_amdhsa_kernel
'''
    open(path, 'w').write(txt)

if __name__ == '__main__':
    if '--stamps' in sys.argv: STAMPS = True; sys.argv.remove('--stamps')
    path = sys.argv[1] if len(sys.argv) > 1 else f'cdna_kernels/{NAME}.s'
    build(path)
    import subprocess
    subprocess.run(['clang', '-x', 'assembler', '-target', 'amdgcn-amd-amdhsa', '-mcpu=gfx950', '-c', path, '-o', '_sz.o'], check=True)
    hdr = subprocess.run(['llvm-objdump', '-h', '_sz.o'], capture_output=True, text=True).stdout
    size = int([l for l in hdr.splitlines() if '.text' in l][0].split()[2], 16)
    CODE_KB[0] = size // 1024 - 1
    _gw[0] = 0
    build(path)
    print('code bytes', size)
```

```python
import sys, math, struct, os, re
DBG = os.environ.get('DBG', '')
sys.path.insert(0, 'work')
from asmgen import *

STAMPS = False
NAME = 'concat_heads__mha_block__ssm_conv_s4d__prompt'
S = 2048; D = 448; H = 16; DH = 28
TILEB = 56 * 512
FS = int(os.environ.get('FS', 4))
F0 = 0; F1 = 32768; F2 = 65536; EPOCH = 98304; F3 = 102400
WS_Q = 131072
WS_K = WS_Q + 64 * TILEB
WS_V = WS_K + 64 * TILEB
WS_O = WS_V + 64 * TILEB
WS_UT = WS_O + 64 * 32768
WS_YT = WS_UT + 112 * 16384
WS_END = WS_YT + 224 * 8192
WS_STAMP = 16 << 20
LDS_TOTAL = 163840
POLL_LIMIT = 20000
PRIO_IT = 3
SIG_CUT = float(os.environ.get('SIG_CUT', 0.4))
LOOK_POS = int(os.environ.get('LOOK_POS', 1))
F2S = int(os.environ.get('F2S', 7))
PIPE_POLL = int(os.environ.get('PIPE_POLL', 0))
F2_SLEEP = int(os.environ.get('F2_SLEEP', 1))
AMAP = int(os.environ.get('AMAP', 0))
LITE_SLEEP = int(os.environ.get('LITE_SLEEP', 10))
B_PRE = int(os.environ.get('B_PRE', 10))
B_LAST = int(os.environ.get('B_LAST', 12))
D_PER = int(os.environ.get('D_PER', 0))
PKMUL = int(os.environ.get('PKMUL', 0))
NBP = int(os.environ.get('NBP', 7))
KM_PTS = eval(os.environ.get('KM_PTS', '(7, 13)'))
B_PRIO = int(os.environ.get('B_PRIO', 0))
KM_SPLIT = int(os.environ.get('KM_SPLIT', 10))
A_SLEEP0 = int(os.environ.get('A_SLEEP0', 12))
KM_J = int(os.environ.get('KM_J', 1))
BPRE_J = int(os.environ.get('BPRE_J', 0))
A_SLEEP = int(os.environ.get('A_SLEEP', 3))
FILL_MAX = int(os.environ.get('FILL_MAX', 16))
YMOD = os.environ.get('YMOD', '')
OMOD = os.environ.get('OMOD', '')
SPREAD = int(os.environ.get('SPREAD', 1))
CODE_KB = [1]
CODE_PF = int(os.environ.get('CODE_PF', 1))
NA = int(os.environ.get('NA', 16))
PRIO_LEFT = int(os.environ.get('PRIO_LEFT', 1))
CONV_PRIO = int(os.environ.get('CONV_PRIO', 1))
PRIO_CMP = 'lt'
SCHED_C = [3, 3, 3, 1, 1]
U_ISS = int(os.environ.get('U_ISS', -1)); U_TR = int(os.environ.get('U_TR', 4)); F0_SIG = int(os.environ.get('F0_SIG', 7))
F0_TRY = (7, 10)
F0_LAG = 2
PRE_ST = int(os.environ.get('PRE_ST', 2))
CONV_T0 = int(os.environ.get('CONV_T0', 22))
XMOD = os.environ.get('XMOD', '')
F1_SLEEP = 8
KG_CUT = float(os.environ.get('KG_CUT', 0.4))
LD_PER = int(os.environ.get('LD_PER', 50))

def f32bits(x): return struct.unpack('<I', struct.pack('<f', x))[0]
QSCALE = math.log2(math.e) / math.sqrt(DH)
LOG2E = math.log2(math.e)
P_X, P_W, P_WO, P_U, P_LA, P_AI, P_CR, P_CI, P_DT, P_DS, P_OUT, P_DBG, P_WS = [64 + 2*i for i in range(13)]

DIAG = int(os.environ.get('DIAG', -1))
def stamp(a, n):
    if STAMPS or (DIAG >= 0 and n in (0, DIAG)):
        a('s_memrealtime s[90:91]')
        a('s_waitcnt lgkmcnt(0)')
        a(f'v_writelane_b32 v254, s90, {n}')

def srd(a, base_s, ptr_s, nbytes):
    a(f's_mov_b32 s{base_s}, s{ptr_s}')
    a(f's_and_b32 s{base_s+1}, s{ptr_s+1}, 0xffff')
    a(f's_mov_b32 s{base_s+2}, {nbytes}')
    a(f's_mov_b32 s{base_s+3}, 0x20000')

def poll(a, name, voff, tmp, mask=-1, x4=False, sleep=4):
    if mask != -1:
        a(f's_mov_b32 exec_lo, {mask & 0xffffffff}')
        a(f's_mov_b32 exec_hi, {mask >> 32}')
    a('s_mov_b32 s62, 0')
    a.label(name)
    if x4:
        a(f'buffer_load_dwordx4 {v(tmp,4)}, v{voff}, s[16:19], 0 offen sc1')
        a('s_waitcnt vmcnt(0)')
        for i in range(4): a(f'v_xor_b32 v{tmp+i}, s20, v{tmp+i}')
        a(f'v_or3_b32 v{tmp}, v{tmp}, v{tmp+1}, v{tmp+2}')
        a(f'v_or_b32 v{tmp}, v{tmp}, v{tmp+3}')
        a(f'v_cmp_ne_u32 vcc, 0, v{tmp}')
    else:
        a(f'buffer_load_dword v{tmp}, v{voff}, s[16:19], 0 offen sc1')
        a('s_waitcnt vmcnt(0)')
        a(f'v_cmp_ne_u32 vcc, s20, v{tmp}')
    a('s_nop 4')
    a(f's_cbranch_vccz {name}_ok')
    a(f's_sleep {sleep}')
    a('s_add_u32 s62, s62, 1')
    a(f's_cmp_lt_u32 s62, {POLL_LIMIT}')
    a(f's_cbranch_scc1 {name}')
    a.label(name + '_ok')
    a('s_mov_b64 exec, -1')

def signal(a, soff, vt0, vt1):
    a(f'v_mov_b32 v{vt0}, s{soff}')
    a(f'v_mov_b32 v{vt1}, s20')
    a('s_mov_b64 exec, 1')
    a(f'buffer_store_dword v{vt1}, v{vt0}, s[16:19], 0 offen sc1')
    a('s_mov_b64 exec, -1')


CV, C1 = 250, 251
def garrive(a, off):
    a('s_mov_b64 exec, 1')
    a(f'ds_add_u32 v{CV}, v{C1} offset:{off}')
    a('s_mov_b64 exec, -1')
_gw = [0]
def gwait(a, off, target, tmp):
    _gw[0] += 1; name = f'GW{_gw[0]}'
    a.label(name)
    a(f'ds_read_b32 v{tmp}, v{CV} offset:{off}')
    a('s_waitcnt lgkmcnt(0)')
    a(f'v_readfirstlane_b32 s62, v{tmp}')
    a(f's_cmp_ge_u32 s62, {target}')
    a(f's_cbranch_scc1 {name}_ok')
    a('s_sleep 1')
    a('s_add_u32 s95, s95, 1')
    a('s_cmp_lt_u32 s95, 0x200000')
    a(f's_cbranch_scc1 {name}')
    a.label(name + '_ok')

def prologue(a):
    a(f"""
    s_cmp_ge_u32 s2, 256
    s_cbranch_scc1 L_end
    s_load_dwordx16 s[64:79], s[0:1], 0
    s_load_dwordx8 s[80:87], s[0:1], 64
    s_load_dwordx2 s[88:89], s[0:1], 96
    v_and_b32 v1, 63, v0
    v_lshrrev_b32 v2, 6, v0
    v_readfirstlane_b32 s3, v2
    s_and_b32 s22, s2, 7
    s_lshr_b32 s23, s2, 3
    """)
    if CODE_PF:
        a(f"""
        s_getpc_b64 s[96:97]
        s_and_b32 s96, s96, 0xffffff00
        s_and_b32 s98, s23, 3
        s_lshl_b32 s98, s98, 3
        s_add_u32 s98, s98, s3
        s_min_u32 s98, s98, {CODE_KB[0]}
        s_lshl_b32 s98, s98, 10
        v_lshl_add_u32 v2, v1, 4, s98
        global_load_dwordx4 v[192:195], v2, s[96:97]
        """)
    a(f"""
    s_and_b32 s27, s22, 1                  ; odd
    s_lshr_b32 s24, s23, 3                 ; cl' (0..3)
    s_lshl_b32 s25, s27, 2
    s_add_u32 s25, s25, s24
    s_and_b32 s26, s23, 7                  ; rbl
    s_lshl_b32 s28, s26, 1
    s_add_u32 s28, s28, s27
    s_cmp_eq_u32 s24, 3
    s_cselect_b32 s25, 3, s25
    s_cselect_b32 s26, s28, s26
    s_lshl_b32 s24, s24, 1
    s_add_u32 s24, s24, s26
    s_lshr_b32 s28, s22, 1
    s_lshl_b32 s28, s28, 3
    s_add_u32 s26, s26, s28                ; rb
    s_mul_i32 s21, s22, 28
    s_add_u32 s21, s21, s23
    s_cmp_lt_u32 s23, 28
    s_cbranch_scc1 L_full
    s_waitcnt lgkmcnt(0)
    """)
    srd(a, 4, P_W, D * 3 * D * 2)
    a(f"""
    s_sub_u32 s36, s23, 28
    s_lshl_b32 s36, s36, 3
    s_add_u32 s36, s36, s3
    s_mul_i32 s36, s36, {14*2688}
    v_lshrrev_b32 v2, 3, v1
    v_min_u32 v4, 5, v2
    v_mul_u32_u24 v2, 2688, v2
    v_mul_u32_u24 v4, 2688, v4
    v_and_b32 v3, 7, v1
    v_lshl_add_u32 v2, v3, 4, v2
    v_lshl_add_u32 v4, v3, 4, v4
    s_add_u32 s37, s36, {TA*896 + 384}
    buffer_load_dwordx4 v[64:67], v2, s[4:7], s37 offen
    s_add_u32 s37, s37, {8*2688}
    buffer_load_dwordx4 v[68:71], v4, s[4:7], s37 offen
    v_lshrrev_b32 v2, 5, v1
    v_mul_u32_u24 v2, 2688, v2
    v_and_b32 v3, 31, v1
    v_lshl_add_u32 v2, v3, 4, v2
    s_mul_i32 s37, s27, 384
    s_add_u32 s36, s36, s37
    """)
    for n, ty in enumerate((TB, TC)):
        for i in range(7):
            a(f's_add_u32 s37, s36, {ty*896 + 2*i*2688}')
            a(f'buffer_load_dwordx4 {v(72+28*n+4*i,4)}, v2, s[4:7], s37 offen')
    srd(a, 16, P_WS, WS_END)
    srd(a, 12, P_OUT, S * 2 * D * 2)
    a(f"""
    s_mov_b32 s36, {EPOCH}
    buffer_load_dword v253, off, s[16:19], s36 sc1
    s_waitcnt vmcnt(0)
    v_readfirstlane_b32 s20, v253
    s_add_u32 s20, s20, 1
    {'s_endpgm' if 'gemmonly' in DBG else ''}
    s_sleep {LITE_SLEEP}
    s_sub_u32 s36, s23, 28
    s_lshl_b32 s36, s36, 3
    s_add_u32 s36, s36, s3
    s_mul_i32 s36, s36, 12544
    v_lshl_add_u32 v2, v1, 4, s36
    """)
    srd(a, 8, P_WO, D * D * 2)
    for i in range(13):
        a(f's_mov_b32 s36, {1024*i}')
        a(f'buffer_load_dwordx4 {v(64+4*i,4)}, v2, s[8:11], s36 offen')
    a("""
    s_waitcnt vmcnt(0)
    """)
    a('s_mov_b32 s95, 0')
    att_poll_addr(a, 176)
    a.label('L_lite0')
    su, _ = att_pre_groups()
    emit_groups(a, su + tail_setup())
    a('s_cmp_lg_u32 s3, 0\ns_cbranch_scc1 L_lite1')
    poll(a, 'PL_f1a', 176, 180, mask=1 << 63, x4=True, sleep=8)
    poll(a, 'PL_f1b', 176, 180, x4=True, sleep=2)
    a.label('L_lite1')
    a('s_barrier')
    a('s_branch L_pre')
    a.label('L_full')

RING0 = 65536; SLOT = 16384; NS = 4; DEPTH = 3
def slot_of(j): return (j + 2) % NS
XYP = 1056; XYCH = 53 * XYP
GP = 8384; GCH = 260 * 16
L_G = 0
L_T2 = 114688; TP = 328; T2CH = 8 * TP * 2
L_U = 131072; UCH = 96 * 80
L_CTL = L_U + 2 * UCH
L_TAB = 147456
L_PART = 49152; PSRC = 1024; POWN = 4096
assert L_CTL + 16 <= L_TAB and 4*GP <= L_PART and 2*XYCH <= L_T2

def cmul(o, d, x, e, t):
    if PKMUL:
        o.append(f'v_pk_mul_f32 {v(t,2)}, {v(x,2)}, {v(e,2)} op_sel:[0,0] op_sel_hi:[1,0]')
        o.append(f'v_pk_fma_f32 {v(d,2)}, {v(x,2)}, {v(e,2)}, {v(t,2)} op_sel:[1,1,0] op_sel_hi:[0,1,1] neg_lo:[1,0,0]')
    else:
        o.append(f'v_mul_f32 v{t}, v{x+1}, v{e+1}')
        o.append(f'v_mul_f32 v{t+1}, v{x}, v{e+1}')
        o.append(f'v_fma_f32 v{d}, v{x}, v{e}, -v{t}')
        o.append(f'v_fma_f32 v{d+1}, v{x+1}, v{e}, v{t+1}')

def lines(txt): return [l.strip() for l in txt.split('\n') if l.strip()]

_KM = {}
PKB = [64, 117]
def _mk():
    pairs_pre = [20, 22, 24, 26, 28, 30, 32, 34, 36, 38, 40, 42, 48, 50, 52, 54]
    for i, r in enumerate(pairs_pre): _KM[r] = 170 + 2*i; _KM[r+1] = 171 + 2*i
    for i, r in enumerate([2, 3, 4, 5, 6, 7, 8, 9]): _KM[r] = 202 + i
    _KM[70] = 48; _KM[71] = 49
    for i, r in enumerate(range(56, 64)): _KM[r] = 40 + i
    for c in range(2):
        for row in range(53): _KM[1000 + 100*c + row] = PKB[c] + row
_mk()
def kmap(l, ch):
    M = _KM
    def one(m): return f'v{M.get(int(m.group(1)), int(m.group(1)))}'
    def rng(m):
        lo = int(m.group(1)); hi = int(m.group(2)); n = M.get(lo, lo); return f'v[{n}:{n+hi-lo}]'
    l = re.sub(r'v\[(\d+):(\d+)\]', rng, l)
    return re.sub(r'\bv(\d+)\b', one, l)

def kgen(ch):
    P = 240 + 4*ch
    pre = lines(f"""
    {'s_lshl_b32 s58, s38, 16' if ch == 0 else 's_and_b32 s58, s38, 0xffff0000'}
    v_mov_b32 v4, s58
    v_mul_f32 v4, {f32bits(LOG2E)}, v4
    v_exp_f32 v4, v4
    v_lshlrev_b32 v2, 16, v{P}
    v_lshlrev_b32 v3, 16, v{P+1}
    v_lshlrev_b32 v20, 16, v{P+2}
    v_lshlrev_b32 v21, 16, v{P+3}
    v_cvt_pk_bf16_f32 v4, v4, v4
    v_mul_f32 v2, {f32bits(LOG2E)}, v2
    v_exp_f32 v2, v2
    v_and_b32 v4, 0xffff0000, v4
    v_mul_f32 v3, v3, v4
    v_cvt_pk_bf16_f32 v2, v2, v2
    v_and_b32 v2, 0xffff0000, v2
    v_mul_f32 v2, v2, v4
    v_mul_f32 v2, {f32bits(-LOG2E)}, v2
    v_mul_f32 v3, {f32bits(1/(2*math.pi))}, v3
    v_add_f32 v4, v4, v4
    v_mul_f32 v20, v20, v4
    v_mul_f32 v21, v21, v4
    """)
    E1, E8, E256, E2, E4, E16, E32 = 22, 24, 26, 28, 30, 32, 34
    for (E, p) in ((E1, 1.0), (E8, 8.0), (E256, 256.0)):
        pre += lines(f"""
        v_mul_f32 v6, {f32bits(p)}, v2
        v_mul_f32 v7, {f32bits(p)}, v3
        v_exp_f32 v6, v6
        v_fract_f32 v7, v7
        v_cos_f32 v8, v7
        v_sin_f32 v9, v7
        v_mul_f32 v{E}, v6, v8
        v_mul_f32 v{E+1}, v6, v9
        """)
    cmul(pre, E2, E1, E1, 6); cmul(pre, E16, E8, E8, 8)
    cmul(pre, E4, E2, E2, 6); cmul(pre, E32, E16, E16, 8)
    Y = [48, 50, 52, 54]
    def put(o, row, x, r, neg=False):
        o.append(f'v_cvt_pk_bf16_f32 v{1000+100*ch+row}, v{x}, {"-" if neg else ""}v{x+1}')
    chains = []
    for c in range(4):
        o = []
        cur = {0: None, 1: E8, 2: E16, 3: Y[3]}[c]
        if c == 3: cmul(o, Y[3], E16, E8, 36 + 2*c)
        for step in range(8):
            if cur is None:
                o.append(f'v_mov_b32 v{1000+100*ch+21}, 0x3f80')
                cur = E32; continue
            put(o, 21 + 4*step + c, cur, 44 + c)
            if step < 7: cmul(o, Y[c], cur, E32, 36 + 2*c); cur = Y[c]
        chains.append(o)
    XC, GC, SD, SD2 = 56, 58, 60, 62
    o = []
    put(o, 0, 20, 68, True)
    for step in range(7):
        cmul(o, XC, 20 if step == 0 else XC, E1, 6); put(o, step + 1, XC, 68, True)
    chains.append(o)
    grow = {1: 8, 2: 12, 3: 14, 4: 16, 5: 17, 6: 18, 7: 19, 8: 20}
    G = [58, 10, 12, 58, 58, 58, 58, 58]
    G = [10, 12, 18, 58, 58, 58, 58, 58]
    o = []
    for step in range(8):
        cmul(o, G[step], 20 if step == 0 else G[step-1], E256, 8); put(o, grow[step+1], G[step], 69, True)
    chains.append(o)
    o = [None]*(9 if PKMUL else 15)
    cmul(o, SD, G[0], E2, 70); put(o, 9, SD, 5, True)
    cmul(o, SD2, G[0], E4, 70); put(o, 10, SD2, 5, True)
    cmul(o, SD, SD2, E2, 70); put(o, 11, SD, 5, True)
    cmul(o, SD2, G[1], E4, 70); put(o, 13, SD2, 5, True)
    cmul(o, SD, G[2], E4, 70); put(o, 15, SD, 5, True)
    chains.append(o)
    body = []
    for k in range(max(len(c) for c in chains)):
        for c in chains:
            if k < len(c) and c[k] is not None: body.append(c[k])
    return [kmap(l, ch) for l in pre], [kmap(l, ch) for l in body]

def kmfma():
    FA = 112; FB = 144; KA = 176; NBF = 8
    o = []
    LA = 5
    for st in range(16 + LA):
        if st < 16:
            o.append(f'ds_read_b128 {v(FA+4*(st%NBF),4)}, v20 offset:{st*64}')
            o.append(f'ds_read_b128 {v(FB+4*(st%NBF),4)}, v21 offset:{st*64}')
        if st >= LA:
            k = st - LA
            o.append(f's_waitcnt lgkmcnt({2*min(LA, 15-k)})')
            o.append(f'v_mfma_f32_16x16x32_bf16 {v(KA,4)}, {v(FA+4*(k%NBF),4)}, {v(FB+4*(k%NBF),4)}, {"0" if k == 0 else v(KA,4)}')
    o += lines(f"""
    ds_write_b16 v26, v32
    v_cvt_pk_bf16_f32 v{KA+4}, v{KA}, v{KA+1}
    v_cvt_pk_bf16_f32 v{KA+5}, v{KA+2}, v{KA+3}
    ds_write_b16 v22, v{KA+4}
    ds_write_b16_d16_hi v23, v{KA+4}
    ds_write_b16 v24, v{KA+5}
    ds_write_b16_d16_hi v25, v{KA+5}
    s_waitcnt lgkmcnt(0)
    """)
    return o

def subroutines(a):
    a.label('SUB_KMFMA')
    for l in kmfma(): a(l)
    a('s_setpc_b64 s[90:91]')

def kmaddr(a, ch):
    a(f"""
    v_and_b32 v20, 15, v1
    v_lshrrev_b32 v21, 4, v1
    v_mul_u32_u24 v20, {XYP}, v20
    v_lshl_add_u32 v20, v21, 4, v20
    s_and_b32 s36, s3, 1
    s_mul_i32 s36, s36, {16*XYP}
    s_add_u32 s36, s36, {21*XYP + (1-ch)*XYCH}
    v_add_u32 v21, s36, v20
    s_mul_i32 s36, s63, {16*XYP}
    s_add_u32 s36, s36, {(1-ch)*XYCH}
    v_add_u32 v20, s36, v20
    v_and_b32 v26, 7, v1
    v_mul_u32_u24 v26, {2*TP}, v26
    v_add_u32 v26, {L_T2 + 2*(TP-1) + ch*T2CH}, v26
    v_mov_b32 v32, 0
    """)
def call(a, name): a(f's_call_b64 s[90:91], {name}')

def gbuild(a, ch, copies):
    g = 64; d = 80
    lo = min(copies); hi = max(copies) + 8
    for i in range(lo, hi): a(f'ds_read_u16 v{g+i}, v{224+i} offset:{ch*T2CH}')
    a('s_waitcnt lgkmcnt(0)')
    for t in copies:
        for i in range(4): a(f'v_lshl_or_b32 v{d+4*t+i}, v{g+t+2*i+1}, 16, v{g+t+2*i}')
        a(f'ds_write_b128 v249, {v(d+4*t,4)} offset:{t*GP + ch*GCH}')

def gtabs(a):
    a(f"""
    v_and_b32 v14, 255, v0
    v_lshlrev_b32 v249, 4, v14
    v_add_u32 v15, {L_TAB}, v249
    """)
    for q in range(3): a(f'ds_read_b128 {v(224+4*q,4)}, v15 offset:{q*4096}')
    a(f'ds_read_b128 v[22:25], v15 offset:{3*4096}')

K_, V_, Q_ = 1, 2, 0
TA, TB, TC = Q_, K_, V_
stages = [[('x',0),(TA,0)], [('x',1),('x',2)], [(TA,1),(TA,2)]]
for _i in range(3, 7): stages.append([('x', _i), (TA, _i)])
_rest = [(TB, i) for i in range(7)] + [(TC, i) for i in range(7)]
for _i in range(7): stages.append(_rest[2*_i:2*_i+2])
NST = len(stages)

def ph_front(a):
    a(f"""
    s_mov_b32 s95, 0
    v_mov_b32 v{CV}, {L_CTL}
    v_mov_b32 v{C1}, 1
    v_lshrrev_b32 v3, 3, v1
    v_and_b32 v4, 7, v1
    s_and_b32 s29, s3, 3                   ; lw
    s_bfe_u32 s63, s3, 0x10001
    s_and_b32 s61, s3, 1
    s_cmp_lt_u32 s3, 4
    s_cbranch_scc1 Q_comp
    """)
    ssm_waves(a)
    a.label('Q_comp')
    comp_waves(a)

UV = [220, 221, 222, 252, 255]
def ssm_waves(a):
    a(f"""
    s_setprio {B_PRIO}
    v_and_b32 v14, 255, v0
    s_lshl_b32 s37, s21, 10
    v_lshl_add_u32 v248, v14, 1, s37
    s_lshl_b32 s28, s29, 1
    v_xor_b32 v5, s28, v4
    v_lshlrev_b32 v5, 4, v5
    s_lshl_b32 s30, s26, 6
    s_lshl_b32 s31, s29, 4
    s_add_u32 s30, s30, s31
    v_add_u32 v6, s30, v3
    v_mul_u32_u24 v6, 896, v6
    s_lshl_b32 s31, s25, 7
    v_add_u32 v6, s31, v6
    v_add_u32 v7, v6, v5
    v_xor_b32 v5, 16, v5
    v_add_u32 v6, v6, v5
    v_add_u32 v6, 7168, v6
    s_lshl_b32 s31, s61, 11
    s_mul_i32 s32, s63, {UCH}
    s_add_u32 s31, s31, s32
    s_add_u32 s31, s31, {L_U + 2560}
    s_mov_b32 m0, s31
    s_lshl_b32 s36, s21, 2
    s_waitcnt lgkmcnt(0)
    """)
    for i in range(4):
        srd(a, 40 + 4*i, P_LA + 2*i, D * 256 * 2)
        a(f'buffer_load_ushort v{240+i}, v248, s[{40+4*i}:{43+4*i}], 0 offen nt')
        a(f'buffer_load_ushort v{244+i}, v248, s[{40+4*i}:{43+4*i}], 0 offen offset:512 nt')
    srd(a, 8, P_U, S * D * 2)
    a(f"""
    v_mov_b32 v54, v7
    v_mov_b32 v55, v6
    s_mov_b32 s34, s31
    """)
    if U_ISS < 0:
        a('buffer_load_dwordx4 v54, s[8:11], 0 offen nt lds')
        a('s_add_u32 m0, s34, 1024\ns_nop 0\nbuffer_load_dwordx4 v55, s[8:11], 0 offen nt lds')
    a(f"""
    s_add_u32 s{P_DT}, s{P_DT}, s36
    s_addc_u32 s{P_DT+1}, s{P_DT+1}, 0
    s_add_u32 s{P_DS}, s{P_DS}, s36
    s_addc_u32 s{P_DS+1}, s{P_DS+1}, 0
    s_load_dword s38, s[{P_DT}:{P_DT+1}], 0
    s_load_dword s39, s[{P_DS}:{P_DS+1}], 0
    """)
    srd(a, 16, P_WS, WS_END)
    a(f"""
    s_cmp_lg_u32 s3, 4
    s_cbranch_scc1 Q_noep0
    s_mov_b32 s33, {EPOCH}
    buffer_load_dword v253, off, s[16:19], s33 sc1
    """)
    a.label('Q_noep0')
    srd(a, 12, P_OUT, S * 2 * D * 2)
    a(f"""
    v_and_b32 v5, 1, v1
    v_bfe_u32 v6, v1, 1, 1
    v_lshrrev_b32 v7, 4, v1
    v_add_u32 v2, s28, v5
    v_xor_b32 v7, v7, v2
    v_lshlrev_b32 v7, 4, v7
    v_lshl_add_u32 v7, v6, 3, v7
    v_bfe_u32 v6, v1, 2, 2
    v_lshl_add_u32 v6, v5, 3, v6
    v_lshl_add_u32 v7, v6, 7, v7
    v_add_u32 v50, s31, v7
    v_xor_b32 v51, 64, v50
    s_lshl_b32 s31, s25, 18
    s_lshl_b32 s33, s26, 9
    s_add_u32 s31, s31, s33
    s_lshl_b32 s33, s29, 7
    s_add_u32 s31, s31, s33
    s_add_u32 s31, s31, {WS_UT}
    v_lshlrev_b32 v52, 14, v3
    v_lshl_add_u32 v52, v4, 4, v52
    v_add_u32 v52, s31, v52
    s_lshl_b32 s35, s25, {FS+5}
    s_lshl_b32 s33, s26, {FS}
    s_add_u32 s35, s35, s33
    s_lshl_b32 s33, s29, 2
    s_add_u32 s35, s35, s33
    """)
    kmaddr(a, 1)
    t = Asm()
    t(f"""
    s_mov_b32 s101, {L_G + 4096}
    v_and_b32 v2, 3, v1
    v_mul_u32_u24 v2, {GP}, v2
    v_bfe_u32 v3, v1, 2, 2
    v_lshl_add_u32 v2, v3, 4, v2
    v_bfe_u32 v3, v1, 4, 1
    v_mul_u32_u24 v3, {GCH}, v3
    v_add3_u32 v217, v2, v3, s101
    s_lshl_b32 s36, s21, 1
    s_lshr_b32 s56, s36, 2
    s_lshl_b32 s56, s56, 14
    s_and_b32 s36, s36, 3
    s_lshl_b32 s36, s36, 4
    s_add_u32 s56, s56, s36
    s_add_u32 s56, s56, {WS_UT}
    s_mov_b32 s92, s56
    """)
    for k in range(5):
        t(f"""
        v_add_u32 v2, {64*k}, v1
        v_mul_u32_u24 v3, 205, v2
        v_lshrrev_b32 v3, 10, v3
        v_mul_u32_u24 v4, 5, v3
        v_sub_u32 v4, v2, v4
        v_min_u32 v4, 3, v4
        v_lshl_add_u32 v3, v3, 2, v4
        v_lshlrev_b32 v{UV[k]}, 6, v3
        """)
    t(f"""
    s_lshr_b32 s36, s21, 5
    s_lshl_b32 s36, s36, {FS+5}
    v_and_b32 v17, 31, v1
    v_lshl_add_u32 v223, v17, {FS}, s36
    v_lshrrev_b32 v18, 5, v1
    v_and_b32 v19, 3, v17
    v_sub_u32 v19, 3, v19
    v_mul_u32_u24 v19, {GP}, v19
    v_lshrrev_b32 v2, 2, v17
    v_lshlrev_b32 v3, 1, v18
    v_sub_u32 v2, v3, v2
    v_lshl_add_u32 v19, v2, 3, v19
    s_mul_i32 s36, s61, {GCH}
    s_lshl_b32 s56, s63, 10
    s_sub_u32 s36, s36, s56
    s_add_u32 s36, s36, {L_G + 8*511 - 32*94}
    v_add_u32 v218, s36, v19
    v_mul_u32_u24 v2, 80, v17
    v_lshl_add_u32 v2, v18, 4, v2
    s_mul_i32 s36, s61, {UCH}
    s_mul_i32 s56, s63, {16*80}
    s_sub_u32 s36, s36, s56
    s_add_u32 s36, s36, {L_U + 17*80}
    v_add_u32 v219, s36, v2
    v_mov_b64 v[32:33], 0
    v_mov_b64 v[34:35], 0
    v_and_b32 v14, 255, v0
    v_lshlrev_b32 v36, 4, v14
    v_add_u32 v36, {L_U}, v36
    v_cmp_gt_u32 vcc, 160, v14
    s_mov_b64 exec, vcc
    ds_write_b128 v36, v[32:35]
    ds_write_b128 v36, v[32:35] offset:{UCH}
    s_mov_b64 exec, -1
    ds_write2_b32 v{CV}, v32, v33 offset0:1 offset1:3
    ds_write_b32 v{CV}, v32
    """)
    for l in t.lines: a(l)
    stamp(a, 13)
    if 'nob' in DBG:
        for _ in range(14): a('s_barrier')
        a('s_branch P_fin')
    a(f's_waitcnt vmcnt({2 if U_ISS < 0 else 0}) lgkmcnt(0)')
    p0, b0 = kgen(0); p1, b1 = kgen(1)
    work = p1 + b1 + p0 + b0
    dump = {c: [f'ds_write_addtid_b32 v{PKB[c]+row} offset:{row*XYP}' for row in range(53)] for c in range(2)}
    for l in work[:B_PRE]: a(l)
    work = work[B_PRE:]
    for j in range(NST):
        a('s_barrier')
        if j == 0:
            stamp(a, 1)
            a('s_setprio 0')
            gtabs(a)
        if j == 2:
            a(f's_cmp_lg_u32 s3, 4\ns_cbranch_scc1 Q_noep\ns_waitcnt vmcnt(0)\nv_add_u32 v253, 1, v253\nds_write_b32 v{CV}, v253 offset:8\ns_waitcnt lgkmcnt(0)')
            a.label('Q_noep')
        if j == 3: a(f'ds_read_b32 v253, v{CV} offset:8')
        if j == F0_SIG:
            a('s_waitcnt vmcnt(0)')
            signal(a, 35, 2, 3)
        if j == U_ISS:
            a('s_mov_b32 m0, s34\ns_nop 0\nbuffer_load_dwordx4 v54, s[8:11], 0 offen nt lds')
            a('s_add_u32 m0, s34, 1024\ns_nop 0\nbuffer_load_dwordx4 v55, s[8:11], 0 offen nt lds')
        if j == U_TR:
            a(f"""
            s_waitcnt vmcnt(0)
            ds_read_b64_tr_b16 v[54:55], v50
            ds_read_b64_tr_b16 v[56:57], v50 offset:512
            ds_read_b64_tr_b16 v[58:59], v51
            ds_read_b64_tr_b16 v[60:61], v51 offset:512
            s_mov_b32 s36, {8*16384}
            s_lshl_b32 m0, s29, 8
            s_waitcnt lgkmcnt(0)
            buffer_store_dwordx4 v[54:57], v52, s[16:19], 0 offen sc1
            buffer_store_dwordx4 v[58:61], v52, s[16:19], s36 offen sc1
            v_readfirstlane_b32 s20, v253
            """)
            for r in range(22, 26): a(f'v_add_u32 v{r}, {T2CH}, v{r}')
        if j <= B_LAST:
            k = -(-len(work) // (B_LAST + 1 - j))
            for l in work[:k]: a(l)
            work = work[k:]
        if U_TR < j < NST - 1:
            for l in dump[1][:D_PER]: a(l)
            dump[1] = dump[1][D_PER:]
    assert not work
    a('s_cmp_eq_u32 s3, 4\ns_cselect_b32 s60, 1, 0\ns_cbranch_scc0 Q_nof0a')
    a('buffer_load_dwordx4 v[28:31], v223, s[16:19], 0 offen sc1')
    a.label('Q_nof0a')
    for l in dump[1]: a(l)
    a(f's_lshl_b32 s36, s29, 8\ns_add_u32 m0, s36, {XYCH}\ns_nop 0')
    for l in dump[0]: a(l)
    stamp(a, 2)
    if 'gemmonly' in DBG: a('s_branch P_fin')
    def nop(): pass
    def udma():
        a('s_add_u32 s93, s92, 16')
        for ch in range(2):
            for k in range(5):
                a(f's_mov_b32 m0, {L_U + 32*80 + ch*UCH + 1024*k}')
                a(f'buffer_load_dwordx4 v{UV[k]}, s[16:19], s{92+ch} offen sc1 lds')
    def look(tag, last=False):
        a(f's_cmp_eq_u32 s60, 0\ns_cbranch_scc1 Q_lk{tag}')
        if last:
            poll(a, 'PL_f0', 223, 28, x4=True, sleep=1)
        else:
            a('s_waitcnt vmcnt(0)')
            for i in range(4): a(f'v_xor_b32 v{28+i}, s20, v{28+i}')
            a('v_or3_b32 v28, v28, v29, v30\nv_or_b32 v28, v28, v31\nv_cmp_ne_u32 vcc, 0, v28')
            a(f's_nop 4\ns_cbranch_vccz Q_lg{tag}')
            a('buffer_load_dwordx4 v[28:31], v223, s[16:19], 0 offen sc1')
            a(f's_branch Q_lk{tag}')
            a.label(f'Q_lg{tag}')
        a('s_call_b64 s[96:97], Q_udma')
        a.label(f'Q_lk{tag}')
    a('s_waitcnt lgkmcnt(0)\ns_barrier')
    stamp(a, 3)
    look('z')
    for l in kmfma(): a(l)
    if LOOK_POS == 0: look('b')
    a('s_barrier')
    stamp(a, 14)
    if LOOK_POS == 1: look('b')
    a('s_mov_b32 exec_hi, 0\nds_write_b128 v217, v[32:35]\ns_mov_b32 exec_hi, -1')
    gbuild(a, 1, (0, 1, 2, 3))
    a(f's_cmp_lg_u32 s3, 4\ns_cbranch_scc1 Q_u0\ns_cmp_lg_u32 s60, 0\ns_cbranch_scc1 Q_u0\ns_waitcnt vmcnt(0)\nds_write_b32 v{CV}, v{C1}')
    a.label('Q_u0')
    a('s_waitcnt lgkmcnt(0)\ns_barrier')
    a('s_cmp_eq_u32 s60, 0\ns_cbranch_scc1 Q_uw')
    look('c', True)
    a('s_waitcnt vmcnt(0)')
    a(f'ds_write_b32 v{CV}, v{C1}')
    a.label('Q_uw')
    gwait(a, 0, 1, 2)
    stamp(a, 4)
    if CONV_PRIO: a('s_setprio 1')
    SC = 4; sc = [0]
    def sarr():
        a('s_waitcnt lgkmcnt(0)'); garrive(a, SC); sc[0] += 4
    Y0, Y1 = 176, 192
    FR = 32; NBUF = 4
    def boff(n): return (n // 2) * 80 + (n % 2) * 32
    def ld(t):
        b = FR + 16 * (t % NBUF); ao = 32*(31-t)
        return [f'ds_read_b64 {v(b,2)}, v218 offset:{ao + 2048}',
                f'ds_read_b64 {v(b+2,2)}, v218 offset:{ao + 2056}',
                f'ds_read_b128 {v(b+4,4)}, v219 offset:{boff(31-t)}',
                f'ds_read_b128 {v(b+8,4)}, v219 offset:{boff(31-t) + 2560}',
                f'ds_read_b64 {v(b+12,2)}, v218 offset:{ao}',
                f'ds_read_b64 {v(b+14,2)}, v218 offset:{ao + 8}']
    def mm(t, first):
        b = FR + 16 * (t % NBUF)
        return [f'v_mfma_f32_32x32x16_bf16 {v(Y0,16)}, {v(b,4)}, {v(b+4,4)}, {"0" if first else v(Y0,16)}',
                f'v_mfma_f32_32x32x16_bf16 {v(Y1,16)}, {v(b,4)}, {v(b+8,4)}, {"0" if first else v(Y1,16)}',
                f'v_mfma_f32_32x32x16_bf16 {v(Y1,16)}, {v(b+12,4)}, {v(b+4,4)}, {v(Y1,16)}']
    for l in ld(0) + ld(1): a(l)
    t_ = Asm(); ssm_epi_setup(t_)
    t_(f's_mul_i32 s36, s29, {PSRC}\ns_add_u32 s36, s36, {L_PART}\nv_lshl_add_u32 v216, v1, 4, s36')
    fillA = [[l] for l in t_.lines]
    su, fillB = att_pre_groups()
    fillA += su + tail_setup()
    T0 = CONV_T0
    def take(q, k):
        for _ in range(k):
            if q:
                for l in q.pop(0): a(l)
    if T0 >= 32: fillB = []
    perA = -(-len(fillA) // (3*min(T0, 30))); perB = -(-len(fillB) // (3*max(30 - T0, 1)))
    for t in range(32):
        if t == T0:
            gwait(a, 12, 1, 2)
        else:
            a(f's_waitcnt lgkmcnt({6 if t < 31 else 0})')
        L = ld(t + 2) if t + 2 < 32 else []
        M = mm(t, t == 0)
        q, per = (fillA, perA) if t < T0 else (fillB, perB)
        a(M[0])
        for l in L[:2]: a(l)
        take(q, per)
        a(M[1])
        for l in L[2:4]: a(l)
        take(q, per)
        a(M[2])
        for l in L[4:]: a(l)
        take(q, per)
    assert not fillA and not fillB
    a('s_setprio 1')
    for own in range(8):
        a(f'ds_write_b128 v216, {v(Y0 + 4*own, 4)} offset:{own*POWN}')
    sarr()
    if T0 < 32: emit_groups(a, att_zero())
    gwait(a, SC, sc[0], 2)
    stamp(a, 9 if T0 >= 32 else 5)
    ssm_epi_reads(a)
    sarr()
    ssm_epi(a)
    gwait(a, SC, sc[0], 2)
    a('s_branch L_att' if T0 < 32 else 's_branch Q_w1')
    a.label('Q_udma')
    udma()
    a('s_mov_b32 s60, 0\ns_setpc_b64 s[96:97]')

def comp_waves(a):
    XF = 64; ACC = {K_: 176, V_: 192, Q_: 208}; WB = [[8 + 4*i for i in range(8)], [224 + 4*i for i in range(4)] + [40 + 4*i for i in range(4)]]
    a(f"""
    s_sub_u32 s28, s24, 7
    s_cmp_ge_u32 s24, 7
    s_cselect_b32 s27, s28, s24            ; rho
    s_lshl_b32 s30, s29, 4
    v_add_u32 v5, s30, v3
    v_lshrrev_b32 v6, 1, v5
    v_and_b32 v6, 7, v6
    v_xor_b32 v6, v6, v4
    v_lshlrev_b32 v6, 4, v6
    s_lshl_b32 s30, s26, 6
    v_add_u32 v7, s30, v5
    v_mul_u32_u24 v7, 896, v7
    v_add_u32 v244, v7, v6
    v_xor_b32 v6, 64, v6
    v_add_u32 v245, v7, v6
    v_add_u32 v245, 7168, v245
    v_lshrrev_b32 v6, 1, v5
    v_and_b32 v6, 1, v6
    v_lshlrev_b32 v6, 2, v6
    v_xor_b32 v6, v6, v4
    v_lshlrev_b32 v6, 4, v6
    v_mul_u32_u24 v7, 2688, v5
    v_add_u32 v246, v7, v6
    s_lshl_b32 s30, s25, 7
    v_add_u32 v246, s30, v246
    v_add_u32 v247, 21504, v246
    s_lshl_b32 s32, s29, 11
    s_lshl_b32 s40, s27, 7
    s_mul_i32 s48, s27, {64*2688}
    s_waitcnt lgkmcnt(0)
    """)
    srd(a, 8, P_X, S * D * 2)
    srd(a, 4, P_W, D * 3 * D * 2)
    def issue(j):
        o = []
        for half, (kind, i) in enumerate(stages[j]):
            base = RING0 + slot_of(j) * SLOT + half * 8192
            for e in range(2):
                g = [f's_add_u32 m0, s32, {base + e*1024}']
                if kind == 'x':
                    g.append(f'buffer_load_dwordx4 v{244+e}, s[8:11], s{40+i} offen {XMOD} lds')
                else:
                    so = f's{48+i}'
                    if kind:
                        so = 's37'
                        if e == 0: g.append(f's_add_u32 s37, s{48+i}, {kind*896}')
                    g.append(f'buffer_load_dwordx4 v{246+e}, s[4:7], {so} offen lds')
                o.append(g)
        return o
    vm = []
    def waitfor(tag):
        last = max(i for i, t in enumerate(vm) if t == tag)
        a(f's_waitcnt vmcnt({len(vm) - 1 - last})')
    def em(l, tag='st'):
        a(l)
        if l.startswith('buffer_'): vm.append(tag)
    def issue_now(j):
        for g in issue(j):
            for l in g: em(l, j)
    issue_now(0)
    for i in range(1, 7):
        if i == 3: issue_now(1)
        a(f's_add_u32 s27, s27, 1\ns_cmp_eq_u32 s27, 7\ns_cselect_b32 s27, 0, s27\ns_lshl_b32 s{40+i}, s27, 7\ns_mul_i32 s{48+i}, s27, {64*2688}')
    srd(a, 16, P_WS, WS_END)
    srd(a, 12, P_OUT, S * 2 * D * 2)
    a(f"""
    v_lshlrev_b32 v6, 3, v0
    v_sub_u32 v6, 2047, v6
    v_mov_b32 v17, {L_T2}
    v_mov_b32 v18, {TP}
    v_lshlrev_b32 v19, 4, v0
    v_add_u32 v19, {L_TAB}, v19
    s_mov_b32 s36, 0
    """)
    a.label('Q_tab')
    for i in (0, 2):
        a(f"""
        v_subrev_u32 v7, {i}, v6
        v_subrev_u32 v8, {i+1}, v6
        v_cvt_f32_i32 v2, v7
        v_cvt_f32_i32 v5, v8
        v_cvt_pk_bf16_f32 v2, v2, v5
        v_and_b32 v5, 0xffff0000, v2
        v_lshlrev_b32 v2, 16, v2
        v_cvt_i32_f32 v2, v2
        v_cvt_i32_f32 v5, v5
        v_and_b32 v7, 7, v2
        v_and_b32 v8, 7, v5
        v_ashrrev_i32 v2, 3, v2
        v_ashrrev_i32 v5, 3, v5
        v_mad_u32_u24 v2, v7, v18, v2
        v_mad_u32_u24 v5, v8, v18, v5
        v_lshl_add_u32 v{64+i}, v2, 1, v17
        v_lshl_add_u32 v{65+i}, v5, 1, v17
        """)
    a(f"""
    ds_write_b128 v19, v[64:67]
    v_add_u32 v19, 4096, v19
    v_subrev_u32 v6, 4, v6
    s_add_u32 s36, s36, 1
    s_cmp_lt_u32 s36, 3
    s_cbranch_scc1 Q_tab
    v_and_b32 v17, 15, v1
    """)
    ix = lambda p: (p & 7) * TP + (p >> 3)
    def pk(b, s1, s2): assert b < 4096 and s1 < 1024 and s2 < 1024; return b | (s1 << 12) | (s2 << 22)
    t0 = [pk(0, TP, 2*TP), pk(4*TP, TP, 2*TP), None, None]
    a('s_cmp_eq_u32 s63, 0')
    ptab = {0: [[0,1,2,3],[4,5,6,7],[256,258,260,262],[512,516,768,772]],
            1: [[1024,1280,1536,1792],[2048,2304,2304,2304],[2304]*4,[2304]*4]}
    for g in range(4):
        lo = lambda at: ix(ptab[at][g][0]) | (ix(ptab[at][g][1]) << 16)
        hi = lambda at: ix(ptab[at][g][2]) | (ix(ptab[at][g][3]) << 16)
        a(f's_mov_b32 exec_lo, {0xffff << (16*(g%2)) if g < 2 else 0}')
        a(f's_mov_b32 exec_hi, {0xffff << (16*(g%2)) if g >= 2 else 0}')
        a(f's_mov_b32 s36, {lo(1)}\ns_cselect_b32 s36, {lo(0)}, s36\nv_mov_b32 v68, s36')
        a(f's_mov_b32 s36, {hi(1)}\ns_cselect_b32 s36, {hi(0)}, s36\nv_mov_b32 v70, s36')
    a(f"""
    s_mov_b64 exec, -1
    s_lshl_b32 s36, s61, 5
    s_add_u32 s36, s36, {L_T2}
    v_lshl_add_u32 v18, v17, 1, s36
    v_lshrrev_b32 v69, 16, v68
    v_lshrrev_b32 v71, 16, v70
    v_and_b32 v68, 0xffff, v68
    v_and_b32 v70, 0xffff, v70
    v_lshl_add_u32 v68, v68, 1, v18
    v_lshl_add_u32 v69, v69, 1, v18
    v_lshl_add_u32 v70, v70, 1, v18
    v_lshl_add_u32 v71, v71, 1, v18
    ds_write_b128 v19, v[68:71]
    s_and_b32 s27, s3, 1                   ; rt
    s_lshr_b32 s30, s3, 1                  ; cg
    v_and_b32 v3, 31, v1
    v_lshrrev_b32 v4, 5, v1
    s_lshl_b32 s31, s27, 5
    v_add_u32 v5, s31, v3
    v_lshrrev_b32 v6, 1, v5
    v_and_b32 v6, 7, v6
    v_lshlrev_b32 v7, 7, v5
    v_add_u32 v7, {RING0}, v7
    """)
    for st in range(4):
        a(f"""
        v_add_u32 v{56+st}, {2*st}, v4
        v_xor_b32 v{56+st}, v{56+st}, v6
        v_lshl_add_u32 v{56+st}, v{56+st}, 4, v7
        """)
    a(f"""
    v_and_b32 v6, 3, v1
    v_lshlrev_b32 v6, 3, v6
    v_bfe_u32 v7, v1, 4, 1
    v_lshl_add_u32 v6, v7, 5, v6
    s_lshl_b32 s31, s30, 6
    v_add_u32 v6, s31, v6
    v_bfe_u32 v7, v1, 3, 1
    v_lshlrev_b32 v7, 6, v7
    v_xor_b32 v6, v6, v7
    v_bfe_u32 v7, v1, 2, 2
    v_lshl_add_u32 v7, v4, 3, v7
    v_lshl_add_u32 v60, v7, 7, v6
    v_add_u32 v60, {RING0}, v60
    s_lshl_b32 s31, s26, 1
    s_add_u32 s31, s31, s27
    s_mul_i32 s31, s31, {TILEB}
    s_lshl_b32 s33, s25, 3
    s_lshl_b32 s34, s30, 2
    s_add_u32 s33, s33, s34
    s_lshl_b32 s34, s33, 9
    s_add_u32 s34, s34, s31
    v_lshlrev_b32 v61, 4, v1
    v_add_u32 v61, s34, v61
    s_lshl_b32 s34, s33, 7
    s_add_u32 s34, s34, s31
    v_mul_u32_u24 v62, 7168, v4
    v_lshl_add_u32 v62, v3, 4, v62
    v_add_u32 v62, s34, v62
    s_mov_b32 s35, {f32bits(QSCALE)}
    s_lshl_b32 s60, s25, {FS+5}
    s_lshl_b32 s61, s26, {FS}
    s_add_u32 s60, s60, s61
    s_lshl_b32 s61, s3, 2
    s_add_u32 s60, s60, s61
    s_add_u32 s60, s60, {F1}
    """)
    if PRE_ST >= 3: issue_now(2)
    a('s_waitcnt lgkmcnt(0)')
    stamp(a, 13)
    def reads(j):
        sb = slot_of(j) * SLOT
        n = 0; o = []
        for half, (kind, i) in enumerate(stages[j]):
            base = sb + half * 8192
            if kind == 'x':
                for st in range(4):
                    o.append(f'ds_read_b128 {v(XF + 16*i + 4*st, 4)}, v{56 + st} offset:{base}')
            else:
                for st in range(4):
                    r = WB[j % 2][n]; n += 1
                    for e in range(2):
                        o.append(f'ds_read_b64_tr_b16 {v(r + 2*e, 2)}, v60 offset:{base + (16*st + 4*e)*128}')
        return o
    started = set()
    def epilogue(kind):
        acc = ACC[kind]; out = []
        if kind == Q_:
            for r in range(16): out.append(f'v_mul_f32 v{acc+r}, s35, v{acc+r}')
        for r in range(8): out.append(f'v_cvt_pk_bf16_f32 v{acc+r}, v{acc+2*r}, v{acc+2*r+1}')
        T = acc
        if kind == V_:
            out.append(f's_mov_b32 s36, {WS_V}')
            out.append(f'buffer_store_dwordx4 {v(T,4)}, v62, s[16:19], s36 offen sc1')
            out.append(f's_mov_b32 s36, {WS_V + 2*7168}')
            out.append(f'buffer_store_dwordx4 {v(T+4,4)}, v62, s[16:19], s36 offen sc1')
        else:
            for q in range(2):
                out.append(f'v_permlane32_swap_b32 v{T+4*q}, v{T+4*q+2}')
                out.append(f'v_permlane32_swap_b32 v{T+4*q+1}, v{T+4*q+3}')
            out.append(f's_mov_b32 s36, {WS_Q if kind == Q_ else WS_K}')
            out.append(f'buffer_store_dwordx4 {v(T,4)}, v61, s[16:19], s36 offen sc1')
            out.append(f'buffer_store_dwordx4 {v(T+4,4)}, v61, s[16:19], s36 offen offset:1024 sc1')
        return out
    def mlist(j):
        n = 0; done = []; o = []
        for half, (kind, i) in enumerate(stages[j]):
            if kind == 'x': continue
            acc = ACC[kind]
            for st in range(4):
                w = WB[j % 2][n]; n += 1
                x = XF + 16*i + 4*st
                c = v(acc, 16) if kind in started else '0'
                started.add(kind)
                if kind == V_: o.append(f'v_mfma_f32_32x32x16_bf16 {v(acc,16)}, {v(x,4)}, {v(w,4)}, {c}')
                else:          o.append(f'v_mfma_f32_32x32x16_bf16 {v(acc,16)}, {v(w,4)}, {v(x,4)}, {c}')
            if i == 6: done.append(kind)
        return o, done
    def weave(ms, rd, fill, dm, tag):
        nm = len(ms)
        slots = max(nm, 4)
        per = -(-len(rd) // max(slots - 2, 1))
        fper = -(-len(fill) // max(nm - 2, 1))
        dstep = slots // 4
        for k in range(slots):
            if k < nm: a(ms[k])
            if dm and k % dstep == 0:
                for l in dm.pop(0): em(l, tag)
            for _ in range(per):
                if rd: a(rd.pop(0))
            if k >= 2:
                for _ in range(fper):
                    if fill: em(fill.pop(0))
        for l in rd + fill: em(l)
    pending = []; carry = []
    for j in range(NST):
        waitfor(j)
        a('s_barrier')
        if j == 0: stamp(a, 1)
        if 'gemmonly' in DBG and j in (1,2,4,6,8,10,11,12,13): stamp(a, 3 + (1,2,4,6,8,10,11,12,13).index(j))
        rd = reads(j); ms = []; fill = carry; carry = []
        if j == 5: rd.append(f'ds_read_b32 v253, v{CV} offset:8')
        if j > 0:
            for k in pending: fill += epilogue(k)
            ms, pending = mlist(j - 1)
        if j == 0 and PRE_ST < 3: issue_now(2)
        dm = issue(j + DEPTH) if j + DEPTH < NST else []
        if dm:
            k = next((i for i, l in enumerate(fill) if l.startswith(('buffer_', 's_mov_b32 s36'))), len(fill))
            carry = fill[k:]; fill = fill[:k]
        if len(fill) > FILL_MAX and j < NST - 1:
            carry = fill[FILL_MAX:] + carry; fill = fill[:FILL_MAX]
        weave(ms, rd, fill, dm, j + DEPTH)
        a('s_waitcnt lgkmcnt(0)')
    fill = carry
    for k in pending: fill += epilogue(k)
    ms, pending = mlist(NST - 1)
    weave(ms, [], fill, [], None)
    for k in pending:
        for l in epilogue(k): a(l)
    stamp(a, 2)
    if 'gemmonly' in DBG: a('s_branch P_fin')
    sc_, ve_, lds_ = att_split()
    FL = 252
    a('v_readfirstlane_b32 s20, v253')
    gtabs(a)
    kmaddr(a, 0)
    att_poll_addr(a, FL)
    a('s_waitcnt lgkmcnt(0)\ns_barrier')
    stamp(a, 3)
    km = kmfma(); cut = int(len(km) * SIG_CUT)
    for l in km[:cut]: a(l)
    a('s_waitcnt vmcnt(0)')
    signal(a, 60, 2, 3)
    for l in km[cut:]: a(l)
    a('s_barrier')
    stamp(a, 14)
    gbuild(a, 0, (0, 1, 2, 3))
    a('s_waitcnt lgkmcnt(0)\ns_barrier')
    stamp(a, 4)
    emit_groups(a, sc_ + ve_ + tail_setup())
    a('s_setprio 2')
    a('s_cmp_lg_u32 s3, 0\ns_cbranch_scc1 Q_w1')
    poll(a, 'PL_f1', FL, 244, x4=True, sleep=A_SLEEP)
    a.label('Q_w0')
    a(f'ds_write_b32 v{CV}, v{C1} offset:12')
    a('s_branch L_pre')
    a.label('Q_w1')
    gwait(a, 12, 1, 2)
    a.label('L_pre')
    stamp(a, 5)
    emit_groups(a, lds_[:10] + att_zero())
    att_first(a, 4)
    emit_groups(a, lds_[10:])
    a('s_setprio 0')
    a('s_branch L_att2')

EB = 176
EA = EB + 56
ET = 96
def ssm_epi_setup(a):
    a(f"""
    v_and_b32 v{ET}, 1, v1                      ; ch
    v_bfe_u32 v{ET+1}, v1, 1, 2                 ; j
    v_lshrrev_b32 v{ET+2}, 3, v1
    v_mul_u32_u24 v{ET+3}, {POWN}, v{ET+1}
    v_mul_u32_u24 v{ET+4}, {PSRC}, v{ET}
    v_add_u32 v{ET+3}, v{ET+3}, v{ET+4}
    v_lshl_add_u32 v{ET+3}, v{ET+2}, 4, v{ET+3}
    s_lshl_b32 s60, s29, 7
    s_add_u32 s36, s60, {L_PART}
    v_add_u32 v{EA}, s36, v{ET+3}
    v_mul_u32_u24 v{ET+2}, 80, v{ET+2}
    v_lshl_add_u32 v{ET+2}, v{ET+1}, 4, v{ET+2}
    v_mul_u32_u24 v{ET+4}, {UCH}, v{ET}
    v_add_u32 v{ET+2}, v{ET+2}, v{ET+4}
    s_mul_i32 s36, s29, 640
    s_add_u32 s36, s36, {L_U + 32*80}
    v_add_u32 v{EA+1}, s36, v{ET+2}             ; u chunk
    s_lshl_b32 s36, s21, 13
    s_lshl_b32 s60, s29, 10
    s_add_u32 s36, s36, s60
    s_add_u32 s36, s36, {WS_YT}
    v_lshl_add_u32 v{EA+2}, v1, 4, s36
    s_lshl_b32 s60, s39, 16
    s_and_b32 s61, s39, 0xffff0000
    v_mov_b32 v{EA+3}, s60
    v_mov_b32 v{ET+4}, s61
    v_cmp_eq_u32 vcc, 1, v{ET}
    v_cndmask_b32 v{EA+3}, v{EA+3}, v{ET+4}, vcc
    """)

def ssm_epi_reads(a):
    for p in range(2):
        E = EB + 28*p; o = p*4*POWN
        a(f"""
        ds_read_b128 {v(E,4)}, v{EA} offset:{o}
        ds_read_b128 {v(E+4,4)}, v{EA} offset:{o+512}
        ds_read_b128 {v(E+8,4)}, v{EA} offset:{o+2*PSRC}
        ds_read_b128 {v(E+12,4)}, v{EA} offset:{o+2*PSRC+512}
        ds_read_b128 {v(E+16,4)}, v{EA+1} offset:{p*2560}
        """)

def ssm_epi(a):
    a('s_mov_b32 s36, 4096')
    for p in range(2):
        A = EB + 28*p; B = A + 8; U = A + 16; C = A + 20
        for e in range(8): a(f'v_add_f32 v{A+e}, v{A+e}, v{B+e}')
        for e in range(4):
            a(f'v_lshlrev_b32 v{C+2*e}, 16, v{U+e}')
            a(f'v_and_b32 v{C+1+2*e}, 0xffff0000, v{U+e}')
        for e in range(8): a(f'v_mul_f32 v{C+e}, v{EA+3}, v{C+e}')
        for e in range(4):
            a(f'v_cvt_pk_bf16_f32 v{B+e}, v{A+2*e}, v{A+1+2*e}')
            a(f'v_cvt_pk_bf16_f32 v{B+4+e}, v{C+2*e}, v{C+1+2*e}')
        for e in range(4):
            a(f'v_lshlrev_b32 v{A+2*e}, 16, v{B+e}')
            a(f'v_and_b32 v{A+1+2*e}, 0xffff0000, v{B+e}')
            a(f'v_lshlrev_b32 v{C+2*e}, 16, v{B+4+e}')
            a(f'v_and_b32 v{C+1+2*e}, 0xffff0000, v{B+4+e}')
        for e in range(8): a(f'v_add_f32 v{A+e}, v{A+e}, v{C+e}')
        for e in range(4): a(f'v_cvt_pk_bf16_f32 v{B+e}, v{A+2*e}, v{A+1+2*e}')
        a(f'buffer_store_dwordx4 {v(B,4)}, v{EA+2}, s[16:19], {"s36" if p else "0"} offen sc1')

def att_ids(a):
    if AMAP == 0:
        a("""
        s_lshl_b32 s40, s22, 1
        s_and_b32 s41, s23, 1
        s_add_u32 s40, s40, s41                ; head
        s_lshr_b32 s41, s23, 1                 ; rbq
        s_mov_b32 s99, s41
        """)
    elif AMAP == 1:
        a("""
        s_lshl_b32 s41, s22, 1
        s_and_b32 s40, s23, 1
        s_lshl_b32 s99, s40, 3
        s_add_u32 s41, s41, s40                ; rbq
        s_lshr_b32 s40, s23, 1                 ; head
        """)
    a("""
    s_mul_i32 s42, s40, 7
    s_lshr_b32 s42, s42, 1                 ; chi0
    """)

def att_poll_addr(a, r):
    att_ids(a)
    a(f"""
    s_lshr_b32 s43, s42, 3
    s_add_u32 s44, s42, 3
    s_lshr_b32 s44, s44, 3
    s_lshl_b32 s43, s43, {FS+5}
    s_lshl_b32 s44, s44, {FS+5}
    v_mov_b32 v{r}, s43
    v_mov_b32 v{r+1}, s44
    v_cmp_lt_u32 vcc, 31, v1
    v_cndmask_b32 v{r}, v{r}, v{r+1}, vcc
    v_and_b32 v{r+1}, 31, v1
    v_lshl_add_u32 v{r}, v{r+1}, {FS}, v{r}
    v_add_u32 v{r}, {F1}, v{r}
    """)

def att_poll(a, name):
    att_poll_addr(a, 16)
    poll(a, name, 16, 20, x4=True, sleep=8)

OL = 120 * 1024; YL = 152 * 1024; RED = 96 * 1024
NB = 4
QF = 16; OA = 32; SB = 64; PB = 96; KB = 112; VB = KB + 8*NB
def advK(a):
    a(f's_add_u32 s33, s33, {TILEB}')
    a('s_cmp_eq_u32 s33, s55')
    a('s_cselect_b32 s33, s54, s33')
def loadK(a, n):
    a(f'buffer_load_dwordx4 {v(KB+8*n,4)}, v3, s[4:7], s33 offen')
    a(f'buffer_load_dwordx4 {v(KB+8*n+4,4)}, v3, s[4:7], s33 offen offset:1024')
def loadV(a, n):
    a('s_mov_b64 exec, s[46:47]')
    a(f'buffer_load_dwordx4 {v(VB+8*n,4)}, v4, s[56:59], s33 offen')
    a(f'buffer_load_dwordx4 {v(VB+8*n+4,4)}, v7, s[56:59], s33 offen')
    a('s_mov_b64 exec, -1')

def att_pre_groups():
    def G(fn, *args):
        t = Asm(); fn(t, *args); return t.lines
    def singles(txt): return [[l] for l in lines(txt)]
    p1 = [[l] for l in G(att_ids) + G(srd, 4, P_WS, WS_END)]
    p1 += singles(f"""
    s_and_b32 s24, s3, 1                   ; qg
    s_lshr_b32 s27, s3, 1
    s_cmp_lt_u32 s23, 28
    s_cselect_b32 s34, {NA}, 16
    s_sub_u32 s35, 32, s34
    s_min_u32 s54, s27, 2
    s_mul_i32 s54, s54, s34
    s_cmp_eq_u32 s27, 3
    s_cselect_b32 s55, s35, 0
    s_add_u32 s54, s54, s55
    s_cmp_lt_u32 s3, 4
    s_cselect_b32 s34, s34, s35
    s_lshr_b32 s35, s34, 2
    s_lshl_b32 s96, s42, 9
    v_lshl_add_u32 v3, v1, 4, s96          ; Q/K voffset
    s_lshl_b32 s28, s41, 2
    s_lshl_b32 s31, s24, 1
    s_add_u32 s28, s28, s31
    s_mul_i32 s31, s28, {TILEB}
    s_add_u32 s31, s31, {WS_Q}
    s_add_u32 s30, s31, {TILEB}
    s_mul_i32 s54, s54, {TILEB}
    s_add_u32 s54, s54, {WS_K}
    s_mul_i32 s55, s34, {TILEB}
    s_add_u32 s55, s55, s54
    s_mul_i32 s33, s99, s34
    s_lshr_b32 s33, s33, 4
    s_mul_i32 s33, s33, {TILEB}
    s_add_u32 s33, s33, s54
    buffer_load_dwordx4 {v(QF,4)}, v3, s[16:19], s31 offen
    buffer_load_dwordx4 {v(QF+4,4)}, v3, s[16:19], s31 offen offset:1024
    """)
    p1 += [[l] for l in G(loadK, 0)]
    p1 += singles(f"""
    buffer_load_dwordx4 {v(QF+8,4)}, v3, s[16:19], s30 offen
    buffer_load_dwordx4 {v(QF+12,4)}, v3, s[16:19], s30 offen offset:1024
    v_and_b32 v5, 31, v1
    v_lshrrev_b32 v6, 5, v1
    v_mul_u32_u24 v4, 7168, v6
    v_lshl_add_u32 v4, v5, 4, v4
    s_mul_i32 s97, s40, 448
    s_add_u32 s97, s97, {WS_V - WS_K}
    v_add_u32 v4, s97, v4
    v_add_u32 v7, 14336, v4
    s_mov_b32 s46, 0x0fffffff
    s_mov_b32 s47, 0x0fffffff
    """)
    p1 += [[l] for l in G(srd, 56, P_WS, WS_END)]
    p2 = []
    for n in range(NB):
        dst = p1 if n == 0 else p2
        if n == 0:
            dst += [['v_cmp_eq_u32 vcc, 28, v5'], ['v_mov_b32 v12, 0x3f803f80'], ['v_cndmask_b32 v12, 0, v12, vcc'], ['v_mov_b32 v13, v12']]
        dst += [[f'v_mov_b64 {v(VB+8*n+r,2)}, v[12:13]'] for r in range(0, 8, 2)]
        if n < NB - 1:
            dst += [G(loadV, n), G(advK)] + [[l] for l in G(loadK, n + 1)]
    p2 += [[l] for l in G(srd, 8, P_WO, D * D * 2)]
    p2 += singles(f"""
    s_lshr_b32 s52, s40, 2
    s_lshl_b32 s53, s41, 2
    s_add_u32 s52, s52, s53
    s_and_b32 s53, s40, 3                  ; cg4
    v_lshrrev_b32 v8, 4, v1
    v_and_b32 v9, 15, v1
    v_lshlrev_b32 v10, 2, v8
    v_xor_b32 v9, v9, v10
    v_lshlrev_b32 v9, 4, v9
    v_mul_u32_u24 v8, 896, v8
    v_add_u32 v8, v8, v9
    s_lshl_b32 s98, s53, 8
    v_add_u32 v8, s98, v8
    s_lshl_b32 s51, s3, 10
    s_and_b32 s49, s3, 3
    s_lshl_b32 s48, s49, 10
    s_mul_i32 s50, s49, 3584
    s_and_b32 s49, s40, 1
    s_cmp_eq_u32 s49, 0
    s_cselect_b32 s43, -1, 0
    s_mov_b32 s42, 0
    s_cselect_b32 s44, 0, -1
    s_mov_b32 s45, 0
    s_lshl_b32 s32, s21, 4
    s_and_b32 s49, s3, 3
    s_lshl_b32 s49, s49, 2
    s_add_u32 s32, s32, s49
    s_add_u32 s32, s32, {F3}
    s_cmp_lt_u32 s23, 28
    s_cselect_b32 s32, s32, {WS_END}
    s_mov_b32 s37, 0
    """)
    allg = p1 + p2
    isld = lambda g: any(l.startswith('buffer_') for l in g) or g[0].startswith(f's_add_u32 s33, s33, {TILEB}')
    setup = [g for g in allg if not isld(g)]
    loads = [g for g in allg if isld(g)]
    return setup, loads

def tail_setup():
    return [[l] for l in lines(f"""
    s_lshl_b32 s36, s24, 14
    s_add_u32 s36, s36, {RED}
    s_lshr_b32 s38, s27, 1
    s_lshl_b32 s38, s38, 15
    s_and_b32 s39, s27, 1
    s_lshl_b32 s39, s39, 11
    s_add_u32 s38, s38, s39
    s_add_u32 s38, s38, s36
    v_lshl_add_u32 v240, v1, 4, s38
    s_lshl_b32 s38, s27, 12
    s_add_u32 s38, s38, s36
    v_lshl_add_u32 v241, v1, 4, s38
    s_or_b32 s38, s27, 1
    s_lshl_b32 s38, s38, 12
    s_add_u32 s38, s38, s36
    s_add_u32 s38, s38, {1024 + 512}
    v_lshl_add_u32 v242, v5, 4, s38
    v_lshlrev_b32 v243, 13, v6
    v_lshl_add_u32 v243, v5, 4, v243
    v_add_u32 v243, {RED + 4096 + 1024 + 512}, v243
    s_and_b32 s36, s27, 1
    s_cmp_eq_u32 s36, 1
    s_cselect_b32 s101, -1, 0
    s_mov_b32 s100, 0
    s_lshr_b32 s38, s27, 1
    s_add_u32 s38, s38, s28
    s_lshl_b32 s38, s38, 15
    s_lshl_b32 s39, s40, 11
    s_add_u32 s38, s38, s39
    s_lshl_b32 s39, s36, 10
    s_add_u32 s38, s38, s39
    s_add_u32 s63, s38, {WS_O}
    s_lshl_b32 s36, s25, 9
    s_add_u32 s36, s36, {F3}
    v_lshl_add_u32 v238, v5, 4, s36
    v_lshrrev_b32 v239, 1, v1
    v_lshlrev_b32 v239, 13, v239
    v_and_b32 v237, 1, v1
    v_lshl_add_u32 v239, v237, 4, v239
    s_lshl_b32 s93, s25, 18
    s_lshl_b32 s36, s26, 8
    s_add_u32 s93, s93, s36
    s_and_b32 s36, s3, 3
    s_lshl_b32 s36, s36, 6
    s_add_u32 s93, s93, s36
    s_add_u32 s93, s93, {WS_YT}
    """)]

def att_split():
    su, ld = att_pre_groups()
    sc = [g for g in su if g[0].startswith('s_')]
    ve = [g for g in su if not g[0].startswith('s_')]
    return sc, ve, ld

def emit_groups(a, gs):
    for g in gs:
        for l in g: a(l)

def att_zero():
    return [[f'v_mov_b64 {v(OA+r,2)}, 0'] for r in range(0, 32, 2)] + [[f'v_mov_b64 {v(PB+8+r,2)}, 0'] for r in range(0, 8, 2)] + [[f'v_mov_b64 {v(SB+28+r,2)}, 0'] for r in range(0, 4, 2)]

def att_first(a, nout):
    a(f"""
    s_waitcnt vmcnt({nout})
    s_mov_b64 exec, s[42:43]
    v_mov_b32 v{QF+6}, 0
    v_mov_b32 v{QF+7}, 0
    v_mov_b32 v{QF+14}, 0
    v_mov_b32 v{QF+15}, 0
    s_mov_b64 exec, s[44:45]
    v_mov_b32 v{QF+0}, 0
    v_mov_b32 v{QF+1}, 0
    v_mov_b32 v{QF+8}, 0
    v_mov_b32 v{QF+9}, 0
    s_mov_b64 exec, -1
    v_mfma_f32_32x32x16_bf16 {v(SB,16)}, {v(KB,4)}, {v(QF,4)}, 0
    v_mfma_f32_32x32x16_bf16 {v(SB,16)}, {v(KB+4,4)}, {v(QF+4,4)}, {v(SB,16)}
    """)

def ph_att(a):
    a.label('L_att')
    att_first(a, 4*(NB-1))
    a('s_nop 9')
    a.label('L_att2')
    a('v_lshlrev_b32 v2, 4, v1')
    a(f's_cmp_{PRIO_CMP}_u32 s3, 4\ns_cbranch_scc1 A_noprio\ns_setprio 1')
    a.label('A_noprio')
    stamp(a, 6)
    a('.p2align 6')
    a.label('A_loop')
    for u in range(2*NB):
        t = u % 2
        kn = ((u + 1) // 2) % NB
        vn = ((u - 1) // 2) % NB
        Sn = SB + 16*((u+1) % 2); Sc = SB + 16*(u % 2)
        Pc = PB + 8*(u % 2); Pp = PB + 8*((u+1) % 2)
        Qn = QF + 8*(1-t); On = OA + 16*(1-t)
        ins = {}
        if u % 2 == 1:
            j = (u - 1) // 2
            if SPREAD == 0:
                loadV(a, (j - 1) % NB); advK(a); loadK(a, j % NB)
                if j == 0: a('s_mov_b32 s58, s6')
                a(f's_waitcnt vmcnt({4*(NB-1)})')
            else:
                a(f's_waitcnt vmcnt({4*(NB-2)})')
                t1 = Asm(); loadV(t1, (j - 1) % NB); t2 = Asm(); advK(t2); t3 = Asm(); loadK(t3, j % NB)
                if j == 0: t2('s_mov_b32 s58, s6')
                if SPREAD == 1: ins = {(0, 1): t1.lines, (1, 1): t2.lines, (2, 1): t3.lines[:1], (3, 1): t3.lines[1:]}
                else: ins = {(0, 1): t1.lines[:2] + t1.lines[3:], (1, 1): t1.lines[:1] + t1.lines[2:], (1, 3): t2.lines, (2, 1): t3.lines[:1], (3, 1): t3.lines[1:]}
        M = [f'v_mfma_f32_32x32x16_bf16 {v(Sn,16)}, {v(KB+8*kn,4)}, {v(Qn,4)}, 0',
             f'v_mfma_f32_32x32x16_bf16 {v(Sn,16)}, {v(KB+8*kn+4,4)}, {v(Qn+4,4)}, {v(Sn,16)}',
             f'v_mfma_f32_32x32x16_bf16 {v(On,16)}, {v(VB+8*vn,4)}, {v(Pp,4)}, {v(On,16)}',
             f'v_mfma_f32_32x32x16_bf16 {v(On,16)}, {v(VB+8*vn+4,4)}, {v(Pp+4,4)}, {v(On,16)}']
        M = [M[2], M[0], M[1], M[3]]
        for g in range(4):
            a(M[g])
            for e in range(4):
                a(f'v_exp_f32 v{Sc+4*g+e}, v{Sc+4*g+e}')
                for l in ins.get((g, e), []): a(l)
                if e in (0, 2):
                    h = e // 2
                    if g > 0: a(f'v_cvt_pk_bf16_f32 v{Pc+2*(g-1)+h}, v{Sc+4*(g-1)+2*h}, v{Sc+4*(g-1)+2*h+1}')
                    else:     a(f'v_cvt_pk_bf16_f32 v{Pp+6+h}, v{Sn+12+2*h}, v{Sn+13+2*h}')
    a(f"""
    s_add_u32 s37, s37, 1
    s_cmp_eq_u32 s37, s35
    s_cbranch_scc1 A_exit
    s_add_u32 s49, s37, 1
    s_cmp_lg_u32 s49, s35
    s_cbranch_scc1 A_b2
    s_mov_b32 s6, 0
    s_cmp_eq_u32 s32, {WS_END}
    s_cbranch_scc1 A_b2
    s_cmp_lt_u32 s3, 4
    s_cbranch_scc1 A_loop
    buffer_load_dwordx4 v[196:199], v238, s[16:19], 0 offen sc1
    A_b2:
    s_cmp_lt_u32 s3, 4
    s_cbranch_scc1 A_loop
    s_cmp_gt_u32 s37, 2
    s_cbranch_scc1 A_b0
    """)
    for r in range(0 if 'nowo' in DBG else 12):
        a(f"""
        s_mov_b32 m0, s48
        s_add_u32 s48, s48, 4096
        buffer_load_dwordx4 v8, s[8:11], s50 offen lds
        s_add_u32 s50, s50, 14336
        """)
    a.label('A_b0')
    a(f"""
    s_add_u32 s49, s37, {PRIO_LEFT}
    s_cmp_lt_u32 s49, s35
    s_cbranch_scc1 A_b1
    s_setprio 0
    """)
    a.label('A_b1')
    a('s_cmp_lg_u32 s37, 1\ns_cbranch_scc1 A_loop')
    signal(a, 32, 9, 10)
    a('s_branch A_loop')
    a.label('A_exit')
    a('s_setprio 0')
    stamp(a, 7)
    a(f'v_cvt_pk_bf16_f32 v{PB+14}, v{SB+28}, v{SB+29}')
    a(f'v_cvt_pk_bf16_f32 v{PB+15}, v{SB+30}, v{SB+31}')
    a(f'v_mfma_f32_32x32x16_bf16 {v(OA+16,16)}, {v(VB+8*(NB-1),4)}, {v(PB+8,4)}, {v(OA+16,16)}')
    a(f'v_mfma_f32_32x32x16_bf16 {v(OA+16,16)}, {v(VB+8*(NB-1)+4,4)}, {v(PB+12,4)}, {v(OA+16,16)}')
    a('s_mov_b32 s94, 0')
    a.label('A_red')
    for own in range(4):
        for q in range(2):
            a(f'ds_write_b128 v240, {v(OA + 8*own + 4*q, 4)} offset:{own*4096 + q*1024}')
    a('s_cmp_ge_u32 s23, 28\ns_cbranch_scc1 A_ny\ns_cmp_lt_u32 s3, 4\ns_cbranch_scc1 A_ny\ns_cmp_lg_u32 s94, 0\ns_cbranch_scc1 A_ny')
    for i in range(4): a(f'v_xor_b32 v{196+i}, s20, v{196+i}')
    a('v_or3_b32 v196, v196, v197, v198\nv_or_b32 v196, v196, v199\nv_cmp_ne_u32 vcc, 0, v196')
    a('s_add_u32 s92, s93, 32\ns_nop 3\ns_cbranch_vccz A_y')
    poll(a, 'PL_f3', 238, 196, x4=True)
    a.label('A_y')
    a('buffer_load_dwordx4 v[196:199], v239, s[16:19], s93 offen sc1')
    a('buffer_load_dwordx4 v[212:215], v239, s[16:19], s92 offen sc1')
    a.label('A_ny')
    a('s_waitcnt lgkmcnt(0)\ns_barrier')
    R = 64
    so = lambda src: (src >> 1) * 32768 + (src & 1) * 2048
    for src in range(4):
        a(f'ds_read_b32 v{12+src}, v242 offset:{so(src)}')
    for src in range(4):
        for q in range(2):
            a(f'ds_read_b128 {v(R + 8*src + 4*q, 4)}, v241 offset:{so(src) + q*1024}')
    a(f"""
    s_waitcnt lgkmcnt(8)
    v_add_f32 v12, v12, v13
    v_add_f32 v14, v14, v15
    v_add_f32 v12, v12, v14
    v_rcp_f32 v12, v12
    s_waitcnt lgkmcnt(0)
    """)
    a('v_cndmask_b32 v13, v12, 0, s[100:101]')
    for r in range(8):
        a(f'v_add_f32 v{R+r}, v{R+r}, v{R+8+r}')
        a(f'v_add_f32 v{R+16+r}, v{R+16+r}, v{R+24+r}')
    for r in range(8): a(f'v_add_f32 v{R+r}, v{R+r}, v{R+16+r}')
    for r in range(8): a(f'v_mul_f32 v{R+r}, v{R+r}, v{12 if r < 4 else 13}')
    for r in range(4): a(f'v_cvt_pk_bf16_f32 v{R+8+r}, v{R+2*r}, v{R+2*r+1}')
    a(f'buffer_store_dwordx4 {v(R+8,4)}, v2, s[16:19], s63 offen sc1')
    stamp(a, 8)
    for qg in range(2):
        for src in range(4):
            a(f'ds_read_b32 v{80+4*qg+src}, v243 offset:{qg*16384 + so(src)}')
    a(f"""
    s_mov_b32 s36, {f32bits(2.0**-30)}
    s_mov_b32 s37, {f32bits(2.0**40)}
    s_waitcnt lgkmcnt(0)
    v_add_f32 v80, v80, v81
    v_add_f32 v82, v82, v83
    v_add_f32 v84, v84, v85
    v_add_f32 v86, v86, v87
    v_add_f32 v80, v80, v82
    v_add_f32 v84, v84, v86
    v_cmp_nle_f32 vcc, s36, v80
    v_cmp_nge_f32 s[42:43], s37, v80
    v_cmp_nle_f32 s[44:45], s36, v84
    v_cmp_nge_f32 s[60:61], s37, v84
    s_or_b64 s[42:43], s[42:43], vcc
    s_or_b64 s[44:45], s[44:45], s[60:61]
    s_or_b64 s[42:43], s[42:43], s[44:45]
    s_cbranch_scc1 A_slow
    """)
    a.label('A_done')

def ph_slow(a):
    MX = 192
    a.label('A_slow')
    a(f"""
    s_cmp_lg_u32 s94, 0
    s_cbranch_scc1 A_done
    s_waitcnt vmcnt(0)
    s_barrier
    s_mov_b32 s6, s18
    s_mov_b32 s58, s18
    v_mov_b32 v{MX}, 0xff800000
    v_mov_b32 v{MX+1}, 0xff800000
    """)
    for r in range(0, 32, 2): a(f'v_mov_b64 {v(OA+r,2)}, 0')
    a.label('AS_pass')
    a('s_mov_b32 s37, 0')
    a.label('AS_tile')
    loadK(a, 0); loadV(a, 0); advK(a)
    a('s_waitcnt vmcnt(0)')
    for t in range(2):
        Sx = SB + 16*t
        a(f'v_mfma_f32_32x32x16_bf16 {v(Sx,16)}, {v(KB,4)}, {v(QF+8*t,4)}, 0')
        a(f'v_mfma_f32_32x32x16_bf16 {v(Sx,16)}, {v(KB+4,4)}, {v(QF+8*t+4,4)}, {v(Sx,16)}')
    a('s_nop 15\ns_cmp_lg_u32 s94, 0\ns_cbranch_scc1 AS_p1')
    for t in range(2):
        for r in range(0, 16, 2): a(f'v_max3_f32 v{MX+t}, v{SB+16*t+r}, v{SB+16*t+r+1}, v{MX+t}')
    a('s_branch AS_next')
    a.label('AS_p1')
    for t in range(2):
        Sx = SB + 16*t; Px = PB + 8*t
        for r in range(16): a(f'v_sub_f32 v{Sx+r}, v{Sx+r}, v{MX+t}')
        for r in range(16): a(f'v_exp_f32 v{Sx+r}, v{Sx+r}')
        for r in range(8): a(f'v_cvt_pk_bf16_f32 v{Px+r}, v{Sx+2*r}, v{Sx+2*r+1}')
        a(f'v_mfma_f32_32x32x16_bf16 {v(OA+16*t,16)}, {v(VB,4)}, {v(Px,4)}, {v(OA+16*t,16)}')
        a(f'v_mfma_f32_32x32x16_bf16 {v(OA+16*t,16)}, {v(VB+4,4)}, {v(Px+4,4)}, {v(OA+16*t,16)}')
    a.label('AS_next')
    a(f"""
    s_nop 15
    s_add_u32 s37, s37, 1
    s_cmp_lt_u32 s37, s34
    s_cbranch_scc1 AS_tile
    s_cmp_lg_u32 s94, 0
    s_cbranch_scc1 A_red
    s_lshl_b32 s36, s24, 11
    s_add_u32 s36, s36, {RED}
    s_lshl_b32 s38, s27, 9
    s_add_u32 s38, s38, s36
    v_lshl_add_u32 v9, v1, 3, s38
    ds_write_b64 v9, {v(MX,2)}
    v_lshl_add_u32 v9, v5, 3, s36
    s_waitcnt lgkmcnt(0)
    s_barrier
    """)
    for k in range(8): a(f'ds_read_b64 {v(SB+2*k,2)}, v9 offset:{256*k}')
    a('s_waitcnt lgkmcnt(0)')
    for t in range(2):
        for k in range(0, 8, 2): a(f'v_max3_f32 v{MX+t}, v{SB+2*k+t}, v{SB+2*k+2+t}, v{MX+t}')
    a('s_mov_b32 s94, 1\ns_barrier\ns_branch AS_pass')

L_RDY = 118784
def y_piece(a):
    a(f"""
    s_cmp_ge_u32 s23, 28
    s_cbranch_scc1 P_noy
    s_lshl_b32 s36, s29, 11
    s_add_u32 s36, s36, {YL}
    v_add_u32 v203, s36, v2
    ds_write_b128 v203, v[196:199]
    ds_write_b128 v203, v[212:215] offset:1024
    v_lshrrev_b32 v17, 4, v1
    v_and_b32 v18, 3, v1
    v_lshl_add_u32 v17, v17, 2, v18
    v_and_b32 v18, 7, v17
    v_lshrrev_b32 v17, 3, v17
    v_bfe_u32 v19, v1, 2, 2
    v_lshl_add_u32 v18, v18, 3, v19
    v_lshlrev_b32 v18, 4, v18
    v_lshl_add_u32 v18, v17, 3, v18
    v_add_u32 v204, s36, v18
    s_waitcnt lgkmcnt(0)
    ds_read_b64_tr_b16 v[208:209], v204
    ds_read_b64_tr_b16 v[210:211], v204 offset:64
    ds_read_b64_tr_b16 v[216:217], v204 offset:1024
    ds_read_b64_tr_b16 v[218:219], v204 offset:1088
    v_and_b32 v19, 3, v1
    v_lshl_add_u32 v19, v6, 2, v19
    s_lshl_b32 s36, s26, 6
    s_lshl_b32 s37, s29, 4
    s_add_u32 s36, s36, s37
    v_add_u32 v19, s36, v19
    v_mul_u32_u24 v19, 1792, v19
    v_bfe_u32 v17, v1, 2, 3
    v_lshl_add_u32 v205, v17, 4, v19
    s_lshl_b32 s93, s25, 7
    s_add_u32 s93, s93, 896
    s_add_u32 s92, s93, {8*1792}
    s_waitcnt lgkmcnt(0)
    buffer_store_dwordx4 v[208:211], v205, s[12:15], s93 offen {YMOD}
    buffer_store_dwordx4 v[216:219], v205, s[12:15], s92 offen {YMOD}
    """)
    a.label('P_noy')

def ph_out(a):
    a(f"""
    s_and_b32 s29, s3, 3
    v_mov_b32 v15, {L_RDY}
    s_cmp_ge_u32 s3, 4
    s_cbranch_scc1 P_fetch
    ; ---------------- waves 0..3
    s_lshl_b32 s36, s41, {F2S+4}
    s_lshr_b32 s37, s40, 2
    s_lshl_b32 s37, s37, {F2S}
    s_add_u32 s36, s36, s37
    s_and_b32 s37, s40, 3
    s_lshl_b32 s37, s37, 2
    s_add_u32 s36, s36, s37
    s_add_u32 s36, s36, {F2}
    v_lshl_add_u32 v28, v1, {F2S+2}, s36
    v_mov_b32 v29, s20
    v_bfe_u32 v7, v1, 2, 2
    v_xor_b32 v12, s29, v7
    v_lshlrev_b32 v12, 6, v12
    v_bfe_u32 v9, v1, 4, 1
    v_lshl_add_u32 v12, v9, 5, v12
    v_and_b32 v9, 3, v1
    v_lshl_add_u32 v12, v9, 3, v12
    v_lshl_add_u32 v9, v6, 2, v7
    v_lshl_add_u32 v12, v9, 8, v12
    v_add_u32 v13, {224*256}, v12          ; heads 8..15
    s_waitcnt vmcnt(0)
    s_barrier
    """)
    ACC = 224; WF = 32; OF = 160
    def wread(hd):
        for f in range(2):
            for e in range(2):
                row = 28*hd + 16*f + 8*e - (224 if hd >= 8 else 0)
                a(f'ds_read_b64_tr_b16 {v(WF + 8*hd + 4*f + 2*e, 2)}, v{13 if hd >= 8 else 12} offset:{row*256}')
    a('s_lshl_b64 exec, 1, s3\nbuffer_store_dword v29, v28, s[16:19], 0 offen sc1\ns_mov_b64 exec, -1')
    stamp(a, 9)
    for hd in range(13): wread(hd)
    a(f"""
    v_add_u32 v10, {OL}, v2
    s_lshl_b32 s36, s52, 5
    v_add_u32 v11, s36, v5
    v_mul_u32_u24 v11, 1792, v11
    v_lshl_add_u32 v11, v6, 4, v11
    s_lshl_b32 s30, s53, 2
    s_add_u32 s30, s30, s29
    s_lshl_b32 s32, s30, 6
    """)
    a('s_cmp_ge_u32 s30, 14\ns_cbranch_scc1 P_fin')
    stamp(a, 10)
    a(f'v_lshl_add_u32 v14, v1, 2, v15')
    def need(g):
        a('s_waitcnt lgkmcnt(0)')
        a.label(f'P_n{g}')
        a(f'v_cmp_eq_u32 vcc, s20, v28\ns_nop 1\ns_bitcmp1_b32 vcc_lo, {g}\ns_cbranch_scc0 P_r{g}')
        a.label(f'P_g{g}')
    def mf(g):
        for n in range(8):
            c = '0' if (g == ORD[0] and n == 0) else v(ACC, 16)
            a(f'v_mfma_f32_32x32x16_bf16 {v(ACC,16)}, {v(WF + 32*g + 4*n,4)}, {v(OF + 32*(ORD.index(g)%2) + 4*n,4)}, {c}')
    ORD = [0, 1, 2, 3]
    a('ds_read_b32 v28, v14')
    for i, g in enumerate(ORD):
        need(g)
        for n in range(8): a(f'ds_read_b128 {v(OF + 32*(i%2) + 4*n, 4)}, v10 offset:{g*8192 + n*1024}')
        if g == 3:
            for hd in range(13, 16): wread(hd)
        if i < 3: a('ds_read_b32 v28, v14')
        if i > 0: mf(ORD[i-1])
    a('s_waitcnt lgkmcnt(0)')
    mf(ORD[3])
    a.label('P_epi')
    stamp(a, 11)
    T = 40
    for r in range(8): a(f'v_cvt_pk_bf16_f32 v{T+r}, v{ACC+2*r}, v{ACC+2*r+1}')
    for q in range(2):
        a(f'v_permlane32_swap_b32 v{T+4*q}, v{T+4*q+2}')
        a(f'v_permlane32_swap_b32 v{T+4*q+1}, v{T+4*q+3}')
    a(f'buffer_store_dwordx4 {v(T,4)}, v11, s[12:15], s32 offen {OMOD}')
    a(f'buffer_store_dwordx4 {v(T+4,4)}, v11, s[12:15], s32 offen offset:32 {OMOD}')
    a('s_branch P_fin')
    for g in range(4):
        a.label(f'P_r{g}')
        a(f'ds_read_b32 v28, v14\ns_add_u32 s95, s95, 1\ns_cmp_lt_u32 s95, 0x200000\ns_waitcnt lgkmcnt(0)\ns_cbranch_scc1 P_n{g}\ns_branch P_g{g}')
    a.label('P_fetch')
    a(f"""
    s_lshl_b32 s37, s52, {F2S+2}
    s_lshl_b32 s38, s29, {F2S}
    s_add_u32 s37, s37, s38
    s_add_u32 s37, s37, {F2}
    v_lshl_add_u32 v16, v1, 2, s37
    s_lshl_b32 s38, s52, 15
    s_lshl_b32 s39, s29, 13
    s_add_u32 s38, s38, s39
    s_add_u32 s38, s38, {WS_O}
    s_add_u32 s39, s39, {OL}
    s_lshl_b32 s37, s29, 2
    v_add_u32 v15, s37, v15
    v_mov_b32 v14, s20
    s_waitcnt vmcnt(0)
    s_barrier
    """)
    stamp(a, 9)
    a(f's_cmp_lg_u32 s3, 7\ns_cbranch_scc1 P_nowo\ns_mov_b32 s48, {96*1024}\ns_mov_b32 s50, {96*3584}')
    a.label('P_wo')
    a(f"""
    s_mov_b32 m0, s48
    s_add_u32 s48, s48, 1024
    buffer_load_dwordx4 v8, s[8:11], s50 offen lds
    s_add_u32 s50, s50, 3584
    s_cmp_le_u32 s50, {D*D*2}
    s_cbranch_scc1 P_wo
    """)
    a.label('P_nowo')
    if PIPE_POLL:
        a('s_mov_b64 exec, 0xf\ns_mov_b32 s62, 0')
        for k in range(PIPE_POLL - 1):
            a(f'buffer_load_dword v{20+k}, v16, s[16:19], 0 offen sc1\ns_sleep {F2_SLEEP}')
        a.label('PL_f2')
        for k in range(PIPE_POLL):
            a(f'buffer_load_dword v{20+(k+PIPE_POLL-1)%PIPE_POLL}, v16, s[16:19], 0 offen sc1')
            a(f's_waitcnt vmcnt({PIPE_POLL-1})')
            a(f'v_cmp_ne_u32 vcc, s20, v{20+k}\ns_nop 4\ns_cbranch_vccz PL_f2_ok\ns_sleep {F2_SLEEP}')
        a(f's_add_u32 s62, s62, 1\ns_cmp_lt_u32 s62, {POLL_LIMIT}\ns_cbranch_scc1 PL_f2')
        a.label('PL_f2_ok')
        a('s_mov_b64 exec, -1')
    else:
        poll(a, 'PL_f2', 16, 17, mask=0xf, sleep=F2_SLEEP)
    stamp(a, 10)
    for hlf in range(2):
        a(f's_add_u32 m0, s39, {hlf*4096}')
        if hlf: a('s_add_u32 s38, s38, 4096')
        else: a('s_nop 0')
        for n in range(4): a(f'buffer_load_dwordx4 v2, s[16:19], s38 offen offset:{n*1024} sc1 lds')
    a('s_waitcnt vmcnt(0)\nds_write_b32 v15, v14')
    stamp(a, 11)
    y_piece(a)
    a('s_cmp_lg_u32 s2, 240\ns_cbranch_scc1 P_fin\ns_cmp_lg_u32 s3, 4\ns_cbranch_scc1 P_fin')
    a(f'v_lshlrev_b32 v16, {F2S}, v5\nv_add_u32 v16, {F2 + (56 << (F2S+2))}, v16')
    poll(a, 'PL_ep', 16, 20, x4=True, sleep=2)
    a(f's_mov_b32 s36, {EPOCH}')
    signal(a, 36, 16, 17)
    a.label('P_fin')

def kernel(a):
    if STAMPS or DIAG >= 0:
        a('v_mov_b32 v254, 0')
        stamp(a, 0)
    prologue(a)
    ph_front(a)
    ph_att(a)
    ph_out(a)
    if DIAG >= 0:
        a('s_waitcnt vmcnt(0)')
        stamp(a, 12)
        a(f"""
        s_cmp_lg_u32 s3, {int(os.environ.get('DIAGW', 0))}
        s_cbranch_scc1 L_end
        s_cmp_ge_u32 s23, 28
        s_cbranch_scc1 L_end
        v_readlane_b32 s36, v254, 0
        v_readlane_b32 s37, v254, {DIAG}
        s_memrealtime s[90:91]
        s_waitcnt lgkmcnt(0)
        s_sub_u32 s36, s37, s36
        s_min_u32 s36, s36, 10000
        s_mov_b32 s37, s90
        """)
        a.label('D_spin')
        a("""
        s_memrealtime s[90:91]
        s_waitcnt lgkmcnt(0)
        s_sub_u32 s38, s90, s37
        s_cmp_lt_u32 s38, s36
        s_cbranch_scc1 D_spin
        """)
    if STAMPS:
        a('s_waitcnt vmcnt(0)')
        stamp(a, 12)
        a(f"""
        s_mov_b32 s18, {WS_STAMP + (1<<20)}
        s_lshl_b32 s36, s2, 3
        s_add_u32 s36, s36, s3
        s_lshl_b32 s36, s36, 6
        s_add_u32 s36, s36, {WS_STAMP}
        v_lshl_add_u32 v2, v1, 2, s36
        s_mov_b64 exec, 0xffff
        buffer_store_dword v254, v2, s[16:19], 0 offen
        s_cmp_lg_u32 s2, 100
        s_cbranch_scc1 L_end
        s_cmp_lg_u32 s3, 0
        s_cbranch_scc1 L_end
        v_readfirstlane_b32 s36, v254
        v_lshlrev_b32 v2, 2, v1
        v_subrev_u32 v254, s36, v254
        s_mov_b64 exec, 0x7ffe
        """)
        srd(a, 56, P_DBG, 256)
        a('buffer_store_dword v254, v2, s[56:59], 0 offen')
    a.label('L_end')
    a('s_endpgm')
    ph_slow(a)

def build(path):
    hdr = open(f'cdna_kernels/{NAME}.s.ref').read().split('\n')
    out = [l for l in hdr if l.startswith(';') and '@launch' not in l][:16]
    out.append(f'; @launch grid=(256,1,1) block=(512,1,1) lds={LDS_TOTAL}')
    out.append('.amdgcn_target "amdgcn-amd-amdhsa--gfx950"')
    out.append('.text')
    label = NAME + '_kernel'
    a = Asm(); kernel(a)
    txt = '\n'.join(out) + f'\n.globl {label}\n.p2align 8\n.type {label},@function\n{label}:\n' + a.finalize()
    txt += f'''.section .rodata,"a"
.p2align 6
.amdhsa_kernel {label}
  .amdhsa_next_free_vgpr 256
  .amdhsa_next_free_sgpr 102
  .amdhsa_accum_offset 256
  .amdhsa_group_segment_fixed_size 0
  .amdhsa_kernarg_size 104
  .amdhsa_user_sgpr_count 2
  .amdhsa_user_sgpr_kernarg_segment_ptr 1
  .amdhsa_system_sgpr_workgroup_id_x 1
.end_amdhsa_kernel
'''
    open(path, 'w').write(txt)

if __name__ == '__main__':
    if '--stamps' in sys.argv: STAMPS = True; sys.argv.remove('--stamps')
    path = sys.argv[1] if len(sys.argv) > 1 else f'cdna_kernels/{NAME}.s'
    build(path)
    import subprocess
    subprocess.run(['clang', '-x', 'assembler', '-target', 'amdgcn-amd-amdhsa', '-mcpu=gfx950', '-c', path, '-o', '_sz.o'], check=True)
    hdr = subprocess.run(['llvm-objdump', '-h', '_sz.o'], capture_output=True, text=True).stdout
    size = int([l for l in hdr.splitlines() if '.text' in l][0].split()[2], 16)
    CODE_KB[0] = size // 1024 - 1
    _gw[0] = 0
    build(path)
    print('code bytes', size)
```

```python
import sys, math, struct, os, re
DBG = os.environ.get('DBG', '')
sys.path.insert(0, 'work')
from asmgen import *

STAMPS = False
NAME = 'concat_heads__mha_block__ssm_conv_s4d__prompt'
S = 2048; D = 448; H = 16; DH = 28
TILEB = 56 * 512
FS = int(os.environ.get('FS', 4))
F0 = 0; F1 = 32768; F2 = 65536; EPOCH = 98304; F3 = 102400
WS_Q = 131072
WS_K = WS_Q + 64 * TILEB
WS_V = WS_K + 64 * TILEB
WS_O = WS_V + 64 * TILEB
WS_UT = WS_O + 64 * 32768
WS_YT = WS_UT + 112 * 16384
WS_END = WS_YT + 224 * 8192
WS_STAMP = 16 << 20
LDS_TOTAL = 163840
POLL_LIMIT = 20000
PRIO_IT = 3
PRIO_U = int(os.environ.get('PRIO_U', 0))
SIG_CUT = float(os.environ.get('SIG_CUT', 0.4))
LOOK_POS = int(os.environ.get('LOOK_POS', 1))
F2S = int(os.environ.get('F2S', 7))
PIPE_POLL = int(os.environ.get('PIPE_POLL', 0))
F2_SLEEP = int(os.environ.get('F2_SLEEP', 1))
AMAP = int(os.environ.get('AMAP', 0))
LITE_SLEEP = int(os.environ.get('LITE_SLEEP', 10))
B_PRE = int(os.environ.get('B_PRE', 10))
B_LAST = int(os.environ.get('B_LAST', 12))
D_PER = int(os.environ.get('D_PER', 0))
PKMUL = int(os.environ.get('PKMUL', 0))
NBP = int(os.environ.get('NBP', 7))
KM_PTS = eval(os.environ.get('KM_PTS', '(7, 13)'))
B_PRIO = int(os.environ.get('B_PRIO', 0))
KM_SPLIT = int(os.environ.get('KM_SPLIT', 10))
A_SLEEP0 = int(os.environ.get('A_SLEEP0', 12))
KM_J = int(os.environ.get('KM_J', 1))
BPRE_J = int(os.environ.get('BPRE_J', 0))
A_SLEEP = int(os.environ.get('A_SLEEP', 3))
FILL_MAX = int(os.environ.get('FILL_MAX', 16))
YMOD = os.environ.get('YMOD', '')
OMOD = os.environ.get('OMOD', '')
SPREAD = int(os.environ.get('SPREAD', 1))
CODE_KB = [1]
CODE_PF = int(os.environ.get('CODE_PF', 1))
NA = int(os.environ.get('NA', 16))
PRIO_LEFT = int(os.environ.get('PRIO_LEFT', 1))
CONV_PRIO = int(os.environ.get('CONV_PRIO', 1))
PRIO_CMP = 'lt'
SCHED_C = [3, 3, 3, 1, 1]
U_ISS = int(os.environ.get('U_ISS', -1)); U_TR = int(os.environ.get('U_TR', 4)); F0_SIG = int(os.environ.get('F0_SIG', 7))
F0_TRY = (7, 10)
F0_LAG = 2
PRE_ST = int(os.environ.get('PRE_ST', 2))
CONV_T0 = int(os.environ.get('CONV_T0', 22))
XMOD = os.environ.get('XMOD', '')
F1_SLEEP = 8
KG_CUT = float(os.environ.get('KG_CUT', 0.4))
LD_PER = int(os.environ.get('LD_PER', 50))

def f32bits(x): return struct.unpack('<I', struct.pack('<f', x))[0]
QSCALE = math.log2(math.e) / math.sqrt(DH)
LOG2E = math.log2(math.e)
P_X, P_W, P_WO, P_U, P_LA, P_AI, P_CR, P_CI, P_DT, P_DS, P_OUT, P_DBG, P_WS = [64 + 2*i for i in range(13)]

DIAG = int(os.environ.get('DIAG', -1))
def stamp(a, n):
    if STAMPS or (DIAG >= 0 and n in (0, DIAG)):
        a('s_memrealtime s[90:91]')
        a('s_waitcnt lgkmcnt(0)')
        a(f'v_writelane_b32 v254, s90, {n}')
        if n in (6, 7) and os.environ.get('CYC'):
            a('s_memtime s[90:91]')
            a('s_waitcnt lgkmcnt(0)')
            a(f'v_writelane_b32 v254, s90, {n+7}')

def srd(a, base_s, ptr_s, nbytes):
    a(f's_mov_b32 s{base_s}, s{ptr_s}')
    a(f's_and_b32 s{base_s+1}, s{ptr_s+1}, 0xffff')
    a(f's_mov_b32 s{base_s+2}, {nbytes}')
    a(f's_mov_b32 s{base_s+3}, 0x20000')

def poll(a, name, voff, tmp, mask=-1, x4=False, sleep=4):
    if mask != -1:
        a(f's_mov_b32 exec_lo, {mask & 0xffffffff}')
        a(f's_mov_b32 exec_hi, {mask >> 32}')
    a('s_mov_b32 s62, 0')
    a.label(name)
    if x4:
        a(f'buffer_load_dwordx4 {v(tmp,4)}, v{voff}, s[16:19], 0 offen sc1')
        a('s_waitcnt vmcnt(0)')
        for i in range(4): a(f'v_xor_b32 v{tmp+i}, s20, v{tmp+i}')
        a(f'v_or3_b32 v{tmp}, v{tmp}, v{tmp+1}, v{tmp+2}')
        a(f'v_or_b32 v{tmp}, v{tmp}, v{tmp+3}')
        a(f'v_cmp_ne_u32 vcc, 0, v{tmp}')
    else:
        a(f'buffer_load_dword v{tmp}, v{voff}, s[16:19], 0 offen sc1')
        a('s_waitcnt vmcnt(0)')
        a(f'v_cmp_ne_u32 vcc, s20, v{tmp}')
    a('s_nop 4')
    a(f's_cbranch_vccz {name}_ok')
    a(f's_sleep {sleep}')
    a('s_add_u32 s62, s62, 1')
    a(f's_cmp_lt_u32 s62, {POLL_LIMIT}')
    a(f's_cbranch_scc1 {name}')
    a.label(name + '_ok')
    a('s_mov_b64 exec, -1')

def signal(a, soff, vt0, vt1):
    a(f'v_mov_b32 v{vt0}, s{soff}')
    a(f'v_mov_b32 v{vt1}, s20')
    a('s_mov_b64 exec, 1')
    a(f'buffer_store_dword v{vt1}, v{vt0}, s[16:19], 0 offen sc1')
    a('s_mov_b64 exec, -1')


CV, C1 = 250, 251
def garrive(a, off):
    a('s_mov_b64 exec, 1')
    a(f'ds_add_u32 v{CV}, v{C1} offset:{off}')
    a('s_mov_b64 exec, -1')
_gw = [0]
def gwait(a, off, target, tmp):
    _gw[0] += 1; name = f'GW{_gw[0]}'
    a.label(name)
    a(f'ds_read_b32 v{tmp}, v{CV} offset:{off}')
    a('s_waitcnt lgkmcnt(0)')
    a(f'v_readfirstlane_b32 s62, v{tmp}')
    a(f's_cmp_ge_u32 s62, {target}')
    a(f's_cbranch_scc1 {name}_ok')
    a('s_sleep 1')
    a('s_add_u32 s95, s95, 1')
    a('s_cmp_lt_u32 s95, 0x200000')
    a(f's_cbranch_scc1 {name}')
    a.label(name + '_ok')

def prologue(a):
    a(f"""
    s_cmp_ge_u32 s2, 256
    s_cbranch_scc1 L_end
    s_load_dwordx16 s[64:79], s[0:1], 0
    s_load_dwordx8 s[80:87], s[0:1], 64
    s_load_dwordx2 s[88:89], s[0:1], 96
    v_and_b32 v1, 63, v0
    v_lshrrev_b32 v2, 6, v0
    v_readfirstlane_b32 s3, v2
    s_and_b32 s22, s2, 7
    s_lshr_b32 s23, s2, 3
    """)
    if CODE_PF:
        a(f"""
        s_getpc_b64 s[96:97]
        s_and_b32 s96, s96, 0xffffff00
        s_and_b32 s98, s23, 3
        s_lshl_b32 s98, s98, 3
        s_add_u32 s98, s98, s3
        s_min_u32 s98, s98, {CODE_KB[0]}
        s_lshl_b32 s98, s98, 10
        v_lshl_add_u32 v2, v1, 4, s98
        global_load_dwordx4 v[192:195], v2, s[96:97]
        """)
    a(f"""
    s_and_b32 s27, s22, 1                  ; odd
    s_lshr_b32 s24, s23, 3                 ; cl' (0..3)
    s_lshl_b32 s25, s27, 2
    s_add_u32 s25, s25, s24
    s_and_b32 s26, s23, 7                  ; rbl
    s_lshl_b32 s28, s26, 1
    s_add_u32 s28, s28, s27
    s_cmp_eq_u32 s24, 3
    s_cselect_b32 s25, 3, s25
    s_cselect_b32 s26, s28, s26
    s_lshl_b32 s24, s24, 1
    s_add_u32 s24, s24, s26
    s_lshr_b32 s28, s22, 1
    s_lshl_b32 s28, s28, 3
    s_add_u32 s26, s26, s28                ; rb
    s_mul_i32 s21, s22, 28
    s_add_u32 s21, s21, s23
    s_cmp_lt_u32 s23, 28
    s_cbranch_scc1 L_full
    s_waitcnt lgkmcnt(0)
    """)
    srd(a, 4, P_W, D * 3 * D * 2)
    a(f"""
    s_sub_u32 s36, s23, 28
    s_lshl_b32 s36, s36, 3
    s_add_u32 s36, s36, s3
    s_mul_i32 s36, s36, {14*2688}
    v_lshrrev_b32 v2, 3, v1
    v_min_u32 v4, 5, v2
    v_mul_u32_u24 v2, 2688, v2
    v_mul_u32_u24 v4, 2688, v4
    v_and_b32 v3, 7, v1
    v_lshl_add_u32 v2, v3, 4, v2
    v_lshl_add_u32 v4, v3, 4, v4
    s_add_u32 s37, s36, {TA*896 + 384}
    buffer_load_dwordx4 v[64:67], v2, s[4:7], s37 offen
    s_add_u32 s37, s37, {8*2688}
    buffer_load_dwordx4 v[68:71], v4, s[4:7], s37 offen
    v_lshrrev_b32 v2, 5, v1
    v_mul_u32_u24 v2, 2688, v2
    v_and_b32 v3, 31, v1
    v_lshl_add_u32 v2, v3, 4, v2
    s_mul_i32 s37, s27, 384
    s_add_u32 s36, s36, s37
    """)
    for n, ty in enumerate((TB, TC)):
        for i in range(7):
            a(f's_add_u32 s37, s36, {ty*896 + 2*i*2688}')
            a(f'buffer_load_dwordx4 {v(72+28*n+4*i,4)}, v2, s[4:7], s37 offen')
    srd(a, 16, P_WS, WS_END)
    srd(a, 12, P_OUT, S * 2 * D * 2)
    a(f"""
    s_mov_b32 s36, {EPOCH}
    buffer_load_dword v253, off, s[16:19], s36 sc1
    s_waitcnt vmcnt(0)
    v_readfirstlane_b32 s20, v253
    s_add_u32 s20, s20, 1
    {'s_endpgm' if 'gemmonly' in DBG else ''}
    s_sleep {LITE_SLEEP}
    s_sub_u32 s36, s23, 28
    s_lshl_b32 s36, s36, 3
    s_add_u32 s36, s36, s3
    s_mul_i32 s36, s36, 12544
    v_lshl_add_u32 v2, v1, 4, s36
    """)
    srd(a, 8, P_WO, D * D * 2)
    for i in range(13):
        a(f's_mov_b32 s36, {1024*i}')
        a(f'buffer_load_dwordx4 {v(64+4*i,4)}, v2, s[8:11], s36 offen')
    a("""
    s_waitcnt vmcnt(0)
    """)
    a('s_mov_b32 s95, 0')
    att_poll_addr(a, 176)
    a.label('L_lite0')
    su, _ = att_pre_groups()
    emit_groups(a, su + tail_setup())
    a('s_cmp_lg_u32 s3, 0\ns_cbranch_scc1 L_lite1')
    poll(a, 'PL_f1a', 176, 180, mask=1 << 63, x4=True, sleep=8)
    poll(a, 'PL_f1b', 176, 180, x4=True, sleep=2)
    a.label('L_lite1')
    a('s_barrier')
    a('s_branch L_pre')
    a.label('L_full')

RING0 = 65536; SLOT = 16384; NS = 4; DEPTH = 3
def slot_of(j): return (j + 2) % NS
XYP = 1056; XYCH = 53 * XYP
GP = 8384; GCH = 260 * 16
L_G = 0
L_T2 = 114688; TP = 328; T2CH = 8 * TP * 2
L_U = 131072; UCH = 96 * 80
L_CTL = L_U + 2 * UCH
L_TAB = 147456
L_PART = 49152; PSRC = 1024; POWN = 4096
assert L_CTL + 16 <= L_TAB and 4*GP <= L_PART and 2*XYCH <= L_T2

def cmul(o, d, x, e, t):
    if PKMUL:
        o.append(f'v_pk_mul_f32 {v(t,2)}, {v(x,2)}, {v(e,2)} op_sel:[0,0] op_sel_hi:[1,0]')
        o.append(f'v_pk_fma_f32 {v(d,2)}, {v(x,2)}, {v(e,2)}, {v(t,2)} op_sel:[1,1,0] op_sel_hi:[0,1,1] neg_lo:[1,0,0]')
    else:
        o.append(f'v_mul_f32 v{t}, v{x+1}, v{e+1}')
        o.append(f'v_mul_f32 v{t+1}, v{x}, v{e+1}')
        o.append(f'v_fma_f32 v{d}, v{x}, v{e}, -v{t}')
        o.append(f'v_fma_f32 v{d+1}, v{x+1}, v{e}, v{t+1}')

def lines(txt): return [l.strip() for l in txt.split('\n') if l.strip()]

_KM = {}
PKB = [64, 117]
def _mk():
    pairs_pre = [20, 22, 24, 26, 28, 30, 32, 34, 36, 38, 40, 42, 48, 50, 52, 54]
    for i, r in enumerate(pairs_pre): _KM[r] = 170 + 2*i; _KM[r+1] = 171 + 2*i
    for i, r in enumerate([2, 3, 4, 5, 6, 7, 8, 9]): _KM[r] = 202 + i
    _KM[70] = 48; _KM[71] = 49
    for i, r in enumerate(range(56, 64)): _KM[r] = 40 + i
    for c in range(2):
        for row in range(53): _KM[1000 + 100*c + row] = PKB[c] + row
_mk()
def kmap(l, ch):
    M = _KM
    def one(m): return f'v{M.get(int(m.group(1)), int(m.group(1)))}'
    def rng(m):
        lo = int(m.group(1)); hi = int(m.group(2)); n = M.get(lo, lo); return f'v[{n}:{n+hi-lo}]'
    l = re.sub(r'v\[(\d+):(\d+)\]', rng, l)
    return re.sub(r'\bv(\d+)\b', one, l)

def kgen(ch):
    P = 240 + 4*ch
    pre = lines(f"""
    {'s_lshl_b32 s58, s38, 16' if ch == 0 else 's_and_b32 s58, s38, 0xffff0000'}
    v_mov_b32 v4, s58
    v_mul_f32 v4, {f32bits(LOG2E)}, v4
    v_exp_f32 v4, v4
    v_lshlrev_b32 v2, 16, v{P}
    v_lshlrev_b32 v3, 16, v{P+1}
    v_lshlrev_b32 v20, 16, v{P+2}
    v_lshlrev_b32 v21, 16, v{P+3}
    v_cvt_pk_bf16_f32 v4, v4, v4
    v_mul_f32 v2, {f32bits(LOG2E)}, v2
    v_exp_f32 v2, v2
    v_and_b32 v4, 0xffff0000, v4
    v_mul_f32 v3, v3, v4
    v_cvt_pk_bf16_f32 v2, v2, v2
    v_and_b32 v2, 0xffff0000, v2
    v_mul_f32 v2, v2, v4
    v_mul_f32 v2, {f32bits(-LOG2E)}, v2
    v_mul_f32 v3, {f32bits(1/(2*math.pi))}, v3
    v_add_f32 v4, v4, v4
    v_mul_f32 v20, v20, v4
    v_mul_f32 v21, v21, v4
    """)
    E1, E8, E256, E2, E4, E16, E32 = 22, 24, 26, 28, 30, 32, 34
    for (E, p) in ((E1, 1.0), (E8, 8.0), (E256, 256.0)):
        pre += lines(f"""
        v_mul_f32 v6, {f32bits(p)}, v2
        v_mul_f32 v7, {f32bits(p)}, v3
        v_exp_f32 v6, v6
        v_fract_f32 v7, v7
        v_cos_f32 v8, v7
        v_sin_f32 v9, v7
        v_mul_f32 v{E}, v6, v8
        v_mul_f32 v{E+1}, v6, v9
        """)
    cmul(pre, E2, E1, E1, 6); cmul(pre, E16, E8, E8, 8)
    cmul(pre, E4, E2, E2, 6); cmul(pre, E32, E16, E16, 8)
    Y = [48, 50, 52, 54]
    def put(o, row, x, r, neg=False):
        o.append(f'v_cvt_pk_bf16_f32 v{1000+100*ch+row}, v{x}, {"-" if neg else ""}v{x+1}')
    chains = []
    for c in range(4):
        o = []
        cur = {0: None, 1: E8, 2: E16, 3: Y[3]}[c]
        if c == 3: cmul(o, Y[3], E16, E8, 36 + 2*c)
        for step in range(8):
            if cur is None:
                o.append(f'v_mov_b32 v{1000+100*ch+21}, 0x3f80')
                cur = E32; continue
            put(o, 21 + 4*step + c, cur, 44 + c)
            if step < 7: cmul(o, Y[c], cur, E32, 36 + 2*c); cur = Y[c]
        chains.append(o)
    XC, GC, SD, SD2 = 56, 58, 60, 62
    o = []
    put(o, 0, 20, 68, True)
    for step in range(7):
        cmul(o, XC, 20 if step == 0 else XC, E1, 6); put(o, step + 1, XC, 68, True)
    chains.append(o)
    grow = {1: 8, 2: 12, 3: 14, 4: 16, 5: 17, 6: 18, 7: 19, 8: 20}
    G = [58, 10, 12, 58, 58, 58, 58, 58]
    G = [10, 12, 18, 58, 58, 58, 58, 58]
    o = []
    for step in range(8):
        cmul(o, G[step], 20 if step == 0 else G[step-1], E256, 8); put(o, grow[step+1], G[step], 69, True)
    chains.append(o)
    o = [None]*(9 if PKMUL else 15)
    cmul(o, SD, G[0], E2, 70); put(o, 9, SD, 5, True)
    cmul(o, SD2, G[0], E4, 70); put(o, 10, SD2, 5, True)
    cmul(o, SD, SD2, E2, 70); put(o, 11, SD, 5, True)
    cmul(o, SD2, G[1], E4, 70); put(o, 13, SD2, 5, True)
    cmul(o, SD, G[2], E4, 70); put(o, 15, SD, 5, True)
    chains.append(o)
    body = []
    for k in range(max(len(c) for c in chains)):
        for c in chains:
            if k < len(c) and c[k] is not None: body.append(c[k])
    return [kmap(l, ch) for l in pre], [kmap(l, ch) for l in body]

def kmfma():
    FA = 112; FB = 144; KA = 176; NBF = 8
    o = []
    LA = 5
    for st in range(16 + LA):
        if st < 16:
            o.append(f'ds_read_b128 {v(FA+4*(st%NBF),4)}, v20 offset:{st*64}')
            o.append(f'ds_read_b128 {v(FB+4*(st%NBF),4)}, v21 offset:{st*64}')
        if st >= LA:
            k = st - LA
            o.append(f's_waitcnt lgkmcnt({2*min(LA, 15-k)})')
            o.append(f'v_mfma_f32_16x16x32_bf16 {v(KA,4)}, {v(FA+4*(k%NBF),4)}, {v(FB+4*(k%NBF),4)}, {"0" if k == 0 else v(KA,4)}')
    o += lines(f"""
    ds_write_b16 v26, v32
    v_cvt_pk_bf16_f32 v{KA+4}, v{KA}, v{KA+1}
    v_cvt_pk_bf16_f32 v{KA+5}, v{KA+2}, v{KA+3}
    ds_write_b16 v22, v{KA+4}
    ds_write_b16_d16_hi v23, v{KA+4}
    ds_write_b16 v24, v{KA+5}
    ds_write_b16_d16_hi v25, v{KA+5}
    s_waitcnt lgkmcnt(0)
    """)
    return o

def subroutines(a):
    a.label('SUB_KMFMA')
    for l in kmfma(): a(l)
    a('s_setpc_b64 s[90:91]')

def kmaddr(a, ch):
    a(f"""
    v_and_b32 v20, 15, v1
    v_lshrrev_b32 v21, 4, v1
    v_mul_u32_u24 v20, {XYP}, v20
    v_lshl_add_u32 v20, v21, 4, v20
    s_and_b32 s36, s3, 1
    s_mul_i32 s36, s36, {16*XYP}
    s_add_u32 s36, s36, {21*XYP + (1-ch)*XYCH}
    v_add_u32 v21, s36, v20
    s_mul_i32 s36, s63, {16*XYP}
    s_add_u32 s36, s36, {(1-ch)*XYCH}
    v_add_u32 v20, s36, v20
    v_and_b32 v26, 7, v1
    v_mul_u32_u24 v26, {2*TP}, v26
    v_add_u32 v26, {L_T2 + 2*(TP-1) + ch*T2CH}, v26
    v_mov_b32 v32, 0
    """)
def call(a, name): a(f's_call_b64 s[90:91], {name}')

def gbuild(a, ch, copies):
    g = 64; d = 80
    lo = min(copies); hi = max(copies) + 8
    for i in range(lo, hi): a(f'ds_read_u16 v{g+i}, v{224+i} offset:{ch*T2CH}')
    a('s_waitcnt lgkmcnt(0)')
    for t in copies:
        for i in range(4): a(f'v_lshl_or_b32 v{d+4*t+i}, v{g+t+2*i+1}, 16, v{g+t+2*i}')
        a(f'ds_write_b128 v249, {v(d+4*t,4)} offset:{t*GP + ch*GCH}')

def gtabs(a):
    a(f"""
    v_and_b32 v14, 255, v0
    v_lshlrev_b32 v249, 4, v14
    v_add_u32 v15, {L_TAB}, v249
    """)
    for q in range(3): a(f'ds_read_b128 {v(224+4*q,4)}, v15 offset:{q*4096}')
    a(f'ds_read_b128 v[22:25], v15 offset:{3*4096}')

K_, V_, Q_ = 1, 2, 0
TA, TB, TC = Q_, K_, V_
stages = [[('x',0),(TA,0)], [('x',1),('x',2)], [(TA,1),(TA,2)]]
for _i in range(3, 7): stages.append([('x', _i), (TA, _i)])
_rest = [(TB, i) for i in range(7)] + [(TC, i) for i in range(7)]
for _i in range(7): stages.append(_rest[2*_i:2*_i+2])
NST = len(stages)

def ph_front(a):
    a(f"""
    s_mov_b32 s95, 0
    v_mov_b32 v{CV}, {L_CTL}
    v_mov_b32 v{C1}, 1
    v_lshrrev_b32 v3, 3, v1
    v_and_b32 v4, 7, v1
    s_and_b32 s29, s3, 3                   ; lw
    s_bfe_u32 s63, s3, 0x10001
    s_and_b32 s61, s3, 1
    s_cmp_lt_u32 s3, 4
    s_cbranch_scc1 Q_comp
    """)
    ssm_waves(a)
    a.label('Q_comp')
    comp_waves(a)

UV = [220, 221, 222, 252, 255]
def ssm_waves(a):
    a(f"""
    s_setprio {B_PRIO}
    v_and_b32 v14, 255, v0
    s_lshl_b32 s37, s21, 10
    v_lshl_add_u32 v248, v14, 1, s37
    s_lshl_b32 s28, s29, 1
    v_xor_b32 v5, s28, v4
    v_lshlrev_b32 v5, 4, v5
    s_lshl_b32 s30, s26, 6
    s_lshl_b32 s31, s29, 4
    s_add_u32 s30, s30, s31
    v_add_u32 v6, s30, v3
    v_mul_u32_u24 v6, 896, v6
    s_lshl_b32 s31, s25, 7
    v_add_u32 v6, s31, v6
    v_add_u32 v7, v6, v5
    v_xor_b32 v5, 16, v5
    v_add_u32 v6, v6, v5
    v_add_u32 v6, 7168, v6
    s_lshl_b32 s31, s61, 11
    s_mul_i32 s32, s63, {UCH}
    s_add_u32 s31, s31, s32
    s_add_u32 s31, s31, {L_U + 2560}
    s_mov_b32 m0, s31
    s_lshl_b32 s36, s21, 2
    s_waitcnt lgkmcnt(0)
    """)
    for i in range(4):
        srd(a, 40 + 4*i, P_LA + 2*i, D * 256 * 2)
        a(f'buffer_load_ushort v{240+i}, v248, s[{40+4*i}:{43+4*i}], 0 offen nt')
        a(f'buffer_load_ushort v{244+i}, v248, s[{40+4*i}:{43+4*i}], 0 offen offset:512 nt')
    srd(a, 8, P_U, S * D * 2)
    a(f"""
    v_mov_b32 v54, v7
    v_mov_b32 v55, v6
    s_mov_b32 s34, s31
    """)
    if U_ISS < 0:
        a('buffer_load_dwordx4 v54, s[8:11], 0 offen nt lds')
        a('s_add_u32 m0, s34, 1024\ns_nop 0\nbuffer_load_dwordx4 v55, s[8:11], 0 offen nt lds')
    a(f"""
    s_add_u32 s{P_DT}, s{P_DT}, s36
    s_addc_u32 s{P_DT+1}, s{P_DT+1}, 0
    s_add_u32 s{P_DS}, s{P_DS}, s36
    s_addc_u32 s{P_DS+1}, s{P_DS+1}, 0
    s_load_dword s38, s[{P_DT}:{P_DT+1}], 0
    s_load_dword s39, s[{P_DS}:{P_DS+1}], 0
    """)
    srd(a, 16, P_WS, WS_END)
    a(f"""
    s_cmp_lg_u32 s3, 4
    s_cbranch_scc1 Q_noep0
    s_mov_b32 s33, {EPOCH}
    buffer_load_dword v253, off, s[16:19], s33 sc1
    """)
    a.label('Q_noep0')
    srd(a, 12, P_OUT, S * 2 * D * 2)
    a(f"""
    v_and_b32 v5, 1, v1
    v_bfe_u32 v6, v1, 1, 1
    v_lshrrev_b32 v7, 4, v1
    v_add_u32 v2, s28, v5
    v_xor_b32 v7, v7, v2
    v_lshlrev_b32 v7, 4, v7
    v_lshl_add_u32 v7, v6, 3, v7
    v_bfe_u32 v6, v1, 2, 2
    v_lshl_add_u32 v6, v5, 3, v6
    v_lshl_add_u32 v7, v6, 7, v7
    v_add_u32 v50, s31, v7
    v_xor_b32 v51, 64, v50
    s_lshl_b32 s31, s25, 18
    s_lshl_b32 s33, s26, 9
    s_add_u32 s31, s31, s33
    s_lshl_b32 s33, s29, 7
    s_add_u32 s31, s31, s33
    s_add_u32 s31, s31, {WS_UT}
    v_lshlrev_b32 v52, 14, v3
    v_lshl_add_u32 v52, v4, 4, v52
    v_add_u32 v52, s31, v52
    s_lshl_b32 s35, s25, {FS+5}
    s_lshl_b32 s33, s26, {FS}
    s_add_u32 s35, s35, s33
    s_lshl_b32 s33, s29, 2
    s_add_u32 s35, s35, s33
    """)
    kmaddr(a, 1)
    t = Asm()
    t(f"""
    s_mov_b32 s101, {L_G + 4096}
    v_and_b32 v2, 3, v1
    v_mul_u32_u24 v2, {GP}, v2
    v_bfe_u32 v3, v1, 2, 2
    v_lshl_add_u32 v2, v3, 4, v2
    v_bfe_u32 v3, v1, 4, 1
    v_mul_u32_u24 v3, {GCH}, v3
    v_add3_u32 v217, v2, v3, s101
    s_lshl_b32 s36, s21, 1
    s_lshr_b32 s56, s36, 2
    s_lshl_b32 s56, s56, 14
    s_and_b32 s36, s36, 3
    s_lshl_b32 s36, s36, 4
    s_add_u32 s56, s56, s36
    s_add_u32 s56, s56, {WS_UT}
    s_mov_b32 s92, s56
    """)
    for k in range(5):
        t(f"""
        v_add_u32 v2, {64*k}, v1
        v_mul_u32_u24 v3, 205, v2
        v_lshrrev_b32 v3, 10, v3
        v_mul_u32_u24 v4, 5, v3
        v_sub_u32 v4, v2, v4
        v_min_u32 v4, 3, v4
        v_lshl_add_u32 v3, v3, 2, v4
        v_lshlrev_b32 v{UV[k]}, 6, v3
        """)
    t(f"""
    s_lshr_b32 s36, s21, 5
    s_lshl_b32 s36, s36, {FS+5}
    v_and_b32 v17, 31, v1
    v_lshl_add_u32 v223, v17, {FS}, s36
    v_lshrrev_b32 v18, 5, v1
    v_and_b32 v19, 3, v17
    v_sub_u32 v19, 3, v19
    v_mul_u32_u24 v19, {GP}, v19
    v_lshrrev_b32 v2, 2, v17
    v_lshlrev_b32 v3, 1, v18
    v_sub_u32 v2, v3, v2
    v_lshl_add_u32 v19, v2, 3, v19
    s_mul_i32 s36, s61, {GCH}
    s_lshl_b32 s56, s63, 10
    s_sub_u32 s36, s36, s56
    s_add_u32 s36, s36, {L_G + 8*511 - 32*94}
    v_add_u32 v218, s36, v19
    v_mul_u32_u24 v2, 80, v17
    v_lshl_add_u32 v2, v18, 4, v2
    s_mul_i32 s36, s61, {UCH}
    s_mul_i32 s56, s63, {16*80}
    s_sub_u32 s36, s36, s56
    s_add_u32 s36, s36, {L_U + 17*80}
    v_add_u32 v219, s36, v2
    v_mov_b64 v[32:33], 0
    v_mov_b64 v[34:35], 0
    v_and_b32 v14, 255, v0
    v_lshlrev_b32 v36, 4, v14
    v_add_u32 v36, {L_U}, v36
    v_cmp_gt_u32 vcc, 160, v14
    s_mov_b64 exec, vcc
    ds_write_b128 v36, v[32:35]
    ds_write_b128 v36, v[32:35] offset:{UCH}
    s_mov_b64 exec, -1
    ds_write2_b32 v{CV}, v32, v33 offset0:1 offset1:3
    ds_write_b32 v{CV}, v32
    """)
    for l in t.lines: a(l)
    stamp(a, 13)
    if 'nob' in DBG:
        for _ in range(14): a('s_barrier')
        a('s_branch P_fin')
    a(f's_waitcnt vmcnt({2 if U_ISS < 0 else 0}) lgkmcnt(0)')
    p0, b0 = kgen(0); p1, b1 = kgen(1)
    work = p1 + b1 + p0 + b0
    dump = {c: [f'ds_write_addtid_b32 v{PKB[c]+row} offset:{row*XYP}' for row in range(53)] for c in range(2)}
    for l in work[:B_PRE]: a(l)
    work = work[B_PRE:]
    for j in range(NST):
        a('s_barrier')
        if j == 0:
            stamp(a, 1)
            a('s_setprio 0')
            gtabs(a)
        if j == 2:
            a(f's_cmp_lg_u32 s3, 4\ns_cbranch_scc1 Q_noep\ns_waitcnt vmcnt(0)\nv_add_u32 v253, 1, v253\nds_write_b32 v{CV}, v253 offset:8\ns_waitcnt lgkmcnt(0)')
            a.label('Q_noep')
        if j == 3: a(f'ds_read_b32 v253, v{CV} offset:8')
        if j == F0_SIG:
            a('s_waitcnt vmcnt(0)')
            signal(a, 35, 2, 3)
        if j == U_ISS:
            a('s_mov_b32 m0, s34\ns_nop 0\nbuffer_load_dwordx4 v54, s[8:11], 0 offen nt lds')
            a('s_add_u32 m0, s34, 1024\ns_nop 0\nbuffer_load_dwordx4 v55, s[8:11], 0 offen nt lds')
        if j == U_TR:
            a(f"""
            s_waitcnt vmcnt(0)
            ds_read_b64_tr_b16 v[54:55], v50
            ds_read_b64_tr_b16 v[56:57], v50 offset:512
            ds_read_b64_tr_b16 v[58:59], v51
            ds_read_b64_tr_b16 v[60:61], v51 offset:512
            s_mov_b32 s36, {8*16384}
            s_lshl_b32 m0, s29, 8
            s_waitcnt lgkmcnt(0)
            buffer_store_dwordx4 v[54:57], v52, s[16:19], 0 offen sc1
            buffer_store_dwordx4 v[58:61], v52, s[16:19], s36 offen sc1
            v_readfirstlane_b32 s20, v253
            """)
            for r in range(22, 26): a(f'v_add_u32 v{r}, {T2CH}, v{r}')
        if j <= B_LAST:
            k = -(-len(work) // (B_LAST + 1 - j))
            for l in work[:k]: a(l)
            work = work[k:]
        if U_TR < j < NST - 1:
            for l in dump[1][:D_PER]: a(l)
            dump[1] = dump[1][D_PER:]
    assert not work
    a('s_cmp_eq_u32 s3, 4\ns_cselect_b32 s60, 1, 0\ns_cbranch_scc0 Q_nof0a')
    a('buffer_load_dwordx4 v[28:31], v223, s[16:19], 0 offen sc1')
    a.label('Q_nof0a')
    for l in dump[1]: a(l)
    a(f's_lshl_b32 s36, s29, 8\ns_add_u32 m0, s36, {XYCH}\ns_nop 0')
    for l in dump[0]: a(l)
    stamp(a, 2)
    if 'gemmonly' in DBG: a('s_branch P_fin')
    def nop(): pass
    def udma():
        a('s_add_u32 s93, s92, 16')
        for ch in range(2):
            for k in range(5):
                a(f's_mov_b32 m0, {L_U + 32*80 + ch*UCH + 1024*k}')
                a(f'buffer_load_dwordx4 v{UV[k]}, s[16:19], s{92+ch} offen sc1 lds')
    def look(tag, last=False):
        a(f's_cmp_eq_u32 s60, 0\ns_cbranch_scc1 Q_lk{tag}')
        if last:
            poll(a, 'PL_f0', 223, 28, x4=True, sleep=1)
        else:
            a('s_waitcnt vmcnt(0)')
            for i in range(4): a(f'v_xor_b32 v{28+i}, s20, v{28+i}')
            a('v_or3_b32 v28, v28, v29, v30\nv_or_b32 v28, v28, v31\nv_cmp_ne_u32 vcc, 0, v28')
            a(f's_nop 4\ns_cbranch_vccz Q_lg{tag}')
            a('buffer_load_dwordx4 v[28:31], v223, s[16:19], 0 offen sc1')
            a(f's_branch Q_lk{tag}')
            a.label(f'Q_lg{tag}')
        a('s_call_b64 s[96:97], Q_udma')
        a.label(f'Q_lk{tag}')
    a('s_waitcnt lgkmcnt(0)\ns_barrier')
    stamp(a, 3)
    look('z')
    for l in kmfma(): a(l)
    if LOOK_POS == 0: look('b')
    a('s_barrier')
    stamp(a, 14)
    if LOOK_POS == 1: look('b')
    a('s_mov_b32 exec_hi, 0\nds_write_b128 v217, v[32:35]\ns_mov_b32 exec_hi, -1')
    gbuild(a, 1, (0, 1, 2, 3))
    a(f's_cmp_lg_u32 s3, 4\ns_cbranch_scc1 Q_u0\ns_cmp_lg_u32 s60, 0\ns_cbranch_scc1 Q_u0\ns_waitcnt vmcnt(0)\nds_write_b32 v{CV}, v{C1}')
    a.label('Q_u0')
    a('s_waitcnt lgkmcnt(0)\ns_barrier')
    a('s_cmp_eq_u32 s60, 0\ns_cbranch_scc1 Q_uw')
    look('c', True)
    a('s_waitcnt vmcnt(0)')
    a(f'ds_write_b32 v{CV}, v{C1}')
    a.label('Q_uw')
    gwait(a, 0, 1, 2)
    stamp(a, 4)
    if CONV_PRIO: a('s_setprio 1')
    SC = 4; sc = [0]
    def sarr():
        a('s_waitcnt lgkmcnt(0)'); garrive(a, SC); sc[0] += 4
    Y0, Y1 = 176, 192
    FR = 32; NBUF = 4
    def boff(n): return (n // 2) * 80 + (n % 2) * 32
    def ld(t):
        b = FR + 16 * (t % NBUF); ao = 32*(31-t)
        return [f'ds_read_b64 {v(b,2)}, v218 offset:{ao + 2048}',
                f'ds_read_b64 {v(b+2,2)}, v218 offset:{ao + 2056}',
                f'ds_read_b128 {v(b+4,4)}, v219 offset:{boff(31-t)}',
                f'ds_read_b128 {v(b+8,4)}, v219 offset:{boff(31-t) + 2560}',
                f'ds_read_b64 {v(b+12,2)}, v218 offset:{ao}',
                f'ds_read_b64 {v(b+14,2)}, v218 offset:{ao + 8}']
    def mm(t, first):
        b = FR + 16 * (t % NBUF)
        return [f'v_mfma_f32_32x32x16_bf16 {v(Y0,16)}, {v(b,4)}, {v(b+4,4)}, {"0" if first else v(Y0,16)}',
                f'v_mfma_f32_32x32x16_bf16 {v(Y1,16)}, {v(b,4)}, {v(b+8,4)}, {"0" if first else v(Y1,16)}',
                f'v_mfma_f32_32x32x16_bf16 {v(Y1,16)}, {v(b+12,4)}, {v(b+4,4)}, {v(Y1,16)}']
    for l in ld(0) + ld(1): a(l)
    t_ = Asm(); ssm_epi_setup(t_)
    t_(f's_mul_i32 s36, s29, {PSRC}\ns_add_u32 s36, s36, {L_PART}\nv_lshl_add_u32 v216, v1, 4, s36')
    fillA = [[l] for l in t_.lines]
    su, fillB = att_pre_groups()
    fillA += su + tail_setup()
    T0 = CONV_T0
    def take(q, k):
        for _ in range(k):
            if q:
                for l in q.pop(0): a(l)
    if T0 >= 32: fillB = []
    perA = -(-len(fillA) // (3*min(T0, 30))); perB = -(-len(fillB) // (3*max(30 - T0, 1)))
    for t in range(32):
        if t == T0:
            gwait(a, 12, 1, 2)
        else:
            a(f's_waitcnt lgkmcnt({6 if t < 31 else 0})')
        L = ld(t + 2) if t + 2 < 32 else []
        M = mm(t, t == 0)
        q, per = (fillA, perA) if t < T0 else (fillB, perB)
        a(M[0])
        for l in L[:2]: a(l)
        take(q, per)
        a(M[1])
        for l in L[2:4]: a(l)
        take(q, per)
        a(M[2])
        for l in L[4:]: a(l)
        take(q, per)
    assert not fillA and not fillB
    a('s_setprio 1')
    for own in range(8):
        a(f'ds_write_b128 v216, {v(Y0 + 4*own, 4)} offset:{own*POWN}')
    sarr()
    if T0 < 32: emit_groups(a, att_zero())
    gwait(a, SC, sc[0], 2)
    stamp(a, 9 if T0 >= 32 else 5)
    ssm_epi_reads(a)
    sarr()
    ssm_epi(a)
    gwait(a, SC, sc[0], 2)
    a('s_branch L_att' if T0 < 32 else 's_branch Q_w1')
    a.label('Q_udma')
    udma()
    a('s_mov_b32 s60, 0\ns_setpc_b64 s[96:97]')

def comp_waves(a):
    XF = 64; ACC = {K_: 176, V_: 192, Q_: 208}; WB = [[8 + 4*i for i in range(8)], [224 + 4*i for i in range(4)] + [40 + 4*i for i in range(4)]]
    a(f"""
    s_sub_u32 s28, s24, 7
    s_cmp_ge_u32 s24, 7
    s_cselect_b32 s27, s28, s24            ; rho
    s_lshl_b32 s30, s29, 4
    v_add_u32 v5, s30, v3
    v_lshrrev_b32 v6, 1, v5
    v_and_b32 v6, 7, v6
    v_xor_b32 v6, v6, v4
    v_lshlrev_b32 v6, 4, v6
    s_lshl_b32 s30, s26, 6
    v_add_u32 v7, s30, v5
    v_mul_u32_u24 v7, 896, v7
    v_add_u32 v244, v7, v6
    v_xor_b32 v6, 64, v6
    v_add_u32 v245, v7, v6
    v_add_u32 v245, 7168, v245
    v_lshrrev_b32 v6, 1, v5
    v_and_b32 v6, 1, v6
    v_lshlrev_b32 v6, 2, v6
    v_xor_b32 v6, v6, v4
    v_lshlrev_b32 v6, 4, v6
    v_mul_u32_u24 v7, 2688, v5
    v_add_u32 v246, v7, v6
    s_lshl_b32 s30, s25, 7
    v_add_u32 v246, s30, v246
    v_add_u32 v247, 21504, v246
    s_lshl_b32 s32, s29, 11
    s_lshl_b32 s40, s27, 7
    s_mul_i32 s48, s27, {64*2688}
    s_waitcnt lgkmcnt(0)
    """)
    srd(a, 8, P_X, S * D * 2)
    srd(a, 4, P_W, D * 3 * D * 2)
    def issue(j):
        o = []
        for half, (kind, i) in enumerate(stages[j]):
            base = RING0 + slot_of(j) * SLOT + half * 8192
            for e in range(2):
                g = [f's_add_u32 m0, s32, {base + e*1024}']
                if kind == 'x':
                    g.append(f'buffer_load_dwordx4 v{244+e}, s[8:11], s{40+i} offen {XMOD} lds')
                else:
                    so = f's{48+i}'
                    if kind:
                        so = 's37'
                        if e == 0: g.append(f's_add_u32 s37, s{48+i}, {kind*896}')
                    g.append(f'buffer_load_dwordx4 v{246+e}, s[4:7], {so} offen lds')
                o.append(g)
        return o
    vm = []
    def waitfor(tag):
        last = max(i for i, t in enumerate(vm) if t == tag)
        a(f's_waitcnt vmcnt({len(vm) - 1 - last})')
    def em(l, tag='st'):
        a(l)
        if l.startswith('buffer_'): vm.append(tag)
    def issue_now(j):
        for g in issue(j):
            for l in g: em(l, j)
    issue_now(0)
    for i in range(1, 7):
        if i == 3: issue_now(1)
        a(f's_add_u32 s27, s27, 1\ns_cmp_eq_u32 s27, 7\ns_cselect_b32 s27, 0, s27\ns_lshl_b32 s{40+i}, s27, 7\ns_mul_i32 s{48+i}, s27, {64*2688}')
    srd(a, 16, P_WS, WS_END)
    srd(a, 12, P_OUT, S * 2 * D * 2)
    a(f"""
    v_lshlrev_b32 v6, 3, v0
    v_sub_u32 v6, 2047, v6
    v_mov_b32 v17, {L_T2}
    v_mov_b32 v18, {TP}
    v_lshlrev_b32 v19, 4, v0
    v_add_u32 v19, {L_TAB}, v19
    s_mov_b32 s36, 0
    """)
    a.label('Q_tab')
    for i in (0, 2):
        a(f"""
        v_subrev_u32 v7, {i}, v6
        v_subrev_u32 v8, {i+1}, v6
        v_cvt_f32_i32 v2, v7
        v_cvt_f32_i32 v5, v8
        v_cvt_pk_bf16_f32 v2, v2, v5
        v_and_b32 v5, 0xffff0000, v2
        v_lshlrev_b32 v2, 16, v2
        v_cvt_i32_f32 v2, v2
        v_cvt_i32_f32 v5, v5
        v_and_b32 v7, 7, v2
        v_and_b32 v8, 7, v5
        v_ashrrev_i32 v2, 3, v2
        v_ashrrev_i32 v5, 3, v5
        v_mad_u32_u24 v2, v7, v18, v2
        v_mad_u32_u24 v5, v8, v18, v5
        v_lshl_add_u32 v{64+i}, v2, 1, v17
        v_lshl_add_u32 v{65+i}, v5, 1, v17
        """)
    a(f"""
    ds_write_b128 v19, v[64:67]
    v_add_u32 v19, 4096, v19
    v_subrev_u32 v6, 4, v6
    s_add_u32 s36, s36, 1
    s_cmp_lt_u32 s36, 3
    s_cbranch_scc1 Q_tab
    v_and_b32 v17, 15, v1
    """)
    ix = lambda p: (p & 7) * TP + (p >> 3)
    def pk(b, s1, s2): assert b < 4096 and s1 < 1024 and s2 < 1024; return b | (s1 << 12) | (s2 << 22)
    t0 = [pk(0, TP, 2*TP), pk(4*TP, TP, 2*TP), None, None]
    a('s_cmp_eq_u32 s63, 0')
    ptab = {0: [[0,1,2,3],[4,5,6,7],[256,258,260,262],[512,516,768,772]],
            1: [[1024,1280,1536,1792],[2048,2304,2304,2304],[2304]*4,[2304]*4]}
    for g in range(4):
        lo = lambda at: ix(ptab[at][g][0]) | (ix(ptab[at][g][1]) << 16)
        hi = lambda at: ix(ptab[at][g][2]) | (ix(ptab[at][g][3]) << 16)
        a(f's_mov_b32 exec_lo, {0xffff << (16*(g%2)) if g < 2 else 0}')
        a(f's_mov_b32 exec_hi, {0xffff << (16*(g%2)) if g >= 2 else 0}')
        a(f's_mov_b32 s36, {lo(1)}\ns_cselect_b32 s36, {lo(0)}, s36\nv_mov_b32 v68, s36')
        a(f's_mov_b32 s36, {hi(1)}\ns_cselect_b32 s36, {hi(0)}, s36\nv_mov_b32 v70, s36')
    a(f"""
    s_mov_b64 exec, -1
    s_lshl_b32 s36, s61, 5
    s_add_u32 s36, s36, {L_T2}
    v_lshl_add_u32 v18, v17, 1, s36
    v_lshrrev_b32 v69, 16, v68
    v_lshrrev_b32 v71, 16, v70
    v_and_b32 v68, 0xffff, v68
    v_and_b32 v70, 0xffff, v70
    v_lshl_add_u32 v68, v68, 1, v18
    v_lshl_add_u32 v69, v69, 1, v18
    v_lshl_add_u32 v70, v70, 1, v18
    v_lshl_add_u32 v71, v71, 1, v18
    ds_write_b128 v19, v[68:71]
    s_and_b32 s27, s3, 1                   ; rt
    s_lshr_b32 s30, s3, 1                  ; cg
    v_and_b32 v3, 31, v1
    v_lshrrev_b32 v4, 5, v1
    s_lshl_b32 s31, s27, 5
    v_add_u32 v5, s31, v3
    v_lshrrev_b32 v6, 1, v5
    v_and_b32 v6, 7, v6
    v_lshlrev_b32 v7, 7, v5
    v_add_u32 v7, {RING0}, v7
    """)
    for st in range(4):
        a(f"""
        v_add_u32 v{56+st}, {2*st}, v4
        v_xor_b32 v{56+st}, v{56+st}, v6
        v_lshl_add_u32 v{56+st}, v{56+st}, 4, v7
        """)
    a(f"""
    v_and_b32 v6, 3, v1
    v_lshlrev_b32 v6, 3, v6
    v_bfe_u32 v7, v1, 4, 1
    v_lshl_add_u32 v6, v7, 5, v6
    s_lshl_b32 s31, s30, 6
    v_add_u32 v6, s31, v6
    v_bfe_u32 v7, v1, 3, 1
    v_lshlrev_b32 v7, 6, v7
    v_xor_b32 v6, v6, v7
    v_bfe_u32 v7, v1, 2, 2
    v_lshl_add_u32 v7, v4, 3, v7
    v_lshl_add_u32 v60, v7, 7, v6
    v_add_u32 v60, {RING0}, v60
    s_lshl_b32 s31, s26, 1
    s_add_u32 s31, s31, s27
    s_mul_i32 s31, s31, {TILEB}
    s_lshl_b32 s33, s25, 3
    s_lshl_b32 s34, s30, 2
    s_add_u32 s33, s33, s34
    s_lshl_b32 s34, s33, 9
    s_add_u32 s34, s34, s31
    v_lshlrev_b32 v61, 4, v1
    v_add_u32 v61, s34, v61
    s_lshl_b32 s34, s33, 7
    s_add_u32 s34, s34, s31
    v_mul_u32_u24 v62, 7168, v4
    v_lshl_add_u32 v62, v3, 4, v62
    v_add_u32 v62, s34, v62
    s_mov_b32 s35, {f32bits(QSCALE)}
    s_lshl_b32 s60, s25, {FS+5}
    s_lshl_b32 s61, s26, {FS}
    s_add_u32 s60, s60, s61
    s_lshl_b32 s61, s3, 2
    s_add_u32 s60, s60, s61
    s_add_u32 s60, s60, {F1}
    """)
    if PRE_ST >= 3: issue_now(2)
    a('s_waitcnt lgkmcnt(0)')
    stamp(a, 13)
    def reads(j):
        sb = slot_of(j) * SLOT
        n = 0; o = []
        for half, (kind, i) in enumerate(stages[j]):
            base = sb + half * 8192
            if kind == 'x':
                for st in range(4):
                    o.append(f'ds_read_b128 {v(XF + 16*i + 4*st, 4)}, v{56 + st} offset:{base}')
            else:
                for st in range(4):
                    r = WB[j % 2][n]; n += 1
                    for e in range(2):
                        o.append(f'ds_read_b64_tr_b16 {v(r + 2*e, 2)}, v60 offset:{base + (16*st + 4*e)*128}')
        return o
    started = set()
    def epilogue(kind):
        acc = ACC[kind]; out = []
        if kind == Q_:
            for r in range(16): out.append(f'v_mul_f32 v{acc+r}, s35, v{acc+r}')
        for r in range(8): out.append(f'v_cvt_pk_bf16_f32 v{acc+r}, v{acc+2*r}, v{acc+2*r+1}')
        T = acc
        if kind == V_:
            out.append(f's_mov_b32 s36, {WS_V}')
            out.append(f'buffer_store_dwordx4 {v(T,4)}, v62, s[16:19], s36 offen sc1')
            out.append(f's_mov_b32 s36, {WS_V + 2*7168}')
            out.append(f'buffer_store_dwordx4 {v(T+4,4)}, v62, s[16:19], s36 offen sc1')
        else:
            for q in range(2):
                out.append(f'v_permlane32_swap_b32 v{T+4*q}, v{T+4*q+2}')
                out.append(f'v_permlane32_swap_b32 v{T+4*q+1}, v{T+4*q+3}')
            out.append(f's_mov_b32 s36, {WS_Q if kind == Q_ else WS_K}')
            out.append(f'buffer_store_dwordx4 {v(T,4)}, v61, s[16:19], s36 offen sc1')
            out.append(f'buffer_store_dwordx4 {v(T+4,4)}, v61, s[16:19], s36 offen offset:1024 sc1')
        return out
    def mlist(j):
        n = 0; done = []; o = []
        for half, (kind, i) in enumerate(stages[j]):
            if kind == 'x': continue
            acc = ACC[kind]
            for st in range(4):
                w = WB[j % 2][n]; n += 1
                x = XF + 16*i + 4*st
                c = v(acc, 16) if kind in started else '0'
                started.add(kind)
                if kind == V_: o.append(f'v_mfma_f32_32x32x16_bf16 {v(acc,16)}, {v(x,4)}, {v(w,4)}, {c}')
                else:          o.append(f'v_mfma_f32_32x32x16_bf16 {v(acc,16)}, {v(w,4)}, {v(x,4)}, {c}')
            if i == 6: done.append(kind)
        return o, done
    def weave(ms, rd, fill, dm, tag):
        nm = len(ms)
        slots = max(nm, 4)
        per = -(-len(rd) // max(slots - 2, 1))
        fper = -(-len(fill) // max(nm - 2, 1))
        dstep = slots // 4
        for k in range(slots):
            if k < nm: a(ms[k])
            if dm and k % dstep == 0:
                for l in dm.pop(0): em(l, tag)
            for _ in range(per):
                if rd: a(rd.pop(0))
            if k >= 2:
                for _ in range(fper):
                    if fill: em(fill.pop(0))
        for l in rd + fill: em(l)
    pending = []; carry = []
    for j in range(NST):
        waitfor(j)
        a('s_barrier')
        if j == 0: stamp(a, 1)
        if 'gemmonly' in DBG and j in (1,2,4,6,8,10,11,12,13): stamp(a, 3 + (1,2,4,6,8,10,11,12,13).index(j))
        rd = reads(j); ms = []; fill = carry; carry = []
        if j == 5: rd.append(f'ds_read_b32 v253, v{CV} offset:8')
        if j > 0:
            for k in pending: fill += epilogue(k)
            ms, pending = mlist(j - 1)
        if j == 0 and PRE_ST < 3: issue_now(2)
        dm = issue(j + DEPTH) if j + DEPTH < NST else []
        if dm:
            k = next((i for i, l in enumerate(fill) if l.startswith(('buffer_', 's_mov_b32 s36'))), len(fill))
            carry = fill[k:]; fill = fill[:k]
        if len(fill) > FILL_MAX and j < NST - 1:
            carry = fill[FILL_MAX:] + carry; fill = fill[:FILL_MAX]
        weave(ms, rd, fill, dm, j + DEPTH)
        a('s_waitcnt lgkmcnt(0)')
    fill = carry
    for k in pending: fill += epilogue(k)
    ms, pending = mlist(NST - 1)
    weave(ms, [], fill, [], None)
    for k in pending:
        for l in epilogue(k): a(l)
    stamp(a, 2)
    if 'gemmonly' in DBG: a('s_branch P_fin')
    sc_, ve_, lds_ = att_split()
    FL = 252
    a('v_readfirstlane_b32 s20, v253')
    gtabs(a)
    kmaddr(a, 0)
    att_poll_addr(a, FL)
    a('s_waitcnt lgkmcnt(0)\ns_barrier')
    stamp(a, 3)
    km = kmfma(); cut = int(len(km) * SIG_CUT)
    for l in km[:cut]: a(l)
    a('s_waitcnt vmcnt(0)')
    signal(a, 60, 2, 3)
    for l in km[cut:]: a(l)
    a('s_barrier')
    stamp(a, 14)
    gbuild(a, 0, (0, 1, 2, 3))
    a('s_waitcnt lgkmcnt(0)\ns_barrier')
    stamp(a, 4)
    emit_groups(a, sc_ + ve_ + tail_setup())
    a('s_setprio 2')
    a('s_cmp_lg_u32 s3, 0\ns_cbranch_scc1 Q_w1')
    poll(a, 'PL_f1', FL, 244, x4=True, sleep=A_SLEEP)
    a.label('Q_w0')
    a(f'ds_write_b32 v{CV}, v{C1} offset:12')
    a('s_branch L_pre')
    a.label('Q_w1')
    gwait(a, 12, 1, 2)
    a.label('L_pre')
    stamp(a, 5)
    emit_groups(a, lds_[:10] + att_zero())
    att_first(a, 4)
    emit_groups(a, lds_[10:])
    a('s_setprio 0')
    a('s_branch L_att2')

EB = 176
EA = EB + 56
ET = 96
def ssm_epi_setup(a):
    a(f"""
    v_and_b32 v{ET}, 1, v1                      ; ch
    v_bfe_u32 v{ET+1}, v1, 1, 2                 ; j
    v_lshrrev_b32 v{ET+2}, 3, v1
    v_mul_u32_u24 v{ET+3}, {POWN}, v{ET+1}
    v_mul_u32_u24 v{ET+4}, {PSRC}, v{ET}
    v_add_u32 v{ET+3}, v{ET+3}, v{ET+4}
    v_lshl_add_u32 v{ET+3}, v{ET+2}, 4, v{ET+3}
    s_lshl_b32 s60, s29, 7
    s_add_u32 s36, s60, {L_PART}
    v_add_u32 v{EA}, s36, v{ET+3}
    v_mul_u32_u24 v{ET+2}, 80, v{ET+2}
    v_lshl_add_u32 v{ET+2}, v{ET+1}, 4, v{ET+2}
    v_mul_u32_u24 v{ET+4}, {UCH}, v{ET}
    v_add_u32 v{ET+2}, v{ET+2}, v{ET+4}
    s_mul_i32 s36, s29, 640
    s_add_u32 s36, s36, {L_U + 32*80}
    v_add_u32 v{EA+1}, s36, v{ET+2}             ; u chunk
    s_lshl_b32 s36, s21, 13
    s_lshl_b32 s60, s29, 10
    s_add_u32 s36, s36, s60
    s_add_u32 s36, s36, {WS_YT}
    v_lshl_add_u32 v{EA+2}, v1, 4, s36
    s_lshl_b32 s60, s39, 16
    s_and_b32 s61, s39, 0xffff0000
    v_mov_b32 v{EA+3}, s60
    v_mov_b32 v{ET+4}, s61
    v_cmp_eq_u32 vcc, 1, v{ET}
    v_cndmask_b32 v{EA+3}, v{EA+3}, v{ET+4}, vcc
    """)

def ssm_epi_reads(a):
    for p in range(2):
        E = EB + 28*p; o = p*4*POWN
        a(f"""
        ds_read_b128 {v(E,4)}, v{EA} offset:{o}
        ds_read_b128 {v(E+4,4)}, v{EA} offset:{o+512}
        ds_read_b128 {v(E+8,4)}, v{EA} offset:{o+2*PSRC}
        ds_read_b128 {v(E+12,4)}, v{EA} offset:{o+2*PSRC+512}
        ds_read_b128 {v(E+16,4)}, v{EA+1} offset:{p*2560}
        """)

def ssm_epi(a):
    a('s_mov_b32 s36, 4096')
    for p in range(2):
        A = EB + 28*p; B = A + 8; U = A + 16; C = A + 20
        for e in range(8): a(f'v_add_f32 v{A+e}, v{A+e}, v{B+e}')
        for e in range(4):
            a(f'v_lshlrev_b32 v{C+2*e}, 16, v{U+e}')
            a(f'v_and_b32 v{C+1+2*e}, 0xffff0000, v{U+e}')
        for e in range(8): a(f'v_mul_f32 v{C+e}, v{EA+3}, v{C+e}')
        for e in range(4):
            a(f'v_cvt_pk_bf16_f32 v{B+e}, v{A+2*e}, v{A+1+2*e}')
            a(f'v_cvt_pk_bf16_f32 v{B+4+e}, v{C+2*e}, v{C+1+2*e}')
        for e in range(4):
            a(f'v_lshlrev_b32 v{A+2*e}, 16, v{B+e}')
            a(f'v_and_b32 v{A+1+2*e}, 0xffff0000, v{B+e}')
            a(f'v_lshlrev_b32 v{C+2*e}, 16, v{B+4+e}')
            a(f'v_and_b32 v{C+1+2*e}, 0xffff0000, v{B+4+e}')
        for e in range(8): a(f'v_add_f32 v{A+e}, v{A+e}, v{C+e}')
        for e in range(4): a(f'v_cvt_pk_bf16_f32 v{B+e}, v{A+2*e}, v{A+1+2*e}')
        a(f'buffer_store_dwordx4 {v(B,4)}, v{EA+2}, s[16:19], {"s36" if p else "0"} offen sc1')

def att_ids(a):
    if AMAP == 0:
        a("""
        s_lshl_b32 s40, s22, 1
        s_and_b32 s41, s23, 1
        s_add_u32 s40, s40, s41                ; head
        s_lshr_b32 s41, s23, 1                 ; rbq
        s_mov_b32 s99, s41
        """)
    elif AMAP == 1:
        a("""
        s_lshl_b32 s41, s22, 1
        s_and_b32 s40, s23, 1
        s_lshl_b32 s99, s40, 3
        s_add_u32 s41, s41, s40                ; rbq
        s_lshr_b32 s40, s23, 1                 ; head
        """)
    a("""
    s_mul_i32 s42, s40, 7
    s_lshr_b32 s42, s42, 1                 ; chi0
    """)

def att_poll_addr(a, r):
    att_ids(a)
    a(f"""
    s_lshr_b32 s43, s42, 3
    s_add_u32 s44, s42, 3
    s_lshr_b32 s44, s44, 3
    s_lshl_b32 s43, s43, {FS+5}
    s_lshl_b32 s44, s44, {FS+5}
    v_mov_b32 v{r}, s43
    v_mov_b32 v{r+1}, s44
    v_cmp_lt_u32 vcc, 31, v1
    v_cndmask_b32 v{r}, v{r}, v{r+1}, vcc
    v_and_b32 v{r+1}, 31, v1
    v_lshl_add_u32 v{r}, v{r+1}, {FS}, v{r}
    v_add_u32 v{r}, {F1}, v{r}
    """)

def att_poll(a, name):
    att_poll_addr(a, 16)
    poll(a, name, 16, 20, x4=True, sleep=8)

OL = 120 * 1024; YL = 152 * 1024; RED = 96 * 1024
NB = 4
QF = 16; OA = 32; SB = 64; PB = 96; KB = 112; VB = KB + 8*NB
def advK(a):
    a(f's_add_u32 s33, s33, {TILEB}')
    a('s_cmp_eq_u32 s33, s55')
    a('s_cselect_b32 s33, s54, s33')
def loadK(a, n):
    a(f'buffer_load_dwordx4 {v(KB+8*n,4)}, v3, s[16:19], s33 offen')
    a(f'buffer_load_dwordx4 {v(KB+8*n+4,4)}, v3, s[16:19], s33 offen offset:1024')
def loadV(a, n):
    a('s_mov_b64 exec, s[46:47]')
    a(f'buffer_load_dwordx4 {v(VB+8*n,4)}, v4, s[16:19], s33 offen')
    a(f'buffer_load_dwordx4 {v(VB+8*n+4,4)}, v7, s[16:19], s33 offen')
    a('s_mov_b64 exec, -1')

def att_pre_groups():
    def G(fn, *args):
        t = Asm(); fn(t, *args); return t.lines
    def singles(txt): return [[l] for l in lines(txt)]
    p1 = [[l] for l in G(att_ids)]
    p1 += singles(f"""
    s_and_b32 s24, s3, 1                   ; qg
    s_lshr_b32 s27, s3, 1
    s_cmp_lt_u32 s23, 28
    s_cselect_b32 s34, {NA}, 16
    s_sub_u32 s35, 32, s34
    s_min_u32 s54, s27, 2
    s_mul_i32 s54, s54, s34
    s_cmp_eq_u32 s27, 3
    s_cselect_b32 s55, s35, 0
    s_add_u32 s54, s54, s55
    s_cmp_lt_u32 s3, 4
    s_cselect_b32 s34, s34, s35
    s_lshr_b32 s35, s34, 2
    s_lshl_b32 s96, s42, 9
    v_lshl_add_u32 v3, v1, 4, s96          ; Q/K voffset
    s_lshl_b32 s28, s41, 2
    s_lshl_b32 s31, s24, 1
    s_add_u32 s28, s28, s31
    s_mul_i32 s31, s28, {TILEB}
    s_add_u32 s31, s31, {WS_Q}
    s_add_u32 s30, s31, {TILEB}
    s_mul_i32 s54, s54, {TILEB}
    s_add_u32 s54, s54, {WS_K}
    s_mul_i32 s55, s34, {TILEB}
    s_add_u32 s55, s55, s54
    s_mul_i32 s33, s99, s34
    s_lshr_b32 s33, s33, 4
    s_mul_i32 s33, s33, {TILEB}
    s_add_u32 s33, s33, s54
    buffer_load_dwordx4 {v(QF,4)}, v3, s[16:19], s31 offen
    buffer_load_dwordx4 {v(QF+4,4)}, v3, s[16:19], s31 offen offset:1024
    """)
    p1 += [[l] for l in G(loadK, 0)]
    p1 += singles(f"""
    buffer_load_dwordx4 {v(QF+8,4)}, v3, s[16:19], s30 offen
    buffer_load_dwordx4 {v(QF+12,4)}, v3, s[16:19], s30 offen offset:1024
    v_and_b32 v5, 31, v1
    v_lshrrev_b32 v6, 5, v1
    v_mul_u32_u24 v4, 7168, v6
    v_lshl_add_u32 v4, v5, 4, v4
    s_mul_i32 s97, s40, 448
    s_add_u32 s97, s97, {WS_V - WS_K}
    v_add_u32 v4, s97, v4
    v_add_u32 v7, 14336, v4
    s_mov_b32 s46, 0x0fffffff
    s_mov_b32 s47, 0x0fffffff
    """)
    p2 = []
    for n in range(NB):
        dst = p1 if n == 0 else p2
        if n == 0:
            dst += [['v_cmp_eq_u32 vcc, 28, v5'], ['v_mov_b32 v12, 0x3f803f80'], ['v_cndmask_b32 v12, 0, v12, vcc'], ['v_mov_b32 v13, v12']]
        dst += [[f'v_mov_b64 {v(VB+8*n+r,2)}, v[12:13]'] for r in range(0, 8, 2)]
        if n < NB - 1:
            dst += [G(loadV, n), G(advK)] + [[l] for l in G(loadK, n + 1)]
    p2 += [[l] for l in G(srd, 8, P_WO, D * D * 2)]
    p2 += singles(f"""
    s_lshr_b32 s52, s40, 2
    s_lshl_b32 s53, s41, 2
    s_add_u32 s52, s52, s53
    s_and_b32 s53, s40, 3                  ; cg4
    v_lshrrev_b32 v8, 4, v1
    v_and_b32 v9, 15, v1
    v_lshlrev_b32 v10, 2, v8
    v_xor_b32 v9, v9, v10
    v_lshlrev_b32 v9, 4, v9
    v_mul_u32_u24 v8, 896, v8
    v_add_u32 v8, v8, v9
    s_lshl_b32 s98, s53, 8
    v_add_u32 v8, s98, v8
    s_lshl_b32 s51, s3, 10
    s_mul_i32 s50, s3, 3584
    s_sub_u32 s35, s35, 1
    s_and_b32 s49, s40, 1
    s_cmp_eq_u32 s49, 0
    s_cselect_b32 s43, -1, 0
    s_mov_b32 s42, 0
    s_cselect_b32 s44, 0, -1
    s_mov_b32 s45, 0
    s_lshl_b32 s32, s21, 4
    s_and_b32 s49, s3, 3
    s_lshl_b32 s49, s49, 2
    s_add_u32 s32, s32, s49
    s_add_u32 s32, s32, {F3}
    s_cmp_lt_u32 s23, 28
    s_cselect_b32 s32, s32, {WS_END}
    s_mov_b32 s37, 0
    """)
    allg = p1 + p2
    isld = lambda g: any(l.startswith('buffer_') for l in g) or g[0].startswith(f's_add_u32 s33, s33, {TILEB}')
    setup = [g for g in allg if not isld(g)]
    loads = [g for g in allg if isld(g)]
    return setup, loads

def tail_setup():
    return [[l] for l in lines(f"""
    s_lshl_b32 s36, s24, 14
    s_add_u32 s36, s36, {RED}
    s_lshr_b32 s38, s27, 1
    s_lshl_b32 s38, s38, 15
    s_and_b32 s39, s27, 1
    s_lshl_b32 s39, s39, 11
    s_add_u32 s38, s38, s39
    s_add_u32 s38, s38, s36
    v_lshl_add_u32 v240, v1, 4, s38
    s_lshl_b32 s38, s27, 12
    s_add_u32 s38, s38, s36
    v_lshl_add_u32 v241, v1, 4, s38
    s_or_b32 s38, s27, 1
    s_lshl_b32 s38, s38, 12
    s_add_u32 s38, s38, s36
    s_add_u32 s38, s38, {1024 + 512}
    v_lshl_add_u32 v242, v5, 4, s38
    v_lshlrev_b32 v243, 13, v6
    v_lshl_add_u32 v243, v5, 4, v243
    v_add_u32 v243, {RED + 4096 + 1024 + 512}, v243
    s_and_b32 s36, s27, 1
    s_cmp_eq_u32 s36, 1
    s_cselect_b32 s101, -1, 0
    s_mov_b32 s100, 0
    s_lshr_b32 s38, s27, 1
    s_add_u32 s38, s38, s28
    s_lshl_b32 s38, s38, 15
    s_lshl_b32 s39, s40, 11
    s_add_u32 s38, s38, s39
    s_lshl_b32 s39, s36, 10
    s_add_u32 s38, s38, s39
    s_add_u32 s63, s38, {WS_O}
    s_lshl_b32 s36, s25, 9
    s_add_u32 s36, s36, {F3}
    v_lshl_add_u32 v238, v5, 4, s36
    v_lshrrev_b32 v239, 1, v1
    v_lshlrev_b32 v239, 13, v239
    v_and_b32 v237, 1, v1
    v_lshl_add_u32 v239, v237, 4, v239
    s_lshl_b32 s93, s25, 18
    s_lshl_b32 s36, s26, 8
    s_add_u32 s93, s93, s36
    s_and_b32 s36, s3, 3
    s_lshl_b32 s36, s36, 6
    s_add_u32 s93, s93, s36
    s_add_u32 s93, s93, {WS_YT}
    """)]

def att_split():
    su, ld = att_pre_groups()
    sc = [g for g in su if g[0].startswith('s_')]
    ve = [g for g in su if not g[0].startswith('s_')]
    return sc, ve, ld

def emit_groups(a, gs):
    for g in gs:
        for l in g: a(l)

def att_zero():
    return [[f'v_mov_b64 {v(OA+r,2)}, 0'] for r in range(0, 32, 2)] + [[f'v_mov_b64 {v(PB+8+r,2)}, 0'] for r in range(0, 8, 2)] + [[f'v_mov_b64 {v(SB+28+r,2)}, 0'] for r in range(0, 4, 2)]

def att_first(a, nout):
    a(f"""
    s_waitcnt vmcnt({nout})
    s_mov_b64 exec, s[42:43]
    v_mov_b32 v{QF+6}, 0
    v_mov_b32 v{QF+7}, 0
    v_mov_b32 v{QF+14}, 0
    v_mov_b32 v{QF+15}, 0
    s_mov_b64 exec, s[44:45]
    v_mov_b32 v{QF+0}, 0
    v_mov_b32 v{QF+1}, 0
    v_mov_b32 v{QF+8}, 0
    v_mov_b32 v{QF+9}, 0
    s_mov_b64 exec, -1
    v_mfma_f32_32x32x16_bf16 {v(SB,16)}, {v(KB,4)}, {v(QF,4)}, 0
    v_mfma_f32_32x32x16_bf16 {v(SB,16)}, {v(KB+4,4)}, {v(QF+4,4)}, {v(SB,16)}
    """)

def ph_att(a):
    a.label('L_att')
    att_first(a, 4*(NB-1))
    a('s_nop 9')
    a.label('L_att2')
    a('v_lshlrev_b32 v2, 4, v1')
    a(f's_cmp_{PRIO_CMP}_u32 s3, 4\ns_cbranch_scc1 A_noprio\ns_setprio 1')
    a.label('A_noprio')
    stamp(a, 6)
    a('.p2align 6')
    def iteration(last):
        vm = [-3]*4 + [-2]*4 + [-1]*4
        nwo = [0]
        def wo():
            r = nwo[0]; nwo[0] += 1
            return [f's_add_u32 m0, s51, {r*8192}', f's_add_u32 s48, s50, {r*28672}', 'buffer_load_dwordx4 v8, s[8:11], s48 offen lds']
        for u in range(2*NB):
            t = u % 2
            kn = ((u + 1) // 2) % NB
            vn = ((u - 1) // 2) % NB
            Sn = SB + 16*((u+1) % 2); Sc = SB + 16*(u % 2)
            Pc = PB + 8*(u % 2); Pp = PB + 8*((u+1) % 2)
            Qn = QF + 8*(1-t); On = OA + 16*(1-t)
            ins = {}
            if u % 2 == 1:
                j = (u - 1) // 2
                t1 = Asm(); loadV(t1, (j - 1) % NB); t2 = Asm(); advK(t2); t3 = Asm(); loadK(t3, j % NB)
                if not last:
                    a(f's_waitcnt vmcnt({4*(NB-2)})')
                    ins = {(0, 1): t1.lines, (1, 1): t2.lines, (2, 1): t3.lines[:1], (3, 1): t3.lines[1:]}
                else:
                    need = max(i for i, x in enumerate(vm) if x == j - 3)
                    a(f's_waitcnt vmcnt({len(vm) - 1 - need})')
                    if j == 0: ins[(0, 1)] = t1.lines
            if last and u >= 1 and 'nowo' not in DBG:
                for g in (1, 3):
                    if nwo[0] < 12: ins[(g, 1)] = wo()
            if last and u == PRIO_U: a('s_setprio 0')
            M = [f'v_mfma_f32_32x32x16_bf16 {v(Sn,16)}, {v(KB+8*kn,4)}, {v(Qn,4)}, 0',
                 f'v_mfma_f32_32x32x16_bf16 {v(Sn,16)}, {v(KB+8*kn+4,4)}, {v(Qn+4,4)}, {v(Sn,16)}',
                 f'v_mfma_f32_32x32x16_bf16 {v(On,16)}, {v(VB+8*vn,4)}, {v(Pp,4)}, {v(On,16)}',
                 f'v_mfma_f32_32x32x16_bf16 {v(On,16)}, {v(VB+8*vn+4,4)}, {v(Pp+4,4)}, {v(On,16)}']
            M = [M[2], M[0], M[1], M[3]]
            if last and u == 2*NB - 1: M[1] = M[2] = None
            for g in range(4):
                if M[g]: a(M[g])
                for e in range(4):
                    a(f'v_exp_f32 v{Sc+4*g+e}, v{Sc+4*g+e}')
                    for l in ins.get((g, e), []):
                        a(l)
                        if l.startswith('buffer_'): vm.append('w' if 'lds' in l else 0)
                    if e in (0, 2):
                        h = e // 2
                        if g > 0: a(f'v_cvt_pk_bf16_f32 v{Pc+2*(g-1)+h}, v{Sc+4*(g-1)+2*h}, v{Sc+4*(g-1)+2*h+1}')
                        else:     a(f'v_cvt_pk_bf16_f32 v{Pp+6+h}, v{Sn+12+2*h}, v{Sn+13+2*h}')
    a.label('A_loop')
    iteration(False)
    a(f"""
    s_add_u32 s37, s37, 1
    s_cmp_eq_u32 s37, s35
    s_cbranch_scc1 A_last
    s_cmp_lg_u32 s37, 1
    s_cbranch_scc1 A_loop
    s_cmp_lt_u32 s3, 4
    s_cbranch_scc1 A_loop
    """)
    signal(a, 32, 9, 10)
    a('s_branch A_loop')
    a.label('A_last')
    a(f's_cmp_eq_u32 s32, {WS_END}\ns_cbranch_scc1 A_l2\ns_cmp_lt_u32 s3, 4\ns_cbranch_scc1 A_l1')
    a('buffer_load_dwordx4 v[196:199], v238, s[16:19], 0 offen sc1')
    a('s_branch A_l2')
    a.label('A_l1')
    gwait(a, 4, 8, 9)
    a.label('A_l2')
    iteration(True)
    a.label('A_exit')
    a('s_setprio 0')
    stamp(a, 7)
    a(f'v_cvt_pk_bf16_f32 v{PB+14}, v{SB+28}, v{SB+29}')
    a(f'v_cvt_pk_bf16_f32 v{PB+15}, v{SB+30}, v{SB+31}')
    a(f'v_mfma_f32_32x32x16_bf16 {v(OA+16,16)}, {v(VB+8*(NB-1),4)}, {v(PB+8,4)}, {v(OA+16,16)}')
    a(f'v_mfma_f32_32x32x16_bf16 {v(OA+16,16)}, {v(VB+8*(NB-1)+4,4)}, {v(PB+12,4)}, {v(OA+16,16)}')
    a('s_mov_b32 s94, 0')
    a.label('A_red')
    for own in range(4):
        for q in range(2):
            a(f'ds_write_b128 v240, {v(OA + 8*own + 4*q, 4)} offset:{own*4096 + q*1024}')
    a('s_cmp_ge_u32 s23, 28\ns_cbranch_scc1 A_ny\ns_cmp_lt_u32 s3, 4\ns_cbranch_scc1 A_ny\ns_cmp_lg_u32 s94, 0\ns_cbranch_scc1 A_ny')
    for i in range(4): a(f'v_xor_b32 v{196+i}, s20, v{196+i}')
    a('v_or3_b32 v196, v196, v197, v198\nv_or_b32 v196, v196, v199\nv_cmp_ne_u32 vcc, 0, v196')
    a('s_add_u32 s92, s93, 32\ns_nop 3\ns_cbranch_vccz A_y')
    poll(a, 'PL_f3', 238, 196, x4=True)
    a.label('A_y')
    a('buffer_load_dwordx4 v[196:199], v239, s[16:19], s93 offen sc1')
    a('buffer_load_dwordx4 v[212:215], v239, s[16:19], s92 offen sc1')
    a.label('A_ny')
    a('s_waitcnt lgkmcnt(0)\ns_barrier')
    R = 64
    so = lambda src: (src >> 1) * 32768 + (src & 1) * 2048
    for src in range(4):
        a(f'ds_read_b32 v{12+src}, v242 offset:{so(src)}')
    for src in range(4):
        for q in range(2):
            a(f'ds_read_b128 {v(R + 8*src + 4*q, 4)}, v241 offset:{so(src) + q*1024}')
    a(f"""
    s_waitcnt lgkmcnt(8)
    v_add_f32 v12, v12, v13
    v_add_f32 v14, v14, v15
    v_add_f32 v12, v12, v14
    v_rcp_f32 v12, v12
    s_waitcnt lgkmcnt(0)
    """)
    a('v_cndmask_b32 v13, v12, 0, s[100:101]')
    for r in range(8):
        a(f'v_add_f32 v{R+r}, v{R+r}, v{R+8+r}')
        a(f'v_add_f32 v{R+16+r}, v{R+16+r}, v{R+24+r}')
    for r in range(8): a(f'v_add_f32 v{R+r}, v{R+r}, v{R+16+r}')
    for r in range(8): a(f'v_mul_f32 v{R+r}, v{R+r}, v{12 if r < 4 else 13}')
    for r in range(4): a(f'v_cvt_pk_bf16_f32 v{R+8+r}, v{R+2*r}, v{R+2*r+1}')
    a(f'buffer_store_dwordx4 {v(R+8,4)}, v2, s[16:19], s63 offen sc1')
    stamp(a, 8)
    for qg in range(2):
        for src in range(4):
            a(f'ds_read_b32 v{80+4*qg+src}, v243 offset:{qg*16384 + so(src)}')
    a(f"""
    s_mov_b32 s36, {f32bits(2.0**-30)}
    s_mov_b32 s37, {f32bits(2.0**40)}
    s_waitcnt lgkmcnt(0)
    v_add_f32 v80, v80, v81
    v_add_f32 v82, v82, v83
    v_add_f32 v84, v84, v85
    v_add_f32 v86, v86, v87
    v_add_f32 v80, v80, v82
    v_add_f32 v84, v84, v86
    v_cmp_nle_f32 vcc, s36, v80
    v_cmp_nge_f32 s[42:43], s37, v80
    v_cmp_nle_f32 s[44:45], s36, v84
    v_cmp_nge_f32 s[60:61], s37, v84
    s_or_b64 s[42:43], s[42:43], vcc
    s_or_b64 s[44:45], s[44:45], s[60:61]
    s_or_b64 s[42:43], s[42:43], s[44:45]
    s_cbranch_scc1 A_slow
    """)
    a.label('A_done')

def ph_slow(a):
    MX = 192
    a.label('A_slow')
    a(f"""
    s_cmp_lg_u32 s94, 0
    s_cbranch_scc1 A_done
    s_waitcnt vmcnt(0)
    s_barrier
    v_mov_b32 v{MX}, 0xff800000
    v_mov_b32 v{MX+1}, 0xff800000
    """)
    for r in range(0, 32, 2): a(f'v_mov_b64 {v(OA+r,2)}, 0')
    a.label('AS_pass')
    a('s_mov_b32 s37, 0')
    a.label('AS_tile')
    loadK(a, 0); loadV(a, 0); advK(a)
    a('s_waitcnt vmcnt(0)')
    for t in range(2):
        Sx = SB + 16*t
        a(f'v_mfma_f32_32x32x16_bf16 {v(Sx,16)}, {v(KB,4)}, {v(QF+8*t,4)}, 0')
        a(f'v_mfma_f32_32x32x16_bf16 {v(Sx,16)}, {v(KB+4,4)}, {v(QF+8*t+4,4)}, {v(Sx,16)}')
    a('s_nop 15\ns_cmp_lg_u32 s94, 0\ns_cbranch_scc1 AS_p1')
    for t in range(2):
        for r in range(0, 16, 2): a(f'v_max3_f32 v{MX+t}, v{SB+16*t+r}, v{SB+16*t+r+1}, v{MX+t}')
    a('s_branch AS_next')
    a.label('AS_p1')
    for t in range(2):
        Sx = SB + 16*t; Px = PB + 8*t
        for r in range(16): a(f'v_sub_f32 v{Sx+r}, v{Sx+r}, v{MX+t}')
        for r in range(16): a(f'v_exp_f32 v{Sx+r}, v{Sx+r}')
        for r in range(8): a(f'v_cvt_pk_bf16_f32 v{Px+r}, v{Sx+2*r}, v{Sx+2*r+1}')
        a(f'v_mfma_f32_32x32x16_bf16 {v(OA+16*t,16)}, {v(VB,4)}, {v(Px,4)}, {v(OA+16*t,16)}')
        a(f'v_mfma_f32_32x32x16_bf16 {v(OA+16*t,16)}, {v(VB+4,4)}, {v(Px+4,4)}, {v(OA+16*t,16)}')
    a.label('AS_next')
    a(f"""
    s_nop 15
    s_add_u32 s37, s37, 1
    s_cmp_lt_u32 s37, s34
    s_cbranch_scc1 AS_tile
    s_cmp_lg_u32 s94, 0
    s_cbranch_scc1 A_red
    s_lshl_b32 s36, s24, 11
    s_add_u32 s36, s36, {RED}
    s_lshl_b32 s38, s27, 9
    s_add_u32 s38, s38, s36
    v_lshl_add_u32 v9, v1, 3, s38
    ds_write_b64 v9, {v(MX,2)}
    v_lshl_add_u32 v9, v5, 3, s36
    s_waitcnt lgkmcnt(0)
    s_barrier
    """)
    for k in range(8): a(f'ds_read_b64 {v(SB+2*k,2)}, v9 offset:{256*k}')
    a('s_waitcnt lgkmcnt(0)')
    for t in range(2):
        for k in range(0, 8, 2): a(f'v_max3_f32 v{MX+t}, v{SB+2*k+t}, v{SB+2*k+2+t}, v{MX+t}')
    a('s_mov_b32 s94, 1\ns_barrier\ns_branch AS_pass')

L_RDY = 118784
def y_piece(a):
    a(f"""
    s_cmp_ge_u32 s23, 28
    s_cbranch_scc1 P_noy
    s_lshl_b32 s36, s29, 11
    s_add_u32 s36, s36, {YL}
    v_add_u32 v203, s36, v2
    ds_write_b128 v203, v[196:199]
    ds_write_b128 v203, v[212:215] offset:1024
    v_lshrrev_b32 v17, 4, v1
    v_and_b32 v18, 3, v1
    v_lshl_add_u32 v17, v17, 2, v18
    v_and_b32 v18, 7, v17
    v_lshrrev_b32 v17, 3, v17
    v_bfe_u32 v19, v1, 2, 2
    v_lshl_add_u32 v18, v18, 3, v19
    v_lshlrev_b32 v18, 4, v18
    v_lshl_add_u32 v18, v17, 3, v18
    v_add_u32 v204, s36, v18
    s_waitcnt lgkmcnt(0)
    ds_read_b64_tr_b16 v[208:209], v204
    ds_read_b64_tr_b16 v[210:211], v204 offset:64
    ds_read_b64_tr_b16 v[216:217], v204 offset:1024
    ds_read_b64_tr_b16 v[218:219], v204 offset:1088
    v_and_b32 v19, 3, v1
    v_lshl_add_u32 v19, v6, 2, v19
    s_lshl_b32 s36, s26, 6
    s_lshl_b32 s37, s29, 4
    s_add_u32 s36, s36, s37
    v_add_u32 v19, s36, v19
    v_mul_u32_u24 v19, 1792, v19
    v_bfe_u32 v17, v1, 2, 3
    v_lshl_add_u32 v205, v17, 4, v19
    s_lshl_b32 s93, s25, 7
    s_add_u32 s93, s93, 896
    s_add_u32 s92, s93, {8*1792}
    s_waitcnt lgkmcnt(0)
    buffer_store_dwordx4 v[208:211], v205, s[12:15], s93 offen {YMOD}
    buffer_store_dwordx4 v[216:219], v205, s[12:15], s92 offen {YMOD}
    """)
    a.label('P_noy')

def ph_out(a):
    a(f"""
    s_and_b32 s29, s3, 3
    v_mov_b32 v15, {L_RDY}
    s_cmp_ge_u32 s3, 4
    s_cbranch_scc1 P_fetch
    ; ---------------- waves 0..3
    s_lshl_b32 s36, s41, {F2S+4}
    s_lshr_b32 s37, s40, 2
    s_lshl_b32 s37, s37, {F2S}
    s_add_u32 s36, s36, s37
    s_and_b32 s37, s40, 3
    s_lshl_b32 s37, s37, 2
    s_add_u32 s36, s36, s37
    s_add_u32 s36, s36, {F2}
    v_lshl_add_u32 v28, v1, {F2S+2}, s36
    v_mov_b32 v29, s20
    v_bfe_u32 v7, v1, 2, 2
    v_xor_b32 v12, s29, v7
    v_lshlrev_b32 v12, 6, v12
    v_bfe_u32 v9, v1, 4, 1
    v_lshl_add_u32 v12, v9, 5, v12
    v_and_b32 v9, 3, v1
    v_lshl_add_u32 v12, v9, 3, v12
    v_lshl_add_u32 v9, v6, 2, v7
    v_lshl_add_u32 v12, v9, 8, v12
    v_add_u32 v13, {224*256}, v12          ; heads 8..15
    s_waitcnt vmcnt(0)
    s_barrier
    """)
    ACC = 224; WF = 32; OF = 160
    def wread(hd):
        for f in range(2):
            for e in range(2):
                row = 28*hd + 16*f + 8*e - (224 if hd >= 8 else 0)
                a(f'ds_read_b64_tr_b16 {v(WF + 8*hd + 4*f + 2*e, 2)}, v{13 if hd >= 8 else 12} offset:{row*256}')
    a('s_lshl_b64 exec, 1, s3\nbuffer_store_dword v29, v28, s[16:19], 0 offen sc1\ns_mov_b64 exec, -1')
    stamp(a, 9)
    for hd in range(13): wread(hd)
    a(f"""
    v_add_u32 v10, {OL}, v2
    s_lshl_b32 s36, s52, 5
    v_add_u32 v11, s36, v5
    v_mul_u32_u24 v11, 1792, v11
    v_lshl_add_u32 v11, v6, 4, v11
    s_lshl_b32 s30, s53, 2
    s_add_u32 s30, s30, s29
    s_lshl_b32 s32, s30, 6
    """)
    a('s_cmp_ge_u32 s30, 14\ns_cbranch_scc1 P_fin')
    stamp(a, 10)
    a(f'v_lshl_add_u32 v14, v1, 2, v15')
    def need(g):
        a('s_waitcnt lgkmcnt(0)')
        a.label(f'P_n{g}')
        a(f'v_cmp_eq_u32 vcc, s20, v28\ns_nop 1\ns_bitcmp1_b32 vcc_lo, {g}\ns_cbranch_scc0 P_r{g}')
        a.label(f'P_g{g}')
    def mf(g):
        for n in range(8):
            c = '0' if (g == ORD[0] and n == 0) else v(ACC, 16)
            a(f'v_mfma_f32_32x32x16_bf16 {v(ACC,16)}, {v(WF + 32*g + 4*n,4)}, {v(OF + 32*(ORD.index(g)%2) + 4*n,4)}, {c}')
    ORD = [0, 1, 2, 3]
    a('ds_read_b32 v28, v14')
    for i, g in enumerate(ORD):
        need(g)
        for n in range(8): a(f'ds_read_b128 {v(OF + 32*(i%2) + 4*n, 4)}, v10 offset:{g*8192 + n*1024}')
        if g == 3:
            for hd in range(13, 16): wread(hd)
        if i < 3: a('ds_read_b32 v28, v14')
        if i > 0: mf(ORD[i-1])
    a('s_waitcnt lgkmcnt(0)')
    mf(ORD[3])
    a.label('P_epi')
    stamp(a, 11)
    T = 40
    for r in range(8): a(f'v_cvt_pk_bf16_f32 v{T+r}, v{ACC+2*r}, v{ACC+2*r+1}')
    for q in range(2):
        a(f'v_permlane32_swap_b32 v{T+4*q}, v{T+4*q+2}')
        a(f'v_permlane32_swap_b32 v{T+4*q+1}, v{T+4*q+3}')
    a(f'buffer_store_dwordx4 {v(T,4)}, v11, s[12:15], s32 offen {OMOD}')
    a(f'buffer_store_dwordx4 {v(T+4,4)}, v11, s[12:15], s32 offen offset:32 {OMOD}')
    a('s_branch P_fin')
    for g in range(4):
        a.label(f'P_r{g}')
        a(f'ds_read_b32 v28, v14\ns_add_u32 s95, s95, 1\ns_cmp_lt_u32 s95, 0x200000\ns_waitcnt lgkmcnt(0)\ns_cbranch_scc1 P_n{g}\ns_branch P_g{g}')
    a.label('P_fetch')
    a(f"""
    s_lshl_b32 s37, s52, {F2S+2}
    s_lshl_b32 s38, s29, {F2S}
    s_add_u32 s37, s37, s38
    s_add_u32 s37, s37, {F2}
    v_lshl_add_u32 v16, v1, 2, s37
    s_lshl_b32 s38, s52, 15
    s_lshl_b32 s39, s29, 13
    s_add_u32 s38, s38, s39
    s_add_u32 s38, s38, {WS_O}
    s_add_u32 s39, s39, {OL}
    s_lshl_b32 s37, s29, 2
    v_add_u32 v15, s37, v15
    v_mov_b32 v14, s20
    s_waitcnt vmcnt(0)
    s_barrier
    """)
    stamp(a, 9)
    a(f's_cmp_lg_u32 s3, 7\ns_cbranch_scc1 P_nowo\ns_mov_b32 s48, {96*1024}\ns_mov_b32 s50, {96*3584}')
    a.label('P_wo')
    a(f"""
    s_mov_b32 m0, s48
    s_add_u32 s48, s48, 1024
    buffer_load_dwordx4 v8, s[8:11], s50 offen lds
    s_add_u32 s50, s50, 3584
    s_cmp_le_u32 s50, {D*D*2}
    s_cbranch_scc1 P_wo
    """)
    a.label('P_nowo')
    if PIPE_POLL:
        a('s_mov_b64 exec, 0xf\ns_mov_b32 s62, 0')
        for k in range(PIPE_POLL - 1):
            a(f'buffer_load_dword v{20+k}, v16, s[16:19], 0 offen sc1\ns_sleep {F2_SLEEP}')
        a.label('PL_f2')
        for k in range(PIPE_POLL):
            a(f'buffer_load_dword v{20+(k+PIPE_POLL-1)%PIPE_POLL}, v16, s[16:19], 0 offen sc1')
            a(f's_waitcnt vmcnt({PIPE_POLL-1})')
            a(f'v_cmp_ne_u32 vcc, s20, v{20+k}\ns_nop 4\ns_cbranch_vccz PL_f2_ok\ns_sleep {F2_SLEEP}')
        a(f's_add_u32 s62, s62, 1\ns_cmp_lt_u32 s62, {POLL_LIMIT}\ns_cbranch_scc1 PL_f2')
        a.label('PL_f2_ok')
        a('s_mov_b64 exec, -1')
    else:
        poll(a, 'PL_f2', 16, 17, mask=0xf, sleep=F2_SLEEP)
    stamp(a, 10)
    for hlf in range(2):
        a(f's_add_u32 m0, s39, {hlf*4096}')
        if hlf: a('s_add_u32 s38, s38, 4096')
        else: a('s_nop 0')
        for n in range(4): a(f'buffer_load_dwordx4 v2, s[16:19], s38 offen offset:{n*1024} sc1 lds')
    a('s_waitcnt vmcnt(0)\nds_write_b32 v15, v14')
    stamp(a, 11)
    y_piece(a)
    a('s_cmp_lg_u32 s2, 240\ns_cbranch_scc1 P_fin\ns_cmp_lg_u32 s3, 4\ns_cbranch_scc1 P_fin')
    a(f'v_lshlrev_b32 v16, {F2S}, v5\nv_add_u32 v16, {F2 + (56 << (F2S+2))}, v16')
    poll(a, 'PL_ep', 16, 20, x4=True, sleep=2)
    a(f's_mov_b32 s36, {EPOCH}')
    signal(a, 36, 16, 17)
    a.label('P_fin')

def kernel(a):
    if STAMPS or DIAG >= 0:
        a('v_mov_b32 v254, 0')
        stamp(a, 0)
    prologue(a)
    ph_front(a)
    ph_att(a)
    ph_out(a)
    if DIAG >= 0:
        a('s_waitcnt vmcnt(0)')
        stamp(a, 12)
        a(f"""
        s_cmp_lg_u32 s3, {int(os.environ.get('DIAGW', 0))}
        s_cbranch_scc1 L_end
        s_cmp_ge_u32 s23, 28
        s_cbranch_scc1 L_end
        v_readlane_b32 s36, v254, 0
        v_readlane_b32 s37, v254, {DIAG}
        s_memrealtime s[90:91]
        s_waitcnt lgkmcnt(0)
        s_sub_u32 s36, s37, s36
        s_min_u32 s36, s36, 10000
        s_mov_b32 s37, s90
        """)
        a.label('D_spin')
        a("""
        s_memrealtime s[90:91]
        s_waitcnt lgkmcnt(0)
        s_sub_u32 s38, s90, s37
        s_cmp_lt_u32 s38, s36
        s_cbranch_scc1 D_spin
        """)
    if STAMPS:
        a('s_waitcnt vmcnt(0)')
        stamp(a, 12)
        a(f"""
        s_mov_b32 s18, {WS_STAMP + (1<<20)}
        s_lshl_b32 s36, s2, 3
        s_add_u32 s36, s36, s3
        s_lshl_b32 s36, s36, 6
        s_add_u32 s36, s36, {WS_STAMP}
        v_lshl_add_u32 v2, v1, 2, s36
        s_mov_b64 exec, 0xffff
        buffer_store_dword v254, v2, s[16:19], 0 offen
        s_cmp_lg_u32 s2, 100
        s_cbranch_scc1 L_end
        s_cmp_lg_u32 s3, 0
        s_cbranch_scc1 L_end
        v_readfirstlane_b32 s36, v254
        v_lshlrev_b32 v2, 2, v1
        v_subrev_u32 v254, s36, v254
        s_mov_b64 exec, 0x7ffe
        """)
        srd(a, 56, P_DBG, 256)
        a('buffer_store_dword v254, v2, s[56:59], 0 offen')
    a.label('L_end')
    a('s_endpgm')
    ph_slow(a)

def build(path):
    hdr = open(f'cdna_kernels/{NAME}.s.ref').read().split('\n')
    out = [l for l in hdr if l.startswith(';') and '@launch' not in l][:16]
    out.append(f'; @launch grid=(256,1,1) block=(512,1,1) lds={LDS_TOTAL}')
    out.append('.amdgcn_target "amdgcn-amd-amdhsa--gfx950"')
    out.append('.text')
    label = NAME + '_kernel'
    a = Asm(); kernel(a)
    txt = '\n'.join(out) + f'\n.globl {label}\n.p2align 8\n.type {label},@function\n{label}:\n' + a.finalize()
    txt += f'''.section .rodata,"a"
.p2align 6
.amdhsa_kernel {label}
  .amdhsa_next_free_vgpr 256
  .amdhsa_next_free_sgpr 102
  .amdhsa_accum_offset 256
  .amdhsa_group_segment_fixed_size 0
  .amdhsa_kernarg_size 104
  .amdhsa_user_sgpr_count 2
  .amdhsa_user_sgpr_kernarg_segment_ptr 1
  .amdhsa_system_sgpr_workgroup_id_x 1
.end_amdhsa_kernel
'''
    open(path, 'w').write(txt)

if __name__ == '__main__':
    if '--stamps' in sys.argv: STAMPS = True; sys.argv.remove('--stamps')
    path = sys.argv[1] if len(sys.argv) > 1 else f'cdna_kernels/{NAME}.s'
    build(path)
    import subprocess
    subprocess.run(['clang', '-x', 'assembler', '-target', 'amdgcn-amd-amdhsa', '-mcpu=gfx950', '-c', path, '-o', '_sz.o'], check=True)
    hdr = subprocess.run(['llvm-objdump', '-h', '_sz.o'], capture_output=True, text=True).stdout
    size = int([l for l in hdr.splitlines() if '.text' in l][0].split()[2], 16)
    CODE_KB[0] = size // 1024 - 1
    _gw[0] = 0
    build(path)
    print('code bytes', size)
```

```python
import sys, math, struct, os, re
DBG = os.environ.get('DBG', '')
sys.path.insert(0, 'work')
from asmgen import *

STAMPS = False
NAME = 'concat_heads__mha_block__ssm_conv_s4d__prompt'
S = 2048; D = 448; H = 16; DH = 28
TILEB = 56 * 512
FS = int(os.environ.get('FS', 4))
F0 = 0; F1 = 32768; F2 = 65536; EPOCH = 98304; F3 = 102400
WS_Q = 131072
WS_K = WS_Q + 64 * TILEB
WS_V = WS_K + 64 * TILEB
WS_O = WS_V + 64 * TILEB
WS_UT = WS_O + 64 * 32768
WS_YT = WS_UT + 112 * 16384
WS_END = WS_YT + 224 * 8192
WS_STAMP = 16 << 20
LDS_TOTAL = 163840
POLL_LIMIT = 20000
PRIO_IT = 3
PRE_C = float(os.environ.get('PRE_C', 1.6))
B_FIRST = int(os.environ.get('B_FIRST', 1))
GS = eval(os.environ.get('GS', '(1,2,3,4,5,6,7,8,9)'))
BW = eval(os.environ.get('BW', '[4,3,2,2,2,2,4,3,3,3,3,3,3,3]'))
PRIO_U = int(os.environ.get('PRIO_U', 4))
SIG_CUT = float(os.environ.get('SIG_CUT', 0.4))
LOOK_POS = int(os.environ.get('LOOK_POS', 1))
F2S = int(os.environ.get('F2S', 7))
PIPE_POLL = int(os.environ.get('PIPE_POLL', 0))
F2_SLEEP = int(os.environ.get('F2_SLEEP', 1))
AMAP = int(os.environ.get('AMAP', 0))
LITE_SLEEP = int(os.environ.get('LITE_SLEEP', 10))
B_PRE = int(os.environ.get('B_PRE', 10))
B_LAST = int(os.environ.get('B_LAST', 13))
D_PER = int(os.environ.get('D_PER', 0))
PKMUL = int(os.environ.get('PKMUL', 0))
NBP = int(os.environ.get('NBP', 7))
KM_PTS = eval(os.environ.get('KM_PTS', '(7, 13)'))
B_PRIO = int(os.environ.get('B_PRIO', 0))
KM_SPLIT = int(os.environ.get('KM_SPLIT', 10))
A_SLEEP0 = int(os.environ.get('A_SLEEP0', 12))
KM_J = int(os.environ.get('KM_J', 1))
BPRE_J = int(os.environ.get('BPRE_J', 0))
A_SLEEP = int(os.environ.get('A_SLEEP', 3))
FILL_MAX = int(os.environ.get('FILL_MAX', 16))
YMOD = os.environ.get('YMOD', '')
OMOD = os.environ.get('OMOD', '')
SPREAD = int(os.environ.get('SPREAD', 1))
CODE_KB = [1]
CODE_PF = int(os.environ.get('CODE_PF', 1))
NA = int(os.environ.get('NA', 16))
PRIO_LEFT = int(os.environ.get('PRIO_LEFT', 1))
CONV_PRIO = int(os.environ.get('CONV_PRIO', 0))
PRIO_CMP = 'lt'
SCHED_C = [3, 3, 3, 1, 1]
U_ISS = int(os.environ.get('U_ISS', -1)); U_TR = int(os.environ.get('U_TR', 4)); F0_SIG = int(os.environ.get('F0_SIG', 7))
F0_TRY = (7, 10)
F0_LAG = 2
PRE_ST = int(os.environ.get('PRE_ST', 2))
CONV_T0 = int(os.environ.get('CONV_T0', 22))
XMOD = os.environ.get('XMOD', '')
F1_SLEEP = 8
KG_CUT = float(os.environ.get('KG_CUT', 0.4))
LD_PER = int(os.environ.get('LD_PER', 50))

def f32bits(x): return struct.unpack('<I', struct.pack('<f', x))[0]
QSCALE = math.log2(math.e) / math.sqrt(DH)
LOG2E = math.log2(math.e)
P_X, P_W, P_WO, P_U, P_LA, P_AI, P_CR, P_CI, P_DT, P_DS, P_OUT, P_DBG, P_WS = [64 + 2*i for i in range(13)]

DIAG = int(os.environ.get('DIAG', -1))
def stamp(a, n):
    if STAMPS or (DIAG >= 0 and n in (0, DIAG)):
        a('s_memrealtime s[90:91]')
        a('s_waitcnt lgkmcnt(0)')
        a(f'v_writelane_b32 v254, s90, {n}')
        if n in (6, 7) and os.environ.get('CYC'):
            a('s_memtime s[90:91]')
            a('s_waitcnt lgkmcnt(0)')
            a(f'v_writelane_b32 v254, s90, {n+7}')

def srd(a, base_s, ptr_s, nbytes):
    a(f's_mov_b32 s{base_s}, s{ptr_s}')
    a(f's_and_b32 s{base_s+1}, s{ptr_s+1}, 0xffff')
    a(f's_mov_b32 s{base_s+2}, {nbytes}')
    a(f's_mov_b32 s{base_s+3}, 0x20000')

def poll(a, name, voff, tmp, mask=-1, x4=False, sleep=4):
    if mask != -1:
        a(f's_mov_b32 exec_lo, {mask & 0xffffffff}')
        a(f's_mov_b32 exec_hi, {mask >> 32}')
    a('s_mov_b32 s62, 0')
    a.label(name)
    if x4:
        a(f'buffer_load_dwordx4 {v(tmp,4)}, v{voff}, s[16:19], 0 offen sc1')
        a('s_waitcnt vmcnt(0)')
        for i in range(4): a(f'v_xor_b32 v{tmp+i}, s20, v{tmp+i}')
        a(f'v_or3_b32 v{tmp}, v{tmp}, v{tmp+1}, v{tmp+2}')
        a(f'v_or_b32 v{tmp}, v{tmp}, v{tmp+3}')
        a(f'v_cmp_ne_u32 vcc, 0, v{tmp}')
    else:
        a(f'buffer_load_dword v{tmp}, v{voff}, s[16:19], 0 offen sc1')
        a('s_waitcnt vmcnt(0)')
        a(f'v_cmp_ne_u32 vcc, s20, v{tmp}')
    a('s_nop 4')
    a(f's_cbranch_vccz {name}_ok')
    a(f's_sleep {sleep}')
    a('s_add_u32 s62, s62, 1')
    a(f's_cmp_lt_u32 s62, {POLL_LIMIT}')
    a(f's_cbranch_scc1 {name}')
    a.label(name + '_ok')
    a('s_mov_b64 exec, -1')

def signal(a, soff, vt0, vt1):
    a(f'v_mov_b32 v{vt0}, s{soff}')
    a(f'v_mov_b32 v{vt1}, s20')
    a('s_mov_b64 exec, 1')
    a(f'buffer_store_dword v{vt1}, v{vt0}, s[16:19], 0 offen sc1')
    a('s_mov_b64 exec, -1')


CV, C1 = 250, 251
def garrive(a, off):
    a('s_mov_b64 exec, 1')
    a(f'ds_add_u32 v{CV}, v{C1} offset:{off}')
    a('s_mov_b64 exec, -1')
_gw = [0]
def gwait(a, off, target, tmp):
    _gw[0] += 1; name = f'GW{_gw[0]}'
    a.label(name)
    a(f'ds_read_b32 v{tmp}, v{CV} offset:{off}')
    a('s_waitcnt lgkmcnt(0)')
    a(f'v_readfirstlane_b32 s62, v{tmp}')
    a(f's_cmp_ge_u32 s62, {target}')
    a(f's_cbranch_scc1 {name}_ok')
    a('s_sleep 1')
    a('s_add_u32 s95, s95, 1')
    a('s_cmp_lt_u32 s95, 0x200000')
    a(f's_cbranch_scc1 {name}')
    a.label(name + '_ok')

def prologue(a):
    a(f"""
    s_cmp_ge_u32 s2, 256
    s_cbranch_scc1 L_end
    s_load_dwordx16 s[64:79], s[0:1], 0
    s_load_dwordx8 s[80:87], s[0:1], 64
    s_load_dwordx2 s[88:89], s[0:1], 96
    v_and_b32 v1, 63, v0
    v_lshrrev_b32 v2, 6, v0
    v_readfirstlane_b32 s3, v2
    s_and_b32 s22, s2, 7
    s_lshr_b32 s23, s2, 3
    """)
    if CODE_PF:
        a(f"""
        s_getpc_b64 s[96:97]
        s_and_b32 s96, s96, 0xffffff00
        s_and_b32 s98, s23, 3
        s_lshl_b32 s98, s98, 3
        s_add_u32 s98, s98, s3
        s_min_u32 s98, s98, {CODE_KB[0]}
        s_lshl_b32 s98, s98, 10
        v_lshl_add_u32 v2, v1, 4, s98
        global_load_dwordx4 v[192:195], v2, s[96:97]
        """)
    a(f"""
    s_and_b32 s27, s22, 1                  ; odd
    s_lshr_b32 s24, s23, 3                 ; cl' (0..3)
    s_lshl_b32 s25, s27, 2
    s_add_u32 s25, s25, s24
    s_and_b32 s26, s23, 7                  ; rbl
    s_lshl_b32 s28, s26, 1
    s_add_u32 s28, s28, s27
    s_cmp_eq_u32 s24, 3
    s_cselect_b32 s25, 3, s25
    s_cselect_b32 s26, s28, s26
    s_lshl_b32 s24, s24, 1
    s_add_u32 s24, s24, s26
    s_lshr_b32 s28, s22, 1
    s_lshl_b32 s28, s28, 3
    s_add_u32 s26, s26, s28                ; rb
    s_mul_i32 s21, s22, 28
    s_add_u32 s21, s21, s23
    s_cmp_lt_u32 s23, 28
    s_cbranch_scc1 L_full
    s_waitcnt lgkmcnt(0)
    """)
    srd(a, 4, P_W, D * 3 * D * 2)
    a(f"""
    s_sub_u32 s36, s23, 28
    s_lshl_b32 s36, s36, 3
    s_add_u32 s36, s36, s3
    s_mul_i32 s36, s36, {14*2688}
    v_lshrrev_b32 v2, 3, v1
    v_min_u32 v4, 5, v2
    v_mul_u32_u24 v2, 2688, v2
    v_mul_u32_u24 v4, 2688, v4
    v_and_b32 v3, 7, v1
    v_lshl_add_u32 v2, v3, 4, v2
    v_lshl_add_u32 v4, v3, 4, v4
    s_add_u32 s37, s36, {TA*896 + 384}
    buffer_load_dwordx4 v[64:67], v2, s[4:7], s37 offen
    s_add_u32 s37, s37, {8*2688}
    buffer_load_dwordx4 v[68:71], v4, s[4:7], s37 offen
    v_lshrrev_b32 v2, 5, v1
    v_mul_u32_u24 v2, 2688, v2
    v_and_b32 v3, 31, v1
    v_lshl_add_u32 v2, v3, 4, v2
    s_mul_i32 s37, s27, 384
    s_add_u32 s36, s36, s37
    """)
    for n, ty in enumerate((TB, TC)):
        for i in range(7):
            a(f's_add_u32 s37, s36, {ty*896 + 2*i*2688}')
            a(f'buffer_load_dwordx4 {v(72+28*n+4*i,4)}, v2, s[4:7], s37 offen')
    srd(a, 16, P_WS, WS_END)
    srd(a, 12, P_OUT, S * 2 * D * 2)
    a(f"""
    s_mov_b32 s36, {EPOCH}
    buffer_load_dword v253, off, s[16:19], s36 sc1
    s_waitcnt vmcnt(0)
    v_readfirstlane_b32 s20, v253
    s_add_u32 s20, s20, 1
    {'s_endpgm' if 'gemmonly' in DBG else ''}
    s_sleep {LITE_SLEEP}
    s_sub_u32 s36, s23, 28
    s_lshl_b32 s36, s36, 3
    s_add_u32 s36, s36, s3
    s_mul_i32 s36, s36, 12544
    v_lshl_add_u32 v2, v1, 4, s36
    """)
    srd(a, 8, P_WO, D * D * 2)
    for i in range(13):
        a(f's_mov_b32 s36, {1024*i}')
        a(f'buffer_load_dwordx4 {v(64+4*i,4)}, v2, s[8:11], s36 offen')
    a("""
    s_waitcnt vmcnt(0)
    """)
    a('s_mov_b32 s95, 0')
    att_poll_addr(a, 176)
    a.label('L_lite0')
    su, _ = att_pre_groups()
    emit_groups(a, su + tail_setup())
    a('s_cmp_lg_u32 s3, 0\ns_cbranch_scc1 L_lite1')
    poll(a, 'PL_f1a', 176, 180, mask=1 << 63, x4=True, sleep=8)
    poll(a, 'PL_f1b', 176, 180, x4=True, sleep=2)
    a.label('L_lite1')
    a('s_barrier')
    a('s_branch L_pre')
    a.label('L_full')

RING0 = 65536; SLOT = 16384; NS = 4; DEPTH = 3
def slot_of(j): return (j + 2) % NS
XYP = 1056; XYCH = 53 * XYP
GP = 8384; GCH = 260 * 16
L_G = 0
L_T2 = 114688; TP = 328; T2CH = 8 * TP * 2
L_U = 131072; UCH = 96 * 80
L_CTL = L_U + 2 * UCH
L_TAB = 147456
L_PART = 49152; PSRC = 1024; POWN = 4096
assert L_CTL + 16 <= L_TAB and 4*GP <= L_PART and 2*XYCH <= L_T2

def cmul(o, d, x, e, t):
    if PKMUL:
        o.append(f'v_pk_mul_f32 {v(t,2)}, {v(x,2)}, {v(e,2)} op_sel:[0,0] op_sel_hi:[1,0]')
        o.append(f'v_pk_fma_f32 {v(d,2)}, {v(x,2)}, {v(e,2)}, {v(t,2)} op_sel:[1,1,0] op_sel_hi:[0,1,1] neg_lo:[1,0,0]')
    else:
        o.append(f'v_mul_f32 v{t}, v{x+1}, v{e+1}')
        o.append(f'v_mul_f32 v{t+1}, v{x}, v{e+1}')
        o.append(f'v_fma_f32 v{d}, v{x}, v{e}, -v{t}')
        o.append(f'v_fma_f32 v{d+1}, v{x+1}, v{e}, v{t+1}')

def lines(txt): return [l.strip() for l in txt.split('\n') if l.strip()]

_KM = {}
PKB = [64, 117]
def _mk():
    pairs_pre = [20, 22, 24, 26, 28, 30, 32, 34, 36, 38, 40, 42, 48, 50, 52, 54]
    for i, r in enumerate(pairs_pre): _KM[r] = 170 + 2*i; _KM[r+1] = 171 + 2*i
    for i, r in enumerate([2, 3, 4, 5, 6, 7, 8, 9]): _KM[r] = 202 + i
    _KM[70] = 48; _KM[71] = 49
    for i, r in enumerate(range(56, 64)): _KM[r] = 40 + i
    for c in range(2):
        for row in range(53): _KM[1000 + 100*c + row] = PKB[c] + row
_mk()
def kmap(l, ch):
    M = _KM
    def one(m): return f'v{M.get(int(m.group(1)), int(m.group(1)))}'
    def rng(m):
        lo = int(m.group(1)); hi = int(m.group(2)); n = M.get(lo, lo); return f'v[{n}:{n+hi-lo}]'
    l = re.sub(r'v\[(\d+):(\d+)\]', rng, l)
    return re.sub(r'\bv(\d+)\b', one, l)

def kgen(ch):
    P = 240 + 4*ch
    pre = lines(f"""
    {'s_lshl_b32 s58, s38, 16' if ch == 0 else 's_and_b32 s58, s38, 0xffff0000'}
    v_mov_b32 v4, s58
    v_mul_f32 v4, {f32bits(LOG2E)}, v4
    v_exp_f32 v4, v4
    v_lshlrev_b32 v2, 16, v{P}
    v_lshlrev_b32 v3, 16, v{P+1}
    v_lshlrev_b32 v20, 16, v{P+2}
    v_lshlrev_b32 v21, 16, v{P+3}
    v_cvt_pk_bf16_f32 v4, v4, v4
    v_mul_f32 v2, {f32bits(LOG2E)}, v2
    v_exp_f32 v2, v2
    v_and_b32 v4, 0xffff0000, v4
    v_mul_f32 v3, v3, v4
    v_cvt_pk_bf16_f32 v2, v2, v2
    v_and_b32 v2, 0xffff0000, v2
    v_mul_f32 v2, v2, v4
    v_mul_f32 v2, {f32bits(-LOG2E)}, v2
    v_mul_f32 v3, {f32bits(1/(2*math.pi))}, v3
    v_add_f32 v4, v4, v4
    v_mul_f32 v20, v20, v4
    v_mul_f32 v21, v21, v4
    """)
    E1, E8, E256, E2, E4, E16, E32 = 22, 24, 26, 28, 30, 32, 34
    for (E, p) in ((E1, 1.0), (E8, 8.0), (E256, 256.0)):
        pre += lines(f"""
        v_mul_f32 v6, {f32bits(p)}, v2
        v_mul_f32 v7, {f32bits(p)}, v3
        v_exp_f32 v6, v6
        v_fract_f32 v7, v7
        v_cos_f32 v8, v7
        v_sin_f32 v9, v7
        v_mul_f32 v{E}, v6, v8
        v_mul_f32 v{E+1}, v6, v9
        """)
    cmul(pre, E2, E1, E1, 6); cmul(pre, E16, E8, E8, 8)
    cmul(pre, E4, E2, E2, 6); cmul(pre, E32, E16, E16, 8)
    Y = [48, 50, 52, 54]
    def put(o, row, x, r, neg=False):
        o.append(f'v_cvt_pk_bf16_f32 v{1000+100*ch+row}, v{x}, {"-" if neg else ""}v{x+1}')
    chains = []
    for c in range(4):
        o = []
        cur = {0: None, 1: E8, 2: E16, 3: Y[3]}[c]
        if c == 3: cmul(o, Y[3], E16, E8, 36 + 2*c)
        for step in range(8):
            if cur is None:
                o.append(f'v_mov_b32 v{1000+100*ch+21}, 0x3f80')
                cur = E32; continue
            put(o, 21 + 4*step + c, cur, 44 + c)
            if step < 7: cmul(o, Y[c], cur, E32, 36 + 2*c); cur = Y[c]
        chains.append(o)
    XC, GC, SD, SD2 = 56, 58, 60, 62
    o = []
    put(o, 0, 20, 68, True)
    for step in range(7):
        cmul(o, XC, 20 if step == 0 else XC, E1, 6); put(o, step + 1, XC, 68, True)
    chains.append(o)
    grow = {1: 8, 2: 12, 3: 14, 4: 16, 5: 17, 6: 18, 7: 19, 8: 20}
    G = [58, 10, 12, 58, 58, 58, 58, 58]
    G = [10, 12, 18, 58, 58, 58, 58, 58]
    o = []
    for step in range(8):
        cmul(o, G[step], 20 if step == 0 else G[step-1], E256, 8); put(o, grow[step+1], G[step], 69, True)
    chains.append(o)
    o = [None]*(9 if PKMUL else 15)
    cmul(o, SD, G[0], E2, 70); put(o, 9, SD, 5, True)
    cmul(o, SD2, G[0], E4, 70); put(o, 10, SD2, 5, True)
    cmul(o, SD, SD2, E2, 70); put(o, 11, SD, 5, True)
    cmul(o, SD2, G[1], E4, 70); put(o, 13, SD2, 5, True)
    cmul(o, SD, G[2], E4, 70); put(o, 15, SD, 5, True)
    chains.append(o)
    body = []
    for k in range(max(len(c) for c in chains)):
        for c in chains:
            if k < len(c) and c[k] is not None: body.append(c[k])
    return [kmap(l, ch) for l in pre], [kmap(l, ch) for l in body]

def kmfma():
    FA = 112; FB = 144; KA = 176; NBF = 8
    o = []
    LA = 5
    for st in range(16 + LA):
        if st < 16:
            o.append(f'ds_read_b128 {v(FA+4*(st%NBF),4)}, v20 offset:{st*64}')
            o.append(f'ds_read_b128 {v(FB+4*(st%NBF),4)}, v21 offset:{st*64}')
        if st >= LA:
            k = st - LA
            o.append(f's_waitcnt lgkmcnt({2*min(LA, 15-k)})')
            o.append(f'v_mfma_f32_16x16x32_bf16 {v(KA,4)}, {v(FA+4*(k%NBF),4)}, {v(FB+4*(k%NBF),4)}, {"0" if k == 0 else v(KA,4)}')
    o += lines(f"""
    ds_write_b16 v26, v32
    v_add_f32 v{KA}, v{KA}, v27
    v_cvt_pk_bf16_f32 v{KA+4}, v{KA}, v{KA+1}
    v_cvt_pk_bf16_f32 v{KA+5}, v{KA+2}, v{KA+3}
    ds_write_b16 v22, v{KA+4}
    ds_write_b16_d16_hi v23, v{KA+4}
    ds_write_b16 v24, v{KA+5}
    ds_write_b16_d16_hi v25, v{KA+5}
    s_waitcnt lgkmcnt(0)
    """)
    return o

def subroutines(a):
    a.label('SUB_KMFMA')
    for l in kmfma(): a(l)
    a('s_setpc_b64 s[90:91]')

def kmaddr(a, ch):
    a(f"""
    v_and_b32 v20, 15, v1
    v_lshrrev_b32 v21, 4, v1
    v_mul_u32_u24 v20, {XYP}, v20
    v_lshl_add_u32 v20, v21, 4, v20
    s_and_b32 s36, s3, 1
    s_mul_i32 s36, s36, {16*XYP}
    s_add_u32 s36, s36, {21*XYP + (1-ch)*XYCH}
    v_add_u32 v21, s36, v20
    s_mul_i32 s36, s63, {16*XYP}
    s_add_u32 s36, s36, {(1-ch)*XYCH}
    v_add_u32 v20, s36, v20
    v_and_b32 v26, 7, v1
    v_mul_u32_u24 v26, {2*TP}, v26
    v_add_u32 v26, {L_T2 + 2*(TP-1) + ch*T2CH}, v26
    v_mov_b32 v32, 0
    """)

def kmskip(a, ch):
    a(f"""
    {'s_lshl_b32 s36, s39, 16' if ch == 0 else 's_and_b32 s36, s39, 0xffff0000'}
    s_cmp_eq_u32 s29, 0
    s_cselect_b32 s36, s36, 0
    v_mov_b32 v27, 0
    v_writelane_b32 v27, s36, 0
    """)
def call(a, name): a(f's_call_b64 s[90:91], {name}')

def gbuild(a, ch, copies):
    g = 64; d = 80
    lo = min(copies); hi = max(copies) + 8
    for i in range(lo, hi): a(f'ds_read_u16 v{g+i}, v{224+i} offset:{ch*T2CH}')
    a('s_waitcnt lgkmcnt(0)')
    for t in copies:
        for i in range(4): a(f'v_lshl_or_b32 v{d+4*t+i}, v{g+t+2*i+1}, 16, v{g+t+2*i}')
        a(f'ds_write_b128 v249, {v(d+4*t,4)} offset:{t*GP + ch*GCH}')

def gtabs(a):
    a(f"""
    v_and_b32 v14, 255, v0
    v_lshlrev_b32 v249, 4, v14
    v_add_u32 v15, {L_TAB}, v249
    """)
    for q in range(3): a(f'ds_read_b128 {v(224+4*q,4)}, v15 offset:{q*4096}')
    a(f'ds_read_b128 v[22:25], v15 offset:{3*4096}')

K_, V_, Q_ = 1, 2, 0
TA, TB, TC = Q_, K_, V_
stages = [[('x',0),(TA,0)], [('x',1),('x',2)], [(TA,1),(TA,2)]]
for _i in range(3, 7): stages.append([('x', _i), (TA, _i)])
_rest = [(TB, i) for i in range(7)] + [(TC, i) for i in range(7)]
for _i in range(7): stages.append(_rest[2*_i:2*_i+2])
NST = len(stages)

def ph_front(a):
    a(f"""
    s_mov_b32 s95, 0
    v_mov_b32 v{CV}, {L_CTL}
    v_mov_b32 v{C1}, 1
    v_lshrrev_b32 v3, 3, v1
    v_and_b32 v4, 7, v1
    s_and_b32 s29, s3, 3                   ; lw
    s_bfe_u32 s63, s3, 0x10001
    s_and_b32 s61, s3, 1
    s_cmp_lt_u32 s3, 4
    s_cbranch_scc1 Q_comp
    """)
    ssm_waves(a)
    a.label('Q_comp')
    comp_waves(a)

UV = [220, 221, 222, 252, 255]
def ssm_waves(a):
    a(f"""
    s_setprio {B_PRIO}
    v_and_b32 v14, 255, v0
    s_lshl_b32 s37, s21, 10
    v_lshl_add_u32 v248, v14, 1, s37
    s_lshl_b32 s28, s29, 1
    v_xor_b32 v5, s28, v4
    v_lshlrev_b32 v5, 4, v5
    s_lshl_b32 s30, s26, 6
    s_lshl_b32 s31, s29, 4
    s_add_u32 s30, s30, s31
    v_add_u32 v6, s30, v3
    v_mul_u32_u24 v6, 896, v6
    s_lshl_b32 s31, s25, 7
    v_add_u32 v6, s31, v6
    v_add_u32 v7, v6, v5
    v_xor_b32 v5, 16, v5
    v_add_u32 v6, v6, v5
    v_add_u32 v6, 7168, v6
    s_lshl_b32 s31, s61, 11
    s_mul_i32 s32, s63, {UCH}
    s_add_u32 s31, s31, s32
    s_add_u32 s31, s31, {L_U + 2560}
    s_mov_b32 m0, s31
    s_lshl_b32 s36, s21, 2
    s_waitcnt lgkmcnt(0)
    """)
    srd(a, 16, P_WS, WS_END)
    a(f"""
    s_cmp_lg_u32 s3, 4
    s_cbranch_scc1 Q_noep0
    s_mov_b32 s33, {EPOCH}
    buffer_load_dword v253, off, s[16:19], s33 sc1
    """)
    a.label('Q_noep0')
    for i in range(4):
        srd(a, 40 + 4*i, P_LA + 2*i, D * 256 * 2)
        a(f'buffer_load_ushort v{240+i}, v248, s[{40+4*i}:{43+4*i}], 0 offen nt')
        a(f'buffer_load_ushort v{244+i}, v248, s[{40+4*i}:{43+4*i}], 0 offen offset:512 nt')
    srd(a, 8, P_U, S * D * 2)
    a(f"""
    v_mov_b32 v54, v7
    v_mov_b32 v55, v6
    s_mov_b32 s34, s31
    """)
    if U_ISS < 0:
        a('buffer_load_dwordx4 v54, s[8:11], 0 offen nt lds')
        a('s_add_u32 m0, s34, 1024\ns_nop 0\nbuffer_load_dwordx4 v55, s[8:11], 0 offen nt lds')
    a(f"""
    s_add_u32 s{P_DT}, s{P_DT}, s36
    s_addc_u32 s{P_DT+1}, s{P_DT+1}, 0
    s_add_u32 s{P_DS}, s{P_DS}, s36
    s_addc_u32 s{P_DS+1}, s{P_DS+1}, 0
    s_load_dword s38, s[{P_DT}:{P_DT+1}], 0
    s_load_dword s39, s[{P_DS}:{P_DS+1}], 0
    """)
    srd(a, 12, P_OUT, S * 2 * D * 2)
    a(f"""
    v_and_b32 v5, 1, v1
    v_bfe_u32 v6, v1, 1, 1
    v_lshrrev_b32 v7, 4, v1
    v_add_u32 v2, s28, v5
    v_xor_b32 v7, v7, v2
    v_lshlrev_b32 v7, 4, v7
    v_lshl_add_u32 v7, v6, 3, v7
    v_bfe_u32 v6, v1, 2, 2
    v_lshl_add_u32 v6, v5, 3, v6
    v_lshl_add_u32 v7, v6, 7, v7
    v_add_u32 v50, s31, v7
    v_xor_b32 v51, 64, v50
    s_lshl_b32 s31, s25, 18
    s_lshl_b32 s33, s26, 9
    s_add_u32 s31, s31, s33
    s_lshl_b32 s33, s29, 7
    s_add_u32 s31, s31, s33
    s_add_u32 s31, s31, {WS_UT}
    v_lshlrev_b32 v52, 14, v3
    v_lshl_add_u32 v52, v4, 4, v52
    v_add_u32 v52, s31, v52
    s_lshl_b32 s35, s25, {FS+5}
    s_lshl_b32 s33, s26, {FS}
    s_add_u32 s35, s35, s33
    s_lshl_b32 s33, s29, 2
    s_add_u32 s35, s35, s33
    """)
    kmaddr(a, 1)
    t = Asm()
    t(f"""
    s_mov_b32 s101, {L_G + 4096}
    v_and_b32 v2, 3, v1
    v_mul_u32_u24 v2, {GP}, v2
    v_bfe_u32 v3, v1, 2, 2
    v_lshl_add_u32 v2, v3, 4, v2
    v_bfe_u32 v3, v1, 4, 1
    v_mul_u32_u24 v3, {GCH}, v3
    v_add3_u32 v217, v2, v3, s101
    s_lshl_b32 s36, s21, 1
    s_lshr_b32 s56, s36, 2
    s_lshl_b32 s56, s56, 14
    s_and_b32 s36, s36, 3
    s_lshl_b32 s36, s36, 4
    s_add_u32 s56, s56, s36
    s_add_u32 s56, s56, {WS_UT}
    s_mov_b32 s92, s56
    """)
    for k in range(5):
        t(f"""
        v_add_u32 v2, {64*k}, v1
        v_mul_u32_u24 v3, 205, v2
        v_lshrrev_b32 v3, 10, v3
        v_mul_u32_u24 v4, 5, v3
        v_sub_u32 v4, v2, v4
        v_min_u32 v4, 3, v4
        v_lshl_add_u32 v3, v3, 2, v4
        v_lshlrev_b32 v{UV[k]}, 6, v3
        """)
    t(f"""
    s_lshr_b32 s36, s21, 5
    s_lshl_b32 s36, s36, {FS+5}
    v_and_b32 v17, 31, v1
    v_lshl_add_u32 v223, v17, {FS}, s36
    v_lshrrev_b32 v18, 5, v1
    v_and_b32 v19, 3, v17
    v_sub_u32 v19, 3, v19
    v_mul_u32_u24 v19, {GP}, v19
    v_lshrrev_b32 v2, 2, v17
    v_lshlrev_b32 v3, 1, v18
    v_sub_u32 v2, v3, v2
    v_lshl_add_u32 v19, v2, 3, v19
    s_mul_i32 s36, s61, {GCH}
    s_lshl_b32 s56, s63, 10
    s_sub_u32 s36, s36, s56
    s_add_u32 s36, s36, {L_G + 8*511 - 32*94}
    v_add_u32 v218, s36, v19
    v_mul_u32_u24 v2, 80, v17
    v_lshl_add_u32 v2, v18, 4, v2
    s_mul_i32 s36, s61, {UCH}
    s_mul_i32 s56, s63, {16*80}
    s_sub_u32 s36, s36, s56
    s_add_u32 s36, s36, {L_U + 17*80}
    v_add_u32 v219, s36, v2
    v_mov_b64 v[32:33], 0
    v_mov_b64 v[34:35], 0
    v_and_b32 v14, 255, v0
    v_lshlrev_b32 v36, 4, v14
    v_add_u32 v36, {L_U}, v36
    v_cmp_gt_u32 vcc, 160, v14
    s_mov_b64 exec, vcc
    ds_write_b128 v36, v[32:35]
    ds_write_b128 v36, v[32:35] offset:{UCH}
    s_mov_b64 exec, -1
    ds_write2_b32 v{CV}, v32, v33 offset0:1 offset1:3
    ds_write_b32 v{CV}, v32
    """)
    for l in t.lines: a(l)
    stamp(a, 13)
    if 'nob' in DBG:
        for _ in range(14): a('s_barrier')
        a('s_branch P_fin')
    a('s_waitcnt lgkmcnt(0)')
    p0, b0 = kgen(0); p1, b1 = kgen(1)
    work = [(l, PRE_C) for l in p1] + [(l, 1) for l in b1] + [(l, PRE_C) for l in p0] + [(l, 1) for l in b0]
    if 'nowork' in DBG: work = []
    dump = {c: [f'ds_write_addtid_b32 v{PKB[c]+row} offset:{row*XYP}' for row in range(53)] for c in range(2)}
    for j in range(NST):
        a('s_barrier')
        if j == 0:
            stamp(a, 1)
            a('s_setprio 0')
            gtabs(a)
            kmskip(a, 1)
        if j == B_FIRST: a(f's_waitcnt vmcnt({2 if U_ISS < 0 else 0})')
        if j == 2:
            a(f's_cmp_lg_u32 s3, 4\ns_cbranch_scc1 Q_noep\nv_add_u32 v253, 1, v253\nds_write_b32 v{CV}, v253 offset:8\ns_waitcnt lgkmcnt(0)')
            a.label('Q_noep')
        if j == 3: a(f'ds_read_b32 v253, v{CV} offset:8')
        if j == F0_SIG:
            a('s_waitcnt vmcnt(0)')
            signal(a, 35, 2, 3)
        if j == U_ISS:
            a('s_mov_b32 m0, s34\ns_nop 0\nbuffer_load_dwordx4 v54, s[8:11], 0 offen nt lds')
            a('s_add_u32 m0, s34, 1024\ns_nop 0\nbuffer_load_dwordx4 v55, s[8:11], 0 offen nt lds')
        if j == U_TR:
            a(f"""
            s_waitcnt vmcnt(0)
            ds_read_b64_tr_b16 v[54:55], v50
            ds_read_b64_tr_b16 v[56:57], v50 offset:512
            ds_read_b64_tr_b16 v[58:59], v51
            ds_read_b64_tr_b16 v[60:61], v51 offset:512
            s_mov_b32 s36, {8*16384}
            s_lshl_b32 m0, s29, 8
            s_waitcnt lgkmcnt(0)
            {'' if 'noust' in DBG else 'buffer_store_dwordx4 v[54:57], v52, s[16:19], 0 offen sc1'}
            {'' if 'noust' in DBG else 'buffer_store_dwordx4 v[58:61], v52, s[16:19], s36 offen sc1'}
            v_readfirstlane_b32 s20, v253
            """)
            for r in range(22, 26): a(f'v_add_u32 v{r}, {T2CH}, v{r}')
        if B_FIRST <= j <= B_LAST:
            tot = sum(c for _, c in work); budget = tot * BW[j] / sum(BW[j:B_LAST+1])
            while work and (budget > 0 or j == B_LAST):
                l, c = work.pop(0); a(l); budget -= c
        if U_TR < j < NST - 1:
            for l in dump[1][:D_PER]: a(l)
            dump[1] = dump[1][D_PER:]
    assert not work
    a('s_cmp_eq_u32 s3, 4\ns_cselect_b32 s60, 1, 0\ns_cbranch_scc0 Q_nof0a')
    a('buffer_load_dwordx4 v[28:31], v223, s[16:19], 0 offen sc1')
    a.label('Q_nof0a')
    for l in dump[1]: a(l)
    a(f's_lshl_b32 s36, s29, 8\ns_add_u32 m0, s36, {XYCH}\ns_nop 0')
    for l in dump[0]: a(l)
    stamp(a, 2)
    if 'gemmonly' in DBG: a('s_branch P_fin')
    def nop(): pass
    def udma():
        a('s_add_u32 s93, s92, 16')
        for ch in range(2):
            for k in range(5):
                a(f's_mov_b32 m0, {L_U + 32*80 + ch*UCH + 1024*k}')
                a(f'buffer_load_dwordx4 v{UV[k]}, s[16:19], s{92+ch} offen sc1 lds')
    def look(tag, last=False):
        a(f's_cmp_eq_u32 s60, 0\ns_cbranch_scc1 Q_lk{tag}')
        if last:
            poll(a, 'PL_f0', 223, 28, x4=True, sleep=1)
        else:
            a('s_waitcnt vmcnt(0)')
            for i in range(4): a(f'v_xor_b32 v{28+i}, s20, v{28+i}')
            a('v_or3_b32 v28, v28, v29, v30\nv_or_b32 v28, v28, v31\nv_cmp_ne_u32 vcc, 0, v28')
            a(f's_nop 4\ns_cbranch_vccz Q_lg{tag}')
            a('buffer_load_dwordx4 v[28:31], v223, s[16:19], 0 offen sc1')
            a(f's_branch Q_lk{tag}')
            a.label(f'Q_lg{tag}')
        a('s_call_b64 s[96:97], Q_udma')
        a.label(f'Q_lk{tag}')
    a('s_waitcnt lgkmcnt(0)\ns_barrier')
    stamp(a, 3)
    look('z')
    for l in kmfma(): a(l)
    if LOOK_POS == 0: look('b')
    a('s_barrier')
    stamp(a, 14)
    if LOOK_POS == 1: look('b')
    a('s_mov_b32 exec_hi, 0\nds_write_b128 v217, v[32:35]\ns_mov_b32 exec_hi, -1')
    gbuild(a, 1, (0, 1, 2, 3))
    a(f's_cmp_lg_u32 s3, 4\ns_cbranch_scc1 Q_u0\ns_cmp_lg_u32 s60, 0\ns_cbranch_scc1 Q_u0\ns_waitcnt vmcnt(0)\nds_write_b32 v{CV}, v{C1}')
    a.label('Q_u0')
    a('s_waitcnt lgkmcnt(0)\ns_barrier')
    a('s_cmp_eq_u32 s60, 0\ns_cbranch_scc1 Q_uw')
    look('c', True)
    a('s_waitcnt vmcnt(0)')
    a(f'ds_write_b32 v{CV}, v{C1}')
    a.label('Q_uw')
    gwait(a, 0, 1, 2)
    stamp(a, 4)
    if CONV_PRIO: a('s_setprio 1')
    SC = 4; sc = [0]
    def sarr():
        a('s_waitcnt lgkmcnt(0)'); garrive(a, SC); sc[0] += 4
    Y0, Y1 = 176, 192
    FR = 32; NBUF = 4
    def boff(n): return (n // 2) * 80 + (n % 2) * 32
    def ld(t):
        b = FR + 16 * (t % NBUF); ao = 32*(31-t)
        return [f'ds_read_b64 {v(b,2)}, v218 offset:{ao + 2048}',
                f'ds_read_b64 {v(b+2,2)}, v218 offset:{ao + 2056}',
                f'ds_read_b128 {v(b+4,4)}, v219 offset:{boff(31-t)}',
                f'ds_read_b128 {v(b+8,4)}, v219 offset:{boff(31-t) + 2560}',
                f'ds_read_b64 {v(b+12,2)}, v218 offset:{ao}',
                f'ds_read_b64 {v(b+14,2)}, v218 offset:{ao + 8}']
    def mm(t, first):
        b = FR + 16 * (t % NBUF)
        return [f'v_mfma_f32_32x32x16_bf16 {v(Y0,16)}, {v(b,4)}, {v(b+4,4)}, {"0" if first else v(Y0,16)}',
                f'v_mfma_f32_32x32x16_bf16 {v(Y1,16)}, {v(b,4)}, {v(b+8,4)}, {"0" if first else v(Y1,16)}',
                f'v_mfma_f32_32x32x16_bf16 {v(Y1,16)}, {v(b+12,4)}, {v(b+4,4)}, {v(Y1,16)}']
    for l in ld(0) + ld(1): a(l)
    t_ = Asm()
    t_(f"""
    s_lshl_b32 s36, s29, 12
    s_add_u32 s36, s36, {L_PART}
    v_lshl_add_u32 v216, v1, 4, s36
    s_xor_b32 s36, s36, 8192
    v_lshl_add_u32 v217, v1, 4, s36
    s_lshl_b32 s36, s21, 13
    s_lshl_b32 s60, s61, 12
    s_add_u32 s36, s36, s60
    s_lshl_b32 s60, s63, 11
    s_add_u32 s36, s36, s60
    s_add_u32 s36, s36, {WS_YT}
    v_and_b32 v220, 31, v1
    v_lshrrev_b32 v221, 5, v1
    v_lshlrev_b32 v220, 6, v220
    v_lshl_add_u32 v220, v221, 4, v220
    v_add_u32 v220, s36, v220
    s_mov_b32 s60, s63
    """)
    fillA = [[l] for l in t_.lines]
    su, fillB = att_pre_groups()
    fillA += su + tail_setup()
    if 'nofillc' in DBG:
        emit_groups(a, fillA); fillA = []; stamp(a, 4)
    T0 = CONV_T0
    def take(q, k):
        for _ in range(k):
            if q:
                for l in q.pop(0): a(l)
    if T0 >= 32: fillB = []
    perA = -(-len(fillA) // (3*min(T0, 30))); perB = -(-len(fillB) // (3*max(30 - T0, 1)))
    for t in range(32):
        if t == T0:
            gwait(a, 12, 1, 2)
        else:
            a(f's_waitcnt lgkmcnt({6 if t < 31 else 0})')
        if 'cstamp' in DBG and t in (12, 22): stamp(a, 13 if t == 12 else 14)
        L = ld(t + 2) if t + 2 < 32 else []
        M = mm(t, t == 0)
        q, per = (fillA, perA) if t < T0 else (fillB, perB)
        a(M[0])
        for l in L[:2]: a(l)
        take(q, per)
        a(M[1])
        for l in L[2:4]: a(l)
        take(q, per)
        a(M[2])
        for l in L[4:]: a(l)
        take(q, per)
    assert not fillA and not fillB
    if 'cstamp' in DBG: stamp(a, 3)
    a('s_setprio 1')
    PR = 208 + 16
    PR = 64
    a('s_cmp_eq_u32 s60, 0\ns_cbranch_scc1 S_h0')
    for hf in (1, 0):
        keep = Y1 if hf else Y0; send = Y0 if hf else Y1
        if hf == 0: a.label('S_h0')
        for q in range(4): a(f'ds_write_b128 v216, {v(send + 4*q, 4)} offset:{q*1024}')
        a('s_waitcnt lgkmcnt(0)'); garrive(a, SC)
        gwait(a, SC, 4, 2)
        for q in range(4): a(f'ds_read_b128 {v(PR + 4*q, 4)}, v217 offset:{q*1024}')
        for q in range(4):
            a(f's_waitcnt lgkmcnt({3-q})')
            for e in range(4): a(f'v_add_f32 v{PR+4*q+e}, v{PR+4*q+e}, v{keep+4*q+e}')
        if hf == 1: a('s_branch S_h1')
    a.label('S_h1')
    garrive(a, SC)
    stamp(a, 5)
    for r in range(8): a(f'v_cvt_pk_bf16_f32 v{176+r}, v{PR+2*r}, v{PR+2*r+1}')
    for q in range(2):
        a(f'v_permlane32_swap_b32 v{176+4*q}, v{176+4*q+2}')
        a(f'v_permlane32_swap_b32 v{176+4*q+1}, v{176+4*q+3}')
    a('buffer_store_dwordx4 v[176:179], v220, s[16:19], 0 offen sc1')
    a('buffer_store_dwordx4 v[180:183], v220, s[16:19], 0 offen offset:32 sc1')
    emit_groups(a, att_zero())
    a('s_branch L_att')
    a.label('Q_udma')
    udma()
    a('s_mov_b32 s60, 0\ns_setpc_b64 s[96:97]')

def comp_waves(a):
    XF = 64; ACC = {K_: 176, V_: 192, Q_: 208}; WB = [[8 + 4*i for i in range(8)], [224 + 4*i for i in range(4)] + [40 + 4*i for i in range(4)]]
    a(f"""
    s_sub_u32 s28, s24, 7
    s_cmp_ge_u32 s24, 7
    s_cselect_b32 s27, s28, s24            ; rho
    s_lshl_b32 s30, s29, 4
    v_add_u32 v5, s30, v3
    v_lshrrev_b32 v6, 1, v5
    v_and_b32 v6, 7, v6
    v_xor_b32 v6, v6, v4
    v_lshlrev_b32 v6, 4, v6
    s_lshl_b32 s30, s26, 6
    v_add_u32 v7, s30, v5
    v_mul_u32_u24 v7, 896, v7
    v_add_u32 v244, v7, v6
    v_xor_b32 v6, 64, v6
    v_add_u32 v245, v7, v6
    v_add_u32 v245, 7168, v245
    v_lshrrev_b32 v6, 1, v5
    v_and_b32 v6, 1, v6
    v_lshlrev_b32 v6, 2, v6
    v_xor_b32 v6, v6, v4
    v_lshlrev_b32 v6, 4, v6
    v_mul_u32_u24 v7, 2688, v5
    v_add_u32 v246, v7, v6
    s_lshl_b32 s30, s25, 7
    v_add_u32 v246, s30, v246
    v_add_u32 v247, 21504, v246
    s_lshl_b32 s32, s29, 11
    s_lshl_b32 s40, s27, 7
    s_mul_i32 s48, s27, {64*2688}
    s_waitcnt lgkmcnt(0)
    """)
    srd(a, 8, P_X, S * D * 2)
    srd(a, 4, P_W, D * 3 * D * 2)
    def issue(j):
        o = []
        for half, (kind, i) in enumerate(stages[j]):
            base = RING0 + slot_of(j) * SLOT + half * 8192
            for e in range(2):
                g = [f's_add_u32 m0, s32, {base + e*1024}']
                if kind == 'x':
                    g.append(f'buffer_load_dwordx4 v{244+e}, s[8:11], s{40+i} offen {XMOD} lds')
                else:
                    so = f's{48+i}'
                    if kind:
                        so = 's37'
                        if e == 0: g.append(f's_add_u32 s37, s{48+i}, {kind*896}')
                    g.append(f'buffer_load_dwordx4 v{246+e}, s[4:7], {so} offen lds')
                o.append(g)
        return o
    vm = []
    def waitfor(tag):
        last = max(i for i, t in enumerate(vm) if t == tag)
        a(f's_waitcnt vmcnt({len(vm) - 1 - last})')
    def em(l, tag='st'):
        a(l)
        if l.startswith('buffer_'): vm.append(tag)
    def issue_now(j):
        for g in issue(j):
            for l in g: em(l, j)
    issue_now(0)
    a(f's_lshl_b32 s36, s21, 2\ns_add_u32 s{P_DS}, s{P_DS}, s36\ns_addc_u32 s{P_DS+1}, s{P_DS+1}, 0\ns_load_dword s39, s[{P_DS}:{P_DS+1}], 0')
    for i in range(1, 7):
        if i == 3: issue_now(1)
        a(f's_add_u32 s27, s27, 1\ns_cmp_eq_u32 s27, 7\ns_cselect_b32 s27, 0, s27\ns_lshl_b32 s{40+i}, s27, 7\ns_mul_i32 s{48+i}, s27, {64*2688}')
    srd(a, 16, P_WS, WS_END)
    srd(a, 12, P_OUT, S * 2 * D * 2)
    a(f"""
    v_lshlrev_b32 v6, 3, v0
    v_sub_u32 v6, 2047, v6
    v_mov_b32 v17, {L_T2}
    v_mov_b32 v18, {TP}
    v_lshlrev_b32 v19, 4, v0
    v_add_u32 v19, {L_TAB}, v19
    s_mov_b32 s36, 0
    """)
    a.label('Q_tab')
    for i in (0, 2):
        a(f"""
        v_subrev_u32 v7, {i}, v6
        v_subrev_u32 v8, {i+1}, v6
        v_cvt_f32_i32 v2, v7
        v_cvt_f32_i32 v5, v8
        v_cvt_pk_bf16_f32 v2, v2, v5
        v_and_b32 v5, 0xffff0000, v2
        v_lshlrev_b32 v2, 16, v2
        v_cvt_i32_f32 v2, v2
        v_cvt_i32_f32 v5, v5
        v_and_b32 v7, 7, v2
        v_and_b32 v8, 7, v5
        v_ashrrev_i32 v2, 3, v2
        v_ashrrev_i32 v5, 3, v5
        v_mad_u32_u24 v2, v7, v18, v2
        v_mad_u32_u24 v5, v8, v18, v5
        v_lshl_add_u32 v{64+i}, v2, 1, v17
        v_lshl_add_u32 v{65+i}, v5, 1, v17
        """)
    a(f"""
    ds_write_b128 v19, v[64:67]
    v_add_u32 v19, 4096, v19
    v_subrev_u32 v6, 4, v6
    s_add_u32 s36, s36, 1
    s_cmp_lt_u32 s36, 3
    s_cbranch_scc1 Q_tab
    v_and_b32 v17, 15, v1
    """)
    ix = lambda p: (p & 7) * TP + (p >> 3)
    def pk(b, s1, s2): assert b < 4096 and s1 < 1024 and s2 < 1024; return b | (s1 << 12) | (s2 << 22)
    t0 = [pk(0, TP, 2*TP), pk(4*TP, TP, 2*TP), None, None]
    a('s_cmp_eq_u32 s63, 0')
    ptab = {0: [[0,1,2,3],[4,5,6,7],[256,258,260,262],[512,516,768,772]],
            1: [[1024,1280,1536,1792],[2048,2304,2304,2304],[2304]*4,[2304]*4]}
    for g in range(4):
        lo = lambda at: ix(ptab[at][g][0]) | (ix(ptab[at][g][1]) << 16)
        hi = lambda at: ix(ptab[at][g][2]) | (ix(ptab[at][g][3]) << 16)
        a(f's_mov_b32 exec_lo, {0xffff << (16*(g%2)) if g < 2 else 0}')
        a(f's_mov_b32 exec_hi, {0xffff << (16*(g%2)) if g >= 2 else 0}')
        a(f's_mov_b32 s36, {lo(1)}\ns_cselect_b32 s36, {lo(0)}, s36\nv_mov_b32 v68, s36')
        a(f's_mov_b32 s36, {hi(1)}\ns_cselect_b32 s36, {hi(0)}, s36\nv_mov_b32 v70, s36')
    a(f"""
    s_mov_b64 exec, -1
    s_lshl_b32 s36, s61, 5
    s_add_u32 s36, s36, {L_T2}
    v_lshl_add_u32 v18, v17, 1, s36
    v_lshrrev_b32 v69, 16, v68
    v_lshrrev_b32 v71, 16, v70
    v_and_b32 v68, 0xffff, v68
    v_and_b32 v70, 0xffff, v70
    v_lshl_add_u32 v68, v68, 1, v18
    v_lshl_add_u32 v69, v69, 1, v18
    v_lshl_add_u32 v70, v70, 1, v18
    v_lshl_add_u32 v71, v71, 1, v18
    ds_write_b128 v19, v[68:71]
    s_and_b32 s27, s3, 1                   ; rt
    s_lshr_b32 s30, s3, 1                  ; cg
    v_and_b32 v3, 31, v1
    v_lshrrev_b32 v4, 5, v1
    s_lshl_b32 s31, s27, 5
    v_add_u32 v5, s31, v3
    v_lshrrev_b32 v6, 1, v5
    v_and_b32 v6, 7, v6
    v_lshlrev_b32 v7, 7, v5
    v_add_u32 v7, {RING0}, v7
    """)
    for st in range(4):
        a(f"""
        v_add_u32 v{56+st}, {2*st}, v4
        v_xor_b32 v{56+st}, v{56+st}, v6
        v_lshl_add_u32 v{56+st}, v{56+st}, 4, v7
        """)
    a(f"""
    v_and_b32 v6, 3, v1
    v_lshlrev_b32 v6, 3, v6
    v_bfe_u32 v7, v1, 4, 1
    v_lshl_add_u32 v6, v7, 5, v6
    s_lshl_b32 s31, s30, 6
    v_add_u32 v6, s31, v6
    v_bfe_u32 v7, v1, 3, 1
    v_lshlrev_b32 v7, 6, v7
    v_xor_b32 v6, v6, v7
    v_bfe_u32 v7, v1, 2, 2
    v_lshl_add_u32 v7, v4, 3, v7
    v_lshl_add_u32 v60, v7, 7, v6
    v_add_u32 v60, {RING0}, v60
    s_lshl_b32 s31, s26, 1
    s_add_u32 s31, s31, s27
    s_mul_i32 s31, s31, {TILEB}
    s_lshl_b32 s33, s25, 3
    s_lshl_b32 s34, s30, 2
    s_add_u32 s33, s33, s34
    s_lshl_b32 s34, s33, 9
    s_add_u32 s34, s34, s31
    v_lshlrev_b32 v61, 4, v1
    v_add_u32 v61, s34, v61
    s_lshl_b32 s34, s33, 7
    s_add_u32 s34, s34, s31
    v_mul_u32_u24 v62, 7168, v4
    v_lshl_add_u32 v62, v3, 4, v62
    v_add_u32 v62, s34, v62
    s_mov_b32 s35, {f32bits(QSCALE)}
    s_lshl_b32 s60, s25, {FS+5}
    s_lshl_b32 s61, s26, {FS}
    s_add_u32 s60, s60, s61
    s_lshl_b32 s61, s3, 2
    s_add_u32 s60, s60, s61
    s_add_u32 s60, s60, {F1}
    """)
    if PRE_ST >= 3: issue_now(2)
    a('s_waitcnt lgkmcnt(0)')
    stamp(a, 13)
    def reads(j):
        sb = slot_of(j) * SLOT
        n = 0; o = []
        for half, (kind, i) in enumerate(stages[j]):
            base = sb + half * 8192
            if kind == 'x':
                for st in range(4):
                    o.append(f'ds_read_b128 {v(XF + 16*i + 4*st, 4)}, v{56 + st} offset:{base}')
            else:
                for st in range(4):
                    r = WB[j % 2][n]; n += 1
                    for e in range(2):
                        o.append(f'ds_read_b64_tr_b16 {v(r + 2*e, 2)}, v60 offset:{base + (16*st + 4*e)*128}')
        return o
    started = set()
    def epilogue(kind):
        acc = ACC[kind]; out = []
        if kind == Q_:
            for r in range(16): out.append(f'v_mul_f32 v{acc+r}, s35, v{acc+r}')
        for r in range(8): out.append(f'v_cvt_pk_bf16_f32 v{acc+r}, v{acc+2*r}, v{acc+2*r+1}')
        T = acc
        if kind == V_:
            out.append(f's_mov_b32 s36, {WS_V}')
            out.append(f'buffer_store_dwordx4 {v(T,4)}, v62, s[16:19], s36 offen sc1')
            out.append(f's_mov_b32 s36, {WS_V + 2*7168}')
            out.append(f'buffer_store_dwordx4 {v(T+4,4)}, v62, s[16:19], s36 offen sc1')
        else:
            for q in range(2):
                out.append(f'v_permlane32_swap_b32 v{T+4*q}, v{T+4*q+2}')
                out.append(f'v_permlane32_swap_b32 v{T+4*q+1}, v{T+4*q+3}')
            out.append(f's_mov_b32 s36, {WS_Q if kind == Q_ else WS_K}')
            out.append(f'buffer_store_dwordx4 {v(T,4)}, v61, s[16:19], s36 offen sc1')
            out.append(f'buffer_store_dwordx4 {v(T+4,4)}, v61, s[16:19], s36 offen offset:1024 sc1')
        return out
    def mlist(j):
        n = 0; done = []; o = []
        for half, (kind, i) in enumerate(stages[j]):
            if kind == 'x': continue
            acc = ACC[kind]
            for st in range(4):
                w = WB[j % 2][n]; n += 1
                x = XF + 16*i + 4*st
                c = v(acc, 16) if kind in started else '0'
                started.add(kind)
                if kind == V_: o.append(f'v_mfma_f32_32x32x16_bf16 {v(acc,16)}, {v(x,4)}, {v(w,4)}, {c}')
                else:          o.append(f'v_mfma_f32_32x32x16_bf16 {v(acc,16)}, {v(w,4)}, {v(x,4)}, {c}')
            if i == 6: done.append(kind)
        return o, done
    def weave(ms, rd, fill, dm, tag):
        nm = len(ms)
        slots = max(nm, 4)
        per = -(-len(rd) // max(slots - 2, 1))
        fper = -(-len(fill) // max(nm - 2, 1))
        dstep = slots // 4
        for k in range(slots):
            if k < nm: a(ms[k])
            if dm and k % dstep == 0:
                for l in dm.pop(0): em(l, tag)
            for _ in range(per):
                if rd: a(rd.pop(0))
            if k >= 2:
                for _ in range(fper):
                    if fill: em(fill.pop(0))
        for l in rd + fill: em(l)
    pending = []; carry = []
    for j in range(NST):
        waitfor(j)
        a('s_barrier')
        if j == 0: stamp(a, 1)
        if 'gemmonly' in DBG and j in GS: stamp(a, 3 + GS.index(j))
        rd = reads(j); ms = []; fill = carry; carry = []
        if j == 5: rd.append(f'ds_read_b32 v253, v{CV} offset:8')
        if j > 0:
            for k in pending: fill += epilogue(k)
            ms, pending = mlist(j - 1)
        if j == 0 and PRE_ST < 3: issue_now(2)
        dm = issue(j + DEPTH) if j + DEPTH < NST else []
        if dm:
            k = next((i for i, l in enumerate(fill) if l.startswith(('buffer_', 's_mov_b32 s36'))), len(fill))
            carry = fill[k:]; fill = fill[:k]
        if len(fill) > FILL_MAX and j < NST - 1:
            carry = fill[FILL_MAX:] + carry; fill = fill[:FILL_MAX]
        weave(ms, rd, fill, dm, j + DEPTH)
        a('s_waitcnt lgkmcnt(0)')
    fill = carry
    for k in pending: fill += epilogue(k)
    ms, pending = mlist(NST - 1)
    weave(ms, [], fill, [], None)
    for k in pending:
        for l in epilogue(k): a(l)
    stamp(a, 2)
    if 'gemmonly' in DBG: a('s_branch P_fin')
    sc_, ve_, lds_ = att_split()
    FL = 252
    a('v_readfirstlane_b32 s20, v253')
    gtabs(a)
    kmaddr(a, 0)
    kmskip(a, 0)
    att_poll_addr(a, FL)
    a('s_waitcnt lgkmcnt(0)\ns_barrier')
    stamp(a, 3)
    km = kmfma(); cut = int(len(km) * SIG_CUT)
    for l in km[:cut]: a(l)
    a('s_waitcnt vmcnt(0)')
    signal(a, 60, 2, 3)
    for l in km[cut:]: a(l)
    a('s_barrier')
    stamp(a, 14)
    gbuild(a, 0, (0, 1, 2, 3))
    a('s_waitcnt lgkmcnt(0)\ns_barrier')
    stamp(a, 4)
    emit_groups(a, sc_ + ve_ + tail_setup())
    a('s_setprio 2')
    a('s_cmp_lg_u32 s3, 0\ns_cbranch_scc1 Q_w1')
    poll(a, 'PL_f1', FL, 244, x4=True, sleep=A_SLEEP)
    a.label('Q_w0')
    a(f'ds_write_b32 v{CV}, v{C1} offset:12')
    a('s_branch L_pre')
    a.label('Q_w1')
    gwait(a, 12, 1, 2)
    a.label('L_pre')
    stamp(a, 5)
    emit_groups(a, lds_[:10] + att_zero())
    att_first(a, 4)
    emit_groups(a, lds_[10:])
    a('s_setprio 0')
    a('s_branch L_att2')

EB = 176
EA = EB + 56
ET = 96
def ssm_epi_setup(a):
    a(f"""
    v_and_b32 v{ET}, 1, v1                      ; ch
    v_bfe_u32 v{ET+1}, v1, 1, 2                 ; j
    v_lshrrev_b32 v{ET+2}, 3, v1
    v_mul_u32_u24 v{ET+3}, {POWN}, v{ET+1}
    v_mul_u32_u24 v{ET+4}, {PSRC}, v{ET}
    v_add_u32 v{ET+3}, v{ET+3}, v{ET+4}
    v_lshl_add_u32 v{ET+3}, v{ET+2}, 4, v{ET+3}
    s_lshl_b32 s60, s29, 7
    s_add_u32 s36, s60, {L_PART}
    v_add_u32 v{EA}, s36, v{ET+3}
    v_mul_u32_u24 v{ET+2}, 80, v{ET+2}
    v_lshl_add_u32 v{ET+2}, v{ET+1}, 4, v{ET+2}
    v_mul_u32_u24 v{ET+4}, {UCH}, v{ET}
    v_add_u32 v{ET+2}, v{ET+2}, v{ET+4}
    s_mul_i32 s36, s29, 640
    s_add_u32 s36, s36, {L_U + 32*80}
    v_add_u32 v{EA+1}, s36, v{ET+2}             ; u chunk
    s_lshl_b32 s36, s21, 13
    s_lshl_b32 s60, s29, 10
    s_add_u32 s36, s36, s60
    s_add_u32 s36, s36, {WS_YT}
    v_lshl_add_u32 v{EA+2}, v1, 4, s36
    s_lshl_b32 s60, s39, 16
    s_and_b32 s61, s39, 0xffff0000
    v_mov_b32 v{EA+3}, s60
    v_mov_b32 v{ET+4}, s61
    v_cmp_eq_u32 vcc, 1, v{ET}
    v_cndmask_b32 v{EA+3}, v{EA+3}, v{ET+4}, vcc
    """)

def ssm_epi_reads(a):
    for p in range(2):
        E = EB + 28*p; o = p*4*POWN
        a(f"""
        ds_read_b128 {v(E,4)}, v{EA} offset:{o}
        ds_read_b128 {v(E+4,4)}, v{EA} offset:{o+512}
        ds_read_b128 {v(E+8,4)}, v{EA} offset:{o+2*PSRC}
        ds_read_b128 {v(E+12,4)}, v{EA} offset:{o+2*PSRC+512}
        ds_read_b128 {v(E+16,4)}, v{EA+1} offset:{p*2560}
        """)

def ssm_epi(a):
    a('s_mov_b32 s36, 4096')
    for p in range(2):
        A = EB + 28*p; B = A + 8; U = A + 16; C = A + 20
        for e in range(8): a(f'v_add_f32 v{A+e}, v{A+e}, v{B+e}')
        for e in range(4):
            a(f'v_lshlrev_b32 v{C+2*e}, 16, v{U+e}')
            a(f'v_and_b32 v{C+1+2*e}, 0xffff0000, v{U+e}')
        for e in range(8): a(f'v_mul_f32 v{C+e}, v{EA+3}, v{C+e}')
        for e in range(4):
            a(f'v_cvt_pk_bf16_f32 v{B+e}, v{A+2*e}, v{A+1+2*e}')
            a(f'v_cvt_pk_bf16_f32 v{B+4+e}, v{C+2*e}, v{C+1+2*e}')
        for e in range(4):
            a(f'v_lshlrev_b32 v{A+2*e}, 16, v{B+e}')
            a(f'v_and_b32 v{A+1+2*e}, 0xffff0000, v{B+e}')
            a(f'v_lshlrev_b32 v{C+2*e}, 16, v{B+4+e}')
            a(f'v_and_b32 v{C+1+2*e}, 0xffff0000, v{B+4+e}')
        for e in range(8): a(f'v_add_f32 v{A+e}, v{A+e}, v{C+e}')
        for e in range(4): a(f'v_cvt_pk_bf16_f32 v{B+e}, v{A+2*e}, v{A+1+2*e}')
        a(f'buffer_store_dwordx4 {v(B,4)}, v{EA+2}, s[16:19], {"s36" if p else "0"} offen sc1')

def att_ids(a):
    if AMAP == 0:
        a("""
        s_lshl_b32 s40, s22, 1
        s_and_b32 s41, s23, 1
        s_add_u32 s40, s40, s41                ; head
        s_lshr_b32 s41, s23, 1                 ; rbq
        s_mov_b32 s99, s41
        """)
    elif AMAP == 1:
        a("""
        s_lshl_b32 s41, s22, 1
        s_and_b32 s40, s23, 1
        s_lshl_b32 s99, s40, 3
        s_add_u32 s41, s41, s40                ; rbq
        s_lshr_b32 s40, s23, 1                 ; head
        """)
    a("""
    s_mul_i32 s42, s40, 7
    s_lshr_b32 s42, s42, 1                 ; chi0
    """)

def att_poll_addr(a, r):
    att_ids(a)
    a(f"""
    s_lshr_b32 s43, s42, 3
    s_add_u32 s44, s42, 3
    s_lshr_b32 s44, s44, 3
    s_lshl_b32 s43, s43, {FS+5}
    s_lshl_b32 s44, s44, {FS+5}
    v_mov_b32 v{r}, s43
    v_mov_b32 v{r+1}, s44
    v_cmp_lt_u32 vcc, 31, v1
    v_cndmask_b32 v{r}, v{r}, v{r+1}, vcc
    v_and_b32 v{r+1}, 31, v1
    v_lshl_add_u32 v{r}, v{r+1}, {FS}, v{r}
    v_add_u32 v{r}, {F1}, v{r}
    """)

def att_poll(a, name):
    att_poll_addr(a, 16)
    poll(a, name, 16, 20, x4=True, sleep=8)

OL = 120 * 1024; YL = 152 * 1024; RED = 96 * 1024
NB = 4
QF = 16; OA = 32; SB = 64; PB = 96; KB = 112; VB = KB + 8*NB
def advK(a):
    a(f's_add_u32 s33, s33, {TILEB}')
    a('s_cmp_eq_u32 s33, s55')
    a('s_cselect_b32 s33, s54, s33')
def loadK(a, n):
    a(f'buffer_load_dwordx4 {v(KB+8*n,4)}, v3, s[16:19], s33 offen')
    a(f'buffer_load_dwordx4 {v(KB+8*n+4,4)}, v3, s[16:19], s33 offen offset:1024')
def loadV(a, n):
    a('s_mov_b64 exec, s[46:47]')
    a(f'buffer_load_dwordx4 {v(VB+8*n,4)}, v4, s[16:19], s33 offen')
    a(f'buffer_load_dwordx4 {v(VB+8*n+4,4)}, v7, s[16:19], s33 offen')
    a('s_mov_b64 exec, -1')

def att_pre_groups():
    def G(fn, *args):
        t = Asm(); fn(t, *args); return t.lines
    def singles(txt): return [[l] for l in lines(txt)]
    p1 = [[l] for l in G(att_ids)]
    p1 += singles(f"""
    s_and_b32 s24, s3, 1                   ; qg
    s_lshr_b32 s27, s3, 1
    s_cmp_lt_u32 s23, 28
    s_cselect_b32 s34, {NA}, 16
    s_sub_u32 s35, 32, s34
    s_min_u32 s54, s27, 2
    s_mul_i32 s54, s54, s34
    s_cmp_eq_u32 s27, 3
    s_cselect_b32 s55, s35, 0
    s_add_u32 s54, s54, s55
    s_cmp_lt_u32 s3, 4
    s_cselect_b32 s34, s34, s35
    s_lshr_b32 s35, s34, 2
    s_lshl_b32 s96, s42, 9
    v_lshl_add_u32 v3, v1, 4, s96          ; Q/K voffset
    s_lshl_b32 s28, s41, 2
    s_lshl_b32 s31, s24, 1
    s_add_u32 s28, s28, s31
    s_mul_i32 s31, s28, {TILEB}
    s_add_u32 s31, s31, {WS_Q}
    s_add_u32 s30, s31, {TILEB}
    s_mul_i32 s54, s54, {TILEB}
    s_add_u32 s54, s54, {WS_K}
    s_mul_i32 s55, s34, {TILEB}
    s_add_u32 s55, s55, s54
    s_mul_i32 s33, s99, s34
    s_lshr_b32 s33, s33, 4
    s_mul_i32 s33, s33, {TILEB}
    s_add_u32 s33, s33, s54
    buffer_load_dwordx4 {v(QF,4)}, v3, s[16:19], s31 offen
    buffer_load_dwordx4 {v(QF+4,4)}, v3, s[16:19], s31 offen offset:1024
    """)
    p1 += [[l] for l in G(loadK, 0)]
    p1 += singles(f"""
    buffer_load_dwordx4 {v(QF+8,4)}, v3, s[16:19], s30 offen
    buffer_load_dwordx4 {v(QF+12,4)}, v3, s[16:19], s30 offen offset:1024
    v_and_b32 v5, 31, v1
    v_lshrrev_b32 v6, 5, v1
    v_mul_u32_u24 v4, 7168, v6
    v_lshl_add_u32 v4, v5, 4, v4
    s_mul_i32 s97, s40, 448
    s_add_u32 s97, s97, {WS_V - WS_K}
    v_add_u32 v4, s97, v4
    v_add_u32 v7, 14336, v4
    s_mov_b32 s46, 0x0fffffff
    s_mov_b32 s47, 0x0fffffff
    """)
    p2 = []
    for n in range(NB):
        dst = p1 if n == 0 else p2
        if n == 0:
            dst += [['v_cmp_eq_u32 vcc, 28, v5'], ['v_mov_b32 v12, 0x3f803f80'], ['v_cndmask_b32 v12, 0, v12, vcc'], ['v_mov_b32 v13, v12']]
        dst += [[f'v_mov_b64 {v(VB+8*n+r,2)}, v[12:13]'] for r in range(0, 8, 2)]
        if n < NB - 1:
            dst += [G(loadV, n), G(advK)] + [[l] for l in G(loadK, n + 1)]
    p2 += [[l] for l in G(srd, 8, P_WO, D * D * 2)]
    p2 += singles(f"""
    s_lshr_b32 s52, s40, 2
    s_lshl_b32 s53, s41, 2
    s_add_u32 s52, s52, s53
    s_and_b32 s53, s40, 3                  ; cg4
    v_lshrrev_b32 v8, 4, v1
    v_and_b32 v9, 15, v1
    v_lshlrev_b32 v10, 2, v8
    v_xor_b32 v9, v9, v10
    v_lshlrev_b32 v9, 4, v9
    v_mul_u32_u24 v8, 896, v8
    v_add_u32 v8, v8, v9
    s_lshl_b32 s98, s53, 8
    v_add_u32 v8, s98, v8
    s_lshl_b32 s51, s3, 10
    s_mul_i32 s50, s3, 3584
    s_sub_u32 s35, s35, 1
    s_and_b32 s49, s40, 1
    s_cmp_eq_u32 s49, 0
    s_cselect_b32 s43, -1, 0
    s_mov_b32 s42, 0
    s_cselect_b32 s44, 0, -1
    s_mov_b32 s45, 0
    s_lshl_b32 s32, s21, 4
    s_and_b32 s49, s3, 3
    s_lshl_b32 s49, s49, 2
    s_add_u32 s32, s32, s49
    s_add_u32 s32, s32, {F3}
    s_cmp_lt_u32 s23, 28
    s_cselect_b32 s32, s32, {WS_END}
    s_mov_b32 s37, 0
    """)
    allg = p1 + p2
    isld = lambda g: any(l.startswith('buffer_') for l in g) or g[0].startswith(f's_add_u32 s33, s33, {TILEB}')
    setup = [g for g in allg if not isld(g)]
    loads = [g for g in allg if isld(g)]
    return setup, loads

def tail_setup():
    return [[l] for l in lines(f"""
    s_lshl_b32 s36, s24, 14
    s_add_u32 s36, s36, {RED}
    s_lshr_b32 s38, s27, 1
    s_lshl_b32 s38, s38, 15
    s_and_b32 s39, s27, 1
    s_lshl_b32 s39, s39, 11
    s_add_u32 s38, s38, s39
    s_add_u32 s38, s38, s36
    v_lshl_add_u32 v240, v1, 4, s38
    s_lshl_b32 s38, s27, 12
    s_add_u32 s38, s38, s36
    v_lshl_add_u32 v241, v1, 4, s38
    s_or_b32 s38, s27, 1
    s_lshl_b32 s38, s38, 12
    s_add_u32 s38, s38, s36
    s_add_u32 s38, s38, {1024 + 512}
    v_lshl_add_u32 v242, v5, 4, s38
    v_lshlrev_b32 v243, 13, v6
    v_lshl_add_u32 v243, v5, 4, v243
    v_add_u32 v243, {RED + 4096 + 1024 + 512}, v243
    s_and_b32 s36, s27, 1
    s_cmp_eq_u32 s36, 1
    s_cselect_b32 s101, -1, 0
    s_mov_b32 s100, 0
    s_lshr_b32 s38, s27, 1
    s_add_u32 s38, s38, s28
    s_lshl_b32 s38, s38, 15
    s_lshl_b32 s39, s40, 11
    s_add_u32 s38, s38, s39
    s_lshl_b32 s39, s36, 10
    s_add_u32 s38, s38, s39
    s_add_u32 s63, s38, {WS_O}
    s_lshl_b32 s36, s25, 9
    s_add_u32 s36, s36, {F3}
    v_lshl_add_u32 v238, v5, 4, s36
    v_lshlrev_b32 v239, 12, v1
    s_lshl_b32 s93, s25, 18
    s_lshl_b32 s36, s26, 7
    s_add_u32 s93, s93, s36
    s_and_b32 s36, s3, 3
    s_lshl_b32 s36, s36, 5
    s_add_u32 s93, s93, s36
    s_add_u32 s93, s93, {WS_YT}
    """)]

def att_split():
    su, ld = att_pre_groups()
    sc = [g for g in su if g[0].startswith('s_')]
    ve = [g for g in su if not g[0].startswith('s_')]
    return sc, ve, ld

def emit_groups(a, gs):
    for g in gs:
        for l in g: a(l)

def att_zero():
    return [[f'v_mov_b64 {v(OA+r,2)}, 0'] for r in range(0, 32, 2)] + [[f'v_mov_b64 {v(PB+8+r,2)}, 0'] for r in range(0, 8, 2)] + [[f'v_mov_b64 {v(SB+28+r,2)}, 0'] for r in range(0, 4, 2)]

def att_first(a, nout):
    a(f"""
    s_waitcnt vmcnt({nout})
    s_mov_b64 exec, s[42:43]
    v_mov_b32 v{QF+6}, 0
    v_mov_b32 v{QF+7}, 0
    v_mov_b32 v{QF+14}, 0
    v_mov_b32 v{QF+15}, 0
    s_mov_b64 exec, s[44:45]
    v_mov_b32 v{QF+0}, 0
    v_mov_b32 v{QF+1}, 0
    v_mov_b32 v{QF+8}, 0
    v_mov_b32 v{QF+9}, 0
    s_mov_b64 exec, -1
    v_mfma_f32_32x32x16_bf16 {v(SB,16)}, {v(KB,4)}, {v(QF,4)}, 0
    v_mfma_f32_32x32x16_bf16 {v(SB,16)}, {v(KB+4,4)}, {v(QF+4,4)}, {v(SB,16)}
    """)

def ph_att(a):
    a.label('L_att')
    att_first(a, 4*(NB-1))
    a('s_nop 9')
    a.label('L_att2')
    a('v_lshlrev_b32 v2, 4, v1')
    a(f's_cmp_{PRIO_CMP}_u32 s3, 4\ns_cbranch_scc1 A_noprio\ns_setprio 1')
    a.label('A_noprio')
    stamp(a, 6)
    a('.p2align 6')
    def iteration(last):
        vm = [-3]*4 + [-2]*4 + [-1]*4
        nwo = [0]
        def wo():
            r = nwo[0]; nwo[0] += 1
            return [f's_add_u32 m0, s51, {r*8192}', f's_add_u32 s48, s50, {r*28672}', 'buffer_load_dwordx4 v8, s[8:11], s48 offen lds']
        for u in range(2*NB):
            t = u % 2
            kn = ((u + 1) // 2) % NB
            vn = ((u - 1) // 2) % NB
            Sn = SB + 16*((u+1) % 2); Sc = SB + 16*(u % 2)
            Pc = PB + 8*(u % 2); Pp = PB + 8*((u+1) % 2)
            Qn = QF + 8*(1-t); On = OA + 16*(1-t)
            ins = {}
            if u % 2 == 1:
                j = (u - 1) // 2
                t1 = Asm(); loadV(t1, (j - 1) % NB); t2 = Asm(); advK(t2); t3 = Asm(); loadK(t3, j % NB)
                if not last:
                    a(f's_waitcnt vmcnt({4*(NB-2)})')
                    ins = {(0, 1): t1.lines, (1, 1): t2.lines, (2, 1): t3.lines[:1], (3, 1): t3.lines[1:]}
                else:
                    need = max(i for i, x in enumerate(vm) if x == j - 3)
                    a(f's_waitcnt vmcnt({len(vm) - 1 - need})')
                    if j == 0: ins[(0, 1)] = t1.lines
            if last and u >= 1 and 'nowo' not in DBG:
                for g in (1, 3):
                    if nwo[0] < 12: ins[(g, 1)] = wo()
            if last and u == PRIO_U: a('s_setprio 0')
            M = [f'v_mfma_f32_32x32x16_bf16 {v(Sn,16)}, {v(KB+8*kn,4)}, {v(Qn,4)}, 0',
                 f'v_mfma_f32_32x32x16_bf16 {v(Sn,16)}, {v(KB+8*kn+4,4)}, {v(Qn+4,4)}, {v(Sn,16)}',
                 f'v_mfma_f32_32x32x16_bf16 {v(On,16)}, {v(VB+8*vn,4)}, {v(Pp,4)}, {v(On,16)}',
                 f'v_mfma_f32_32x32x16_bf16 {v(On,16)}, {v(VB+8*vn+4,4)}, {v(Pp+4,4)}, {v(On,16)}']
            M = [M[2], M[0], M[1], M[3]]
            if last and u == 2*NB - 1: M[1] = M[2] = None
            for g in range(4):
                if M[g]: a(M[g])
                for e in range(4):
                    a(f'v_exp_f32 v{Sc+4*g+e}, v{Sc+4*g+e}')
                    for l in ins.get((g, e), []):
                        a(l)
                        if l.startswith('buffer_'): vm.append('w' if 'lds' in l else 0)
                    if e in (0, 2):
                        h = e // 2
                        if g > 0: a(f'v_cvt_pk_bf16_f32 v{Pc+2*(g-1)+h}, v{Sc+4*(g-1)+2*h}, v{Sc+4*(g-1)+2*h+1}')
                        else:     a(f'v_cvt_pk_bf16_f32 v{Pp+6+h}, v{Sn+12+2*h}, v{Sn+13+2*h}')
    a.label('A_loop')
    iteration(False)
    a(f"""
    s_add_u32 s37, s37, 1
    s_cmp_eq_u32 s37, s35
    s_cbranch_scc1 A_last
    s_cmp_lg_u32 s37, 1
    s_cbranch_scc1 A_loop
    s_cmp_lt_u32 s3, 4
    s_cbranch_scc1 A_loop
    """)
    signal(a, 32, 9, 10)
    a('s_branch A_loop')
    a.label('A_last')
    a(f's_cmp_eq_u32 s32, {WS_END}\ns_cbranch_scc1 A_l2\ns_cmp_lt_u32 s3, 4\ns_cbranch_scc1 A_l1')
    a('buffer_load_dwordx4 v[196:199], v238, s[16:19], 0 offen sc1')
    a.label('A_l1')
    gwait(a, 4, 8, 9)
    a.label('A_l2')
    iteration(True)
    a.label('A_exit')
    a('s_setprio 0')
    stamp(a, 7)
    a(f'v_cvt_pk_bf16_f32 v{PB+14}, v{SB+28}, v{SB+29}')
    a(f'v_cvt_pk_bf16_f32 v{PB+15}, v{SB+30}, v{SB+31}')
    a(f'v_mfma_f32_32x32x16_bf16 {v(OA+16,16)}, {v(VB+8*(NB-1),4)}, {v(PB+8,4)}, {v(OA+16,16)}')
    a(f'v_mfma_f32_32x32x16_bf16 {v(OA+16,16)}, {v(VB+8*(NB-1)+4,4)}, {v(PB+12,4)}, {v(OA+16,16)}')
    a('s_mov_b32 s94, 0')
    a.label('A_red')
    for own in range(4):
        for q in range(2):
            a(f'ds_write_b128 v240, {v(OA + 8*own + 4*q, 4)} offset:{own*4096 + q*1024}')
    a('s_cmp_ge_u32 s23, 28\ns_cbranch_scc1 A_ny\ns_cmp_lt_u32 s3, 4\ns_cbranch_scc1 A_ny\ns_cmp_lg_u32 s94, 0\ns_cbranch_scc1 A_ny')
    for i in range(4): a(f'v_xor_b32 v{196+i}, s20, v{196+i}')
    a('v_or3_b32 v196, v196, v197, v198\nv_or_b32 v196, v196, v199\nv_cmp_ne_u32 vcc, 0, v196')
    a('s_add_u32 s92, s93, 16\ns_nop 3\ns_cbranch_vccz A_y')
    poll(a, 'PL_f3', 238, 196, x4=True)
    a.label('A_y')
    a('buffer_load_dwordx4 v[196:199], v239, s[16:19], s93 offen')
    a('buffer_load_dwordx4 v[212:215], v239, s[16:19], s92 offen')
    a.label('A_ny')
    a('s_waitcnt lgkmcnt(0)\ns_barrier')
    R = 64
    so = lambda src: (src >> 1) * 32768 + (src & 1) * 2048
    for src in range(4):
        a(f'ds_read_b32 v{12+src}, v242 offset:{so(src)}')
    for src in range(4):
        for q in range(2):
            a(f'ds_read_b128 {v(R + 8*src + 4*q, 4)}, v241 offset:{so(src) + q*1024}')
    a(f"""
    s_waitcnt lgkmcnt(8)
    v_add_f32 v12, v12, v13
    v_add_f32 v14, v14, v15
    v_add_f32 v12, v12, v14
    v_rcp_f32 v12, v12
    s_waitcnt lgkmcnt(0)
    """)
    a('v_cndmask_b32 v13, v12, 0, s[100:101]')
    for r in range(8):
        a(f'v_add_f32 v{R+r}, v{R+r}, v{R+8+r}')
        a(f'v_add_f32 v{R+16+r}, v{R+16+r}, v{R+24+r}')
    for r in range(8): a(f'v_add_f32 v{R+r}, v{R+r}, v{R+16+r}')
    for r in range(8): a(f'v_mul_f32 v{R+r}, v{R+r}, v{12 if r < 4 else 13}')
    for r in range(4): a(f'v_cvt_pk_bf16_f32 v{R+8+r}, v{R+2*r}, v{R+2*r+1}')
    a(f'buffer_store_dwordx4 {v(R+8,4)}, v2, s[16:19], s63 offen sc1')
    stamp(a, 8)
    for qg in range(2):
        for src in range(4):
            a(f'ds_read_b32 v{80+4*qg+src}, v243 offset:{qg*16384 + so(src)}')
    a(f"""
    s_mov_b32 s36, {f32bits(2.0**-30)}
    s_mov_b32 s37, {f32bits(2.0**40)}
    s_waitcnt lgkmcnt(0)
    v_add_f32 v80, v80, v81
    v_add_f32 v82, v82, v83
    v_add_f32 v84, v84, v85
    v_add_f32 v86, v86, v87
    v_add_f32 v80, v80, v82
    v_add_f32 v84, v84, v86
    v_cmp_nle_f32 vcc, s36, v80
    v_cmp_nge_f32 s[42:43], s37, v80
    v_cmp_nle_f32 s[44:45], s36, v84
    v_cmp_nge_f32 s[60:61], s37, v84
    s_or_b64 s[42:43], s[42:43], vcc
    s_or_b64 s[44:45], s[44:45], s[60:61]
    s_or_b64 s[42:43], s[42:43], s[44:45]
    s_cbranch_scc1 A_slow
    """)
    a.label('A_done')

def ph_slow(a):
    MX = 192
    a.label('A_slow')
    a(f"""
    s_cmp_lg_u32 s94, 0
    s_cbranch_scc1 A_done
    s_waitcnt vmcnt(0)
    s_barrier
    v_mov_b32 v{MX}, 0xff800000
    v_mov_b32 v{MX+1}, 0xff800000
    """)
    for r in range(0, 32, 2): a(f'v_mov_b64 {v(OA+r,2)}, 0')
    a.label('AS_pass')
    a('s_mov_b32 s37, 0')
    a.label('AS_tile')
    loadK(a, 0); loadV(a, 0); advK(a)
    a('s_waitcnt vmcnt(0)')
    for t in range(2):
        Sx = SB + 16*t
        a(f'v_mfma_f32_32x32x16_bf16 {v(Sx,16)}, {v(KB,4)}, {v(QF+8*t,4)}, 0')
        a(f'v_mfma_f32_32x32x16_bf16 {v(Sx,16)}, {v(KB+4,4)}, {v(QF+8*t+4,4)}, {v(Sx,16)}')
    a('s_nop 15\ns_cmp_lg_u32 s94, 0\ns_cbranch_scc1 AS_p1')
    for t in range(2):
        for r in range(0, 16, 2): a(f'v_max3_f32 v{MX+t}, v{SB+16*t+r}, v{SB+16*t+r+1}, v{MX+t}')
    a('s_branch AS_next')
    a.label('AS_p1')
    for t in range(2):
        Sx = SB + 16*t; Px = PB + 8*t
        for r in range(16): a(f'v_sub_f32 v{Sx+r}, v{Sx+r}, v{MX+t}')
        for r in range(16): a(f'v_exp_f32 v{Sx+r}, v{Sx+r}')
        for r in range(8): a(f'v_cvt_pk_bf16_f32 v{Px+r}, v{Sx+2*r}, v{Sx+2*r+1}')
        a(f'v_mfma_f32_32x32x16_bf16 {v(OA+16*t,16)}, {v(VB,4)}, {v(Px,4)}, {v(OA+16*t,16)}')
        a(f'v_mfma_f32_32x32x16_bf16 {v(OA+16*t,16)}, {v(VB+4,4)}, {v(Px+4,4)}, {v(OA+16*t,16)}')
    a.label('AS_next')
    a(f"""
    s_nop 15
    s_add_u32 s37, s37, 1
    s_cmp_lt_u32 s37, s34
    s_cbranch_scc1 AS_tile
    s_cmp_lg_u32 s94, 0
    s_cbranch_scc1 A_red
    s_lshl_b32 s36, s24, 11
    s_add_u32 s36, s36, {RED}
    s_lshl_b32 s38, s27, 9
    s_add_u32 s38, s38, s36
    v_lshl_add_u32 v9, v1, 3, s38
    ds_write_b64 v9, {v(MX,2)}
    v_lshl_add_u32 v9, v5, 3, s36
    s_waitcnt lgkmcnt(0)
    s_barrier
    """)
    for k in range(8): a(f'ds_read_b64 {v(SB+2*k,2)}, v9 offset:{256*k}')
    a('s_waitcnt lgkmcnt(0)')
    for t in range(2):
        for k in range(0, 8, 2): a(f'v_max3_f32 v{MX+t}, v{SB+2*k+t}, v{SB+2*k+2+t}, v{MX+t}')
    a('s_mov_b32 s94, 1\ns_barrier\ns_branch AS_pass')

L_RDY = 118784
def y_piece(a):
    a(f"""
    s_cmp_ge_u32 s23, 28
    s_cbranch_scc1 P_noy
    s_lshl_b32 s36, s29, 11
    s_add_u32 s36, s36, {YL}
    v_add_u32 v203, s36, v2
    ds_write_b128 v203, v[196:199]
    ds_write_b128 v203, v[212:215] offset:1024
    v_lshrrev_b32 v17, 4, v1
    v_and_b32 v18, 3, v1
    v_lshl_add_u32 v17, v17, 2, v18
    v_and_b32 v18, 7, v17
    v_lshrrev_b32 v17, 3, v17
    v_bfe_u32 v19, v1, 2, 2
    v_lshl_add_u32 v18, v18, 3, v19
    v_lshlrev_b32 v18, 4, v18
    v_lshl_add_u32 v18, v17, 3, v18
    v_add_u32 v204, s36, v18
    s_waitcnt lgkmcnt(0)
    ds_read_b64_tr_b16 v[208:209], v204
    ds_read_b64_tr_b16 v[210:211], v204 offset:64
    ds_read_b64_tr_b16 v[216:217], v204 offset:1024
    ds_read_b64_tr_b16 v[218:219], v204 offset:1088
    v_and_b32 v19, 3, v1
    v_lshl_add_u32 v19, v6, 2, v19
    s_lshl_b32 s36, s26, 6
    s_lshl_b32 s37, s29, 4
    s_add_u32 s36, s36, s37
    v_add_u32 v19, s36, v19
    v_mul_u32_u24 v19, 1792, v19
    v_bfe_u32 v17, v1, 2, 3
    v_lshl_add_u32 v205, v17, 4, v19
    s_lshl_b32 s93, s25, 7
    s_add_u32 s93, s93, 896
    s_add_u32 s92, s93, {8*1792}
    s_waitcnt lgkmcnt(0)
    buffer_store_dwordx4 v[208:211], v205, s[12:15], s93 offen {YMOD}
    buffer_store_dwordx4 v[216:219], v205, s[12:15], s92 offen {YMOD}
    """)
    a.label('P_noy')

def ph_out(a):
    a(f"""
    s_and_b32 s29, s3, 3
    v_mov_b32 v15, {L_RDY}
    s_cmp_ge_u32 s3, 4
    s_cbranch_scc1 P_fetch
    ; ---------------- waves 0..3
    s_lshl_b32 s36, s41, {F2S+4}
    s_lshr_b32 s37, s40, 2
    s_lshl_b32 s37, s37, {F2S}
    s_add_u32 s36, s36, s37
    s_and_b32 s37, s40, 3
    s_lshl_b32 s37, s37, 2
    s_add_u32 s36, s36, s37
    s_add_u32 s36, s36, {F2}
    v_lshl_add_u32 v28, v1, {F2S+2}, s36
    v_mov_b32 v29, s20
    v_bfe_u32 v7, v1, 2, 2
    v_xor_b32 v12, s29, v7
    v_lshlrev_b32 v12, 6, v12
    v_bfe_u32 v9, v1, 4, 1
    v_lshl_add_u32 v12, v9, 5, v12
    v_and_b32 v9, 3, v1
    v_lshl_add_u32 v12, v9, 3, v12
    v_lshl_add_u32 v9, v6, 2, v7
    v_lshl_add_u32 v12, v9, 8, v12
    v_add_u32 v13, {224*256}, v12          ; heads 8..15
    s_waitcnt vmcnt(0)
    s_barrier
    """)
    ACC = 224; WF = 32; OF = 160
    def wread(hd):
        for f in range(2):
            for e in range(2):
                row = 28*hd + 16*f + 8*e - (224 if hd >= 8 else 0)
                a(f'ds_read_b64_tr_b16 {v(WF + 8*hd + 4*f + 2*e, 2)}, v{13 if hd >= 8 else 12} offset:{row*256}')
    a('s_lshl_b64 exec, 1, s3\nbuffer_store_dword v29, v28, s[16:19], 0 offen sc1\ns_mov_b64 exec, -1')
    stamp(a, 9)
    for hd in range(13): wread(hd)
    a(f"""
    v_add_u32 v10, {OL}, v2
    s_lshl_b32 s36, s52, 5
    v_add_u32 v11, s36, v5
    v_mul_u32_u24 v11, 1792, v11
    v_lshl_add_u32 v11, v6, 4, v11
    s_lshl_b32 s30, s53, 2
    s_add_u32 s30, s30, s29
    s_lshl_b32 s32, s30, 6
    """)
    a('s_cmp_ge_u32 s30, 14\ns_cbranch_scc1 P_fin')
    stamp(a, 10)
    a(f'v_lshl_add_u32 v14, v1, 2, v15')
    def need(g):
        a('s_waitcnt lgkmcnt(0)')
        a.label(f'P_n{g}')
        a(f'v_cmp_eq_u32 vcc, s20, v28\ns_nop 1\ns_bitcmp1_b32 vcc_lo, {g}\ns_cbranch_scc0 P_r{g}')
        a.label(f'P_g{g}')
    def mf(g):
        for n in range(8):
            c = '0' if (g == ORD[0] and n == 0) else v(ACC, 16)
            a(f'v_mfma_f32_32x32x16_bf16 {v(ACC,16)}, {v(WF + 32*g + 4*n,4)}, {v(OF + 32*(ORD.index(g)%2) + 4*n,4)}, {c}')
    ORD = [0, 1, 2, 3]
    a('ds_read_b32 v28, v14')
    for i, g in enumerate(ORD):
        need(g)
        for n in range(8): a(f'ds_read_b128 {v(OF + 32*(i%2) + 4*n, 4)}, v10 offset:{g*8192 + n*1024}')
        if g == 3:
            for hd in range(13, 16): wread(hd)
        if i < 3: a('ds_read_b32 v28, v14')
        if i > 0: mf(ORD[i-1])
    a('s_waitcnt lgkmcnt(0)')
    mf(ORD[3])
    a.label('P_epi')
    stamp(a, 11)
    T = 40
    for r in range(8): a(f'v_cvt_pk_bf16_f32 v{T+r}, v{ACC+2*r}, v{ACC+2*r+1}')
    for q in range(2):
        a(f'v_permlane32_swap_b32 v{T+4*q}, v{T+4*q+2}')
        a(f'v_permlane32_swap_b32 v{T+4*q+1}, v{T+4*q+3}')
    a(f'buffer_store_dwordx4 {v(T,4)}, v11, s[12:15], s32 offen {OMOD}')
    a(f'buffer_store_dwordx4 {v(T+4,4)}, v11, s[12:15], s32 offen offset:32 {OMOD}')
    a('s_branch P_fin')
    for g in range(4):
        a.label(f'P_r{g}')
        a(f'ds_read_b32 v28, v14\ns_add_u32 s95, s95, 1\ns_cmp_lt_u32 s95, 0x200000\ns_waitcnt lgkmcnt(0)\ns_cbranch_scc1 P_n{g}\ns_branch P_g{g}')
    a.label('P_fetch')
    a(f"""
    s_lshl_b32 s37, s52, {F2S+2}
    s_lshl_b32 s38, s29, {F2S}
    s_add_u32 s37, s37, s38
    s_add_u32 s37, s37, {F2}
    v_lshl_add_u32 v16, v1, 2, s37
    s_lshl_b32 s38, s52, 15
    s_lshl_b32 s39, s29, 13
    s_add_u32 s38, s38, s39
    s_add_u32 s38, s38, {WS_O}
    s_add_u32 s39, s39, {OL}
    s_lshl_b32 s37, s29, 2
    v_add_u32 v15, s37, v15
    v_mov_b32 v14, s20
    s_waitcnt vmcnt(0)
    s_barrier
    """)
    stamp(a, 9)
    a(f's_cmp_lg_u32 s3, 7\ns_cbranch_scc1 P_nowo\ns_mov_b32 s48, {96*1024}\ns_mov_b32 s50, {96*3584}')
    a.label('P_wo')
    a(f"""
    s_mov_b32 m0, s48
    s_add_u32 s48, s48, 1024
    buffer_load_dwordx4 v8, s[8:11], s50 offen lds
    s_add_u32 s50, s50, 3584
    s_cmp_le_u32 s50, {D*D*2}
    s_cbranch_scc1 P_wo
    """)
    a.label('P_nowo')
    if PIPE_POLL:
        a('s_mov_b64 exec, 0xf\ns_mov_b32 s62, 0')
        for k in range(PIPE_POLL - 1):
            a(f'buffer_load_dword v{20+k}, v16, s[16:19], 0 offen sc1\ns_sleep {F2_SLEEP}')
        a.label('PL_f2')
        for k in range(PIPE_POLL):
            a(f'buffer_load_dword v{20+(k+PIPE_POLL-1)%PIPE_POLL}, v16, s[16:19], 0 offen sc1')
            a(f's_waitcnt vmcnt({PIPE_POLL-1})')
            a(f'v_cmp_ne_u32 vcc, s20, v{20+k}\ns_nop 4\ns_cbranch_vccz PL_f2_ok\ns_sleep {F2_SLEEP}')
        a(f's_add_u32 s62, s62, 1\ns_cmp_lt_u32 s62, {POLL_LIMIT}\ns_cbranch_scc1 PL_f2')
        a.label('PL_f2_ok')
        a('s_mov_b64 exec, -1')
    else:
        poll(a, 'PL_f2', 16, 17, mask=0xf, sleep=F2_SLEEP)
    stamp(a, 10)
    for hlf in range(2):
        a(f's_add_u32 m0, s39, {hlf*4096}')
        if hlf: a('s_add_u32 s38, s38, 4096')
        else: a('s_nop 0')
        for n in range(4): a(f'buffer_load_dwordx4 v2, s[16:19], s38 offen offset:{n*1024} sc1 lds')
    a('s_waitcnt vmcnt(0)\nds_write_b32 v15, v14')
    stamp(a, 11)
    y_piece(a)
    a('s_cmp_lg_u32 s2, 240\ns_cbranch_scc1 P_fin\ns_cmp_lg_u32 s3, 4\ns_cbranch_scc1 P_fin')
    a(f'v_lshlrev_b32 v16, {F2S}, v5\nv_add_u32 v16, {F2 + (56 << (F2S+2))}, v16')
    poll(a, 'PL_ep', 16, 20, x4=True, sleep=2)
    a(f's_mov_b32 s36, {EPOCH}')
    signal(a, 36, 16, 17)
    a.label('P_fin')

def kernel(a):
    if STAMPS or DIAG >= 0:
        a('v_mov_b32 v254, 0')
        stamp(a, 0)
    prologue(a)
    ph_front(a)
    ph_att(a)
    ph_out(a)
    if DIAG >= 0:
        a('s_waitcnt vmcnt(0)')
        stamp(a, 12)
        a(f"""
        s_cmp_lg_u32 s3, {int(os.environ.get('DIAGW', 0))}
        s_cbranch_scc1 L_end
        s_cmp_ge_u32 s23, 28
        s_cbranch_scc1 L_end
        v_readlane_b32 s36, v254, 0
        v_readlane_b32 s37, v254, {DIAG}
        s_memrealtime s[90:91]
        s_waitcnt lgkmcnt(0)
        s_sub_u32 s36, s37, s36
        s_min_u32 s36, s36, 10000
        s_mov_b32 s37, s90
        """)
        a.label('D_spin')
        a("""
        s_memrealtime s[90:91]
        s_waitcnt lgkmcnt(0)
        s_sub_u32 s38, s90, s37
        s_cmp_lt_u32 s38, s36
        s_cbranch_scc1 D_spin
        """)
    if STAMPS:
        a('s_waitcnt vmcnt(0)')
        stamp(a, 12)
        a(f"""
        s_mov_b32 s18, {WS_STAMP + (1<<20)}
        s_lshl_b32 s36, s2, 3
        s_add_u32 s36, s36, s3
        s_lshl_b32 s36, s36, 6
        s_add_u32 s36, s36, {WS_STAMP}
        v_lshl_add_u32 v2, v1, 2, s36
        s_mov_b64 exec, 0xffff
        buffer_store_dword v254, v2, s[16:19], 0 offen
        s_cmp_lg_u32 s2, 100
        s_cbranch_scc1 L_end
        s_cmp_lg_u32 s3, 0
        s_cbranch_scc1 L_end
        v_readfirstlane_b32 s36, v254
        v_lshlrev_b32 v2, 2, v1
        v_subrev_u32 v254, s36, v254
        s_mov_b64 exec, 0x7ffe
        """)
        srd(a, 56, P_DBG, 256)
        a('buffer_store_dword v254, v2, s[56:59], 0 offen')
    a.label('L_end')
    a('s_endpgm')
    ph_slow(a)

def build(path):
    hdr = open(f'cdna_kernels/{NAME}.s.ref').read().split('\n')
    out = [l for l in hdr if l.startswith(';') and '@launch' not in l][:16]
    out.append(f'; @launch grid=(256,1,1) block=(512,1,1) lds={LDS_TOTAL}')
    out.append('.amdgcn_target "amdgcn-amd-amdhsa--gfx950"')
    out.append('.text')
    label = NAME + '_kernel'
    a = Asm(); kernel(a)
    txt = '\n'.join(out) + f'\n.globl {label}\n.p2align 8\n.type {label},@function\n{label}:\n' + a.finalize()
    txt += f'''.section .rodata,"a"
.p2align 6
.amdhsa_kernel {label}
  .amdhsa_next_free_vgpr 256
  .amdhsa_next_free_sgpr 102
  .amdhsa_accum_offset 256
  .amdhsa_group_segment_fixed_size 0
  .amdhsa_kernarg_size 104
  .amdhsa_user_sgpr_count 2
  .amdhsa_user_sgpr_kernarg_segment_ptr 1
  .amdhsa_system_sgpr_workgroup_id_x 1
.end_amdhsa_kernel
'''
    open(path, 'w').write(txt)

if __name__ == '__main__':
    if '--stamps' in sys.argv: STAMPS = True; sys.argv.remove('--stamps')
    path = sys.argv[1] if len(sys.argv) > 1 else f'cdna_kernels/{NAME}.s'
    build(path)
    import subprocess
    subprocess.run(['clang', '-x', 'assembler', '-target', 'amdgcn-amd-amdhsa', '-mcpu=gfx950', '-c', path, '-o', '_sz.o'], check=True)
    hdr = subprocess.run(['llvm-objdump', '-h', '_sz.o'], capture_output=True, text=True).stdout
    size = int([l for l in hdr.splitlines() if '.text' in l][0].split()[2], 16)
    CODE_KB[0] = size // 1024 - 1
    _gw[0] = 0
    build(path)
    print('code bytes', size)
```

```python
import sys, math, struct, os, re
DBG = os.environ.get('DBG', '')
sys.path.insert(0, 'work')
from asmgen import *

STAMPS = False
NAME = 'concat_heads__mha_block__ssm_conv_s4d__prompt'
S = 2048; D = 448; H = 16; DH = 28
TILEB = 56 * 512
FS = int(os.environ.get('FS', 4))
F0 = 0; F1 = 32768; F2 = 65536; EPOCH = 98304; F3 = 102400
WS_Q = 131072
WS_K = WS_Q + 64 * TILEB
WS_V = WS_K + 64 * TILEB
WS_O = WS_V + 64 * TILEB
WS_UT = WS_O + 64 * 32768
WS_YT = WS_UT + 112 * 16384
WS_END = WS_YT + 224 * 8192
WS_STAMP = 16 << 20
LDS_TOTAL = 163840
POLL_LIMIT = 20000
PRIO_IT = 3
PRE_C = float(os.environ.get('PRE_C', 1.6))
B_FIRST = int(os.environ.get('B_FIRST', 1))
GS = eval(os.environ.get('GS', '(1,2,3,4,5,6,7,8,9)'))
BW = eval(os.environ.get('BW', '[4,3,2,2,2,2,4,3,3,3,3,3,3,3]'))
PRIO_U = int(os.environ.get('PRIO_U', 4))
SIG_CUT = float(os.environ.get('SIG_CUT', 0.4))
LOOK_POS = int(os.environ.get('LOOK_POS', 1))
F2S = int(os.environ.get('F2S', 7))
PIPE_POLL = int(os.environ.get('PIPE_POLL', 0))
F2_SLEEP = int(os.environ.get('F2_SLEEP', 1))
AMAP = int(os.environ.get('AMAP', 0))
LITE_SLEEP = int(os.environ.get('LITE_SLEEP', 10))
B_PRE = int(os.environ.get('B_PRE', 10))
B_LAST = int(os.environ.get('B_LAST', 13))
D_PER = int(os.environ.get('D_PER', 0))
PKMUL = int(os.environ.get('PKMUL', 0))
NBP = int(os.environ.get('NBP', 7))
KM_PTS = eval(os.environ.get('KM_PTS', '(7, 13)'))
B_PRIO = int(os.environ.get('B_PRIO', 0))
KM_SPLIT = int(os.environ.get('KM_SPLIT', 10))
A_SLEEP0 = int(os.environ.get('A_SLEEP0', 12))
KM_J = int(os.environ.get('KM_J', 1))
BPRE_J = int(os.environ.get('BPRE_J', 0))
A_SLEEP = int(os.environ.get('A_SLEEP', 3))
FILL_MAX = int(os.environ.get('FILL_MAX', 16))
YMOD = os.environ.get('YMOD', 'nt')
OMOD = os.environ.get('OMOD', 'nt')
SPREAD = int(os.environ.get('SPREAD', 1))
CODE_KB = [1]
CODE_PF = int(os.environ.get('CODE_PF', 1))
NA = int(os.environ.get('NA', 16))
PRIO_LEFT = int(os.environ.get('PRIO_LEFT', 1))
CONV_PRIO = int(os.environ.get('CONV_PRIO', 0))
PRIO_CMP = 'lt'
SCHED_C = [3, 3, 3, 1, 1]
U_ISS = int(os.environ.get('U_ISS', -1)); U_TR = int(os.environ.get('U_TR', 4)); F0_SIG = int(os.environ.get('F0_SIG', 7))
F0_TRY = (7, 10)
F0_LAG = 2
PRE_ST = int(os.environ.get('PRE_ST', 2))
CONV_T0 = int(os.environ.get('CONV_T0', 22))
XMOD = os.environ.get('XMOD', '')
F1_SLEEP = 8
KG_CUT = float(os.environ.get('KG_CUT', 0.4))
LD_PER = int(os.environ.get('LD_PER', 50))

def f32bits(x): return struct.unpack('<I', struct.pack('<f', x))[0]
QSCALE = math.log2(math.e) / math.sqrt(DH)
LOG2E = math.log2(math.e)
P_X, P_W, P_WO, P_U, P_LA, P_AI, P_CR, P_CI, P_DT, P_DS, P_OUT, P_DBG, P_WS = [64 + 2*i for i in range(13)]

DIAG = int(os.environ.get('DIAG', -1))
def stamp(a, n):
    if STAMPS or (DIAG >= 0 and n in (0, DIAG)):
        a('s_memrealtime s[90:91]')
        a('s_waitcnt lgkmcnt(0)')
        a(f'v_writelane_b32 v254, s90, {n}')
        if n in (6, 7) and os.environ.get('CYC'):
            a('s_memtime s[90:91]')
            a('s_waitcnt lgkmcnt(0)')
            a(f'v_writelane_b32 v254, s90, {n+7}')

def srd(a, base_s, ptr_s, nbytes):
    a(f's_mov_b32 s{base_s}, s{ptr_s}')
    a(f's_and_b32 s{base_s+1}, s{ptr_s+1}, 0xffff')
    a(f's_mov_b32 s{base_s+2}, {nbytes}')
    a(f's_mov_b32 s{base_s+3}, 0x20000')

def poll(a, name, voff, tmp, mask=-1, x4=False, sleep=4):
    if mask != -1:
        a(f's_mov_b32 exec_lo, {mask & 0xffffffff}')
        a(f's_mov_b32 exec_hi, {mask >> 32}')
    a('s_mov_b32 s62, 0')
    a.label(name)
    if x4:
        a(f'buffer_load_dwordx4 {v(tmp,4)}, v{voff}, s[16:19], 0 offen sc1')
        a('s_waitcnt vmcnt(0)')
        for i in range(4): a(f'v_xor_b32 v{tmp+i}, s20, v{tmp+i}')
        a(f'v_or3_b32 v{tmp}, v{tmp}, v{tmp+1}, v{tmp+2}')
        a(f'v_or_b32 v{tmp}, v{tmp}, v{tmp+3}')
        a(f'v_cmp_ne_u32 vcc, 0, v{tmp}')
    else:
        a(f'buffer_load_dword v{tmp}, v{voff}, s[16:19], 0 offen sc1')
        a('s_waitcnt vmcnt(0)')
        a(f'v_cmp_ne_u32 vcc, s20, v{tmp}')
    a('s_nop 4')
    a(f's_cbranch_vccz {name}_ok')
    a(f's_sleep {sleep}')
    a('s_add_u32 s62, s62, 1')
    a(f's_cmp_lt_u32 s62, {POLL_LIMIT}')
    a(f's_cbranch_scc1 {name}')
    a.label(name + '_ok')
    a('s_mov_b64 exec, -1')

def signal(a, soff, vt0, vt1):
    a(f'v_mov_b32 v{vt0}, s{soff}')
    a(f'v_mov_b32 v{vt1}, s20')
    a('s_mov_b64 exec, 1')
    a(f'buffer_store_dword v{vt1}, v{vt0}, s[16:19], 0 offen sc1')
    a('s_mov_b64 exec, -1')


CV, C1 = 250, 251
def garrive(a, off):
    a('s_mov_b64 exec, 1')
    a(f'ds_add_u32 v{CV}, v{C1} offset:{off}')
    a('s_mov_b64 exec, -1')
_gw = [0]
def gwait(a, off, target, tmp):
    _gw[0] += 1; name = f'GW{_gw[0]}'
    a.label(name)
    a(f'ds_read_b32 v{tmp}, v{CV} offset:{off}')
    a('s_waitcnt lgkmcnt(0)')
    a(f'v_readfirstlane_b32 s62, v{tmp}')
    a(f's_cmp_ge_u32 s62, {target}')
    a(f's_cbranch_scc1 {name}_ok')
    a('s_sleep 1')
    a('s_add_u32 s95, s95, 1')
    a('s_cmp_lt_u32 s95, 0x200000')
    a(f's_cbranch_scc1 {name}')
    a.label(name + '_ok')

def prologue(a):
    a(f"""
    s_cmp_ge_u32 s2, 256
    s_cbranch_scc1 L_end
    s_load_dwordx16 s[64:79], s[0:1], 0
    s_load_dwordx8 s[80:87], s[0:1], 64
    s_load_dwordx2 s[88:89], s[0:1], 96
    v_and_b32 v1, 63, v0
    v_lshrrev_b32 v2, 6, v0
    v_readfirstlane_b32 s3, v2
    s_and_b32 s22, s2, 7
    s_lshr_b32 s23, s2, 3
    """)
    if CODE_PF:
        a(f"""
        s_getpc_b64 s[96:97]
        s_and_b32 s96, s96, 0xffffff00
        s_and_b32 s98, s23, 3
        s_lshl_b32 s98, s98, 3
        s_add_u32 s98, s98, s3
        s_min_u32 s98, s98, {CODE_KB[0]}
        s_lshl_b32 s98, s98, 10
        v_lshl_add_u32 v2, v1, 4, s98
        global_load_dwordx4 v[192:195], v2, s[96:97]
        """)
    a(f"""
    s_and_b32 s27, s22, 1                  ; odd
    s_lshr_b32 s24, s23, 3                 ; cl' (0..3)
    s_lshl_b32 s25, s27, 2
    s_add_u32 s25, s25, s24
    s_and_b32 s26, s23, 7                  ; rbl
    s_lshl_b32 s28, s26, 1
    s_add_u32 s28, s28, s27
    s_cmp_eq_u32 s24, 3
    s_cselect_b32 s25, 3, s25
    s_cselect_b32 s26, s28, s26
    s_lshl_b32 s24, s24, 1
    s_add_u32 s24, s24, s26
    s_lshr_b32 s28, s22, 1
    s_lshl_b32 s28, s28, 3
    s_add_u32 s26, s26, s28                ; rb
    s_mul_i32 s21, s22, 28
    s_add_u32 s21, s21, s23
    s_cmp_lt_u32 s23, 28
    s_cbranch_scc1 L_full
    s_waitcnt lgkmcnt(0)
    """)
    srd(a, 4, P_W, D * 3 * D * 2)
    a(f"""
    s_sub_u32 s36, s23, 28
    s_lshl_b32 s36, s36, 3
    s_add_u32 s36, s36, s3
    s_mul_i32 s36, s36, {14*2688}
    v_lshrrev_b32 v2, 3, v1
    v_min_u32 v4, 5, v2
    v_mul_u32_u24 v2, 2688, v2
    v_mul_u32_u24 v4, 2688, v4
    v_and_b32 v3, 7, v1
    v_lshl_add_u32 v2, v3, 4, v2
    v_lshl_add_u32 v4, v3, 4, v4
    s_add_u32 s37, s36, {TA*896 + 384}
    buffer_load_dwordx4 v[64:67], v2, s[4:7], s37 offen
    s_add_u32 s37, s37, {8*2688}
    buffer_load_dwordx4 v[68:71], v4, s[4:7], s37 offen
    v_lshrrev_b32 v2, 5, v1
    v_mul_u32_u24 v2, 2688, v2
    v_and_b32 v3, 31, v1
    v_lshl_add_u32 v2, v3, 4, v2
    s_mul_i32 s37, s27, 384
    s_add_u32 s36, s36, s37
    """)
    for n, ty in enumerate((TB, TC)):
        for i in range(7):
            a(f's_add_u32 s37, s36, {ty*896 + 2*i*2688}')
            a(f'buffer_load_dwordx4 {v(72+28*n+4*i,4)}, v2, s[4:7], s37 offen')
    srd(a, 16, P_WS, WS_END)
    srd(a, 12, P_OUT, S * 2 * D * 2)
    a(f"""
    s_mov_b32 s36, {EPOCH}
    buffer_load_dword v253, off, s[16:19], s36 sc1
    s_waitcnt vmcnt(0)
    v_readfirstlane_b32 s20, v253
    s_add_u32 s20, s20, 1
    {'s_endpgm' if 'gemmonly' in DBG else ''}
    s_sleep {LITE_SLEEP}
    s_sub_u32 s36, s23, 28
    s_lshl_b32 s36, s36, 3
    s_add_u32 s36, s36, s3
    s_mul_i32 s36, s36, 12544
    v_lshl_add_u32 v2, v1, 4, s36
    """)
    srd(a, 8, P_WO, D * D * 2)
    for i in range(13):
        a(f's_mov_b32 s36, {1024*i}')
        a(f'buffer_load_dwordx4 {v(64+4*i,4)}, v2, s[8:11], s36 offen')
    a("""
    s_waitcnt vmcnt(0)
    """)
    a('s_mov_b32 s95, 0')
    att_poll_addr(a, 176)
    a.label('L_lite0')
    su, _ = att_pre_groups()
    emit_groups(a, su + tail_setup())
    a('s_cmp_lg_u32 s3, 0\ns_cbranch_scc1 L_lite1')
    poll(a, 'PL_f1a', 176, 180, mask=1 << 63, x4=True, sleep=8)
    poll(a, 'PL_f1b', 176, 180, x4=True, sleep=2)
    a.label('L_lite1')
    a('s_barrier')
    a('s_branch L_pre')
    a.label('L_full')

RING0 = 65536; SLOT = 16384; NS = 4; DEPTH = 3
def slot_of(j): return (j + 2) % NS
XYP = 1056; XYCH = 53 * XYP
GP = 8384; GCH = 260 * 16
L_G = 0
L_T2 = 114688; TP = 328; T2CH = 8 * TP * 2
L_U = 131072; UCH = 96 * 80
L_CTL = L_U + 2 * UCH
L_TAB = 147456
L_PART = 49152; PSRC = 1024; POWN = 4096
assert L_CTL + 16 <= L_TAB and 4*GP <= L_PART and 2*XYCH <= L_T2

def cmul(o, d, x, e, t):
    if PKMUL:
        o.append(f'v_pk_mul_f32 {v(t,2)}, {v(x,2)}, {v(e,2)} op_sel:[0,0] op_sel_hi:[1,0]')
        o.append(f'v_pk_fma_f32 {v(d,2)}, {v(x,2)}, {v(e,2)}, {v(t,2)} op_sel:[1,1,0] op_sel_hi:[0,1,1] neg_lo:[1,0,0]')
    else:
        o.append(f'v_mul_f32 v{t}, v{x+1}, v{e+1}')
        o.append(f'v_mul_f32 v{t+1}, v{x}, v{e+1}')
        o.append(f'v_fma_f32 v{d}, v{x}, v{e}, -v{t}')
        o.append(f'v_fma_f32 v{d+1}, v{x+1}, v{e}, v{t+1}')

def lines(txt): return [l.strip() for l in txt.split('\n') if l.strip()]

_KM = {}
PKB = [64, 117]
def _mk():
    pairs_pre = [20, 22, 24, 26, 28, 30, 32, 34, 36, 38, 40, 42, 48, 50, 52, 54]
    for i, r in enumerate(pairs_pre): _KM[r] = 170 + 2*i; _KM[r+1] = 171 + 2*i
    for i, r in enumerate([2, 3, 4, 5, 6, 7, 8, 9]): _KM[r] = 202 + i
    _KM[70] = 48; _KM[71] = 49
    for i, r in enumerate(range(56, 64)): _KM[r] = 40 + i
    for c in range(2):
        for row in range(53): _KM[1000 + 100*c + row] = PKB[c] + row
_mk()
def kmap(l, ch):
    M = _KM
    def one(m): return f'v{M.get(int(m.group(1)), int(m.group(1)))}'
    def rng(m):
        lo = int(m.group(1)); hi = int(m.group(2)); n = M.get(lo, lo); return f'v[{n}:{n+hi-lo}]'
    l = re.sub(r'v\[(\d+):(\d+)\]', rng, l)
    return re.sub(r'\bv(\d+)\b', one, l)

def kgen(ch):
    P = 240 + 4*ch
    pre = lines(f"""
    {'s_lshl_b32 s58, s38, 16' if ch == 0 else 's_and_b32 s58, s38, 0xffff0000'}
    v_mov_b32 v4, s58
    v_mul_f32 v4, {f32bits(LOG2E)}, v4
    v_exp_f32 v4, v4
    v_lshlrev_b32 v2, 16, v{P}
    v_lshlrev_b32 v3, 16, v{P+1}
    v_lshlrev_b32 v20, 16, v{P+2}
    v_lshlrev_b32 v21, 16, v{P+3}
    v_cvt_pk_bf16_f32 v4, v4, v4
    v_mul_f32 v2, {f32bits(LOG2E)}, v2
    v_exp_f32 v2, v2
    v_and_b32 v4, 0xffff0000, v4
    v_mul_f32 v3, v3, v4
    v_cvt_pk_bf16_f32 v2, v2, v2
    v_and_b32 v2, 0xffff0000, v2
    v_mul_f32 v2, v2, v4
    v_mul_f32 v2, {f32bits(-LOG2E)}, v2
    v_mul_f32 v3, {f32bits(1/(2*math.pi))}, v3
    v_add_f32 v4, v4, v4
    v_mul_f32 v20, v20, v4
    v_mul_f32 v21, v21, v4
    """)
    E1, E8, E256, E2, E4, E16, E32 = 22, 24, 26, 28, 30, 32, 34
    for (E, p) in ((E1, 1.0), (E8, 8.0), (E256, 256.0)):
        pre += lines(f"""
        v_mul_f32 v6, {f32bits(p)}, v2
        v_mul_f32 v7, {f32bits(p)}, v3
        v_exp_f32 v6, v6
        v_fract_f32 v7, v7
        v_cos_f32 v8, v7
        v_sin_f32 v9, v7
        v_mul_f32 v{E}, v6, v8
        v_mul_f32 v{E+1}, v6, v9
        """)
    cmul(pre, E2, E1, E1, 6); cmul(pre, E16, E8, E8, 8)
    cmul(pre, E4, E2, E2, 6); cmul(pre, E32, E16, E16, 8)
    Y = [48, 50, 52, 54]
    def put(o, row, x, r, neg=False):
        o.append(f'v_cvt_pk_bf16_f32 v{1000+100*ch+row}, v{x}, {"-" if neg else ""}v{x+1}')
    chains = []
    for c in range(4):
        o = []
        cur = {0: None, 1: E8, 2: E16, 3: Y[3]}[c]
        if c == 3: cmul(o, Y[3], E16, E8, 36 + 2*c)
        for step in range(8):
            if cur is None:
                o.append(f'v_mov_b32 v{1000+100*ch+21}, 0x3f80')
                cur = E32; continue
            put(o, 21 + 4*step + c, cur, 44 + c)
            if step < 7: cmul(o, Y[c], cur, E32, 36 + 2*c); cur = Y[c]
        chains.append(o)
    XC, GC, SD, SD2 = 56, 58, 60, 62
    o = []
    put(o, 0, 20, 68, True)
    for step in range(7):
        cmul(o, XC, 20 if step == 0 else XC, E1, 6); put(o, step + 1, XC, 68, True)
    chains.append(o)
    grow = {1: 8, 2: 12, 3: 14, 4: 16, 5: 17, 6: 18, 7: 19, 8: 20}
    G = [58, 10, 12, 58, 58, 58, 58, 58]
    G = [10, 12, 18, 58, 58, 58, 58, 58]
    o = []
    for step in range(8):
        cmul(o, G[step], 20 if step == 0 else G[step-1], E256, 8); put(o, grow[step+1], G[step], 69, True)
    chains.append(o)
    o = [None]*(9 if PKMUL else 15)
    cmul(o, SD, G[0], E2, 70); put(o, 9, SD, 5, True)
    cmul(o, SD2, G[0], E4, 70); put(o, 10, SD2, 5, True)
    cmul(o, SD, SD2, E2, 70); put(o, 11, SD, 5, True)
    cmul(o, SD2, G[1], E4, 70); put(o, 13, SD2, 5, True)
    cmul(o, SD, G[2], E4, 70); put(o, 15, SD, 5, True)
    chains.append(o)
    body = []
    for k in range(max(len(c) for c in chains)):
        for c in chains:
            if k < len(c) and c[k] is not None: body.append(c[k])
    return [kmap(l, ch) for l in pre], [kmap(l, ch) for l in body]

def kmfma():
    FA = 112; FB = 144; KA = 176; NBF = 8
    o = []
    LA = 5
    for st in range(16 + LA):
        if st < 16:
            o.append(f'ds_read_b128 {v(FA+4*(st%NBF),4)}, v20 offset:{st*64}')
            o.append(f'ds_read_b128 {v(FB+4*(st%NBF),4)}, v21 offset:{st*64}')
        if st >= LA:
            k = st - LA
            o.append(f's_waitcnt lgkmcnt({2*min(LA, 15-k)})')
            o.append(f'v_mfma_f32_16x16x32_bf16 {v(KA,4)}, {v(FA+4*(k%NBF),4)}, {v(FB+4*(k%NBF),4)}, {"0" if k == 0 else v(KA,4)}')
    o += lines(f"""
    ds_write_b16 v26, v32
    v_add_f32 v{KA}, v{KA}, v27
    v_cvt_pk_bf16_f32 v{KA+4}, v{KA}, v{KA+1}
    v_cvt_pk_bf16_f32 v{KA+5}, v{KA+2}, v{KA+3}
    ds_write_b16 v22, v{KA+4}
    ds_write_b16_d16_hi v23, v{KA+4}
    ds_write_b16 v24, v{KA+5}
    ds_write_b16_d16_hi v25, v{KA+5}
    s_waitcnt lgkmcnt(0)
    """)
    return o

def subroutines(a):
    a.label('SUB_KMFMA')
    for l in kmfma(): a(l)
    a('s_setpc_b64 s[90:91]')

def kmaddr(a, ch):
    a(f"""
    v_and_b32 v20, 15, v1
    v_lshrrev_b32 v21, 4, v1
    v_mul_u32_u24 v20, {XYP}, v20
    v_lshl_add_u32 v20, v21, 4, v20
    s_and_b32 s36, s3, 1
    s_mul_i32 s36, s36, {16*XYP}
    s_add_u32 s36, s36, {21*XYP + (1-ch)*XYCH}
    v_add_u32 v21, s36, v20
    s_mul_i32 s36, s63, {16*XYP}
    s_add_u32 s36, s36, {(1-ch)*XYCH}
    v_add_u32 v20, s36, v20
    v_and_b32 v26, 7, v1
    v_mul_u32_u24 v26, {2*TP}, v26
    v_add_u32 v26, {L_T2 + 2*(TP-1) + ch*T2CH}, v26
    v_mov_b32 v32, 0
    """)

def kmskip(a, ch):
    a(f"""
    {'s_lshl_b32 s36, s39, 16' if ch == 0 else 's_and_b32 s36, s39, 0xffff0000'}
    s_cmp_eq_u32 s29, 0
    s_cselect_b32 s36, s36, 0
    v_mov_b32 v27, 0
    v_writelane_b32 v27, s36, 0
    """)
def call(a, name): a(f's_call_b64 s[90:91], {name}')

def gbuild(a, ch, copies):
    g = 64; d = 80
    lo = min(copies); hi = max(copies) + 8
    for i in range(lo, hi): a(f'ds_read_u16 v{g+i}, v{224+i} offset:{ch*T2CH}')
    a('s_waitcnt lgkmcnt(0)')
    for t in copies:
        for i in range(4): a(f'v_lshl_or_b32 v{d+4*t+i}, v{g+t+2*i+1}, 16, v{g+t+2*i}')
        a(f'ds_write_b128 v249, {v(d+4*t,4)} offset:{t*GP + ch*GCH}')

def gtabs(a):
    a(f"""
    v_and_b32 v14, 255, v0
    v_lshlrev_b32 v249, 4, v14
    v_add_u32 v15, {L_TAB}, v249
    """)
    for q in range(3): a(f'ds_read_b128 {v(224+4*q,4)}, v15 offset:{q*4096}')
    a(f'ds_read_b128 v[22:25], v15 offset:{3*4096}')

K_, V_, Q_ = 1, 2, 0
TA, TB, TC = Q_, K_, V_
stages = [[('x',0),(TA,0)], [('x',1),('x',2)], [(TA,1),(TA,2)]]
for _i in range(3, 7): stages.append([('x', _i), (TA, _i)])
_rest = [(TB, i) for i in range(7)] + [(TC, i) for i in range(7)]
for _i in range(7): stages.append(_rest[2*_i:2*_i+2])
NST = len(stages)

def ph_front(a):
    a(f"""
    s_mov_b32 s95, 0
    v_mov_b32 v{CV}, {L_CTL}
    v_mov_b32 v{C1}, 1
    v_lshrrev_b32 v3, 3, v1
    v_and_b32 v4, 7, v1
    s_and_b32 s29, s3, 3                   ; lw
    s_bfe_u32 s63, s3, 0x10001
    s_and_b32 s61, s3, 1
    s_cmp_lt_u32 s3, 4
    s_cbranch_scc1 Q_comp
    """)
    ssm_waves(a)
    a.label('Q_comp')
    comp_waves(a)

UV = [220, 221, 222, 252, 255]
def ssm_waves(a):
    a(f"""
    s_setprio {B_PRIO}
    v_and_b32 v14, 255, v0
    s_lshl_b32 s37, s21, 10
    v_lshl_add_u32 v248, v14, 1, s37
    s_lshl_b32 s28, s29, 1
    v_xor_b32 v5, s28, v4
    v_lshlrev_b32 v5, 4, v5
    s_lshl_b32 s30, s26, 6
    s_lshl_b32 s31, s29, 4
    s_add_u32 s30, s30, s31
    v_add_u32 v6, s30, v3
    v_mul_u32_u24 v6, 896, v6
    s_lshl_b32 s31, s25, 7
    v_add_u32 v6, s31, v6
    v_add_u32 v7, v6, v5
    v_xor_b32 v5, 16, v5
    v_add_u32 v6, v6, v5
    v_add_u32 v6, 7168, v6
    s_lshl_b32 s31, s61, 11
    s_mul_i32 s32, s63, {UCH}
    s_add_u32 s31, s31, s32
    s_add_u32 s31, s31, {L_U + 2560}
    s_mov_b32 m0, s31
    s_lshl_b32 s36, s21, 2
    s_waitcnt lgkmcnt(0)
    """)
    srd(a, 16, P_WS, WS_END)
    a(f"""
    s_cmp_lg_u32 s3, 4
    s_cbranch_scc1 Q_noep0
    s_mov_b32 s33, {EPOCH}
    buffer_load_dword v253, off, s[16:19], s33 sc1
    """)
    a.label('Q_noep0')
    for i in range(4):
        srd(a, 40 + 4*i, P_LA + 2*i, D * 256 * 2)
        a(f'buffer_load_ushort v{240+i}, v248, s[{40+4*i}:{43+4*i}], 0 offen nt')
        a(f'buffer_load_ushort v{244+i}, v248, s[{40+4*i}:{43+4*i}], 0 offen offset:512 nt')
    srd(a, 8, P_U, S * D * 2)
    a(f"""
    v_mov_b32 v54, v7
    v_mov_b32 v55, v6
    s_mov_b32 s34, s31
    """)
    if U_ISS < 0:
        a('buffer_load_dwordx4 v54, s[8:11], 0 offen nt lds')
        a('s_add_u32 m0, s34, 1024\ns_nop 0\nbuffer_load_dwordx4 v55, s[8:11], 0 offen nt lds')
    a(f"""
    s_add_u32 s{P_DT}, s{P_DT}, s36
    s_addc_u32 s{P_DT+1}, s{P_DT+1}, 0
    s_add_u32 s{P_DS}, s{P_DS}, s36
    s_addc_u32 s{P_DS+1}, s{P_DS+1}, 0
    s_load_dword s38, s[{P_DT}:{P_DT+1}], 0
    s_load_dword s39, s[{P_DS}:{P_DS+1}], 0
    """)
    srd(a, 12, P_OUT, S * 2 * D * 2)
    a(f"""
    v_and_b32 v5, 1, v1
    v_bfe_u32 v6, v1, 1, 1
    v_lshrrev_b32 v7, 4, v1
    v_add_u32 v2, s28, v5
    v_xor_b32 v7, v7, v2
    v_lshlrev_b32 v7, 4, v7
    v_lshl_add_u32 v7, v6, 3, v7
    v_bfe_u32 v6, v1, 2, 2
    v_lshl_add_u32 v6, v5, 3, v6
    v_lshl_add_u32 v7, v6, 7, v7
    v_add_u32 v50, s31, v7
    v_xor_b32 v51, 64, v50
    s_lshl_b32 s31, s25, 18
    s_lshl_b32 s33, s26, 9
    s_add_u32 s31, s31, s33
    s_lshl_b32 s33, s29, 7
    s_add_u32 s31, s31, s33
    s_add_u32 s31, s31, {WS_UT}
    v_lshlrev_b32 v52, 14, v3
    v_lshl_add_u32 v52, v4, 4, v52
    v_add_u32 v52, s31, v52
    s_lshl_b32 s35, s25, {FS+5}
    s_lshl_b32 s33, s26, {FS}
    s_add_u32 s35, s35, s33
    s_lshl_b32 s33, s29, 2
    s_add_u32 s35, s35, s33
    """)
    kmaddr(a, 1)
    t = Asm()
    t(f"""
    s_mov_b32 s101, {L_G + 4096}
    v_and_b32 v2, 3, v1
    v_mul_u32_u24 v2, {GP}, v2
    v_bfe_u32 v3, v1, 2, 2
    v_lshl_add_u32 v2, v3, 4, v2
    v_bfe_u32 v3, v1, 4, 1
    v_mul_u32_u24 v3, {GCH}, v3
    v_add3_u32 v217, v2, v3, s101
    s_lshl_b32 s36, s21, 1
    s_lshr_b32 s56, s36, 2
    s_lshl_b32 s56, s56, 14
    s_and_b32 s36, s36, 3
    s_lshl_b32 s36, s36, 4
    s_add_u32 s56, s56, s36
    s_add_u32 s56, s56, {WS_UT}
    s_mov_b32 s92, s56
    """)
    for k in range(5):
        t(f"""
        v_add_u32 v2, {64*k}, v1
        v_mul_u32_u24 v3, 205, v2
        v_lshrrev_b32 v3, 10, v3
        v_mul_u32_u24 v4, 5, v3
        v_sub_u32 v4, v2, v4
        v_min_u32 v4, 3, v4
        v_lshl_add_u32 v3, v3, 2, v4
        v_lshlrev_b32 v{UV[k]}, 6, v3
        """)
    t(f"""
    s_lshr_b32 s36, s21, 5
    s_lshl_b32 s36, s36, {FS+5}
    v_and_b32 v17, 31, v1
    v_lshl_add_u32 v223, v17, {FS}, s36
    v_lshrrev_b32 v18, 5, v1
    v_and_b32 v19, 3, v17
    v_sub_u32 v19, 3, v19
    v_mul_u32_u24 v19, {GP}, v19
    v_lshrrev_b32 v2, 2, v17
    v_lshlrev_b32 v3, 1, v18
    v_sub_u32 v2, v3, v2
    v_lshl_add_u32 v19, v2, 3, v19
    s_mul_i32 s36, s61, {GCH}
    s_lshl_b32 s56, s63, 10
    s_sub_u32 s36, s36, s56
    s_add_u32 s36, s36, {L_G + 8*511 - 32*94}
    v_add_u32 v218, s36, v19
    v_mul_u32_u24 v2, 80, v17
    v_lshl_add_u32 v2, v18, 4, v2
    s_mul_i32 s36, s61, {UCH}
    s_mul_i32 s56, s63, {16*80}
    s_sub_u32 s36, s36, s56
    s_add_u32 s36, s36, {L_U + 17*80}
    v_add_u32 v219, s36, v2
    v_mov_b64 v[32:33], 0
    v_mov_b64 v[34:35], 0
    v_and_b32 v14, 255, v0
    v_lshlrev_b32 v36, 4, v14
    v_add_u32 v36, {L_U}, v36
    v_cmp_gt_u32 vcc, 160, v14
    s_mov_b64 exec, vcc
    ds_write_b128 v36, v[32:35]
    ds_write_b128 v36, v[32:35] offset:{UCH}
    s_mov_b64 exec, -1
    ds_write2_b32 v{CV}, v32, v33 offset0:1 offset1:3
    ds_write_b32 v{CV}, v32
    """)
    for l in t.lines: a(l)
    stamp(a, 13)
    if 'nob' in DBG:
        for _ in range(14): a('s_barrier')
        a('s_branch P_fin')
    a('s_waitcnt lgkmcnt(0)')
    p0, b0 = kgen(0); p1, b1 = kgen(1)
    work = [(l, PRE_C) for l in p1] + [(l, 1) for l in b1] + [(l, PRE_C) for l in p0] + [(l, 1) for l in b0]
    if 'nowork' in DBG: work = []
    dump = {c: [f'ds_write_addtid_b32 v{PKB[c]+row} offset:{row*XYP}' for row in range(53)] for c in range(2)}
    for j in range(NST):
        a('s_barrier')
        if j == 0:
            stamp(a, 1)
            a('s_setprio 0')
            gtabs(a)
            kmskip(a, 1)
        if j == B_FIRST: a(f's_waitcnt vmcnt({2 if U_ISS < 0 else 0})')
        if j == 2:
            a(f's_cmp_lg_u32 s3, 4\ns_cbranch_scc1 Q_noep\nv_add_u32 v253, 1, v253\nds_write_b32 v{CV}, v253 offset:8\ns_waitcnt lgkmcnt(0)')
            a.label('Q_noep')
        if j == 3: a(f'ds_read_b32 v253, v{CV} offset:8')
        if j == F0_SIG:
            a('s_waitcnt vmcnt(0)')
            signal(a, 35, 2, 3)
        if j == U_ISS:
            a('s_mov_b32 m0, s34\ns_nop 0\nbuffer_load_dwordx4 v54, s[8:11], 0 offen nt lds')
            a('s_add_u32 m0, s34, 1024\ns_nop 0\nbuffer_load_dwordx4 v55, s[8:11], 0 offen nt lds')
        if j == U_TR:
            a(f"""
            s_waitcnt vmcnt(0)
            ds_read_b64_tr_b16 v[54:55], v50
            ds_read_b64_tr_b16 v[56:57], v50 offset:512
            ds_read_b64_tr_b16 v[58:59], v51
            ds_read_b64_tr_b16 v[60:61], v51 offset:512
            s_mov_b32 s36, {8*16384}
            s_lshl_b32 m0, s29, 8
            s_waitcnt lgkmcnt(0)
            {'' if 'noust' in DBG else 'buffer_store_dwordx4 v[54:57], v52, s[16:19], 0 offen sc1'}
            {'' if 'noust' in DBG else 'buffer_store_dwordx4 v[58:61], v52, s[16:19], s36 offen sc1'}
            v_readfirstlane_b32 s20, v253
            """)
            for r in range(22, 26): a(f'v_add_u32 v{r}, {T2CH}, v{r}')
        if B_FIRST <= j <= B_LAST:
            tot = sum(c for _, c in work); budget = tot * BW[j] / sum(BW[j:B_LAST+1])
            while work and (budget > 0 or j == B_LAST):
                l, c = work.pop(0); a(l); budget -= c
        if U_TR < j < NST - 1:
            for l in dump[1][:D_PER]: a(l)
            dump[1] = dump[1][D_PER:]
    assert not work
    a('s_cmp_eq_u32 s3, 4\ns_cselect_b32 s60, 1, 0\ns_cbranch_scc0 Q_nof0a')
    a('buffer_load_dwordx4 v[28:31], v223, s[16:19], 0 offen sc1')
    a.label('Q_nof0a')
    for l in dump[1]: a(l)
    a(f's_lshl_b32 s36, s29, 8\ns_add_u32 m0, s36, {XYCH}\ns_nop 0')
    for l in dump[0]: a(l)
    stamp(a, 2)
    if 'gemmonly' in DBG: a('s_branch P_fin')
    def nop(): pass
    def udma():
        a('s_add_u32 s93, s92, 16')
        for ch in range(2):
            for k in range(5):
                a(f's_mov_b32 m0, {L_U + 32*80 + ch*UCH + 1024*k}')
                a(f'buffer_load_dwordx4 v{UV[k]}, s[16:19], s{92+ch} offen sc1 lds')
    def look(tag, last=False):
        a(f's_cmp_eq_u32 s60, 0\ns_cbranch_scc1 Q_lk{tag}')
        if last:
            poll(a, 'PL_f0', 223, 28, x4=True, sleep=1)
        else:
            a('s_waitcnt vmcnt(0)')
            for i in range(4): a(f'v_xor_b32 v{28+i}, s20, v{28+i}')
            a('v_or3_b32 v28, v28, v29, v30\nv_or_b32 v28, v28, v31\nv_cmp_ne_u32 vcc, 0, v28')
            a(f's_nop 4\ns_cbranch_vccz Q_lg{tag}')
            a('buffer_load_dwordx4 v[28:31], v223, s[16:19], 0 offen sc1')
            a(f's_branch Q_lk{tag}')
            a.label(f'Q_lg{tag}')
        a('s_call_b64 s[96:97], Q_udma')
        a.label(f'Q_lk{tag}')
    a('s_waitcnt lgkmcnt(0)\ns_barrier')
    stamp(a, 3)
    look('z')
    for l in kmfma(): a(l)
    if LOOK_POS == 0: look('b')
    a('s_barrier')
    stamp(a, 14)
    if LOOK_POS == 1: look('b')
    a('s_mov_b32 exec_hi, 0\nds_write_b128 v217, v[32:35]\ns_mov_b32 exec_hi, -1')
    gbuild(a, 1, (0, 1, 2, 3))
    a(f's_cmp_lg_u32 s3, 4\ns_cbranch_scc1 Q_u0\ns_cmp_lg_u32 s60, 0\ns_cbranch_scc1 Q_u0\ns_waitcnt vmcnt(0)\nds_write_b32 v{CV}, v{C1}')
    a.label('Q_u0')
    a('s_waitcnt lgkmcnt(0)\ns_barrier')
    a('s_cmp_eq_u32 s60, 0\ns_cbranch_scc1 Q_uw')
    look('c', True)
    a('s_waitcnt vmcnt(0)')
    a(f'ds_write_b32 v{CV}, v{C1}')
    a.label('Q_uw')
    gwait(a, 0, 1, 2)
    stamp(a, 4)
    if CONV_PRIO: a('s_setprio 1')
    SC = 4; sc = [0]
    def sarr():
        a('s_waitcnt lgkmcnt(0)'); garrive(a, SC); sc[0] += 4
    Y0, Y1 = 176, 192
    FR = 32; NBUF = 4
    def boff(n): return (n // 2) * 80 + (n % 2) * 32
    def ld(t):
        b = FR + 16 * (t % NBUF); ao = 32*(31-t)
        return [f'ds_read_b64 {v(b,2)}, v218 offset:{ao + 2048}',
                f'ds_read_b64 {v(b+2,2)}, v218 offset:{ao + 2056}',
                f'ds_read_b128 {v(b+4,4)}, v219 offset:{boff(31-t)}',
                f'ds_read_b128 {v(b+8,4)}, v219 offset:{boff(31-t) + 2560}',
                f'ds_read_b64 {v(b+12,2)}, v218 offset:{ao}',
                f'ds_read_b64 {v(b+14,2)}, v218 offset:{ao + 8}']
    def mm(t, first):
        b = FR + 16 * (t % NBUF)
        return [f'v_mfma_f32_32x32x16_bf16 {v(Y0,16)}, {v(b,4)}, {v(b+4,4)}, {"0" if first else v(Y0,16)}',
                f'v_mfma_f32_32x32x16_bf16 {v(Y1,16)}, {v(b,4)}, {v(b+8,4)}, {"0" if first else v(Y1,16)}',
                f'v_mfma_f32_32x32x16_bf16 {v(Y1,16)}, {v(b+12,4)}, {v(b+4,4)}, {v(Y1,16)}']
    for l in ld(0) + ld(1): a(l)
    t_ = Asm()
    t_(f"""
    s_lshl_b32 s36, s29, 12
    s_add_u32 s36, s36, {L_PART}
    v_lshl_add_u32 v216, v1, 4, s36
    s_xor_b32 s36, s36, 8192
    v_lshl_add_u32 v217, v1, 4, s36
    s_lshl_b32 s36, s21, 13
    s_lshl_b32 s60, s61, 12
    s_add_u32 s36, s36, s60
    s_lshl_b32 s60, s63, 11
    s_add_u32 s36, s36, s60
    s_add_u32 s36, s36, {WS_YT}
    v_and_b32 v220, 31, v1
    v_lshrrev_b32 v221, 5, v1
    v_lshlrev_b32 v220, 6, v220
    v_lshl_add_u32 v220, v221, 4, v220
    v_add_u32 v220, s36, v220
    s_mov_b32 s60, s63
    """)
    fillA = [[l] for l in t_.lines]
    su, fillB = att_pre_groups()
    fillA += su + tail_setup()
    if 'nofillc' in DBG:
        emit_groups(a, fillA); fillA = []; stamp(a, 4)
    T0 = CONV_T0
    def take(q, k):
        for _ in range(k):
            if q:
                for l in q.pop(0): a(l)
    if T0 >= 32: fillB = []
    perA = -(-len(fillA) // (3*min(T0, 30))); perB = -(-len(fillB) // (3*max(30 - T0, 1)))
    for t in range(32):
        if t == T0:
            gwait(a, 12, 1, 2)
        else:
            a(f's_waitcnt lgkmcnt({6 if t < 31 else 0})')
        if 'cstamp' in DBG and t in (12, 22): stamp(a, 13 if t == 12 else 14)
        L = ld(t + 2) if t + 2 < 32 else []
        M = mm(t, t == 0)
        q, per = (fillA, perA) if t < T0 else (fillB, perB)
        a(M[0])
        for l in L[:2]: a(l)
        take(q, per)
        a(M[1])
        for l in L[2:4]: a(l)
        take(q, per)
        a(M[2])
        for l in L[4:]: a(l)
        take(q, per)
    assert not fillA and not fillB
    if 'cstamp' in DBG: stamp(a, 3)
    a('s_setprio 1')
    PR = 208 + 16
    PR = 64
    a('s_cmp_eq_u32 s60, 0\ns_cbranch_scc1 S_h0')
    for hf in (1, 0):
        keep = Y1 if hf else Y0; send = Y0 if hf else Y1
        if hf == 0: a.label('S_h0')
        for q in range(4): a(f'ds_write_b128 v216, {v(send + 4*q, 4)} offset:{q*1024}')
        a('s_waitcnt lgkmcnt(0)'); garrive(a, SC)
        gwait(a, SC, 4, 2)
        for q in range(4): a(f'ds_read_b128 {v(PR + 4*q, 4)}, v217 offset:{q*1024}')
        for q in range(4):
            a(f's_waitcnt lgkmcnt({3-q})')
            for e in range(4): a(f'v_add_f32 v{PR+4*q+e}, v{PR+4*q+e}, v{keep+4*q+e}')
        if hf == 1: a('s_branch S_h1')
    a.label('S_h1')
    garrive(a, SC)
    stamp(a, 5)
    for r in range(8): a(f'v_cvt_pk_bf16_f32 v{176+r}, v{PR+2*r}, v{PR+2*r+1}')
    for q in range(2):
        a(f'v_permlane32_swap_b32 v{176+4*q}, v{176+4*q+2}')
        a(f'v_permlane32_swap_b32 v{176+4*q+1}, v{176+4*q+3}')
    a('buffer_store_dwordx4 v[176:179], v220, s[16:19], 0 offen sc1')
    a('buffer_store_dwordx4 v[180:183], v220, s[16:19], 0 offen offset:32 sc1')
    emit_groups(a, att_zero())
    a('s_branch L_att')
    a.label('Q_udma')
    udma()
    a('s_mov_b32 s60, 0\ns_setpc_b64 s[96:97]')

def comp_waves(a):
    XF = 64; ACC = {K_: 176, V_: 192, Q_: 208}; WB = [[8 + 4*i for i in range(8)], [224 + 4*i for i in range(4)] + [40 + 4*i for i in range(4)]]
    a(f"""
    s_sub_u32 s28, s24, 7
    s_cmp_ge_u32 s24, 7
    s_cselect_b32 s27, s28, s24            ; rho
    s_lshl_b32 s30, s29, 4
    v_add_u32 v5, s30, v3
    v_lshrrev_b32 v6, 1, v5
    v_and_b32 v6, 7, v6
    v_xor_b32 v6, v6, v4
    v_lshlrev_b32 v6, 4, v6
    s_lshl_b32 s30, s26, 6
    v_add_u32 v7, s30, v5
    v_mul_u32_u24 v7, 896, v7
    v_add_u32 v244, v7, v6
    v_xor_b32 v6, 64, v6
    v_add_u32 v245, v7, v6
    v_add_u32 v245, 7168, v245
    v_lshrrev_b32 v6, 1, v5
    v_and_b32 v6, 1, v6
    v_lshlrev_b32 v6, 2, v6
    v_xor_b32 v6, v6, v4
    v_lshlrev_b32 v6, 4, v6
    v_mul_u32_u24 v7, 2688, v5
    v_add_u32 v246, v7, v6
    s_lshl_b32 s30, s25, 7
    v_add_u32 v246, s30, v246
    v_add_u32 v247, 21504, v246
    s_lshl_b32 s32, s29, 11
    s_lshl_b32 s40, s27, 7
    s_mul_i32 s48, s27, {64*2688}
    s_waitcnt lgkmcnt(0)
    """)
    srd(a, 8, P_X, S * D * 2)
    srd(a, 4, P_W, D * 3 * D * 2)
    def issue(j):
        o = []
        for half, (kind, i) in enumerate(stages[j]):
            base = RING0 + slot_of(j) * SLOT + half * 8192
            for e in range(2):
                g = [f's_add_u32 m0, s32, {base + e*1024}']
                if kind == 'x':
                    g.append(f'buffer_load_dwordx4 v{244+e}, s[8:11], s{40+i} offen {XMOD} lds')
                else:
                    so = f's{48+i}'
                    if kind:
                        so = 's37'
                        if e == 0: g.append(f's_add_u32 s37, s{48+i}, {kind*896}')
                    g.append(f'buffer_load_dwordx4 v{246+e}, s[4:7], {so} offen lds')
                o.append(g)
        return o
    vm = []
    def waitfor(tag):
        last = max(i for i, t in enumerate(vm) if t == tag)
        a(f's_waitcnt vmcnt({len(vm) - 1 - last})')
    def em(l, tag='st'):
        a(l)
        if l.startswith('buffer_'): vm.append(tag)
    def issue_now(j):
        for g in issue(j):
            for l in g: em(l, j)
    issue_now(0)
    a(f's_lshl_b32 s36, s21, 2\ns_add_u32 s{P_DS}, s{P_DS}, s36\ns_addc_u32 s{P_DS+1}, s{P_DS+1}, 0\ns_load_dword s39, s[{P_DS}:{P_DS+1}], 0')
    for i in range(1, 7):
        if i == 3: issue_now(1)
        a(f's_add_u32 s27, s27, 1\ns_cmp_eq_u32 s27, 7\ns_cselect_b32 s27, 0, s27\ns_lshl_b32 s{40+i}, s27, 7\ns_mul_i32 s{48+i}, s27, {64*2688}')
    srd(a, 16, P_WS, WS_END)
    srd(a, 12, P_OUT, S * 2 * D * 2)
    a(f"""
    v_lshlrev_b32 v6, 3, v0
    v_sub_u32 v6, 2047, v6
    v_mov_b32 v17, {L_T2}
    v_mov_b32 v18, {TP}
    v_lshlrev_b32 v19, 4, v0
    v_add_u32 v19, {L_TAB}, v19
    s_mov_b32 s36, 0
    """)
    a.label('Q_tab')
    for i in (0, 2):
        a(f"""
        v_subrev_u32 v7, {i}, v6
        v_subrev_u32 v8, {i+1}, v6
        v_cvt_f32_i32 v2, v7
        v_cvt_f32_i32 v5, v8
        v_cvt_pk_bf16_f32 v2, v2, v5
        v_and_b32 v5, 0xffff0000, v2
        v_lshlrev_b32 v2, 16, v2
        v_cvt_i32_f32 v2, v2
        v_cvt_i32_f32 v5, v5
        v_and_b32 v7, 7, v2
        v_and_b32 v8, 7, v5
        v_ashrrev_i32 v2, 3, v2
        v_ashrrev_i32 v5, 3, v5
        v_mad_u32_u24 v2, v7, v18, v2
        v_mad_u32_u24 v5, v8, v18, v5
        v_lshl_add_u32 v{64+i}, v2, 1, v17
        v_lshl_add_u32 v{65+i}, v5, 1, v17
        """)
    a(f"""
    ds_write_b128 v19, v[64:67]
    v_add_u32 v19, 4096, v19
    v_subrev_u32 v6, 4, v6
    s_add_u32 s36, s36, 1
    s_cmp_lt_u32 s36, 3
    s_cbranch_scc1 Q_tab
    v_and_b32 v17, 15, v1
    """)
    ix = lambda p: (p & 7) * TP + (p >> 3)
    def pk(b, s1, s2): assert b < 4096 and s1 < 1024 and s2 < 1024; return b | (s1 << 12) | (s2 << 22)
    t0 = [pk(0, TP, 2*TP), pk(4*TP, TP, 2*TP), None, None]
    a('s_cmp_eq_u32 s63, 0')
    ptab = {0: [[0,1,2,3],[4,5,6,7],[256,258,260,262],[512,516,768,772]],
            1: [[1024,1280,1536,1792],[2048,2304,2304,2304],[2304]*4,[2304]*4]}
    for g in range(4):
        lo = lambda at: ix(ptab[at][g][0]) | (ix(ptab[at][g][1]) << 16)
        hi = lambda at: ix(ptab[at][g][2]) | (ix(ptab[at][g][3]) << 16)
        a(f's_mov_b32 exec_lo, {0xffff << (16*(g%2)) if g < 2 else 0}')
        a(f's_mov_b32 exec_hi, {0xffff << (16*(g%2)) if g >= 2 else 0}')
        a(f's_mov_b32 s36, {lo(1)}\ns_cselect_b32 s36, {lo(0)}, s36\nv_mov_b32 v68, s36')
        a(f's_mov_b32 s36, {hi(1)}\ns_cselect_b32 s36, {hi(0)}, s36\nv_mov_b32 v70, s36')
    a(f"""
    s_mov_b64 exec, -1
    s_lshl_b32 s36, s61, 5
    s_add_u32 s36, s36, {L_T2}
    v_lshl_add_u32 v18, v17, 1, s36
    v_lshrrev_b32 v69, 16, v68
    v_lshrrev_b32 v71, 16, v70
    v_and_b32 v68, 0xffff, v68
    v_and_b32 v70, 0xffff, v70
    v_lshl_add_u32 v68, v68, 1, v18
    v_lshl_add_u32 v69, v69, 1, v18
    v_lshl_add_u32 v70, v70, 1, v18
    v_lshl_add_u32 v71, v71, 1, v18
    ds_write_b128 v19, v[68:71]
    s_and_b32 s27, s3, 1                   ; rt
    s_lshr_b32 s30, s3, 1                  ; cg
    v_and_b32 v3, 31, v1
    v_lshrrev_b32 v4, 5, v1
    s_lshl_b32 s31, s27, 5
    v_add_u32 v5, s31, v3
    v_lshrrev_b32 v6, 1, v5
    v_and_b32 v6, 7, v6
    v_lshlrev_b32 v7, 7, v5
    v_add_u32 v7, {RING0}, v7
    """)
    for st in range(4):
        a(f"""
        v_add_u32 v{56+st}, {2*st}, v4
        v_xor_b32 v{56+st}, v{56+st}, v6
        v_lshl_add_u32 v{56+st}, v{56+st}, 4, v7
        """)
    a(f"""
    v_and_b32 v6, 3, v1
    v_lshlrev_b32 v6, 3, v6
    v_bfe_u32 v7, v1, 4, 1
    v_lshl_add_u32 v6, v7, 5, v6
    s_lshl_b32 s31, s30, 6
    v_add_u32 v6, s31, v6
    v_bfe_u32 v7, v1, 3, 1
    v_lshlrev_b32 v7, 6, v7
    v_xor_b32 v6, v6, v7
    v_bfe_u32 v7, v1, 2, 2
    v_lshl_add_u32 v7, v4, 3, v7
    v_lshl_add_u32 v60, v7, 7, v6
    v_add_u32 v60, {RING0}, v60
    s_lshl_b32 s31, s26, 1
    s_add_u32 s31, s31, s27
    s_mul_i32 s31, s31, {TILEB}
    s_lshl_b32 s33, s25, 3
    s_lshl_b32 s34, s30, 2
    s_add_u32 s33, s33, s34
    s_lshl_b32 s34, s33, 9
    s_add_u32 s34, s34, s31
    v_lshlrev_b32 v61, 4, v1
    v_add_u32 v61, s34, v61
    s_lshl_b32 s34, s33, 7
    s_add_u32 s34, s34, s31
    v_mul_u32_u24 v62, 7168, v4
    v_lshl_add_u32 v62, v3, 4, v62
    v_add_u32 v62, s34, v62
    s_mov_b32 s35, {f32bits(QSCALE)}
    s_lshl_b32 s60, s25, {FS+5}
    s_lshl_b32 s61, s26, {FS}
    s_add_u32 s60, s60, s61
    s_lshl_b32 s61, s3, 2
    s_add_u32 s60, s60, s61
    s_add_u32 s60, s60, {F1}
    """)
    if PRE_ST >= 3: issue_now(2)
    a('s_waitcnt lgkmcnt(0)')
    stamp(a, 13)
    def reads(j):
        sb = slot_of(j) * SLOT
        n = 0; o = []
        for half, (kind, i) in enumerate(stages[j]):
            base = sb + half * 8192
            if kind == 'x':
                for st in range(4):
                    o.append(f'ds_read_b128 {v(XF + 16*i + 4*st, 4)}, v{56 + st} offset:{base}')
            else:
                for st in range(4):
                    r = WB[j % 2][n]; n += 1
                    for e in range(2):
                        o.append(f'ds_read_b64_tr_b16 {v(r + 2*e, 2)}, v60 offset:{base + (16*st + 4*e)*128}')
        return o
    started = set()
    def epilogue(kind):
        acc = ACC[kind]; out = []
        if kind == Q_:
            for r in range(16): out.append(f'v_mul_f32 v{acc+r}, s35, v{acc+r}')
        for r in range(8): out.append(f'v_cvt_pk_bf16_f32 v{acc+r}, v{acc+2*r}, v{acc+2*r+1}')
        T = acc
        if kind == V_:
            out.append(f's_mov_b32 s36, {WS_V}')
            out.append(f'buffer_store_dwordx4 {v(T,4)}, v62, s[16:19], s36 offen sc1')
            out.append(f's_mov_b32 s36, {WS_V + 2*7168}')
            out.append(f'buffer_store_dwordx4 {v(T+4,4)}, v62, s[16:19], s36 offen sc1')
        else:
            for q in range(2):
                out.append(f'v_permlane32_swap_b32 v{T+4*q}, v{T+4*q+2}')
                out.append(f'v_permlane32_swap_b32 v{T+4*q+1}, v{T+4*q+3}')
            out.append(f's_mov_b32 s36, {WS_Q if kind == Q_ else WS_K}')
            out.append(f'buffer_store_dwordx4 {v(T,4)}, v61, s[16:19], s36 offen sc1')
            out.append(f'buffer_store_dwordx4 {v(T+4,4)}, v61, s[16:19], s36 offen offset:1024 sc1')
        return out
    def mlist(j):
        n = 0; done = []; o = []
        for half, (kind, i) in enumerate(stages[j]):
            if kind == 'x': continue
            acc = ACC[kind]
            for st in range(4):
                w = WB[j % 2][n]; n += 1
                x = XF + 16*i + 4*st
                c = v(acc, 16) if kind in started else '0'
                started.add(kind)
                if kind == V_: o.append(f'v_mfma_f32_32x32x16_bf16 {v(acc,16)}, {v(x,4)}, {v(w,4)}, {c}')
                else:          o.append(f'v_mfma_f32_32x32x16_bf16 {v(acc,16)}, {v(w,4)}, {v(x,4)}, {c}')
            if i == 6: done.append(kind)
        return o, done
    def weave(ms, rd, fill, dm, tag):
        nm = len(ms)
        slots = max(nm, 4)
        per = -(-len(rd) // max(slots - 2, 1))
        fper = -(-len(fill) // max(nm - 2, 1))
        dstep = slots // 4
        for k in range(slots):
            if k < nm: a(ms[k])
            if dm and k % dstep == 0:
                for l in dm.pop(0): em(l, tag)
            for _ in range(per):
                if rd: a(rd.pop(0))
            if k >= 2:
                for _ in range(fper):
                    if fill: em(fill.pop(0))
        for l in rd + fill: em(l)
    pending = []; carry = []
    for j in range(NST):
        waitfor(j)
        a('s_barrier')
        if j == 0: stamp(a, 1)
        if 'gemmonly' in DBG and j in GS: stamp(a, 3 + GS.index(j))
        rd = reads(j); ms = []; fill = carry; carry = []
        if j == 5: rd.append(f'ds_read_b32 v253, v{CV} offset:8')
        if j > 0:
            for k in pending: fill += epilogue(k)
            ms, pending = mlist(j - 1)
        if j == 0 and PRE_ST < 3: issue_now(2)
        dm = issue(j + DEPTH) if j + DEPTH < NST else []
        if dm:
            k = next((i for i, l in enumerate(fill) if l.startswith(('buffer_', 's_mov_b32 s36'))), len(fill))
            carry = fill[k:]; fill = fill[:k]
        if len(fill) > FILL_MAX and j < NST - 1:
            carry = fill[FILL_MAX:] + carry; fill = fill[:FILL_MAX]
        weave(ms, rd, fill, dm, j + DEPTH)
        a('s_waitcnt lgkmcnt(0)')
    fill = carry
    for k in pending: fill += epilogue(k)
    ms, pending = mlist(NST - 1)
    weave(ms, [], fill, [], None)
    for k in pending:
        for l in epilogue(k): a(l)
    stamp(a, 2)
    if 'gemmonly' in DBG: a('s_branch P_fin')
    sc_, ve_, lds_ = att_split()
    FL = 252
    a('v_readfirstlane_b32 s20, v253')
    gtabs(a)
    kmaddr(a, 0)
    kmskip(a, 0)
    att_poll_addr(a, FL)
    a('s_waitcnt lgkmcnt(0)\ns_barrier')
    stamp(a, 3)
    km = kmfma(); cut = int(len(km) * SIG_CUT)
    for l in km[:cut]: a(l)
    a('s_waitcnt vmcnt(0)')
    signal(a, 60, 2, 3)
    for l in km[cut:]: a(l)
    a('s_barrier')
    stamp(a, 14)
    gbuild(a, 0, (0, 1, 2, 3))
    a('s_waitcnt lgkmcnt(0)\ns_barrier')
    stamp(a, 4)
    emit_groups(a, sc_ + ve_ + tail_setup())
    a('s_setprio 2')
    a('s_cmp_lg_u32 s3, 0\ns_cbranch_scc1 Q_w1')
    poll(a, 'PL_f1', FL, 244, x4=True, sleep=A_SLEEP)
    a.label('Q_w0')
    a(f'ds_write_b32 v{CV}, v{C1} offset:12')
    a('s_branch L_pre')
    a.label('Q_w1')
    gwait(a, 12, 1, 2)
    a.label('L_pre')
    stamp(a, 5)
    emit_groups(a, lds_[:10] + att_zero())
    att_first(a, 4)
    emit_groups(a, lds_[10:])
    a('s_setprio 0')
    a('s_branch L_att2')

EB = 176
EA = EB + 56
ET = 96
def ssm_epi_setup(a):
    a(f"""
    v_and_b32 v{ET}, 1, v1                      ; ch
    v_bfe_u32 v{ET+1}, v1, 1, 2                 ; j
    v_lshrrev_b32 v{ET+2}, 3, v1
    v_mul_u32_u24 v{ET+3}, {POWN}, v{ET+1}
    v_mul_u32_u24 v{ET+4}, {PSRC}, v{ET}
    v_add_u32 v{ET+3}, v{ET+3}, v{ET+4}
    v_lshl_add_u32 v{ET+3}, v{ET+2}, 4, v{ET+3}
    s_lshl_b32 s60, s29, 7
    s_add_u32 s36, s60, {L_PART}
    v_add_u32 v{EA}, s36, v{ET+3}
    v_mul_u32_u24 v{ET+2}, 80, v{ET+2}
    v_lshl_add_u32 v{ET+2}, v{ET+1}, 4, v{ET+2}
    v_mul_u32_u24 v{ET+4}, {UCH}, v{ET}
    v_add_u32 v{ET+2}, v{ET+2}, v{ET+4}
    s_mul_i32 s36, s29, 640
    s_add_u32 s36, s36, {L_U + 32*80}
    v_add_u32 v{EA+1}, s36, v{ET+2}             ; u chunk
    s_lshl_b32 s36, s21, 13
    s_lshl_b32 s60, s29, 10
    s_add_u32 s36, s36, s60
    s_add_u32 s36, s36, {WS_YT}
    v_lshl_add_u32 v{EA+2}, v1, 4, s36
    s_lshl_b32 s60, s39, 16
    s_and_b32 s61, s39, 0xffff0000
    v_mov_b32 v{EA+3}, s60
    v_mov_b32 v{ET+4}, s61
    v_cmp_eq_u32 vcc, 1, v{ET}
    v_cndmask_b32 v{EA+3}, v{EA+3}, v{ET+4}, vcc
    """)

def ssm_epi_reads(a):
    for p in range(2):
        E = EB + 28*p; o = p*4*POWN
        a(f"""
        ds_read_b128 {v(E,4)}, v{EA} offset:{o}
        ds_read_b128 {v(E+4,4)}, v{EA} offset:{o+512}
        ds_read_b128 {v(E+8,4)}, v{EA} offset:{o+2*PSRC}
        ds_read_b128 {v(E+12,4)}, v{EA} offset:{o+2*PSRC+512}
        ds_read_b128 {v(E+16,4)}, v{EA+1} offset:{p*2560}
        """)

def ssm_epi(a):
    a('s_mov_b32 s36, 4096')
    for p in range(2):
        A = EB + 28*p; B = A + 8; U = A + 16; C = A + 20
        for e in range(8): a(f'v_add_f32 v{A+e}, v{A+e}, v{B+e}')
        for e in range(4):
            a(f'v_lshlrev_b32 v{C+2*e}, 16, v{U+e}')
            a(f'v_and_b32 v{C+1+2*e}, 0xffff0000, v{U+e}')
        for e in range(8): a(f'v_mul_f32 v{C+e}, v{EA+3}, v{C+e}')
        for e in range(4):
            a(f'v_cvt_pk_bf16_f32 v{B+e}, v{A+2*e}, v{A+1+2*e}')
            a(f'v_cvt_pk_bf16_f32 v{B+4+e}, v{C+2*e}, v{C+1+2*e}')
        for e in range(4):
            a(f'v_lshlrev_b32 v{A+2*e}, 16, v{B+e}')
            a(f'v_and_b32 v{A+1+2*e}, 0xffff0000, v{B+e}')
            a(f'v_lshlrev_b32 v{C+2*e}, 16, v{B+4+e}')
            a(f'v_and_b32 v{C+1+2*e}, 0xffff0000, v{B+4+e}')
        for e in range(8): a(f'v_add_f32 v{A+e}, v{A+e}, v{C+e}')
        for e in range(4): a(f'v_cvt_pk_bf16_f32 v{B+e}, v{A+2*e}, v{A+1+2*e}')
        a(f'buffer_store_dwordx4 {v(B,4)}, v{EA+2}, s[16:19], {"s36" if p else "0"} offen sc1')

def att_ids(a):
    if AMAP == 0:
        a("""
        s_lshl_b32 s40, s22, 1
        s_and_b32 s41, s23, 1
        s_add_u32 s40, s40, s41                ; head
        s_lshr_b32 s41, s23, 1                 ; rbq
        s_mov_b32 s99, s41
        """)
    elif AMAP == 1:
        a("""
        s_lshl_b32 s41, s22, 1
        s_and_b32 s40, s23, 1
        s_lshl_b32 s99, s40, 3
        s_add_u32 s41, s41, s40                ; rbq
        s_lshr_b32 s40, s23, 1                 ; head
        """)
    a("""
    s_mul_i32 s42, s40, 7
    s_lshr_b32 s42, s42, 1                 ; chi0
    """)

def att_poll_addr(a, r):
    att_ids(a)
    a(f"""
    s_lshr_b32 s43, s42, 3
    s_add_u32 s44, s42, 3
    s_lshr_b32 s44, s44, 3
    s_lshl_b32 s43, s43, {FS+5}
    s_lshl_b32 s44, s44, {FS+5}
    v_mov_b32 v{r}, s43
    v_mov_b32 v{r+1}, s44
    v_cmp_lt_u32 vcc, 31, v1
    v_cndmask_b32 v{r}, v{r}, v{r+1}, vcc
    v_and_b32 v{r+1}, 31, v1
    v_lshl_add_u32 v{r}, v{r+1}, {FS}, v{r}
    v_add_u32 v{r}, {F1}, v{r}
    """)

def att_poll(a, name):
    att_poll_addr(a, 16)
    poll(a, name, 16, 20, x4=True, sleep=8)

OL = 120 * 1024; YL = 152 * 1024; RED = 96 * 1024
NB = 4
QF = 16; OA = 32; SB = 64; PB = 96; KB = 112; VB = KB + 8*NB
def advK(a):
    a(f's_add_u32 s33, s33, {TILEB}')
    a('s_cmp_eq_u32 s33, s55')
    a('s_cselect_b32 s33, s54, s33')
def loadK(a, n):
    a(f'buffer_load_dwordx4 {v(KB+8*n,4)}, v3, s[16:19], s33 offen')
    a(f'buffer_load_dwordx4 {v(KB+8*n+4,4)}, v3, s[16:19], s33 offen offset:1024')
def loadV(a, n):
    a('s_mov_b64 exec, s[46:47]')
    a(f'buffer_load_dwordx4 {v(VB+8*n,4)}, v4, s[16:19], s33 offen')
    a(f'buffer_load_dwordx4 {v(VB+8*n+4,4)}, v7, s[16:19], s33 offen')
    a('s_mov_b64 exec, -1')

def att_pre_groups():
    def G(fn, *args):
        t = Asm(); fn(t, *args); return t.lines
    def singles(txt): return [[l] for l in lines(txt)]
    p1 = [[l] for l in G(att_ids)]
    p1 += singles(f"""
    s_and_b32 s24, s3, 1                   ; qg
    s_lshr_b32 s27, s3, 1
    s_cmp_lt_u32 s23, 28
    s_cselect_b32 s34, {NA}, 16
    s_sub_u32 s35, 32, s34
    s_min_u32 s54, s27, 2
    s_mul_i32 s54, s54, s34
    s_cmp_eq_u32 s27, 3
    s_cselect_b32 s55, s35, 0
    s_add_u32 s54, s54, s55
    s_cmp_lt_u32 s3, 4
    s_cselect_b32 s34, s34, s35
    s_lshr_b32 s35, s34, 2
    s_lshl_b32 s96, s42, 9
    v_lshl_add_u32 v3, v1, 4, s96          ; Q/K voffset
    s_lshl_b32 s28, s41, 2
    s_lshl_b32 s31, s24, 1
    s_add_u32 s28, s28, s31
    s_mul_i32 s31, s28, {TILEB}
    s_add_u32 s31, s31, {WS_Q}
    s_add_u32 s30, s31, {TILEB}
    s_mul_i32 s54, s54, {TILEB}
    s_add_u32 s54, s54, {WS_K}
    s_mul_i32 s55, s34, {TILEB}
    s_add_u32 s55, s55, s54
    s_mul_i32 s33, s99, s34
    s_lshr_b32 s33, s33, 4
    s_mul_i32 s33, s33, {TILEB}
    s_add_u32 s33, s33, s54
    buffer_load_dwordx4 {v(QF,4)}, v3, s[16:19], s31 offen
    buffer_load_dwordx4 {v(QF+4,4)}, v3, s[16:19], s31 offen offset:1024
    """)
    p1 += [[l] for l in G(loadK, 0)]
    p1 += singles(f"""
    buffer_load_dwordx4 {v(QF+8,4)}, v3, s[16:19], s30 offen
    buffer_load_dwordx4 {v(QF+12,4)}, v3, s[16:19], s30 offen offset:1024
    v_and_b32 v5, 31, v1
    v_lshrrev_b32 v6, 5, v1
    v_mul_u32_u24 v4, 7168, v6
    v_lshl_add_u32 v4, v5, 4, v4
    s_mul_i32 s97, s40, 448
    s_add_u32 s97, s97, {WS_V - WS_K}
    v_add_u32 v4, s97, v4
    v_add_u32 v7, 14336, v4
    s_mov_b32 s46, 0x0fffffff
    s_mov_b32 s47, 0x0fffffff
    """)
    p2 = []
    for n in range(NB):
        dst = p1 if n == 0 else p2
        if n == 0:
            dst += [['v_cmp_eq_u32 vcc, 28, v5'], ['v_mov_b32 v12, 0x3f803f80'], ['v_cndmask_b32 v12, 0, v12, vcc'], ['v_mov_b32 v13, v12']]
        dst += [[f'v_mov_b64 {v(VB+8*n+r,2)}, v[12:13]'] for r in range(0, 8, 2)]
        if n < NB - 1:
            dst += [G(loadV, n), G(advK)] + [[l] for l in G(loadK, n + 1)]
    p2 += [[l] for l in G(srd, 8, P_WO, D * D * 2)]
    p2 += singles(f"""
    s_lshr_b32 s52, s40, 2
    s_lshl_b32 s53, s41, 2
    s_add_u32 s52, s52, s53
    s_and_b32 s53, s40, 3                  ; cg4
    v_lshrrev_b32 v8, 4, v1
    v_and_b32 v9, 15, v1
    v_lshlrev_b32 v10, 2, v8
    v_xor_b32 v9, v9, v10
    v_lshlrev_b32 v9, 4, v9
    v_mul_u32_u24 v8, 896, v8
    v_add_u32 v8, v8, v9
    s_lshl_b32 s98, s53, 8
    v_add_u32 v8, s98, v8
    s_lshl_b32 s51, s3, 10
    s_mul_i32 s50, s3, 3584
    s_sub_u32 s35, s35, 1
    s_and_b32 s49, s40, 1
    s_cmp_eq_u32 s49, 0
    s_cselect_b32 s43, -1, 0
    s_mov_b32 s42, 0
    s_cselect_b32 s44, 0, -1
    s_mov_b32 s45, 0
    s_lshl_b32 s32, s21, 4
    s_and_b32 s49, s3, 3
    s_lshl_b32 s49, s49, 2
    s_add_u32 s32, s32, s49
    s_add_u32 s32, s32, {F3}
    s_cmp_lt_u32 s23, 28
    s_cselect_b32 s32, s32, {WS_END}
    s_mov_b32 s37, 0
    """)
    allg = p1 + p2
    isld = lambda g: any(l.startswith('buffer_') for l in g) or g[0].startswith(f's_add_u32 s33, s33, {TILEB}')
    setup = [g for g in allg if not isld(g)]
    loads = [g for g in allg if isld(g)]
    return setup, loads

def tail_setup():
    return [[l] for l in lines(f"""
    s_lshl_b32 s36, s24, 14
    s_add_u32 s36, s36, {RED}
    s_lshr_b32 s38, s27, 1
    s_lshl_b32 s38, s38, 15
    s_and_b32 s39, s27, 1
    s_lshl_b32 s39, s39, 11
    s_add_u32 s38, s38, s39
    s_add_u32 s38, s38, s36
    v_lshl_add_u32 v240, v1, 4, s38
    s_lshl_b32 s38, s27, 12
    s_add_u32 s38, s38, s36
    v_lshl_add_u32 v241, v1, 4, s38
    s_or_b32 s38, s27, 1
    s_lshl_b32 s38, s38, 12
    s_add_u32 s38, s38, s36
    s_add_u32 s38, s38, {1024 + 512}
    v_lshl_add_u32 v242, v5, 4, s38
    v_lshlrev_b32 v243, 13, v6
    v_lshl_add_u32 v243, v5, 4, v243
    v_add_u32 v243, {RED + 4096 + 1024 + 512}, v243
    s_and_b32 s36, s27, 1
    s_cmp_eq_u32 s36, 1
    s_cselect_b32 s101, -1, 0
    s_mov_b32 s100, 0
    s_lshr_b32 s38, s27, 1
    s_add_u32 s38, s38, s28
    s_lshl_b32 s38, s38, 15
    s_lshl_b32 s39, s40, 11
    s_add_u32 s38, s38, s39
    s_lshl_b32 s39, s36, 10
    s_add_u32 s38, s38, s39
    s_add_u32 s63, s38, {WS_O}
    s_lshl_b32 s36, s25, 9
    s_add_u32 s36, s36, {F3}
    v_lshl_add_u32 v238, v5, 4, s36
    v_lshlrev_b32 v239, 12, v1
    s_lshl_b32 s93, s25, 18
    s_lshl_b32 s36, s26, 7
    s_add_u32 s93, s93, s36
    s_and_b32 s36, s3, 3
    s_lshl_b32 s36, s36, 5
    s_add_u32 s93, s93, s36
    s_add_u32 s93, s93, {WS_YT}
    """)]

def att_split():
    su, ld = att_pre_groups()
    sc = [g for g in su if g[0].startswith('s_')]
    ve = [g for g in su if not g[0].startswith('s_')]
    return sc, ve, ld

def emit_groups(a, gs):
    for g in gs:
        for l in g: a(l)

def att_zero():
    return [[f'v_mov_b64 {v(OA+r,2)}, 0'] for r in range(0, 32, 2)] + [[f'v_mov_b64 {v(PB+8+r,2)}, 0'] for r in range(0, 8, 2)] + [[f'v_mov_b64 {v(SB+28+r,2)}, 0'] for r in range(0, 4, 2)]

def att_first(a, nout):
    a(f"""
    s_waitcnt vmcnt({nout})
    s_mov_b64 exec, s[42:43]
    v_mov_b32 v{QF+6}, 0
    v_mov_b32 v{QF+7}, 0
    v_mov_b32 v{QF+14}, 0
    v_mov_b32 v{QF+15}, 0
    s_mov_b64 exec, s[44:45]
    v_mov_b32 v{QF+0}, 0
    v_mov_b32 v{QF+1}, 0
    v_mov_b32 v{QF+8}, 0
    v_mov_b32 v{QF+9}, 0
    s_mov_b64 exec, -1
    v_mfma_f32_32x32x16_bf16 {v(SB,16)}, {v(KB,4)}, {v(QF,4)}, 0
    v_mfma_f32_32x32x16_bf16 {v(SB,16)}, {v(KB+4,4)}, {v(QF+4,4)}, {v(SB,16)}
    """)

def ph_att(a):
    a.label('L_att')
    att_first(a, 4*(NB-1))
    a('s_nop 9')
    a.label('L_att2')
    a('v_lshlrev_b32 v2, 4, v1')
    a(f's_cmp_{PRIO_CMP}_u32 s3, 4\ns_cbranch_scc1 A_noprio\ns_setprio 1')
    a.label('A_noprio')
    stamp(a, 6)
    a('.p2align 6')
    def iteration(last):
        vm = [-3]*4 + [-2]*4 + [-1]*4
        nwo = [0]
        def wo():
            r = nwo[0]; nwo[0] += 1
            return [f's_add_u32 m0, s51, {r*8192}', f's_add_u32 s48, s50, {r*28672}', 'buffer_load_dwordx4 v8, s[8:11], s48 offen lds']
        for u in range(2*NB):
            t = u % 2
            kn = ((u + 1) // 2) % NB
            vn = ((u - 1) // 2) % NB
            Sn = SB + 16*((u+1) % 2); Sc = SB + 16*(u % 2)
            Pc = PB + 8*(u % 2); Pp = PB + 8*((u+1) % 2)
            Qn = QF + 8*(1-t); On = OA + 16*(1-t)
            ins = {}
            if u % 2 == 1:
                j = (u - 1) // 2
                t1 = Asm(); loadV(t1, (j - 1) % NB); t2 = Asm(); advK(t2); t3 = Asm(); loadK(t3, j % NB)
                if not last:
                    a(f's_waitcnt vmcnt({4*(NB-2)})')
                    ins = {(0, 1): t1.lines, (1, 1): t2.lines, (2, 1): t3.lines[:1], (3, 1): t3.lines[1:]}
                else:
                    need = max(i for i, x in enumerate(vm) if x == j - 3)
                    a(f's_waitcnt vmcnt({len(vm) - 1 - need})')
                    if j == 0: ins[(0, 1)] = t1.lines
            if last and u >= 1 and 'nowo' not in DBG:
                for g in (1, 3):
                    if nwo[0] < 12: ins[(g, 1)] = wo()
            if last and u == PRIO_U: a('s_setprio 0')
            M = [f'v_mfma_f32_32x32x16_bf16 {v(Sn,16)}, {v(KB+8*kn,4)}, {v(Qn,4)}, 0',
                 f'v_mfma_f32_32x32x16_bf16 {v(Sn,16)}, {v(KB+8*kn+4,4)}, {v(Qn+4,4)}, {v(Sn,16)}',
                 f'v_mfma_f32_32x32x16_bf16 {v(On,16)}, {v(VB+8*vn,4)}, {v(Pp,4)}, {v(On,16)}',
                 f'v_mfma_f32_32x32x16_bf16 {v(On,16)}, {v(VB+8*vn+4,4)}, {v(Pp+4,4)}, {v(On,16)}']
            M = [M[2], M[0], M[1], M[3]]
            if last and u == 2*NB - 1: M[1] = M[2] = None
            for g in range(4):
                if M[g]: a(M[g])
                for e in range(4):
                    a(f'v_exp_f32 v{Sc+4*g+e}, v{Sc+4*g+e}')
                    for l in ins.get((g, e), []):
                        a(l)
                        if l.startswith('buffer_'): vm.append('w' if 'lds' in l else 0)
                    if e in (0, 2):
                        h = e // 2
                        if g > 0: a(f'v_cvt_pk_bf16_f32 v{Pc+2*(g-1)+h}, v{Sc+4*(g-1)+2*h}, v{Sc+4*(g-1)+2*h+1}')
                        else:     a(f'v_cvt_pk_bf16_f32 v{Pp+6+h}, v{Sn+12+2*h}, v{Sn+13+2*h}')
    a.label('A_loop')
    iteration(False)
    a(f"""
    s_add_u32 s37, s37, 1
    s_cmp_eq_u32 s37, s35
    s_cbranch_scc1 A_last
    s_cmp_lg_u32 s37, 1
    s_cbranch_scc1 A_loop
    s_cmp_lt_u32 s3, 4
    s_cbranch_scc1 A_loop
    """)
    signal(a, 32, 9, 10)
    a('s_branch A_loop')
    a.label('A_last')
    a(f's_cmp_eq_u32 s32, {WS_END}\ns_cbranch_scc1 A_l2\ns_cmp_lt_u32 s3, 4\ns_cbranch_scc1 A_l1')
    a('buffer_load_dwordx4 v[196:199], v238, s[16:19], 0 offen sc1')
    a.label('A_l1')
    gwait(a, 4, 8, 9)
    a.label('A_l2')
    iteration(True)
    a.label('A_exit')
    a('s_setprio 0')
    stamp(a, 7)
    a(f'v_cvt_pk_bf16_f32 v{PB+14}, v{SB+28}, v{SB+29}')
    a(f'v_cvt_pk_bf16_f32 v{PB+15}, v{SB+30}, v{SB+31}')
    a(f'v_mfma_f32_32x32x16_bf16 {v(OA+16,16)}, {v(VB+8*(NB-1),4)}, {v(PB+8,4)}, {v(OA+16,16)}')
    a(f'v_mfma_f32_32x32x16_bf16 {v(OA+16,16)}, {v(VB+8*(NB-1)+4,4)}, {v(PB+12,4)}, {v(OA+16,16)}')
    a('s_mov_b32 s94, 0')
    a.label('A_red')
    for own in range(4):
        for q in range(2):
            a(f'ds_write_b128 v240, {v(OA + 8*own + 4*q, 4)} offset:{own*4096 + q*1024}')
    a('s_cmp_ge_u32 s23, 28\ns_cbranch_scc1 A_ny\ns_cmp_lt_u32 s3, 4\ns_cbranch_scc1 A_ny\ns_cmp_lg_u32 s94, 0\ns_cbranch_scc1 A_ny')
    for i in range(4): a(f'v_xor_b32 v{196+i}, s20, v{196+i}')
    a('v_or3_b32 v196, v196, v197, v198\nv_or_b32 v196, v196, v199\nv_cmp_ne_u32 vcc, 0, v196')
    a('s_add_u32 s92, s93, 16\ns_nop 3\ns_cbranch_vccz A_y')
    poll(a, 'PL_f3', 238, 196, x4=True)
    a.label('A_y')
    a('buffer_load_dwordx4 v[196:199], v239, s[16:19], s93 offen')
    a('buffer_load_dwordx4 v[212:215], v239, s[16:19], s92 offen')
    a.label('A_ny')
    a('s_waitcnt lgkmcnt(0)\ns_barrier')
    R = 64
    so = lambda src: (src >> 1) * 32768 + (src & 1) * 2048
    for src in range(4):
        a(f'ds_read_b32 v{12+src}, v242 offset:{so(src)}')
    for src in range(4):
        for q in range(2):
            a(f'ds_read_b128 {v(R + 8*src + 4*q, 4)}, v241 offset:{so(src) + q*1024}')
    a(f"""
    s_waitcnt lgkmcnt(8)
    v_add_f32 v12, v12, v13
    v_add_f32 v14, v14, v15
    v_add_f32 v12, v12, v14
    v_rcp_f32 v12, v12
    s_waitcnt lgkmcnt(0)
    """)
    a('v_cndmask_b32 v13, v12, 0, s[100:101]')
    for r in range(8):
        a(f'v_add_f32 v{R+r}, v{R+r}, v{R+8+r}')
        a(f'v_add_f32 v{R+16+r}, v{R+16+r}, v{R+24+r}')
    for r in range(8): a(f'v_add_f32 v{R+r}, v{R+r}, v{R+16+r}')
    for r in range(8): a(f'v_mul_f32 v{R+r}, v{R+r}, v{12 if r < 4 else 13}')
    for r in range(4): a(f'v_cvt_pk_bf16_f32 v{R+8+r}, v{R+2*r}, v{R+2*r+1}')
    a(f'buffer_store_dwordx4 {v(R+8,4)}, v2, s[16:19], s63 offen sc1')
    stamp(a, 8)
    for qg in range(2):
        for src in range(4):
            a(f'ds_read_b32 v{80+4*qg+src}, v243 offset:{qg*16384 + so(src)}')
    a(f"""
    s_mov_b32 s36, {f32bits(2.0**-30)}
    s_mov_b32 s37, {f32bits(2.0**40)}
    s_waitcnt lgkmcnt(0)
    v_add_f32 v80, v80, v81
    v_add_f32 v82, v82, v83
    v_add_f32 v84, v84, v85
    v_add_f32 v86, v86, v87
    v_add_f32 v80, v80, v82
    v_add_f32 v84, v84, v86
    v_cmp_nle_f32 vcc, s36, v80
    v_cmp_nge_f32 s[42:43], s37, v80
    v_cmp_nle_f32 s[44:45], s36, v84
    v_cmp_nge_f32 s[60:61], s37, v84
    s_or_b64 s[42:43], s[42:43], vcc
    s_or_b64 s[44:45], s[44:45], s[60:61]
    s_or_b64 s[42:43], s[42:43], s[44:45]
    s_cbranch_scc1 A_slow
    """)
    a.label('A_done')

def ph_slow(a):
    MX = 192
    a.label('A_slow')
    a(f"""
    s_cmp_lg_u32 s94, 0
    s_cbranch_scc1 A_done
    s_waitcnt vmcnt(0)
    s_barrier
    v_mov_b32 v{MX}, 0xff800000
    v_mov_b32 v{MX+1}, 0xff800000
    """)
    for r in range(0, 32, 2): a(f'v_mov_b64 {v(OA+r,2)}, 0')
    a.label('AS_pass')
    a('s_mov_b32 s37, 0')
    a.label('AS_tile')
    loadK(a, 0); loadV(a, 0); advK(a)
    a('s_waitcnt vmcnt(0)')
    for t in range(2):
        Sx = SB + 16*t
        a(f'v_mfma_f32_32x32x16_bf16 {v(Sx,16)}, {v(KB,4)}, {v(QF+8*t,4)}, 0')
        a(f'v_mfma_f32_32x32x16_bf16 {v(Sx,16)}, {v(KB+4,4)}, {v(QF+8*t+4,4)}, {v(Sx,16)}')
    a('s_nop 15\ns_cmp_lg_u32 s94, 0\ns_cbranch_scc1 AS_p1')
    for t in range(2):
        for r in range(0, 16, 2): a(f'v_max3_f32 v{MX+t}, v{SB+16*t+r}, v{SB+16*t+r+1}, v{MX+t}')
    a('s_branch AS_next')
    a.label('AS_p1')
    for t in range(2):
        Sx = SB + 16*t; Px = PB + 8*t
        for r in range(16): a(f'v_sub_f32 v{Sx+r}, v{Sx+r}, v{MX+t}')
        for r in range(16): a(f'v_exp_f32 v{Sx+r}, v{Sx+r}')
        for r in range(8): a(f'v_cvt_pk_bf16_f32 v{Px+r}, v{Sx+2*r}, v{Sx+2*r+1}')
        a(f'v_mfma_f32_32x32x16_bf16 {v(OA+16*t,16)}, {v(VB,4)}, {v(Px,4)}, {v(OA+16*t,16)}')
        a(f'v_mfma_f32_32x32x16_bf16 {v(OA+16*t,16)}, {v(VB+4,4)}, {v(Px+4,4)}, {v(OA+16*t,16)}')
    a.label('AS_next')
    a(f"""
    s_nop 15
    s_add_u32 s37, s37, 1
    s_cmp_lt_u32 s37, s34
    s_cbranch_scc1 AS_tile
    s_cmp_lg_u32 s94, 0
    s_cbranch_scc1 A_red
    s_lshl_b32 s36, s24, 11
    s_add_u32 s36, s36, {RED}
    s_lshl_b32 s38, s27, 9
    s_add_u32 s38, s38, s36
    v_lshl_add_u32 v9, v1, 3, s38
    ds_write_b64 v9, {v(MX,2)}
    v_lshl_add_u32 v9, v5, 3, s36
    s_waitcnt lgkmcnt(0)
    s_barrier
    """)
    for k in range(8): a(f'ds_read_b64 {v(SB+2*k,2)}, v9 offset:{256*k}')
    a('s_waitcnt lgkmcnt(0)')
    for t in range(2):
        for k in range(0, 8, 2): a(f'v_max3_f32 v{MX+t}, v{SB+2*k+t}, v{SB+2*k+2+t}, v{MX+t}')
    a('s_mov_b32 s94, 1\ns_barrier\ns_branch AS_pass')

L_RDY = 118784
def y_piece(a):
    a(f"""
    s_cmp_ge_u32 s23, 28
    s_cbranch_scc1 P_noy
    s_lshl_b32 s36, s29, 11
    s_add_u32 s36, s36, {YL}
    v_add_u32 v203, s36, v2
    ds_write_b128 v203, v[196:199]
    ds_write_b128 v203, v[212:215] offset:1024
    v_lshrrev_b32 v17, 4, v1
    v_and_b32 v18, 3, v1
    v_lshl_add_u32 v17, v17, 2, v18
    v_and_b32 v18, 7, v17
    v_lshrrev_b32 v17, 3, v17
    v_bfe_u32 v19, v1, 2, 2
    v_lshl_add_u32 v18, v18, 3, v19
    v_lshlrev_b32 v18, 4, v18
    v_lshl_add_u32 v18, v17, 3, v18
    v_add_u32 v204, s36, v18
    s_waitcnt lgkmcnt(0)
    ds_read_b64_tr_b16 v[208:209], v204
    ds_read_b64_tr_b16 v[210:211], v204 offset:64
    ds_read_b64_tr_b16 v[216:217], v204 offset:1024
    ds_read_b64_tr_b16 v[218:219], v204 offset:1088
    v_and_b32 v19, 3, v1
    v_lshl_add_u32 v19, v6, 2, v19
    s_lshl_b32 s36, s26, 6
    s_lshl_b32 s37, s29, 4
    s_add_u32 s36, s36, s37
    v_add_u32 v19, s36, v19
    v_mul_u32_u24 v19, 1792, v19
    v_bfe_u32 v17, v1, 2, 3
    v_lshl_add_u32 v205, v17, 4, v19
    s_lshl_b32 s93, s25, 7
    s_add_u32 s93, s93, 896
    s_add_u32 s92, s93, {8*1792}
    s_waitcnt lgkmcnt(0)
    buffer_store_dwordx4 v[208:211], v205, s[12:15], s93 offen {YMOD}
    buffer_store_dwordx4 v[216:219], v205, s[12:15], s92 offen {YMOD}
    """)
    a.label('P_noy')

def ph_out(a):
    a(f"""
    s_and_b32 s29, s3, 3
    v_mov_b32 v15, {L_RDY}
    s_cmp_ge_u32 s3, 4
    s_cbranch_scc1 P_fetch
    ; ---------------- waves 0..3
    s_lshl_b32 s36, s41, {F2S+4}
    s_lshr_b32 s37, s40, 2
    s_lshl_b32 s37, s37, {F2S}
    s_add_u32 s36, s36, s37
    s_and_b32 s37, s40, 3
    s_lshl_b32 s37, s37, 2
    s_add_u32 s36, s36, s37
    s_add_u32 s36, s36, {F2}
    v_lshl_add_u32 v28, v1, {F2S+2}, s36
    v_mov_b32 v29, s20
    v_bfe_u32 v7, v1, 2, 2
    v_xor_b32 v12, s29, v7
    v_lshlrev_b32 v12, 6, v12
    v_bfe_u32 v9, v1, 4, 1
    v_lshl_add_u32 v12, v9, 5, v12
    v_and_b32 v9, 3, v1
    v_lshl_add_u32 v12, v9, 3, v12
    v_lshl_add_u32 v9, v6, 2, v7
    v_lshl_add_u32 v12, v9, 8, v12
    v_add_u32 v13, {224*256}, v12          ; heads 8..15
    s_waitcnt vmcnt(0)
    s_barrier
    """)
    ACC = 224; WF = 32; OF = 160
    def wread(hd):
        for f in range(2):
            for e in range(2):
                row = 28*hd + 16*f + 8*e - (224 if hd >= 8 else 0)
                a(f'ds_read_b64_tr_b16 {v(WF + 8*hd + 4*f + 2*e, 2)}, v{13 if hd >= 8 else 12} offset:{row*256}')
    a('s_lshl_b64 exec, 1, s3\nbuffer_store_dword v29, v28, s[16:19], 0 offen sc1\ns_mov_b64 exec, -1')
    stamp(a, 9)
    for hd in range(13): wread(hd)
    a(f"""
    v_add_u32 v10, {OL}, v2
    s_lshl_b32 s36, s52, 5
    v_add_u32 v11, s36, v5
    v_mul_u32_u24 v11, 1792, v11
    v_lshl_add_u32 v11, v6, 4, v11
    s_lshl_b32 s30, s53, 2
    s_add_u32 s30, s30, s29
    s_lshl_b32 s32, s30, 6
    """)
    a('s_cmp_ge_u32 s30, 14\ns_cbranch_scc1 P_fin')
    stamp(a, 10)
    a(f'v_lshl_add_u32 v14, v1, 2, v15')
    def need(g):
        a('s_waitcnt lgkmcnt(0)')
        a.label(f'P_n{g}')
        a(f'v_cmp_eq_u32 vcc, s20, v28\ns_nop 1\ns_bitcmp1_b32 vcc_lo, {g}\ns_cbranch_scc0 P_r{g}')
        a.label(f'P_g{g}')
    def mf(g):
        for n in range(8):
            c = '0' if (g == ORD[0] and n == 0) else v(ACC, 16)
            a(f'v_mfma_f32_32x32x16_bf16 {v(ACC,16)}, {v(WF + 32*g + 4*n,4)}, {v(OF + 32*(ORD.index(g)%2) + 4*n,4)}, {c}')
    ORD = [0, 1, 2, 3]
    a('ds_read_b32 v28, v14')
    for i, g in enumerate(ORD):
        need(g)
        for n in range(8): a(f'ds_read_b128 {v(OF + 32*(i%2) + 4*n, 4)}, v10 offset:{g*8192 + n*1024}')
        if g == 3:
            for hd in range(13, 16): wread(hd)
        if i < 3: a('ds_read_b32 v28, v14')
        if i > 0: mf(ORD[i-1])
    a('s_waitcnt lgkmcnt(0)')
    mf(ORD[3])
    a.label('P_epi')
    stamp(a, 11)
    T = 40
    for r in range(8): a(f'v_cvt_pk_bf16_f32 v{T+r}, v{ACC+2*r}, v{ACC+2*r+1}')
    for q in range(2):
        a(f'v_permlane32_swap_b32 v{T+4*q}, v{T+4*q+2}')
        a(f'v_permlane32_swap_b32 v{T+4*q+1}, v{T+4*q+3}')
    a(f'buffer_store_dwordx4 {v(T,4)}, v11, s[12:15], s32 offen {OMOD}')
    a(f'buffer_store_dwordx4 {v(T+4,4)}, v11, s[12:15], s32 offen offset:32 {OMOD}')
    a('s_branch P_fin')
    for g in range(4):
        a.label(f'P_r{g}')
        a(f'ds_read_b32 v28, v14\ns_add_u32 s95, s95, 1\ns_cmp_lt_u32 s95, 0x200000\ns_waitcnt lgkmcnt(0)\ns_cbranch_scc1 P_n{g}\ns_branch P_g{g}')
    a.label('P_fetch')
    a(f"""
    s_lshl_b32 s37, s52, {F2S+2}
    s_lshl_b32 s38, s29, {F2S}
    s_add_u32 s37, s37, s38
    s_add_u32 s37, s37, {F2}
    v_lshl_add_u32 v16, v1, 2, s37
    s_mov_b64 exec, 0xf
    buffer_load_dword v17, v16, s[16:19], 0 offen sc1
    s_mov_b64 exec, -1
    s_lshl_b32 s38, s52, 15
    s_lshl_b32 s39, s29, 13
    s_add_u32 s38, s38, s39
    s_add_u32 s38, s38, {WS_O}
    s_add_u32 s39, s39, {OL}
    s_lshl_b32 s37, s29, 2
    v_add_u32 v15, s37, v15
    v_mov_b32 v14, s20
    s_waitcnt vmcnt(1)
    s_barrier
    s_waitcnt vmcnt(0)
    v_cmp_ne_u32 s[44:45], s20, v17
    """)
    stamp(a, 9)
    a(f's_cmp_lg_u32 s3, 7\ns_cbranch_scc1 P_nowo\ns_mov_b32 s48, {96*1024}\ns_mov_b32 s50, {96*3584}')
    a.label('P_wo')
    a(f"""
    s_mov_b32 m0, s48
    s_add_u32 s48, s48, 1024
    buffer_load_dwordx4 v8, s[8:11], s50 offen lds
    s_add_u32 s50, s50, 3584
    s_cmp_le_u32 s50, {D*D*2}
    s_cbranch_scc1 P_wo
    """)
    a.label('P_nowo')
    if PIPE_POLL:
        a('s_mov_b64 exec, 0xf\ns_mov_b32 s62, 0')
        for k in range(PIPE_POLL - 1):
            a(f'buffer_load_dword v{20+k}, v16, s[16:19], 0 offen sc1\ns_sleep {F2_SLEEP}')
        a.label('PL_f2')
        for k in range(PIPE_POLL):
            a(f'buffer_load_dword v{20+(k+PIPE_POLL-1)%PIPE_POLL}, v16, s[16:19], 0 offen sc1')
            a(f's_waitcnt vmcnt({PIPE_POLL-1})')
            a(f'v_cmp_ne_u32 vcc, s20, v{20+k}\ns_nop 4\ns_cbranch_vccz PL_f2_ok\ns_sleep {F2_SLEEP}')
        a(f's_add_u32 s62, s62, 1\ns_cmp_lt_u32 s62, {POLL_LIMIT}\ns_cbranch_scc1 PL_f2')
        a.label('PL_f2_ok')
        a('s_mov_b64 exec, -1')
    else:
        a('s_and_b32 s44, s44, 15\ns_cbranch_scc0 PL_f2_ok')
        poll(a, 'PL_f2', 16, 17, mask=0xf, sleep=F2_SLEEP)
    stamp(a, 10)
    for hlf in range(2):
        a(f's_add_u32 m0, s39, {hlf*4096}')
        if hlf: a('s_add_u32 s38, s38, 4096')
        else: a('s_nop 0')
        for n in range(4): a(f'buffer_load_dwordx4 v2, s[16:19], s38 offen offset:{n*1024} sc1 lds')
    a('s_waitcnt vmcnt(0)\nds_write_b32 v15, v14')
    stamp(a, 11)
    y_piece(a)
    a('s_cmp_lg_u32 s2, 240\ns_cbranch_scc1 P_fin\ns_cmp_lg_u32 s3, 4\ns_cbranch_scc1 P_fin')
    a(f'v_lshlrev_b32 v16, {F2S}, v5\nv_add_u32 v16, {F2 + (56 << (F2S+2))}, v16')
    poll(a, 'PL_ep', 16, 20, x4=True, sleep=2)
    a(f's_mov_b32 s36, {EPOCH}')
    signal(a, 36, 16, 17)
    a.label('P_fin')

def kernel(a):
    if STAMPS or DIAG >= 0:
        a('v_mov_b32 v254, 0')
        stamp(a, 0)
    prologue(a)
    ph_front(a)
    ph_att(a)
    ph_out(a)
    if DIAG >= 0:
        a('s_waitcnt vmcnt(0)')
        stamp(a, 12)
        a(f"""
        s_cmp_lg_u32 s3, {int(os.environ.get('DIAGW', 0))}
        s_cbranch_scc1 L_end
        s_cmp_ge_u32 s23, 28
        s_cbranch_scc1 L_end
        v_readlane_b32 s36, v254, 0
        v_readlane_b32 s37, v254, {DIAG}
        s_memrealtime s[90:91]
        s_waitcnt lgkmcnt(0)
        s_sub_u32 s36, s37, s36
        s_min_u32 s36, s36, 10000
        s_mov_b32 s37, s90
        """)
        a.label('D_spin')
        a("""
        s_memrealtime s[90:91]
        s_waitcnt lgkmcnt(0)
        s_sub_u32 s38, s90, s37
        s_cmp_lt_u32 s38, s36
        s_cbranch_scc1 D_spin
        """)
    if STAMPS:
        a('s_waitcnt vmcnt(0)')
        stamp(a, 12)
        a(f"""
        s_mov_b32 s18, {WS_STAMP + (1<<20)}
        s_lshl_b32 s36, s2, 3
        s_add_u32 s36, s36, s3
        s_lshl_b32 s36, s36, 6
        s_add_u32 s36, s36, {WS_STAMP}
        v_lshl_add_u32 v2, v1, 2, s36
        s_mov_b64 exec, 0xffff
        buffer_store_dword v254, v2, s[16:19], 0 offen
        s_cmp_lg_u32 s2, 100
        s_cbranch_scc1 L_end
        s_cmp_lg_u32 s3, 0
        s_cbranch_scc1 L_end
        v_readfirstlane_b32 s36, v254
        v_lshlrev_b32 v2, 2, v1
        v_subrev_u32 v254, s36, v254
        s_mov_b64 exec, 0x7ffe
        """)
        srd(a, 56, P_DBG, 256)
        a('buffer_store_dword v254, v2, s[56:59], 0 offen')
    a.label('L_end')
    a('s_endpgm')
    ph_slow(a)

def build(path):
    hdr = open(f'cdna_kernels/{NAME}.s.ref').read().split('\n')
    out = [l for l in hdr if l.startswith(';') and '@launch' not in l][:16]
    out.append(f'; @launch grid=(256,1,1) block=(512,1,1) lds={LDS_TOTAL}')
    out.append('.amdgcn_target "amdgcn-amd-amdhsa--gfx950"')
    out.append('.text')
    label = NAME + '_kernel'
    a = Asm(); kernel(a)
    txt = '\n'.join(out) + f'\n.globl {label}\n.p2align 8\n.type {label},@function\n{label}:\n' + a.finalize()
    txt += f'''.section .rodata,"a"
.p2align 6
.amdhsa_kernel {label}
  .amdhsa_next_free_vgpr 256
  .amdhsa_next_free_sgpr 102
  .amdhsa_accum_offset 256
  .amdhsa_group_segment_fixed_size 0
  .amdhsa_kernarg_size 104
  .amdhsa_user_sgpr_count 2
  .amdhsa_user_sgpr_kernarg_segment_ptr 1
  .amdhsa_system_sgpr_workgroup_id_x 1
.end_amdhsa_kernel
'''
    open(path, 'w').write(txt)

if __name__ == '__main__':
    if '--stamps' in sys.argv: STAMPS = True; sys.argv.remove('--stamps')
    path = sys.argv[1] if len(sys.argv) > 1 else f'cdna_kernels/{NAME}.s'
    build(path)
    import subprocess
    subprocess.run(['clang', '-x', 'assembler', '-target', 'amdgcn-amd-amdhsa', '-mcpu=gfx950', '-c', path, '-o', '_sz.o'], check=True)
    hdr = subprocess.run(['llvm-objdump', '-h', '_sz.o'], capture_output=True, text=True).stdout
    size = int([l for l in hdr.splitlines() if '.text' in l][0].split()[2], 16)
    CODE_KB[0] = size // 1024 - 1
    _gw[0] = 0
    build(path)
    print('code bytes', size)
```

```python
import sys, math, struct, os, re
DBG = os.environ.get('DBG', '')
sys.path.insert(0, 'work')
from asmgen import *

STAMPS = False
NAME = 'concat_heads__mha_block__ssm_conv_s4d__prompt'
S = 2048; D = 448; H = 16; DH = 28
TILEB = 56 * 512
FS = int(os.environ.get('FS', 4))
F0 = 0; F1 = 32768; F2 = 65536; EPOCH = 98304; F3 = 102400
WS_Q = 131072
WS_K = WS_Q + 64 * TILEB
WS_V = WS_K + 64 * TILEB
WS_O = WS_V + 64 * TILEB
WS_UT = WS_O + 64 * 32768
WS_YT = WS_UT + 112 * 16384
WS_END = WS_YT + 224 * 8192
WS_STAMP = 16 << 20
LDS_TOTAL = 163840
POLL_LIMIT = 1000000
PRIO_IT = 3
LORD = int(os.environ.get('LORD', 0))
D2J = int(os.environ.get('D2J', 99))
DEPTH2 = int(os.environ.get('DEPTH2', 6))
PRE_C = float(os.environ.get('PRE_C', 1.6))
B_FIRST = int(os.environ.get('B_FIRST', 1))
GS = eval(os.environ.get('GS', '(1,2,3,4,5,6,7,8,9)'))
BW = eval(os.environ.get('BW', '[0,4,3,3,1,3,3,2,2,2,2,2,2,3]'))
PRIO_U = int(os.environ.get('PRIO_U', 4))
SIG_CUT = float(os.environ.get('SIG_CUT', 0.4))
LOOK_POS = int(os.environ.get('LOOK_POS', 1))
F2S = int(os.environ.get('F2S', 7))
PIPE_POLL = int(os.environ.get('PIPE_POLL', 0))
F2_SLEEP = int(os.environ.get('F2_SLEEP', 1))
AMAP = int(os.environ.get('AMAP', 0))
LITE_SLEEP = int(os.environ.get('LITE_SLEEP', 10))
B_PRE = int(os.environ.get('B_PRE', 10))
B_LAST = int(os.environ.get('B_LAST', 13))
D_PER = int(os.environ.get('D_PER', 0))
PKMUL = int(os.environ.get('PKMUL', 0))
NBP = int(os.environ.get('NBP', 7))
KM_PTS = eval(os.environ.get('KM_PTS', '(7, 13)'))
B_PRIO = int(os.environ.get('B_PRIO', 0))
KM_SPLIT = int(os.environ.get('KM_SPLIT', 10))
A_SLEEP0 = int(os.environ.get('A_SLEEP0', 12))
KM_J = int(os.environ.get('KM_J', 1))
BPRE_J = int(os.environ.get('BPRE_J', 0))
A_SLEEP = int(os.environ.get('A_SLEEP', 1))
FILL_MAX = int(os.environ.get('FILL_MAX', 16))
YMOD = os.environ.get('YMOD', 'nt')
OMOD = os.environ.get('OMOD', 'nt')
SPREAD = int(os.environ.get('SPREAD', 1))
CODE_KB = [1]
CODE_PF = int(os.environ.get('CODE_PF', 1))
NA = int(os.environ.get('NA', 16))
PRIO_LEFT = int(os.environ.get('PRIO_LEFT', 1))
CONV_PRIO = int(os.environ.get('CONV_PRIO', 0))
PRIO_CMP = 'lt'
SCHED_C = [3, 3, 3, 1, 1]
U_ISS = int(os.environ.get('U_ISS', -1)); U_TR = int(os.environ.get('U_TR', 4)); F0_SIG = int(os.environ.get('F0_SIG', 7))
F0_TRY = (7, 10)
F0_LAG = 2
PRE_ST = int(os.environ.get('PRE_ST', 2))
CONV_T0 = int(os.environ.get('CONV_T0', 22))
XMOD = os.environ.get('XMOD', '')
F1_SLEEP = 8
KG_CUT = float(os.environ.get('KG_CUT', 0.4))
LD_PER = int(os.environ.get('LD_PER', 50))

def f32bits(x): return struct.unpack('<I', struct.pack('<f', x))[0]
QSCALE = math.log2(math.e) / math.sqrt(DH)
LOG2E = math.log2(math.e)
P_X, P_W, P_WO, P_U, P_LA, P_AI, P_CR, P_CI, P_DT, P_DS, P_OUT, P_DBG, P_WS = [64 + 2*i for i in range(13)]

DIAG = int(os.environ.get('DIAG', -1))
def stamp(a, n):
    if STAMPS or (DIAG >= 0 and n in (0, DIAG)):
        a('s_memrealtime s[90:91]')
        a('s_waitcnt lgkmcnt(0)')
        a(f'v_writelane_b32 v254, s90, {n}')
        if n in (6, 7) and os.environ.get('CYC'):
            a('s_memtime s[90:91]')
            a('s_waitcnt lgkmcnt(0)')
            a(f'v_writelane_b32 v254, s90, {n+7}')

def srd(a, base_s, ptr_s, nbytes):
    a(f's_mov_b32 s{base_s}, s{ptr_s}')
    a(f's_and_b32 s{base_s+1}, s{ptr_s+1}, 0xffff')
    a(f's_mov_b32 s{base_s+2}, {nbytes}')
    a(f's_mov_b32 s{base_s+3}, 0x20000')

def poll(a, name, voff, tmp, mask=-1, x4=False, sleep=4):
    if mask != -1:
        a(f's_mov_b32 exec_lo, {mask & 0xffffffff}')
        a(f's_mov_b32 exec_hi, {mask >> 32}')
    a('s_mov_b32 s62, 0')
    a.label(name)
    if x4:
        a(f'buffer_load_dwordx4 {v(tmp,4)}, v{voff}, s[16:19], 0 offen sc1')
        a('s_waitcnt vmcnt(0)')
        for i in range(4): a(f'v_xor_b32 v{tmp+i}, s20, v{tmp+i}')
        a(f'v_or3_b32 v{tmp}, v{tmp}, v{tmp+1}, v{tmp+2}')
        a(f'v_or_b32 v{tmp}, v{tmp}, v{tmp+3}')
        a(f'v_cmp_ne_u32 vcc, 0, v{tmp}')
    else:
        a(f'buffer_load_dword v{tmp}, v{voff}, s[16:19], 0 offen sc1')
        a('s_waitcnt vmcnt(0)')
        a(f'v_cmp_ne_u32 vcc, s20, v{tmp}')
    a('s_nop 4')
    a(f's_cbranch_vccz {name}_ok')
    a(f's_sleep {sleep}')
    a('s_add_u32 s62, s62, 1')
    a(f's_cmp_lt_u32 s62, {POLL_LIMIT}')
    a(f's_cbranch_scc1 {name}')
    a.label(name + '_ok')
    a('s_mov_b64 exec, -1')

def signal(a, soff, vt0, vt1):
    a(f'v_mov_b32 v{vt0}, s{soff}')
    a(f'v_mov_b32 v{vt1}, s20')
    a('s_mov_b64 exec, 1')
    a(f'buffer_store_dword v{vt1}, v{vt0}, s[16:19], 0 offen sc1')
    a('s_mov_b64 exec, -1')


CV, C1 = 250, 251
def garrive(a, off):
    a('s_mov_b64 exec, 1')
    a(f'ds_add_u32 v{CV}, v{C1} offset:{off}')
    a('s_mov_b64 exec, -1')
_gw = [0]
def gwait(a, off, target, tmp):
    _gw[0] += 1; name = f'GW{_gw[0]}'
    a.label(name)
    a(f'ds_read_b32 v{tmp}, v{CV} offset:{off}')
    a('s_waitcnt lgkmcnt(0)')
    a(f'v_readfirstlane_b32 s62, v{tmp}')
    a(f's_cmp_ge_u32 s62, {target}')
    a(f's_cbranch_scc1 {name}_ok')
    a('s_sleep 1')
    a('s_add_u32 s95, s95, 1')
    a('s_cmp_lt_u32 s95, 0x2000000')
    a(f's_cbranch_scc1 {name}')
    a.label(name + '_ok')

def prologue(a):
    a(f"""
    s_cmp_ge_u32 s2, 256
    s_cbranch_scc1 L_end
    s_load_dwordx16 s[64:79], s[0:1], 0
    s_load_dwordx8 s[80:87], s[0:1], 64
    s_load_dwordx2 s[88:89], s[0:1], 96
    v_and_b32 v1, 63, v0
    v_lshrrev_b32 v2, 6, v0
    v_readfirstlane_b32 s3, v2
    s_and_b32 s22, s2, 7
    s_lshr_b32 s23, s2, 3
    """)
    if CODE_PF:
        a(f"""
        s_getpc_b64 s[96:97]
        s_and_b32 s96, s96, 0xffffff00
        s_and_b32 s98, s23, 3
        s_lshl_b32 s98, s98, 3
        s_add_u32 s98, s98, s3
        s_min_u32 s98, s98, {CODE_KB[0]}
        s_lshl_b32 s98, s98, 10
        v_lshl_add_u32 v2, v1, 4, s98
        global_load_dwordx4 v[192:195], v2, s[96:97]
        """)
    a(f"""
    s_and_b32 s27, s22, 1                  ; odd
    s_lshr_b32 s24, s23, 3                 ; cl' (0..3)
    s_lshl_b32 s25, s27, 2
    s_add_u32 s25, s25, s24
    s_and_b32 s26, s23, 7                  ; rbl
    s_lshl_b32 s28, s26, 1
    s_add_u32 s28, s28, s27
    s_cmp_eq_u32 s24, 3
    s_cselect_b32 s25, 3, s25
    s_cselect_b32 s26, s28, s26
    s_lshl_b32 s24, s24, 1
    s_add_u32 s24, s24, s26
    s_lshr_b32 s28, s22, 1
    s_lshl_b32 s28, s28, 3
    s_add_u32 s26, s26, s28                ; rb
    s_mul_i32 s21, s22, 28
    s_add_u32 s21, s21, s23
    s_cmp_lt_u32 s23, 28
    s_cbranch_scc1 L_full
    s_waitcnt lgkmcnt(0)
    """)
    srd(a, 4, P_W, D * 3 * D * 2)
    a(f"""
    s_sub_u32 s36, s23, 28
    s_lshl_b32 s36, s36, 3
    s_add_u32 s36, s36, s3
    s_mul_i32 s36, s36, {14*2688}
    v_lshrrev_b32 v2, 3, v1
    v_min_u32 v4, 5, v2
    v_mul_u32_u24 v2, 2688, v2
    v_mul_u32_u24 v4, 2688, v4
    v_and_b32 v3, 7, v1
    v_lshl_add_u32 v2, v3, 4, v2
    v_lshl_add_u32 v4, v3, 4, v4
    s_add_u32 s37, s36, {TA*896 + 384}
    buffer_load_dwordx4 v[64:67], v2, s[4:7], s37 offen
    s_add_u32 s37, s37, {8*2688}
    buffer_load_dwordx4 v[68:71], v4, s[4:7], s37 offen
    v_lshrrev_b32 v2, 5, v1
    v_mul_u32_u24 v2, 2688, v2
    v_and_b32 v3, 31, v1
    v_lshl_add_u32 v2, v3, 4, v2
    s_mul_i32 s37, s27, 384
    s_add_u32 s36, s36, s37
    """)
    seq = {0: [(TB, i) for i in range(7)] + [(TC, i) for i in range(7)], 1: [(TC, i) for i in range(7)] + [(TB, i) for i in range(7)],
           2: [(t, i) for i in range(7) for t in (TB, TC)], 3: [(TC, i) for i in range(7)]}[LORD]
    for n, (ty, i) in enumerate(seq):
        a(f's_add_u32 s37, s36, {ty*896 + 2*i*2688}')
        a(f'buffer_load_dwordx4 {v(72+4*n,4)}, v2, s[4:7], s37 offen')
    srd(a, 16, P_WS, WS_END)
    srd(a, 12, P_OUT, S * 2 * D * 2)
    a(f"""
    s_mov_b32 s36, {EPOCH}
    buffer_load_dword v253, off, s[16:19], s36 sc1
    s_waitcnt vmcnt(0)
    v_readfirstlane_b32 s20, v253
    s_add_u32 s20, s20, 1
    {'s_endpgm' if 'gemmonly' in DBG else ''}
    s_sleep {LITE_SLEEP}
    s_sub_u32 s36, s23, 28
    s_lshl_b32 s36, s36, 3
    s_add_u32 s36, s36, s3
    s_mul_i32 s36, s36, 12544
    v_lshl_add_u32 v2, v1, 4, s36
    """)
    srd(a, 8, P_WO, D * D * 2)
    for i in range(13):
        a(f's_mov_b32 s36, {1024*i}')
        a(f'buffer_load_dwordx4 {v(64+4*i,4)}, v2, s[8:11], s36 offen')
    a("""
    s_waitcnt vmcnt(0)
    """)
    a('s_mov_b32 s95, 0')
    att_poll_addr(a, 176)
    a.label('L_lite0')
    su, _ = att_pre_groups()
    emit_groups(a, su + tail_setup() + att_zero())
    a('s_cmp_lg_u32 s3, 0\ns_cbranch_scc1 L_lite1')
    poll(a, 'PL_f1a', 176, 180, mask=1 << 63, x4=True, sleep=8)
    poll(a, 'PL_f1b', 176, 180, x4=True, sleep=2)
    a.label('L_lite1')
    a('s_barrier')
    a('s_branch L_pre')
    a.label('L_full')

RING0 = 0; SLOT = 16384; NS = 8; DEPTH = int(os.environ.get('DEPTH', 4)); MAXI = int(os.environ.get('MAXI', 2))
def slot_of(j): return (j + 2) % NS
XYP = 1056; XYCH = 53 * XYP
GP = 8384; GCH = 260 * 16
L_G = 0
L_T2 = 114688; TP = 328; T2CH = 8 * TP * 2
L_U = 131072; UCH = 96 * 80
L_CTL = L_U + 2 * UCH
L_TAB = 147456
L_PART = 49152; PSRC = 1024; POWN = 4096
assert L_CTL + 16 <= L_TAB and 4*GP <= L_PART and 2*XYCH <= L_T2

def cmul(o, d, x, e, t):
    if PKMUL:
        o.append(f'v_pk_mul_f32 {v(t,2)}, {v(x,2)}, {v(e,2)} op_sel:[0,0] op_sel_hi:[1,0]')
        o.append(f'v_pk_fma_f32 {v(d,2)}, {v(x,2)}, {v(e,2)}, {v(t,2)} op_sel:[1,1,0] op_sel_hi:[0,1,1] neg_lo:[1,0,0]')
    else:
        o.append(f'v_mul_f32 v{t}, v{x+1}, v{e+1}')
        o.append(f'v_mul_f32 v{t+1}, v{x}, v{e+1}')
        o.append(f'v_fma_f32 v{d}, v{x}, v{e}, -v{t}')
        o.append(f'v_fma_f32 v{d+1}, v{x+1}, v{e}, v{t+1}')

def lines(txt): return [l.strip() for l in txt.split('\n') if l.strip()]

_KM = {}
PKB = [64, 117]
def _mk():
    pairs_pre = [20, 22, 24, 26, 28, 30, 32, 34, 36, 38, 40, 42, 48, 50, 52, 54]
    for i, r in enumerate(pairs_pre): _KM[r] = 170 + 2*i; _KM[r+1] = 171 + 2*i
    for i, r in enumerate([2, 3, 4, 5, 6, 7, 8, 9]): _KM[r] = 202 + i
    _KM[70] = 48; _KM[71] = 49
    for i, r in enumerate(range(56, 64)): _KM[r] = 40 + i
    for c in range(2):
        for row in range(53): _KM[1000 + 100*c + row] = PKB[c] + row
_mk()
def kmap(l, ch):
    M = _KM
    def one(m): return f'v{M.get(int(m.group(1)), int(m.group(1)))}'
    def rng(m):
        lo = int(m.group(1)); hi = int(m.group(2)); n = M.get(lo, lo); return f'v[{n}:{n+hi-lo}]'
    l = re.sub(r'v\[(\d+):(\d+)\]', rng, l)
    return re.sub(r'\bv(\d+)\b', one, l)

def kgen(ch):
    P = 240 + 4*ch
    pre = lines(f"""
    {'s_lshl_b32 s58, s38, 16' if ch == 0 else 's_and_b32 s58, s38, 0xffff0000'}
    v_mov_b32 v4, s58
    v_mul_f32 v4, {f32bits(LOG2E)}, v4
    v_exp_f32 v4, v4
    v_lshlrev_b32 v2, 16, v{P}
    v_lshlrev_b32 v3, 16, v{P+1}
    v_lshlrev_b32 v20, 16, v{P+2}
    v_lshlrev_b32 v21, 16, v{P+3}
    v_cvt_pk_bf16_f32 v4, v4, v4
    v_mul_f32 v2, {f32bits(LOG2E)}, v2
    v_exp_f32 v2, v2
    v_and_b32 v4, 0xffff0000, v4
    v_mul_f32 v3, v3, v4
    v_cvt_pk_bf16_f32 v2, v2, v2
    v_and_b32 v2, 0xffff0000, v2
    v_mul_f32 v2, v2, v4
    v_mul_f32 v2, {f32bits(-LOG2E)}, v2
    v_mul_f32 v3, {f32bits(1/(2*math.pi))}, v3
    v_add_f32 v4, v4, v4
    v_mul_f32 v20, v20, v4
    v_mul_f32 v21, v21, v4
    """)
    E1, E8, E256, E2, E4, E16, E32 = 22, 24, 26, 28, 30, 32, 34
    for (E, p) in ((E1, 1.0), (E8, 8.0), (E256, 256.0)):
        pre += lines(f"""
        v_mul_f32 v6, {f32bits(p)}, v2
        v_mul_f32 v7, {f32bits(p)}, v3
        v_exp_f32 v6, v6
        v_fract_f32 v7, v7
        v_cos_f32 v8, v7
        v_sin_f32 v9, v7
        v_mul_f32 v{E}, v6, v8
        v_mul_f32 v{E+1}, v6, v9
        """)
    cmul(pre, E2, E1, E1, 6); cmul(pre, E16, E8, E8, 8)
    cmul(pre, E4, E2, E2, 6); cmul(pre, E32, E16, E16, 8)
    Y = [48, 50, 52, 54]
    def put(o, row, x, r, neg=False):
        o.append(f'v_cvt_pk_bf16_f32 v{1000+100*ch+row}, v{x}, {"-" if neg else ""}v{x+1}')
    chains = []
    for c in range(4):
        o = []
        cur = {0: None, 1: E8, 2: E16, 3: Y[3]}[c]
        if c == 3: cmul(o, Y[3], E16, E8, 36 + 2*c)
        for step in range(8):
            if cur is None:
                o.append(f'v_mov_b32 v{1000+100*ch+21}, 0x3f80')
                cur = E32; continue
            put(o, 21 + 4*step + c, cur, 44 + c)
            if step < 7: cmul(o, Y[c], cur, E32, 36 + 2*c); cur = Y[c]
        chains.append(o)
    XC, GC, SD, SD2 = 56, 58, 60, 62
    o = []
    put(o, 0, 20, 68, True)
    for step in range(7):
        cmul(o, XC, 20 if step == 0 else XC, E1, 6); put(o, step + 1, XC, 68, True)
    chains.append(o)
    grow = {1: 8, 2: 12, 3: 14, 4: 16, 5: 17, 6: 18, 7: 19, 8: 20}
    G = [58, 10, 12, 58, 58, 58, 58, 58]
    G = [10, 12, 18, 58, 58, 58, 58, 58]
    o = []
    for step in range(8):
        cmul(o, G[step], 20 if step == 0 else G[step-1], E256, 8); put(o, grow[step+1], G[step], 69, True)
    chains.append(o)
    o = [None]*(9 if PKMUL else 15)
    cmul(o, SD, G[0], E2, 70); put(o, 9, SD, 5, True)
    cmul(o, SD2, G[0], E4, 70); put(o, 10, SD2, 5, True)
    cmul(o, SD, SD2, E2, 70); put(o, 11, SD, 5, True)
    cmul(o, SD2, G[1], E4, 70); put(o, 13, SD2, 5, True)
    cmul(o, SD, G[2], E4, 70); put(o, 15, SD, 5, True)
    chains.append(o)
    body = []
    for k in range(max(len(c) for c in chains)):
        for c in chains:
            if k < len(c) and c[k] is not None: body.append(c[k])
    return [kmap(l, ch) for l in pre], [kmap(l, ch) for l in body]

def kmfma():
    FA = 112; FB = 144; KA = 176; NBF = 8
    o = []
    LA = 5
    for st in range(16 + LA):
        if st < 16:
            o.append(f'ds_read_b128 {v(FA+4*(st%NBF),4)}, v20 offset:{st*64}')
            o.append(f'ds_read_b128 {v(FB+4*(st%NBF),4)}, v21 offset:{st*64}')
        if st >= LA:
            k = st - LA
            o.append(f's_waitcnt lgkmcnt({2*min(LA, 15-k)})')
            o.append(f'v_mfma_f32_16x16x32_bf16 {v(KA,4)}, {v(FA+4*(k%NBF),4)}, {v(FB+4*(k%NBF),4)}, {"0" if k == 0 else v(KA,4)}')
    o += lines(f"""
    ds_write_b16 v26, v32
    v_add_f32 v{KA}, v{KA}, v27
    v_cvt_pk_bf16_f32 v{KA+4}, v{KA}, v{KA+1}
    v_cvt_pk_bf16_f32 v{KA+5}, v{KA+2}, v{KA+3}
    ds_write_b16 v22, v{KA+4}
    ds_write_b16_d16_hi v23, v{KA+4}
    ds_write_b16 v24, v{KA+5}
    ds_write_b16_d16_hi v25, v{KA+5}
    s_waitcnt lgkmcnt(0)
    """)
    return o

def subroutines(a):
    a.label('SUB_KMFMA')
    for l in kmfma(): a(l)
    a('s_setpc_b64 s[90:91]')

def kmaddr(a, ch):
    a(f"""
    v_and_b32 v20, 15, v1
    v_lshrrev_b32 v21, 4, v1
    v_mul_u32_u24 v20, {XYP}, v20
    v_lshl_add_u32 v20, v21, 4, v20
    s_and_b32 s36, s3, 1
    s_mul_i32 s36, s36, {16*XYP}
    s_add_u32 s36, s36, {21*XYP + (1-ch)*XYCH}
    v_add_u32 v21, s36, v20
    s_mul_i32 s36, s63, {16*XYP}
    s_add_u32 s36, s36, {(1-ch)*XYCH}
    v_add_u32 v20, s36, v20
    v_and_b32 v26, 7, v1
    v_mul_u32_u24 v26, {2*TP}, v26
    v_add_u32 v26, {L_T2 + 2*(TP-1) + ch*T2CH}, v26
    v_mov_b32 v32, 0
    """)

def kmskip(a, ch):
    a(f"""
    {'s_lshl_b32 s36, s39, 16' if ch == 0 else 's_and_b32 s36, s39, 0xffff0000'}
    s_cmp_eq_u32 s29, 0
    s_cselect_b32 s36, s36, 0
    v_mov_b32 v27, 0
    v_writelane_b32 v27, s36, 0
    """)
def call(a, name): a(f's_call_b64 s[90:91], {name}')

def gbuild(a, ch, copies):
    g = 64; d = 80
    lo = min(copies); hi = max(copies) + 8
    for i in range(lo, hi): a(f'ds_read_u16 v{g+i}, v{224+i} offset:{ch*T2CH}')
    a('s_waitcnt lgkmcnt(0)')
    for t in copies:
        for i in range(4): a(f'v_lshl_or_b32 v{d+4*t+i}, v{g+t+2*i+1}, 16, v{g+t+2*i}')
        a(f'ds_write_b128 v249, {v(d+4*t,4)} offset:{t*GP + ch*GCH}')

def gtabs(a):
    a(f"""
    v_and_b32 v14, 255, v0
    v_lshlrev_b32 v249, 4, v14
    v_add_u32 v15, {L_TAB}, v249
    """)
    for q in range(3): a(f'ds_read_b128 {v(224+4*q,4)}, v15 offset:{q*4096}')
    a(f'ds_read_b128 v[22:25], v15 offset:{3*4096}')

K_, V_, Q_ = 1, 2, 0
TA, TB, TC = Q_, K_, V_
stages = [[('x',0),(TA,0)], [('x',1),('x',2)], [(TA,1),(TA,2)]]
for _i in range(3, 7): stages.append([('x', _i), (TA, _i)])
_rest = [(TB, i) for i in range(7)] + [(TC, i) for i in range(7)]
for _i in range(7): stages.append(_rest[2*_i:2*_i+2])
NST = len(stages)

def ph_front(a):
    a(f"""
    s_mov_b32 s95, 0
    v_mov_b32 v{CV}, {L_CTL}
    v_mov_b32 v{C1}, 1
    v_lshrrev_b32 v3, 3, v1
    v_and_b32 v4, 7, v1
    s_and_b32 s29, s3, 3                   ; lw
    s_bfe_u32 s63, s3, 0x10001
    s_and_b32 s61, s3, 1
    s_cmp_lt_u32 s3, 4
    s_cbranch_scc1 Q_comp
    """)
    ssm_waves(a)
    a.label('Q_comp')
    comp_waves(a)

UV = [220, 221, 222, 252, 255]
def ssm_waves(a):
    a(f"""
    s_setprio {B_PRIO}
    v_and_b32 v14, 255, v0
    s_lshl_b32 s37, s21, 10
    v_lshl_add_u32 v248, v14, 1, s37
    s_lshl_b32 s28, s29, 1
    v_xor_b32 v5, s28, v4
    v_lshlrev_b32 v5, 4, v5
    s_lshl_b32 s30, s26, 6
    s_lshl_b32 s31, s29, 4
    s_add_u32 s30, s30, s31
    v_add_u32 v6, s30, v3
    v_mul_u32_u24 v6, 896, v6
    s_lshl_b32 s31, s25, 7
    v_add_u32 v6, s31, v6
    v_add_u32 v7, v6, v5
    v_xor_b32 v5, 16, v5
    v_add_u32 v6, v6, v5
    v_add_u32 v6, 7168, v6
    s_lshl_b32 s31, s61, 11
    s_mul_i32 s32, s63, {UCH}
    s_add_u32 s31, s31, s32
    s_add_u32 s31, s31, {L_U + 2560}
    s_mov_b32 m0, s31
    s_lshl_b32 s36, s21, 2
    s_waitcnt lgkmcnt(0)
    """)
    srd(a, 16, P_WS, WS_END)
    a(f"""
    s_cmp_lg_u32 s3, 4
    s_cbranch_scc1 Q_noep0
    s_mov_b32 s33, {EPOCH}
    buffer_load_dword v253, off, s[16:19], s33 sc1
    """)
    a.label('Q_noep0')
    for i in range(4):
        srd(a, 40 + 4*i, P_LA + 2*i, D * 256 * 2)
        a(f'buffer_load_ushort v{240+i}, v248, s[{40+4*i}:{43+4*i}], 0 offen nt')
        a(f'buffer_load_ushort v{244+i}, v248, s[{40+4*i}:{43+4*i}], 0 offen offset:512 nt')
    srd(a, 8, P_U, S * D * 2)
    a(f"""
    v_mov_b32 v54, v7
    v_mov_b32 v55, v6
    s_mov_b32 s34, s31
    """)
    if U_ISS < 0:
        a('buffer_load_dwordx4 v54, s[8:11], 0 offen nt lds')
        a('s_add_u32 m0, s34, 1024\ns_nop 0\nbuffer_load_dwordx4 v55, s[8:11], 0 offen nt lds')
    a(f"""
    s_add_u32 s{P_DT}, s{P_DT}, s36
    s_addc_u32 s{P_DT+1}, s{P_DT+1}, 0
    s_add_u32 s{P_DS}, s{P_DS}, s36
    s_addc_u32 s{P_DS+1}, s{P_DS+1}, 0
    s_load_dword s38, s[{P_DT}:{P_DT+1}], 0
    s_load_dword s39, s[{P_DS}:{P_DS+1}], 0
    """)
    srd(a, 12, P_OUT, S * 2 * D * 2)
    a(f"""
    v_and_b32 v5, 1, v1
    v_bfe_u32 v6, v1, 1, 1
    v_lshrrev_b32 v7, 4, v1
    v_add_u32 v2, s28, v5
    v_xor_b32 v7, v7, v2
    v_lshlrev_b32 v7, 4, v7
    v_lshl_add_u32 v7, v6, 3, v7
    v_bfe_u32 v6, v1, 2, 2
    v_lshl_add_u32 v6, v5, 3, v6
    v_lshl_add_u32 v7, v6, 7, v7
    v_add_u32 v50, s31, v7
    v_xor_b32 v51, 64, v50
    s_lshl_b32 s31, s25, 18
    s_lshl_b32 s33, s26, 9
    s_add_u32 s31, s31, s33
    s_lshl_b32 s33, s29, 7
    s_add_u32 s31, s31, s33
    s_add_u32 s31, s31, {WS_UT}
    v_lshlrev_b32 v52, 14, v3
    v_lshl_add_u32 v52, v4, 4, v52
    v_add_u32 v52, s31, v52
    s_lshl_b32 s59, s25, {FS+5}
    s_lshl_b32 s33, s26, {FS}
    s_add_u32 s59, s59, s33
    s_lshl_b32 s33, s29, 2
    s_add_u32 s59, s59, s33
    """)
    kmaddr(a, 1)
    t = Asm()
    t(f"""
    s_mov_b32 s101, {L_G + 4096}
    v_and_b32 v2, 3, v1
    v_mul_u32_u24 v2, {GP}, v2
    v_bfe_u32 v3, v1, 2, 2
    v_lshl_add_u32 v2, v3, 4, v2
    v_bfe_u32 v3, v1, 4, 1
    v_mul_u32_u24 v3, {GCH}, v3
    v_add3_u32 v217, v2, v3, s101
    s_lshl_b32 s36, s21, 1
    s_lshr_b32 s56, s36, 2
    s_lshl_b32 s56, s56, 14
    s_and_b32 s36, s36, 3
    s_lshl_b32 s36, s36, 4
    s_add_u32 s56, s56, s36
    s_add_u32 s56, s56, {WS_UT}
    s_mov_b32 s57, s56
    """)
    for k in range(5):
        t(f"""
        v_add_u32 v2, {64*k}, v1
        v_mul_u32_u24 v3, 205, v2
        v_lshrrev_b32 v3, 10, v3
        v_mul_u32_u24 v4, 5, v3
        v_sub_u32 v4, v2, v4
        v_min_u32 v4, 3, v4
        v_lshl_add_u32 v3, v3, 2, v4
        v_lshlrev_b32 v{UV[k]}, 6, v3
        """)
    t(f"""
    s_lshr_b32 s36, s21, 5
    s_lshl_b32 s36, s36, {FS+5}
    v_and_b32 v17, 31, v1
    v_lshl_add_u32 v223, v17, {FS}, s36
    v_lshrrev_b32 v18, 5, v1
    v_and_b32 v19, 3, v17
    v_sub_u32 v19, 3, v19
    v_mul_u32_u24 v19, {GP}, v19
    v_lshrrev_b32 v2, 2, v17
    v_lshlrev_b32 v3, 1, v18
    v_sub_u32 v2, v3, v2
    v_lshl_add_u32 v19, v2, 3, v19
    s_mul_i32 s36, s61, {GCH}
    s_lshl_b32 s56, s63, 10
    s_sub_u32 s36, s36, s56
    s_add_u32 s36, s36, {L_G + 8*511 - 32*94}
    v_add_u32 v218, s36, v19
    v_mul_u32_u24 v2, 80, v17
    v_lshl_add_u32 v2, v18, 4, v2
    s_mul_i32 s36, s61, {UCH}
    s_mul_i32 s56, s63, {16*80}
    s_sub_u32 s36, s36, s56
    s_add_u32 s36, s36, {L_U + 17*80}
    v_add_u32 v219, s36, v2
    v_mov_b64 v[32:33], 0
    v_mov_b64 v[34:35], 0
    v_and_b32 v14, 255, v0
    v_lshlrev_b32 v36, 4, v14
    v_add_u32 v36, {L_U}, v36
    v_cmp_gt_u32 vcc, 160, v14
    s_mov_b64 exec, vcc
    ds_write_b128 v36, v[32:35]
    ds_write_b128 v36, v[32:35] offset:{UCH}
    s_mov_b64 exec, -1
    ds_write2_b32 v{CV}, v32, v33 offset0:1 offset1:3
    ds_write_b32 v{CV}, v32
    """)
    for l in t.lines: a(l)
    stamp(a, 13)
    if 'nob' in DBG:
        for _ in range(14): a('s_barrier')
        a('s_branch P_fin')
    a(f's_waitcnt vmcnt(10)\ns_cmp_eq_u32 s3, 4\ns_cselect_b32 exec_lo, 1, 0\ns_mov_b32 exec_hi, 0\nv_add_u32 v253, 1, v253\nds_write_b32 v{CV}, v253 offset:8\ns_mov_b64 exec, -1')
    a('s_waitcnt lgkmcnt(0)')
    p0, b0 = kgen(0); p1, b1 = kgen(1)
    work = [(l, PRE_C) for l in p1] + [(l, 1) for l in b1] + [(l, PRE_C) for l in p0] + [(l, 1) for l in b0]
    if 'nowork' in DBG: work = []
    dump = {c: [f'ds_write_addtid_b32 v{PKB[c]+row} offset:{row*XYP}' for row in range(53)] for c in range(2)}
    for j in range(NST):
        a('s_barrier')
        if j == 0:
            stamp(a, 1)
            a('s_setprio 0')
            gtabs(a)
            kmskip(a, 1)
            scB, veB, _ = att_split()
            emit_groups(a, scB)
        if j == B_FIRST: a(f's_waitcnt vmcnt({2 if U_ISS < 0 else 0})')
        if j == 3: a(f'ds_read_b32 v253, v{CV} offset:8')
        if j == F0_SIG:
            a('s_waitcnt vmcnt(0)')
            signal(a, 59, 2, 3)
        if j == U_ISS:
            a('s_mov_b32 m0, s34\ns_nop 0\nbuffer_load_dwordx4 v54, s[8:11], 0 offen nt lds')
            a('s_add_u32 m0, s34, 1024\ns_nop 0\nbuffer_load_dwordx4 v55, s[8:11], 0 offen nt lds')
        if j == U_TR:
            a(f"""
            s_waitcnt vmcnt(0)
            ds_read_b64_tr_b16 v[54:55], v50
            ds_read_b64_tr_b16 v[56:57], v50 offset:512
            ds_read_b64_tr_b16 v[58:59], v51
            ds_read_b64_tr_b16 v[60:61], v51 offset:512
            s_mov_b32 s36, {8*16384}
            s_lshl_b32 m0, s29, 8
            s_waitcnt lgkmcnt(0)
            {'' if 'noust' in DBG else 'buffer_store_dwordx4 v[54:57], v52, s[16:19], 0 offen sc1'}
            {'' if 'noust' in DBG else 'buffer_store_dwordx4 v[58:61], v52, s[16:19], s36 offen sc1'}
            v_readfirstlane_b32 s20, v253
            """)
            for r in range(22, 26): a(f'v_add_u32 v{r}, {T2CH}, v{r}')
        if B_FIRST <= j <= B_LAST:
            tot = sum(c for _, c in work); budget = tot * BW[j] / sum(BW[j:B_LAST+1])
            while work and (budget > 0 or j == B_LAST):
                l, c = work.pop(0); a(l); budget -= c
        if U_TR < j < NST - 1:
            for l in dump[1][:D_PER]: a(l)
            dump[1] = dump[1][D_PER:]
    assert not work
    a('s_cmp_eq_u32 s3, 4\ns_cselect_b32 s60, 1, 0\ns_cbranch_scc0 Q_nof0a')
    a('buffer_load_dwordx4 v[28:31], v223, s[16:19], 0 offen sc1')
    a.label('Q_nof0a')
    for l in dump[1]: a(l)
    a(f's_lshl_b32 s36, s29, 8\ns_add_u32 m0, s36, {XYCH}\ns_nop 0')
    for l in dump[0]: a(l)
    stamp(a, 2)
    if 'gemmonly' in DBG: a('s_branch P_fin')
    def nop(): pass
    def udma():
        a('s_add_u32 s56, s57, 16')
        for ch in range(2):
            for k in range(5):
                a(f's_mov_b32 m0, {L_U + 32*80 + ch*UCH + 1024*k}')
                a(f'buffer_load_dwordx4 v{UV[k]}, s[16:19], s{57-ch} offen sc1 lds')
    def look(tag, last=False):
        a(f's_cmp_eq_u32 s60, 0\ns_cbranch_scc1 Q_lk{tag}')
        if last:
            poll(a, 'PL_f0', 223, 28, x4=True, sleep=1)
        else:
            a('s_waitcnt vmcnt(0)')
            for i in range(4): a(f'v_xor_b32 v{28+i}, s20, v{28+i}')
            a('v_or3_b32 v28, v28, v29, v30\nv_or_b32 v28, v28, v31\nv_cmp_ne_u32 vcc, 0, v28')
            a(f's_nop 4\ns_cbranch_vccz Q_lg{tag}')
            a('buffer_load_dwordx4 v[28:31], v223, s[16:19], 0 offen sc1')
            a(f's_branch Q_lk{tag}')
            a.label(f'Q_lg{tag}')
        a('s_call_b64 s[90:91], Q_udma')
        a.label(f'Q_lk{tag}')
    a('s_waitcnt lgkmcnt(0)\ns_barrier')
    stamp(a, 3)
    look('z')
    for l in kmfma(): a(l)
    if LOOK_POS == 0: look('b')
    a('s_barrier')
    stamp(a, 14)
    if LOOK_POS == 1: look('b')
    a('s_mov_b32 exec_hi, 0\nds_write_b128 v217, v[32:35]\ns_mov_b32 exec_hi, -1')
    gbuild(a, 1, (0, 1, 2, 3))
    a(f's_cmp_lg_u32 s3, 4\ns_cbranch_scc1 Q_u0\ns_cmp_lg_u32 s60, 0\ns_cbranch_scc1 Q_u0\ns_waitcnt vmcnt(0)\nds_write_b32 v{CV}, v{C1}')
    a.label('Q_u0')
    a('s_waitcnt lgkmcnt(0)\ns_barrier')
    a('s_cmp_eq_u32 s60, 0\ns_cbranch_scc1 Q_uw')
    look('c', True)
    a('s_waitcnt vmcnt(0)')
    a(f'ds_write_b32 v{CV}, v{C1}')
    a.label('Q_uw')
    gwait(a, 0, 1, 2)
    stamp(a, 4)
    if CONV_PRIO: a('s_setprio 1')
    SC = 4; sc = [0]
    def sarr():
        a('s_waitcnt lgkmcnt(0)'); garrive(a, SC); sc[0] += 4
    Y0, Y1 = 176, 192
    FR = 32; NBUF = 4
    def boff(n): return (n // 2) * 80 + (n % 2) * 32
    def ld(t):
        b = FR + 16 * (t % NBUF); ao = 32*(31-t)
        return [f'ds_read_b64 {v(b,2)}, v218 offset:{ao + 2048}',
                f'ds_read_b64 {v(b+2,2)}, v218 offset:{ao + 2056}',
                f'ds_read_b128 {v(b+4,4)}, v219 offset:{boff(31-t)}',
                f'ds_read_b128 {v(b+8,4)}, v219 offset:{boff(31-t) + 2560}',
                f'ds_read_b64 {v(b+12,2)}, v218 offset:{ao}',
                f'ds_read_b64 {v(b+14,2)}, v218 offset:{ao + 8}']
    def mm(t, first):
        b = FR + 16 * (t % NBUF)
        return [f'v_mfma_f32_32x32x16_bf16 {v(Y0,16)}, {v(b,4)}, {v(b+4,4)}, {"0" if first else v(Y0,16)}',
                f'v_mfma_f32_32x32x16_bf16 {v(Y1,16)}, {v(b,4)}, {v(b+8,4)}, {"0" if first else v(Y1,16)}',
                f'v_mfma_f32_32x32x16_bf16 {v(Y1,16)}, {v(b+12,4)}, {v(b+4,4)}, {v(Y1,16)}']
    for l in ld(0) + ld(1): a(l)
    t_ = Asm()
    t_(f"""
    s_lshl_b32 s36, s29, 12
    s_add_u32 s36, s36, {L_PART}
    v_lshl_add_u32 v216, v1, 4, s36
    s_xor_b32 s36, s36, 8192
    v_lshl_add_u32 v217, v1, 4, s36
    s_lshl_b32 s36, s21, 13
    s_lshl_b32 s60, s61, 12
    s_add_u32 s36, s36, s60
    s_lshl_b32 s60, s63, 11
    s_add_u32 s36, s36, s60
    s_add_u32 s36, s36, {WS_YT}
    v_and_b32 v220, 31, v1
    v_lshrrev_b32 v221, 5, v1
    v_lshlrev_b32 v220, 6, v220
    v_lshl_add_u32 v220, v221, 4, v220
    v_add_u32 v220, s36, v220
    s_mov_b32 s60, s63
    """)
    fillA = [[l] for l in t_.lines]
    _, fillB = att_pre_groups()
    fillA += veB
    if 'nofillc' in DBG:
        emit_groups(a, fillA); fillA = []; stamp(a, 4)
    T0 = CONV_T0
    def take(q, k):
        for _ in range(k):
            if q:
                for l in q.pop(0): a(l)
    if T0 >= 32: fillB = []
    perA = -(-len(fillA) // (3*min(T0, 30))); perB = -(-len(fillB) // (3*max(30 - T0, 1)))
    for t in range(32):
        if t == T0:
            gwait(a, 12, 1, 2)
        else:
            a(f's_waitcnt lgkmcnt({6 if t < 31 else 0})')
        if 'cstamp' in DBG and t in (12, 22): stamp(a, 13 if t == 12 else 14)
        L = ld(t + 2) if t + 2 < 32 else []
        M = mm(t, t == 0)
        q, per = (fillA, perA) if t < T0 else (fillB, perB)
        a(M[0])
        for l in L[:2]: a(l)
        take(q, per)
        a(M[1])
        for l in L[2:4]: a(l)
        take(q, per)
        a(M[2])
        for l in L[4:]: a(l)
        take(q, per)
    assert not fillA and not fillB
    if 'cstamp' in DBG: stamp(a, 3)
    a('s_setprio 1')
    PR = 208 + 16
    PR = 64
    a('s_cmp_eq_u32 s60, 0\ns_cbranch_scc1 S_h0')
    for hf in (1, 0):
        keep = Y1 if hf else Y0; send = Y0 if hf else Y1
        if hf == 0: a.label('S_h0')
        for q in range(4): a(f'ds_write_b128 v216, {v(send + 4*q, 4)} offset:{q*1024}')
        a('s_waitcnt lgkmcnt(0)'); garrive(a, SC)
        gwait(a, SC, 4, 2)
        for q in range(4): a(f'ds_read_b128 {v(PR + 4*q, 4)}, v217 offset:{q*1024}')
        for q in range(4):
            a(f's_waitcnt lgkmcnt({3-q})')
            for e in range(4): a(f'v_add_f32 v{PR+4*q+e}, v{PR+4*q+e}, v{keep+4*q+e}')
        if hf == 1: a('s_branch S_h1')
    a.label('S_h1')
    garrive(a, SC)
    stamp(a, 5)
    for r in range(8): a(f'v_cvt_pk_bf16_f32 v{176+r}, v{PR+2*r}, v{PR+2*r+1}')
    for q in range(2):
        a(f'v_permlane32_swap_b32 v{176+4*q}, v{176+4*q+2}')
        a(f'v_permlane32_swap_b32 v{176+4*q+1}, v{176+4*q+3}')
    a('buffer_store_dwordx4 v[176:179], v220, s[16:19], 0 offen sc1')
    a('buffer_store_dwordx4 v[180:183], v220, s[16:19], 0 offen offset:32 sc1')
    emit_groups(a, att_zero())
    a('s_branch L_att')
    a.label('Q_udma')
    udma()
    a('s_mov_b32 s60, 0\ns_setpc_b64 s[90:91]')

def comp_waves(a):
    XF = 64; ACC = {K_: 176, V_: 192, Q_: 208}; WB = [[8 + 4*i for i in range(8)], [224 + 4*i for i in range(4)] + [40 + 4*i for i in range(4)]]
    a(f"""
    s_sub_u32 s28, s24, 7
    s_cmp_ge_u32 s24, 7
    s_cselect_b32 s27, s28, s24            ; rho
    s_lshl_b32 s30, s29, 4
    v_add_u32 v5, s30, v3
    v_lshrrev_b32 v6, 1, v5
    v_and_b32 v6, 7, v6
    v_xor_b32 v6, v6, v4
    v_lshlrev_b32 v6, 4, v6
    s_lshl_b32 s30, s26, 6
    v_add_u32 v7, s30, v5
    v_mul_u32_u24 v7, 896, v7
    v_add_u32 v244, v7, v6
    v_xor_b32 v6, 64, v6
    v_add_u32 v245, v7, v6
    v_add_u32 v245, 7168, v245
    v_lshrrev_b32 v6, 1, v5
    v_and_b32 v6, 1, v6
    v_lshlrev_b32 v6, 2, v6
    v_xor_b32 v6, v6, v4
    v_lshlrev_b32 v6, 4, v6
    v_mul_u32_u24 v7, 2688, v5
    v_add_u32 v246, v7, v6
    s_lshl_b32 s30, s25, 7
    v_add_u32 v246, s30, v246
    v_add_u32 v247, 21504, v246
    s_lshl_b32 s32, s29, 11
    s_lshl_b32 s40, s27, 7
    s_mul_i32 s48, s27, {64*2688}
    s_waitcnt lgkmcnt(0)
    """)
    srd(a, 8, P_X, S * D * 2)
    srd(a, 4, P_W, D * 3 * D * 2)
    def issue(j):
        o = []
        for half, (kind, i) in enumerate(stages[j]):
            base = RING0 + slot_of(j) * SLOT + half * 8192
            for e in range(2):
                g = [f's_add_u32 m0, s32, {base + e*1024}']
                if kind == 'x':
                    g.append(f'buffer_load_dwordx4 v{244+e}, s[8:11], s{40+i} offen {XMOD} lds')
                else:
                    so = f's{48+i}'
                    if kind:
                        so = 's37'
                        if e == 0: g.append(f's_add_u32 s37, s{48+i}, {kind*896}')
                    g.append(f'buffer_load_dwordx4 v{246+e}, s[4:7], {so} offen lds')
                o.append(g)
        return o
    vm = []
    def waitfor(tag):
        last = max(i for i, t in enumerate(vm) if t == tag)
        a(f's_waitcnt vmcnt({len(vm) - 1 - last})')
    def em(l, tag='st'):
        a(l)
        if l.startswith('buffer_'): vm.append(tag)
    def issue_now(j):
        for g in issue(j):
            for l in g: em(l, j)
    issue_now(0)
    a(f's_lshl_b32 s36, s21, 2\ns_add_u32 s{P_DS}, s{P_DS}, s36\ns_addc_u32 s{P_DS+1}, s{P_DS+1}, 0\ns_load_dword s39, s[{P_DS}:{P_DS+1}], 0')
    for i in range(1, 7):
        if i == 3: issue_now(1)
        a(f's_add_u32 s27, s27, 1\ns_cmp_eq_u32 s27, 7\ns_cselect_b32 s27, 0, s27\ns_lshl_b32 s{40+i}, s27, 7\ns_mul_i32 s{48+i}, s27, {64*2688}')
    srd(a, 16, P_WS, WS_END)
    srd(a, 12, P_OUT, S * 2 * D * 2)
    a(f"""
    v_lshlrev_b32 v6, 3, v0
    v_sub_u32 v6, 2047, v6
    v_mov_b32 v17, {L_T2}
    v_mov_b32 v18, {TP}
    v_lshlrev_b32 v19, 4, v0
    v_add_u32 v19, {L_TAB}, v19
    s_mov_b32 s36, 0
    """)
    a.label('Q_tab')
    for i in (0, 2):
        a(f"""
        v_subrev_u32 v7, {i}, v6
        v_subrev_u32 v8, {i+1}, v6
        v_cvt_f32_i32 v2, v7
        v_cvt_f32_i32 v5, v8
        v_cvt_pk_bf16_f32 v2, v2, v5
        v_and_b32 v5, 0xffff0000, v2
        v_lshlrev_b32 v2, 16, v2
        v_cvt_i32_f32 v2, v2
        v_cvt_i32_f32 v5, v5
        v_and_b32 v7, 7, v2
        v_and_b32 v8, 7, v5
        v_ashrrev_i32 v2, 3, v2
        v_ashrrev_i32 v5, 3, v5
        v_mad_u32_u24 v2, v7, v18, v2
        v_mad_u32_u24 v5, v8, v18, v5
        v_lshl_add_u32 v{64+i}, v2, 1, v17
        v_lshl_add_u32 v{65+i}, v5, 1, v17
        """)
    a(f"""
    ds_write_b128 v19, v[64:67]
    v_add_u32 v19, 4096, v19
    v_subrev_u32 v6, 4, v6
    s_add_u32 s36, s36, 1
    s_cmp_lt_u32 s36, 3
    s_cbranch_scc1 Q_tab
    v_and_b32 v17, 15, v1
    """)
    ix = lambda p: (p & 7) * TP + (p >> 3)
    def pk(b, s1, s2): assert b < 4096 and s1 < 1024 and s2 < 1024; return b | (s1 << 12) | (s2 << 22)
    t0 = [pk(0, TP, 2*TP), pk(4*TP, TP, 2*TP), None, None]
    a('s_cmp_eq_u32 s63, 0')
    ptab = {0: [[0,1,2,3],[4,5,6,7],[256,258,260,262],[512,516,768,772]],
            1: [[1024,1280,1536,1792],[2048,2304,2304,2304],[2304]*4,[2304]*4]}
    for g in range(4):
        lo = lambda at: ix(ptab[at][g][0]) | (ix(ptab[at][g][1]) << 16)
        hi = lambda at: ix(ptab[at][g][2]) | (ix(ptab[at][g][3]) << 16)
        a(f's_mov_b32 exec_lo, {0xffff << (16*(g%2)) if g < 2 else 0}')
        a(f's_mov_b32 exec_hi, {0xffff << (16*(g%2)) if g >= 2 else 0}')
        a(f's_mov_b32 s36, {lo(1)}\ns_cselect_b32 s36, {lo(0)}, s36\nv_mov_b32 v68, s36')
        a(f's_mov_b32 s36, {hi(1)}\ns_cselect_b32 s36, {hi(0)}, s36\nv_mov_b32 v70, s36')
    a(f"""
    s_mov_b64 exec, -1
    s_lshl_b32 s36, s61, 5
    s_add_u32 s36, s36, {L_T2}
    v_lshl_add_u32 v18, v17, 1, s36
    v_lshrrev_b32 v69, 16, v68
    v_lshrrev_b32 v71, 16, v70
    v_and_b32 v68, 0xffff, v68
    v_and_b32 v70, 0xffff, v70
    v_lshl_add_u32 v68, v68, 1, v18
    v_lshl_add_u32 v69, v69, 1, v18
    v_lshl_add_u32 v70, v70, 1, v18
    v_lshl_add_u32 v71, v71, 1, v18
    ds_write_b128 v19, v[68:71]
    s_and_b32 s27, s3, 1                   ; rt
    s_lshr_b32 s30, s3, 1                  ; cg
    v_and_b32 v3, 31, v1
    v_lshrrev_b32 v4, 5, v1
    s_lshl_b32 s31, s27, 5
    v_add_u32 v5, s31, v3
    v_lshrrev_b32 v6, 1, v5
    v_and_b32 v6, 7, v6
    v_lshlrev_b32 v7, 7, v5
    v_add_u32 v7, {RING0}, v7
    """)
    for st in range(4):
        a(f"""
        v_add_u32 v{56+st}, {2*st}, v4
        v_xor_b32 v{56+st}, v{56+st}, v6
        v_lshl_add_u32 v{56+st}, v{56+st}, 4, v7
        v_add_u32 v{240+st}, 0x10000, v{56+st}
        """)
    a(f"""
    v_and_b32 v6, 3, v1
    v_lshlrev_b32 v6, 3, v6
    v_bfe_u32 v7, v1, 4, 1
    v_lshl_add_u32 v6, v7, 5, v6
    s_lshl_b32 s31, s30, 6
    v_add_u32 v6, s31, v6
    v_bfe_u32 v7, v1, 3, 1
    v_lshlrev_b32 v7, 6, v7
    v_xor_b32 v6, v6, v7
    v_bfe_u32 v7, v1, 2, 2
    v_lshl_add_u32 v7, v4, 3, v7
    v_lshl_add_u32 v60, v7, 7, v6
    v_add_u32 v248, 0x10000, v60
    s_lshl_b32 s31, s26, 1
    s_add_u32 s31, s31, s27
    s_mul_i32 s31, s31, {TILEB}
    s_lshl_b32 s33, s25, 3
    s_lshl_b32 s34, s30, 2
    s_add_u32 s33, s33, s34
    s_lshl_b32 s34, s33, 9
    s_add_u32 s34, s34, s31
    v_lshlrev_b32 v61, 4, v1
    v_add_u32 v61, s34, v61
    s_lshl_b32 s34, s33, 7
    s_add_u32 s34, s34, s31
    v_mul_u32_u24 v62, 7168, v4
    v_lshl_add_u32 v62, v3, 4, v62
    v_add_u32 v62, s34, v62
    s_mov_b32 s35, {f32bits(QSCALE)}
    s_lshl_b32 s60, s25, {FS+5}
    s_lshl_b32 s61, s26, {FS}
    s_add_u32 s60, s60, s61
    s_lshl_b32 s61, s3, 2
    s_add_u32 s60, s60, s61
    s_add_u32 s60, s60, {F1}
    """)
    if PRE_ST >= 3: issue_now(2)
    a('s_waitcnt lgkmcnt(0)')
    stamp(a, 13)
    def reads(j):
        hi = slot_of(j) >= 4
        sb = (slot_of(j) % 4) * SLOT
        n = 0; o = []
        for half, (kind, i) in enumerate(stages[j]):
            base = sb + half * 8192
            if kind == 'x':
                for st in range(4):
                    o.append(f'ds_read_b128 {v(XF + 16*i + 4*st, 4)}, v{(240 if hi else 56) + st} offset:{base}')
            else:
                for st in range(4):
                    r = WB[j % 2][n]; n += 1
                    for e in range(2):
                        o.append(f'ds_read_b64_tr_b16 {v(r + 2*e, 2)}, v{248 if hi else 60} offset:{base + (16*st + 4*e)*128}')
        return o
    started = set()
    def epilogue(kind):
        acc = ACC[kind]; out = []
        if kind == Q_:
            for r in range(16): out.append(f'v_mul_f32 v{acc+r}, s35, v{acc+r}')
        for r in range(8): out.append(f'v_cvt_pk_bf16_f32 v{acc+r}, v{acc+2*r}, v{acc+2*r+1}')
        T = acc
        if kind == V_:
            out.append(f's_mov_b32 s36, {WS_V}')
            out.append(f'buffer_store_dwordx4 {v(T,4)}, v62, s[16:19], s36 offen sc1')
            out.append(f's_mov_b32 s36, {WS_V + 2*7168}')
            out.append(f'buffer_store_dwordx4 {v(T+4,4)}, v62, s[16:19], s36 offen sc1')
        else:
            for q in range(2):
                out.append(f'v_permlane32_swap_b32 v{T+4*q}, v{T+4*q+2}')
                out.append(f'v_permlane32_swap_b32 v{T+4*q+1}, v{T+4*q+3}')
            out.append(f's_mov_b32 s36, {WS_Q if kind == Q_ else WS_K}')
            out.append(f'buffer_store_dwordx4 {v(T,4)}, v61, s[16:19], s36 offen sc1')
            out.append(f'buffer_store_dwordx4 {v(T+4,4)}, v61, s[16:19], s36 offen offset:1024 sc1')
        return out
    def mlist(j):
        n = 0; done = []; o = []
        for half, (kind, i) in enumerate(stages[j]):
            if kind == 'x': continue
            acc = ACC[kind]
            for st in range(4):
                w = WB[j % 2][n]; n += 1
                x = XF + 16*i + 4*st
                c = v(acc, 16) if kind in started else '0'
                started.add(kind)
                if kind == V_: o.append(f'v_mfma_f32_32x32x16_bf16 {v(acc,16)}, {v(x,4)}, {v(w,4)}, {c}')
                else:          o.append(f'v_mfma_f32_32x32x16_bf16 {v(acc,16)}, {v(w,4)}, {v(x,4)}, {c}')
            if i == 6: done.append(kind)
        return o, done
    def weave(ms, rd, fill, dm, tag):
        nm = len(ms)
        slots = max(nm, 4)
        per = -(-len(rd) // max(slots - 2, 1))
        fper = -(-len(fill) // max(nm - 2, 1))
        dper = -(-len(dm) // slots); dstep = max(slots // max(len(dm), 1), 1)
        for k in range(slots):
            if k < nm: a(ms[k])
            if k % dstep == 0:
                for _ in range(dper):
                    if dm:
                        tg, g = dm.pop(0)
                        for l in g: em(l, tg)
            for _ in range(per):
                if rd: a(rd.pop(0))
            if k >= 2:
                for _ in range(fper):
                    if fill: em(fill.pop(0))
        for l in rd + fill: em(l)
    pending = []; carry = []; issued = max(PRE_ST, 2)
    for j in range(NST):
        waitfor(j)
        a('s_barrier')
        if j == 0: stamp(a, 1)
        if 'gemmonly' in DBG and j in GS: stamp(a, 3 + GS.index(j))
        rd = reads(j); ms = []; fill = carry; carry = []
        if j == 5: rd.append(f'ds_read_b32 v253, v{CV} offset:8')
        if j > 0:
            for k in pending: fill += epilogue(k)
            ms, pending = mlist(j - 1)
        dm = []
        for _ in range(MAXI):
            if issued < NST and issued <= j + (DEPTH if j < D2J else DEPTH2):
                dm += [(issued, g) for g in issue(issued)]; issued += 1
        if dm:
            k = next((i for i, l in enumerate(fill) if l.startswith(('buffer_', 's_mov_b32 s36'))), len(fill))
            carry = fill[k:]; fill = fill[:k]
        if len(fill) > FILL_MAX and j < NST - 1:
            carry = fill[FILL_MAX:] + carry; fill = fill[:FILL_MAX]
        weave(ms, rd, fill, dm, j + DEPTH)
        a('s_waitcnt lgkmcnt(0)')
    fill = carry
    for k in pending: fill += epilogue(k)
    ms, pending = mlist(NST - 1)
    weave(ms, [], fill, [], None)
    for k in pending:
        for l in epilogue(k): a(l)
    stamp(a, 2)
    if 'gemmonly' in DBG: a('s_branch P_fin')
    sc_, ve_, lds_ = att_split()
    FL = 252
    a('v_readfirstlane_b32 s20, v253')
    gtabs(a)
    kmaddr(a, 0)
    kmskip(a, 0)
    att_poll_addr(a, FL)
    a('s_waitcnt lgkmcnt(0)\ns_barrier')
    stamp(a, 3)
    km0 = kmfma(); fc = [l for g in sc_ for l in g]; km = []
    for l in km0:
        km.append(l)
        if l.startswith('ds_read_b128'):
            km += fc[:4]; fc = fc[4:]
    km += fc
    cut = int(len(km) * SIG_CUT)
    for l in km[:cut]: a(l)
    a('s_waitcnt vmcnt(0)')
    signal(a, 60, 2, 3)
    for l in km[cut:]: a(l)
    a('s_barrier')
    stamp(a, 14)
    gbuild(a, 0, (0, 1, 2, 3))
    a('s_waitcnt lgkmcnt(0)\ns_barrier')
    stamp(a, 4)
    a('s_setprio 2')
    a('s_cmp_lg_u32 s3, 0\ns_cbranch_scc1 Q_nq')
    a(f'buffer_load_dwordx4 v[244:247], v{FL}, s[16:19], 0 offen sc1')
    a.label('Q_nq')
    emit_groups(a, ve_ + att_zero())
    a('s_cmp_lg_u32 s3, 0\ns_cbranch_scc1 Q_w1')
    a('s_waitcnt vmcnt(0)')
    for i in range(4): a(f'v_xor_b32 v{244+i}, s20, v{244+i}')
    a('v_or3_b32 v244, v244, v245, v246\nv_or_b32 v244, v244, v247\nv_cmp_ne_u32 vcc, 0, v244\ns_nop 4\ns_cbranch_vccz Q_w0')
    poll(a, 'PL_f1', FL, 244, x4=True, sleep=A_SLEEP)
    a.label('Q_w0')
    a(f'ds_write_b32 v{CV}, v{C1} offset:12')
    a('s_branch L_pre')
    a.label('Q_w1')
    gwait(a, 12, 1, 2)
    a.label('L_pre')
    stamp(a, 5)
    emit_groups(a, lds_[:10])
    att_first(a, 4)
    emit_groups(a, lds_[10:])
    a('s_setprio 0')
    a('s_branch L_att2')

EB = 176
EA = EB + 56
ET = 96
def ssm_epi_setup(a):
    a(f"""
    v_and_b32 v{ET}, 1, v1                      ; ch
    v_bfe_u32 v{ET+1}, v1, 1, 2                 ; j
    v_lshrrev_b32 v{ET+2}, 3, v1
    v_mul_u32_u24 v{ET+3}, {POWN}, v{ET+1}
    v_mul_u32_u24 v{ET+4}, {PSRC}, v{ET}
    v_add_u32 v{ET+3}, v{ET+3}, v{ET+4}
    v_lshl_add_u32 v{ET+3}, v{ET+2}, 4, v{ET+3}
    s_lshl_b32 s60, s29, 7
    s_add_u32 s36, s60, {L_PART}
    v_add_u32 v{EA}, s36, v{ET+3}
    v_mul_u32_u24 v{ET+2}, 80, v{ET+2}
    v_lshl_add_u32 v{ET+2}, v{ET+1}, 4, v{ET+2}
    v_mul_u32_u24 v{ET+4}, {UCH}, v{ET}
    v_add_u32 v{ET+2}, v{ET+2}, v{ET+4}
    s_mul_i32 s36, s29, 640
    s_add_u32 s36, s36, {L_U + 32*80}
    v_add_u32 v{EA+1}, s36, v{ET+2}             ; u chunk
    s_lshl_b32 s36, s21, 13
    s_lshl_b32 s60, s29, 10
    s_add_u32 s36, s36, s60
    s_add_u32 s36, s36, {WS_YT}
    v_lshl_add_u32 v{EA+2}, v1, 4, s36
    s_lshl_b32 s60, s39, 16
    s_and_b32 s61, s39, 0xffff0000
    v_mov_b32 v{EA+3}, s60
    v_mov_b32 v{ET+4}, s61
    v_cmp_eq_u32 vcc, 1, v{ET}
    v_cndmask_b32 v{EA+3}, v{EA+3}, v{ET+4}, vcc
    """)

def ssm_epi_reads(a):
    for p in range(2):
        E = EB + 28*p; o = p*4*POWN
        a(f"""
        ds_read_b128 {v(E,4)}, v{EA} offset:{o}
        ds_read_b128 {v(E+4,4)}, v{EA} offset:{o+512}
        ds_read_b128 {v(E+8,4)}, v{EA} offset:{o+2*PSRC}
        ds_read_b128 {v(E+12,4)}, v{EA} offset:{o+2*PSRC+512}
        ds_read_b128 {v(E+16,4)}, v{EA+1} offset:{p*2560}
        """)

def ssm_epi(a):
    a('s_mov_b32 s36, 4096')
    for p in range(2):
        A = EB + 28*p; B = A + 8; U = A + 16; C = A + 20
        for e in range(8): a(f'v_add_f32 v{A+e}, v{A+e}, v{B+e}')
        for e in range(4):
            a(f'v_lshlrev_b32 v{C+2*e}, 16, v{U+e}')
            a(f'v_and_b32 v{C+1+2*e}, 0xffff0000, v{U+e}')
        for e in range(8): a(f'v_mul_f32 v{C+e}, v{EA+3}, v{C+e}')
        for e in range(4):
            a(f'v_cvt_pk_bf16_f32 v{B+e}, v{A+2*e}, v{A+1+2*e}')
            a(f'v_cvt_pk_bf16_f32 v{B+4+e}, v{C+2*e}, v{C+1+2*e}')
        for e in range(4):
            a(f'v_lshlrev_b32 v{A+2*e}, 16, v{B+e}')
            a(f'v_and_b32 v{A+1+2*e}, 0xffff0000, v{B+e}')
            a(f'v_lshlrev_b32 v{C+2*e}, 16, v{B+4+e}')
            a(f'v_and_b32 v{C+1+2*e}, 0xffff0000, v{B+4+e}')
        for e in range(8): a(f'v_add_f32 v{A+e}, v{A+e}, v{C+e}')
        for e in range(4): a(f'v_cvt_pk_bf16_f32 v{B+e}, v{A+2*e}, v{A+1+2*e}')
        a(f'buffer_store_dwordx4 {v(B,4)}, v{EA+2}, s[16:19], {"s36" if p else "0"} offen sc1')

def att_ids(a):
    if AMAP == 0:
        a("""
        s_lshl_b32 s40, s22, 1
        s_and_b32 s41, s23, 1
        s_add_u32 s40, s40, s41                ; head
        s_lshr_b32 s41, s23, 1                 ; rbq
        s_mov_b32 s99, s41
        """)
    elif AMAP == 1:
        a("""
        s_lshl_b32 s41, s22, 1
        s_and_b32 s40, s23, 1
        s_lshl_b32 s99, s40, 3
        s_add_u32 s41, s41, s40                ; rbq
        s_lshr_b32 s40, s23, 1                 ; head
        """)
    a("""
    s_mul_i32 s42, s40, 7
    s_lshr_b32 s42, s42, 1                 ; chi0
    """)

def att_poll_addr(a, r):
    att_ids(a)
    a(f"""
    s_lshr_b32 s43, s42, 3
    s_add_u32 s44, s42, 3
    s_lshr_b32 s44, s44, 3
    s_lshl_b32 s43, s43, {FS+5}
    s_lshl_b32 s44, s44, {FS+5}
    v_mov_b32 v{r}, s43
    v_mov_b32 v{r+1}, s44
    v_cmp_lt_u32 vcc, 31, v1
    v_cndmask_b32 v{r}, v{r}, v{r+1}, vcc
    v_and_b32 v{r+1}, 31, v1
    v_lshl_add_u32 v{r}, v{r+1}, {FS}, v{r}
    v_add_u32 v{r}, {F1}, v{r}
    """)

def att_poll(a, name):
    att_poll_addr(a, 16)
    poll(a, name, 16, 20, x4=True, sleep=8)

OL = 120 * 1024; YL = 152 * 1024; RED = 96 * 1024
NB = 4
QF = 16; OA = 32; SB = 64; PB = 96; KB = 112; VB = KB + 8*NB
def advK(a):
    a(f's_add_u32 s33, s33, {TILEB}')
    a('s_cmp_eq_u32 s33, s55')
    a('s_cselect_b32 s33, s54, s33')
def loadK(a, n):
    a(f'buffer_load_dwordx4 {v(KB+8*n,4)}, v3, s[16:19], s33 offen')
    a(f'buffer_load_dwordx4 {v(KB+8*n+4,4)}, v3, s[16:19], s33 offen offset:1024')
def loadV(a, n):
    a('s_mov_b64 exec, s[46:47]')
    a(f'buffer_load_dwordx4 {v(VB+8*n,4)}, v4, s[16:19], s33 offen')
    a(f'buffer_load_dwordx4 {v(VB+8*n+4,4)}, v7, s[16:19], s33 offen')
    a('s_mov_b64 exec, -1')

def att_pre_groups():
    def G(fn, *args):
        t = Asm(); fn(t, *args); return t.lines
    def singles(txt): return [[l] for l in lines(txt)]
    p1 = [[l] for l in G(att_ids)]
    p1 += singles(f"""
    s_and_b32 s24, s3, 1                   ; qg
    s_lshr_b32 s27, s3, 1
    s_cmp_lt_u32 s23, 28
    s_cselect_b32 s34, {NA}, 16
    s_sub_u32 s35, 32, s34
    s_min_u32 s54, s27, 2
    s_mul_i32 s54, s54, s34
    s_cmp_eq_u32 s27, 3
    s_cselect_b32 s55, s35, 0
    s_add_u32 s54, s54, s55
    s_cmp_lt_u32 s3, 4
    s_cselect_b32 s34, s34, s35
    s_lshr_b32 s35, s34, 2
    s_lshl_b32 s96, s42, 9
    v_lshl_add_u32 v3, v1, 4, s96          ; Q/K voffset
    s_lshl_b32 s28, s41, 2
    s_lshl_b32 s31, s24, 1
    s_add_u32 s28, s28, s31
    s_mul_i32 s31, s28, {TILEB}
    s_add_u32 s31, s31, {WS_Q}
    s_add_u32 s30, s31, {TILEB}
    s_mul_i32 s54, s54, {TILEB}
    s_add_u32 s54, s54, {WS_K}
    s_mul_i32 s55, s34, {TILEB}
    s_add_u32 s55, s55, s54
    s_mul_i32 s33, s99, s34
    s_lshr_b32 s33, s33, 4
    s_mul_i32 s33, s33, {TILEB}
    s_add_u32 s33, s33, s54
    buffer_load_dwordx4 {v(QF,4)}, v3, s[16:19], s31 offen
    buffer_load_dwordx4 {v(QF+4,4)}, v3, s[16:19], s31 offen offset:1024
    """)
    p1 += [[l] for l in G(loadK, 0)]
    p1 += singles(f"""
    buffer_load_dwordx4 {v(QF+8,4)}, v3, s[16:19], s30 offen
    buffer_load_dwordx4 {v(QF+12,4)}, v3, s[16:19], s30 offen offset:1024
    v_and_b32 v5, 31, v1
    v_lshrrev_b32 v6, 5, v1
    v_mul_u32_u24 v4, 7168, v6
    v_lshl_add_u32 v4, v5, 4, v4
    s_mul_i32 s97, s40, 448
    s_add_u32 s97, s97, {WS_V - WS_K}
    v_add_u32 v4, s97, v4
    v_add_u32 v7, 14336, v4
    s_mov_b32 s46, 0x0fffffff
    s_mov_b32 s47, 0x0fffffff
    """)
    p2 = []
    for n in range(NB):
        dst = p1 if n == 0 else p2
        if n == 0:
            dst += [['v_cmp_eq_u32 vcc, 28, v5'], ['v_mov_b32 v12, 0x3f803f80'], ['v_cndmask_b32 v12, 0, v12, vcc'], ['v_mov_b32 v13, v12']]
        dst += [[f'v_mov_b64 {v(VB+8*n+r,2)}, v[12:13]'] for r in range(0, 8, 2)]
        if n < NB - 1:
            dst += [G(loadV, n), G(advK)] + [[l] for l in G(loadK, n + 1)]
    p2 += [[l] for l in G(srd, 8, P_WO, D * D * 2)]
    p2 += singles(f"""
    s_lshr_b32 s52, s40, 2
    s_lshl_b32 s53, s41, 2
    s_add_u32 s52, s52, s53
    s_and_b32 s53, s40, 3                  ; cg4
    v_lshrrev_b32 v8, 4, v1
    v_and_b32 v9, 15, v1
    v_lshlrev_b32 v10, 2, v8
    v_xor_b32 v9, v9, v10
    v_lshlrev_b32 v9, 4, v9
    v_mul_u32_u24 v8, 896, v8
    v_add_u32 v8, v8, v9
    s_lshl_b32 s98, s53, 8
    v_add_u32 v8, s98, v8
    s_lshl_b32 s51, s3, 10
    s_mul_i32 s50, s3, 3584
    s_sub_u32 s35, s35, 1
    s_and_b32 s49, s40, 1
    s_cmp_eq_u32 s49, 0
    s_cselect_b32 s43, -1, 0
    s_mov_b32 s42, 0
    s_cselect_b32 s44, 0, -1
    s_mov_b32 s45, 0
    s_lshl_b32 s32, s21, 4
    s_and_b32 s49, s3, 3
    s_lshl_b32 s49, s49, 2
    s_add_u32 s32, s32, s49
    s_add_u32 s32, s32, {F3}
    s_cmp_lt_u32 s23, 28
    s_cselect_b32 s32, s32, {WS_END}
    """)
    allg = p1 + p2
    isld = lambda g: any(l.startswith('buffer_') for l in g) or g[0].startswith(f's_add_u32 s33, s33, {TILEB}')
    setup = [g for g in allg if not isld(g)]
    loads = [g for g in allg if isld(g)]
    return setup, loads

def tail_setup():
    return [[l] for l in lines(f"""
    s_lshl_b32 s36, s24, 14
    s_add_u32 s36, s36, {RED}
    s_lshr_b32 s5, s27, 1
    s_lshl_b32 s5, s5, 15
    s_and_b32 s49, s27, 1
    s_lshl_b32 s49, s49, 11
    s_add_u32 s5, s5, s49
    s_add_u32 s5, s5, s36
    v_lshl_add_u32 v240, v1, 4, s5
    s_lshl_b32 s6, s27, 12
    s_add_u32 s6, s6, s36
    v_lshl_add_u32 v241, v1, 4, s6
    s_or_b32 s7, s27, 1
    s_lshl_b32 s7, s7, 12
    s_add_u32 s7, s7, s36
    s_add_u32 s7, s7, {1024 + 512}
    v_lshl_add_u32 v242, v5, 4, s7
    v_lshlrev_b32 v243, 13, v6
    v_lshl_add_u32 v243, v5, 4, v243
    v_add_u32 v243, {RED + 4096 + 1024 + 512}, v243
    s_and_b32 s36, s27, 1
    s_cmp_eq_u32 s36, 1
    s_cselect_b32 s101, -1, 0
    s_mov_b32 s100, 0
    s_lshr_b32 s4, s27, 1
    s_add_u32 s4, s4, s28
    s_lshl_b32 s4, s4, 15
    s_lshl_b32 s49, s40, 11
    s_add_u32 s4, s4, s49
    s_lshl_b32 s49, s36, 10
    s_add_u32 s4, s4, s49
    s_add_u32 s4, s4, {WS_O}
    s_lshl_b32 s92, s25, 9
    s_add_u32 s92, s92, {F3}
    v_lshl_add_u32 v238, v5, 4, s92
    v_lshlrev_b32 v239, 12, v1
    s_lshl_b32 s93, s25, 18
    s_lshl_b32 s36, s26, 7
    s_add_u32 s93, s93, s36
    s_and_b32 s36, s3, 3
    s_lshl_b32 s36, s36, 5
    s_add_u32 s93, s93, s36
    s_add_u32 s93, s93, {WS_YT}
    """)]

def att_split():
    su, ld = att_pre_groups()
    su = su + tail_setup()
    sc = [g for g in su if g[0].startswith('s_')]
    ve = [g for g in su if not g[0].startswith('s_')]
    return sc, ve, ld

def emit_groups(a, gs):
    for g in gs:
        for l in g: a(l)

def att_zero():
    return [[f'v_mov_b64 {v(OA+r,2)}, 0'] for r in range(0, 32, 2)] + [[f'v_mov_b64 {v(PB+8+r,2)}, 0'] for r in range(0, 8, 2)] + [[f'v_mov_b64 {v(SB+28+r,2)}, 0'] for r in range(0, 4, 2)]

def att_first(a, nout):
    a(f"""
    s_waitcnt vmcnt({nout})
    s_mov_b64 exec, s[42:43]
    v_mov_b32 v{QF+6}, 0
    v_mov_b32 v{QF+7}, 0
    v_mov_b32 v{QF+14}, 0
    v_mov_b32 v{QF+15}, 0
    s_mov_b64 exec, s[44:45]
    v_mov_b32 v{QF+0}, 0
    v_mov_b32 v{QF+1}, 0
    v_mov_b32 v{QF+8}, 0
    v_mov_b32 v{QF+9}, 0
    s_mov_b64 exec, -1
    v_mfma_f32_32x32x16_bf16 {v(SB,16)}, {v(KB,4)}, {v(QF,4)}, 0
    v_mfma_f32_32x32x16_bf16 {v(SB,16)}, {v(KB+4,4)}, {v(QF+4,4)}, {v(SB,16)}
    """)

def ph_att(a):
    a.label('L_att')
    att_first(a, 4*(NB-1))
    a('s_nop 9')
    a.label('L_att2')
    a('v_lshlrev_b32 v2, 4, v1\ns_mov_b32 s37, 0')
    a(f's_cmp_{PRIO_CMP}_u32 s3, 4\ns_cbranch_scc1 A_noprio\ns_setprio 1')
    a.label('A_noprio')
    stamp(a, 6)
    a('.p2align 6')
    def iteration(last):
        vm = [-3]*4 + [-2]*4 + [-1]*4
        nwo = [0]
        def wo():
            r = nwo[0]; nwo[0] += 1
            return [f's_add_u32 m0, s51, {r*8192}', f's_add_u32 s48, s50, {r*28672}', 'buffer_load_dwordx4 v8, s[8:11], s48 offen lds']
        for u in range(2*NB):
            t = u % 2
            kn = ((u + 1) // 2) % NB
            vn = ((u - 1) // 2) % NB
            Sn = SB + 16*((u+1) % 2); Sc = SB + 16*(u % 2)
            Pc = PB + 8*(u % 2); Pp = PB + 8*((u+1) % 2)
            Qn = QF + 8*(1-t); On = OA + 16*(1-t)
            ins = {}
            if u % 2 == 1:
                j = (u - 1) // 2
                t1 = Asm(); loadV(t1, (j - 1) % NB); t2 = Asm(); advK(t2); t3 = Asm(); loadK(t3, j % NB)
                if not last:
                    a(f's_waitcnt vmcnt({4*(NB-2)})')
                    ins = {(0, 1): t1.lines, (1, 1): t2.lines, (2, 1): t3.lines[:1], (3, 1): t3.lines[1:]}
                else:
                    need = max(i for i, x in enumerate(vm) if x == j - 3)
                    a(f's_waitcnt vmcnt({len(vm) - 1 - need})')
                    if j == 0: ins[(0, 1)] = t1.lines
            if last and u >= 1 and 'nowo' not in DBG:
                for g in (1, 3):
                    if nwo[0] < 12: ins[(g, 1)] = wo()
            if last and u == PRIO_U: a('s_setprio 0')
            M = [f'v_mfma_f32_32x32x16_bf16 {v(Sn,16)}, {v(KB+8*kn,4)}, {v(Qn,4)}, 0',
                 f'v_mfma_f32_32x32x16_bf16 {v(Sn,16)}, {v(KB+8*kn+4,4)}, {v(Qn+4,4)}, {v(Sn,16)}',
                 f'v_mfma_f32_32x32x16_bf16 {v(On,16)}, {v(VB+8*vn,4)}, {v(Pp,4)}, {v(On,16)}',
                 f'v_mfma_f32_32x32x16_bf16 {v(On,16)}, {v(VB+8*vn+4,4)}, {v(Pp+4,4)}, {v(On,16)}']
            M = [M[2], M[0], M[1], M[3]]
            if last and u == 2*NB - 1: M[1] = M[2] = None
            for g in range(4):
                if M[g]: a(M[g])
                for e in range(4):
                    a(f'v_exp_f32 v{Sc+4*g+e}, v{Sc+4*g+e}')
                    for l in ins.get((g, e), []):
                        a(l)
                        if l.startswith('buffer_'): vm.append('w' if 'lds' in l else 0)
                    if e in (0, 2):
                        h = e // 2
                        if g > 0: a(f'v_cvt_pk_bf16_f32 v{Pc+2*(g-1)+h}, v{Sc+4*(g-1)+2*h}, v{Sc+4*(g-1)+2*h+1}')
                        else:     a(f'v_cvt_pk_bf16_f32 v{Pp+6+h}, v{Sn+12+2*h}, v{Sn+13+2*h}')
    a.label('A_loop')
    iteration(False)
    a(f"""
    s_add_u32 s37, s37, 1
    s_cmp_eq_u32 s37, s35
    s_cbranch_scc1 A_last
    s_cmp_lg_u32 s37, 1
    s_cbranch_scc1 A_loop
    s_cmp_lt_u32 s3, 4
    s_cbranch_scc1 A_loop
    """)
    signal(a, 32, 9, 10)
    a('s_branch A_loop')
    a.label('A_last')
    a(f's_cmp_eq_u32 s32, {WS_END}\ns_cbranch_scc1 A_l2\ns_cmp_lt_u32 s3, 4\ns_cbranch_scc1 A_l1')
    a('buffer_load_dwordx4 v[196:199], v238, s[16:19], 0 offen sc1')
    a.label('A_l1')
    gwait(a, 4, 8, 9)
    a.label('A_l2')
    iteration(True)
    a.label('A_exit')
    a('s_setprio 0')
    stamp(a, 7)
    a(f'v_cvt_pk_bf16_f32 v{PB+14}, v{SB+28}, v{SB+29}')
    a(f'v_cvt_pk_bf16_f32 v{PB+15}, v{SB+30}, v{SB+31}')
    a(f'v_mfma_f32_32x32x16_bf16 {v(OA+16,16)}, {v(VB+8*(NB-1),4)}, {v(PB+8,4)}, {v(OA+16,16)}')
    a(f'v_mfma_f32_32x32x16_bf16 {v(OA+16,16)}, {v(VB+8*(NB-1)+4,4)}, {v(PB+12,4)}, {v(OA+16,16)}')
    a('s_mov_b32 s94, 0')
    a.label('A_red')
    for own in range(4):
        for q in range(2):
            a(f'ds_write_b128 v240, {v(OA + 8*own + 4*q, 4)} offset:{own*4096 + q*1024}')
    a('s_cmp_ge_u32 s23, 28\ns_cbranch_scc1 A_ny\ns_cmp_lt_u32 s3, 4\ns_cbranch_scc1 A_ny\ns_cmp_lg_u32 s94, 0\ns_cbranch_scc1 A_ny')
    for i in range(4): a(f'v_xor_b32 v{196+i}, s20, v{196+i}')
    a('v_or3_b32 v196, v196, v197, v198\nv_or_b32 v196, v196, v199\nv_cmp_ne_u32 vcc, 0, v196')
    a('s_add_u32 s92, s93, 16\ns_nop 3\ns_cbranch_vccz A_y')
    poll(a, 'PL_f3', 238, 196, x4=True)
    a.label('A_y')
    a('buffer_load_dwordx4 v[196:199], v239, s[16:19], s93 offen')
    a('buffer_load_dwordx4 v[212:215], v239, s[16:19], s92 offen')
    a.label('A_ny')
    a('s_waitcnt lgkmcnt(0)\ns_barrier')
    R = 64
    so = lambda src: (src >> 1) * 32768 + (src & 1) * 2048
    for src in range(4):
        a(f'ds_read_b32 v{12+src}, v242 offset:{so(src)}')
    for src in range(4):
        for q in range(2):
            a(f'ds_read_b128 {v(R + 8*src + 4*q, 4)}, v241 offset:{so(src) + q*1024}')
    a(f"""
    s_waitcnt lgkmcnt(8)
    v_add_f32 v12, v12, v13
    v_add_f32 v14, v14, v15
    v_add_f32 v12, v12, v14
    v_rcp_f32 v12, v12
    s_waitcnt lgkmcnt(0)
    """)
    a('v_cndmask_b32 v13, v12, 0, s[100:101]')
    for r in range(8):
        a(f'v_add_f32 v{R+r}, v{R+r}, v{R+8+r}')
        a(f'v_add_f32 v{R+16+r}, v{R+16+r}, v{R+24+r}')
    for r in range(8): a(f'v_add_f32 v{R+r}, v{R+r}, v{R+16+r}')
    for r in range(8): a(f'v_mul_f32 v{R+r}, v{R+r}, v{12 if r < 4 else 13}')
    for r in range(4): a(f'v_cvt_pk_bf16_f32 v{R+8+r}, v{R+2*r}, v{R+2*r+1}')
    a(f'buffer_store_dwordx4 {v(R+8,4)}, v2, s[16:19], s4 offen sc1')
    stamp(a, 8)
    for qg in range(2):
        for src in range(4):
            a(f'ds_read_b32 v{80+4*qg+src}, v243 offset:{qg*16384 + so(src)}')
    a(f"""
    s_mov_b32 s36, {f32bits(2.0**-30)}
    s_mov_b32 s37, {f32bits(2.0**40)}
    s_waitcnt lgkmcnt(0)
    v_add_f32 v80, v80, v81
    v_add_f32 v82, v82, v83
    v_add_f32 v84, v84, v85
    v_add_f32 v86, v86, v87
    v_add_f32 v80, v80, v82
    v_add_f32 v84, v84, v86
    v_cmp_nle_f32 vcc, s36, v80
    v_cmp_nge_f32 s[42:43], s37, v80
    v_cmp_nle_f32 s[44:45], s36, v84
    v_cmp_nge_f32 s[60:61], s37, v84
    s_or_b64 s[42:43], s[42:43], vcc
    s_or_b64 s[44:45], s[44:45], s[60:61]
    s_or_b64 s[42:43], s[42:43], s[44:45]
    s_cbranch_scc1 A_slow
    """)
    a.label('A_done')

def ph_slow(a):
    MX = 192
    a.label('A_slow')
    a(f"""
    s_cmp_lg_u32 s94, 0
    s_cbranch_scc1 A_done
    s_waitcnt vmcnt(0)
    s_barrier
    v_mov_b32 v{MX}, 0xff800000
    v_mov_b32 v{MX+1}, 0xff800000
    """)
    for r in range(0, 32, 2): a(f'v_mov_b64 {v(OA+r,2)}, 0')
    a.label('AS_pass')
    a('s_mov_b32 s37, 0')
    a.label('AS_tile')
    loadK(a, 0); loadV(a, 0); advK(a)
    a('s_waitcnt vmcnt(0)')
    for t in range(2):
        Sx = SB + 16*t
        a(f'v_mfma_f32_32x32x16_bf16 {v(Sx,16)}, {v(KB,4)}, {v(QF+8*t,4)}, 0')
        a(f'v_mfma_f32_32x32x16_bf16 {v(Sx,16)}, {v(KB+4,4)}, {v(QF+8*t+4,4)}, {v(Sx,16)}')
    a('s_nop 15\ns_cmp_lg_u32 s94, 0\ns_cbranch_scc1 AS_p1')
    for t in range(2):
        for r in range(0, 16, 2): a(f'v_max3_f32 v{MX+t}, v{SB+16*t+r}, v{SB+16*t+r+1}, v{MX+t}')
    a('s_branch AS_next')
    a.label('AS_p1')
    for t in range(2):
        Sx = SB + 16*t; Px = PB + 8*t
        for r in range(16): a(f'v_sub_f32 v{Sx+r}, v{Sx+r}, v{MX+t}')
        for r in range(16): a(f'v_exp_f32 v{Sx+r}, v{Sx+r}')
        for r in range(8): a(f'v_cvt_pk_bf16_f32 v{Px+r}, v{Sx+2*r}, v{Sx+2*r+1}')
        a(f'v_mfma_f32_32x32x16_bf16 {v(OA+16*t,16)}, {v(VB,4)}, {v(Px,4)}, {v(OA+16*t,16)}')
        a(f'v_mfma_f32_32x32x16_bf16 {v(OA+16*t,16)}, {v(VB+4,4)}, {v(Px+4,4)}, {v(OA+16*t,16)}')
    a.label('AS_next')
    a(f"""
    s_nop 15
    s_add_u32 s37, s37, 1
    s_cmp_lt_u32 s37, s34
    s_cbranch_scc1 AS_tile
    s_cmp_lg_u32 s94, 0
    s_cbranch_scc1 A_red
    s_lshl_b32 s36, s24, 11
    s_add_u32 s36, s36, {RED}
    s_lshl_b32 s38, s27, 9
    s_add_u32 s38, s38, s36
    v_lshl_add_u32 v9, v1, 3, s38
    ds_write_b64 v9, {v(MX,2)}
    v_lshl_add_u32 v9, v5, 3, s36
    s_waitcnt lgkmcnt(0)
    s_barrier
    """)
    for k in range(8): a(f'ds_read_b64 {v(SB+2*k,2)}, v9 offset:{256*k}')
    a('s_waitcnt lgkmcnt(0)')
    for t in range(2):
        for k in range(0, 8, 2): a(f'v_max3_f32 v{MX+t}, v{SB+2*k+t}, v{SB+2*k+2+t}, v{MX+t}')
    a('s_mov_b32 s94, 1\ns_barrier\ns_branch AS_pass')

L_RDY = 118784
def y_piece(a):
    a(f"""
    s_cmp_ge_u32 s23, 28
    s_cbranch_scc1 P_noy
    s_lshl_b32 s36, s29, 11
    s_add_u32 s36, s36, {YL}
    v_add_u32 v203, s36, v2
    ds_write_b128 v203, v[196:199]
    ds_write_b128 v203, v[212:215] offset:1024
    v_lshrrev_b32 v17, 4, v1
    v_and_b32 v18, 3, v1
    v_lshl_add_u32 v17, v17, 2, v18
    v_and_b32 v18, 7, v17
    v_lshrrev_b32 v17, 3, v17
    v_bfe_u32 v19, v1, 2, 2
    v_lshl_add_u32 v18, v18, 3, v19
    v_lshlrev_b32 v18, 4, v18
    v_lshl_add_u32 v18, v17, 3, v18
    v_add_u32 v204, s36, v18
    s_waitcnt lgkmcnt(0)
    ds_read_b64_tr_b16 v[208:209], v204
    ds_read_b64_tr_b16 v[210:211], v204 offset:64
    ds_read_b64_tr_b16 v[216:217], v204 offset:1024
    ds_read_b64_tr_b16 v[218:219], v204 offset:1088
    v_and_b32 v19, 3, v1
    v_lshl_add_u32 v19, v6, 2, v19
    s_lshl_b32 s36, s26, 6
    s_lshl_b32 s37, s29, 4
    s_add_u32 s36, s36, s37
    v_add_u32 v19, s36, v19
    v_mul_u32_u24 v19, 1792, v19
    v_bfe_u32 v17, v1, 2, 3
    v_lshl_add_u32 v205, v17, 4, v19
    s_lshl_b32 s93, s25, 7
    s_add_u32 s93, s93, 896
    s_add_u32 s92, s93, {8*1792}
    s_waitcnt lgkmcnt(0)
    buffer_store_dwordx4 v[208:211], v205, s[12:15], s93 offen {YMOD}
    buffer_store_dwordx4 v[216:219], v205, s[12:15], s92 offen {YMOD}
    """)
    a.label('P_noy')

def ph_out(a):
    a(f"""
    s_and_b32 s29, s3, 3
    v_mov_b32 v15, {L_RDY}
    s_cmp_ge_u32 s3, 4
    s_cbranch_scc1 P_fetch
    ; ---------------- waves 0..3
    s_lshl_b32 s36, s41, {F2S+4}
    s_lshr_b32 s37, s40, 2
    s_lshl_b32 s37, s37, {F2S}
    s_add_u32 s36, s36, s37
    s_and_b32 s37, s40, 3
    s_lshl_b32 s37, s37, 2
    s_add_u32 s36, s36, s37
    s_add_u32 s36, s36, {F2}
    v_lshl_add_u32 v28, v1, {F2S+2}, s36
    v_mov_b32 v29, s20
    v_bfe_u32 v7, v1, 2, 2
    v_xor_b32 v12, s29, v7
    v_lshlrev_b32 v12, 6, v12
    v_bfe_u32 v9, v1, 4, 1
    v_lshl_add_u32 v12, v9, 5, v12
    v_and_b32 v9, 3, v1
    v_lshl_add_u32 v12, v9, 3, v12
    v_lshl_add_u32 v9, v6, 2, v7
    v_lshl_add_u32 v12, v9, 8, v12
    v_add_u32 v13, {224*256}, v12          ; heads 8..15
    s_waitcnt vmcnt(0)
    s_barrier
    """)
    ACC = 224; WF = 32; OF = 160
    def wread(hd):
        for f in range(2):
            for e in range(2):
                row = 28*hd + 16*f + 8*e - (224 if hd >= 8 else 0)
                a(f'ds_read_b64_tr_b16 {v(WF + 8*hd + 4*f + 2*e, 2)}, v{13 if hd >= 8 else 12} offset:{row*256}')
    a('s_lshl_b64 exec, 1, s3\nbuffer_store_dword v29, v28, s[16:19], 0 offen sc1\ns_mov_b64 exec, -1')
    stamp(a, 9)
    for hd in range(13): wread(hd)
    a(f"""
    v_add_u32 v10, {OL}, v2
    s_lshl_b32 s36, s52, 5
    v_add_u32 v11, s36, v5
    v_mul_u32_u24 v11, 1792, v11
    v_lshl_add_u32 v11, v6, 4, v11
    s_lshl_b32 s30, s53, 2
    s_add_u32 s30, s30, s29
    s_lshl_b32 s32, s30, 6
    """)
    a('s_cmp_ge_u32 s30, 14\ns_cbranch_scc1 P_fin')
    stamp(a, 10)
    a(f'v_lshl_add_u32 v14, v1, 2, v15')
    def need(g):
        a('s_waitcnt lgkmcnt(0)')
        a.label(f'P_n{g}')
        a(f'v_cmp_eq_u32 vcc, s20, v28\ns_nop 1\ns_bitcmp1_b32 vcc_lo, {g}\ns_cbranch_scc0 P_r{g}')
        a.label(f'P_g{g}')
    def mf(g):
        for n in range(8):
            c = '0' if (g == ORD[0] and n == 0) else v(ACC, 16)
            a(f'v_mfma_f32_32x32x16_bf16 {v(ACC,16)}, {v(WF + 32*g + 4*n,4)}, {v(OF + 32*(ORD.index(g)%2) + 4*n,4)}, {c}')
    ORD = [0, 1, 2, 3]
    a('ds_read_b32 v28, v14')
    for i, g in enumerate(ORD):
        need(g)
        for n in range(8): a(f'ds_read_b128 {v(OF + 32*(i%2) + 4*n, 4)}, v10 offset:{g*8192 + n*1024}')
        if g == 3:
            for hd in range(13, 16): wread(hd)
        if i < 3: a('ds_read_b32 v28, v14')
        if i > 0: mf(ORD[i-1])
    a('s_waitcnt lgkmcnt(0)')
    mf(ORD[3])
    a.label('P_epi')
    stamp(a, 11)
    T = 40
    for r in range(8): a(f'v_cvt_pk_bf16_f32 v{T+r}, v{ACC+2*r}, v{ACC+2*r+1}')
    for q in range(2):
        a(f'v_permlane32_swap_b32 v{T+4*q}, v{T+4*q+2}')
        a(f'v_permlane32_swap_b32 v{T+4*q+1}, v{T+4*q+3}')
    a(f'buffer_store_dwordx4 {v(T,4)}, v11, s[12:15], s32 offen {OMOD}')
    a(f'buffer_store_dwordx4 {v(T+4,4)}, v11, s[12:15], s32 offen offset:32 {OMOD}')
    a('s_branch P_fin')
    for g in range(4):
        a.label(f'P_r{g}')
        a(f'ds_read_b32 v28, v14\ns_add_u32 s95, s95, 1\ns_cmp_lt_u32 s95, 0x2000000\ns_waitcnt lgkmcnt(0)\ns_cbranch_scc1 P_n{g}\ns_branch P_g{g}')
    a.label('P_fetch')
    a(f"""
    s_lshl_b32 s37, s52, {F2S+2}
    s_lshl_b32 s38, s29, {F2S}
    s_add_u32 s37, s37, s38
    s_add_u32 s37, s37, {F2}
    v_lshl_add_u32 v16, v1, 2, s37
    s_mov_b64 exec, 0xf
    buffer_load_dword v17, v16, s[16:19], 0 offen sc1
    s_mov_b64 exec, -1
    s_lshl_b32 s38, s52, 15
    s_lshl_b32 s39, s29, 13
    s_add_u32 s38, s38, s39
    s_add_u32 s38, s38, {WS_O}
    s_add_u32 s39, s39, {OL}
    s_lshl_b32 s37, s29, 2
    v_add_u32 v15, s37, v15
    v_mov_b32 v14, s20
    s_waitcnt vmcnt(1)
    s_barrier
    s_waitcnt vmcnt(0)
    v_cmp_ne_u32 s[44:45], s20, v17
    """)
    stamp(a, 9)
    a(f's_cmp_lg_u32 s3, 7\ns_cbranch_scc1 P_nowo\ns_mov_b32 s48, {96*1024}\ns_mov_b32 s50, {96*3584}')
    a.label('P_wo')
    a(f"""
    s_mov_b32 m0, s48
    s_add_u32 s48, s48, 1024
    buffer_load_dwordx4 v8, s[8:11], s50 offen lds
    s_add_u32 s50, s50, 3584
    s_cmp_le_u32 s50, {D*D*2}
    s_cbranch_scc1 P_wo
    """)
    a.label('P_nowo')
    if PIPE_POLL:
        a('s_mov_b64 exec, 0xf\ns_mov_b32 s62, 0')
        for k in range(PIPE_POLL - 1):
            a(f'buffer_load_dword v{20+k}, v16, s[16:19], 0 offen sc1\ns_sleep {F2_SLEEP}')
        a.label('PL_f2')
        for k in range(PIPE_POLL):
            a(f'buffer_load_dword v{20+(k+PIPE_POLL-1)%PIPE_POLL}, v16, s[16:19], 0 offen sc1')
            a(f's_waitcnt vmcnt({PIPE_POLL-1})')
            a(f'v_cmp_ne_u32 vcc, s20, v{20+k}\ns_nop 4\ns_cbranch_vccz PL_f2_ok\ns_sleep {F2_SLEEP}')
        a(f's_add_u32 s62, s62, 1\ns_cmp_lt_u32 s62, {POLL_LIMIT}\ns_cbranch_scc1 PL_f2')
        a.label('PL_f2_ok')
        a('s_mov_b64 exec, -1')
    else:
        a('s_and_b32 s44, s44, 15\ns_cbranch_scc0 PL_f2_ok')
        poll(a, 'PL_f2', 16, 17, mask=0xf, sleep=F2_SLEEP)
    stamp(a, 10)
    for hlf in range(2):
        a(f's_add_u32 m0, s39, {hlf*4096}')
        if hlf: a('s_add_u32 s38, s38, 4096')
        else: a('s_nop 0')
        for n in range(4): a(f'buffer_load_dwordx4 v2, s[16:19], s38 offen offset:{n*1024} sc1 lds')
    a('s_waitcnt vmcnt(0)\nds_write_b32 v15, v14')
    stamp(a, 11)
    y_piece(a)
    a('s_cmp_lg_u32 s2, 240\ns_cbranch_scc1 P_fin\ns_cmp_lg_u32 s3, 4\ns_cbranch_scc1 P_fin')
    a(f'v_lshlrev_b32 v16, {F2S}, v5\nv_add_u32 v16, {F2 + (56 << (F2S+2))}, v16')
    poll(a, 'PL_ep', 16, 20, x4=True, sleep=2)
    a(f's_mov_b32 s36, {EPOCH}')
    signal(a, 36, 16, 17)
    a.label('P_fin')

def kernel(a):
    if STAMPS or DIAG >= 0:
        a('v_mov_b32 v254, 0')
        stamp(a, 0)
    prologue(a)
    ph_front(a)
    ph_att(a)
    ph_out(a)
    if DIAG >= 0:
        a('s_waitcnt vmcnt(0)')
        stamp(a, 12)
        a(f"""
        s_cmp_lg_u32 s3, {int(os.environ.get('DIAGW', 0))}
        s_cbranch_scc1 L_end
        s_cmp_ge_u32 s23, 28
        s_cbranch_scc1 L_end
        v_readlane_b32 s36, v254, 0
        v_readlane_b32 s37, v254, {DIAG}
        s_memrealtime s[90:91]
        s_waitcnt lgkmcnt(0)
        s_sub_u32 s36, s37, s36
        s_min_u32 s36, s36, 10000
        s_mov_b32 s37, s90
        """)
        a.label('D_spin')
        a("""
        s_memrealtime s[90:91]
        s_waitcnt lgkmcnt(0)
        s_sub_u32 s38, s90, s37
        s_cmp_lt_u32 s38, s36
        s_cbranch_scc1 D_spin
        """)
    if STAMPS:
        a('s_waitcnt vmcnt(0)')
        stamp(a, 12)
        a(f"""
        s_mov_b32 s18, {WS_STAMP + (1<<20)}
        s_lshl_b32 s36, s2, 3
        s_add_u32 s36, s36, s3
        s_lshl_b32 s36, s36, 6
        s_add_u32 s36, s36, {WS_STAMP}
        v_lshl_add_u32 v2, v1, 2, s36
        s_mov_b64 exec, 0xffff
        buffer_store_dword v254, v2, s[16:19], 0 offen
        s_cmp_lg_u32 s2, 100
        s_cbranch_scc1 L_end
        s_cmp_lg_u32 s3, 0
        s_cbranch_scc1 L_end
        v_readfirstlane_b32 s36, v254
        v_lshlrev_b32 v2, 2, v1
        v_subrev_u32 v254, s36, v254
        s_mov_b64 exec, 0x7ffe
        """)
        srd(a, 56, P_DBG, 256)
        a('buffer_store_dword v254, v2, s[56:59], 0 offen')
    a.label('L_end')
    a('s_endpgm')
    ph_slow(a)

def build(path):
    hdr = open(f'cdna_kernels/{NAME}.s.ref').read().split('\n')
    out = [l for l in hdr if l.startswith(';') and '@launch' not in l][:16]
    out.append(f'; @launch grid=(256,1,1) block=(512,1,1) lds={LDS_TOTAL}')
    out.append('.amdgcn_target "amdgcn-amd-amdhsa--gfx950"')
    out.append('.text')
    label = NAME + '_kernel'
    a = Asm(); kernel(a)
    txt = '\n'.join(out) + f'\n.globl {label}\n.p2align 8\n.type {label},@function\n{label}:\n' + a.finalize()
    txt += f'''.section .rodata,"a"
.p2align 6
.amdhsa_kernel {label}
  .amdhsa_next_free_vgpr 256
  .amdhsa_next_free_sgpr 102
  .amdhsa_accum_offset 256
  .amdhsa_group_segment_fixed_size 0
  .amdhsa_kernarg_size 104
  .amdhsa_user_sgpr_count 2
  .amdhsa_user_sgpr_kernarg_segment_ptr 1
  .amdhsa_system_sgpr_workgroup_id_x 1
.end_amdhsa_kernel
'''
    open(path, 'w').write(txt)

if __name__ == '__main__':
    if '--stamps' in sys.argv: STAMPS = True; sys.argv.remove('--stamps')
    path = sys.argv[1] if len(sys.argv) > 1 else f'cdna_kernels/{NAME}.s'
    build(path)
    import subprocess
    subprocess.run(['clang', '-x', 'assembler', '-target', 'amdgcn-amd-amdhsa', '-mcpu=gfx950', '-c', path, '-o', '_sz.o'], check=True)
    hdr = subprocess.run(['llvm-objdump', '-h', '_sz.o'], capture_output=True, text=True).stdout
    size = int([l for l in hdr.splitlines() if '.text' in l][0].split()[2], 16)
    CODE_KB[0] = size // 1024 - 1
    _gw[0] = 0
    build(path)
    print('code bytes', size)
```

```python
import sys, math, struct, os, re
DBG = os.environ.get('DBG', '')
sys.path.insert(0, 'work')
from asmgen import *

STAMPS = False
NAME = 'concat_heads__mha_block__ssm_conv_s4d__prompt'
S = 2048; D = 448; H = 16; DH = 28
TILEB = 56 * 512
FS = int(os.environ.get('FS', 4))
F0 = 0; F1 = 32768; F2 = 65536; EPOCH = 98304; F3 = 102400
WS_Q = 131072
WS_K = WS_Q + 64 * TILEB
WS_V = WS_K + 64 * TILEB
WS_O = WS_V + 64 * TILEB
WS_UT = WS_O + 64 * 32768
WS_YT = WS_UT + 112 * 16384
WS_END = WS_YT + 224 * 8192
WS_STAMP = 16 << 20
LDS_TOTAL = 163840
POLL_LIMIT = 1000000
PRIO_IT = 3
REQ_POS = int(os.environ.get('REQ_POS', 1))
D_FROM = int(os.environ.get('D_FROM', 11))
LORD = int(os.environ.get('LORD', 0))
D2J = int(os.environ.get('D2J', 99))
DEPTH2 = int(os.environ.get('DEPTH2', 6))
PRE_C = float(os.environ.get('PRE_C', 1.6))
B_FIRST = int(os.environ.get('B_FIRST', 1))
GS = eval(os.environ.get('GS', '(1,2,3,4,5,6,7,8,9)'))
BW = eval(os.environ.get('BW', '[0,4,3,3,1,3,3,2,2,2,2,2,2,3]'))
PRIO_U = int(os.environ.get('PRIO_U', 4))
SIG_CUT = float(os.environ.get('SIG_CUT', 0.4))
LOOK_POS = int(os.environ.get('LOOK_POS', 1))
F2S = int(os.environ.get('F2S', 7))
PIPE_POLL = int(os.environ.get('PIPE_POLL', 0))
F2_SLEEP = int(os.environ.get('F2_SLEEP', 1))
AMAP = int(os.environ.get('AMAP', 0))
LITE_SLEEP = int(os.environ.get('LITE_SLEEP', 10))
B_PRE = int(os.environ.get('B_PRE', 10))
B_LAST = int(os.environ.get('B_LAST', 13))
D_PER = int(os.environ.get('D_PER', 0))
PKMUL = int(os.environ.get('PKMUL', 0))
NBP = int(os.environ.get('NBP', 7))
KM_PTS = eval(os.environ.get('KM_PTS', '(7, 13)'))
B_PRIO = int(os.environ.get('B_PRIO', 0))
KM_SPLIT = int(os.environ.get('KM_SPLIT', 10))
A_SLEEP0 = int(os.environ.get('A_SLEEP0', 12))
KM_J = int(os.environ.get('KM_J', 1))
BPRE_J = int(os.environ.get('BPRE_J', 0))
A_SLEEP = int(os.environ.get('A_SLEEP', 1))
FILL_MAX = int(os.environ.get('FILL_MAX', 16))
YMOD = os.environ.get('YMOD', 'nt')
OMOD = os.environ.get('OMOD', 'nt')
SPREAD = int(os.environ.get('SPREAD', 1))
CODE_KB = [1]
CODE_PF = int(os.environ.get('CODE_PF', 1))
NA = int(os.environ.get('NA', 16))
PRIO_LEFT = int(os.environ.get('PRIO_LEFT', 1))
CONV_PRIO = int(os.environ.get('CONV_PRIO', 0))
PRIO_CMP = 'lt'
SCHED_C = [3, 3, 3, 1, 1]
U_ISS = int(os.environ.get('U_ISS', -1)); U_TR = int(os.environ.get('U_TR', 4)); F0_SIG = int(os.environ.get('F0_SIG', 7))
F0_TRY = (7, 10)
F0_LAG = 2
PRE_ST = int(os.environ.get('PRE_ST', 2))
CONV_T0 = int(os.environ.get('CONV_T0', 22))
XMOD = os.environ.get('XMOD', '')
F1_SLEEP = 8
KG_CUT = float(os.environ.get('KG_CUT', 0.4))
LD_PER = int(os.environ.get('LD_PER', 50))

def f32bits(x): return struct.unpack('<I', struct.pack('<f', x))[0]
QSCALE = math.log2(math.e) / math.sqrt(DH)
LOG2E = math.log2(math.e)
P_X, P_W, P_WO, P_U, P_LA, P_AI, P_CR, P_CI, P_DT, P_DS, P_OUT, P_DBG, P_WS = [64 + 2*i for i in range(13)]

DIAG = int(os.environ.get('DIAG', -1))
def stamp(a, n):
    if STAMPS or (DIAG >= 0 and n in (0, DIAG)):
        a('s_memrealtime s[90:91]')
        a('s_waitcnt lgkmcnt(0)')
        a(f'v_writelane_b32 v254, s90, {n}')
        if n in (6, 7) and os.environ.get('CYC'):
            a('s_memtime s[90:91]')
            a('s_waitcnt lgkmcnt(0)')
            a(f'v_writelane_b32 v254, s90, {n+7}')

def srd(a, base_s, ptr_s, nbytes):
    a(f's_mov_b32 s{base_s}, s{ptr_s}')
    a(f's_and_b32 s{base_s+1}, s{ptr_s+1}, 0xffff')
    a(f's_mov_b32 s{base_s+2}, {nbytes}')
    a(f's_mov_b32 s{base_s+3}, 0x20000')

def poll(a, name, voff, tmp, mask=-1, x4=False, sleep=4):
    if mask != -1:
        a(f's_mov_b32 exec_lo, {mask & 0xffffffff}')
        a(f's_mov_b32 exec_hi, {mask >> 32}')
    a('s_mov_b32 s62, 0')
    a.label(name)
    if x4:
        a(f'buffer_load_dwordx4 {v(tmp,4)}, v{voff}, s[16:19], 0 offen sc1')
        a('s_waitcnt vmcnt(0)')
        for i in range(4): a(f'v_xor_b32 v{tmp+i}, s20, v{tmp+i}')
        a(f'v_or3_b32 v{tmp}, v{tmp}, v{tmp+1}, v{tmp+2}')
        a(f'v_or_b32 v{tmp}, v{tmp}, v{tmp+3}')
        a(f'v_cmp_ne_u32 vcc, 0, v{tmp}')
    else:
        a(f'buffer_load_dword v{tmp}, v{voff}, s[16:19], 0 offen sc1')
        a('s_waitcnt vmcnt(0)')
        a(f'v_cmp_ne_u32 vcc, s20, v{tmp}')
    a('s_nop 4')
    a(f's_cbranch_vccz {name}_ok')
    a(f's_sleep {sleep}')
    a('s_add_u32 s62, s62, 1')
    a(f's_cmp_lt_u32 s62, {POLL_LIMIT}')
    a(f's_cbranch_scc1 {name}')
    a.label(name + '_ok')
    a('s_mov_b64 exec, -1')

def signal(a, soff, vt0, vt1):
    a(f'v_mov_b32 v{vt0}, s{soff}')
    a(f'v_mov_b32 v{vt1}, s20')
    a('s_mov_b64 exec, 1')
    a(f'buffer_store_dword v{vt1}, v{vt0}, s[16:19], 0 offen sc1')
    a('s_mov_b64 exec, -1')


CV, C1 = 250, 251
def garrive(a, off):
    a('s_mov_b64 exec, 1')
    a(f'ds_add_u32 v{CV}, v{C1} offset:{off}')
    a('s_mov_b64 exec, -1')
_gw = [0]
def gwait(a, off, target, tmp):
    _gw[0] += 1; name = f'GW{_gw[0]}'
    a.label(name)
    a(f'ds_read_b32 v{tmp}, v{CV} offset:{off}')
    a('s_waitcnt lgkmcnt(0)')
    a(f'v_readfirstlane_b32 s62, v{tmp}')
    a(f's_cmp_ge_u32 s62, {target}')
    a(f's_cbranch_scc1 {name}_ok')
    a('s_sleep 1')
    a('s_add_u32 s95, s95, 1')
    a('s_cmp_lt_u32 s95, 0x2000000')
    a(f's_cbranch_scc1 {name}')
    a.label(name + '_ok')

def prologue(a):
    a(f"""
    s_cmp_ge_u32 s2, 256
    s_cbranch_scc1 L_end
    s_load_dwordx16 s[64:79], s[0:1], 0
    s_load_dwordx8 s[80:87], s[0:1], 64
    s_load_dwordx2 s[88:89], s[0:1], 96
    v_and_b32 v1, 63, v0
    v_lshrrev_b32 v2, 6, v0
    v_readfirstlane_b32 s3, v2
    s_and_b32 s22, s2, 7
    s_lshr_b32 s23, s2, 3
    """)
    if CODE_PF:
        a(f"""
        s_getpc_b64 s[96:97]
        s_and_b32 s96, s96, 0xffffff00
        s_and_b32 s98, s23, 3
        s_lshl_b32 s98, s98, 3
        s_add_u32 s98, s98, s3
        s_min_u32 s98, s98, {CODE_KB[0]}
        s_lshl_b32 s98, s98, 10
        v_lshl_add_u32 v2, v1, 4, s98
        global_load_dwordx4 v[192:195], v2, s[96:97]
        """)
    a(f"""
    s_and_b32 s27, s22, 1                  ; odd
    s_lshr_b32 s24, s23, 3                 ; cl' (0..3)
    s_lshl_b32 s25, s27, 2
    s_add_u32 s25, s25, s24
    s_and_b32 s26, s23, 7                  ; rbl
    s_lshl_b32 s28, s26, 1
    s_add_u32 s28, s28, s27
    s_cmp_eq_u32 s24, 3
    s_cselect_b32 s25, 3, s25
    s_cselect_b32 s26, s28, s26
    s_lshl_b32 s24, s24, 1
    s_add_u32 s24, s24, s26
    s_lshr_b32 s28, s22, 1
    s_lshl_b32 s28, s28, 3
    s_add_u32 s26, s26, s28                ; rb
    s_mul_i32 s21, s22, 28
    s_add_u32 s21, s21, s23
    s_cmp_lt_u32 s23, 28
    s_cbranch_scc1 L_full
    s_waitcnt lgkmcnt(0)
    """)
    srd(a, 4, P_W, D * 3 * D * 2)
    a(f"""
    s_sub_u32 s36, s23, 28
    s_lshl_b32 s36, s36, 3
    s_add_u32 s36, s36, s3
    s_mul_i32 s36, s36, {14*2688}
    v_lshrrev_b32 v2, 3, v1
    v_min_u32 v4, 5, v2
    v_mul_u32_u24 v2, 2688, v2
    v_mul_u32_u24 v4, 2688, v4
    v_and_b32 v3, 7, v1
    v_lshl_add_u32 v2, v3, 4, v2
    v_lshl_add_u32 v4, v3, 4, v4
    s_add_u32 s37, s36, {TA*896 + 384}
    buffer_load_dwordx4 v[64:67], v2, s[4:7], s37 offen
    s_add_u32 s37, s37, {8*2688}
    buffer_load_dwordx4 v[68:71], v4, s[4:7], s37 offen
    v_lshrrev_b32 v2, 5, v1
    v_mul_u32_u24 v2, 2688, v2
    v_and_b32 v3, 31, v1
    v_lshl_add_u32 v2, v3, 4, v2
    s_mul_i32 s37, s27, 384
    s_add_u32 s36, s36, s37
    """)
    seq = {0: [(TB, i) for i in range(7)] + [(TC, i) for i in range(7)], 1: [(TC, i) for i in range(7)] + [(TB, i) for i in range(7)],
           2: [(t, i) for i in range(7) for t in (TB, TC)], 3: [(TC, i) for i in range(7)]}[LORD]
    for n, (ty, i) in enumerate(seq):
        a(f's_add_u32 s37, s36, {ty*896 + 2*i*2688}')
        a(f'buffer_load_dwordx4 {v(72+4*n,4)}, v2, s[4:7], s37 offen')
    srd(a, 16, P_WS, WS_END)
    srd(a, 12, P_OUT, S * 2 * D * 2)
    a(f"""
    s_mov_b32 s36, {EPOCH}
    buffer_load_dword v253, off, s[16:19], s36 sc1
    s_waitcnt vmcnt(0)
    v_readfirstlane_b32 s20, v253
    s_add_u32 s20, s20, 1
    {'s_endpgm' if 'gemmonly' in DBG else ''}
    """)
    a('s_mov_b32 s95, 0')
    att_poll_addr(a, 176)
    su, _ = att_pre_groups()
    emit_groups(a, su + tail_setup() + att_zero())
    a(f"""
    s_sub_u32 s36, s23, 28
    s_lshl_b32 s36, s36, 3
    s_add_u32 s36, s36, s3
    s_mul_i32 s36, s36, 12544
    v_lshl_add_u32 v2, v1, 4, s36
    """)
    for i in range(13):
        a(f's_mov_b32 s36, {1024*i}')
        a(f'buffer_load_dwordx4 {v(184+4*i,4)}, v2, s[8:11], s36 offen')
    a('s_waitcnt vmcnt(0)')
    a('s_cmp_lg_u32 s3, 0\ns_cbranch_scc1 L_lite1')
    poll(a, 'PL_f1a', 176, 180, mask=1 << 63, x4=True, sleep=4)
    poll(a, 'PL_f1b', 176, 180, x4=True, sleep=1)
    a.label('L_lite1')
    a('s_setprio 2')
    a('s_barrier')
    a('s_branch L_pre')
    a.label('L_full')

RING0 = 0; SLOT = 16384; NS = 8; DEPTH = int(os.environ.get('DEPTH', 4)); MAXI = int(os.environ.get('MAXI', 2))
def slot_of(j): return (j + 2) % NS
XYP = 1056; XYCH = 53 * XYP
GP = 8384; GCH = 260 * 16
L_G = 0
L_T2 = 114688; TP = 328; T2CH = 8 * TP * 2
L_U = 131072; UCH = 96 * 80
L_CTL = L_U + 2 * UCH
L_TAB = 147456
L_PART = 49152; PSRC = 1024; POWN = 4096
assert L_CTL + 16 <= L_TAB and 4*GP <= L_PART and 2*XYCH <= L_T2

_PK = [0]
def cmul(o, d, x, e, t):
    if _PK[0]:
        o.append(f'v_pk_mul_f32 {v(t,2)}, {v(x,2)}, {v(e,2)} op_sel:[0,0] op_sel_hi:[1,0]')
        o.append(f'v_pk_fma_f32 {v(d,2)}, {v(x,2)}, {v(e,2)}, {v(t,2)} op_sel:[1,1,0] op_sel_hi:[0,1,1] neg_lo:[1,0,0]')
    else:
        o.append(f'v_mul_f32 v{t}, v{x+1}, v{e+1}')
        o.append(f'v_mul_f32 v{t+1}, v{x}, v{e+1}')
        o.append(f'v_fma_f32 v{d}, v{x}, v{e}, -v{t}')
        o.append(f'v_fma_f32 v{d+1}, v{x+1}, v{e}, v{t+1}')

def lines(txt): return [l.strip() for l in txt.split('\n') if l.strip()]

_KM = {}
PKB = [64, 117]
def _mk():
    pairs_pre = [20, 22, 24, 26, 28, 30, 32, 34, 36, 38, 40, 42, 48, 50, 52, 54]
    for i, r in enumerate(pairs_pre): _KM[r] = 170 + 2*i; _KM[r+1] = 171 + 2*i
    for i, r in enumerate([2, 3, 4, 5, 6, 7, 8, 9]): _KM[r] = 202 + i
    _KM[70] = 48; _KM[71] = 49
    for i, r in enumerate(range(56, 64)): _KM[r] = 40 + i
    for c in range(2):
        for row in range(53): _KM[1000 + 100*c + row] = PKB[c] + row
_mk()
def kmap(l, ch):
    M = _KM
    def one(m): return f'v{M.get(int(m.group(1)), int(m.group(1)))}'
    def rng(m):
        lo = int(m.group(1)); hi = int(m.group(2)); n = M.get(lo, lo); return f'v[{n}:{n+hi-lo}]'
    l = re.sub(r'v\[(\d+):(\d+)\]', rng, l)
    return re.sub(r'\bv(\d+)\b', one, l)

def kgen(ch):
    P = 240 + 4*ch
    _PK[0] = (PKMUL >> ch) & 1
    pre = lines(f"""
    {'s_lshl_b32 s58, s38, 16' if ch == 0 else 's_and_b32 s58, s38, 0xffff0000'}
    v_mov_b32 v4, s58
    v_mul_f32 v4, {f32bits(LOG2E)}, v4
    v_exp_f32 v4, v4
    v_lshlrev_b32 v2, 16, v{P}
    v_lshlrev_b32 v3, 16, v{P+1}
    v_lshlrev_b32 v20, 16, v{P+2}
    v_lshlrev_b32 v21, 16, v{P+3}
    v_cvt_pk_bf16_f32 v4, v4, v4
    v_mul_f32 v2, {f32bits(LOG2E)}, v2
    v_exp_f32 v2, v2
    v_and_b32 v4, 0xffff0000, v4
    v_mul_f32 v3, v3, v4
    v_cvt_pk_bf16_f32 v2, v2, v2
    v_and_b32 v2, 0xffff0000, v2
    v_mul_f32 v2, v2, v4
    v_mul_f32 v2, {f32bits(-LOG2E)}, v2
    v_mul_f32 v3, {f32bits(1/(2*math.pi))}, v3
    v_add_f32 v4, v4, v4
    v_mul_f32 v20, v20, v4
    v_mul_f32 v21, v21, v4
    """)
    E1, E8, E256, E2, E4, E16, E32 = 22, 24, 26, 28, 30, 32, 34
    for (E, p) in ((E1, 1.0), (E8, 8.0), (E256, 256.0)):
        pre += lines(f"""
        v_mul_f32 v6, {f32bits(p)}, v2
        v_mul_f32 v7, {f32bits(p)}, v3
        v_exp_f32 v6, v6
        v_fract_f32 v7, v7
        v_cos_f32 v8, v7
        v_sin_f32 v9, v7
        v_mul_f32 v{E}, v6, v8
        v_mul_f32 v{E+1}, v6, v9
        """)
    cmul(pre, E2, E1, E1, 6); cmul(pre, E16, E8, E8, 8)
    cmul(pre, E4, E2, E2, 6); cmul(pre, E32, E16, E16, 8)
    Y = [48, 50, 52, 54]
    def put(o, row, x, r, neg=False):
        o.append(f'v_cvt_pk_bf16_f32 v{1000+100*ch+row}, v{x}, {"-" if neg else ""}v{x+1}')
    chains = []
    for c in range(4):
        o = []
        cur = {0: None, 1: E8, 2: E16, 3: Y[3]}[c]
        if c == 3: cmul(o, Y[3], E16, E8, 36 + 2*c)
        for step in range(8):
            if cur is None:
                o.append(f'v_mov_b32 v{1000+100*ch+21}, 0x3f80')
                cur = E32; continue
            put(o, 21 + 4*step + c, cur, 44 + c)
            if step < 7: cmul(o, Y[c], cur, E32, 36 + 2*c); cur = Y[c]
        chains.append(o)
    XC, GC, SD, SD2 = 56, 58, 60, 62
    o = []
    put(o, 0, 20, 68, True)
    for step in range(7):
        cmul(o, XC, 20 if step == 0 else XC, E1, 6); put(o, step + 1, XC, 68, True)
    chains.append(o)
    grow = {1: 8, 2: 12, 3: 14, 4: 16, 5: 17, 6: 18, 7: 19, 8: 20}
    G = [58, 10, 12, 58, 58, 58, 58, 58]
    G = [10, 12, 18, 58, 58, 58, 58, 58]
    o = []
    for step in range(8):
        cmul(o, G[step], 20 if step == 0 else G[step-1], E256, 8); put(o, grow[step+1], G[step], 69, True)
    chains.append(o)
    o = [None]*(9 if _PK[0] else 15)
    cmul(o, SD, G[0], E2, 70); put(o, 9, SD, 5, True)
    cmul(o, SD2, G[0], E4, 70); put(o, 10, SD2, 5, True)
    cmul(o, SD, SD2, E2, 70); put(o, 11, SD, 5, True)
    cmul(o, SD2, G[1], E4, 70); put(o, 13, SD2, 5, True)
    cmul(o, SD, G[2], E4, 70); put(o, 15, SD, 5, True)
    chains.append(o)
    body = []
    for k in range(max(len(c) for c in chains)):
        for c in chains:
            if k < len(c) and c[k] is not None: body.append(c[k])
    return [kmap(l, ch) for l in pre], [kmap(l, ch) for l in body]

def kmfma():
    FA = 112; FB = 144; KA = 176; NBF = 8
    o = []
    LA = 5
    for st in range(16 + LA):
        if st < 16:
            o.append(f'ds_read_b128 {v(FA+4*(st%NBF),4)}, v20 offset:{st*64}')
            o.append(f'ds_read_b128 {v(FB+4*(st%NBF),4)}, v21 offset:{st*64}')
        if st >= LA:
            k = st - LA
            o.append(f's_waitcnt lgkmcnt({2*min(LA, 15-k)})')
            o.append(f'v_mfma_f32_16x16x32_bf16 {v(KA,4)}, {v(FA+4*(k%NBF),4)}, {v(FB+4*(k%NBF),4)}, {"0" if k == 0 else v(KA,4)}')
    o += lines(f"""
    ds_write_b16 v26, v32
    v_add_f32 v{KA}, v{KA}, v27
    v_cvt_pk_bf16_f32 v{KA+4}, v{KA}, v{KA+1}
    v_cvt_pk_bf16_f32 v{KA+5}, v{KA+2}, v{KA+3}
    ds_write_b16 v22, v{KA+4}
    ds_write_b16_d16_hi v23, v{KA+4}
    ds_write_b16 v24, v{KA+5}
    ds_write_b16_d16_hi v25, v{KA+5}
    s_waitcnt lgkmcnt(0)
    """)
    return o

def subroutines(a):
    a.label('SUB_KMFMA')
    for l in kmfma(): a(l)
    a('s_setpc_b64 s[90:91]')

def kmaddr(a, ch):
    a(f"""
    v_and_b32 v20, 15, v1
    v_lshrrev_b32 v21, 4, v1
    v_mul_u32_u24 v20, {XYP}, v20
    v_lshl_add_u32 v20, v21, 4, v20
    s_and_b32 s36, s3, 1
    s_mul_i32 s36, s36, {16*XYP}
    s_add_u32 s36, s36, {21*XYP + (1-ch)*XYCH}
    v_add_u32 v21, s36, v20
    s_mul_i32 s36, s63, {16*XYP}
    s_add_u32 s36, s36, {(1-ch)*XYCH}
    v_add_u32 v20, s36, v20
    v_and_b32 v26, 7, v1
    v_mul_u32_u24 v26, {2*TP}, v26
    v_add_u32 v26, {L_T2 + 2*(TP-1) + ch*T2CH}, v26
    v_mov_b32 v32, 0
    """)

def kmskip(a, ch):
    a(f"""
    {'s_lshl_b32 s36, s39, 16' if ch == 0 else 's_and_b32 s36, s39, 0xffff0000'}
    s_cmp_eq_u32 s29, 0
    s_cselect_b32 s36, s36, 0
    v_mov_b32 v27, 0
    v_writelane_b32 v27, s36, 0
    """)
def call(a, name): a(f's_call_b64 s[90:91], {name}')

def gbuild(a, ch, copies):
    g = 64; d = 80
    lo = min(copies); hi = max(copies) + 8
    for i in range(lo, hi): a(f'ds_read_u16 v{g+i}, v{224+i} offset:{ch*T2CH}')
    a('s_waitcnt lgkmcnt(0)')
    for t in copies:
        for i in range(4): a(f'v_lshl_or_b32 v{d+4*t+i}, v{g+t+2*i+1}, 16, v{g+t+2*i}')
        a(f'ds_write_b128 v249, {v(d+4*t,4)} offset:{t*GP + ch*GCH}')

def gtabs(a):
    a(f"""
    v_and_b32 v14, 255, v0
    v_lshlrev_b32 v249, 4, v14
    v_add_u32 v15, {L_TAB}, v249
    """)
    for q in range(3): a(f'ds_read_b128 {v(224+4*q,4)}, v15 offset:{q*4096}')
    a(f'ds_read_b128 v[22:25], v15 offset:{3*4096}')

K_, V_, Q_ = 1, 2, 0
TA, TB, TC = Q_, K_, V_
stages = [[('x',0),(TA,0)], [('x',1),('x',2)], [(TA,1),(TA,2)]]
for _i in range(3, 7): stages.append([('x', _i), (TA, _i)])
_rest = [(TB, i) for i in range(7)] + [(TC, i) for i in range(7)]
for _i in range(7): stages.append(_rest[2*_i:2*_i+2])
NST = len(stages)

def ph_front(a):
    a(f"""
    s_mov_b32 s95, 0
    v_mov_b32 v{CV}, {L_CTL}
    v_mov_b32 v{C1}, 1
    v_lshrrev_b32 v3, 3, v1
    v_and_b32 v4, 7, v1
    s_and_b32 s29, s3, 3                   ; lw
    s_bfe_u32 s63, s3, 0x10001
    s_and_b32 s61, s3, 1
    s_cmp_lt_u32 s3, 4
    s_cbranch_scc1 Q_comp
    """)
    ssm_waves(a)
    a.label('Q_comp')
    comp_waves(a)

UV = [220, 221, 222, 252, 255]
def ssm_waves(a):
    a(f"""
    s_setprio {B_PRIO}
    v_and_b32 v14, 255, v0
    s_lshl_b32 s37, s21, 10
    v_lshl_add_u32 v248, v14, 1, s37
    s_lshl_b32 s28, s29, 1
    v_xor_b32 v5, s28, v4
    v_lshlrev_b32 v5, 4, v5
    s_lshl_b32 s30, s26, 6
    s_lshl_b32 s31, s29, 4
    s_add_u32 s30, s30, s31
    v_add_u32 v6, s30, v3
    v_mul_u32_u24 v6, 896, v6
    s_lshl_b32 s31, s25, 7
    v_add_u32 v6, s31, v6
    v_add_u32 v7, v6, v5
    v_xor_b32 v5, 16, v5
    v_add_u32 v6, v6, v5
    v_add_u32 v6, 7168, v6
    s_lshl_b32 s31, s61, 11
    s_mul_i32 s32, s63, {UCH}
    s_add_u32 s31, s31, s32
    s_add_u32 s31, s31, {L_U + 2560}
    s_mov_b32 m0, s31
    s_lshl_b32 s36, s21, 2
    s_waitcnt lgkmcnt(0)
    """)
    srd(a, 16, P_WS, WS_END)
    a(f"""
    s_cmp_lg_u32 s3, 4
    s_cbranch_scc1 Q_noep0
    s_mov_b32 s33, {EPOCH}
    buffer_load_dword v253, off, s[16:19], s33 sc1
    """)
    a.label('Q_noep0')
    for i in range(4):
        srd(a, 40 + 4*i, P_LA + 2*i, D * 256 * 2)
        a(f'buffer_load_ushort v{240+i}, v248, s[{40+4*i}:{43+4*i}], 0 offen nt')
        a(f'buffer_load_ushort v{244+i}, v248, s[{40+4*i}:{43+4*i}], 0 offen offset:512 nt')
    srd(a, 8, P_U, S * D * 2)
    a(f"""
    v_mov_b32 v54, v7
    v_mov_b32 v55, v6
    s_mov_b32 s34, s31
    """)
    if U_ISS < 0:
        a('buffer_load_dwordx4 v54, s[8:11], 0 offen nt lds')
        a('s_add_u32 m0, s34, 1024\ns_nop 0\nbuffer_load_dwordx4 v55, s[8:11], 0 offen nt lds')
    a(f"""
    s_add_u32 s{P_DT}, s{P_DT}, s36
    s_addc_u32 s{P_DT+1}, s{P_DT+1}, 0
    s_add_u32 s{P_DS}, s{P_DS}, s36
    s_addc_u32 s{P_DS+1}, s{P_DS+1}, 0
    s_load_dword s38, s[{P_DT}:{P_DT+1}], 0
    s_load_dword s39, s[{P_DS}:{P_DS+1}], 0
    """)
    srd(a, 12, P_OUT, S * 2 * D * 2)
    a(f"""
    v_and_b32 v5, 1, v1
    v_bfe_u32 v6, v1, 1, 1
    v_lshrrev_b32 v7, 4, v1
    v_add_u32 v2, s28, v5
    v_xor_b32 v7, v7, v2
    v_lshlrev_b32 v7, 4, v7
    v_lshl_add_u32 v7, v6, 3, v7
    v_bfe_u32 v6, v1, 2, 2
    v_lshl_add_u32 v6, v5, 3, v6
    v_lshl_add_u32 v7, v6, 7, v7
    v_add_u32 v50, s31, v7
    v_xor_b32 v51, 64, v50
    s_lshl_b32 s31, s25, 18
    s_lshl_b32 s33, s26, 9
    s_add_u32 s31, s31, s33
    s_lshl_b32 s33, s29, 7
    s_add_u32 s31, s31, s33
    s_add_u32 s31, s31, {WS_UT}
    v_lshlrev_b32 v52, 14, v3
    v_lshl_add_u32 v52, v4, 4, v52
    v_add_u32 v52, s31, v52
    s_lshl_b32 s59, s25, {FS+5}
    s_lshl_b32 s33, s26, {FS}
    s_add_u32 s59, s59, s33
    s_lshl_b32 s33, s29, 2
    s_add_u32 s59, s59, s33
    """)
    kmaddr(a, 1)
    t = Asm()
    t(f"""
    s_mov_b32 s101, {L_G + 4096}
    v_and_b32 v2, 3, v1
    v_mul_u32_u24 v2, {GP}, v2
    v_bfe_u32 v3, v1, 2, 2
    v_lshl_add_u32 v2, v3, 4, v2
    v_bfe_u32 v3, v1, 4, 1
    v_mul_u32_u24 v3, {GCH}, v3
    v_add3_u32 v217, v2, v3, s101
    s_lshl_b32 s36, s21, 1
    s_lshr_b32 s56, s36, 2
    s_lshl_b32 s56, s56, 14
    s_and_b32 s36, s36, 3
    s_lshl_b32 s36, s36, 4
    s_add_u32 s56, s56, s36
    s_add_u32 s56, s56, {WS_UT}
    s_mov_b32 s57, s56
    """)
    for k in range(5):
        t(f"""
        v_add_u32 v2, {64*k}, v1
        v_mul_u32_u24 v3, 205, v2
        v_lshrrev_b32 v3, 10, v3
        v_mul_u32_u24 v4, 5, v3
        v_sub_u32 v4, v2, v4
        v_min_u32 v4, 3, v4
        v_lshl_add_u32 v3, v3, 2, v4
        v_lshlrev_b32 v{UV[k]}, 6, v3
        """)
    t(f"""
    s_lshr_b32 s36, s21, 5
    s_lshl_b32 s36, s36, {FS+5}
    v_and_b32 v17, 31, v1
    v_lshl_add_u32 v223, v17, {FS}, s36
    v_lshrrev_b32 v18, 5, v1
    v_and_b32 v19, 3, v17
    v_sub_u32 v19, 3, v19
    v_mul_u32_u24 v19, {GP}, v19
    v_lshrrev_b32 v2, 2, v17
    v_lshlrev_b32 v3, 1, v18
    v_sub_u32 v2, v3, v2
    v_lshl_add_u32 v19, v2, 3, v19
    s_mul_i32 s36, s61, {GCH}
    s_lshl_b32 s56, s63, 10
    s_sub_u32 s36, s36, s56
    s_add_u32 s36, s36, {L_G + 8*511 - 32*94}
    v_add_u32 v218, s36, v19
    v_mul_u32_u24 v2, 80, v17
    v_lshl_add_u32 v2, v18, 4, v2
    s_mul_i32 s36, s61, {UCH}
    s_mul_i32 s56, s63, {16*80}
    s_sub_u32 s36, s36, s56
    s_add_u32 s36, s36, {L_U + 17*80}
    v_add_u32 v219, s36, v2
    v_mov_b64 v[32:33], 0
    v_mov_b64 v[34:35], 0
    v_and_b32 v14, 255, v0
    v_lshlrev_b32 v36, 4, v14
    v_add_u32 v36, {L_U}, v36
    v_cmp_gt_u32 vcc, 160, v14
    s_mov_b64 exec, vcc
    ds_write_b128 v36, v[32:35]
    ds_write_b128 v36, v[32:35] offset:{UCH}
    s_mov_b64 exec, -1
    ds_write2_b32 v{CV}, v32, v33 offset0:1 offset1:3
    ds_write_b32 v{CV}, v32
    """)
    for l in t.lines: a(l)
    stamp(a, 13)
    if 'nob' in DBG:
        for _ in range(14): a('s_barrier')
        a('s_branch P_fin')
    a(f's_waitcnt vmcnt(10)\ns_cmp_eq_u32 s3, 4\ns_cselect_b32 exec_lo, 1, 0\ns_mov_b32 exec_hi, 0\nv_add_u32 v253, 1, v253\nds_write_b32 v{CV}, v253 offset:8\ns_mov_b64 exec, -1')
    a('s_waitcnt lgkmcnt(0)')
    p0, b0 = kgen(0); p1, b1 = kgen(1)
    work = [(l, PRE_C) for l in p1] + [(l, 1) for l in b1] + [(l, PRE_C) for l in p0] + [(l, 1) for l in b0]
    if 'nowork' in DBG: work = []
    dump = {c: [f'ds_write_addtid_b32 v{PKB[c]+row} offset:{row*XYP}' for row in range(53)] for c in range(2)}
    for j in range(NST):
        a('s_barrier')
        if j == 0:
            stamp(a, 1)
            a('s_setprio 0')
            gtabs(a)
            kmskip(a, 1)
            scB, veB, _ = att_split()
            emit_groups(a, scB)
        if j == B_FIRST: a(f's_waitcnt vmcnt({2 if U_ISS < 0 else 0})')
        if j == 3: a(f'ds_read_b32 v253, v{CV} offset:8')
        if j == F0_SIG:
            a('s_waitcnt vmcnt(0)')
            signal(a, 59, 2, 3)
        if j == U_ISS:
            a('s_mov_b32 m0, s34\ns_nop 0\nbuffer_load_dwordx4 v54, s[8:11], 0 offen nt lds')
            a('s_add_u32 m0, s34, 1024\ns_nop 0\nbuffer_load_dwordx4 v55, s[8:11], 0 offen nt lds')
        if j == U_TR:
            a(f"""
            s_waitcnt vmcnt(0)
            ds_read_b64_tr_b16 v[54:55], v50
            ds_read_b64_tr_b16 v[56:57], v50 offset:512
            ds_read_b64_tr_b16 v[58:59], v51
            ds_read_b64_tr_b16 v[60:61], v51 offset:512
            s_mov_b32 s36, {8*16384}
            s_lshl_b32 m0, s29, 8
            s_waitcnt lgkmcnt(0)
            {'' if 'noust' in DBG else 'buffer_store_dwordx4 v[54:57], v52, s[16:19], 0 offen sc1'}
            {'' if 'noust' in DBG else 'buffer_store_dwordx4 v[58:61], v52, s[16:19], s36 offen sc1'}
            v_readfirstlane_b32 s20, v253
            """)
            for r in range(22, 26): a(f'v_add_u32 v{r}, {T2CH}, v{r}')
        if B_FIRST <= j <= B_LAST:
            tot = sum(c for _, c in work); budget = tot * BW[j] / sum(BW[j:B_LAST+1])
            while work and (budget > 0 or j == B_LAST):
                l, c = work.pop(0); a(l); budget -= c
        if D_FROM <= j < NST - 1:
            for l in dump[1][:D_PER]: a(l)
            dump[1] = dump[1][D_PER:]
    assert not work
    a('s_cmp_eq_u32 s3, 4\ns_cselect_b32 s60, 1, 0\ns_cbranch_scc0 Q_nof0a')
    a('buffer_load_dwordx4 v[28:31], v223, s[16:19], 0 offen sc1')
    a.label('Q_nof0a')
    for l in dump[1]: a(l)
    a(f's_lshl_b32 s36, s29, 8\ns_add_u32 m0, s36, {XYCH}\ns_nop 0')
    for l in dump[0]: a(l)
    stamp(a, 2)
    if 'gemmonly' in DBG: a('s_branch P_fin')
    def nop(): pass
    def udma():
        a('s_add_u32 s56, s57, 16')
        for ch in range(2):
            for k in range(5):
                a(f's_mov_b32 m0, {L_U + 32*80 + ch*UCH + 1024*k}')
                a(f'buffer_load_dwordx4 v{UV[k]}, s[16:19], s{57-ch} offen sc1 lds')
    def look(tag, last=False):
        a(f's_cmp_eq_u32 s60, 0\ns_cbranch_scc1 Q_lk{tag}')
        if last:
            poll(a, 'PL_f0', 223, 28, x4=True, sleep=1)
        else:
            a('s_waitcnt vmcnt(0)')
            for i in range(4): a(f'v_xor_b32 v{28+i}, s20, v{28+i}')
            a('v_or3_b32 v28, v28, v29, v30\nv_or_b32 v28, v28, v31\nv_cmp_ne_u32 vcc, 0, v28')
            a(f's_nop 4\ns_cbranch_vccz Q_lg{tag}')
            a('buffer_load_dwordx4 v[28:31], v223, s[16:19], 0 offen sc1')
            a(f's_branch Q_lk{tag}')
            a.label(f'Q_lg{tag}')
        a('s_call_b64 s[90:91], Q_udma')
        a.label(f'Q_lk{tag}')
    a('s_waitcnt lgkmcnt(0)\ns_barrier')
    stamp(a, 3)
    look('z')
    for l in kmfma(): a(l)
    if LOOK_POS == 0: look('b')
    a('s_barrier')
    stamp(a, 14)
    if LOOK_POS == 1: look('b')
    a('s_mov_b32 exec_hi, 0\nds_write_b128 v217, v[32:35]\ns_mov_b32 exec_hi, -1')
    gbuild(a, 1, (0, 1, 2, 3))
    a(f's_cmp_lg_u32 s3, 4\ns_cbranch_scc1 Q_u0\ns_cmp_lg_u32 s60, 0\ns_cbranch_scc1 Q_u0\ns_waitcnt vmcnt(0)\nds_write_b32 v{CV}, v{C1}')
    a.label('Q_u0')
    a('s_waitcnt lgkmcnt(0)\ns_barrier')
    a('s_cmp_eq_u32 s60, 0\ns_cbranch_scc1 Q_uw')
    look('c', True)
    a('s_waitcnt vmcnt(0)')
    a(f'ds_write_b32 v{CV}, v{C1}')
    a.label('Q_uw')
    gwait(a, 0, 1, 2)
    stamp(a, 4)
    if CONV_PRIO: a('s_setprio 1')
    SC = 4; sc = [0]
    def sarr():
        a('s_waitcnt lgkmcnt(0)'); garrive(a, SC); sc[0] += 4
    Y0, Y1 = 176, 192
    FR = 32; NBUF = 4
    def boff(n): return (n // 2) * 80 + (n % 2) * 32
    def ld(t):
        b = FR + 16 * (t % NBUF); ao = 32*(31-t)
        return [f'ds_read_b64 {v(b,2)}, v218 offset:{ao + 2048}',
                f'ds_read_b64 {v(b+2,2)}, v218 offset:{ao + 2056}',
                f'ds_read_b128 {v(b+4,4)}, v219 offset:{boff(31-t)}',
                f'ds_read_b128 {v(b+8,4)}, v219 offset:{boff(31-t) + 2560}',
                f'ds_read_b64 {v(b+12,2)}, v218 offset:{ao}',
                f'ds_read_b64 {v(b+14,2)}, v218 offset:{ao + 8}']
    def mm(t, first):
        b = FR + 16 * (t % NBUF)
        return [f'v_mfma_f32_32x32x16_bf16 {v(Y0,16)}, {v(b,4)}, {v(b+4,4)}, {"0" if first else v(Y0,16)}',
                f'v_mfma_f32_32x32x16_bf16 {v(Y1,16)}, {v(b,4)}, {v(b+8,4)}, {"0" if first else v(Y1,16)}',
                f'v_mfma_f32_32x32x16_bf16 {v(Y1,16)}, {v(b+12,4)}, {v(b+4,4)}, {v(Y1,16)}']
    for l in ld(0) + ld(1): a(l)
    t_ = Asm()
    t_(f"""
    s_lshl_b32 s36, s29, 12
    s_add_u32 s36, s36, {L_PART}
    v_lshl_add_u32 v216, v1, 4, s36
    s_xor_b32 s36, s36, 8192
    v_lshl_add_u32 v217, v1, 4, s36
    s_lshl_b32 s36, s21, 13
    s_lshl_b32 s60, s61, 12
    s_add_u32 s36, s36, s60
    s_lshl_b32 s60, s63, 11
    s_add_u32 s36, s36, s60
    s_add_u32 s36, s36, {WS_YT}
    v_and_b32 v220, 31, v1
    v_lshrrev_b32 v221, 5, v1
    v_lshlrev_b32 v220, 6, v220
    v_lshl_add_u32 v220, v221, 4, v220
    v_add_u32 v220, s36, v220
    s_mov_b32 s60, s63
    """)
    fillA = [[l] for l in t_.lines]
    _, fillB = att_pre_groups()
    fillA += veB
    if 'nofillc' in DBG:
        emit_groups(a, fillA); fillA = []; stamp(a, 4)
    T0 = CONV_T0
    def take(q, k):
        for _ in range(k):
            if q:
                for l in q.pop(0): a(l)
    if T0 >= 32: fillB = []
    perA = -(-len(fillA) // (3*min(T0, 30))); perB = -(-len(fillB) // (3*max(30 - T0, 1)))
    for t in range(32):
        if t == T0:
            gwait(a, 12, 1, 2)
        else:
            a(f's_waitcnt lgkmcnt({6 if t < 31 else 0})')
        if 'cstamp' in DBG and t in (12, 22): stamp(a, 13 if t == 12 else 14)
        L = ld(t + 2) if t + 2 < 32 else []
        M = mm(t, t == 0)
        q, per = (fillA, perA) if t < T0 else (fillB, perB)
        a(M[0])
        for l in L[:2]: a(l)
        take(q, per)
        a(M[1])
        for l in L[2:4]: a(l)
        take(q, per)
        a(M[2])
        for l in L[4:]: a(l)
        take(q, per)
    assert not fillA and not fillB
    if 'cstamp' in DBG: stamp(a, 3)
    a('s_setprio 1')
    PR = 208 + 16
    PR = 64
    a('s_cmp_eq_u32 s60, 0\ns_cbranch_scc1 S_h0')
    for hf in (1, 0):
        keep = Y1 if hf else Y0; send = Y0 if hf else Y1
        if hf == 0: a.label('S_h0')
        for q in range(4): a(f'ds_write_b128 v216, {v(send + 4*q, 4)} offset:{q*1024}')
        a('s_waitcnt lgkmcnt(0)'); garrive(a, SC)
        gwait(a, SC, 4, 2)
        for q in range(4): a(f'ds_read_b128 {v(PR + 4*q, 4)}, v217 offset:{q*1024}')
        for q in range(4):
            a(f's_waitcnt lgkmcnt({3-q})')
            for e in range(4): a(f'v_add_f32 v{PR+4*q+e}, v{PR+4*q+e}, v{keep+4*q+e}')
        if hf == 1: a('s_branch S_h1')
    a.label('S_h1')
    garrive(a, SC)
    stamp(a, 5)
    for r in range(8): a(f'v_cvt_pk_bf16_f32 v{176+r}, v{PR+2*r}, v{PR+2*r+1}')
    for q in range(2):
        a(f'v_permlane32_swap_b32 v{176+4*q}, v{176+4*q+2}')
        a(f'v_permlane32_swap_b32 v{176+4*q+1}, v{176+4*q+3}')
    a('buffer_store_dwordx4 v[176:179], v220, s[16:19], 0 offen sc1')
    a('buffer_store_dwordx4 v[180:183], v220, s[16:19], 0 offen offset:32 sc1')
    emit_groups(a, att_zero())
    a('s_branch L_att')
    a.label('Q_udma')
    udma()
    a('s_mov_b32 s60, 0\ns_setpc_b64 s[90:91]')

def comp_waves(a):
    XF = 64; ACC = {K_: 176, V_: 192, Q_: 208}; WB = [[8 + 4*i for i in range(8)], [224 + 4*i for i in range(4)] + [40 + 4*i for i in range(4)]]
    a(f"""
    s_sub_u32 s28, s24, 7
    s_cmp_ge_u32 s24, 7
    s_cselect_b32 s27, s28, s24            ; rho
    s_lshl_b32 s30, s29, 4
    v_add_u32 v5, s30, v3
    v_lshrrev_b32 v6, 1, v5
    v_and_b32 v6, 7, v6
    v_xor_b32 v6, v6, v4
    v_lshlrev_b32 v6, 4, v6
    s_lshl_b32 s30, s26, 6
    v_add_u32 v7, s30, v5
    v_mul_u32_u24 v7, 896, v7
    v_add_u32 v244, v7, v6
    v_xor_b32 v6, 64, v6
    v_add_u32 v245, v7, v6
    v_add_u32 v245, 7168, v245
    v_lshrrev_b32 v6, 1, v5
    v_and_b32 v6, 1, v6
    v_lshlrev_b32 v6, 2, v6
    v_xor_b32 v6, v6, v4
    v_lshlrev_b32 v6, 4, v6
    v_mul_u32_u24 v7, 2688, v5
    v_add_u32 v246, v7, v6
    s_lshl_b32 s30, s25, 7
    v_add_u32 v246, s30, v246
    v_add_u32 v247, 21504, v246
    s_lshl_b32 s32, s29, 11
    s_lshl_b32 s40, s27, 7
    s_mul_i32 s48, s27, {64*2688}
    s_waitcnt lgkmcnt(0)
    """)
    srd(a, 8, P_X, S * D * 2)
    srd(a, 4, P_W, D * 3 * D * 2)
    def issue(j):
        o = []
        for half, (kind, i) in enumerate(stages[j]):
            base = RING0 + slot_of(j) * SLOT + half * 8192
            for e in range(2):
                g = [f's_add_u32 m0, s32, {base + e*1024}']
                if kind == 'x':
                    g.append(f'buffer_load_dwordx4 v{244+e}, s[8:11], s{40+i} offen {XMOD} lds')
                else:
                    so = f's{48+i}'
                    if kind:
                        so = 's37'
                        if e == 0: g.append(f's_add_u32 s37, s{48+i}, {kind*896}')
                    g.append(f'buffer_load_dwordx4 v{246+e}, s[4:7], {so} offen lds')
                o.append(g)
        return o
    vm = []
    def waitfor(tag):
        last = max(i for i, t in enumerate(vm) if t == tag)
        a(f's_waitcnt vmcnt({len(vm) - 1 - last})')
    def em(l, tag='st'):
        a(l)
        if l.startswith('buffer_'): vm.append(tag)
    def issue_now(j):
        for g in issue(j):
            for l in g: em(l, j)
    issue_now(0)
    a(f's_lshl_b32 s36, s21, 2\ns_add_u32 s{P_DS}, s{P_DS}, s36\ns_addc_u32 s{P_DS+1}, s{P_DS+1}, 0\ns_load_dword s39, s[{P_DS}:{P_DS+1}], 0')
    for i in range(1, 7):
        if i == 3: issue_now(1)
        a(f's_add_u32 s27, s27, 1\ns_cmp_eq_u32 s27, 7\ns_cselect_b32 s27, 0, s27\ns_lshl_b32 s{40+i}, s27, 7\ns_mul_i32 s{48+i}, s27, {64*2688}')
    srd(a, 16, P_WS, WS_END)
    srd(a, 12, P_OUT, S * 2 * D * 2)
    a(f"""
    v_lshlrev_b32 v6, 3, v0
    v_sub_u32 v6, 2047, v6
    v_mov_b32 v17, {L_T2}
    v_mov_b32 v18, {TP}
    v_lshlrev_b32 v19, 4, v0
    v_add_u32 v19, {L_TAB}, v19
    s_mov_b32 s36, 0
    """)
    a.label('Q_tab')
    for i in (0, 2):
        a(f"""
        v_subrev_u32 v7, {i}, v6
        v_subrev_u32 v8, {i+1}, v6
        v_cvt_f32_i32 v2, v7
        v_cvt_f32_i32 v5, v8
        v_cvt_pk_bf16_f32 v2, v2, v5
        v_and_b32 v5, 0xffff0000, v2
        v_lshlrev_b32 v2, 16, v2
        v_cvt_i32_f32 v2, v2
        v_cvt_i32_f32 v5, v5
        v_and_b32 v7, 7, v2
        v_and_b32 v8, 7, v5
        v_ashrrev_i32 v2, 3, v2
        v_ashrrev_i32 v5, 3, v5
        v_mad_u32_u24 v2, v7, v18, v2
        v_mad_u32_u24 v5, v8, v18, v5
        v_lshl_add_u32 v{64+i}, v2, 1, v17
        v_lshl_add_u32 v{65+i}, v5, 1, v17
        """)
    a(f"""
    ds_write_b128 v19, v[64:67]
    v_add_u32 v19, 4096, v19
    v_subrev_u32 v6, 4, v6
    s_add_u32 s36, s36, 1
    s_cmp_lt_u32 s36, 3
    s_cbranch_scc1 Q_tab
    v_and_b32 v17, 15, v1
    """)
    ix = lambda p: (p & 7) * TP + (p >> 3)
    def pk(b, s1, s2): assert b < 4096 and s1 < 1024 and s2 < 1024; return b | (s1 << 12) | (s2 << 22)
    t0 = [pk(0, TP, 2*TP), pk(4*TP, TP, 2*TP), None, None]
    a('s_cmp_eq_u32 s63, 0')
    ptab = {0: [[0,1,2,3],[4,5,6,7],[256,258,260,262],[512,516,768,772]],
            1: [[1024,1280,1536,1792],[2048,2304,2304,2304],[2304]*4,[2304]*4]}
    for g in range(4):
        lo = lambda at: ix(ptab[at][g][0]) | (ix(ptab[at][g][1]) << 16)
        hi = lambda at: ix(ptab[at][g][2]) | (ix(ptab[at][g][3]) << 16)
        a(f's_mov_b32 exec_lo, {0xffff << (16*(g%2)) if g < 2 else 0}')
        a(f's_mov_b32 exec_hi, {0xffff << (16*(g%2)) if g >= 2 else 0}')
        a(f's_mov_b32 s36, {lo(1)}\ns_cselect_b32 s36, {lo(0)}, s36\nv_mov_b32 v68, s36')
        a(f's_mov_b32 s36, {hi(1)}\ns_cselect_b32 s36, {hi(0)}, s36\nv_mov_b32 v70, s36')
    a(f"""
    s_mov_b64 exec, -1
    s_lshl_b32 s36, s61, 5
    s_add_u32 s36, s36, {L_T2}
    v_lshl_add_u32 v18, v17, 1, s36
    v_lshrrev_b32 v69, 16, v68
    v_lshrrev_b32 v71, 16, v70
    v_and_b32 v68, 0xffff, v68
    v_and_b32 v70, 0xffff, v70
    v_lshl_add_u32 v68, v68, 1, v18
    v_lshl_add_u32 v69, v69, 1, v18
    v_lshl_add_u32 v70, v70, 1, v18
    v_lshl_add_u32 v71, v71, 1, v18
    ds_write_b128 v19, v[68:71]
    s_and_b32 s27, s3, 1                   ; rt
    s_lshr_b32 s30, s3, 1                  ; cg
    v_and_b32 v3, 31, v1
    v_lshrrev_b32 v4, 5, v1
    s_lshl_b32 s31, s27, 5
    v_add_u32 v5, s31, v3
    v_lshrrev_b32 v6, 1, v5
    v_and_b32 v6, 7, v6
    v_lshlrev_b32 v7, 7, v5
    v_add_u32 v7, {RING0}, v7
    """)
    for st in range(4):
        a(f"""
        v_add_u32 v{56+st}, {2*st}, v4
        v_xor_b32 v{56+st}, v{56+st}, v6
        v_lshl_add_u32 v{56+st}, v{56+st}, 4, v7
        v_add_u32 v{240+st}, 0x10000, v{56+st}
        """)
    a(f"""
    v_and_b32 v6, 3, v1
    v_lshlrev_b32 v6, 3, v6
    v_bfe_u32 v7, v1, 4, 1
    v_lshl_add_u32 v6, v7, 5, v6
    s_lshl_b32 s31, s30, 6
    v_add_u32 v6, s31, v6
    v_bfe_u32 v7, v1, 3, 1
    v_lshlrev_b32 v7, 6, v7
    v_xor_b32 v6, v6, v7
    v_bfe_u32 v7, v1, 2, 2
    v_lshl_add_u32 v7, v4, 3, v7
    v_lshl_add_u32 v60, v7, 7, v6
    v_add_u32 v248, 0x10000, v60
    s_lshl_b32 s31, s26, 1
    s_add_u32 s31, s31, s27
    s_mul_i32 s31, s31, {TILEB}
    s_lshl_b32 s33, s25, 3
    s_lshl_b32 s34, s30, 2
    s_add_u32 s33, s33, s34
    s_lshl_b32 s34, s33, 9
    s_add_u32 s34, s34, s31
    v_lshlrev_b32 v61, 4, v1
    v_add_u32 v61, s34, v61
    s_lshl_b32 s34, s33, 7
    s_add_u32 s34, s34, s31
    v_mul_u32_u24 v62, 7168, v4
    v_lshl_add_u32 v62, v3, 4, v62
    v_add_u32 v62, s34, v62
    s_mov_b32 s35, {f32bits(QSCALE)}
    s_lshl_b32 s60, s25, {FS+5}
    s_lshl_b32 s61, s26, {FS}
    s_add_u32 s60, s60, s61
    s_lshl_b32 s61, s3, 2
    s_add_u32 s60, s60, s61
    s_add_u32 s60, s60, {F1}
    """)
    if PRE_ST >= 3: issue_now(2)
    a('s_waitcnt lgkmcnt(0)')
    stamp(a, 13)
    def reads(j):
        hi = slot_of(j) >= 4
        sb = (slot_of(j) % 4) * SLOT
        n = 0; o = []
        for half, (kind, i) in enumerate(stages[j]):
            base = sb + half * 8192
            if kind == 'x':
                for st in range(4):
                    o.append(f'ds_read_b128 {v(XF + 16*i + 4*st, 4)}, v{(240 if hi else 56) + st} offset:{base}')
            else:
                for st in range(4):
                    r = WB[j % 2][n]; n += 1
                    for e in range(2):
                        o.append(f'ds_read_b64_tr_b16 {v(r + 2*e, 2)}, v{248 if hi else 60} offset:{base + (16*st + 4*e)*128}')
        return o
    started = set()
    def epilogue(kind):
        acc = ACC[kind]; out = []
        if kind == Q_:
            for r in range(16): out.append(f'v_mul_f32 v{acc+r}, s35, v{acc+r}')
        for r in range(8): out.append(f'v_cvt_pk_bf16_f32 v{acc+r}, v{acc+2*r}, v{acc+2*r+1}')
        T = acc
        if kind == V_:
            out.append(f's_mov_b32 s36, {WS_V}')
            out.append(f'buffer_store_dwordx4 {v(T,4)}, v62, s[16:19], s36 offen sc1')
            out.append(f's_mov_b32 s36, {WS_V + 2*7168}')
            out.append(f'buffer_store_dwordx4 {v(T+4,4)}, v62, s[16:19], s36 offen sc1')
        else:
            for q in range(2):
                out.append(f'v_permlane32_swap_b32 v{T+4*q}, v{T+4*q+2}')
                out.append(f'v_permlane32_swap_b32 v{T+4*q+1}, v{T+4*q+3}')
            out.append(f's_mov_b32 s36, {WS_Q if kind == Q_ else WS_K}')
            out.append(f'buffer_store_dwordx4 {v(T,4)}, v61, s[16:19], s36 offen sc1')
            out.append(f'buffer_store_dwordx4 {v(T+4,4)}, v61, s[16:19], s36 offen offset:1024 sc1')
        return out
    def mlist(j):
        n = 0; done = []; o = []
        for half, (kind, i) in enumerate(stages[j]):
            if kind == 'x': continue
            acc = ACC[kind]
            for st in range(4):
                w = WB[j % 2][n]; n += 1
                x = XF + 16*i + 4*st
                c = v(acc, 16) if kind in started else '0'
                started.add(kind)
                if kind == V_: o.append(f'v_mfma_f32_32x32x16_bf16 {v(acc,16)}, {v(x,4)}, {v(w,4)}, {c}')
                else:          o.append(f'v_mfma_f32_32x32x16_bf16 {v(acc,16)}, {v(w,4)}, {v(x,4)}, {c}')
            if i == 6: done.append(kind)
        return o, done
    def weave(ms, rd, fill, dm, tag):
        nm = len(ms)
        slots = max(nm, 4)
        per = -(-len(rd) // max(slots - 2, 1))
        fper = -(-len(fill) // max(nm - 2, 1))
        dper = -(-len(dm) // slots); dstep = max(slots // max(len(dm), 1), 1)
        for k in range(slots):
            if k < nm: a(ms[k])
            if k % dstep == 0:
                for _ in range(dper):
                    if dm:
                        tg, g = dm.pop(0)
                        for l in g: em(l, tg)
            for _ in range(per):
                if rd: a(rd.pop(0))
            if k >= 2:
                for _ in range(fper):
                    if fill: em(fill.pop(0))
        for l in rd + fill: em(l)
    pending = []; carry = []; issued = max(PRE_ST, 2)
    for j in range(NST):
        waitfor(j)
        a('s_barrier')
        if j == 0: stamp(a, 1)
        if 'gemmonly' in DBG and j in GS: stamp(a, 3 + GS.index(j))
        rd = reads(j); ms = []; fill = carry; carry = []
        if j == 5: rd.append(f'ds_read_b32 v253, v{CV} offset:8')
        if j > 0:
            for k in pending: fill += epilogue(k)
            ms, pending = mlist(j - 1)
        dm = []
        for _ in range(MAXI):
            if issued < NST and issued <= j + (DEPTH if j < D2J else DEPTH2):
                dm += [(issued, g) for g in issue(issued)]; issued += 1
        if dm:
            k = next((i for i, l in enumerate(fill) if l.startswith(('buffer_', 's_mov_b32 s36'))), len(fill))
            carry = fill[k:]; fill = fill[:k]
        if len(fill) > FILL_MAX and j < NST - 1:
            carry = fill[FILL_MAX:] + carry; fill = fill[:FILL_MAX]
        weave(ms, rd, fill, dm, j + DEPTH)
        a('s_waitcnt lgkmcnt(0)')
    fill = carry
    for k in pending: fill += epilogue(k)
    ms, pending = mlist(NST - 1)
    weave(ms, [], fill, [], None)
    for k in pending:
        for l in epilogue(k): a(l)
    stamp(a, 2)
    if 'gemmonly' in DBG: a('s_branch P_fin')
    sc_, ve_, lds_ = att_split()
    FL = 252
    a('v_readfirstlane_b32 s20, v253')
    gtabs(a)
    kmaddr(a, 0)
    kmskip(a, 0)
    att_poll_addr(a, FL)
    if SIG_CUT < 0:
        a('s_waitcnt vmcnt(0)')
        signal(a, 60, 2, 3)
    a('s_waitcnt lgkmcnt(0)\ns_barrier')
    stamp(a, 3)
    km0 = kmfma(); fc = [l for g in sc_ for l in g]; km = []
    for l in km0:
        km.append(l)
        if l.startswith('ds_read_b128'):
            km += fc[:4]; fc = fc[4:]
    km += fc
    cut = int(len(km) * SIG_CUT)
    cut = max(cut, 0)
    for l in km[:cut]: a(l)
    if SIG_CUT >= 0:
        a('s_waitcnt vmcnt(0)')
        signal(a, 60, 2, 3)
    for l in km[cut:]: a(l)
    a('s_barrier')
    stamp(a, 14)
    def req():
        a('s_cmp_lg_u32 s3, 0\ns_cbranch_scc1 Q_nq')
        a(f'buffer_load_dwordx4 v[244:247], v{FL}, s[16:19], 0 offen sc1')
        a.label('Q_nq')
    gbuild(a, 0, (0, 1, 2, 3))
    if REQ_POS == 0: req()
    a('s_waitcnt lgkmcnt(0)\ns_barrier')
    stamp(a, 4)
    a('s_setprio 2')
    if REQ_POS == 1: req()
    emit_groups(a, ve_ + att_zero())
    a('s_cmp_lg_u32 s3, 0\ns_cbranch_scc1 Q_w1')
    a('s_waitcnt vmcnt(0)')
    for i in range(4): a(f'v_xor_b32 v{244+i}, s20, v{244+i}')
    a('v_or3_b32 v244, v244, v245, v246\nv_or_b32 v244, v244, v247\nv_cmp_ne_u32 vcc, 0, v244\ns_nop 4\ns_cbranch_vccz Q_w0')
    poll(a, 'PL_f1', FL, 244, x4=True, sleep=A_SLEEP)
    a.label('Q_w0')
    a(f'ds_write_b32 v{CV}, v{C1} offset:12')
    a('s_branch L_pre')
    a.label('Q_w1')
    gwait(a, 12, 1, 2)
    a.label('L_pre')
    stamp(a, 5)
    emit_groups(a, lds_[:10])
    att_first(a, 4)
    emit_groups(a, lds_[10:])
    a('s_setprio 0')
    a('s_branch L_att2')

EB = 176
EA = EB + 56
ET = 96
def ssm_epi_setup(a):
    a(f"""
    v_and_b32 v{ET}, 1, v1                      ; ch
    v_bfe_u32 v{ET+1}, v1, 1, 2                 ; j
    v_lshrrev_b32 v{ET+2}, 3, v1
    v_mul_u32_u24 v{ET+3}, {POWN}, v{ET+1}
    v_mul_u32_u24 v{ET+4}, {PSRC}, v{ET}
    v_add_u32 v{ET+3}, v{ET+3}, v{ET+4}
    v_lshl_add_u32 v{ET+3}, v{ET+2}, 4, v{ET+3}
    s_lshl_b32 s60, s29, 7
    s_add_u32 s36, s60, {L_PART}
    v_add_u32 v{EA}, s36, v{ET+3}
    v_mul_u32_u24 v{ET+2}, 80, v{ET+2}
    v_lshl_add_u32 v{ET+2}, v{ET+1}, 4, v{ET+2}
    v_mul_u32_u24 v{ET+4}, {UCH}, v{ET}
    v_add_u32 v{ET+2}, v{ET+2}, v{ET+4}
    s_mul_i32 s36, s29, 640
    s_add_u32 s36, s36, {L_U + 32*80}
    v_add_u32 v{EA+1}, s36, v{ET+2}             ; u chunk
    s_lshl_b32 s36, s21, 13
    s_lshl_b32 s60, s29, 10
    s_add_u32 s36, s36, s60
    s_add_u32 s36, s36, {WS_YT}
    v_lshl_add_u32 v{EA+2}, v1, 4, s36
    s_lshl_b32 s60, s39, 16
    s_and_b32 s61, s39, 0xffff0000
    v_mov_b32 v{EA+3}, s60
    v_mov_b32 v{ET+4}, s61
    v_cmp_eq_u32 vcc, 1, v{ET}
    v_cndmask_b32 v{EA+3}, v{EA+3}, v{ET+4}, vcc
    """)

def ssm_epi_reads(a):
    for p in range(2):
        E = EB + 28*p; o = p*4*POWN
        a(f"""
        ds_read_b128 {v(E,4)}, v{EA} offset:{o}
        ds_read_b128 {v(E+4,4)}, v{EA} offset:{o+512}
        ds_read_b128 {v(E+8,4)}, v{EA} offset:{o+2*PSRC}
        ds_read_b128 {v(E+12,4)}, v{EA} offset:{o+2*PSRC+512}
        ds_read_b128 {v(E+16,4)}, v{EA+1} offset:{p*2560}
        """)

def ssm_epi(a):
    a('s_mov_b32 s36, 4096')
    for p in range(2):
        A = EB + 28*p; B = A + 8; U = A + 16; C = A + 20
        for e in range(8): a(f'v_add_f32 v{A+e}, v{A+e}, v{B+e}')
        for e in range(4):
            a(f'v_lshlrev_b32 v{C+2*e}, 16, v{U+e}')
            a(f'v_and_b32 v{C+1+2*e}, 0xffff0000, v{U+e}')
        for e in range(8): a(f'v_mul_f32 v{C+e}, v{EA+3}, v{C+e}')
        for e in range(4):
            a(f'v_cvt_pk_bf16_f32 v{B+e}, v{A+2*e}, v{A+1+2*e}')
            a(f'v_cvt_pk_bf16_f32 v{B+4+e}, v{C+2*e}, v{C+1+2*e}')
        for e in range(4):
            a(f'v_lshlrev_b32 v{A+2*e}, 16, v{B+e}')
            a(f'v_and_b32 v{A+1+2*e}, 0xffff0000, v{B+e}')
            a(f'v_lshlrev_b32 v{C+2*e}, 16, v{B+4+e}')
            a(f'v_and_b32 v{C+1+2*e}, 0xffff0000, v{B+4+e}')
        for e in range(8): a(f'v_add_f32 v{A+e}, v{A+e}, v{C+e}')
        for e in range(4): a(f'v_cvt_pk_bf16_f32 v{B+e}, v{A+2*e}, v{A+1+2*e}')
        a(f'buffer_store_dwordx4 {v(B,4)}, v{EA+2}, s[16:19], {"s36" if p else "0"} offen sc1')

def att_ids(a):
    if AMAP == 0:
        a("""
        s_lshl_b32 s40, s22, 1
        s_and_b32 s41, s23, 1
        s_add_u32 s40, s40, s41                ; head
        s_lshr_b32 s41, s23, 1                 ; rbq
        s_mov_b32 s99, s41
        """)
    elif AMAP == 1:
        a("""
        s_lshl_b32 s41, s22, 1
        s_and_b32 s40, s23, 1
        s_lshl_b32 s99, s40, 3
        s_add_u32 s41, s41, s40                ; rbq
        s_lshr_b32 s40, s23, 1                 ; head
        """)
    a("""
    s_mul_i32 s42, s40, 7
    s_lshr_b32 s42, s42, 1                 ; chi0
    """)

def att_poll_addr(a, r):
    att_ids(a)
    a(f"""
    s_lshr_b32 s43, s42, 3
    s_add_u32 s44, s42, 3
    s_lshr_b32 s44, s44, 3
    s_lshl_b32 s43, s43, {FS+5}
    s_lshl_b32 s44, s44, {FS+5}
    v_mov_b32 v{r}, s43
    v_mov_b32 v{r+1}, s44
    v_cmp_lt_u32 vcc, 31, v1
    v_cndmask_b32 v{r}, v{r}, v{r+1}, vcc
    v_and_b32 v{r+1}, 31, v1
    v_lshl_add_u32 v{r}, v{r+1}, {FS}, v{r}
    v_add_u32 v{r}, {F1}, v{r}
    """)

def att_poll(a, name):
    att_poll_addr(a, 16)
    poll(a, name, 16, 20, x4=True, sleep=8)

OL = 120 * 1024; YL = 152 * 1024; RED = 96 * 1024
NB = 4
QF = 16; OA = 32; SB = 64; PB = 96; KB = 112; VB = KB + 8*NB
def advK(a):
    a(f's_add_u32 s33, s33, {TILEB}')
    a('s_cmp_eq_u32 s33, s55')
    a('s_cselect_b32 s33, s54, s33')
def loadK(a, n):
    a(f'buffer_load_dwordx4 {v(KB+8*n,4)}, v3, s[16:19], s33 offen')
    a(f'buffer_load_dwordx4 {v(KB+8*n+4,4)}, v3, s[16:19], s33 offen offset:1024')
def loadV(a, n):
    a('s_mov_b64 exec, s[46:47]')
    a(f'buffer_load_dwordx4 {v(VB+8*n,4)}, v4, s[16:19], s33 offen')
    a(f'buffer_load_dwordx4 {v(VB+8*n+4,4)}, v7, s[16:19], s33 offen')
    a('s_mov_b64 exec, -1')

def att_pre_groups():
    def G(fn, *args):
        t = Asm(); fn(t, *args); return t.lines
    def singles(txt): return [[l] for l in lines(txt)]
    p1 = [[l] for l in G(att_ids)]
    p1 += singles(f"""
    s_and_b32 s24, s3, 1                   ; qg
    s_lshr_b32 s27, s3, 1
    s_cmp_lt_u32 s23, 28
    s_cselect_b32 s34, {NA}, 16
    s_sub_u32 s35, 32, s34
    s_min_u32 s54, s27, 2
    s_mul_i32 s54, s54, s34
    s_cmp_eq_u32 s27, 3
    s_cselect_b32 s55, s35, 0
    s_add_u32 s54, s54, s55
    s_cmp_lt_u32 s3, 4
    s_cselect_b32 s34, s34, s35
    s_lshr_b32 s35, s34, 2
    s_lshl_b32 s96, s42, 9
    v_lshl_add_u32 v3, v1, 4, s96          ; Q/K voffset
    s_lshl_b32 s28, s41, 2
    s_lshl_b32 s31, s24, 1
    s_add_u32 s28, s28, s31
    s_mul_i32 s31, s28, {TILEB}
    s_add_u32 s31, s31, {WS_Q}
    s_add_u32 s30, s31, {TILEB}
    s_mul_i32 s54, s54, {TILEB}
    s_add_u32 s54, s54, {WS_K}
    s_mul_i32 s55, s34, {TILEB}
    s_add_u32 s55, s55, s54
    s_mul_i32 s33, s99, s34
    s_lshr_b32 s33, s33, 4
    s_mul_i32 s33, s33, {TILEB}
    s_add_u32 s33, s33, s54
    buffer_load_dwordx4 {v(QF,4)}, v3, s[16:19], s31 offen
    buffer_load_dwordx4 {v(QF+4,4)}, v3, s[16:19], s31 offen offset:1024
    """)
    p1 += [[l] for l in G(loadK, 0)]
    p1 += singles(f"""
    buffer_load_dwordx4 {v(QF+8,4)}, v3, s[16:19], s30 offen
    buffer_load_dwordx4 {v(QF+12,4)}, v3, s[16:19], s30 offen offset:1024
    v_and_b32 v5, 31, v1
    v_lshrrev_b32 v6, 5, v1
    v_mul_u32_u24 v4, 7168, v6
    v_lshl_add_u32 v4, v5, 4, v4
    s_mul_i32 s97, s40, 448
    s_add_u32 s97, s97, {WS_V - WS_K}
    v_add_u32 v4, s97, v4
    v_add_u32 v7, 14336, v4
    s_mov_b32 s46, 0x0fffffff
    s_mov_b32 s47, 0x0fffffff
    """)
    p2 = []
    for n in range(NB):
        dst = p1 if n == 0 else p2
        if n == 0:
            dst += [['v_cmp_eq_u32 vcc, 28, v5'], ['v_mov_b32 v12, 0x3f803f80'], ['v_cndmask_b32 v12, 0, v12, vcc'], ['v_mov_b32 v13, v12']]
        dst += [[f'v_mov_b64 {v(VB+8*n+r,2)}, v[12:13]'] for r in range(0, 8, 2)]
        if n < NB - 1:
            dst += [G(loadV, n), G(advK)] + [[l] for l in G(loadK, n + 1)]
    p2 += [[l] for l in G(srd, 8, P_WO, D * D * 2)]
    p2 += singles(f"""
    s_lshr_b32 s52, s40, 2
    s_lshl_b32 s53, s41, 2
    s_add_u32 s52, s52, s53
    s_and_b32 s53, s40, 3                  ; cg4
    v_lshrrev_b32 v8, 4, v1
    v_and_b32 v9, 15, v1
    v_lshlrev_b32 v10, 2, v8
    v_xor_b32 v9, v9, v10
    v_lshlrev_b32 v9, 4, v9
    v_mul_u32_u24 v8, 896, v8
    v_add_u32 v8, v8, v9
    s_lshl_b32 s98, s53, 8
    v_add_u32 v8, s98, v8
    s_lshl_b32 s51, s3, 10
    s_mul_i32 s50, s3, 3584
    s_sub_u32 s35, s35, 1
    s_and_b32 s49, s40, 1
    s_cmp_eq_u32 s49, 0
    s_cselect_b32 s43, -1, 0
    s_mov_b32 s42, 0
    s_cselect_b32 s44, 0, -1
    s_mov_b32 s45, 0
    s_lshl_b32 s32, s21, 4
    s_and_b32 s49, s3, 3
    s_lshl_b32 s49, s49, 2
    s_add_u32 s32, s32, s49
    s_add_u32 s32, s32, {F3}
    s_cmp_lt_u32 s23, 28
    s_cselect_b32 s32, s32, {WS_END}
    """)
    allg = p1 + p2
    isld = lambda g: any(l.startswith('buffer_') for l in g) or g[0].startswith(f's_add_u32 s33, s33, {TILEB}')
    setup = [g for g in allg if not isld(g)]
    loads = [g for g in allg if isld(g)]
    return setup, loads

def tail_setup():
    return [[l] for l in lines(f"""
    s_lshl_b32 s36, s24, 14
    s_add_u32 s36, s36, {RED}
    s_lshr_b32 s5, s27, 1
    s_lshl_b32 s5, s5, 15
    s_and_b32 s49, s27, 1
    s_lshl_b32 s49, s49, 11
    s_add_u32 s5, s5, s49
    s_add_u32 s5, s5, s36
    v_lshl_add_u32 v240, v1, 4, s5
    s_lshl_b32 s6, s27, 12
    s_add_u32 s6, s6, s36
    v_lshl_add_u32 v241, v1, 4, s6
    s_or_b32 s7, s27, 1
    s_lshl_b32 s7, s7, 12
    s_add_u32 s7, s7, s36
    s_add_u32 s7, s7, {1024 + 512}
    v_lshl_add_u32 v242, v5, 4, s7
    v_lshlrev_b32 v243, 13, v6
    v_lshl_add_u32 v243, v5, 4, v243
    v_add_u32 v243, {RED + 4096 + 1024 + 512}, v243
    s_and_b32 s36, s27, 1
    s_cmp_eq_u32 s36, 1
    s_cselect_b32 s101, -1, 0
    s_mov_b32 s100, 0
    s_lshr_b32 s4, s27, 1
    s_add_u32 s4, s4, s28
    s_lshl_b32 s4, s4, 15
    s_lshl_b32 s49, s40, 11
    s_add_u32 s4, s4, s49
    s_lshl_b32 s49, s36, 10
    s_add_u32 s4, s4, s49
    s_add_u32 s4, s4, {WS_O}
    s_lshl_b32 s92, s25, 9
    s_add_u32 s92, s92, {F3}
    v_lshl_add_u32 v238, v5, 4, s92
    v_lshlrev_b32 v239, 12, v1
    s_lshl_b32 s93, s25, 18
    s_lshl_b32 s36, s26, 7
    s_add_u32 s93, s93, s36
    s_and_b32 s36, s3, 3
    s_lshl_b32 s36, s36, 5
    s_add_u32 s93, s93, s36
    s_add_u32 s93, s93, {WS_YT}
    """)]

def att_split():
    su, ld = att_pre_groups()
    su = su + tail_setup()
    sc = [g for g in su if g[0].startswith('s_')]
    ve = [g for g in su if not g[0].startswith('s_')]
    return sc, ve, ld

def emit_groups(a, gs):
    for g in gs:
        for l in g: a(l)

def att_zero():
    return [[f'v_mov_b64 {v(OA+r,2)}, 0'] for r in range(0, 32, 2)] + [[f'v_mov_b64 {v(PB+8+r,2)}, 0'] for r in range(0, 8, 2)] + [[f'v_mov_b64 {v(SB+28+r,2)}, 0'] for r in range(0, 4, 2)]

def att_first(a, nout):
    a(f"""
    s_waitcnt vmcnt({nout})
    s_mov_b64 exec, s[42:43]
    v_mov_b32 v{QF+6}, 0
    v_mov_b32 v{QF+7}, 0
    v_mov_b32 v{QF+14}, 0
    v_mov_b32 v{QF+15}, 0
    s_mov_b64 exec, s[44:45]
    v_mov_b32 v{QF+0}, 0
    v_mov_b32 v{QF+1}, 0
    v_mov_b32 v{QF+8}, 0
    v_mov_b32 v{QF+9}, 0
    s_mov_b64 exec, -1
    v_mfma_f32_32x32x16_bf16 {v(SB,16)}, {v(KB,4)}, {v(QF,4)}, 0
    v_mfma_f32_32x32x16_bf16 {v(SB,16)}, {v(KB+4,4)}, {v(QF+4,4)}, {v(SB,16)}
    """)

def ph_att(a):
    a.label('L_att')
    att_first(a, 4*(NB-1))
    a('s_nop 9')
    a.label('L_att2')
    a('v_lshlrev_b32 v2, 4, v1\ns_mov_b32 s37, 0')
    a(f's_cmp_{PRIO_CMP}_u32 s3, 4\ns_cbranch_scc1 A_noprio\ns_setprio 1')
    a.label('A_noprio')
    stamp(a, 6)
    a('.p2align 6')
    def iteration(last):
        vm = [-3]*4 + [-2]*4 + [-1]*4
        nwo = [0]
        def wo():
            r = nwo[0]; nwo[0] += 1
            return [f's_add_u32 m0, s51, {r*8192}', f's_add_u32 s48, s50, {r*28672}', 'buffer_load_dwordx4 v8, s[8:11], s48 offen lds']
        for u in range(2*NB):
            t = u % 2
            kn = ((u + 1) // 2) % NB
            vn = ((u - 1) // 2) % NB
            Sn = SB + 16*((u+1) % 2); Sc = SB + 16*(u % 2)
            Pc = PB + 8*(u % 2); Pp = PB + 8*((u+1) % 2)
            Qn = QF + 8*(1-t); On = OA + 16*(1-t)
            ins = {}
            if u % 2 == 1:
                j = (u - 1) // 2
                t1 = Asm(); loadV(t1, (j - 1) % NB); t2 = Asm(); advK(t2); t3 = Asm(); loadK(t3, j % NB)
                if not last:
                    a(f's_waitcnt vmcnt({4*(NB-2)})')
                    ins = {(0, 1): t1.lines, (1, 1): t2.lines, (2, 1): t3.lines[:1], (3, 1): t3.lines[1:]}
                else:
                    need = max(i for i, x in enumerate(vm) if x == j - 3)
                    a(f's_waitcnt vmcnt({len(vm) - 1 - need})')
                    if j == 0: ins[(0, 1)] = t1.lines
            if last and u >= 1 and 'nowo' not in DBG:
                for g in (1, 3):
                    if nwo[0] < 12: ins[(g, 1)] = wo()
            if last and u == PRIO_U: a('s_setprio 0')
            M = [f'v_mfma_f32_32x32x16_bf16 {v(Sn,16)}, {v(KB+8*kn,4)}, {v(Qn,4)}, 0',
                 f'v_mfma_f32_32x32x16_bf16 {v(Sn,16)}, {v(KB+8*kn+4,4)}, {v(Qn+4,4)}, {v(Sn,16)}',
                 f'v_mfma_f32_32x32x16_bf16 {v(On,16)}, {v(VB+8*vn,4)}, {v(Pp,4)}, {v(On,16)}',
                 f'v_mfma_f32_32x32x16_bf16 {v(On,16)}, {v(VB+8*vn+4,4)}, {v(Pp+4,4)}, {v(On,16)}']
            M = [M[2], M[0], M[1], M[3]]
            if last and u == 2*NB - 1: M[1] = M[2] = None
            for g in range(4):
                if M[g]: a(M[g])
                for e in range(4):
                    a(f'v_exp_f32 v{Sc+4*g+e}, v{Sc+4*g+e}')
                    for l in ins.get((g, e), []):
                        a(l)
                        if l.startswith('buffer_'): vm.append('w' if 'lds' in l else 0)
                    if e in (0, 2):
                        h = e // 2
                        if g > 0: a(f'v_cvt_pk_bf16_f32 v{Pc+2*(g-1)+h}, v{Sc+4*(g-1)+2*h}, v{Sc+4*(g-1)+2*h+1}')
                        else:     a(f'v_cvt_pk_bf16_f32 v{Pp+6+h}, v{Sn+12+2*h}, v{Sn+13+2*h}')
    a.label('A_loop')
    iteration(False)
    a(f"""
    s_add_u32 s37, s37, 1
    s_cmp_eq_u32 s37, s35
    s_cbranch_scc1 A_last
    s_cmp_lg_u32 s37, 1
    s_cbranch_scc1 A_loop
    s_cmp_lt_u32 s3, 4
    s_cbranch_scc1 A_loop
    """)
    signal(a, 32, 9, 10)
    a('s_branch A_loop')
    a.label('A_last')
    a(f's_cmp_lg_u32 s32, {WS_END}\ns_cbranch_scc1 A_l0\ns_setprio 0\ns_branch A_l2')
    a.label('A_l0')
    a('s_cmp_lt_u32 s3, 4\ns_cbranch_scc1 A_l1')
    a('buffer_load_dwordx4 v[196:199], v238, s[16:19], 0 offen sc1')
    a.label('A_l1')
    gwait(a, 4, 8, 9)
    a.label('A_l2')
    iteration(True)
    a.label('A_exit')
    a('s_setprio 0')
    stamp(a, 7)
    a(f'v_cvt_pk_bf16_f32 v{PB+14}, v{SB+28}, v{SB+29}')
    a(f'v_cvt_pk_bf16_f32 v{PB+15}, v{SB+30}, v{SB+31}')
    a(f'v_mfma_f32_32x32x16_bf16 {v(OA+16,16)}, {v(VB+8*(NB-1),4)}, {v(PB+8,4)}, {v(OA+16,16)}')
    a(f'v_mfma_f32_32x32x16_bf16 {v(OA+16,16)}, {v(VB+8*(NB-1)+4,4)}, {v(PB+12,4)}, {v(OA+16,16)}')
    a('s_mov_b32 s94, 0')
    a.label('A_red')
    for own in range(4):
        for q in range(2):
            a(f'ds_write_b128 v240, {v(OA + 8*own + 4*q, 4)} offset:{own*4096 + q*1024}')
    a('s_cmp_ge_u32 s23, 28\ns_cbranch_scc1 A_ny\ns_cmp_lt_u32 s3, 4\ns_cbranch_scc1 A_ny\ns_cmp_lg_u32 s94, 0\ns_cbranch_scc1 A_ny')
    for i in range(4): a(f'v_xor_b32 v{196+i}, s20, v{196+i}')
    a('v_or3_b32 v196, v196, v197, v198\nv_or_b32 v196, v196, v199\nv_cmp_ne_u32 vcc, 0, v196')
    a('s_add_u32 s92, s93, 16\ns_nop 3\ns_cbranch_vccz A_y')
    poll(a, 'PL_f3', 238, 196, x4=True)
    a.label('A_y')
    a('buffer_load_dwordx4 v[196:199], v239, s[16:19], s93 offen')
    a('buffer_load_dwordx4 v[212:215], v239, s[16:19], s92 offen')
    a.label('A_ny')
    a('s_waitcnt lgkmcnt(0)\ns_barrier')
    R = 64
    so = lambda src: (src >> 1) * 32768 + (src & 1) * 2048
    for src in range(4):
        a(f'ds_read_b32 v{12+src}, v242 offset:{so(src)}')
    for src in range(4):
        for q in range(2):
            a(f'ds_read_b128 {v(R + 8*src + 4*q, 4)}, v241 offset:{so(src) + q*1024}')
    a(f"""
    s_waitcnt lgkmcnt(8)
    v_add_f32 v12, v12, v13
    v_add_f32 v14, v14, v15
    v_add_f32 v12, v12, v14
    v_rcp_f32 v12, v12
    s_waitcnt lgkmcnt(0)
    """)
    a('v_cndmask_b32 v13, v12, 0, s[100:101]')
    for r in range(8):
        a(f'v_add_f32 v{R+r}, v{R+r}, v{R+8+r}')
        a(f'v_add_f32 v{R+16+r}, v{R+16+r}, v{R+24+r}')
    for r in range(8): a(f'v_add_f32 v{R+r}, v{R+r}, v{R+16+r}')
    for r in range(8): a(f'v_mul_f32 v{R+r}, v{R+r}, v{12 if r < 4 else 13}')
    for r in range(4): a(f'v_cvt_pk_bf16_f32 v{R+8+r}, v{R+2*r}, v{R+2*r+1}')
    a(f'buffer_store_dwordx4 {v(R+8,4)}, v2, s[16:19], s4 offen sc1')
    stamp(a, 8)
    for qg in range(2):
        for src in range(4):
            a(f'ds_read_b32 v{80+4*qg+src}, v243 offset:{qg*16384 + so(src)}')
    a(f"""
    s_mov_b32 s36, {f32bits(2.0**-30)}
    s_mov_b32 s37, {f32bits(2.0**40)}
    s_waitcnt lgkmcnt(0)
    v_add_f32 v80, v80, v81
    v_add_f32 v82, v82, v83
    v_add_f32 v84, v84, v85
    v_add_f32 v86, v86, v87
    v_add_f32 v80, v80, v82
    v_add_f32 v84, v84, v86
    v_cmp_nle_f32 vcc, s36, v80
    v_cmp_nge_f32 s[42:43], s37, v80
    v_cmp_nle_f32 s[44:45], s36, v84
    v_cmp_nge_f32 s[60:61], s37, v84
    s_or_b64 s[42:43], s[42:43], vcc
    s_or_b64 s[44:45], s[44:45], s[60:61]
    s_or_b64 s[42:43], s[42:43], s[44:45]
    s_cbranch_scc1 A_slow
    """)
    a.label('A_done')

def ph_slow(a):
    MX = 192
    a.label('A_slow')
    a(f"""
    s_cmp_lg_u32 s94, 0
    s_cbranch_scc1 A_done
    s_waitcnt vmcnt(0)
    s_barrier
    v_mov_b32 v{MX}, 0xff800000
    v_mov_b32 v{MX+1}, 0xff800000
    """)
    for r in range(0, 32, 2): a(f'v_mov_b64 {v(OA+r,2)}, 0')
    a.label('AS_pass')
    a('s_mov_b32 s37, 0')
    a.label('AS_tile')
    loadK(a, 0); loadV(a, 0); advK(a)
    a('s_waitcnt vmcnt(0)')
    for t in range(2):
        Sx = SB + 16*t
        a(f'v_mfma_f32_32x32x16_bf16 {v(Sx,16)}, {v(KB,4)}, {v(QF+8*t,4)}, 0')
        a(f'v_mfma_f32_32x32x16_bf16 {v(Sx,16)}, {v(KB+4,4)}, {v(QF+8*t+4,4)}, {v(Sx,16)}')
    a('s_nop 15\ns_cmp_lg_u32 s94, 0\ns_cbranch_scc1 AS_p1')
    for t in range(2):
        for r in range(0, 16, 2): a(f'v_max3_f32 v{MX+t}, v{SB+16*t+r}, v{SB+16*t+r+1}, v{MX+t}')
    a('s_branch AS_next')
    a.label('AS_p1')
    for t in range(2):
        Sx = SB + 16*t; Px = PB + 8*t
        for r in range(16): a(f'v_sub_f32 v{Sx+r}, v{Sx+r}, v{MX+t}')
        for r in range(16): a(f'v_exp_f32 v{Sx+r}, v{Sx+r}')
        for r in range(8): a(f'v_cvt_pk_bf16_f32 v{Px+r}, v{Sx+2*r}, v{Sx+2*r+1}')
        a(f'v_mfma_f32_32x32x16_bf16 {v(OA+16*t,16)}, {v(VB,4)}, {v(Px,4)}, {v(OA+16*t,16)}')
        a(f'v_mfma_f32_32x32x16_bf16 {v(OA+16*t,16)}, {v(VB+4,4)}, {v(Px+4,4)}, {v(OA+16*t,16)}')
    a.label('AS_next')
    a(f"""
    s_nop 15
    s_add_u32 s37, s37, 1
    s_cmp_lt_u32 s37, s34
    s_cbranch_scc1 AS_tile
    s_cmp_lg_u32 s94, 0
    s_cbranch_scc1 A_red
    s_lshl_b32 s36, s24, 11
    s_add_u32 s36, s36, {RED}
    s_lshl_b32 s38, s27, 9
    s_add_u32 s38, s38, s36
    v_lshl_add_u32 v9, v1, 3, s38
    ds_write_b64 v9, {v(MX,2)}
    v_lshl_add_u32 v9, v5, 3, s36
    s_waitcnt lgkmcnt(0)
    s_barrier
    """)
    for k in range(8): a(f'ds_read_b64 {v(SB+2*k,2)}, v9 offset:{256*k}')
    a('s_waitcnt lgkmcnt(0)')
    for t in range(2):
        for k in range(0, 8, 2): a(f'v_max3_f32 v{MX+t}, v{SB+2*k+t}, v{SB+2*k+2+t}, v{MX+t}')
    a('s_mov_b32 s94, 1\ns_barrier\ns_branch AS_pass')

L_RDY = 118784
def y_piece(a):
    a(f"""
    s_cmp_ge_u32 s23, 28
    s_cbranch_scc1 P_noy
    s_lshl_b32 s36, s29, 11
    s_add_u32 s36, s36, {YL}
    v_add_u32 v203, s36, v2
    ds_write_b128 v203, v[196:199]
    ds_write_b128 v203, v[212:215] offset:1024
    v_lshrrev_b32 v17, 4, v1
    v_and_b32 v18, 3, v1
    v_lshl_add_u32 v17, v17, 2, v18
    v_and_b32 v18, 7, v17
    v_lshrrev_b32 v17, 3, v17
    v_bfe_u32 v19, v1, 2, 2
    v_lshl_add_u32 v18, v18, 3, v19
    v_lshlrev_b32 v18, 4, v18
    v_lshl_add_u32 v18, v17, 3, v18
    v_add_u32 v204, s36, v18
    s_waitcnt lgkmcnt(0)
    ds_read_b64_tr_b16 v[208:209], v204
    ds_read_b64_tr_b16 v[210:211], v204 offset:64
    ds_read_b64_tr_b16 v[216:217], v204 offset:1024
    ds_read_b64_tr_b16 v[218:219], v204 offset:1088
    v_and_b32 v19, 3, v1
    v_lshl_add_u32 v19, v6, 2, v19
    s_lshl_b32 s36, s26, 6
    s_lshl_b32 s37, s29, 4
    s_add_u32 s36, s36, s37
    v_add_u32 v19, s36, v19
    v_mul_u32_u24 v19, 1792, v19
    v_bfe_u32 v17, v1, 2, 3
    v_lshl_add_u32 v205, v17, 4, v19
    s_lshl_b32 s93, s25, 7
    s_add_u32 s93, s93, 896
    s_add_u32 s92, s93, {8*1792}
    s_waitcnt lgkmcnt(0)
    buffer_store_dwordx4 v[208:211], v205, s[12:15], s93 offen {YMOD}
    buffer_store_dwordx4 v[216:219], v205, s[12:15], s92 offen {YMOD}
    """)
    a.label('P_noy')

def ph_out(a):
    a(f"""
    s_and_b32 s29, s3, 3
    v_mov_b32 v15, {L_RDY}
    s_cmp_ge_u32 s3, 4
    s_cbranch_scc1 P_fetch
    ; ---------------- waves 0..3
    s_lshl_b32 s36, s41, {F2S+4}
    s_lshr_b32 s37, s40, 2
    s_lshl_b32 s37, s37, {F2S}
    s_add_u32 s36, s36, s37
    s_and_b32 s37, s40, 3
    s_lshl_b32 s37, s37, 2
    s_add_u32 s36, s36, s37
    s_add_u32 s36, s36, {F2}
    v_lshl_add_u32 v28, v1, {F2S+2}, s36
    v_mov_b32 v29, s20
    v_bfe_u32 v7, v1, 2, 2
    v_xor_b32 v12, s29, v7
    v_lshlrev_b32 v12, 6, v12
    v_bfe_u32 v9, v1, 4, 1
    v_lshl_add_u32 v12, v9, 5, v12
    v_and_b32 v9, 3, v1
    v_lshl_add_u32 v12, v9, 3, v12
    v_lshl_add_u32 v9, v6, 2, v7
    v_lshl_add_u32 v12, v9, 8, v12
    v_add_u32 v13, {224*256}, v12          ; heads 8..15
    s_waitcnt vmcnt(0)
    s_barrier
    """)
    ACC = 224; WF = 32; OF = 160
    def wread(hd):
        for f in range(2):
            for e in range(2):
                row = 28*hd + 16*f + 8*e - (224 if hd >= 8 else 0)
                a(f'ds_read_b64_tr_b16 {v(WF + 8*hd + 4*f + 2*e, 2)}, v{13 if hd >= 8 else 12} offset:{row*256}')
    a('s_lshl_b64 exec, 1, s3\nbuffer_store_dword v29, v28, s[16:19], 0 offen sc1\ns_mov_b64 exec, -1')
    stamp(a, 9)
    for hd in range(13): wread(hd)
    a(f"""
    v_add_u32 v10, {OL}, v2
    s_lshl_b32 s36, s52, 5
    v_add_u32 v11, s36, v5
    v_mul_u32_u24 v11, 1792, v11
    v_lshl_add_u32 v11, v6, 4, v11
    s_lshl_b32 s30, s53, 2
    s_add_u32 s30, s30, s29
    s_lshl_b32 s32, s30, 6
    """)
    a('s_cmp_ge_u32 s30, 14\ns_cbranch_scc1 P_fin')
    stamp(a, 10)
    a(f'v_lshl_add_u32 v14, v1, 2, v15')
    def need(g):
        a('s_waitcnt lgkmcnt(0)')
        a.label(f'P_n{g}')
        a(f'v_cmp_eq_u32 vcc, s20, v28\ns_nop 1\ns_bitcmp1_b32 vcc_lo, {g}\ns_cbranch_scc0 P_r{g}')
        a.label(f'P_g{g}')
    def mf(g):
        for n in range(8):
            c = '0' if (g == ORD[0] and n == 0) else v(ACC, 16)
            a(f'v_mfma_f32_32x32x16_bf16 {v(ACC,16)}, {v(WF + 32*g + 4*n,4)}, {v(OF + 32*(ORD.index(g)%2) + 4*n,4)}, {c}')
    ORD = [0, 1, 2, 3]
    a('ds_read_b32 v28, v14')
    for i, g in enumerate(ORD):
        need(g)
        for n in range(8): a(f'ds_read_b128 {v(OF + 32*(i%2) + 4*n, 4)}, v10 offset:{g*8192 + n*1024}')
        if g == 3:
            for hd in range(13, 16): wread(hd)
        if i < 3: a('ds_read_b32 v28, v14')
        if i > 0: mf(ORD[i-1])
    a('s_waitcnt lgkmcnt(0)')
    mf(ORD[3])
    a.label('P_epi')
    stamp(a, 11)
    T = 40
    for r in range(8): a(f'v_cvt_pk_bf16_f32 v{T+r}, v{ACC+2*r}, v{ACC+2*r+1}')
    for q in range(2):
        a(f'v_permlane32_swap_b32 v{T+4*q}, v{T+4*q+2}')
        a(f'v_permlane32_swap_b32 v{T+4*q+1}, v{T+4*q+3}')
    a(f'buffer_store_dwordx4 {v(T,4)}, v11, s[12:15], s32 offen {OMOD}')
    a(f'buffer_store_dwordx4 {v(T+4,4)}, v11, s[12:15], s32 offen offset:32 {OMOD}')
    a('s_branch P_fin')
    for g in range(4):
        a.label(f'P_r{g}')
        a(f'ds_read_b32 v28, v14\ns_add_u32 s95, s95, 1\ns_cmp_lt_u32 s95, 0x2000000\ns_waitcnt lgkmcnt(0)\ns_cbranch_scc1 P_n{g}\ns_branch P_g{g}')
    a.label('P_fetch')
    a(f"""
    s_lshl_b32 s37, s52, {F2S+2}
    s_lshl_b32 s38, s29, {F2S}
    s_add_u32 s37, s37, s38
    s_add_u32 s37, s37, {F2}
    v_lshl_add_u32 v16, v1, 2, s37
    s_mov_b64 exec, 0xf
    buffer_load_dword v17, v16, s[16:19], 0 offen sc1
    s_mov_b64 exec, -1
    s_lshl_b32 s38, s52, 15
    s_lshl_b32 s39, s29, 13
    s_add_u32 s38, s38, s39
    s_add_u32 s38, s38, {WS_O}
    s_add_u32 s39, s39, {OL}
    s_lshl_b32 s37, s29, 2
    v_add_u32 v15, s37, v15
    v_mov_b32 v14, s20
    s_waitcnt vmcnt(1)
    s_barrier
    s_waitcnt vmcnt(0)
    v_cmp_ne_u32 s[44:45], s20, v17
    """)
    stamp(a, 9)
    a(f's_cmp_lg_u32 s3, 7\ns_cbranch_scc1 P_nowo\ns_mov_b32 s48, {96*1024}\ns_mov_b32 s50, {96*3584}')
    a.label('P_wo')
    a(f"""
    s_mov_b32 m0, s48
    s_add_u32 s48, s48, 1024
    buffer_load_dwordx4 v8, s[8:11], s50 offen lds
    s_add_u32 s50, s50, 3584
    s_cmp_le_u32 s50, {D*D*2}
    s_cbranch_scc1 P_wo
    """)
    a.label('P_nowo')
    if PIPE_POLL:
        a('s_mov_b64 exec, 0xf\ns_mov_b32 s62, 0')
        for k in range(PIPE_POLL - 1):
            a(f'buffer_load_dword v{20+k}, v16, s[16:19], 0 offen sc1\ns_sleep {F2_SLEEP}')
        a.label('PL_f2')
        for k in range(PIPE_POLL):
            a(f'buffer_load_dword v{20+(k+PIPE_POLL-1)%PIPE_POLL}, v16, s[16:19], 0 offen sc1')
            a(f's_waitcnt vmcnt({PIPE_POLL-1})')
            a(f'v_cmp_ne_u32 vcc, s20, v{20+k}\ns_nop 4\ns_cbranch_vccz PL_f2_ok\ns_sleep {F2_SLEEP}')
        a(f's_add_u32 s62, s62, 1\ns_cmp_lt_u32 s62, {POLL_LIMIT}\ns_cbranch_scc1 PL_f2')
        a.label('PL_f2_ok')
        a('s_mov_b64 exec, -1')
    else:
        a('s_and_b32 s44, s44, 15\ns_cbranch_scc0 PL_f2_ok')
        poll(a, 'PL_f2', 16, 17, mask=0xf, sleep=F2_SLEEP)
    stamp(a, 10)
    for hlf in range(2):
        a(f's_add_u32 m0, s39, {hlf*4096}')
        if hlf: a('s_add_u32 s38, s38, 4096')
        else: a('s_nop 0')
        for n in range(4): a(f'buffer_load_dwordx4 v2, s[16:19], s38 offen offset:{n*1024} sc1 lds')
    a('s_waitcnt vmcnt(0)\nds_write_b32 v15, v14')
    stamp(a, 11)
    y_piece(a)
    a('s_cmp_lg_u32 s2, 240\ns_cbranch_scc1 P_fin\ns_cmp_lg_u32 s3, 4\ns_cbranch_scc1 P_fin')
    a(f'v_lshlrev_b32 v16, {F2S}, v5\nv_add_u32 v16, {F2 + (56 << (F2S+2))}, v16')
    poll(a, 'PL_ep', 16, 20, x4=True, sleep=2)
    a(f's_mov_b32 s36, {EPOCH}')
    signal(a, 36, 16, 17)
    a.label('P_fin')

def kernel(a):
    if STAMPS or DIAG >= 0:
        a('v_mov_b32 v254, 0')
        stamp(a, 0)
    prologue(a)
    ph_front(a)
    ph_att(a)
    ph_out(a)
    if DIAG >= 0:
        a('s_waitcnt vmcnt(0)')
        stamp(a, 12)
        a(f"""
        s_cmp_lg_u32 s3, {int(os.environ.get('DIAGW', 0))}
        s_cbranch_scc1 L_end
        s_cmp_ge_u32 s23, 28
        s_cbranch_scc1 L_end
        v_readlane_b32 s36, v254, 0
        v_readlane_b32 s37, v254, {DIAG}
        s_memrealtime s[90:91]
        s_waitcnt lgkmcnt(0)
        s_sub_u32 s36, s37, s36
        s_min_u32 s36, s36, 10000
        s_mov_b32 s37, s90
        """)
        a.label('D_spin')
        a("""
        s_memrealtime s[90:91]
        s_waitcnt lgkmcnt(0)
        s_sub_u32 s38, s90, s37
        s_cmp_lt_u32 s38, s36
        s_cbranch_scc1 D_spin
        """)
    if STAMPS:
        a('s_waitcnt vmcnt(0)')
        stamp(a, 12)
        a(f"""
        s_mov_b32 s18, {WS_STAMP + (1<<20)}
        s_lshl_b32 s36, s2, 3
        s_add_u32 s36, s36, s3
        s_lshl_b32 s36, s36, 6
        s_add_u32 s36, s36, {WS_STAMP}
        v_lshl_add_u32 v2, v1, 2, s36
        s_mov_b64 exec, 0xffff
        buffer_store_dword v254, v2, s[16:19], 0 offen
        s_cmp_lg_u32 s2, 100
        s_cbranch_scc1 L_end
        s_cmp_lg_u32 s3, 0
        s_cbranch_scc1 L_end
        v_readfirstlane_b32 s36, v254
        v_lshlrev_b32 v2, 2, v1
        v_subrev_u32 v254, s36, v254
        s_mov_b64 exec, 0x7ffe
        """)
        srd(a, 56, P_DBG, 256)
        a('buffer_store_dword v254, v2, s[56:59], 0 offen')
    a.label('L_end')
    a('s_endpgm')
    ph_slow(a)

def build(path):
    hdr = open(f'cdna_kernels/{NAME}.s.ref').read().split('\n')
    out = [l for l in hdr if l.startswith(';') and '@launch' not in l][:16]
    out.append(f'; @launch grid=(256,1,1) block=(512,1,1) lds={LDS_TOTAL}')
    out.append('.amdgcn_target "amdgcn-amd-amdhsa--gfx950"')
    out.append('.text')
    label = NAME + '_kernel'
    a = Asm(); kernel(a)
    txt = '\n'.join(out) + f'\n.globl {label}\n.p2align 8\n.type {label},@function\n{label}:\n' + a.finalize()
    txt += f'''.section .rodata,"a"
.p2align 6
.amdhsa_kernel {label}
  .amdhsa_next_free_vgpr 256
  .amdhsa_next_free_sgpr 102
  .amdhsa_accum_offset 256
  .amdhsa_group_segment_fixed_size 0
  .amdhsa_kernarg_size 104
  .amdhsa_user_sgpr_count 2
  .amdhsa_user_sgpr_kernarg_segment_ptr 1
  .amdhsa_system_sgpr_workgroup_id_x 1
.end_amdhsa_kernel
'''
    open(path, 'w').write(txt)

if __name__ == '__main__':
    if '--stamps' in sys.argv: STAMPS = True; sys.argv.remove('--stamps')
    path = sys.argv[1] if len(sys.argv) > 1 else f'cdna_kernels/{NAME}.s'
    build(path)
    import subprocess
    subprocess.run(['clang', '-x', 'assembler', '-target', 'amdgcn-amd-amdhsa', '-mcpu=gfx950', '-c', path, '-o', '_sz.o'], check=True)
    hdr = subprocess.run(['llvm-objdump', '-h', '_sz.o'], capture_output=True, text=True).stdout
    size = int([l for l in hdr.splitlines() if '.text' in l][0].split()[2], 16)
    CODE_KB[0] = size // 1024 - 1
    _gw[0] = 0
    build(path)
    print('code bytes', size)
```

```python
import sys, math, struct, os, re
DBG = os.environ.get('DBG', '')
sys.path.insert(0, 'work')
from asmgen import *

STAMPS = False
NAME = 'concat_heads__mha_block__ssm_conv_s4d__prompt'
S = 2048; D = 448; H = 16; DH = 28
TILEB = 56 * 512
FS = int(os.environ.get('FS', 4))
F0 = 0; F1 = 32768; F2 = 65536; EPOCH = 98304; F3 = 102400
WS_Q = 131072
WS_K = WS_Q + 64 * TILEB
WS_V = WS_K + 64 * TILEB
WS_O = WS_V + 64 * TILEB
WS_UT = WS_O + 64 * 32768
WS_YT = WS_UT + 112 * 16384
WS_END = WS_YT + 224 * 8192
WS_STAMP = 16 << 20
LDS_TOTAL = 163840
POLL_LIMIT = 1000000
PRIO_IT = 3
REQ_POS = int(os.environ.get('REQ_POS', 1))
D_FROM = int(os.environ.get('D_FROM', 11))
LORD = int(os.environ.get('LORD', 0))
D2J = int(os.environ.get('D2J', 99))
DEPTH2 = int(os.environ.get('DEPTH2', 6))
PRE_C = float(os.environ.get('PRE_C', 1.6))
B_FIRST = int(os.environ.get('B_FIRST', 1))
GS = eval(os.environ.get('GS', '(1,2,3,4,5,6,7,8,9)'))
BW = eval(os.environ.get('BW', '[0,4,3,3,1,3,3,2,2,2,2,2,2,3]'))
PRIO_U = int(os.environ.get('PRIO_U', 4))
SIG_CUT = float(os.environ.get('SIG_CUT', 0.4))
LOOK_POS = int(os.environ.get('LOOK_POS', 1))
F2S = int(os.environ.get('F2S', 7))
PIPE_POLL = int(os.environ.get('PIPE_POLL', 0))
F2_SLEEP = int(os.environ.get('F2_SLEEP', 1))
AMAP = int(os.environ.get('AMAP', 0))
LITE_SLEEP = int(os.environ.get('LITE_SLEEP', 10))
B_PRE = int(os.environ.get('B_PRE', 10))
B_LAST = int(os.environ.get('B_LAST', 13))
D_PER = int(os.environ.get('D_PER', 0))
PKMUL = int(os.environ.get('PKMUL', 0))
NBP = int(os.environ.get('NBP', 7))
KM_PTS = eval(os.environ.get('KM_PTS', '(7, 13)'))
B_PRIO = int(os.environ.get('B_PRIO', 0))
KM_SPLIT = int(os.environ.get('KM_SPLIT', 10))
A_SLEEP0 = int(os.environ.get('A_SLEEP0', 12))
KM_J = int(os.environ.get('KM_J', 1))
BPRE_J = int(os.environ.get('BPRE_J', 0))
A_SLEEP = int(os.environ.get('A_SLEEP', 1))
FILL_MAX = int(os.environ.get('FILL_MAX', 16))
YMOD = os.environ.get('YMOD', 'nt')
OMOD = os.environ.get('OMOD', 'nt')
SPREAD = int(os.environ.get('SPREAD', 1))
CODE_KB = [1]
CODE_PF = int(os.environ.get('CODE_PF', 1))
NA = int(os.environ.get('NA', 16))
PRIO_LEFT = int(os.environ.get('PRIO_LEFT', 1))
CONV_PRIO = int(os.environ.get('CONV_PRIO', 0))
PRIO_CMP = 'lt'
SCHED_C = [3, 3, 3, 1, 1]
U_ISS = int(os.environ.get('U_ISS', -1)); U_TR = int(os.environ.get('U_TR', 4)); F0_SIG = int(os.environ.get('F0_SIG', 7))
F0_TRY = (7, 10)
F0_LAG = 2
PRE_ST = int(os.environ.get('PRE_ST', 2))
CONV_T0 = int(os.environ.get('CONV_T0', 22))
XMOD = os.environ.get('XMOD', '')
F1_SLEEP = 8
KG_CUT = float(os.environ.get('KG_CUT', 0.4))
LD_PER = int(os.environ.get('LD_PER', 50))

def f32bits(x): return struct.unpack('<I', struct.pack('<f', x))[0]
QSCALE = math.log2(math.e) / math.sqrt(DH)
LOG2E = math.log2(math.e)
P_X, P_W, P_WO, P_U, P_LA, P_AI, P_CR, P_CI, P_DT, P_DS, P_OUT, P_DBG, P_WS = [64 + 2*i for i in range(13)]

DIAG = int(os.environ.get('DIAG', -1))
def stamp(a, n):
    if STAMPS or (DIAG >= 0 and n in (0, DIAG)):
        a('s_memrealtime s[90:91]')
        a('s_waitcnt lgkmcnt(0)')
        a(f'v_writelane_b32 v254, s90, {n}')
        if n in (6, 7) and os.environ.get('CYC'):
            a('s_memtime s[90:91]')
            a('s_waitcnt lgkmcnt(0)')
            a(f'v_writelane_b32 v254, s90, {n+7}')

def srd(a, base_s, ptr_s, nbytes):
    a(f's_mov_b32 s{base_s}, s{ptr_s}')
    a(f's_and_b32 s{base_s+1}, s{ptr_s+1}, 0xffff')
    a(f's_mov_b32 s{base_s+2}, {nbytes}')
    a(f's_mov_b32 s{base_s+3}, 0x20000')

def poll(a, name, voff, tmp, mask=-1, x4=False, sleep=4):
    if mask != -1:
        a(f's_mov_b32 exec_lo, {mask & 0xffffffff}')
        a(f's_mov_b32 exec_hi, {mask >> 32}')
    a('s_mov_b32 s62, 0')
    a.label(name)
    if x4:
        a(f'buffer_load_dwordx4 {v(tmp,4)}, v{voff}, s[16:19], 0 offen sc1')
        a('s_waitcnt vmcnt(0)')
        for i in range(4): a(f'v_xor_b32 v{tmp+i}, s20, v{tmp+i}')
        a(f'v_or3_b32 v{tmp}, v{tmp}, v{tmp+1}, v{tmp+2}')
        a(f'v_or_b32 v{tmp}, v{tmp}, v{tmp+3}')
        a(f'v_cmp_ne_u32 vcc, 0, v{tmp}')
    else:
        a(f'buffer_load_dword v{tmp}, v{voff}, s[16:19], 0 offen sc1')
        a('s_waitcnt vmcnt(0)')
        a(f'v_cmp_ne_u32 vcc, s20, v{tmp}')
    a('s_nop 4')
    a(f's_cbranch_vccz {name}_ok')
    a(f's_sleep {sleep}')
    a('s_add_u32 s62, s62, 1')
    a(f's_cmp_lt_u32 s62, {POLL_LIMIT}')
    a(f's_cbranch_scc1 {name}')
    a.label(name + '_ok')
    a('s_mov_b64 exec, -1')

def signal(a, soff, vt0, vt1):
    a(f'v_mov_b32 v{vt0}, s{soff}')
    a(f'v_mov_b32 v{vt1}, s20')
    a('s_mov_b64 exec, 1')
    a(f'buffer_store_dword v{vt1}, v{vt0}, s[16:19], 0 offen sc1')
    a('s_mov_b64 exec, -1')


CV, C1 = 250, 251
def garrive(a, off):
    a('s_mov_b64 exec, 1')
    a(f'ds_add_u32 v{CV}, v{C1} offset:{off}')
    a('s_mov_b64 exec, -1')
_gw = [0]
def gwait(a, off, target, tmp):
    _gw[0] += 1; name = f'GW{_gw[0]}'
    a.label(name)
    a(f'ds_read_b32 v{tmp}, v{CV} offset:{off}')
    a('s_waitcnt lgkmcnt(0)')
    a(f'v_readfirstlane_b32 s62, v{tmp}')
    a(f's_cmp_ge_u32 s62, {target}')
    a(f's_cbranch_scc1 {name}_ok')
    a('s_sleep 1')
    a('s_add_u32 s95, s95, 1')
    a('s_cmp_lt_u32 s95, 0x2000000')
    a(f's_cbranch_scc1 {name}')
    a.label(name + '_ok')

def prologue(a):
    a(f"""
    s_cmp_ge_u32 s2, 256
    s_cbranch_scc1 L_end
    s_load_dwordx16 s[64:79], s[0:1], 0
    """)
    if CODE_PF:
        a(f"""
        s_getpc_b64 s[96:97]
        s_bfe_u32 s98, s2, 0x20003
        s_lshl_b32 s98, s98, 13
        v_lshl_add_u32 v2, v0, 4, s98
        v_min_u32 v2, {CODE_KB[0]*1024 + 768}, v2
        global_load_dwordx4 v[192:195], v2, s[96:97]
        """)
    a(f"""
    s_load_dwordx8 s[80:87], s[0:1], 64
    s_load_dwordx2 s[88:89], s[0:1], 96
    v_lshrrev_b32 v2, 6, v0
    v_and_b32 v1, 63, v0
    v_readfirstlane_b32 s3, v2
    s_and_b32 s22, s2, 7
    s_lshr_b32 s23, s2, 3
    """)
    a(f"""
    s_and_b32 s27, s22, 1                  ; odd
    s_lshr_b32 s24, s23, 3                 ; cl' (0..3)
    s_lshl_b32 s25, s27, 2
    s_add_u32 s25, s25, s24
    s_and_b32 s26, s23, 7                  ; rbl
    s_lshl_b32 s28, s26, 1
    s_add_u32 s28, s28, s27
    s_cmp_eq_u32 s24, 3
    s_cselect_b32 s25, 3, s25
    s_cselect_b32 s26, s28, s26
    s_lshl_b32 s24, s24, 1
    s_add_u32 s24, s24, s26
    s_lshr_b32 s28, s22, 1
    s_lshl_b32 s28, s28, 3
    s_add_u32 s26, s26, s28                ; rb
    s_mul_i32 s21, s22, 28
    s_add_u32 s21, s21, s23
    s_cmp_ge_u32 s23, 28
    s_cbranch_scc1 L_lite
    """)

def lite_path(a):
    a.label('L_lite')
    a('s_waitcnt lgkmcnt(0)')
    srd(a, 4, P_W, D * 3 * D * 2)
    a(f"""
    s_sub_u32 s36, s23, 28
    s_lshl_b32 s36, s36, 3
    s_add_u32 s36, s36, s3
    s_mul_i32 s36, s36, {14*2688}
    v_lshrrev_b32 v2, 3, v1
    v_min_u32 v4, 5, v2
    v_mul_u32_u24 v2, 2688, v2
    v_mul_u32_u24 v4, 2688, v4
    v_and_b32 v3, 7, v1
    v_lshl_add_u32 v2, v3, 4, v2
    v_lshl_add_u32 v4, v3, 4, v4
    s_add_u32 s37, s36, {TA*896 + 384}
    buffer_load_dwordx4 v[64:67], v2, s[4:7], s37 offen
    s_add_u32 s37, s37, {8*2688}
    buffer_load_dwordx4 v[68:71], v4, s[4:7], s37 offen
    v_lshrrev_b32 v2, 5, v1
    v_mul_u32_u24 v2, 2688, v2
    v_and_b32 v3, 31, v1
    v_lshl_add_u32 v2, v3, 4, v2
    s_mul_i32 s37, s27, 384
    s_add_u32 s36, s36, s37
    """)
    seq = {0: [(TB, i) for i in range(7)] + [(TC, i) for i in range(7)], 1: [(TC, i) for i in range(7)] + [(TB, i) for i in range(7)],
           2: [(t, i) for i in range(7) for t in (TB, TC)], 3: [(TC, i) for i in range(7)]}[LORD]
    for n, (ty, i) in enumerate(seq):
        a(f's_add_u32 s37, s36, {ty*896 + 2*i*2688}')
        a(f'buffer_load_dwordx4 {v(72+4*n,4)}, v2, s[4:7], s37 offen')
    srd(a, 16, P_WS, WS_END)
    srd(a, 12, P_OUT, S * 2 * D * 2)
    a(f"""
    s_mov_b32 s36, {EPOCH}
    buffer_load_dword v253, off, s[16:19], s36 sc1
    s_waitcnt vmcnt(0)
    v_readfirstlane_b32 s20, v253
    s_add_u32 s20, s20, 1
    {'s_endpgm' if 'gemmonly' in DBG else ''}
    """)
    a('s_mov_b32 s95, 0')
    att_poll_addr(a, 176)
    su, _ = att_pre_groups()
    emit_groups(a, su + tail_setup() + att_zero())
    a(f"""
    s_sub_u32 s36, s23, 28
    s_lshl_b32 s36, s36, 3
    s_add_u32 s36, s36, s3
    s_mul_i32 s36, s36, 12544
    v_lshl_add_u32 v2, v1, 4, s36
    """)
    for i in range(13):
        a(f's_mov_b32 s36, {1024*i}')
        a(f'buffer_load_dwordx4 {v(184+4*i,4)}, v2, s[8:11], s36 offen')
    a('s_waitcnt vmcnt(0)')
    a('s_cmp_lg_u32 s3, 0\ns_cbranch_scc1 L_lite1')
    poll(a, 'PL_f1a', 176, 180, mask=1 << 63, x4=True, sleep=4)
    poll(a, 'PL_f1b', 176, 180, x4=True, sleep=1)
    a.label('L_lite1')
    a('s_setprio 2')
    a('s_barrier')
    a('s_branch L_pre')

RING0 = 0; SLOT = 16384; NS = 8; DEPTH = int(os.environ.get('DEPTH', 4)); MAXI = int(os.environ.get('MAXI', 2))
def slot_of(j): return (j + 2) % NS
XYP = 1056; XYCH = 53 * XYP
GP = 8384; GCH = 260 * 16
L_G = 0
L_T2 = 114688; TP = 328; T2CH = 8 * TP * 2
L_U = 131072; UCH = 96 * 80
L_CTL = L_U + 2 * UCH
L_TAB = 147456
L_PART = 49152; PSRC = 1024; POWN = 4096
assert L_CTL + 16 <= L_TAB and 4*GP <= L_PART and 2*XYCH <= L_T2

_PK = [0]
def cmul(o, d, x, e, t):
    if _PK[0]:
        o.append(f'v_pk_mul_f32 {v(t,2)}, {v(x,2)}, {v(e,2)} op_sel:[0,0] op_sel_hi:[1,0]')
        o.append(f'v_pk_fma_f32 {v(d,2)}, {v(x,2)}, {v(e,2)}, {v(t,2)} op_sel:[1,1,0] op_sel_hi:[0,1,1] neg_lo:[1,0,0]')
    else:
        o.append(f'v_mul_f32 v{t}, v{x+1}, v{e+1}')
        o.append(f'v_mul_f32 v{t+1}, v{x}, v{e+1}')
        o.append(f'v_fma_f32 v{d}, v{x}, v{e}, -v{t}')
        o.append(f'v_fma_f32 v{d+1}, v{x+1}, v{e}, v{t+1}')

def lines(txt): return [l.strip() for l in txt.split('\n') if l.strip()]

_KM = {}
PKB = [64, 117]
def _mk():
    pairs_pre = [20, 22, 24, 26, 28, 30, 32, 34, 36, 38, 40, 42, 48, 50, 52, 54]
    for i, r in enumerate(pairs_pre): _KM[r] = 170 + 2*i; _KM[r+1] = 171 + 2*i
    for i, r in enumerate([2, 3, 4, 5, 6, 7, 8, 9]): _KM[r] = 202 + i
    _KM[70] = 48; _KM[71] = 49
    for i, r in enumerate(range(56, 64)): _KM[r] = 40 + i
    for c in range(2):
        for row in range(53): _KM[1000 + 100*c + row] = PKB[c] + row
_mk()
def kmap(l, ch):
    M = _KM
    def one(m): return f'v{M.get(int(m.group(1)), int(m.group(1)))}'
    def rng(m):
        lo = int(m.group(1)); hi = int(m.group(2)); n = M.get(lo, lo); return f'v[{n}:{n+hi-lo}]'
    l = re.sub(r'v\[(\d+):(\d+)\]', rng, l)
    return re.sub(r'\bv(\d+)\b', one, l)

def kgen(ch):
    P = 240 + 4*ch
    _PK[0] = (PKMUL >> ch) & 1
    pre = lines(f"""
    {'s_lshl_b32 s58, s38, 16' if ch == 0 else 's_and_b32 s58, s38, 0xffff0000'}
    v_mov_b32 v4, s58
    v_mul_f32 v4, {f32bits(LOG2E)}, v4
    v_exp_f32 v4, v4
    v_lshlrev_b32 v2, 16, v{P}
    v_lshlrev_b32 v3, 16, v{P+1}
    v_lshlrev_b32 v20, 16, v{P+2}
    v_lshlrev_b32 v21, 16, v{P+3}
    v_cvt_pk_bf16_f32 v4, v4, v4
    v_mul_f32 v2, {f32bits(LOG2E)}, v2
    v_exp_f32 v2, v2
    v_and_b32 v4, 0xffff0000, v4
    v_mul_f32 v3, v3, v4
    v_cvt_pk_bf16_f32 v2, v2, v2
    v_and_b32 v2, 0xffff0000, v2
    v_mul_f32 v2, v2, v4
    v_mul_f32 v2, {f32bits(-LOG2E)}, v2
    v_mul_f32 v3, {f32bits(1/(2*math.pi))}, v3
    v_add_f32 v4, v4, v4
    v_mul_f32 v20, v20, v4
    v_mul_f32 v21, v21, v4
    """)
    E1, E8, E256, E2, E4, E16, E32 = 22, 24, 26, 28, 30, 32, 34
    for (E, p) in ((E1, 1.0), (E8, 8.0), (E256, 256.0)):
        pre += lines(f"""
        v_mul_f32 v6, {f32bits(p)}, v2
        v_mul_f32 v7, {f32bits(p)}, v3
        v_exp_f32 v6, v6
        v_fract_f32 v7, v7
        v_cos_f32 v8, v7
        v_sin_f32 v9, v7
        v_mul_f32 v{E}, v6, v8
        v_mul_f32 v{E+1}, v6, v9
        """)
    cmul(pre, E2, E1, E1, 6); cmul(pre, E16, E8, E8, 8)
    cmul(pre, E4, E2, E2, 6); cmul(pre, E32, E16, E16, 8)
    Y = [48, 50, 52, 54]
    def put(o, row, x, r, neg=False):
        o.append(f'v_cvt_pk_bf16_f32 v{1000+100*ch+row}, v{x}, {"-" if neg else ""}v{x+1}')
    chains = []
    for c in range(4):
        o = []
        cur = {0: None, 1: E8, 2: E16, 3: Y[3]}[c]
        if c == 3: cmul(o, Y[3], E16, E8, 36 + 2*c)
        for step in range(8):
            if cur is None:
                o.append(f'v_mov_b32 v{1000+100*ch+21}, 0x3f80')
                cur = E32; continue
            put(o, 21 + 4*step + c, cur, 44 + c)
            if step < 7: cmul(o, Y[c], cur, E32, 36 + 2*c); cur = Y[c]
        chains.append(o)
    XC, GC, SD, SD2 = 56, 58, 60, 62
    o = []
    put(o, 0, 20, 68, True)
    for step in range(7):
        cmul(o, XC, 20 if step == 0 else XC, E1, 6); put(o, step + 1, XC, 68, True)
    chains.append(o)
    grow = {1: 8, 2: 12, 3: 14, 4: 16, 5: 17, 6: 18, 7: 19, 8: 20}
    G = [58, 10, 12, 58, 58, 58, 58, 58]
    G = [10, 12, 18, 58, 58, 58, 58, 58]
    o = []
    for step in range(8):
        cmul(o, G[step], 20 if step == 0 else G[step-1], E256, 8); put(o, grow[step+1], G[step], 69, True)
    chains.append(o)
    o = [None]*(9 if _PK[0] else 15)
    cmul(o, SD, G[0], E2, 70); put(o, 9, SD, 5, True)
    cmul(o, SD2, G[0], E4, 70); put(o, 10, SD2, 5, True)
    cmul(o, SD, SD2, E2, 70); put(o, 11, SD, 5, True)
    cmul(o, SD2, G[1], E4, 70); put(o, 13, SD2, 5, True)
    cmul(o, SD, G[2], E4, 70); put(o, 15, SD, 5, True)
    chains.append(o)
    body = []
    for k in range(max(len(c) for c in chains)):
        for c in chains:
            if k < len(c) and c[k] is not None: body.append(c[k])
    return [kmap(l, ch) for l in pre], [kmap(l, ch) for l in body]

def kmfma():
    FA = 112; FB = 144; KA = 176; NBF = 8
    o = []
    LA = 5
    for st in range(16 + LA):
        if st < 16:
            o.append(f'ds_read_b128 {v(FA+4*(st%NBF),4)}, v20 offset:{st*64}')
            o.append(f'ds_read_b128 {v(FB+4*(st%NBF),4)}, v21 offset:{st*64}')
        if st >= LA:
            k = st - LA
            o.append(f's_waitcnt lgkmcnt({2*min(LA, 15-k)})')
            o.append(f'v_mfma_f32_16x16x32_bf16 {v(KA,4)}, {v(FA+4*(k%NBF),4)}, {v(FB+4*(k%NBF),4)}, {"0" if k == 0 else v(KA,4)}')
    o += lines(f"""
    ds_write_b16 v26, v32
    v_add_f32 v{KA}, v{KA}, v27
    v_cvt_pk_bf16_f32 v{KA+4}, v{KA}, v{KA+1}
    v_cvt_pk_bf16_f32 v{KA+5}, v{KA+2}, v{KA+3}
    ds_write_b16 v22, v{KA+4}
    ds_write_b16_d16_hi v23, v{KA+4}
    ds_write_b16 v24, v{KA+5}
    ds_write_b16_d16_hi v25, v{KA+5}
    s_waitcnt lgkmcnt(0)
    """)
    return o

def subroutines(a):
    a.label('SUB_KMFMA')
    for l in kmfma(): a(l)
    a('s_setpc_b64 s[90:91]')

def kmaddr(a, ch):
    a(f"""
    v_and_b32 v20, 15, v1
    v_lshrrev_b32 v21, 4, v1
    v_mul_u32_u24 v20, {XYP}, v20
    v_lshl_add_u32 v20, v21, 4, v20
    s_and_b32 s36, s3, 1
    s_mul_i32 s36, s36, {16*XYP}
    s_add_u32 s36, s36, {21*XYP + (1-ch)*XYCH}
    v_add_u32 v21, s36, v20
    s_mul_i32 s36, s63, {16*XYP}
    s_add_u32 s36, s36, {(1-ch)*XYCH}
    v_add_u32 v20, s36, v20
    v_and_b32 v26, 7, v1
    v_mul_u32_u24 v26, {2*TP}, v26
    v_add_u32 v26, {L_T2 + 2*(TP-1) + ch*T2CH}, v26
    v_mov_b32 v32, 0
    """)

def kmskip(a, ch):
    a(f"""
    {'s_lshl_b32 s36, s39, 16' if ch == 0 else 's_and_b32 s36, s39, 0xffff0000'}
    s_cmp_eq_u32 s29, 0
    s_cselect_b32 s36, s36, 0
    v_mov_b32 v27, 0
    v_writelane_b32 v27, s36, 0
    """)
def call(a, name): a(f's_call_b64 s[90:91], {name}')

def gbuild(a, ch, copies):
    g = 64; d = 80
    lo = min(copies); hi = max(copies) + 8
    for i in range(lo, hi): a(f'ds_read_u16 v{g+i}, v{224+i} offset:{ch*T2CH}')
    a('s_waitcnt lgkmcnt(0)')
    for t in copies:
        for i in range(4): a(f'v_lshl_or_b32 v{d+4*t+i}, v{g+t+2*i+1}, 16, v{g+t+2*i}')
        a(f'ds_write_b128 v249, {v(d+4*t,4)} offset:{t*GP + ch*GCH}')

def gtabs(a):
    a(f"""
    v_and_b32 v14, 255, v0
    v_lshlrev_b32 v249, 4, v14
    v_add_u32 v15, {L_TAB}, v249
    """)
    for q in range(3): a(f'ds_read_b128 {v(224+4*q,4)}, v15 offset:{q*4096}')
    a(f'ds_read_b128 v[22:25], v15 offset:{3*4096}')

K_, V_, Q_ = 1, 2, 0
TA, TB, TC = Q_, K_, V_
stages = [[('x',0),(TA,0)], [('x',1),('x',2)], [(TA,1),(TA,2)]]
for _i in range(3, 7): stages.append([('x', _i), (TA, _i)])
_rest = [(TB, i) for i in range(7)] + [(TC, i) for i in range(7)]
for _i in range(7): stages.append(_rest[2*_i:2*_i+2])
NST = len(stages)

def ph_front(a):
    a(f"""
    s_mov_b32 s95, 0
    v_mov_b32 v{CV}, {L_CTL}
    v_mov_b32 v{C1}, 1
    v_lshrrev_b32 v3, 3, v1
    v_and_b32 v4, 7, v1
    s_and_b32 s29, s3, 3                   ; lw
    s_bfe_u32 s63, s3, 0x10001
    s_and_b32 s61, s3, 1
    s_cmp_ge_u32 s3, 4
    s_cbranch_scc1 Q_ssm
    """)
    comp_waves(a)
    a.label('Q_ssm')
    ssm_waves(a)
    lite_path(a)

UV = [220, 221, 222, 252, 255]
def ssm_waves(a):
    a(f"""
    s_setprio {B_PRIO}
    v_and_b32 v14, 255, v0
    s_lshl_b32 s37, s21, 10
    v_lshl_add_u32 v248, v14, 1, s37
    s_lshl_b32 s28, s29, 1
    v_xor_b32 v5, s28, v4
    v_lshlrev_b32 v5, 4, v5
    s_lshl_b32 s30, s26, 6
    s_lshl_b32 s31, s29, 4
    s_add_u32 s30, s30, s31
    v_add_u32 v6, s30, v3
    v_mul_u32_u24 v6, 896, v6
    s_lshl_b32 s31, s25, 7
    v_add_u32 v6, s31, v6
    v_add_u32 v7, v6, v5
    v_xor_b32 v5, 16, v5
    v_add_u32 v6, v6, v5
    v_add_u32 v6, 7168, v6
    s_lshl_b32 s31, s61, 11
    s_mul_i32 s32, s63, {UCH}
    s_add_u32 s31, s31, s32
    s_add_u32 s31, s31, {L_U + 2560}
    s_mov_b32 m0, s31
    s_lshl_b32 s36, s21, 2
    s_waitcnt lgkmcnt(0)
    """)
    srd(a, 16, P_WS, WS_END)
    a(f"""
    s_mov_b32 s33, {EPOCH}
    buffer_load_dword v253, off, s[16:19], s33 sc1
    """)
    for i in range(4):
        srd(a, 40 + 4*i, P_LA + 2*i, D * 256 * 2)
        a(f'buffer_load_ushort v{240+i}, v248, s[{40+4*i}:{43+4*i}], 0 offen nt')
        a(f'buffer_load_ushort v{244+i}, v248, s[{40+4*i}:{43+4*i}], 0 offen offset:512 nt')
    srd(a, 8, P_U, S * D * 2)
    a(f"""
    v_mov_b32 v54, v7
    v_mov_b32 v55, v6
    s_mov_b32 s34, s31
    """)
    if U_ISS < 0:
        a('buffer_load_dwordx4 v54, s[8:11], 0 offen nt lds')
        a('s_add_u32 m0, s34, 1024\ns_nop 0\nbuffer_load_dwordx4 v55, s[8:11], 0 offen nt lds')
    a(f"""
    s_add_u32 s{P_DT}, s{P_DT}, s36
    s_addc_u32 s{P_DT+1}, s{P_DT+1}, 0
    s_add_u32 s{P_DS}, s{P_DS}, s36
    s_addc_u32 s{P_DS+1}, s{P_DS+1}, 0
    s_load_dword s38, s[{P_DT}:{P_DT+1}], 0
    s_load_dword s39, s[{P_DS}:{P_DS+1}], 0
    """)
    srd(a, 12, P_OUT, S * 2 * D * 2)
    a(f"""
    v_and_b32 v5, 1, v1
    v_bfe_u32 v6, v1, 1, 1
    v_lshrrev_b32 v7, 4, v1
    v_add_u32 v2, s28, v5
    v_xor_b32 v7, v7, v2
    v_lshlrev_b32 v7, 4, v7
    v_lshl_add_u32 v7, v6, 3, v7
    v_bfe_u32 v6, v1, 2, 2
    v_lshl_add_u32 v6, v5, 3, v6
    v_lshl_add_u32 v7, v6, 7, v7
    v_add_u32 v50, s31, v7
    v_xor_b32 v51, 64, v50
    s_lshl_b32 s31, s25, 18
    s_lshl_b32 s33, s26, 9
    s_add_u32 s31, s31, s33
    s_lshl_b32 s33, s29, 7
    s_add_u32 s31, s31, s33
    s_add_u32 s31, s31, {WS_UT}
    v_lshlrev_b32 v52, 14, v3
    v_lshl_add_u32 v52, v4, 4, v52
    v_add_u32 v52, s31, v52
    s_lshl_b32 s59, s25, {FS+5}
    s_lshl_b32 s33, s26, {FS}
    s_add_u32 s59, s59, s33
    s_lshl_b32 s33, s29, 2
    s_add_u32 s59, s59, s33
    """)
    kmaddr(a, 1)
    t = Asm()
    t(f"""
    s_mov_b32 s101, {L_G + 4096}
    v_and_b32 v2, 3, v1
    v_mul_u32_u24 v2, {GP}, v2
    v_bfe_u32 v3, v1, 2, 2
    v_lshl_add_u32 v2, v3, 4, v2
    v_bfe_u32 v3, v1, 4, 1
    v_mul_u32_u24 v3, {GCH}, v3
    v_add3_u32 v217, v2, v3, s101
    s_lshl_b32 s36, s21, 1
    s_lshr_b32 s56, s36, 2
    s_lshl_b32 s56, s56, 14
    s_and_b32 s36, s36, 3
    s_lshl_b32 s36, s36, 4
    s_add_u32 s56, s56, s36
    s_add_u32 s56, s56, {WS_UT}
    s_mov_b32 s57, s56
    """)
    for k in range(5):
        t(f"""
        v_add_u32 v2, {64*k}, v1
        v_mul_u32_u24 v3, 205, v2
        v_lshrrev_b32 v3, 10, v3
        v_mul_u32_u24 v4, 5, v3
        v_sub_u32 v4, v2, v4
        v_min_u32 v4, 3, v4
        v_lshl_add_u32 v3, v3, 2, v4
        v_lshlrev_b32 v{UV[k]}, 6, v3
        """)
    t(f"""
    s_lshr_b32 s36, s21, 5
    s_lshl_b32 s36, s36, {FS+5}
    v_and_b32 v17, 31, v1
    v_lshl_add_u32 v223, v17, {FS}, s36
    v_lshrrev_b32 v18, 5, v1
    v_and_b32 v19, 3, v17
    v_sub_u32 v19, 3, v19
    v_mul_u32_u24 v19, {GP}, v19
    v_lshrrev_b32 v2, 2, v17
    v_lshlrev_b32 v3, 1, v18
    v_sub_u32 v2, v3, v2
    v_lshl_add_u32 v19, v2, 3, v19
    s_mul_i32 s36, s61, {GCH}
    s_lshl_b32 s56, s63, 10
    s_sub_u32 s36, s36, s56
    s_add_u32 s36, s36, {L_G + 8*511 - 32*94}
    v_add_u32 v218, s36, v19
    v_mul_u32_u24 v2, 80, v17
    v_lshl_add_u32 v2, v18, 4, v2
    s_mul_i32 s36, s61, {UCH}
    s_mul_i32 s56, s63, {16*80}
    s_sub_u32 s36, s36, s56
    s_add_u32 s36, s36, {L_U + 17*80}
    v_add_u32 v219, s36, v2
    v_mov_b64 v[32:33], 0
    v_mov_b64 v[34:35], 0
    v_and_b32 v14, 255, v0
    v_lshlrev_b32 v36, 4, v14
    v_add_u32 v36, {L_U}, v36
    v_cmp_gt_u32 vcc, 160, v14
    s_mov_b64 exec, vcc
    ds_write_b128 v36, v[32:35]
    ds_write_b128 v36, v[32:35] offset:{UCH}
    s_mov_b64 exec, -1
    ds_write2_b32 v{CV}, v32, v33 offset0:1 offset1:3
    ds_write_b32 v{CV}, v32
    """)
    for l in t.lines: a(l)
    stamp(a, 13)
    if 'nob' in DBG:
        for _ in range(14): a('s_barrier')
        a('s_branch P_fin')
    a('s_waitcnt lgkmcnt(0)')
    p0, b0 = kgen(0); p1, b1 = kgen(1)
    work = [(l, PRE_C) for l in p1] + [(l, 1) for l in b1] + [(l, PRE_C) for l in p0] + [(l, 1) for l in b0]
    if 'nowork' in DBG: work = []
    dump = {c: [f'ds_write_addtid_b32 v{PKB[c]+row} offset:{row*XYP}' for row in range(53)] for c in range(2)}
    for j in range(NST):
        a('s_barrier')
        if j == 0:
            stamp(a, 1)
            a('s_setprio 0')
            gtabs(a)
            kmskip(a, 1)
            scB, veB, _ = att_split()
            emit_groups(a, scB)
        if j == B_FIRST: a(f's_waitcnt vmcnt({2 if U_ISS < 0 else 0})')
        if j == B_FIRST: a('v_add_u32 v253, 1, v253')
        if j == F0_SIG:
            a('s_waitcnt vmcnt(0)')
            signal(a, 59, 2, 3)
        if j == U_ISS:
            a('s_mov_b32 m0, s34\ns_nop 0\nbuffer_load_dwordx4 v54, s[8:11], 0 offen nt lds')
            a('s_add_u32 m0, s34, 1024\ns_nop 0\nbuffer_load_dwordx4 v55, s[8:11], 0 offen nt lds')
        if j == U_TR:
            a(f"""
            s_waitcnt vmcnt(0)
            ds_read_b64_tr_b16 v[54:55], v50
            ds_read_b64_tr_b16 v[56:57], v50 offset:512
            ds_read_b64_tr_b16 v[58:59], v51
            ds_read_b64_tr_b16 v[60:61], v51 offset:512
            s_mov_b32 s36, {8*16384}
            s_lshl_b32 m0, s29, 8
            s_waitcnt lgkmcnt(0)
            {'' if 'noust' in DBG else 'buffer_store_dwordx4 v[54:57], v52, s[16:19], 0 offen sc1'}
            {'' if 'noust' in DBG else 'buffer_store_dwordx4 v[58:61], v52, s[16:19], s36 offen sc1'}
            v_readfirstlane_b32 s20, v253
            """)
            for r in range(22, 26): a(f'v_add_u32 v{r}, {T2CH}, v{r}')
        if B_FIRST <= j <= B_LAST:
            tot = sum(c for _, c in work); budget = tot * BW[j] / sum(BW[j:B_LAST+1])
            while work and (budget > 0 or j == B_LAST):
                l, c = work.pop(0); a(l); budget -= c
        if D_FROM <= j < NST - 1:
            for l in dump[1][:D_PER]: a(l)
            dump[1] = dump[1][D_PER:]
    assert not work
    a(f's_mov_b64 exec, 1\nds_write_b32 v{CV}, v253 offset:8\ns_mov_b64 exec, -1')
    a('s_cmp_eq_u32 s3, 4\ns_cselect_b32 s60, 1, 0\ns_cbranch_scc0 Q_nof0a')
    a('buffer_load_dwordx4 v[28:31], v223, s[16:19], 0 offen sc1')
    a.label('Q_nof0a')
    for l in dump[1]: a(l)
    a(f's_lshl_b32 s36, s29, 8\ns_add_u32 m0, s36, {XYCH}\ns_nop 0')
    for l in dump[0]: a(l)
    stamp(a, 2)
    if 'gemmonly' in DBG: a('s_branch P_fin')
    def nop(): pass
    def udma():
        a('s_add_u32 s56, s57, 16')
        for ch in range(2):
            for k in range(5):
                a(f's_mov_b32 m0, {L_U + 32*80 + ch*UCH + 1024*k}')
                a(f'buffer_load_dwordx4 v{UV[k]}, s[16:19], s{57-ch} offen sc1 lds')
    def look(tag, last=False):
        a(f's_cmp_eq_u32 s60, 0\ns_cbranch_scc1 Q_lk{tag}')
        if last:
            poll(a, 'PL_f0', 223, 28, x4=True, sleep=1)
        else:
            a('s_waitcnt vmcnt(0)')
            for i in range(4): a(f'v_xor_b32 v{28+i}, s20, v{28+i}')
            a('v_or3_b32 v28, v28, v29, v30\nv_or_b32 v28, v28, v31\nv_cmp_ne_u32 vcc, 0, v28')
            a(f's_nop 4\ns_cbranch_vccz Q_lg{tag}')
            a('buffer_load_dwordx4 v[28:31], v223, s[16:19], 0 offen sc1')
            a(f's_branch Q_lk{tag}')
            a.label(f'Q_lg{tag}')
        a('s_call_b64 s[90:91], Q_udma')
        a.label(f'Q_lk{tag}')
    a('s_waitcnt lgkmcnt(0)\ns_barrier')
    stamp(a, 3)
    look('z')
    for l in kmfma(): a(l)
    if LOOK_POS == 0: look('b')
    a('s_barrier')
    stamp(a, 14)
    if LOOK_POS == 1: look('b')
    a('s_mov_b32 exec_hi, 0\nds_write_b128 v217, v[32:35]\ns_mov_b32 exec_hi, -1')
    gbuild(a, 1, (0, 1, 2, 3))
    a(f's_cmp_lg_u32 s3, 4\ns_cbranch_scc1 Q_u0\ns_cmp_lg_u32 s60, 0\ns_cbranch_scc1 Q_u0\ns_waitcnt vmcnt(0)\nds_write_b32 v{CV}, v{C1}')
    a.label('Q_u0')
    a('s_waitcnt lgkmcnt(0)\ns_barrier')
    a('s_cmp_eq_u32 s60, 0\ns_cbranch_scc1 Q_uw')
    look('c', True)
    a('s_waitcnt vmcnt(0)')
    a(f'ds_write_b32 v{CV}, v{C1}')
    a.label('Q_uw')
    gwait(a, 0, 1, 2)
    stamp(a, 4)
    if CONV_PRIO: a('s_setprio 1')
    SC = 4; sc = [0]
    def sarr():
        a('s_waitcnt lgkmcnt(0)'); garrive(a, SC); sc[0] += 4
    Y0, Y1 = 176, 192
    FR = 32; NBUF = 4
    def boff(n): return (n // 2) * 80 + (n % 2) * 32
    def ld(t):
        b = FR + 16 * (t % NBUF); ao = 32*(31-t)
        return [f'ds_read_b64 {v(b,2)}, v218 offset:{ao + 2048}',
                f'ds_read_b64 {v(b+2,2)}, v218 offset:{ao + 2056}',
                f'ds_read_b128 {v(b+4,4)}, v219 offset:{boff(31-t)}',
                f'ds_read_b128 {v(b+8,4)}, v219 offset:{boff(31-t) + 2560}',
                f'ds_read_b64 {v(b+12,2)}, v218 offset:{ao}',
                f'ds_read_b64 {v(b+14,2)}, v218 offset:{ao + 8}']
    def mm(t, first):
        b = FR + 16 * (t % NBUF)
        return [f'v_mfma_f32_32x32x16_bf16 {v(Y0,16)}, {v(b,4)}, {v(b+4,4)}, {"0" if first else v(Y0,16)}',
                f'v_mfma_f32_32x32x16_bf16 {v(Y1,16)}, {v(b,4)}, {v(b+8,4)}, {"0" if first else v(Y1,16)}',
                f'v_mfma_f32_32x32x16_bf16 {v(Y1,16)}, {v(b+12,4)}, {v(b+4,4)}, {v(Y1,16)}']
    for l in ld(0) + ld(1): a(l)
    t_ = Asm()
    t_(f"""
    s_lshl_b32 s36, s29, 12
    s_add_u32 s36, s36, {L_PART}
    v_lshl_add_u32 v216, v1, 4, s36
    s_xor_b32 s36, s36, 8192
    v_lshl_add_u32 v217, v1, 4, s36
    s_lshl_b32 s36, s21, 13
    s_lshl_b32 s60, s61, 12
    s_add_u32 s36, s36, s60
    s_lshl_b32 s60, s63, 11
    s_add_u32 s36, s36, s60
    s_add_u32 s36, s36, {WS_YT}
    v_and_b32 v220, 31, v1
    v_lshrrev_b32 v221, 5, v1
    v_lshlrev_b32 v220, 6, v220
    v_lshl_add_u32 v220, v221, 4, v220
    v_add_u32 v220, s36, v220
    s_mov_b32 s60, s63
    """)
    fillA = [[l] for l in t_.lines]
    _, fillB = att_pre_groups()
    fillA += veB
    if 'nofillc' in DBG:
        emit_groups(a, fillA); fillA = []; stamp(a, 4)
    T0 = CONV_T0
    def take(q, k):
        for _ in range(k):
            if q:
                for l in q.pop(0): a(l)
    if T0 >= 32: fillB = []
    perA = -(-len(fillA) // (3*min(T0, 30))); perB = -(-len(fillB) // (3*max(30 - T0, 1)))
    for t in range(32):
        if t == T0:
            gwait(a, 12, 1, 2)
        else:
            a(f's_waitcnt lgkmcnt({6 if t < 31 else 0})')
        if 'cstamp' in DBG and t in (12, 22): stamp(a, 13 if t == 12 else 14)
        L = ld(t + 2) if t + 2 < 32 else []
        M = mm(t, t == 0)
        q, per = (fillA, perA) if t < T0 else (fillB, perB)
        a(M[0])
        for l in L[:2]: a(l)
        take(q, per)
        a(M[1])
        for l in L[2:4]: a(l)
        take(q, per)
        a(M[2])
        for l in L[4:]: a(l)
        take(q, per)
    assert not fillA and not fillB
    if 'cstamp' in DBG: stamp(a, 3)
    a('s_setprio 1')
    PR = 208 + 16
    PR = 64
    a('s_cmp_eq_u32 s60, 0\ns_cbranch_scc1 S_h0')
    for hf in (1, 0):
        keep = Y1 if hf else Y0; send = Y0 if hf else Y1
        if hf == 0: a.label('S_h0')
        for q in range(4): a(f'ds_write_b128 v216, {v(send + 4*q, 4)} offset:{q*1024}')
        a('s_waitcnt lgkmcnt(0)'); garrive(a, SC)
        gwait(a, SC, 4, 2)
        for q in range(4): a(f'ds_read_b128 {v(PR + 4*q, 4)}, v217 offset:{q*1024}')
        for q in range(4):
            a(f's_waitcnt lgkmcnt({3-q})')
            for e in range(4): a(f'v_add_f32 v{PR+4*q+e}, v{PR+4*q+e}, v{keep+4*q+e}')
        if hf == 1: a('s_branch S_h1')
    a.label('S_h1')
    garrive(a, SC)
    stamp(a, 5)
    for r in range(8): a(f'v_cvt_pk_bf16_f32 v{176+r}, v{PR+2*r}, v{PR+2*r+1}')
    for q in range(2):
        a(f'v_permlane32_swap_b32 v{176+4*q}, v{176+4*q+2}')
        a(f'v_permlane32_swap_b32 v{176+4*q+1}, v{176+4*q+3}')
    a('buffer_store_dwordx4 v[176:179], v220, s[16:19], 0 offen sc1')
    a('buffer_store_dwordx4 v[180:183], v220, s[16:19], 0 offen offset:32 sc1')
    emit_groups(a, att_zero())
    a('s_branch L_att')
    a.label('Q_udma')
    udma()
    a('s_mov_b32 s60, 0\ns_setpc_b64 s[90:91]')

def comp_waves(a):
    XF = 64; ACC = {K_: 176, V_: 192, Q_: 208}; WB = [[8 + 4*i for i in range(8)], [224 + 4*i for i in range(4)] + [40 + 4*i for i in range(4)]]
    a(f"""
    s_sub_u32 s28, s24, 7
    s_cmp_ge_u32 s24, 7
    s_cselect_b32 s27, s28, s24            ; rho
    s_lshl_b32 s30, s29, 4
    v_add_u32 v5, s30, v3
    v_lshrrev_b32 v6, 1, v5
    v_and_b32 v6, 7, v6
    v_xor_b32 v6, v6, v4
    v_lshlrev_b32 v6, 4, v6
    s_lshl_b32 s30, s26, 6
    v_add_u32 v7, s30, v5
    v_mul_u32_u24 v7, 896, v7
    v_add_u32 v244, v7, v6
    v_xor_b32 v6, 64, v6
    v_add_u32 v245, v7, v6
    v_add_u32 v245, 7168, v245
    v_lshrrev_b32 v6, 1, v5
    v_and_b32 v6, 1, v6
    v_lshlrev_b32 v6, 2, v6
    v_xor_b32 v6, v6, v4
    v_lshlrev_b32 v6, 4, v6
    v_mul_u32_u24 v7, 2688, v5
    v_add_u32 v246, v7, v6
    s_lshl_b32 s30, s25, 7
    v_add_u32 v246, s30, v246
    v_add_u32 v247, 21504, v246
    s_lshl_b32 s32, s29, 11
    s_lshl_b32 s40, s27, 7
    s_mul_i32 s48, s27, {64*2688}
    s_waitcnt lgkmcnt(0)
    """)
    srd(a, 8, P_X, S * D * 2)
    srd(a, 4, P_W, D * 3 * D * 2)
    def issue(j):
        o = []
        for half, (kind, i) in enumerate(stages[j]):
            base = RING0 + slot_of(j) * SLOT + half * 8192
            for e in range(2):
                g = [f's_add_u32 m0, s32, {base + e*1024}']
                if kind == 'x':
                    g.append(f'buffer_load_dwordx4 v{244+e}, s[8:11], s{40+i} offen {XMOD} lds')
                else:
                    so = f's{48+i}'
                    if kind:
                        so = 's37'
                        if e == 0: g.append(f's_add_u32 s37, s{48+i}, {kind*896}')
                    g.append(f'buffer_load_dwordx4 v{246+e}, s[4:7], {so} offen lds')
                o.append(g)
        return o
    vm = []
    def waitfor(tag):
        last = max(i for i, t in enumerate(vm) if t == tag)
        a(f's_waitcnt vmcnt({len(vm) - 1 - last})')
    def em(l, tag='st'):
        a(l)
        if l.startswith('buffer_'): vm.append(tag)
    def issue_now(j):
        for g in issue(j):
            for l in g: em(l, j)
    issue_now(0)
    a(f's_lshl_b32 s36, s21, 2\ns_add_u32 s{P_DS}, s{P_DS}, s36\ns_addc_u32 s{P_DS+1}, s{P_DS+1}, 0\ns_load_dword s39, s[{P_DS}:{P_DS+1}], 0')
    for i in range(1, 7):
        if i == 3: issue_now(1)
        a(f's_add_u32 s27, s27, 1\ns_cmp_eq_u32 s27, 7\ns_cselect_b32 s27, 0, s27\ns_lshl_b32 s{40+i}, s27, 7\ns_mul_i32 s{48+i}, s27, {64*2688}')
    srd(a, 16, P_WS, WS_END)
    srd(a, 12, P_OUT, S * 2 * D * 2)
    a(f"""
    v_lshlrev_b32 v6, 3, v0
    v_sub_u32 v6, 2047, v6
    v_mov_b32 v17, {L_T2}
    v_mov_b32 v18, {TP}
    v_lshlrev_b32 v19, 4, v0
    v_add_u32 v19, {L_TAB}, v19
    s_mov_b32 s36, 0
    """)
    a.label('Q_tab')
    for i in (0, 2):
        a(f"""
        v_subrev_u32 v7, {i}, v6
        v_subrev_u32 v8, {i+1}, v6
        v_cvt_f32_i32 v2, v7
        v_cvt_f32_i32 v5, v8
        v_cvt_pk_bf16_f32 v2, v2, v5
        v_and_b32 v5, 0xffff0000, v2
        v_lshlrev_b32 v2, 16, v2
        v_cvt_i32_f32 v2, v2
        v_cvt_i32_f32 v5, v5
        v_and_b32 v7, 7, v2
        v_and_b32 v8, 7, v5
        v_ashrrev_i32 v2, 3, v2
        v_ashrrev_i32 v5, 3, v5
        v_mad_u32_u24 v2, v7, v18, v2
        v_mad_u32_u24 v5, v8, v18, v5
        v_lshl_add_u32 v{64+i}, v2, 1, v17
        v_lshl_add_u32 v{65+i}, v5, 1, v17
        """)
    a(f"""
    ds_write_b128 v19, v[64:67]
    v_add_u32 v19, 4096, v19
    v_subrev_u32 v6, 4, v6
    s_add_u32 s36, s36, 1
    s_cmp_lt_u32 s36, 3
    s_cbranch_scc1 Q_tab
    v_and_b32 v17, 15, v1
    """)
    ix = lambda p: (p & 7) * TP + (p >> 3)
    def pk(b, s1, s2): assert b < 4096 and s1 < 1024 and s2 < 1024; return b | (s1 << 12) | (s2 << 22)
    t0 = [pk(0, TP, 2*TP), pk(4*TP, TP, 2*TP), None, None]
    a('s_cmp_eq_u32 s63, 0')
    ptab = {0: [[0,1,2,3],[4,5,6,7],[256,258,260,262],[512,516,768,772]],
            1: [[1024,1280,1536,1792],[2048,2304,2304,2304],[2304]*4,[2304]*4]}
    for g in range(4):
        lo = lambda at: ix(ptab[at][g][0]) | (ix(ptab[at][g][1]) << 16)
        hi = lambda at: ix(ptab[at][g][2]) | (ix(ptab[at][g][3]) << 16)
        a(f's_mov_b32 exec_lo, {0xffff << (16*(g%2)) if g < 2 else 0}')
        a(f's_mov_b32 exec_hi, {0xffff << (16*(g%2)) if g >= 2 else 0}')
        a(f's_mov_b32 s36, {lo(1)}\ns_cselect_b32 s36, {lo(0)}, s36\nv_mov_b32 v68, s36')
        a(f's_mov_b32 s36, {hi(1)}\ns_cselect_b32 s36, {hi(0)}, s36\nv_mov_b32 v70, s36')
    a(f"""
    s_mov_b64 exec, -1
    s_lshl_b32 s36, s61, 5
    s_add_u32 s36, s36, {L_T2}
    v_lshl_add_u32 v18, v17, 1, s36
    v_lshrrev_b32 v69, 16, v68
    v_lshrrev_b32 v71, 16, v70
    v_and_b32 v68, 0xffff, v68
    v_and_b32 v70, 0xffff, v70
    v_lshl_add_u32 v68, v68, 1, v18
    v_lshl_add_u32 v69, v69, 1, v18
    v_lshl_add_u32 v70, v70, 1, v18
    v_lshl_add_u32 v71, v71, 1, v18
    ds_write_b128 v19, v[68:71]
    s_and_b32 s27, s3, 1                   ; rt
    s_lshr_b32 s30, s3, 1                  ; cg
    v_and_b32 v3, 31, v1
    v_lshrrev_b32 v4, 5, v1
    s_lshl_b32 s31, s27, 5
    v_add_u32 v5, s31, v3
    v_lshrrev_b32 v6, 1, v5
    v_and_b32 v6, 7, v6
    v_lshlrev_b32 v7, 7, v5
    v_add_u32 v7, {RING0}, v7
    """)
    for st in range(4):
        a(f"""
        v_add_u32 v{56+st}, {2*st}, v4
        v_xor_b32 v{56+st}, v{56+st}, v6
        v_lshl_add_u32 v{56+st}, v{56+st}, 4, v7
        v_add_u32 v{240+st}, 0x10000, v{56+st}
        """)
    a(f"""
    v_and_b32 v6, 3, v1
    v_lshlrev_b32 v6, 3, v6
    v_bfe_u32 v7, v1, 4, 1
    v_lshl_add_u32 v6, v7, 5, v6
    s_lshl_b32 s31, s30, 6
    v_add_u32 v6, s31, v6
    v_bfe_u32 v7, v1, 3, 1
    v_lshlrev_b32 v7, 6, v7
    v_xor_b32 v6, v6, v7
    v_bfe_u32 v7, v1, 2, 2
    v_lshl_add_u32 v7, v4, 3, v7
    v_lshl_add_u32 v60, v7, 7, v6
    v_add_u32 v248, 0x10000, v60
    s_lshl_b32 s31, s26, 1
    s_add_u32 s31, s31, s27
    s_mul_i32 s31, s31, {TILEB}
    s_lshl_b32 s33, s25, 3
    s_lshl_b32 s34, s30, 2
    s_add_u32 s33, s33, s34
    s_lshl_b32 s34, s33, 9
    s_add_u32 s34, s34, s31
    v_lshlrev_b32 v61, 4, v1
    v_add_u32 v61, s34, v61
    s_lshl_b32 s34, s33, 7
    s_add_u32 s34, s34, s31
    v_mul_u32_u24 v62, 7168, v4
    v_lshl_add_u32 v62, v3, 4, v62
    v_add_u32 v62, s34, v62
    s_mov_b32 s35, {f32bits(QSCALE)}
    s_lshl_b32 s60, s25, {FS+5}
    s_lshl_b32 s61, s26, {FS}
    s_add_u32 s60, s60, s61
    s_lshl_b32 s61, s3, 2
    s_add_u32 s60, s60, s61
    s_add_u32 s60, s60, {F1}
    """)
    if PRE_ST >= 3: issue_now(2)
    a('s_waitcnt lgkmcnt(0)')
    stamp(a, 13)
    def reads(j):
        hi = slot_of(j) >= 4
        sb = (slot_of(j) % 4) * SLOT
        n = 0; o = []
        for half, (kind, i) in enumerate(stages[j]):
            base = sb + half * 8192
            if kind == 'x':
                for st in range(4):
                    o.append(f'ds_read_b128 {v(XF + 16*i + 4*st, 4)}, v{(240 if hi else 56) + st} offset:{base}')
            else:
                for st in range(4):
                    r = WB[j % 2][n]; n += 1
                    for e in range(2):
                        o.append(f'ds_read_b64_tr_b16 {v(r + 2*e, 2)}, v{248 if hi else 60} offset:{base + (16*st + 4*e)*128}')
        return o
    started = set()
    def epilogue(kind):
        acc = ACC[kind]; out = []
        if kind == Q_:
            for r in range(16): out.append(f'v_mul_f32 v{acc+r}, s35, v{acc+r}')
        for r in range(8): out.append(f'v_cvt_pk_bf16_f32 v{acc+r}, v{acc+2*r}, v{acc+2*r+1}')
        T = acc
        if kind == V_:
            out.append(f's_mov_b32 s36, {WS_V}')
            out.append(f'buffer_store_dwordx4 {v(T,4)}, v62, s[16:19], s36 offen sc1')
            out.append(f's_mov_b32 s36, {WS_V + 2*7168}')
            out.append(f'buffer_store_dwordx4 {v(T+4,4)}, v62, s[16:19], s36 offen sc1')
        else:
            for q in range(2):
                out.append(f'v_permlane32_swap_b32 v{T+4*q}, v{T+4*q+2}')
                out.append(f'v_permlane32_swap_b32 v{T+4*q+1}, v{T+4*q+3}')
            out.append(f's_mov_b32 s36, {WS_Q if kind == Q_ else WS_K}')
            out.append(f'buffer_store_dwordx4 {v(T,4)}, v61, s[16:19], s36 offen sc1')
            out.append(f'buffer_store_dwordx4 {v(T+4,4)}, v61, s[16:19], s36 offen offset:1024 sc1')
        return out
    def mlist(j):
        n = 0; done = []; o = []
        for half, (kind, i) in enumerate(stages[j]):
            if kind == 'x': continue
            acc = ACC[kind]
            for st in range(4):
                w = WB[j % 2][n]; n += 1
                x = XF + 16*i + 4*st
                c = v(acc, 16) if kind in started else '0'
                started.add(kind)
                if kind == V_: o.append(f'v_mfma_f32_32x32x16_bf16 {v(acc,16)}, {v(x,4)}, {v(w,4)}, {c}')
                else:          o.append(f'v_mfma_f32_32x32x16_bf16 {v(acc,16)}, {v(w,4)}, {v(x,4)}, {c}')
            if i == 6: done.append(kind)
        return o, done
    def weave(ms, rd, fill, dm, tag):
        nm = len(ms)
        slots = max(nm, 4)
        per = -(-len(rd) // max(slots - 2, 1))
        fper = -(-len(fill) // max(nm - 2, 1))
        dper = -(-len(dm) // slots); dstep = max(slots // max(len(dm), 1), 1)
        for k in range(slots):
            if k < nm: a(ms[k])
            if k % dstep == 0:
                for _ in range(dper):
                    if dm:
                        tg, g = dm.pop(0)
                        for l in g: em(l, tg)
            for _ in range(per):
                if rd: a(rd.pop(0))
            if k >= 2:
                for _ in range(fper):
                    if fill: em(fill.pop(0))
        for l in rd + fill: em(l)
    pending = []; carry = []; issued = max(PRE_ST, 2)
    for j in range(NST):
        waitfor(j)
        a('s_barrier')
        if j == 0: stamp(a, 1)
        if 'gemmonly' in DBG and j in GS: stamp(a, 3 + GS.index(j))
        rd = reads(j); ms = []; fill = carry; carry = []
        if j > 0:
            for k in pending: fill += epilogue(k)
            ms, pending = mlist(j - 1)
        dm = []
        for _ in range(MAXI):
            if issued < NST and issued <= j + (DEPTH if j < D2J else DEPTH2):
                dm += [(issued, g) for g in issue(issued)]; issued += 1
        if dm:
            k = next((i for i, l in enumerate(fill) if l.startswith(('buffer_', 's_mov_b32 s36'))), len(fill))
            carry = fill[k:]; fill = fill[:k]
        if len(fill) > FILL_MAX and j < NST - 1:
            carry = fill[FILL_MAX:] + carry; fill = fill[:FILL_MAX]
        weave(ms, rd, fill, dm, j + DEPTH)
        a('s_waitcnt lgkmcnt(0)')
    fill = carry
    for k in pending: fill += epilogue(k)
    ms, pending = mlist(NST - 1)
    weave(ms, [], fill, [], None)
    for k in pending:
        for l in epilogue(k): a(l)
    stamp(a, 2)
    if 'gemmonly' in DBG: a('s_branch P_fin')
    sc_, ve_, lds_ = att_split()
    FL = 252
    gtabs(a)
    kmaddr(a, 0)
    kmskip(a, 0)
    att_poll_addr(a, FL)
    if SIG_CUT < 0:
        a('s_waitcnt vmcnt(0)')
        signal(a, 60, 2, 3)
    a('s_waitcnt lgkmcnt(0)\ns_barrier')
    stamp(a, 3)
    a(f'ds_read_b32 v255, v{CV} offset:8')
    km0 = kmfma(); fc = [l for g in sc_ for l in g]; km = []
    for l in km0:
        km.append(l)
        if l.startswith('ds_read_b128'):
            km += fc[:4]; fc = fc[4:]
    km += fc
    cut = int(len(km) * SIG_CUT)
    cut = max(cut, 0)
    for l in km[:cut]: a(l)
    assert any(l.startswith('s_waitcnt lgkmcnt') for l in km[:cut])
    if SIG_CUT >= 0:
        a('v_readfirstlane_b32 s20, v255')
        a('s_waitcnt vmcnt(0)')
        signal(a, 60, 2, 3)
    for l in km[cut:]: a(l)
    a('s_barrier')
    stamp(a, 14)
    def req():
        a('s_cmp_lg_u32 s3, 0\ns_cbranch_scc1 Q_nq')
        a(f'buffer_load_dwordx4 v[244:247], v{FL}, s[16:19], 0 offen sc1')
        a.label('Q_nq')
    gbuild(a, 0, (0, 1, 2, 3))
    if REQ_POS == 0: req()
    a('s_waitcnt lgkmcnt(0)\ns_barrier')
    stamp(a, 4)
    a('s_setprio 2')
    if REQ_POS == 1: req()
    emit_groups(a, ve_ + att_zero())
    a('s_cmp_lg_u32 s3, 0\ns_cbranch_scc1 Q_w1')
    a('s_waitcnt vmcnt(0)')
    for i in range(4): a(f'v_xor_b32 v{244+i}, s20, v{244+i}')
    a('v_or3_b32 v244, v244, v245, v246\nv_or_b32 v244, v244, v247\nv_cmp_ne_u32 vcc, 0, v244\ns_nop 4\ns_cbranch_vccz Q_w0')
    poll(a, 'PL_f1', FL, 244, x4=True, sleep=A_SLEEP)
    a.label('Q_w0')
    a(f'ds_write_b32 v{CV}, v{C1} offset:12')
    a('s_branch L_pre')
    a.label('Q_w1')
    gwait(a, 12, 1, 2)
    a.label('L_pre')
    stamp(a, 5)
    emit_groups(a, lds_[:10])
    att_first(a, 4)
    emit_groups(a, lds_[10:])
    a('s_setprio 0')
    a('s_branch L_att2')

EB = 176
EA = EB + 56
ET = 96
def ssm_epi_setup(a):
    a(f"""
    v_and_b32 v{ET}, 1, v1                      ; ch
    v_bfe_u32 v{ET+1}, v1, 1, 2                 ; j
    v_lshrrev_b32 v{ET+2}, 3, v1
    v_mul_u32_u24 v{ET+3}, {POWN}, v{ET+1}
    v_mul_u32_u24 v{ET+4}, {PSRC}, v{ET}
    v_add_u32 v{ET+3}, v{ET+3}, v{ET+4}
    v_lshl_add_u32 v{ET+3}, v{ET+2}, 4, v{ET+3}
    s_lshl_b32 s60, s29, 7
    s_add_u32 s36, s60, {L_PART}
    v_add_u32 v{EA}, s36, v{ET+3}
    v_mul_u32_u24 v{ET+2}, 80, v{ET+2}
    v_lshl_add_u32 v{ET+2}, v{ET+1}, 4, v{ET+2}
    v_mul_u32_u24 v{ET+4}, {UCH}, v{ET}
    v_add_u32 v{ET+2}, v{ET+2}, v{ET+4}
    s_mul_i32 s36, s29, 640
    s_add_u32 s36, s36, {L_U + 32*80}
    v_add_u32 v{EA+1}, s36, v{ET+2}             ; u chunk
    s_lshl_b32 s36, s21, 13
    s_lshl_b32 s60, s29, 10
    s_add_u32 s36, s36, s60
    s_add_u32 s36, s36, {WS_YT}
    v_lshl_add_u32 v{EA+2}, v1, 4, s36
    s_lshl_b32 s60, s39, 16
    s_and_b32 s61, s39, 0xffff0000
    v_mov_b32 v{EA+3}, s60
    v_mov_b32 v{ET+4}, s61
    v_cmp_eq_u32 vcc, 1, v{ET}
    v_cndmask_b32 v{EA+3}, v{EA+3}, v{ET+4}, vcc
    """)

def ssm_epi_reads(a):
    for p in range(2):
        E = EB + 28*p; o = p*4*POWN
        a(f"""
        ds_read_b128 {v(E,4)}, v{EA} offset:{o}
        ds_read_b128 {v(E+4,4)}, v{EA} offset:{o+512}
        ds_read_b128 {v(E+8,4)}, v{EA} offset:{o+2*PSRC}
        ds_read_b128 {v(E+12,4)}, v{EA} offset:{o+2*PSRC+512}
        ds_read_b128 {v(E+16,4)}, v{EA+1} offset:{p*2560}
        """)

def ssm_epi(a):
    a('s_mov_b32 s36, 4096')
    for p in range(2):
        A = EB + 28*p; B = A + 8; U = A + 16; C = A + 20
        for e in range(8): a(f'v_add_f32 v{A+e}, v{A+e}, v{B+e}')
        for e in range(4):
            a(f'v_lshlrev_b32 v{C+2*e}, 16, v{U+e}')
            a(f'v_and_b32 v{C+1+2*e}, 0xffff0000, v{U+e}')
        for e in range(8): a(f'v_mul_f32 v{C+e}, v{EA+3}, v{C+e}')
        for e in range(4):
            a(f'v_cvt_pk_bf16_f32 v{B+e}, v{A+2*e}, v{A+1+2*e}')
            a(f'v_cvt_pk_bf16_f32 v{B+4+e}, v{C+2*e}, v{C+1+2*e}')
        for e in range(4):
            a(f'v_lshlrev_b32 v{A+2*e}, 16, v{B+e}')
            a(f'v_and_b32 v{A+1+2*e}, 0xffff0000, v{B+e}')
            a(f'v_lshlrev_b32 v{C+2*e}, 16, v{B+4+e}')
            a(f'v_and_b32 v{C+1+2*e}, 0xffff0000, v{B+4+e}')
        for e in range(8): a(f'v_add_f32 v{A+e}, v{A+e}, v{C+e}')
        for e in range(4): a(f'v_cvt_pk_bf16_f32 v{B+e}, v{A+2*e}, v{A+1+2*e}')
        a(f'buffer_store_dwordx4 {v(B,4)}, v{EA+2}, s[16:19], {"s36" if p else "0"} offen sc1')

def att_ids(a):
    if AMAP == 0:
        a("""
        s_lshl_b32 s40, s22, 1
        s_and_b32 s41, s23, 1
        s_add_u32 s40, s40, s41                ; head
        s_lshr_b32 s41, s23, 1                 ; rbq
        s_mov_b32 s99, s41
        """)
    elif AMAP == 1:
        a("""
        s_lshl_b32 s41, s22, 1
        s_and_b32 s40, s23, 1
        s_lshl_b32 s99, s40, 3
        s_add_u32 s41, s41, s40                ; rbq
        s_lshr_b32 s40, s23, 1                 ; head
        """)
    a("""
    s_mul_i32 s42, s40, 7
    s_lshr_b32 s42, s42, 1                 ; chi0
    """)

def att_poll_addr(a, r):
    att_ids(a)
    a(f"""
    s_lshr_b32 s43, s42, 3
    s_add_u32 s44, s42, 3
    s_lshr_b32 s44, s44, 3
    s_lshl_b32 s43, s43, {FS+5}
    s_lshl_b32 s44, s44, {FS+5}
    v_mov_b32 v{r}, s43
    v_mov_b32 v{r+1}, s44
    v_cmp_lt_u32 vcc, 31, v1
    v_cndmask_b32 v{r}, v{r}, v{r+1}, vcc
    v_and_b32 v{r+1}, 31, v1
    v_lshl_add_u32 v{r}, v{r+1}, {FS}, v{r}
    v_add_u32 v{r}, {F1}, v{r}
    """)

def att_poll(a, name):
    att_poll_addr(a, 16)
    poll(a, name, 16, 20, x4=True, sleep=8)

OL = 120 * 1024; YL = 152 * 1024; RED = 96 * 1024
NB = 4
QF = 16; OA = 32; SB = 64; PB = 96; KB = 112; VB = KB + 8*NB
def advK(a):
    a(f's_add_u32 s33, s33, {TILEB}')
    a('s_cmp_eq_u32 s33, s55')
    a('s_cselect_b32 s33, s54, s33')
def loadK(a, n):
    a(f'buffer_load_dwordx4 {v(KB+8*n,4)}, v3, s[16:19], s33 offen')
    a(f'buffer_load_dwordx4 {v(KB+8*n+4,4)}, v3, s[16:19], s33 offen offset:1024')
def loadV(a, n):
    a('s_mov_b64 exec, s[46:47]')
    a(f'buffer_load_dwordx4 {v(VB+8*n,4)}, v4, s[16:19], s33 offen')
    a(f'buffer_load_dwordx4 {v(VB+8*n+4,4)}, v7, s[16:19], s33 offen')
    a('s_mov_b64 exec, -1')

def att_pre_groups():
    def G(fn, *args):
        t = Asm(); fn(t, *args); return t.lines
    def singles(txt): return [[l] for l in lines(txt)]
    p1 = [[l] for l in G(att_ids)]
    p1 += singles(f"""
    s_and_b32 s24, s3, 1                   ; qg
    s_lshr_b32 s27, s3, 1
    s_cmp_lt_u32 s23, 28
    s_cselect_b32 s34, {NA}, 16
    s_sub_u32 s35, 32, s34
    s_min_u32 s54, s27, 2
    s_mul_i32 s54, s54, s34
    s_cmp_eq_u32 s27, 3
    s_cselect_b32 s55, s35, 0
    s_add_u32 s54, s54, s55
    s_cmp_lt_u32 s3, 4
    s_cselect_b32 s34, s34, s35
    s_lshr_b32 s35, s34, 2
    s_lshl_b32 s96, s42, 9
    v_lshl_add_u32 v3, v1, 4, s96          ; Q/K voffset
    s_lshl_b32 s28, s41, 2
    s_lshl_b32 s31, s24, 1
    s_add_u32 s28, s28, s31
    s_mul_i32 s31, s28, {TILEB}
    s_add_u32 s31, s31, {WS_Q}
    s_add_u32 s30, s31, {TILEB}
    s_mul_i32 s54, s54, {TILEB}
    s_add_u32 s54, s54, {WS_K}
    s_mul_i32 s55, s34, {TILEB}
    s_add_u32 s55, s55, s54
    s_mul_i32 s33, s99, s34
    s_lshr_b32 s33, s33, 4
    s_mul_i32 s33, s33, {TILEB}
    s_add_u32 s33, s33, s54
    buffer_load_dwordx4 {v(QF,4)}, v3, s[16:19], s31 offen
    buffer_load_dwordx4 {v(QF+4,4)}, v3, s[16:19], s31 offen offset:1024
    """)
    p1 += [[l] for l in G(loadK, 0)]
    p1 += singles(f"""
    buffer_load_dwordx4 {v(QF+8,4)}, v3, s[16:19], s30 offen
    buffer_load_dwordx4 {v(QF+12,4)}, v3, s[16:19], s30 offen offset:1024
    v_and_b32 v5, 31, v1
    v_lshrrev_b32 v6, 5, v1
    v_mul_u32_u24 v4, 7168, v6
    v_lshl_add_u32 v4, v5, 4, v4
    s_mul_i32 s97, s40, 448
    s_add_u32 s97, s97, {WS_V - WS_K}
    v_add_u32 v4, s97, v4
    v_add_u32 v7, 14336, v4
    s_mov_b32 s46, 0x0fffffff
    s_mov_b32 s47, 0x0fffffff
    """)
    p2 = []
    for n in range(NB):
        dst = p1 if n == 0 else p2
        if n == 0:
            dst += [['v_cmp_eq_u32 vcc, 28, v5'], ['v_mov_b32 v12, 0x3f803f80'], ['v_cndmask_b32 v12, 0, v12, vcc'], ['v_mov_b32 v13, v12']]
        dst += [[f'v_mov_b64 {v(VB+8*n+r,2)}, v[12:13]'] for r in range(0, 8, 2)]
        if n < NB - 1:
            dst += [G(loadV, n), G(advK)] + [[l] for l in G(loadK, n + 1)]
    p2 += [[l] for l in G(srd, 8, P_WO, D * D * 2)]
    p2 += singles(f"""
    s_lshr_b32 s52, s40, 2
    s_lshl_b32 s53, s41, 2
    s_add_u32 s52, s52, s53
    s_and_b32 s53, s40, 3                  ; cg4
    v_lshrrev_b32 v8, 4, v1
    v_and_b32 v9, 15, v1
    v_lshlrev_b32 v10, 2, v8
    v_xor_b32 v9, v9, v10
    v_lshlrev_b32 v9, 4, v9
    v_mul_u32_u24 v8, 896, v8
    v_add_u32 v8, v8, v9
    s_lshl_b32 s98, s53, 8
    v_add_u32 v8, s98, v8
    s_lshl_b32 s51, s3, 10
    s_mul_i32 s50, s3, 3584
    s_sub_u32 s35, s35, 1
    s_and_b32 s49, s40, 1
    s_cmp_eq_u32 s49, 0
    s_cselect_b32 s43, -1, 0
    s_mov_b32 s42, 0
    s_cselect_b32 s44, 0, -1
    s_mov_b32 s45, 0
    s_lshl_b32 s32, s21, 4
    s_and_b32 s49, s3, 3
    s_lshl_b32 s49, s49, 2
    s_add_u32 s32, s32, s49
    s_add_u32 s32, s32, {F3}
    s_cmp_lt_u32 s23, 28
    s_cselect_b32 s32, s32, {WS_END}
    """)
    allg = p1 + p2
    isld = lambda g: any(l.startswith('buffer_') for l in g) or g[0].startswith(f's_add_u32 s33, s33, {TILEB}')
    setup = [g for g in allg if not isld(g)]
    loads = [g for g in allg if isld(g)]
    return setup, loads

def tail_setup():
    return [[l] for l in lines(f"""
    s_lshl_b32 s36, s24, 14
    s_add_u32 s36, s36, {RED}
    s_lshr_b32 s5, s27, 1
    s_lshl_b32 s5, s5, 15
    s_and_b32 s49, s27, 1
    s_lshl_b32 s49, s49, 11
    s_add_u32 s5, s5, s49
    s_add_u32 s5, s5, s36
    v_lshl_add_u32 v240, v1, 4, s5
    s_lshl_b32 s6, s27, 12
    s_add_u32 s6, s6, s36
    v_lshl_add_u32 v241, v1, 4, s6
    s_or_b32 s7, s27, 1
    s_lshl_b32 s7, s7, 12
    s_add_u32 s7, s7, s36
    s_add_u32 s7, s7, {1024 + 512}
    v_lshl_add_u32 v242, v5, 4, s7
    v_lshlrev_b32 v243, 13, v6
    v_lshl_add_u32 v243, v5, 4, v243
    v_add_u32 v243, {RED + 4096 + 1024 + 512}, v243
    s_and_b32 s36, s27, 1
    s_cmp_eq_u32 s36, 1
    s_cselect_b32 s101, -1, 0
    s_mov_b32 s100, 0
    s_lshr_b32 s4, s27, 1
    s_add_u32 s4, s4, s28
    s_lshl_b32 s4, s4, 15
    s_lshl_b32 s49, s40, 11
    s_add_u32 s4, s4, s49
    s_lshl_b32 s49, s36, 10
    s_add_u32 s4, s4, s49
    s_add_u32 s4, s4, {WS_O}
    s_lshl_b32 s92, s25, 9
    s_add_u32 s92, s92, {F3}
    v_lshl_add_u32 v238, v5, 4, s92
    v_lshlrev_b32 v239, 12, v1
    s_lshl_b32 s93, s25, 18
    s_lshl_b32 s36, s26, 7
    s_add_u32 s93, s93, s36
    s_and_b32 s36, s3, 3
    s_lshl_b32 s36, s36, 5
    s_add_u32 s93, s93, s36
    s_add_u32 s93, s93, {WS_YT}
    """)]

def att_split():
    su, ld = att_pre_groups()
    su = su + tail_setup()
    sc = [g for g in su if g[0].startswith('s_')]
    ve = [g for g in su if not g[0].startswith('s_')]
    return sc, ve, ld

def emit_groups(a, gs):
    for g in gs:
        for l in g: a(l)

def att_zero():
    return [[f'v_mov_b64 {v(OA+r,2)}, 0'] for r in range(0, 32, 2)] + [[f'v_mov_b64 {v(PB+8+r,2)}, 0'] for r in range(0, 8, 2)] + [[f'v_mov_b64 {v(SB+28+r,2)}, 0'] for r in range(0, 4, 2)]

def att_first(a, nout):
    a(f"""
    s_waitcnt vmcnt({nout})
    s_mov_b64 exec, s[42:43]
    v_mov_b32 v{QF+6}, 0
    v_mov_b32 v{QF+7}, 0
    v_mov_b32 v{QF+14}, 0
    v_mov_b32 v{QF+15}, 0
    s_mov_b64 exec, s[44:45]
    v_mov_b32 v{QF+0}, 0
    v_mov_b32 v{QF+1}, 0
    v_mov_b32 v{QF+8}, 0
    v_mov_b32 v{QF+9}, 0
    s_mov_b64 exec, -1
    v_mfma_f32_32x32x16_bf16 {v(SB,16)}, {v(KB,4)}, {v(QF,4)}, 0
    v_mfma_f32_32x32x16_bf16 {v(SB,16)}, {v(KB+4,4)}, {v(QF+4,4)}, {v(SB,16)}
    """)

def ph_att(a):
    a.label('L_att')
    att_first(a, 4*(NB-1))
    a('s_nop 9')
    a.label('L_att2')
    a('v_lshlrev_b32 v2, 4, v1\ns_mov_b32 s37, 0')
    a(f's_cmp_{PRIO_CMP}_u32 s3, 4\ns_cbranch_scc1 A_noprio\ns_setprio 1')
    a.label('A_noprio')
    stamp(a, 6)
    a('.p2align 6')
    def iteration(last):
        vm = [-3]*4 + [-2]*4 + [-1]*4
        nwo = [0]
        def wo():
            r = nwo[0]; nwo[0] += 1
            return [f's_add_u32 m0, s51, {r*8192}', f's_add_u32 s48, s50, {r*28672}', 'buffer_load_dwordx4 v8, s[8:11], s48 offen lds']
        for u in range(2*NB):
            t = u % 2
            kn = ((u + 1) // 2) % NB
            vn = ((u - 1) // 2) % NB
            Sn = SB + 16*((u+1) % 2); Sc = SB + 16*(u % 2)
            Pc = PB + 8*(u % 2); Pp = PB + 8*((u+1) % 2)
            Qn = QF + 8*(1-t); On = OA + 16*(1-t)
            ins = {}
            if u % 2 == 1:
                j = (u - 1) // 2
                t1 = Asm(); loadV(t1, (j - 1) % NB); t2 = Asm(); advK(t2); t3 = Asm(); loadK(t3, j % NB)
                if not last:
                    a(f's_waitcnt vmcnt({4*(NB-2)})')
                    ins = {(0, 1): t1.lines, (1, 1): t2.lines, (2, 1): t3.lines[:1], (3, 1): t3.lines[1:]}
                else:
                    need = max(i for i, x in enumerate(vm) if x == j - 3)
                    a(f's_waitcnt vmcnt({len(vm) - 1 - need})')
                    if j == 0: ins[(0, 1)] = t1.lines
            if last and u >= 1 and 'nowo' not in DBG:
                for g in (1, 3):
                    if nwo[0] < 12: ins[(g, 1)] = wo()
            if last and u == PRIO_U: a('s_setprio 0')
            M = [f'v_mfma_f32_32x32x16_bf16 {v(Sn,16)}, {v(KB+8*kn,4)}, {v(Qn,4)}, 0',
                 f'v_mfma_f32_32x32x16_bf16 {v(Sn,16)}, {v(KB+8*kn+4,4)}, {v(Qn+4,4)}, {v(Sn,16)}',
                 f'v_mfma_f32_32x32x16_bf16 {v(On,16)}, {v(VB+8*vn,4)}, {v(Pp,4)}, {v(On,16)}',
                 f'v_mfma_f32_32x32x16_bf16 {v(On,16)}, {v(VB+8*vn+4,4)}, {v(Pp+4,4)}, {v(On,16)}']
            M = [M[2], M[0], M[1], M[3]]
            if last and u == 2*NB - 1: M[1] = M[2] = None
            for g in range(4):
                if M[g]: a(M[g])
                for e in range(4):
                    a(f'v_exp_f32 v{Sc+4*g+e}, v{Sc+4*g+e}')
                    for l in ins.get((g, e), []):
                        a(l)
                        if l.startswith('buffer_'): vm.append('w' if 'lds' in l else 0)
                    if e in (0, 2):
                        h = e // 2
                        if g > 0: a(f'v_cvt_pk_bf16_f32 v{Pc+2*(g-1)+h}, v{Sc+4*(g-1)+2*h}, v{Sc+4*(g-1)+2*h+1}')
                        else:     a(f'v_cvt_pk_bf16_f32 v{Pp+6+h}, v{Sn+12+2*h}, v{Sn+13+2*h}')
    a.label('A_loop')
    iteration(False)
    a(f"""
    s_add_u32 s37, s37, 1
    s_cmp_eq_u32 s37, s35
    s_cbranch_scc1 A_last
    s_cmp_lg_u32 s37, 1
    s_cbranch_scc1 A_loop
    s_cmp_lt_u32 s3, 4
    s_cbranch_scc1 A_loop
    """)
    signal(a, 32, 9, 10)
    a('s_branch A_loop')
    a.label('A_last')
    a(f's_cmp_lg_u32 s32, {WS_END}\ns_cbranch_scc1 A_l0\ns_setprio 0\ns_branch A_l2')
    a.label('A_l0')
    a('s_cmp_lt_u32 s3, 4\ns_cbranch_scc1 A_l1')
    a('buffer_load_dwordx4 v[196:199], v238, s[16:19], 0 offen sc1')
    a.label('A_l1')
    gwait(a, 4, 8, 9)
    a.label('A_l2')
    iteration(True)
    a.label('A_exit')
    a('s_setprio 0')
    stamp(a, 7)
    a(f'v_cvt_pk_bf16_f32 v{PB+14}, v{SB+28}, v{SB+29}')
    a(f'v_cvt_pk_bf16_f32 v{PB+15}, v{SB+30}, v{SB+31}')
    a(f'v_mfma_f32_32x32x16_bf16 {v(OA+16,16)}, {v(VB+8*(NB-1),4)}, {v(PB+8,4)}, {v(OA+16,16)}')
    a(f'v_mfma_f32_32x32x16_bf16 {v(OA+16,16)}, {v(VB+8*(NB-1)+4,4)}, {v(PB+12,4)}, {v(OA+16,16)}')
    a('s_mov_b32 s94, 0')
    a.label('A_red')
    for own in range(4):
        for q in range(2):
            a(f'ds_write_b128 v240, {v(OA + 8*own + 4*q, 4)} offset:{own*4096 + q*1024}')
    a('s_cmp_ge_u32 s23, 28\ns_cbranch_scc1 A_ny\ns_cmp_lt_u32 s3, 4\ns_cbranch_scc1 A_ny\ns_cmp_lg_u32 s94, 0\ns_cbranch_scc1 A_ny')
    for i in range(4): a(f'v_xor_b32 v{196+i}, s20, v{196+i}')
    a('v_or3_b32 v196, v196, v197, v198\nv_or_b32 v196, v196, v199\nv_cmp_ne_u32 vcc, 0, v196')
    a('s_add_u32 s92, s93, 16\ns_nop 3\ns_cbranch_vccz A_y')
    poll(a, 'PL_f3', 238, 196, x4=True)
    a.label('A_y')
    a('buffer_load_dwordx4 v[196:199], v239, s[16:19], s93 offen')
    a('buffer_load_dwordx4 v[212:215], v239, s[16:19], s92 offen')
    a.label('A_ny')
    a('s_waitcnt lgkmcnt(0)\ns_barrier')
    R = 64
    so = lambda src: (src >> 1) * 32768 + (src & 1) * 2048
    for src in range(4):
        a(f'ds_read_b32 v{12+src}, v242 offset:{so(src)}')
    for src in range(4):
        for q in range(2):
            a(f'ds_read_b128 {v(R + 8*src + 4*q, 4)}, v241 offset:{so(src) + q*1024}')
    a(f"""
    s_waitcnt lgkmcnt(8)
    v_add_f32 v12, v12, v13
    v_add_f32 v14, v14, v15
    v_add_f32 v12, v12, v14
    v_rcp_f32 v12, v12
    s_waitcnt lgkmcnt(0)
    """)
    a('v_cndmask_b32 v13, v12, 0, s[100:101]')
    for r in range(8):
        a(f'v_add_f32 v{R+r}, v{R+r}, v{R+8+r}')
        a(f'v_add_f32 v{R+16+r}, v{R+16+r}, v{R+24+r}')
    for r in range(8): a(f'v_add_f32 v{R+r}, v{R+r}, v{R+16+r}')
    for r in range(8): a(f'v_mul_f32 v{R+r}, v{R+r}, v{12 if r < 4 else 13}')
    for r in range(4): a(f'v_cvt_pk_bf16_f32 v{R+8+r}, v{R+2*r}, v{R+2*r+1}')
    a(f'buffer_store_dwordx4 {v(R+8,4)}, v2, s[16:19], s4 offen sc1')
    stamp(a, 8)
    for qg in range(2):
        for src in range(4):
            a(f'ds_read_b32 v{80+4*qg+src}, v243 offset:{qg*16384 + so(src)}')
    a(f"""
    s_mov_b32 s36, {f32bits(2.0**-30)}
    s_mov_b32 s37, {f32bits(2.0**40)}
    s_waitcnt lgkmcnt(0)
    v_add_f32 v80, v80, v81
    v_add_f32 v82, v82, v83
    v_add_f32 v84, v84, v85
    v_add_f32 v86, v86, v87
    v_add_f32 v80, v80, v82
    v_add_f32 v84, v84, v86
    v_cmp_nle_f32 vcc, s36, v80
    v_cmp_nge_f32 s[42:43], s37, v80
    v_cmp_nle_f32 s[44:45], s36, v84
    v_cmp_nge_f32 s[60:61], s37, v84
    s_or_b64 s[42:43], s[42:43], vcc
    s_or_b64 s[44:45], s[44:45], s[60:61]
    s_or_b64 s[42:43], s[42:43], s[44:45]
    s_cbranch_scc1 A_slow
    """)
    a.label('A_done')

def ph_slow(a):
    MX = 192
    a.label('A_slow')
    a(f"""
    s_cmp_lg_u32 s94, 0
    s_cbranch_scc1 A_done
    s_waitcnt vmcnt(0)
    s_barrier
    v_mov_b32 v{MX}, 0xff800000
    v_mov_b32 v{MX+1}, 0xff800000
    """)
    for r in range(0, 32, 2): a(f'v_mov_b64 {v(OA+r,2)}, 0')
    a.label('AS_pass')
    a('s_mov_b32 s37, 0')
    a.label('AS_tile')
    loadK(a, 0); loadV(a, 0); advK(a)
    a('s_waitcnt vmcnt(0)')
    for t in range(2):
        Sx = SB + 16*t
        a(f'v_mfma_f32_32x32x16_bf16 {v(Sx,16)}, {v(KB,4)}, {v(QF+8*t,4)}, 0')
        a(f'v_mfma_f32_32x32x16_bf16 {v(Sx,16)}, {v(KB+4,4)}, {v(QF+8*t+4,4)}, {v(Sx,16)}')
    a('s_nop 15\ns_cmp_lg_u32 s94, 0\ns_cbranch_scc1 AS_p1')
    for t in range(2):
        for r in range(0, 16, 2): a(f'v_max3_f32 v{MX+t}, v{SB+16*t+r}, v{SB+16*t+r+1}, v{MX+t}')
    a('s_branch AS_next')
    a.label('AS_p1')
    for t in range(2):
        Sx = SB + 16*t; Px = PB + 8*t
        for r in range(16): a(f'v_sub_f32 v{Sx+r}, v{Sx+r}, v{MX+t}')
        for r in range(16): a(f'v_exp_f32 v{Sx+r}, v{Sx+r}')
        for r in range(8): a(f'v_cvt_pk_bf16_f32 v{Px+r}, v{Sx+2*r}, v{Sx+2*r+1}')
        a(f'v_mfma_f32_32x32x16_bf16 {v(OA+16*t,16)}, {v(VB,4)}, {v(Px,4)}, {v(OA+16*t,16)}')
        a(f'v_mfma_f32_32x32x16_bf16 {v(OA+16*t,16)}, {v(VB+4,4)}, {v(Px+4,4)}, {v(OA+16*t,16)}')
    a.label('AS_next')
    a(f"""
    s_nop 15
    s_add_u32 s37, s37, 1
    s_cmp_lt_u32 s37, s34
    s_cbranch_scc1 AS_tile
    s_cmp_lg_u32 s94, 0
    s_cbranch_scc1 A_red
    s_lshl_b32 s36, s24, 11
    s_add_u32 s36, s36, {RED}
    s_lshl_b32 s38, s27, 9
    s_add_u32 s38, s38, s36
    v_lshl_add_u32 v9, v1, 3, s38
    ds_write_b64 v9, {v(MX,2)}
    v_lshl_add_u32 v9, v5, 3, s36
    s_waitcnt lgkmcnt(0)
    s_barrier
    """)
    for k in range(8): a(f'ds_read_b64 {v(SB+2*k,2)}, v9 offset:{256*k}')
    a('s_waitcnt lgkmcnt(0)')
    for t in range(2):
        for k in range(0, 8, 2): a(f'v_max3_f32 v{MX+t}, v{SB+2*k+t}, v{SB+2*k+2+t}, v{MX+t}')
    a('s_mov_b32 s94, 1\ns_barrier\ns_branch AS_pass')

L_RDY = 118784
def y_piece(a):
    a(f"""
    s_cmp_ge_u32 s23, 28
    s_cbranch_scc1 P_noy
    s_lshl_b32 s36, s29, 11
    s_add_u32 s36, s36, {YL}
    v_add_u32 v203, s36, v2
    ds_write_b128 v203, v[196:199]
    ds_write_b128 v203, v[212:215] offset:1024
    v_lshrrev_b32 v17, 4, v1
    v_and_b32 v18, 3, v1
    v_lshl_add_u32 v17, v17, 2, v18
    v_and_b32 v18, 7, v17
    v_lshrrev_b32 v17, 3, v17
    v_bfe_u32 v19, v1, 2, 2
    v_lshl_add_u32 v18, v18, 3, v19
    v_lshlrev_b32 v18, 4, v18
    v_lshl_add_u32 v18, v17, 3, v18
    v_add_u32 v204, s36, v18
    s_waitcnt lgkmcnt(0)
    ds_read_b64_tr_b16 v[208:209], v204
    ds_read_b64_tr_b16 v[210:211], v204 offset:64
    ds_read_b64_tr_b16 v[216:217], v204 offset:1024
    ds_read_b64_tr_b16 v[218:219], v204 offset:1088
    v_and_b32 v19, 3, v1
    v_lshl_add_u32 v19, v6, 2, v19
    s_lshl_b32 s36, s26, 6
    s_lshl_b32 s37, s29, 4
    s_add_u32 s36, s36, s37
    v_add_u32 v19, s36, v19
    v_mul_u32_u24 v19, 1792, v19
    v_bfe_u32 v17, v1, 2, 3
    v_lshl_add_u32 v205, v17, 4, v19
    s_lshl_b32 s93, s25, 7
    s_add_u32 s93, s93, 896
    s_add_u32 s92, s93, {8*1792}
    s_waitcnt lgkmcnt(0)
    buffer_store_dwordx4 v[208:211], v205, s[12:15], s93 offen {YMOD}
    buffer_store_dwordx4 v[216:219], v205, s[12:15], s92 offen {YMOD}
    """)
    a.label('P_noy')

def ph_out(a):
    a(f"""
    s_and_b32 s29, s3, 3
    v_mov_b32 v15, {L_RDY}
    s_cmp_ge_u32 s3, 4
    s_cbranch_scc1 P_fetch
    ; ---------------- waves 0..3
    s_lshl_b32 s36, s41, {F2S+4}
    s_lshr_b32 s37, s40, 2
    s_lshl_b32 s37, s37, {F2S}
    s_add_u32 s36, s36, s37
    s_and_b32 s37, s40, 3
    s_lshl_b32 s37, s37, 2
    s_add_u32 s36, s36, s37
    s_add_u32 s36, s36, {F2}
    v_lshl_add_u32 v28, v1, {F2S+2}, s36
    v_mov_b32 v29, s20
    v_bfe_u32 v7, v1, 2, 2
    v_xor_b32 v12, s29, v7
    v_lshlrev_b32 v12, 6, v12
    v_bfe_u32 v9, v1, 4, 1
    v_lshl_add_u32 v12, v9, 5, v12
    v_and_b32 v9, 3, v1
    v_lshl_add_u32 v12, v9, 3, v12
    v_lshl_add_u32 v9, v6, 2, v7
    v_lshl_add_u32 v12, v9, 8, v12
    v_add_u32 v13, {224*256}, v12          ; heads 8..15
    s_waitcnt vmcnt(0)
    s_barrier
    """)
    ACC = 224; WF = 32; OF = 160
    def wread(hd):
        for f in range(2):
            for e in range(2):
                row = 28*hd + 16*f + 8*e - (224 if hd >= 8 else 0)
                a(f'ds_read_b64_tr_b16 {v(WF + 8*hd + 4*f + 2*e, 2)}, v{13 if hd >= 8 else 12} offset:{row*256}')
    a('s_lshl_b64 exec, 1, s3\nbuffer_store_dword v29, v28, s[16:19], 0 offen sc1\ns_mov_b64 exec, -1')
    stamp(a, 9)
    for hd in range(13): wread(hd)
    a(f"""
    v_add_u32 v10, {OL}, v2
    s_lshl_b32 s36, s52, 5
    v_add_u32 v11, s36, v5
    v_mul_u32_u24 v11, 1792, v11
    v_lshl_add_u32 v11, v6, 4, v11
    s_lshl_b32 s30, s53, 2
    s_add_u32 s30, s30, s29
    s_lshl_b32 s32, s30, 6
    """)
    a('s_cmp_ge_u32 s30, 14\ns_cbranch_scc1 P_fin')
    stamp(a, 10)
    a(f'v_lshl_add_u32 v14, v1, 2, v15')
    def need(g):
        a('s_waitcnt lgkmcnt(0)')
        a.label(f'P_n{g}')
        a(f'v_cmp_eq_u32 vcc, s20, v28\ns_nop 1\ns_bitcmp1_b32 vcc_lo, {g}\ns_cbranch_scc0 P_r{g}')
        a.label(f'P_g{g}')
    def mf(g):
        for n in range(8):
            c = '0' if (g == ORD[0] and n == 0) else v(ACC, 16)
            a(f'v_mfma_f32_32x32x16_bf16 {v(ACC,16)}, {v(WF + 32*g + 4*n,4)}, {v(OF + 32*(ORD.index(g)%2) + 4*n,4)}, {c}')
    ORD = [0, 1, 2, 3]
    a('ds_read_b32 v28, v14')
    for i, g in enumerate(ORD):
        need(g)
        for n in range(8): a(f'ds_read_b128 {v(OF + 32*(i%2) + 4*n, 4)}, v10 offset:{g*8192 + n*1024}')
        if g == 3:
            for hd in range(13, 16): wread(hd)
        if i < 3: a('ds_read_b32 v28, v14')
        if i > 0: mf(ORD[i-1])
    a('s_waitcnt lgkmcnt(0)')
    mf(ORD[3])
    a.label('P_epi')
    stamp(a, 11)
    T = 40
    for r in range(8): a(f'v_cvt_pk_bf16_f32 v{T+r}, v{ACC+2*r}, v{ACC+2*r+1}')
    for q in range(2):
        a(f'v_permlane32_swap_b32 v{T+4*q}, v{T+4*q+2}')
        a(f'v_permlane32_swap_b32 v{T+4*q+1}, v{T+4*q+3}')
    a(f'buffer_store_dwordx4 {v(T,4)}, v11, s[12:15], s32 offen {OMOD}')
    a(f'buffer_store_dwordx4 {v(T+4,4)}, v11, s[12:15], s32 offen offset:32 {OMOD}')
    a('s_branch P_fin')
    for g in range(4):
        a.label(f'P_r{g}')
        a(f'ds_read_b32 v28, v14\ns_add_u32 s95, s95, 1\ns_cmp_lt_u32 s95, 0x2000000\ns_waitcnt lgkmcnt(0)\ns_cbranch_scc1 P_n{g}\ns_branch P_g{g}')
    a.label('P_fetch')
    a(f"""
    s_lshl_b32 s37, s52, {F2S+2}
    s_lshl_b32 s38, s29, {F2S}
    s_add_u32 s37, s37, s38
    s_add_u32 s37, s37, {F2}
    v_lshl_add_u32 v16, v1, 2, s37
    s_mov_b64 exec, 0xf
    buffer_load_dword v17, v16, s[16:19], 0 offen sc1
    s_mov_b64 exec, -1
    s_lshl_b32 s38, s52, 15
    s_lshl_b32 s39, s29, 13
    s_add_u32 s38, s38, s39
    s_add_u32 s38, s38, {WS_O}
    s_add_u32 s39, s39, {OL}
    s_lshl_b32 s37, s29, 2
    v_add_u32 v15, s37, v15
    v_mov_b32 v14, s20
    s_waitcnt vmcnt(1)
    s_barrier
    s_waitcnt vmcnt(0)
    v_cmp_ne_u32 s[44:45], s20, v17
    """)
    stamp(a, 9)
    a(f's_cmp_lg_u32 s3, 7\ns_cbranch_scc1 P_nowo\ns_mov_b32 s48, {96*1024}\ns_mov_b32 s50, {96*3584}')
    a.label('P_wo')
    a(f"""
    s_mov_b32 m0, s48
    s_add_u32 s48, s48, 1024
    buffer_load_dwordx4 v8, s[8:11], s50 offen lds
    s_add_u32 s50, s50, 3584
    s_cmp_le_u32 s50, {D*D*2}
    s_cbranch_scc1 P_wo
    """)
    a.label('P_nowo')
    if PIPE_POLL:
        a('s_mov_b64 exec, 0xf\ns_mov_b32 s62, 0')
        for k in range(PIPE_POLL - 1):
            a(f'buffer_load_dword v{20+k}, v16, s[16:19], 0 offen sc1\ns_sleep {F2_SLEEP}')
        a.label('PL_f2')
        for k in range(PIPE_POLL):
            a(f'buffer_load_dword v{20+(k+PIPE_POLL-1)%PIPE_POLL}, v16, s[16:19], 0 offen sc1')
            a(f's_waitcnt vmcnt({PIPE_POLL-1})')
            a(f'v_cmp_ne_u32 vcc, s20, v{20+k}\ns_nop 4\ns_cbranch_vccz PL_f2_ok\ns_sleep {F2_SLEEP}')
        a(f's_add_u32 s62, s62, 1\ns_cmp_lt_u32 s62, {POLL_LIMIT}\ns_cbranch_scc1 PL_f2')
        a.label('PL_f2_ok')
        a('s_mov_b64 exec, -1')
    else:
        a('s_and_b32 s44, s44, 15\ns_cbranch_scc0 PL_f2_ok')
        poll(a, 'PL_f2', 16, 17, mask=0xf, sleep=F2_SLEEP)
    stamp(a, 10)
    for hlf in range(2):
        a(f's_add_u32 m0, s39, {hlf*4096}')
        if hlf: a('s_add_u32 s38, s38, 4096')
        else: a('s_nop 0')
        for n in range(4): a(f'buffer_load_dwordx4 v2, s[16:19], s38 offen offset:{n*1024} sc1 lds')
    a('s_waitcnt vmcnt(0)\nds_write_b32 v15, v14')
    stamp(a, 11)
    y_piece(a)
    a('s_cmp_lg_u32 s2, 240\ns_cbranch_scc1 P_fin\ns_cmp_lg_u32 s3, 4\ns_cbranch_scc1 P_fin')
    a(f'v_lshlrev_b32 v16, {F2S}, v5\nv_add_u32 v16, {F2 + (56 << (F2S+2))}, v16')
    poll(a, 'PL_ep', 16, 20, x4=True, sleep=2)
    a(f's_mov_b32 s36, {EPOCH}')
    signal(a, 36, 16, 17)
    a.label('P_fin')

def kernel(a):
    if STAMPS or DIAG >= 0:
        a('v_mov_b32 v254, 0')
        stamp(a, 0)
    prologue(a)
    ph_front(a)
    ph_att(a)
    ph_out(a)
    if DIAG >= 0:
        a('s_waitcnt vmcnt(0)')
        stamp(a, 12)
        a(f"""
        s_cmp_lg_u32 s3, {int(os.environ.get('DIAGW', 0))}
        s_cbranch_scc1 L_end
        s_cmp_ge_u32 s23, 28
        s_cbranch_scc1 L_end
        v_readlane_b32 s36, v254, 0
        v_readlane_b32 s37, v254, {DIAG}
        s_memrealtime s[90:91]
        s_waitcnt lgkmcnt(0)
        s_sub_u32 s36, s37, s36
        s_min_u32 s36, s36, 10000
        s_mov_b32 s37, s90
        """)
        a.label('D_spin')
        a("""
        s_memrealtime s[90:91]
        s_waitcnt lgkmcnt(0)
        s_sub_u32 s38, s90, s37
        s_cmp_lt_u32 s38, s36
        s_cbranch_scc1 D_spin
        """)
    if STAMPS:
        a('s_waitcnt vmcnt(0)')
        stamp(a, 12)
        a(f"""
        s_mov_b32 s18, {WS_STAMP + (1<<20)}
        s_lshl_b32 s36, s2, 3
        s_add_u32 s36, s36, s3
        s_lshl_b32 s36, s36, 6
        s_add_u32 s36, s36, {WS_STAMP}
        v_lshl_add_u32 v2, v1, 2, s36
        s_mov_b64 exec, 0xffff
        buffer_store_dword v254, v2, s[16:19], 0 offen
        s_cmp_lg_u32 s2, 100
        s_cbranch_scc1 L_end
        s_cmp_lg_u32 s3, 0
        s_cbranch_scc1 L_end
        v_readfirstlane_b32 s36, v254
        v_lshlrev_b32 v2, 2, v1
        v_subrev_u32 v254, s36, v254
        s_mov_b64 exec, 0x7ffe
        """)
        srd(a, 56, P_DBG, 256)
        a('buffer_store_dword v254, v2, s[56:59], 0 offen')
    a.label('L_end')
    a('s_endpgm')
    ph_slow(a)

def build(path):
    hdr = open(f'cdna_kernels/{NAME}.s.ref').read().split('\n')
    out = [l for l in hdr if l.startswith(';') and '@launch' not in l][:16]
    out.append(f'; @launch grid=(256,1,1) block=(512,1,1) lds={LDS_TOTAL}')
    out.append('.amdgcn_target "amdgcn-amd-amdhsa--gfx950"')
    out.append('.text')
    label = NAME + '_kernel'
    a = Asm(); kernel(a)
    txt = '\n'.join(out) + f'\n.globl {label}\n.p2align 8\n.type {label},@function\n{label}:\n' + a.finalize()
    txt += f'''.section .rodata,"a"
.p2align 6
.amdhsa_kernel {label}
  .amdhsa_next_free_vgpr 256
  .amdhsa_next_free_sgpr 102
  .amdhsa_accum_offset 256
  .amdhsa_group_segment_fixed_size 0
  .amdhsa_kernarg_size 104
  .amdhsa_user_sgpr_count 2
  .amdhsa_user_sgpr_kernarg_segment_ptr 1
  .amdhsa_system_sgpr_workgroup_id_x 1
.end_amdhsa_kernel
'''
    open(path, 'w').write(txt)

if __name__ == '__main__':
    if '--stamps' in sys.argv: STAMPS = True; sys.argv.remove('--stamps')
    path = sys.argv[1] if len(sys.argv) > 1 else f'cdna_kernels/{NAME}.s'
    build(path)
    import subprocess
    subprocess.run(['clang', '-x', 'assembler', '-target', 'amdgcn-amd-amdhsa', '-mcpu=gfx950', '-c', path, '-o', '_sz.o'], check=True)
    hdr = subprocess.run(['llvm-objdump', '-h', '_sz.o'], capture_output=True, text=True).stdout
    size = int([l for l in hdr.splitlines() if '.text' in l][0].split()[2], 16)
    CODE_KB[0] = size // 1024 - 1
    _gw[0] = 0
    build(path)
    print('code bytes', size)
```

```python
import sys, math, struct, os, re
DBG = os.environ.get('DBG', '')
sys.path.insert(0, 'work')
from asmgen import *

STAMPS = False
NAME = 'concat_heads__mha_block__ssm_conv_s4d__prompt'
S = 2048; D = 448; H = 16; DH = 28
TILEB = 56 * 512
FS = int(os.environ.get('FS', 4))
F0 = 0; F1 = 32768; F2 = 65536; EPOCH = 98304; F3 = 102400
WS_Q = 131072
WS_K = WS_Q + 64 * TILEB
WS_V = WS_K + 64 * TILEB
WS_O = WS_V + 64 * TILEB
WS_UT = WS_O + 64 * 32768
WS_YT = WS_UT + 112 * 16384
WS_END = WS_YT + 224 * 8192
WS_STAMP = 16 << 20
LDS_TOTAL = 163840
POLL_LIMIT = 1000000
PRIO_IT = 3
TLBW = int(os.environ.get('TLBW', 0))
REQ_POS = int(os.environ.get('REQ_POS', 1))
D_FROM = int(os.environ.get('D_FROM', 11))
LORD = int(os.environ.get('LORD', 0))
D2J = int(os.environ.get('D2J', 99))
DEPTH2 = int(os.environ.get('DEPTH2', 6))
PRE_C = float(os.environ.get('PRE_C', 1.6))
B_FIRST = int(os.environ.get('B_FIRST', 1))
GS = eval(os.environ.get('GS', '(1,2,3,4,5,6,7,8,9)'))
BW = eval(os.environ.get('BW', '[0,4,3,3,1,3,3,2,2,2,2,2,2,3]'))
PRIO_U = int(os.environ.get('PRIO_U', 4))
SIG_CUT = float(os.environ.get('SIG_CUT', 0.4))
LOOK_POS = int(os.environ.get('LOOK_POS', 1))
F2S = int(os.environ.get('F2S', 7))
PIPE_POLL = int(os.environ.get('PIPE_POLL', 0))
F2_SLEEP = int(os.environ.get('F2_SLEEP', 1))
AMAP = int(os.environ.get('AMAP', 0))
LITE_SLEEP = int(os.environ.get('LITE_SLEEP', 10))
B_PRE = int(os.environ.get('B_PRE', 10))
B_LAST = int(os.environ.get('B_LAST', 13))
D_PER = int(os.environ.get('D_PER', 0))
PKMUL = int(os.environ.get('PKMUL', 0))
NBP = int(os.environ.get('NBP', 7))
KM_PTS = eval(os.environ.get('KM_PTS', '(7, 13)'))
B_PRIO = int(os.environ.get('B_PRIO', 0))
KM_SPLIT = int(os.environ.get('KM_SPLIT', 10))
A_SLEEP0 = int(os.environ.get('A_SLEEP0', 12))
KM_J = int(os.environ.get('KM_J', 1))
BPRE_J = int(os.environ.get('BPRE_J', 0))
A_SLEEP = int(os.environ.get('A_SLEEP', 1))
FILL_MAX = int(os.environ.get('FILL_MAX', 16))
YMOD = os.environ.get('YMOD', 'nt')
OMOD = os.environ.get('OMOD', 'nt')
SPREAD = int(os.environ.get('SPREAD', 1))
CODE_KB = [1]
CODE_PF = int(os.environ.get('CODE_PF', 1))
NA = int(os.environ.get('NA', 16))
PRIO_LEFT = int(os.environ.get('PRIO_LEFT', 1))
CONV_PRIO = int(os.environ.get('CONV_PRIO', 0))
PRIO_CMP = 'lt'
SCHED_C = [3, 3, 3, 1, 1]
U_ISS = int(os.environ.get('U_ISS', -1)); U_TR = int(os.environ.get('U_TR', 4)); F0_SIG = int(os.environ.get('F0_SIG', 7))
F0_TRY = (7, 10)
F0_LAG = 2
PRE_ST = int(os.environ.get('PRE_ST', 2))
CONV_T0 = int(os.environ.get('CONV_T0', 22))
XMOD = os.environ.get('XMOD', '')
F1_SLEEP = 8
KG_CUT = float(os.environ.get('KG_CUT', 0.4))
LD_PER = int(os.environ.get('LD_PER', 50))

def f32bits(x): return struct.unpack('<I', struct.pack('<f', x))[0]
QSCALE = math.log2(math.e) / math.sqrt(DH)
LOG2E = math.log2(math.e)
P_X, P_W, P_WO, P_U, P_LA, P_AI, P_CR, P_CI, P_DT, P_DS, P_OUT, P_DBG, P_WS = [64 + 2*i for i in range(13)]

DIAG = int(os.environ.get('DIAG', -1))
_jc = [0]
JIT = int(os.environ.get('JIT', 0))
def stamp(a, n):
    if JIT and n > 0:
        _jc[0] += 1
        a(f's_lshl_b32 s90, s2, 3\ns_add_u32 s90, s90, s3\ns_add_u32 s90, s90, {(_jc[0]*7919 + JIT*104729) & 0xffff}\ns_mul_i32 s90, s90, 0x9e3779b1\ns_lshr_b32 s90, s90, 29\ns_cmp_lg_u32 s90, 0\ns_cbranch_scc1 JT{_jc[0]}\ns_sleep 127')
        a.label(f'JT{_jc[0]}')
    if STAMPS or (DIAG >= 0 and n in (0, DIAG)):
        a('s_memrealtime s[90:91]')
        a('s_waitcnt lgkmcnt(0)')
        a(f'v_writelane_b32 v254, s90, {n}')
        if n in (6, 7) and os.environ.get('CYC'):
            a('s_memtime s[90:91]')
            a('s_waitcnt lgkmcnt(0)')
            a(f'v_writelane_b32 v254, s90, {n+7}')

def srd(a, base_s, ptr_s, nbytes):
    a(f's_mov_b32 s{base_s}, s{ptr_s}')
    a(f's_and_b32 s{base_s+1}, s{ptr_s+1}, 0xffff')
    a(f's_mov_b32 s{base_s+2}, {nbytes}')
    a(f's_mov_b32 s{base_s+3}, 0x20000')

def poll(a, name, voff, tmp, mask=-1, x4=False, sleep=4):
    if mask != -1:
        a(f's_mov_b32 exec_lo, {mask & 0xffffffff}')
        a(f's_mov_b32 exec_hi, {mask >> 32}')
    a('s_mov_b32 s62, 0')
    a.label(name)
    if x4:
        a(f'buffer_load_dwordx4 {v(tmp,4)}, v{voff}, s[16:19], 0 offen sc1')
        a('s_waitcnt vmcnt(0)')
        for i in range(4): a(f'v_xor_b32 v{tmp+i}, s20, v{tmp+i}')
        a(f'v_or3_b32 v{tmp}, v{tmp}, v{tmp+1}, v{tmp+2}')
        a(f'v_or_b32 v{tmp}, v{tmp}, v{tmp+3}')
        a(f'v_cmp_ne_u32 vcc, 0, v{tmp}')
    else:
        a(f'buffer_load_dword v{tmp}, v{voff}, s[16:19], 0 offen sc1')
        a('s_waitcnt vmcnt(0)')
        a(f'v_cmp_ne_u32 vcc, s20, v{tmp}')
    a('s_nop 4')
    a(f's_cbranch_vccz {name}_ok')
    a(f's_sleep {sleep}')
    a('s_add_u32 s62, s62, 1')
    a(f's_cmp_lt_u32 s62, {POLL_LIMIT}')
    a(f's_cbranch_scc1 {name}')
    a.label(name + '_ok')
    a('s_mov_b64 exec, -1')

def signal(a, soff, vt0, vt1):
    a(f'v_mov_b32 v{vt0}, s{soff}')
    a(f'v_mov_b32 v{vt1}, s20')
    a('s_mov_b64 exec, 1')
    a(f'buffer_store_dword v{vt1}, v{vt0}, s[16:19], 0 offen sc1')
    a('s_mov_b64 exec, -1')


CV, C1 = 250, 251
def garrive(a, off, cv=CV):
    a('s_mov_b64 exec, 1')
    a(f'ds_add_u32 v{cv}, v{C1} offset:{off}')
    a('s_mov_b64 exec, -1')
_gw = [0]
def gwait(a, off, target, tmp, cv=CV):
    _gw[0] += 1; name = f'GW{_gw[0]}'
    a.label(name)
    a(f'ds_read_b32 v{tmp}, v{cv} offset:{off}')
    a('s_waitcnt lgkmcnt(0)')
    a(f'v_readfirstlane_b32 s62, v{tmp}')
    a(f's_cmp_ge_u32 s62, {target}')
    a(f's_cbranch_scc1 {name}_ok')
    a('s_sleep 1')
    a('s_add_u32 s95, s95, 1')
    a('s_cmp_lt_u32 s95, 0x2000000')
    a(f's_cbranch_scc1 {name}')
    a.label(name + '_ok')

def prologue(a):
    a(f"""
    s_cmp_ge_u32 s2, 256
    s_cbranch_scc1 L_end
    s_load_dwordx16 s[64:79], s[0:1], 0
    """)
    if CODE_PF:
        a(f"""
        s_getpc_b64 s[96:97]
        s_bfe_u32 s98, s2, 0x20003
        s_lshl_b32 s98, s98, 13
        v_lshl_add_u32 v2, v0, 4, s98
        v_min_u32 v2, {CODE_KB[0]*1024 + 768}, v2
        global_load_dwordx4 v[192:195], v2, s[96:97]
        """)
    a(f"""
    s_load_dwordx8 s[80:87], s[0:1], 64
    s_load_dwordx2 s[88:89], s[0:1], 96
    v_lshrrev_b32 v2, 6, v0
    v_and_b32 v1, 63, v0
    v_readfirstlane_b32 s3, v2
    s_and_b32 s22, s2, 7
    s_lshr_b32 s23, s2, 3
    """)
    a(f"""
    s_and_b32 s27, s22, 1                  ; odd
    s_lshr_b32 s24, s23, 3                 ; cl' (0..3)
    s_lshl_b32 s25, s27, 2
    s_add_u32 s25, s25, s24
    s_and_b32 s26, s23, 7                  ; rbl
    s_lshl_b32 s28, s26, 1
    s_add_u32 s28, s28, s27
    s_cmp_eq_u32 s24, 3
    s_cselect_b32 s25, 3, s25
    s_cselect_b32 s26, s28, s26
    s_lshl_b32 s24, s24, 1
    s_add_u32 s24, s24, s26
    s_lshr_b32 s28, s22, 1
    s_lshl_b32 s28, s28, 3
    s_add_u32 s26, s26, s28                ; rb
    s_mul_i32 s21, s22, 28
    s_add_u32 s21, s21, s23
    s_cmp_ge_u32 s23, 28
    s_cbranch_scc1 L_lite
    """)

def lite_path(a):
    a.label('L_lite')
    a('s_waitcnt lgkmcnt(0)')
    srd(a, 4, P_W, D * 3 * D * 2)
    a(f"""
    s_sub_u32 s36, s23, 28
    s_lshl_b32 s36, s36, 3
    s_add_u32 s36, s36, s3
    s_mul_i32 s36, s36, {14*2688}
    v_lshrrev_b32 v2, 3, v1
    v_min_u32 v4, 5, v2
    v_mul_u32_u24 v2, 2688, v2
    v_mul_u32_u24 v4, 2688, v4
    v_and_b32 v3, 7, v1
    v_lshl_add_u32 v2, v3, 4, v2
    v_lshl_add_u32 v4, v3, 4, v4
    s_add_u32 s37, s36, {TA*896 + 384}
    buffer_load_dwordx4 v[64:67], v2, s[4:7], s37 offen
    s_add_u32 s37, s37, {8*2688}
    buffer_load_dwordx4 v[68:71], v4, s[4:7], s37 offen
    v_lshrrev_b32 v2, 5, v1
    v_mul_u32_u24 v2, 2688, v2
    v_and_b32 v3, 31, v1
    v_lshl_add_u32 v2, v3, 4, v2
    s_mul_i32 s37, s27, 384
    s_add_u32 s36, s36, s37
    """)
    seq = {0: [(TB, i) for i in range(7)] + [(TC, i) for i in range(7)], 1: [(TC, i) for i in range(7)] + [(TB, i) for i in range(7)],
           2: [(t, i) for i in range(7) for t in (TB, TC)], 3: [(TC, i) for i in range(7)]}[LORD]
    for n, (ty, i) in enumerate(seq):
        a(f's_add_u32 s37, s36, {ty*896 + 2*i*2688}')
        a(f'buffer_load_dwordx4 {v(72+4*n,4)}, v2, s[4:7], s37 offen')
    srd(a, 16, P_WS, WS_END)
    srd(a, 12, P_OUT, S * 2 * D * 2)
    a(f"""
    s_mov_b32 s36, {EPOCH}
    buffer_load_dword v253, off, s[16:19], s36 sc1
    s_waitcnt vmcnt(0)
    v_readfirstlane_b32 s20, v253
    s_add_u32 s20, s20, 1
    {'s_endpgm' if 'gemmonly' in DBG else ''}
    """)
    a('s_mov_b32 s95, 0')
    att_poll_addr(a, 176)
    su, _ = att_pre_groups()
    emit_groups(a, su + tail_setup() + att_zero())
    a(f"""
    s_sub_u32 s36, s23, 28
    s_lshl_b32 s36, s36, 3
    s_add_u32 s36, s36, s3
    s_mul_i32 s36, s36, 12544
    v_lshl_add_u32 v2, v1, 4, s36
    """)
    for i in range(13):
        a(f's_mov_b32 s36, {1024*i}')
        a(f'buffer_load_dwordx4 {v(184+4*i,4)}, v2, s[8:11], s36 offen')
    a('s_waitcnt vmcnt(0)')
    a('s_cmp_lg_u32 s3, 0\ns_cbranch_scc1 L_lite1')
    poll(a, 'PL_f1a', 176, 180, mask=1 << 63, x4=True, sleep=4)
    poll(a, 'PL_f1b', 176, 180, x4=True, sleep=1)
    a.label('L_lite1')
    a('s_setprio 2')
    a('s_barrier')
    a('s_branch L_pre')

RING0 = 0; SLOT = 16384; NS = 8; DEPTH = int(os.environ.get('DEPTH', 4)); MAXI = int(os.environ.get('MAXI', 2))
def slot_of(j): return (j + 2) % NS
XYP = 1056; XYCH = 53 * XYP
GP = 8384; GCH = 260 * 16
L_G = 0
L_T2 = 114688; TP = 328; T2CH = 8 * TP * 2
L_U = 131072; UCH = 96 * 80
L_CTL = L_U + 2 * UCH
L_TAB = 147456
L_SC = 95 * 1024
L_PART = 49152; PSRC = 1024; POWN = 4096
assert L_CTL + 16 <= L_TAB and 4*GP <= L_PART and 2*XYCH <= L_T2

_PK = [0]
def cmul(o, d, x, e, t):
    if _PK[0]:
        o.append(f'v_pk_mul_f32 {v(t,2)}, {v(x,2)}, {v(e,2)} op_sel:[0,0] op_sel_hi:[1,0]')
        o.append(f'v_pk_fma_f32 {v(d,2)}, {v(x,2)}, {v(e,2)}, {v(t,2)} op_sel:[1,1,0] op_sel_hi:[0,1,1] neg_lo:[1,0,0]')
    else:
        o.append(f'v_mul_f32 v{t}, v{x+1}, v{e+1}')
        o.append(f'v_mul_f32 v{t+1}, v{x}, v{e+1}')
        o.append(f'v_fma_f32 v{d}, v{x}, v{e}, -v{t}')
        o.append(f'v_fma_f32 v{d+1}, v{x+1}, v{e}, v{t+1}')

def lines(txt): return [l.strip() for l in txt.split('\n') if l.strip()]

_KM = {}
PKB = [64, 117]
def _mk():
    pairs_pre = [20, 22, 24, 26, 28, 30, 32, 34, 36, 38, 40, 42, 48, 50, 52, 54]
    for i, r in enumerate(pairs_pre): _KM[r] = 170 + 2*i; _KM[r+1] = 171 + 2*i
    for i, r in enumerate([2, 3, 4, 5, 6, 7, 8, 9]): _KM[r] = 202 + i
    _KM[70] = 48; _KM[71] = 49
    for i, r in enumerate(range(56, 64)): _KM[r] = 40 + i
    for c in range(2):
        for row in range(53): _KM[1000 + 100*c + row] = PKB[c] + row
_mk()
def kmap(l, ch):
    M = _KM
    def one(m): return f'v{M.get(int(m.group(1)), int(m.group(1)))}'
    def rng(m):
        lo = int(m.group(1)); hi = int(m.group(2)); n = M.get(lo, lo); return f'v[{n}:{n+hi-lo}]'
    l = re.sub(r'v\[(\d+):(\d+)\]', rng, l)
    return re.sub(r'\bv(\d+)\b', one, l)

def kgen(ch):
    P = 240 + 4*ch
    _PK[0] = (PKMUL >> ch) & 1
    pre = lines(f"""
    {'s_lshl_b32 s58, s38, 16' if ch == 0 else 's_and_b32 s58, s38, 0xffff0000'}
    v_mov_b32 v4, s58
    v_mul_f32 v4, {f32bits(LOG2E)}, v4
    v_exp_f32 v4, v4
    v_lshlrev_b32 v2, 16, v{P}
    v_lshlrev_b32 v3, 16, v{P+1}
    v_lshlrev_b32 v20, 16, v{P+2}
    v_lshlrev_b32 v21, 16, v{P+3}
    v_cvt_pk_bf16_f32 v4, v4, v4
    v_mul_f32 v2, {f32bits(LOG2E)}, v2
    v_exp_f32 v2, v2
    v_and_b32 v4, 0xffff0000, v4
    v_mul_f32 v3, v3, v4
    v_cvt_pk_bf16_f32 v2, v2, v2
    v_and_b32 v2, 0xffff0000, v2
    v_mul_f32 v2, v2, v4
    v_mul_f32 v2, {f32bits(-LOG2E)}, v2
    v_mul_f32 v3, {f32bits(1/(2*math.pi))}, v3
    v_add_f32 v4, v4, v4
    v_mul_f32 v20, v20, v4
    v_mul_f32 v21, v21, v4
    """)
    E1, E8, E256, E2, E4, E16, E32 = 22, 24, 26, 28, 30, 32, 34
    for (E, p) in ((E1, 1.0), (E8, 8.0), (E256, 256.0)):
        pre += lines(f"""
        v_mul_f32 v6, {f32bits(p)}, v2
        v_mul_f32 v7, {f32bits(p)}, v3
        v_exp_f32 v6, v6
        v_fract_f32 v7, v7
        v_cos_f32 v8, v7
        v_sin_f32 v9, v7
        v_mul_f32 v{E}, v6, v8
        v_mul_f32 v{E+1}, v6, v9
        """)
    cmul(pre, E2, E1, E1, 6); cmul(pre, E16, E8, E8, 8)
    cmul(pre, E4, E2, E2, 6); cmul(pre, E32, E16, E16, 8)
    Y = [48, 50, 52, 54]
    def put(o, row, x, r, neg=False):
        o.append(f'v_cvt_pk_bf16_f32 v{1000+100*ch+row}, v{x}, {"-" if neg else ""}v{x+1}')
    chains = []
    for c in range(4):
        o = []
        cur = {0: None, 1: E8, 2: E16, 3: Y[3]}[c]
        if c == 3: cmul(o, Y[3], E16, E8, 36 + 2*c)
        for step in range(8):
            if cur is None:
                o.append(f'v_mov_b32 v{1000+100*ch+21}, 0x3f80')
                cur = E32; continue
            put(o, 21 + 4*step + c, cur, 44 + c)
            if step < 7: cmul(o, Y[c], cur, E32, 36 + 2*c); cur = Y[c]
        chains.append(o)
    XC, GC, SD, SD2 = 56, 58, 60, 62
    o = []
    put(o, 0, 20, 68, True)
    for step in range(7):
        cmul(o, XC, 20 if step == 0 else XC, E1, 6); put(o, step + 1, XC, 68, True)
    chains.append(o)
    grow = {1: 8, 2: 12, 3: 14, 4: 16, 5: 17, 6: 18, 7: 19, 8: 20}
    G = [58, 10, 12, 58, 58, 58, 58, 58]
    G = [10, 12, 18, 58, 58, 58, 58, 58]
    o = []
    for step in range(8):
        cmul(o, G[step], 20 if step == 0 else G[step-1], E256, 8); put(o, grow[step+1], G[step], 69, True)
    chains.append(o)
    o = [None]*(9 if _PK[0] else 15)
    cmul(o, SD, G[0], E2, 70); put(o, 9, SD, 5, True)
    cmul(o, SD2, G[0], E4, 70); put(o, 10, SD2, 5, True)
    cmul(o, SD, SD2, E2, 70); put(o, 11, SD, 5, True)
    cmul(o, SD2, G[1], E4, 70); put(o, 13, SD2, 5, True)
    cmul(o, SD, G[2], E4, 70); put(o, 15, SD, 5, True)
    chains.append(o)
    body = []
    for k in range(max(len(c) for c in chains)):
        for c in chains:
            if k < len(c) and c[k] is not None: body.append(c[k])
    return [kmap(l, ch) for l in pre], [kmap(l, ch) for l in body]

def kmfma():
    FA = 112; FB = 144; KA = 176; NBF = 8
    o = []
    LA = 5
    for st in range(16 + LA):
        if st < 16:
            o.append(f'ds_read_b128 {v(FA+4*(st%NBF),4)}, v20 offset:{st*64}')
            o.append(f'ds_read_b128 {v(FB+4*(st%NBF),4)}, v21 offset:{st*64}')
        if st >= LA:
            k = st - LA
            o.append(f's_waitcnt lgkmcnt({2*min(LA, 15-k)})')
            o.append(f'v_mfma_f32_16x16x32_bf16 {v(KA,4)}, {v(FA+4*(k%NBF),4)}, {v(FB+4*(k%NBF),4)}, {"0" if k == 0 else v(KA,4)}')
    o += lines(f"""
    ds_write_b16 v26, v32
    v_add_f32 v{KA}, v{KA}, v27
    v_cvt_pk_bf16_f32 v{KA+4}, v{KA}, v{KA+1}
    v_cvt_pk_bf16_f32 v{KA+5}, v{KA+2}, v{KA+3}
    ds_write_b16 v22, v{KA+4}
    ds_write_b16_d16_hi v23, v{KA+4}
    ds_write_b16 v24, v{KA+5}
    ds_write_b16_d16_hi v25, v{KA+5}
    s_waitcnt lgkmcnt(0)
    """)
    return o

def subroutines(a):
    a.label('SUB_KMFMA')
    for l in kmfma(): a(l)
    a('s_setpc_b64 s[90:91]')

def kmaddr(a, ch):
    a(f"""
    v_and_b32 v20, 15, v1
    v_lshrrev_b32 v21, 4, v1
    v_mul_u32_u24 v20, {XYP}, v20
    v_lshl_add_u32 v20, v21, 4, v20
    s_and_b32 s36, s3, 1
    s_mul_i32 s36, s36, {16*XYP}
    s_add_u32 s36, s36, {21*XYP + (1-ch)*XYCH}
    v_add_u32 v21, s36, v20
    s_mul_i32 s36, s63, {16*XYP}
    s_add_u32 s36, s36, {(1-ch)*XYCH}
    v_add_u32 v20, s36, v20
    v_and_b32 v26, 7, v1
    v_mul_u32_u24 v26, {2*TP}, v26
    v_add_u32 v26, {L_T2 + 2*(TP-1) + ch*T2CH}, v26
    v_mov_b32 v32, 0
    """)

def kmskip(a, ch):
    a(f"""
    {'s_lshl_b32 s36, s39, 16' if ch == 0 else 's_and_b32 s36, s39, 0xffff0000'}
    s_cmp_eq_u32 s29, 0
    s_cselect_b32 s36, s36, 0
    v_mov_b32 v27, 0
    v_writelane_b32 v27, s36, 0
    """)
def call(a, name): a(f's_call_b64 s[90:91], {name}')

def gbuild(a, ch, copies):
    g = 64; d = 80
    lo = min(copies); hi = max(copies) + 8
    for i in range(lo, hi): a(f'ds_read_u16 v{g+i}, v{224+i} offset:{ch*T2CH}')
    a('s_waitcnt lgkmcnt(0)')
    for t in copies:
        for i in range(4): a(f'v_lshl_or_b32 v{d+4*t+i}, v{g+t+2*i+1}, 16, v{g+t+2*i}')
        a(f'ds_write_b128 v249, {v(d+4*t,4)} offset:{t*GP + ch*GCH}')

def gtabs(a):
    a(f"""
    v_and_b32 v14, 255, v0
    v_lshlrev_b32 v249, 4, v14
    v_add_u32 v15, {L_TAB}, v249
    """)
    for q in range(3): a(f'ds_read_b128 {v(224+4*q,4)}, v15 offset:{q*4096}')
    a(f'ds_read_b128 v[22:25], v15 offset:{3*4096}')

K_, V_, Q_ = 1, 2, 0
TA, TB, TC = Q_, K_, V_
stages = [[('x',0),(TA,0)], [('x',1),('x',2)], [(TA,1),(TA,2)]]
for _i in range(3, 7): stages.append([('x', _i), (TA, _i)])
_rest = [(TB, i) for i in range(7)] + [(TC, i) for i in range(7)]
for _i in range(7): stages.append(_rest[2*_i:2*_i+2])
NST = len(stages)

def ph_front(a):
    a(f"""
    s_mov_b32 s95, 0
    v_mov_b32 v{CV}, {L_CTL}
    v_mov_b32 v{C1}, 1
    v_lshrrev_b32 v3, 3, v1
    v_and_b32 v4, 7, v1
    s_and_b32 s29, s3, 3                   ; lw
    s_bfe_u32 s63, s3, 0x10001
    s_and_b32 s61, s3, 1
    s_cmp_ge_u32 s3, 4
    s_cbranch_scc1 Q_ssm
    """)
    comp_waves(a)
    a.label('Q_ssm')
    ssm_waves(a)
    lite_path(a)

UV = [220, 221, 222, 252, 255]
def ssm_waves(a):
    a(f"""
    s_setprio {B_PRIO}
    v_and_b32 v14, 255, v0
    s_lshl_b32 s37, s21, 10
    v_lshl_add_u32 v248, v14, 1, s37
    s_lshl_b32 s28, s29, 1
    v_xor_b32 v5, s28, v4
    v_lshlrev_b32 v5, 4, v5
    s_lshl_b32 s30, s26, 6
    s_lshl_b32 s31, s29, 4
    s_add_u32 s30, s30, s31
    v_add_u32 v6, s30, v3
    v_mul_u32_u24 v6, 896, v6
    s_lshl_b32 s31, s25, 7
    v_add_u32 v6, s31, v6
    v_add_u32 v7, v6, v5
    v_xor_b32 v5, 16, v5
    v_add_u32 v6, v6, v5
    v_add_u32 v6, 7168, v6
    s_lshl_b32 s31, s61, 11
    s_mul_i32 s32, s63, {UCH}
    s_add_u32 s31, s31, s32
    s_add_u32 s31, s31, {L_U + 2560}
    s_mov_b32 m0, s31
    s_lshl_b32 s36, s21, 2
    s_waitcnt lgkmcnt(0)
    """)
    srd(a, 16, P_WS, WS_END)
    a(f"""
    s_mov_b32 s33, {EPOCH}
    buffer_load_dword v253, off, s[16:19], s33 sc1
    """)
    for i in range(4):
        srd(a, 40 + 4*i, P_LA + 2*i, D * 256 * 2)
        a(f'buffer_load_ushort v{240+i}, v248, s[{40+4*i}:{43+4*i}], 0 offen nt')
        a(f'buffer_load_ushort v{244+i}, v248, s[{40+4*i}:{43+4*i}], 0 offen offset:512 nt')
    srd(a, 8, P_U, S * D * 2)
    a(f"""
    v_mov_b32 v54, v7
    v_mov_b32 v55, v6
    s_mov_b32 s34, s31
    """)
    if U_ISS < 0:
        a('buffer_load_dwordx4 v54, s[8:11], 0 offen nt lds')
        a('s_add_u32 m0, s34, 1024\ns_nop 0\nbuffer_load_dwordx4 v55, s[8:11], 0 offen nt lds')
    a(f"""
    s_add_u32 s{P_DT}, s{P_DT}, s36
    s_addc_u32 s{P_DT+1}, s{P_DT+1}, 0
    s_add_u32 s{P_DS}, s{P_DS}, s36
    s_addc_u32 s{P_DS+1}, s{P_DS+1}, 0
    s_load_dword s38, s[{P_DT}:{P_DT+1}], 0
    s_load_dword s39, s[{P_DS}:{P_DS+1}], 0
    """)
    srd(a, 12, P_OUT, S * 2 * D * 2)
    a(f"""
    v_and_b32 v5, 1, v1
    v_bfe_u32 v6, v1, 1, 1
    v_lshrrev_b32 v7, 4, v1
    v_add_u32 v2, s28, v5
    v_xor_b32 v7, v7, v2
    v_lshlrev_b32 v7, 4, v7
    v_lshl_add_u32 v7, v6, 3, v7
    v_bfe_u32 v6, v1, 2, 2
    v_lshl_add_u32 v6, v5, 3, v6
    v_lshl_add_u32 v7, v6, 7, v7
    v_add_u32 v50, s31, v7
    v_xor_b32 v51, 64, v50
    s_lshl_b32 s31, s25, 18
    s_lshl_b32 s33, s26, 9
    s_add_u32 s31, s31, s33
    s_lshl_b32 s33, s29, 7
    s_add_u32 s31, s31, s33
    s_add_u32 s31, s31, {WS_UT}
    v_lshlrev_b32 v52, 14, v3
    v_lshl_add_u32 v52, v4, 4, v52
    v_add_u32 v52, s31, v52
    s_lshl_b32 s59, s25, {FS+5}
    s_lshl_b32 s33, s26, {FS}
    s_add_u32 s59, s59, s33
    s_lshl_b32 s33, s29, 2
    s_add_u32 s59, s59, s33
    """)
    kmaddr(a, 1)
    t = Asm()
    t(f"""
    s_mov_b32 s101, {L_G + 4096}
    v_and_b32 v2, 3, v1
    v_mul_u32_u24 v2, {GP}, v2
    v_bfe_u32 v3, v1, 2, 2
    v_lshl_add_u32 v2, v3, 4, v2
    v_bfe_u32 v3, v1, 4, 1
    v_mul_u32_u24 v3, {GCH}, v3
    v_add3_u32 v217, v2, v3, s101
    s_lshl_b32 s36, s21, 1
    s_lshr_b32 s56, s36, 2
    s_lshl_b32 s56, s56, 14
    s_and_b32 s36, s36, 3
    s_lshl_b32 s36, s36, 4
    s_add_u32 s56, s56, s36
    s_add_u32 s56, s56, {WS_UT}
    s_mov_b32 s57, s56
    """)
    for k in range(5):
        t(f"""
        v_add_u32 v2, {64*k}, v1
        v_mul_u32_u24 v3, 205, v2
        v_lshrrev_b32 v3, 10, v3
        v_mul_u32_u24 v4, 5, v3
        v_sub_u32 v4, v2, v4
        v_min_u32 v4, 3, v4
        v_lshl_add_u32 v3, v3, 2, v4
        v_lshlrev_b32 v{UV[k]}, 6, v3
        """)
    t(f"""
    s_lshr_b32 s36, s21, 5
    s_lshl_b32 s36, s36, {FS+5}
    v_and_b32 v17, 31, v1
    v_lshl_add_u32 v223, v17, {FS}, s36
    v_lshrrev_b32 v18, 5, v1
    v_and_b32 v19, 3, v17
    v_sub_u32 v19, 3, v19
    v_mul_u32_u24 v19, {GP}, v19
    v_lshrrev_b32 v2, 2, v17
    v_lshlrev_b32 v3, 1, v18
    v_sub_u32 v2, v3, v2
    v_lshl_add_u32 v19, v2, 3, v19
    s_mul_i32 s36, s61, {GCH}
    s_lshl_b32 s56, s63, 10
    s_sub_u32 s36, s36, s56
    s_add_u32 s36, s36, {L_G + 8*511 - 32*94}
    v_add_u32 v218, s36, v19
    v_mul_u32_u24 v2, 80, v17
    v_lshl_add_u32 v2, v18, 4, v2
    s_mul_i32 s36, s61, {UCH}
    s_mul_i32 s56, s63, {16*80}
    s_sub_u32 s36, s36, s56
    s_add_u32 s36, s36, {L_U + 17*80}
    v_add_u32 v219, s36, v2
    v_mov_b64 v[32:33], 0
    v_mov_b64 v[34:35], 0
    v_and_b32 v14, 255, v0
    v_lshlrev_b32 v36, 4, v14
    v_add_u32 v36, {L_U}, v36
    v_cmp_gt_u32 vcc, 160, v14
    s_mov_b64 exec, vcc
    ds_write_b128 v36, v[32:35]
    ds_write_b128 v36, v[32:35] offset:{UCH}
    s_mov_b64 exec, -1
    ds_write2_b32 v{CV}, v32, v33 offset0:1 offset1:3
    ds_write_b32 v{CV}, v32
    """)
    for l in t.lines: a(l)
    stamp(a, 13)
    if 'nob' in DBG:
        for _ in range(14): a('s_barrier')
        a('s_branch P_fin')
    a('s_waitcnt lgkmcnt(0)')
    p0, b0 = kgen(0); p1, b1 = kgen(1)
    work = [(l, PRE_C) for l in p1] + [(l, 1) for l in b1] + [(l, PRE_C) for l in p0] + [(l, 1) for l in b0]
    if 'nowork' in DBG: work = []
    dump = {c: [f'ds_write_addtid_b32 v{PKB[c]+row} offset:{row*XYP}' for row in range(53)] for c in range(2)}
    for j in range(NST):
        a('s_barrier')
        if j == 0:
            stamp(a, 1)
            a('s_setprio 0')
            gtabs(a)
            kmskip(a, 1)
            scB, veB, _ = att_split()
            emit_groups(a, scB)
        if j == B_FIRST: a(f's_waitcnt vmcnt({2 if U_ISS < 0 else 0})')
        if j == B_FIRST: a('v_add_u32 v253, 1, v253')
        if j == F0_SIG:
            a('s_waitcnt vmcnt(0)')
            signal(a, 59, 2, 3)
        if j == U_ISS:
            a('s_mov_b32 m0, s34\ns_nop 0\nbuffer_load_dwordx4 v54, s[8:11], 0 offen nt lds')
            a('s_add_u32 m0, s34, 1024\ns_nop 0\nbuffer_load_dwordx4 v55, s[8:11], 0 offen nt lds')
        if j == U_TR:
            a(f"""
            s_waitcnt vmcnt(0)
            ds_read_b64_tr_b16 v[54:55], v50
            ds_read_b64_tr_b16 v[56:57], v50 offset:512
            ds_read_b64_tr_b16 v[58:59], v51
            ds_read_b64_tr_b16 v[60:61], v51 offset:512
            s_mov_b32 s36, {8*16384}
            s_lshl_b32 m0, s29, 8
            s_waitcnt lgkmcnt(0)
            {'' if 'noust' in DBG else 'buffer_store_dwordx4 v[54:57], v52, s[16:19], 0 offen sc1'}
            {'' if 'noust' in DBG else 'buffer_store_dwordx4 v[58:61], v52, s[16:19], s36 offen sc1'}
            v_readfirstlane_b32 s20, v253
            """)
            for r in range(22, 26): a(f'v_add_u32 v{r}, {T2CH}, v{r}')
        if B_FIRST <= j <= B_LAST:
            tot = sum(c for _, c in work); budget = tot * BW[j] / sum(BW[j:B_LAST+1])
            while work and (budget > 0 or j == B_LAST):
                l, c = work.pop(0); a(l); budget -= c
        if D_FROM <= j < NST - 1:
            for l in dump[1][:D_PER]: a(l)
            dump[1] = dump[1][D_PER:]
    assert not work
    a(f's_mov_b64 exec, 1\nds_write_b32 v{CV}, v253 offset:8\ns_mov_b64 exec, -1')
    a('s_cmp_eq_u32 s3, 4\ns_cselect_b32 s60, 1, 0\ns_cbranch_scc0 Q_nof0a')
    a('buffer_load_dwordx4 v[28:31], v223, s[16:19], 0 offen sc1')
    a.label('Q_nof0a')
    for l in dump[1]: a(l)
    a(f's_lshl_b32 s36, s29, 8\ns_add_u32 m0, s36, {XYCH}\ns_nop 0')
    for l in dump[0]: a(l)
    stamp(a, 2)
    if 'gemmonly' in DBG: a('s_branch P_fin')
    def nop(): pass
    def udma():
        a('s_add_u32 s56, s57, 16')
        for ch in range(2):
            for k in range(5):
                a(f's_mov_b32 m0, {L_U + 32*80 + ch*UCH + 1024*k}')
                a(f'buffer_load_dwordx4 v{UV[k]}, s[16:19], s{57-ch} offen sc1 lds')
    def look(tag, last=False):
        a(f's_cmp_eq_u32 s60, 0\ns_cbranch_scc1 Q_lk{tag}')
        if last:
            poll(a, 'PL_f0', 223, 28, x4=True, sleep=1)
        else:
            a('s_waitcnt vmcnt(0)')
            for i in range(4): a(f'v_xor_b32 v{28+i}, s20, v{28+i}')
            a('v_or3_b32 v28, v28, v29, v30\nv_or_b32 v28, v28, v31\nv_cmp_ne_u32 vcc, 0, v28')
            a(f's_nop 4\ns_cbranch_vccz Q_lg{tag}')
            a('buffer_load_dwordx4 v[28:31], v223, s[16:19], 0 offen sc1')
            a(f's_branch Q_lk{tag}')
            a.label(f'Q_lg{tag}')
        a('s_call_b64 s[90:91], Q_udma')
        a.label(f'Q_lk{tag}')
    a('s_waitcnt lgkmcnt(0)\ns_barrier')
    stamp(a, 3)
    look('z')
    for l in kmfma(): a(l)
    if LOOK_POS == 0: look('b')
    a('s_barrier')
    stamp(a, 14)
    if LOOK_POS == 1: look('b')
    a('s_mov_b32 exec_hi, 0\nds_write_b128 v217, v[32:35]\ns_mov_b32 exec_hi, -1')
    gbuild(a, 1, (0, 1, 2, 3))
    a(f'v_mov_b32 v249, {L_SC}\nds_write_b32 v249, v32')
    a(f's_cmp_lg_u32 s3, 4\ns_cbranch_scc1 Q_u0\ns_cmp_lg_u32 s60, 0\ns_cbranch_scc1 Q_u0\ns_waitcnt vmcnt(0)\nds_write_b32 v{CV}, v{C1}')
    a.label('Q_u0')
    a('s_waitcnt lgkmcnt(0)\ns_barrier')
    a('s_cmp_eq_u32 s60, 0\ns_cbranch_scc1 Q_uw')
    look('c', True)
    a('s_waitcnt vmcnt(0)')
    a(f'ds_write_b32 v{CV}, v{C1}')
    a.label('Q_uw')
    gwait(a, 0, 1, 2)
    stamp(a, 4)
    if CONV_PRIO: a('s_setprio 1')
    SC = 4; sc = [0]
    def sarr():
        a('s_waitcnt lgkmcnt(0)'); garrive(a, 0, 249); sc[0] += 4
    Y0, Y1 = 176, 192
    FR = 32; NBUF = 4
    def boff(n): return (n // 2) * 80 + (n % 2) * 32
    def ld(t):
        b = FR + 16 * (t % NBUF); ao = 32*(31-t)
        return [f'ds_read_b64 {v(b,2)}, v218 offset:{ao + 2048}',
                f'ds_read_b64 {v(b+2,2)}, v218 offset:{ao + 2056}',
                f'ds_read_b128 {v(b+4,4)}, v219 offset:{boff(31-t)}',
                f'ds_read_b128 {v(b+8,4)}, v219 offset:{boff(31-t) + 2560}',
                f'ds_read_b64 {v(b+12,2)}, v218 offset:{ao}',
                f'ds_read_b64 {v(b+14,2)}, v218 offset:{ao + 8}']
    def mm(t, first):
        b = FR + 16 * (t % NBUF)
        return [f'v_mfma_f32_32x32x16_bf16 {v(Y0,16)}, {v(b,4)}, {v(b+4,4)}, {"0" if first else v(Y0,16)}',
                f'v_mfma_f32_32x32x16_bf16 {v(Y1,16)}, {v(b,4)}, {v(b+8,4)}, {"0" if first else v(Y1,16)}',
                f'v_mfma_f32_32x32x16_bf16 {v(Y1,16)}, {v(b+12,4)}, {v(b+4,4)}, {v(Y1,16)}']
    for l in ld(0) + ld(1): a(l)
    t_ = Asm()
    t_(f"""
    s_lshl_b32 s36, s29, 12
    s_add_u32 s36, s36, {L_PART}
    v_lshl_add_u32 v216, v1, 4, s36
    s_xor_b32 s36, s36, 8192
    v_lshl_add_u32 v217, v1, 4, s36
    s_lshl_b32 s36, s21, 13
    s_lshl_b32 s60, s61, 12
    s_add_u32 s36, s36, s60
    s_lshl_b32 s60, s63, 11
    s_add_u32 s36, s36, s60
    s_add_u32 s36, s36, {WS_YT}
    v_and_b32 v220, 31, v1
    v_lshrrev_b32 v221, 5, v1
    v_lshlrev_b32 v220, 6, v220
    v_lshl_add_u32 v220, v221, 4, v220
    v_add_u32 v220, s36, v220
    s_mov_b32 s60, s63
    """)
    fillA = [[l] for l in t_.lines]
    _, fillB = att_pre_groups()
    fillA += veB
    if 'nofillc' in DBG:
        emit_groups(a, fillA); fillA = []; stamp(a, 4)
    T0 = CONV_T0
    def take(q, k):
        for _ in range(k):
            if q:
                for l in q.pop(0): a(l)
    if T0 >= 32: fillB = []
    perA = -(-len(fillA) // (3*min(T0, 30))); perB = -(-len(fillB) // (3*max(30 - T0, 1)))
    for t in range(32):
        if t == T0:
            gwait(a, 12, 1, 2)
        else:
            a(f's_waitcnt lgkmcnt({6 if t < 31 else 0})')
        if 'cstamp' in DBG and t in (12, 22): stamp(a, 13 if t == 12 else 14)
        L = ld(t + 2) if t + 2 < 32 else []
        M = mm(t, t == 0)
        q, per = (fillA, perA) if t < T0 else (fillB, perB)
        a(M[0])
        for l in L[:2]: a(l)
        take(q, per)
        a(M[1])
        for l in L[2:4]: a(l)
        take(q, per)
        a(M[2])
        for l in L[4:]: a(l)
        take(q, per)
    assert not fillA and not fillB
    if 'cstamp' in DBG: stamp(a, 3)
    a('s_setprio 1')
    PR = 208 + 16
    PR = 64
    a('s_cmp_eq_u32 s60, 0\ns_cbranch_scc1 S_h0')
    for hf in (1, 0):
        keep = Y1 if hf else Y0; send = Y0 if hf else Y1
        if hf == 0: a.label('S_h0')
        for q in range(4): a(f'ds_write_b128 v216, {v(send + 4*q, 4)} offset:{q*1024}')
        a('s_waitcnt lgkmcnt(0)'); garrive(a, 0, 249)
        gwait(a, 0, 4, 2, 249)
        for q in range(4): a(f'ds_read_b128 {v(PR + 4*q, 4)}, v217 offset:{q*1024}')
        for q in range(4):
            a(f's_waitcnt lgkmcnt({3-q})')
            for e in range(4): a(f'v_add_f32 v{PR+4*q+e}, v{PR+4*q+e}, v{keep+4*q+e}')
        if hf == 1: a('s_branch S_h1')
    a.label('S_h1')
    garrive(a, 0, 249)
    stamp(a, 5)
    for r in range(8): a(f'v_cvt_pk_bf16_f32 v{176+r}, v{PR+2*r}, v{PR+2*r+1}')
    for q in range(2):
        a(f'v_permlane32_swap_b32 v{176+4*q}, v{176+4*q+2}')
        a(f'v_permlane32_swap_b32 v{176+4*q+1}, v{176+4*q+3}')
    a('buffer_store_dwordx4 v[176:179], v220, s[16:19], 0 offen sc1')
    a('buffer_store_dwordx4 v[180:183], v220, s[16:19], 0 offen offset:32 sc1')
    emit_groups(a, att_zero())
    a('s_branch L_att')
    a.label('Q_udma')
    udma()
    a('s_mov_b32 s60, 0\ns_setpc_b64 s[90:91]')

def comp_waves(a):
    XF = 64; ACC = {K_: 176, V_: 192, Q_: 208}; WB = [[8 + 4*i for i in range(8)], [224 + 4*i for i in range(4)] + [40 + 4*i for i in range(4)]]
    a(f"""
    s_sub_u32 s28, s24, 7
    s_cmp_ge_u32 s24, 7
    s_cselect_b32 s27, s28, s24            ; rho
    s_lshl_b32 s30, s29, 4
    v_add_u32 v5, s30, v3
    v_lshrrev_b32 v6, 1, v5
    v_and_b32 v6, 7, v6
    v_xor_b32 v6, v6, v4
    v_lshlrev_b32 v6, 4, v6
    s_lshl_b32 s30, s26, 6
    v_add_u32 v7, s30, v5
    v_mul_u32_u24 v7, 896, v7
    v_add_u32 v244, v7, v6
    v_xor_b32 v6, 64, v6
    v_add_u32 v245, v7, v6
    v_add_u32 v245, 7168, v245
    v_lshrrev_b32 v6, 1, v5
    v_and_b32 v6, 1, v6
    v_lshlrev_b32 v6, 2, v6
    v_xor_b32 v6, v6, v4
    v_lshlrev_b32 v6, 4, v6
    v_mul_u32_u24 v7, 2688, v5
    v_add_u32 v246, v7, v6
    s_lshl_b32 s30, s25, 7
    v_add_u32 v246, s30, v246
    v_add_u32 v247, 21504, v246
    s_lshl_b32 s32, s29, 11
    s_lshl_b32 s40, s27, 7
    s_mul_i32 s48, s27, {64*2688}
    s_waitcnt lgkmcnt(0)
    """)
    srd(a, 8, P_X, S * D * 2)
    srd(a, 4, P_W, D * 3 * D * 2)
    def issue(j):
        o = []
        for half, (kind, i) in enumerate(stages[j]):
            base = RING0 + slot_of(j) * SLOT + half * 8192
            for e in range(2):
                g = [f's_add_u32 m0, s32, {base + e*1024}']
                if kind == 'x':
                    g.append(f'buffer_load_dwordx4 v{244+e}, s[8:11], s{40+i} offen {XMOD} lds')
                else:
                    so = f's{48+i}'
                    if kind:
                        so = 's37'
                        if e == 0: g.append(f's_add_u32 s37, s{48+i}, {kind*896}')
                    g.append(f'buffer_load_dwordx4 v{246+e}, s[4:7], {so} offen lds')
                o.append(g)
        return o
    vm = []
    def waitfor(tag):
        last = max(i for i, t in enumerate(vm) if t == tag)
        a(f's_waitcnt vmcnt({len(vm) - 1 - last})')
    def em(l, tag='st'):
        a(l)
        if l.startswith('buffer_'): vm.append(tag)
    def issue_now(j):
        for g in issue(j):
            for l in g: em(l, j)
    issue_now(0)
    a(f's_lshl_b32 s36, s21, 2\ns_add_u32 s{P_DS}, s{P_DS}, s36\ns_addc_u32 s{P_DS+1}, s{P_DS+1}, 0\ns_load_dword s39, s[{P_DS}:{P_DS+1}], 0')
    for i in range(1, 7):
        if i == 3: issue_now(1)
        a(f's_add_u32 s27, s27, 1\ns_cmp_eq_u32 s27, 7\ns_cselect_b32 s27, 0, s27\ns_lshl_b32 s{40+i}, s27, 7\ns_mul_i32 s{48+i}, s27, {64*2688}')
    srd(a, 16, P_WS, WS_END)
    srd(a, 12, P_OUT, S * 2 * D * 2)
    a(f"""
    v_lshlrev_b32 v6, 3, v0
    v_sub_u32 v6, 2047, v6
    v_mov_b32 v17, {L_T2}
    v_mov_b32 v18, {TP}
    v_lshlrev_b32 v19, 4, v0
    v_add_u32 v19, {L_TAB}, v19
    s_mov_b32 s36, 0
    """)
    a.label('Q_tab')
    for i in (0, 2):
        a(f"""
        v_subrev_u32 v7, {i}, v6
        v_subrev_u32 v8, {i+1}, v6
        v_cvt_f32_i32 v2, v7
        v_cvt_f32_i32 v5, v8
        v_cvt_pk_bf16_f32 v2, v2, v5
        v_and_b32 v5, 0xffff0000, v2
        v_lshlrev_b32 v2, 16, v2
        v_cvt_i32_f32 v2, v2
        v_cvt_i32_f32 v5, v5
        v_and_b32 v7, 7, v2
        v_and_b32 v8, 7, v5
        v_ashrrev_i32 v2, 3, v2
        v_ashrrev_i32 v5, 3, v5
        v_mad_u32_u24 v2, v7, v18, v2
        v_mad_u32_u24 v5, v8, v18, v5
        v_lshl_add_u32 v{64+i}, v2, 1, v17
        v_lshl_add_u32 v{65+i}, v5, 1, v17
        """)
    a(f"""
    ds_write_b128 v19, v[64:67]
    v_add_u32 v19, 4096, v19
    v_subrev_u32 v6, 4, v6
    s_add_u32 s36, s36, 1
    s_cmp_lt_u32 s36, 3
    s_cbranch_scc1 Q_tab
    v_and_b32 v17, 15, v1
    """)
    ix = lambda p: (p & 7) * TP + (p >> 3)
    def pk(b, s1, s2): assert b < 4096 and s1 < 1024 and s2 < 1024; return b | (s1 << 12) | (s2 << 22)
    t0 = [pk(0, TP, 2*TP), pk(4*TP, TP, 2*TP), None, None]
    a('s_cmp_eq_u32 s63, 0')
    ptab = {0: [[0,1,2,3],[4,5,6,7],[256,258,260,262],[512,516,768,772]],
            1: [[1024,1280,1536,1792],[2048,2304,2304,2304],[2304]*4,[2304]*4]}
    for g in range(4):
        lo = lambda at: ix(ptab[at][g][0]) | (ix(ptab[at][g][1]) << 16)
        hi = lambda at: ix(ptab[at][g][2]) | (ix(ptab[at][g][3]) << 16)
        a(f's_mov_b32 exec_lo, {0xffff << (16*(g%2)) if g < 2 else 0}')
        a(f's_mov_b32 exec_hi, {0xffff << (16*(g%2)) if g >= 2 else 0}')
        a(f's_mov_b32 s36, {lo(1)}\ns_cselect_b32 s36, {lo(0)}, s36\nv_mov_b32 v68, s36')
        a(f's_mov_b32 s36, {hi(1)}\ns_cselect_b32 s36, {hi(0)}, s36\nv_mov_b32 v70, s36')
    a(f"""
    s_mov_b64 exec, -1
    s_lshl_b32 s36, s61, 5
    s_add_u32 s36, s36, {L_T2}
    v_lshl_add_u32 v18, v17, 1, s36
    v_lshrrev_b32 v69, 16, v68
    v_lshrrev_b32 v71, 16, v70
    v_and_b32 v68, 0xffff, v68
    v_and_b32 v70, 0xffff, v70
    v_lshl_add_u32 v68, v68, 1, v18
    v_lshl_add_u32 v69, v69, 1, v18
    v_lshl_add_u32 v70, v70, 1, v18
    v_lshl_add_u32 v71, v71, 1, v18
    ds_write_b128 v19, v[68:71]
    s_and_b32 s27, s3, 1                   ; rt
    s_lshr_b32 s30, s3, 1                  ; cg
    v_and_b32 v3, 31, v1
    v_lshrrev_b32 v4, 5, v1
    s_lshl_b32 s31, s27, 5
    v_add_u32 v5, s31, v3
    v_lshrrev_b32 v6, 1, v5
    v_and_b32 v6, 7, v6
    v_lshlrev_b32 v7, 7, v5
    v_add_u32 v7, {RING0}, v7
    """)
    for st in range(4):
        a(f"""
        v_add_u32 v{56+st}, {2*st}, v4
        v_xor_b32 v{56+st}, v{56+st}, v6
        v_lshl_add_u32 v{56+st}, v{56+st}, 4, v7
        v_add_u32 v{240+st}, 0x10000, v{56+st}
        """)
    a(f"""
    v_and_b32 v6, 3, v1
    v_lshlrev_b32 v6, 3, v6
    v_bfe_u32 v7, v1, 4, 1
    v_lshl_add_u32 v6, v7, 5, v6
    s_lshl_b32 s31, s30, 6
    v_add_u32 v6, s31, v6
    v_bfe_u32 v7, v1, 3, 1
    v_lshlrev_b32 v7, 6, v7
    v_xor_b32 v6, v6, v7
    v_bfe_u32 v7, v1, 2, 2
    v_lshl_add_u32 v7, v4, 3, v7
    v_lshl_add_u32 v60, v7, 7, v6
    v_add_u32 v248, 0x10000, v60
    s_lshl_b32 s31, s26, 1
    s_add_u32 s31, s31, s27
    s_mul_i32 s31, s31, {TILEB}
    s_lshl_b32 s33, s25, 3
    s_lshl_b32 s34, s30, 2
    s_add_u32 s33, s33, s34
    s_lshl_b32 s34, s33, 9
    s_add_u32 s34, s34, s31
    v_lshlrev_b32 v61, 4, v1
    v_add_u32 v61, s34, v61
    s_lshl_b32 s34, s33, 7
    s_add_u32 s34, s34, s31
    v_mul_u32_u24 v62, 7168, v4
    v_lshl_add_u32 v62, v3, 4, v62
    v_add_u32 v62, s34, v62
    s_mov_b32 s35, {f32bits(QSCALE)}
    s_lshl_b32 s60, s25, {FS+5}
    s_lshl_b32 s61, s26, {FS}
    s_add_u32 s60, s60, s61
    s_lshl_b32 s61, s3, 2
    s_add_u32 s60, s60, s61
    s_add_u32 s60, s60, {F1}
    """)
    if PRE_ST >= 3: issue_now(2)
    a('s_waitcnt lgkmcnt(0)')
    stamp(a, 13)
    def reads(j):
        hi = slot_of(j) >= 4
        sb = (slot_of(j) % 4) * SLOT
        n = 0; o = []
        for half, (kind, i) in enumerate(stages[j]):
            base = sb + half * 8192
            if kind == 'x':
                for st in range(4):
                    o.append(f'ds_read_b128 {v(XF + 16*i + 4*st, 4)}, v{(240 if hi else 56) + st} offset:{base}')
            else:
                for st in range(4):
                    r = WB[j % 2][n]; n += 1
                    for e in range(2):
                        o.append(f'ds_read_b64_tr_b16 {v(r + 2*e, 2)}, v{248 if hi else 60} offset:{base + (16*st + 4*e)*128}')
        return o
    started = set()
    def epilogue(kind):
        acc = ACC[kind]; out = []
        if kind == Q_:
            for r in range(16): out.append(f'v_mul_f32 v{acc+r}, s35, v{acc+r}')
        for r in range(8): out.append(f'v_cvt_pk_bf16_f32 v{acc+r}, v{acc+2*r}, v{acc+2*r+1}')
        T = acc
        if kind == V_:
            out.append(f's_mov_b32 s36, {WS_V}')
            out.append(f'buffer_store_dwordx4 {v(T,4)}, v62, s[16:19], s36 offen sc1')
            out.append(f's_mov_b32 s36, {WS_V + 2*7168}')
            out.append(f'buffer_store_dwordx4 {v(T+4,4)}, v62, s[16:19], s36 offen sc1')
        else:
            for q in range(2):
                out.append(f'v_permlane32_swap_b32 v{T+4*q}, v{T+4*q+2}')
                out.append(f'v_permlane32_swap_b32 v{T+4*q+1}, v{T+4*q+3}')
            out.append(f's_mov_b32 s36, {WS_Q if kind == Q_ else WS_K}')
            out.append(f'buffer_store_dwordx4 {v(T,4)}, v61, s[16:19], s36 offen sc1')
            out.append(f'buffer_store_dwordx4 {v(T+4,4)}, v61, s[16:19], s36 offen offset:1024 sc1')
        return out
    def mlist(j):
        n = 0; done = []; o = []
        for half, (kind, i) in enumerate(stages[j]):
            if kind == 'x': continue
            acc = ACC[kind]
            for st in range(4):
                w = WB[j % 2][n]; n += 1
                x = XF + 16*i + 4*st
                c = v(acc, 16) if kind in started else '0'
                started.add(kind)
                if kind == V_: o.append(f'v_mfma_f32_32x32x16_bf16 {v(acc,16)}, {v(x,4)}, {v(w,4)}, {c}')
                else:          o.append(f'v_mfma_f32_32x32x16_bf16 {v(acc,16)}, {v(w,4)}, {v(x,4)}, {c}')
            if i == 6: done.append(kind)
        return o, done
    def weave(ms, rd, fill, dm, tag):
        nm = len(ms)
        slots = max(nm, 4)
        per = -(-len(rd) // max(slots - 2, 1))
        fper = -(-len(fill) // max(nm - 2, 1))
        dper = -(-len(dm) // slots); dstep = max(slots // max(len(dm), 1), 1)
        for k in range(slots):
            if k < nm: a(ms[k])
            if k % dstep == 0:
                for _ in range(dper):
                    if dm:
                        tg, g = dm.pop(0)
                        for l in g: em(l, tg)
            for _ in range(per):
                if rd: a(rd.pop(0))
            if k >= 2:
                for _ in range(fper):
                    if fill: em(fill.pop(0))
        for l in rd + fill: em(l)
    pending = []; carry = []; issued = max(PRE_ST, 2)
    for j in range(NST):
        waitfor(j)
        a('s_barrier')
        if j == 0: stamp(a, 1)
        if 'gemmonly' in DBG and j in GS: stamp(a, 3 + GS.index(j))
        rd = reads(j); ms = []; fill = carry; carry = []
        if j > 0:
            for k in pending: fill += epilogue(k)
            ms, pending = mlist(j - 1)
        dm = []
        for _ in range(MAXI):
            if issued < NST and issued <= j + (DEPTH if j < D2J else DEPTH2):
                dm += [(issued, g) for g in issue(issued)]; issued += 1
        if dm:
            k = next((i for i, l in enumerate(fill) if l.startswith(('buffer_', 's_mov_b32 s36'))), len(fill))
            carry = fill[k:]; fill = fill[:k]
        if len(fill) > FILL_MAX and j < NST - 1:
            carry = fill[FILL_MAX:] + carry; fill = fill[:FILL_MAX]
        weave(ms, rd, fill, dm, j + DEPTH)
        a('s_waitcnt lgkmcnt(0)')
    fill = carry
    for k in pending: fill += epilogue(k)
    ms, pending = mlist(NST - 1)
    weave(ms, [], fill, [], None)
    for k in pending:
        for l in epilogue(k): a(l)
    stamp(a, 2)
    if 'gemmonly' in DBG: a('s_branch P_fin')
    sc_, ve_, lds_ = att_split()
    FL = 252
    gtabs(a)
    kmaddr(a, 0)
    kmskip(a, 0)
    att_poll_addr(a, FL)
    if SIG_CUT < 0:
        a('s_waitcnt vmcnt(0)')
        signal(a, 60, 2, 3)
    a('s_waitcnt lgkmcnt(0)\ns_barrier')
    stamp(a, 3)
    a(f'ds_read_b32 v255, v{CV} offset:8')
    km0 = kmfma(); fc = [l for g in sc_ for l in g]; km = []
    for l in km0:
        km.append(l)
        if l.startswith('ds_read_b128'):
            km += fc[:4]; fc = fc[4:]
    km += fc
    cut = int(len(km) * SIG_CUT)
    cut = max(cut, 0)
    for l in km[:cut]: a(l)
    assert any(l.startswith('s_waitcnt lgkmcnt') for l in km[:cut])
    if SIG_CUT >= 0:
        a('v_readfirstlane_b32 s20, v255')
        a('s_waitcnt vmcnt(0)')
        signal(a, 60, 2, 3)
    for l in km[cut:]: a(l)
    a('s_barrier')
    stamp(a, 14)
    def req():
        a('s_cmp_lg_u32 s3, 0\ns_cbranch_scc1 Q_nq')
        a(f'buffer_load_dwordx4 v[244:247], v{FL}, s[16:19], 0 offen sc1')
        a.label('Q_nq')
    gbuild(a, 0, (0, 1, 2, 3))
    a(f'v_mov_b32 v249, {L_SC}')
    if REQ_POS == 0: req()
    a('s_waitcnt lgkmcnt(0)\ns_barrier')
    stamp(a, 4)
    a('s_setprio 2')
    if REQ_POS == 1: req()
    emit_groups(a, ve_ + att_zero())
    a('s_cmp_lg_u32 s3, 0\ns_cbranch_scc1 Q_w1')
    a('s_waitcnt vmcnt(0)')
    for i in range(4): a(f'v_xor_b32 v{244+i}, s20, v{244+i}')
    a('v_or3_b32 v244, v244, v245, v246\nv_or_b32 v244, v244, v247\nv_cmp_ne_u32 vcc, 0, v244\ns_nop 4\ns_cbranch_vccz Q_w0')
    poll(a, 'PL_f1', FL, 244, x4=True, sleep=A_SLEEP)
    a.label('Q_w0')
    a(f'ds_write_b32 v{CV}, v{C1} offset:12')
    a('s_branch L_pre')
    a.label('Q_w1')
    gwait(a, 12, 1, 2)
    a.label('L_pre')
    stamp(a, 5)
    emit_groups(a, lds_[:10])
    att_first(a, 4)
    emit_groups(a, lds_[10:])
    a('s_setprio 0')
    a('s_branch L_att2')

EB = 176
EA = EB + 56
ET = 96
def ssm_epi_setup(a):
    a(f"""
    v_and_b32 v{ET}, 1, v1                      ; ch
    v_bfe_u32 v{ET+1}, v1, 1, 2                 ; j
    v_lshrrev_b32 v{ET+2}, 3, v1
    v_mul_u32_u24 v{ET+3}, {POWN}, v{ET+1}
    v_mul_u32_u24 v{ET+4}, {PSRC}, v{ET}
    v_add_u32 v{ET+3}, v{ET+3}, v{ET+4}
    v_lshl_add_u32 v{ET+3}, v{ET+2}, 4, v{ET+3}
    s_lshl_b32 s60, s29, 7
    s_add_u32 s36, s60, {L_PART}
    v_add_u32 v{EA}, s36, v{ET+3}
    v_mul_u32_u24 v{ET+2}, 80, v{ET+2}
    v_lshl_add_u32 v{ET+2}, v{ET+1}, 4, v{ET+2}
    v_mul_u32_u24 v{ET+4}, {UCH}, v{ET}
    v_add_u32 v{ET+2}, v{ET+2}, v{ET+4}
    s_mul_i32 s36, s29, 640
    s_add_u32 s36, s36, {L_U + 32*80}
    v_add_u32 v{EA+1}, s36, v{ET+2}             ; u chunk
    s_lshl_b32 s36, s21, 13
    s_lshl_b32 s60, s29, 10
    s_add_u32 s36, s36, s60
    s_add_u32 s36, s36, {WS_YT}
    v_lshl_add_u32 v{EA+2}, v1, 4, s36
    s_lshl_b32 s60, s39, 16
    s_and_b32 s61, s39, 0xffff0000
    v_mov_b32 v{EA+3}, s60
    v_mov_b32 v{ET+4}, s61
    v_cmp_eq_u32 vcc, 1, v{ET}
    v_cndmask_b32 v{EA+3}, v{EA+3}, v{ET+4}, vcc
    """)

def ssm_epi_reads(a):
    for p in range(2):
        E = EB + 28*p; o = p*4*POWN
        a(f"""
        ds_read_b128 {v(E,4)}, v{EA} offset:{o}
        ds_read_b128 {v(E+4,4)}, v{EA} offset:{o+512}
        ds_read_b128 {v(E+8,4)}, v{EA} offset:{o+2*PSRC}
        ds_read_b128 {v(E+12,4)}, v{EA} offset:{o+2*PSRC+512}
        ds_read_b128 {v(E+16,4)}, v{EA+1} offset:{p*2560}
        """)

def ssm_epi(a):
    a('s_mov_b32 s36, 4096')
    for p in range(2):
        A = EB + 28*p; B = A + 8; U = A + 16; C = A + 20
        for e in range(8): a(f'v_add_f32 v{A+e}, v{A+e}, v{B+e}')
        for e in range(4):
            a(f'v_lshlrev_b32 v{C+2*e}, 16, v{U+e}')
            a(f'v_and_b32 v{C+1+2*e}, 0xffff0000, v{U+e}')
        for e in range(8): a(f'v_mul_f32 v{C+e}, v{EA+3}, v{C+e}')
        for e in range(4):
            a(f'v_cvt_pk_bf16_f32 v{B+e}, v{A+2*e}, v{A+1+2*e}')
            a(f'v_cvt_pk_bf16_f32 v{B+4+e}, v{C+2*e}, v{C+1+2*e}')
        for e in range(4):
            a(f'v_lshlrev_b32 v{A+2*e}, 16, v{B+e}')
            a(f'v_and_b32 v{A+1+2*e}, 0xffff0000, v{B+e}')
            a(f'v_lshlrev_b32 v{C+2*e}, 16, v{B+4+e}')
            a(f'v_and_b32 v{C+1+2*e}, 0xffff0000, v{B+4+e}')
        for e in range(8): a(f'v_add_f32 v{A+e}, v{A+e}, v{C+e}')
        for e in range(4): a(f'v_cvt_pk_bf16_f32 v{B+e}, v{A+2*e}, v{A+1+2*e}')
        a(f'buffer_store_dwordx4 {v(B,4)}, v{EA+2}, s[16:19], {"s36" if p else "0"} offen sc1')

def att_ids(a):
    if AMAP == 0:
        a("""
        s_lshl_b32 s40, s22, 1
        s_and_b32 s41, s23, 1
        s_add_u32 s40, s40, s41                ; head
        s_lshr_b32 s41, s23, 1                 ; rbq
        s_mov_b32 s99, s41
        """)
    elif AMAP == 1:
        a("""
        s_lshl_b32 s41, s22, 1
        s_and_b32 s40, s23, 1
        s_lshl_b32 s99, s40, 3
        s_add_u32 s41, s41, s40                ; rbq
        s_lshr_b32 s40, s23, 1                 ; head
        """)
    a("""
    s_mul_i32 s42, s40, 7
    s_lshr_b32 s42, s42, 1                 ; chi0
    """)

def att_poll_addr(a, r):
    att_ids(a)
    a(f"""
    s_lshr_b32 s43, s42, 3
    s_add_u32 s44, s42, 3
    s_lshr_b32 s44, s44, 3
    s_lshl_b32 s43, s43, {FS+5}
    s_lshl_b32 s44, s44, {FS+5}
    v_mov_b32 v{r}, s43
    v_mov_b32 v{r+1}, s44
    v_cmp_lt_u32 vcc, 31, v1
    v_cndmask_b32 v{r}, v{r}, v{r+1}, vcc
    v_and_b32 v{r+1}, 31, v1
    v_lshl_add_u32 v{r}, v{r+1}, {FS}, v{r}
    v_add_u32 v{r}, {F1}, v{r}
    """)

def att_poll(a, name):
    att_poll_addr(a, 16)
    poll(a, name, 16, 20, x4=True, sleep=8)

OL = 120 * 1024; YL = 152 * 1024; RED = 96 * 1024
NB = 4
QF = 16; OA = 32; SB = 64; PB = 96; KB = 112; VB = KB + 8*NB
def advK(a):
    a(f's_add_u32 s33, s33, {TILEB}')
    a('s_cmp_eq_u32 s33, s55')
    a('s_cselect_b32 s33, s54, s33')
def loadK(a, n):
    a(f'buffer_load_dwordx4 {v(KB+8*n,4)}, v3, s[16:19], s33 offen')
    a(f'buffer_load_dwordx4 {v(KB+8*n+4,4)}, v3, s[16:19], s33 offen offset:1024')
def loadV(a, n):
    a('s_mov_b64 exec, s[46:47]')
    a(f'buffer_load_dwordx4 {v(VB+8*n,4)}, v4, s[16:19], s33 offen')
    a(f'buffer_load_dwordx4 {v(VB+8*n+4,4)}, v7, s[16:19], s33 offen')
    a('s_mov_b64 exec, -1')

def att_pre_groups():
    def G(fn, *args):
        t = Asm(); fn(t, *args); return t.lines
    def singles(txt): return [[l] for l in lines(txt)]
    p1 = [[l] for l in G(att_ids)]
    p1 += singles(f"""
    s_and_b32 s24, s3, 1                   ; qg
    s_lshr_b32 s27, s3, 1
    s_cmp_lt_u32 s23, 28
    s_cselect_b32 s34, {NA}, 16
    s_sub_u32 s35, 32, s34
    s_min_u32 s54, s27, 2
    s_mul_i32 s54, s54, s34
    s_cmp_eq_u32 s27, 3
    s_cselect_b32 s55, s35, 0
    s_add_u32 s54, s54, s55
    s_cmp_lt_u32 s3, 4
    s_cselect_b32 s34, s34, s35
    s_lshr_b32 s35, s34, 2
    s_lshl_b32 s96, s42, 9
    v_lshl_add_u32 v3, v1, 4, s96          ; Q/K voffset
    s_lshl_b32 s28, s41, 2
    s_lshl_b32 s31, s24, 1
    s_add_u32 s28, s28, s31
    s_mul_i32 s31, s28, {TILEB}
    s_add_u32 s31, s31, {WS_Q}
    s_add_u32 s30, s31, {TILEB}
    s_mul_i32 s54, s54, {TILEB}
    s_add_u32 s54, s54, {WS_K}
    s_mul_i32 s55, s34, {TILEB}
    s_add_u32 s55, s55, s54
    s_mul_i32 s33, s99, s34
    s_lshr_b32 s33, s33, 4
    s_mul_i32 s33, s33, {TILEB}
    s_add_u32 s33, s33, s54
    buffer_load_dwordx4 {v(QF,4)}, v3, s[16:19], s31 offen
    buffer_load_dwordx4 {v(QF+4,4)}, v3, s[16:19], s31 offen offset:1024
    """)
    p1 += [[l] for l in G(loadK, 0)]
    p1 += singles(f"""
    buffer_load_dwordx4 {v(QF+8,4)}, v3, s[16:19], s30 offen
    buffer_load_dwordx4 {v(QF+12,4)}, v3, s[16:19], s30 offen offset:1024
    v_and_b32 v5, 31, v1
    v_lshrrev_b32 v6, 5, v1
    v_mul_u32_u24 v4, 7168, v6
    v_lshl_add_u32 v4, v5, 4, v4
    s_mul_i32 s97, s40, 448
    s_add_u32 s97, s97, {WS_V - WS_K}
    v_add_u32 v4, s97, v4
    v_add_u32 v7, 14336, v4
    s_mov_b32 s46, 0x0fffffff
    s_mov_b32 s47, 0x0fffffff
    """)
    p2 = []
    for n in range(NB):
        dst = p1 if n == 0 else p2
        if n == 0:
            dst += [['v_cmp_eq_u32 vcc, 28, v5'], ['v_mov_b32 v12, 0x3f803f80'], ['v_cndmask_b32 v12, 0, v12, vcc'], ['v_mov_b32 v13, v12']]
        dst += [[f'v_mov_b64 {v(VB+8*n+r,2)}, v[12:13]'] for r in range(0, 8, 2)]
        if n < NB - 1:
            dst += [G(loadV, n), G(advK)] + [[l] for l in G(loadK, n + 1)]
    p2 += [[l] for l in G(srd, 8, P_WO, D * D * 2)]
    p2 += singles(f"""
    s_lshr_b32 s52, s40, 2
    s_lshl_b32 s53, s41, 2
    s_add_u32 s52, s52, s53
    s_and_b32 s53, s40, 3                  ; cg4
    v_lshrrev_b32 v8, 4, v1
    v_and_b32 v9, 15, v1
    v_lshlrev_b32 v10, 2, v8
    v_xor_b32 v9, v9, v10
    v_lshlrev_b32 v9, 4, v9
    v_mul_u32_u24 v8, 896, v8
    v_add_u32 v8, v8, v9
    s_lshl_b32 s98, s53, 8
    v_add_u32 v8, s98, v8
    s_lshl_b32 s51, s3, 10
    s_mul_i32 s50, s3, 3584
    s_sub_u32 s35, s35, 1
    s_and_b32 s49, s40, 1
    s_cmp_eq_u32 s49, 0
    s_cselect_b32 s43, -1, 0
    s_mov_b32 s42, 0
    s_cselect_b32 s44, 0, -1
    s_mov_b32 s45, 0
    s_lshl_b32 s32, s21, 4
    s_and_b32 s49, s3, 3
    s_lshl_b32 s49, s49, 2
    s_add_u32 s32, s32, s49
    s_add_u32 s32, s32, {F3}
    s_cmp_lt_u32 s23, 28
    s_cselect_b32 s32, s32, {WS_END}
    """)
    allg = p1 + p2
    isld = lambda g: any(l.startswith('buffer_') for l in g) or g[0].startswith(f's_add_u32 s33, s33, {TILEB}')
    setup = [g for g in allg if not isld(g)]
    loads = [g for g in allg if isld(g)]
    return setup, loads

def tail_setup():
    return [[l] for l in lines(f"""
    s_lshl_b32 s36, s24, 14
    s_add_u32 s36, s36, {RED}
    s_lshr_b32 s5, s27, 1
    s_lshl_b32 s5, s5, 15
    s_and_b32 s49, s27, 1
    s_lshl_b32 s49, s49, 11
    s_add_u32 s5, s5, s49
    s_add_u32 s5, s5, s36
    v_lshl_add_u32 v240, v1, 4, s5
    s_lshl_b32 s6, s27, 12
    s_add_u32 s6, s6, s36
    v_lshl_add_u32 v241, v1, 4, s6
    s_or_b32 s7, s27, 1
    s_lshl_b32 s7, s7, 12
    s_add_u32 s7, s7, s36
    s_add_u32 s7, s7, {1024 + 512}
    v_lshl_add_u32 v242, v5, 4, s7
    v_lshlrev_b32 v243, 13, v6
    v_lshl_add_u32 v243, v5, 4, v243
    v_add_u32 v243, {RED + 4096 + 1024 + 512}, v243
    s_and_b32 s36, s27, 1
    s_cmp_eq_u32 s36, 1
    s_cselect_b32 s101, -1, 0
    s_mov_b32 s100, 0
    s_lshr_b32 s4, s27, 1
    s_add_u32 s4, s4, s28
    s_lshl_b32 s4, s4, 15
    s_lshl_b32 s49, s40, 11
    s_add_u32 s4, s4, s49
    s_lshl_b32 s49, s36, 10
    s_add_u32 s4, s4, s49
    s_add_u32 s4, s4, {WS_O}
    s_lshl_b32 s92, s25, 9
    s_add_u32 s92, s92, {F3}
    v_lshl_add_u32 v238, v5, 4, s92
    v_lshlrev_b32 v239, 12, v1
    s_lshl_b32 s93, s25, 18
    s_lshl_b32 s36, s26, 7
    s_add_u32 s93, s93, s36
    s_and_b32 s36, s3, 3
    s_lshl_b32 s36, s36, 5
    s_add_u32 s93, s93, s36
    s_add_u32 s93, s93, {WS_YT}
    """)]

def att_split():
    su, ld = att_pre_groups()
    su = su + tail_setup()
    sc = [g for g in su if g[0].startswith('s_')]
    ve = [g for g in su if not g[0].startswith('s_')]
    return sc, ve, ld

def emit_groups(a, gs):
    for g in gs:
        for l in g: a(l)

def att_zero():
    return [[f'v_mov_b64 {v(OA+r,2)}, 0'] for r in range(0, 32, 2)] + [[f'v_mov_b64 {v(PB+8+r,2)}, 0'] for r in range(0, 8, 2)] + [[f'v_mov_b64 {v(SB+28+r,2)}, 0'] for r in range(0, 4, 2)]

def att_first(a, nout):
    a(f"""
    s_waitcnt vmcnt({nout})
    s_mov_b64 exec, s[42:43]
    v_mov_b32 v{QF+6}, 0
    v_mov_b32 v{QF+7}, 0
    v_mov_b32 v{QF+14}, 0
    v_mov_b32 v{QF+15}, 0
    s_mov_b64 exec, s[44:45]
    v_mov_b32 v{QF+0}, 0
    v_mov_b32 v{QF+1}, 0
    v_mov_b32 v{QF+8}, 0
    v_mov_b32 v{QF+9}, 0
    s_mov_b64 exec, -1
    v_mfma_f32_32x32x16_bf16 {v(SB,16)}, {v(KB,4)}, {v(QF,4)}, 0
    v_mfma_f32_32x32x16_bf16 {v(SB,16)}, {v(KB+4,4)}, {v(QF+4,4)}, {v(SB,16)}
    """)

def ph_att(a):
    a.label('L_att')
    att_first(a, 4*(NB-1))
    a('s_nop 9')
    a.label('L_att2')
    a('v_lshlrev_b32 v2, 4, v1\ns_mov_b32 s37, 0')
    a(f's_cmp_{PRIO_CMP}_u32 s3, 4\ns_cbranch_scc1 A_noprio\ns_setprio 1')
    a.label('A_noprio')
    stamp(a, 6)
    a('.p2align 6')
    def iteration(last):
        vm = [-3]*4 + [-2]*4 + [-1]*4 + (['t']*3 if TLBW else [])
        nwo = [0]
        def wo():
            r = nwo[0]; nwo[0] += 1
            if r == 11:
                return ['s_cmp_eq_u32 s3, 7', 's_cselect_b32 s49, 10, 11', 's_lshl_b32 s48, s49, 13', 's_add_u32 m0, s51, s48', 's_mul_i32 s48, s49, 28672', 's_add_u32 s48, s48, s50', 'buffer_load_dwordx4 v8, s[8:11], s48 offen lds']
            return [f's_add_u32 m0, s51, {r*8192}', f's_add_u32 s48, s50, {r*28672}', 'buffer_load_dwordx4 v8, s[8:11], s48 offen lds']
        for u in range(2*NB):
            t = u % 2
            kn = ((u + 1) // 2) % NB
            vn = ((u - 1) // 2) % NB
            Sn = SB + 16*((u+1) % 2); Sc = SB + 16*(u % 2)
            Pc = PB + 8*(u % 2); Pp = PB + 8*((u+1) % 2)
            Qn = QF + 8*(1-t); On = OA + 16*(1-t)
            ins = {}
            if u % 2 == 1:
                j = (u - 1) // 2
                t1 = Asm(); loadV(t1, (j - 1) % NB); t2 = Asm(); advK(t2); t3 = Asm(); loadK(t3, j % NB)
                if not last:
                    a(f's_waitcnt vmcnt({4*(NB-2)})')
                    ins = {(0, 1): t1.lines, (1, 1): t2.lines, (2, 1): t3.lines[:1], (3, 1): t3.lines[1:]}
                else:
                    need = max(i for i, x in enumerate(vm) if x == j - 3)
                    a(f's_waitcnt vmcnt({len(vm) - 1 - need})')
                    if j == 0: ins[(0, 1)] = t1.lines
            if last and u >= 1 and 'nowo' not in DBG:
                for g in (1, 3):
                    if nwo[0] < 12: ins[(g, 1)] = wo()
            if last and u == PRIO_U: a('s_setprio 0')
            M = [f'v_mfma_f32_32x32x16_bf16 {v(Sn,16)}, {v(KB+8*kn,4)}, {v(Qn,4)}, 0',
                 f'v_mfma_f32_32x32x16_bf16 {v(Sn,16)}, {v(KB+8*kn+4,4)}, {v(Qn+4,4)}, {v(Sn,16)}',
                 f'v_mfma_f32_32x32x16_bf16 {v(On,16)}, {v(VB+8*vn,4)}, {v(Pp,4)}, {v(On,16)}',
                 f'v_mfma_f32_32x32x16_bf16 {v(On,16)}, {v(VB+8*vn+4,4)}, {v(Pp+4,4)}, {v(On,16)}']
            M = [M[2], M[0], M[1], M[3]]
            if last and u == 2*NB - 1: M[1] = M[2] = None
            for g in range(4):
                if M[g]: a(M[g])
                for e in range(4):
                    a(f'v_exp_f32 v{Sc+4*g+e}, v{Sc+4*g+e}')
                    for l in ins.get((g, e), []):
                        a(l)
                        if l.startswith('buffer_'): vm.append('w' if 'lds' in l else 0)
                    if e in (0, 2):
                        h = e // 2
                        if g > 0: a(f'v_cvt_pk_bf16_f32 v{Pc+2*(g-1)+h}, v{Sc+4*(g-1)+2*h}, v{Sc+4*(g-1)+2*h+1}')
                        else:     a(f'v_cvt_pk_bf16_f32 v{Pp+6+h}, v{Sn+12+2*h}, v{Sn+13+2*h}')
    def last_iteration():
        vm = [-3]*4 + [-2]*4 + [-1]*4
        nwo = [0]
        def wo():
            r = nwo[0]; nwo[0] += 1
            if r == 11:
                return ['s_cmp_eq_u32 s3, 7', 's_cselect_b32 s49, 10, 11', 's_lshl_b32 s48, s49, 13', 's_add_u32 m0, s51, s48', 's_mul_i32 s48, s49, 28672', 's_add_u32 s48, s48, s50', 'buffer_load_dwordx4 v8, s[8:11], s48 offen lds']
            return [f's_add_u32 m0, s51, {r*8192}', f's_add_u32 s48, s50, {r*28672}', 'buffer_load_dwordx4 v8, s[8:11], s48 offen lds']
        U = [(1, 3)] + [(0, k) for k in range(4)] + [(1, k) for k in range(4)] + [None]
        needs = {0: -3, 1: -2, 2: -1, 4: 0}
        for u in range(8):
            prev, nxt = U[u], U[u+2]
            Sn = SB + 16*((u+1) % 2); Sc = SB + 16*(u % 2)
            Pc = PB + 8*(u % 2); Pp = PB + 8*((u+1) % 2)
            ins = {}
            if u in needs:
                k = max(i for i, x in enumerate(vm) if x == needs[u])
                a(f's_waitcnt vmcnt({len(vm) - 1 - k})')
            if u == 1:
                t1 = Asm(); loadV(t1, NB - 1); ins[(0, 1)] = t1.lines
            if 1 <= u <= 4:
                for g in (1, 2, 3): ins[(g, 1)] = wo()
            if u >= 6:
                for g in (1, 3):
                    n = 2*(u - 6) + g // 2
                    ins[(g, 1)] = [f'ds_write_b128 v240, {v(OA + 4*n, 4)} offset:{(n//2)*4096 + (n%2)*1024}']
            if u == PRIO_U: a('s_setprio 0')
            On = OA + 16*prev[0]
            M = [f'v_mfma_f32_32x32x16_bf16 {v(On,16)}, {v(VB+8*prev[1],4)}, {v(Pp,4)}, {v(On,16)}', None, None,
                 f'v_mfma_f32_32x32x16_bf16 {v(On,16)}, {v(VB+8*prev[1]+4,4)}, {v(Pp+4,4)}, {v(On,16)}']
            if nxt:
                Qn = QF + 8*nxt[0]
                M[1] = f'v_mfma_f32_32x32x16_bf16 {v(Sn,16)}, {v(KB+8*nxt[1],4)}, {v(Qn,4)}, 0'
                M[2] = f'v_mfma_f32_32x32x16_bf16 {v(Sn,16)}, {v(KB+8*nxt[1]+4,4)}, {v(Qn+4,4)}, {v(Sn,16)}'
            for g in range(4):
                if M[g]: a(M[g])
                for e in range(4):
                    a(f'v_exp_f32 v{Sc+4*g+e}, v{Sc+4*g+e}')
                    for l in ins.get((g, e), []):
                        a(l)
                        if l.startswith('buffer_'): vm.append('w' if 'lds' in l else 0)
                    if e in (0, 2):
                        h = e // 2
                        if g > 0: a(f'v_cvt_pk_bf16_f32 v{Pc+2*(g-1)+h}, v{Sc+4*(g-1)+2*h}, v{Sc+4*(g-1)+2*h+1}')
                        else:     a(f'v_cvt_pk_bf16_f32 v{Pp+6+h}, v{Sn+12+2*h}, v{Sn+13+2*h}')
        assert nwo[0] == 12
    a.label('A_loop')
    iteration(False)
    a(f"""
    s_add_u32 s37, s37, 1
    s_cmp_eq_u32 s37, s35
    s_cbranch_scc1 A_last
    s_cmp_lg_u32 s37, 1
    s_cbranch_scc1 A_loop
    s_cmp_lt_u32 s3, 4
    s_cbranch_scc1 A_loop
    """)
    signal(a, 32, 9, 10)
    a('s_branch A_loop')
    a.label('A_last')
    a(f's_cmp_lg_u32 s32, {WS_END}\ns_cbranch_scc1 A_l0\ns_setprio 0\ns_branch A_l2')
    a.label('A_l0')
    a('s_cmp_lt_u32 s3, 4\ns_cbranch_scc1 A_l1')
    a('buffer_load_dwordx4 v[196:199], v238, s[16:19], 0 offen sc1')
    a.label('A_l1')
    gwait(a, 0, 8, 9, 249)
    a.label('A_l2')
    if TLBW:
        a(f"""
        s_mul_i32 s36, s52, {32*1792}
        s_min_u32 s49, s26, 31
        s_mul_i32 s49, s49, {64*1792}
        s_lshl_b32 s48, s52, 15
        s_add_u32 s48, s48, {WS_O}
        s_and_b32 s48, s48, 0xffe00000
        s_mov_b64 exec, 1
        buffer_load_dword v204, off, s[12:15], s36
        buffer_load_dword v205, off, s[12:15], s49
        buffer_load_dword v206, off, s[16:19], s48
        s_mov_b64 exec, -1
        """)
    last_iteration()
    a.label('A_exit')
    a('s_setprio 0')
    stamp(a, 7)
    a(f'v_cvt_pk_bf16_f32 v{PB+14}, v{SB+28}, v{SB+29}')
    a(f'v_cvt_pk_bf16_f32 v{PB+15}, v{SB+30}, v{SB+31}')
    a(f'v_mfma_f32_32x32x16_bf16 {v(OA+16,16)}, {v(VB+8*(NB-1),4)}, {v(PB+8,4)}, {v(OA+16,16)}')
    a(f'v_mfma_f32_32x32x16_bf16 {v(OA+16,16)}, {v(VB+8*(NB-1)+4,4)}, {v(PB+12,4)}, {v(OA+16,16)}')
    a('s_mov_b32 s94, 0')
    a('s_cmp_ge_u32 s23, 28\ns_cbranch_scc1 A_red2\ns_cmp_lt_u32 s3, 4\ns_cbranch_scc1 A_red2')
    for i in range(4): a(f'v_xor_b32 v{196+i}, s20, v{196+i}')
    a('v_or3_b32 v196, v196, v197, v198\nv_or_b32 v196, v196, v199\nv_cmp_ne_u32 vcc, 0, v196')
    a('s_add_u32 s92, s93, 16\ns_nop 3\ns_cbranch_vccz A_y')
    poll(a, 'PL_f3', 238, 196, x4=True)
    a.label('A_y')
    a('buffer_load_dwordx4 v[196:199], v239, s[16:19], s93 offen')
    a('buffer_load_dwordx4 v[212:215], v239, s[16:19], s92 offen')
    a.label('A_red2')
    for own in range(2, 4):
        for q in range(2):
            a(f'ds_write_b128 v240, {v(OA + 8*own + 4*q, 4)} offset:{own*4096 + q*1024}')
    a('s_waitcnt lgkmcnt(0)\ns_barrier')
    R = 64
    so = lambda src: (src >> 1) * 32768 + (src & 1) * 2048
    for src in range(4):
        a(f'ds_read_b32 v{12+src}, v242 offset:{so(src)}')
    for src in range(4):
        for q in range(2):
            a(f'ds_read_b128 {v(R + 8*src + 4*q, 4)}, v241 offset:{so(src) + q*1024}')
    a(f"""
    s_waitcnt lgkmcnt(8)
    v_add_f32 v12, v12, v13
    v_add_f32 v14, v14, v15
    v_add_f32 v12, v12, v14
    v_rcp_f32 v12, v12
    s_waitcnt lgkmcnt(0)
    """)
    a('v_cndmask_b32 v13, v12, 0, s[100:101]')
    for r in range(0, 8, 2):
        a(f'v_pk_add_f32 {v(R+r,2)}, {v(R+r,2)}, {v(R+8+r,2)}')
        a(f'v_pk_add_f32 {v(R+16+r,2)}, {v(R+16+r,2)}, {v(R+24+r,2)}')
    for r in range(0, 8, 2): a(f'v_pk_add_f32 {v(R+r,2)}, {v(R+r,2)}, {v(R+16+r,2)}')
    for r in range(0, 8, 2):
        sel = 0 if r < 4 else 1
        a(f'v_pk_mul_f32 {v(R+r,2)}, {v(R+r,2)}, v[12:13] op_sel:[0,{sel}] op_sel_hi:[1,{sel}]')
    for r in range(4): a(f'v_cvt_pk_bf16_f32 v{R+8+r}, v{R+2*r}, v{R+2*r+1}')
    a(f'buffer_store_dwordx4 {v(R+8,4)}, v2, s[16:19], s4 offen sc1')
    stamp(a, 8)
    for qg in range(2):
        for src in range(4):
            a(f'ds_read_b32 v{80+4*qg+src}, v243 offset:{qg*16384 + so(src)}')
    a(f"""
    s_mov_b32 s36, {f32bits(2.0**-30)}
    s_mov_b32 s37, {f32bits(2.0**40)}
    s_waitcnt lgkmcnt(0)
    v_add_f32 v80, v80, v81
    v_add_f32 v82, v82, v83
    v_add_f32 v84, v84, v85
    v_add_f32 v86, v86, v87
    v_add_f32 v80, v80, v82
    v_add_f32 v84, v84, v86
    v_cmp_nle_f32 vcc, s36, v80
    v_cmp_nge_f32 s[42:43], s37, v80
    v_cmp_nle_f32 s[44:45], s36, v84
    v_cmp_nge_f32 s[60:61], s37, v84
    s_or_b64 s[42:43], s[42:43], vcc
    s_or_b64 s[44:45], s[44:45], s[60:61]
    s_or_b64 s[42:43], s[42:43], s[44:45]
    s_cbranch_scc1 A_slow
    """)
    a.label('A_done')

def ph_slow(a):
    MX = 192
    a.label('A_slow')
    a(f"""
    s_cmp_lg_u32 s94, 0
    s_cbranch_scc1 A_done
    s_waitcnt vmcnt(0)
    s_barrier
    v_mov_b32 v{MX}, 0xff800000
    v_mov_b32 v{MX+1}, 0xff800000
    """)
    for r in range(0, 32, 2): a(f'v_mov_b64 {v(OA+r,2)}, 0')
    a.label('AS_pass')
    a('s_mov_b32 s37, 0')
    a.label('AS_tile')
    loadK(a, 0); loadV(a, 0); advK(a)
    a('s_waitcnt vmcnt(0)')
    for t in range(2):
        Sx = SB + 16*t
        a(f'v_mfma_f32_32x32x16_bf16 {v(Sx,16)}, {v(KB,4)}, {v(QF+8*t,4)}, 0')
        a(f'v_mfma_f32_32x32x16_bf16 {v(Sx,16)}, {v(KB+4,4)}, {v(QF+8*t+4,4)}, {v(Sx,16)}')
    a('s_nop 15\ns_cmp_lg_u32 s94, 0\ns_cbranch_scc1 AS_p1')
    for t in range(2):
        for r in range(0, 16, 2): a(f'v_max3_f32 v{MX+t}, v{SB+16*t+r}, v{SB+16*t+r+1}, v{MX+t}')
    a('s_branch AS_next')
    a.label('AS_p1')
    for t in range(2):
        Sx = SB + 16*t; Px = PB + 8*t
        for r in range(16): a(f'v_sub_f32 v{Sx+r}, v{Sx+r}, v{MX+t}')
        for r in range(16): a(f'v_exp_f32 v{Sx+r}, v{Sx+r}')
        for r in range(8): a(f'v_cvt_pk_bf16_f32 v{Px+r}, v{Sx+2*r}, v{Sx+2*r+1}')
        a(f'v_mfma_f32_32x32x16_bf16 {v(OA+16*t,16)}, {v(VB,4)}, {v(Px,4)}, {v(OA+16*t,16)}')
        a(f'v_mfma_f32_32x32x16_bf16 {v(OA+16*t,16)}, {v(VB+4,4)}, {v(Px+4,4)}, {v(OA+16*t,16)}')
    a.label('AS_next')
    a(f"""
    s_nop 15
    s_add_u32 s37, s37, 1
    s_cmp_lt_u32 s37, s34
    s_cbranch_scc1 AS_tile
    s_cmp_lg_u32 s94, 0
    s_cbranch_scc1 AS_out
    s_lshl_b32 s36, s24, 11
    s_add_u32 s36, s36, {RED}
    s_lshl_b32 s38, s27, 9
    s_add_u32 s38, s38, s36
    v_lshl_add_u32 v9, v1, 3, s38
    ds_write_b64 v9, {v(MX,2)}
    v_lshl_add_u32 v9, v5, 3, s36
    s_waitcnt lgkmcnt(0)
    s_barrier
    """)
    for k in range(8): a(f'ds_read_b64 {v(SB+2*k,2)}, v9 offset:{256*k}')
    a('s_waitcnt lgkmcnt(0)')
    for t in range(2):
        for k in range(0, 8, 2): a(f'v_max3_f32 v{MX+t}, v{SB+2*k+t}, v{SB+2*k+2+t}, v{MX+t}')
    a('s_mov_b32 s94, 1\ns_barrier\ns_branch AS_pass')
    a.label('AS_out')
    for own in range(2):
        for q in range(2):
            a(f'ds_write_b128 v240, {v(OA + 8*own + 4*q, 4)} offset:{own*4096 + q*1024}')
    a('s_branch A_red2')

L_RDY = 118784
def y_piece(a):
    a(f"""
    s_cmp_ge_u32 s23, 28
    s_cbranch_scc1 P_noy
    s_lshl_b32 s36, s29, 11
    s_add_u32 s36, s36, {YL}
    v_add_u32 v203, s36, v2
    ds_write_b128 v203, v[196:199]
    ds_write_b128 v203, v[212:215] offset:1024
    v_lshrrev_b32 v17, 4, v1
    v_and_b32 v18, 3, v1
    v_lshl_add_u32 v17, v17, 2, v18
    v_and_b32 v18, 7, v17
    v_lshrrev_b32 v17, 3, v17
    v_bfe_u32 v19, v1, 2, 2
    v_lshl_add_u32 v18, v18, 3, v19
    v_lshlrev_b32 v18, 4, v18
    v_lshl_add_u32 v18, v17, 3, v18
    v_add_u32 v204, s36, v18
    s_waitcnt lgkmcnt(0)
    ds_read_b64_tr_b16 v[208:209], v204
    ds_read_b64_tr_b16 v[210:211], v204 offset:64
    ds_read_b64_tr_b16 v[216:217], v204 offset:1024
    ds_read_b64_tr_b16 v[218:219], v204 offset:1088
    v_and_b32 v19, 3, v1
    v_lshl_add_u32 v19, v6, 2, v19
    s_lshl_b32 s36, s26, 6
    s_lshl_b32 s37, s29, 4
    s_add_u32 s36, s36, s37
    v_add_u32 v19, s36, v19
    v_mul_u32_u24 v19, 1792, v19
    v_bfe_u32 v17, v1, 2, 3
    v_lshl_add_u32 v205, v17, 4, v19
    s_lshl_b32 s93, s25, 7
    s_add_u32 s93, s93, 896
    s_add_u32 s92, s93, {8*1792}
    s_waitcnt lgkmcnt(0)
    buffer_store_dwordx4 v[208:211], v205, s[12:15], s93 offen {YMOD}
    buffer_store_dwordx4 v[216:219], v205, s[12:15], s92 offen {YMOD}
    """)
    a.label('P_noy')

def ph_out(a):
    a(f"""
    s_and_b32 s29, s3, 3
    v_mov_b32 v15, {L_RDY}
    s_cmp_ge_u32 s3, 4
    s_cbranch_scc1 P_fetch
    ; ---------------- waves 0..3
    s_lshl_b32 s36, s41, {F2S+4}
    s_lshr_b32 s37, s40, 2
    s_lshl_b32 s37, s37, {F2S}
    s_add_u32 s36, s36, s37
    s_and_b32 s37, s40, 3
    s_lshl_b32 s37, s37, 2
    s_add_u32 s36, s36, s37
    s_add_u32 s36, s36, {F2}
    v_lshl_add_u32 v28, v1, {F2S+2}, s36
    v_mov_b32 v29, s20
    v_bfe_u32 v7, v1, 2, 2
    v_xor_b32 v12, s29, v7
    v_lshlrev_b32 v12, 6, v12
    v_bfe_u32 v9, v1, 4, 1
    v_lshl_add_u32 v12, v9, 5, v12
    v_and_b32 v9, 3, v1
    v_lshl_add_u32 v12, v9, 3, v12
    v_lshl_add_u32 v9, v6, 2, v7
    v_lshl_add_u32 v12, v9, 8, v12
    v_add_u32 v13, {224*256}, v12          ; heads 8..15
    s_waitcnt vmcnt(0)
    s_barrier
    """)
    ACC = 224; WF = 32; OF = 160
    def wread(hd):
        for f in range(2):
            for e in range(2):
                row = 28*hd + 16*f + 8*e - (224 if hd >= 8 else 0)
                a(f'ds_read_b64_tr_b16 {v(WF + 8*hd + 4*f + 2*e, 2)}, v{13 if hd >= 8 else 12} offset:{row*256}')
    a('s_lshl_b64 exec, 1, s3\nbuffer_store_dword v29, v28, s[16:19], 0 offen sc1\ns_mov_b64 exec, -1')
    stamp(a, 9)
    for hd in range(13): wread(hd)
    a(f"""
    v_add_u32 v10, {OL}, v2
    s_lshl_b32 s36, s52, 5
    v_add_u32 v11, s36, v5
    v_mul_u32_u24 v11, 1792, v11
    v_lshl_add_u32 v11, v6, 4, v11
    s_lshl_b32 s30, s53, 2
    s_add_u32 s30, s30, s29
    s_lshl_b32 s32, s30, 6
    """)
    a('s_cmp_ge_u32 s30, 14\ns_cbranch_scc1 P_fin')
    stamp(a, 10)
    a(f'v_lshl_add_u32 v14, v1, 2, v15')
    def need(g):
        a('s_waitcnt lgkmcnt(0)')
        a.label(f'P_n{g}')
        a(f'v_cmp_eq_u32 vcc, s20, v28\ns_nop 1\ns_bitcmp1_b32 vcc_lo, {g}\ns_cbranch_scc0 P_r{g}')
        a.label(f'P_g{g}')
    def mf(g):
        for n in range(8):
            c = '0' if (g == ORD[0] and n == 0) else v(ACC, 16)
            a(f'v_mfma_f32_32x32x16_bf16 {v(ACC,16)}, {v(WF + 32*g + 4*n,4)}, {v(OF + 32*(ORD.index(g)%2) + 4*n,4)}, {c}')
    ORD = [0, 1, 2, 3]
    a('ds_read_b32 v28, v14')
    for i, g in enumerate(ORD):
        need(g)
        for n in range(8): a(f'ds_read_b128 {v(OF + 32*(i%2) + 4*n, 4)}, v10 offset:{g*8192 + n*1024}')
        if g == 3:
            for hd in range(13, 16): wread(hd)
        if i < 3: a('ds_read_b32 v28, v14')
        if i > 0: mf(ORD[i-1])
    a('s_waitcnt lgkmcnt(0)')
    mf(ORD[3])
    a.label('P_epi')
    stamp(a, 11)
    T = 40
    for r in range(8): a(f'v_cvt_pk_bf16_f32 v{T+r}, v{ACC+2*r}, v{ACC+2*r+1}')
    for q in range(2):
        a(f'v_permlane32_swap_b32 v{T+4*q}, v{T+4*q+2}')
        a(f'v_permlane32_swap_b32 v{T+4*q+1}, v{T+4*q+3}')
    a(f'buffer_store_dwordx4 {v(T,4)}, v11, s[12:15], s32 offen {OMOD}')
    a(f'buffer_store_dwordx4 {v(T+4,4)}, v11, s[12:15], s32 offen offset:32 {OMOD}')
    a('s_branch P_fin')
    for g in range(4):
        a.label(f'P_r{g}')
        a(f'ds_read_b32 v28, v14\ns_add_u32 s95, s95, 1\ns_cmp_lt_u32 s95, 0x2000000\ns_waitcnt lgkmcnt(0)\ns_cbranch_scc1 P_n{g}\ns_branch P_g{g}')
    a.label('P_fetch')
    a(f"""
    s_lshl_b32 s37, s52, {F2S+2}
    s_lshl_b32 s38, s29, {F2S}
    s_add_u32 s37, s37, s38
    s_add_u32 s37, s37, {F2}
    v_lshl_add_u32 v16, v1, 2, s37
    s_mov_b64 exec, 0xf
    buffer_load_dword v17, v16, s[16:19], 0 offen sc1
    s_mov_b64 exec, -1
    s_lshl_b32 s38, s52, 15
    s_lshl_b32 s39, s29, 13
    s_add_u32 s38, s38, s39
    s_add_u32 s38, s38, {WS_O}
    s_add_u32 s39, s39, {OL}
    s_lshl_b32 s37, s29, 2
    v_add_u32 v15, s37, v15
    v_mov_b32 v14, s20
    s_waitcnt vmcnt(1)
    s_barrier
    s_waitcnt vmcnt(0)
    v_cmp_ne_u32 s[44:45], s20, v17
    """)
    stamp(a, 9)
    a(f's_cmp_lg_u32 s3, 7\ns_cbranch_scc1 P_nowo\ns_mov_b32 s48, {95*1024}\ns_mov_b32 s50, {95*3584}')
    a.label('P_wo')
    a(f"""
    s_mov_b32 m0, s48
    s_add_u32 s48, s48, 1024
    buffer_load_dwordx4 v8, s[8:11], s50 offen lds
    s_add_u32 s50, s50, 3584
    s_cmp_le_u32 s50, {D*D*2}
    s_cbranch_scc1 P_wo
    """)
    a.label('P_nowo')
    if PIPE_POLL:
        a('s_mov_b64 exec, 0xf\ns_mov_b32 s62, 0')
        for k in range(PIPE_POLL - 1):
            a(f'buffer_load_dword v{20+k}, v16, s[16:19], 0 offen sc1\ns_sleep {F2_SLEEP}')
        a.label('PL_f2')
        for k in range(PIPE_POLL):
            a(f'buffer_load_dword v{20+(k+PIPE_POLL-1)%PIPE_POLL}, v16, s[16:19], 0 offen sc1')
            a(f's_waitcnt vmcnt({PIPE_POLL-1})')
            a(f'v_cmp_ne_u32 vcc, s20, v{20+k}\ns_nop 4\ns_cbranch_vccz PL_f2_ok\ns_sleep {F2_SLEEP}')
        a(f's_add_u32 s62, s62, 1\ns_cmp_lt_u32 s62, {POLL_LIMIT}\ns_cbranch_scc1 PL_f2')
        a.label('PL_f2_ok')
        a('s_mov_b64 exec, -1')
    else:
        a('s_and_b32 s44, s44, 15\ns_cbranch_scc0 PL_f2_ok')
        poll(a, 'PL_f2', 16, 17, mask=0xf, sleep=F2_SLEEP)
    stamp(a, 10)
    for hlf in range(2):
        a(f's_add_u32 m0, s39, {hlf*4096}')
        if hlf: a('s_add_u32 s38, s38, 4096')
        else: a('s_nop 0')
        for n in range(4): a(f'buffer_load_dwordx4 v2, s[16:19], s38 offen offset:{n*1024} sc1 lds')
    a('s_waitcnt vmcnt(0)\nds_write_b32 v15, v14')
    stamp(a, 11)
    y_piece(a)
    a('s_cmp_lg_u32 s2, 240\ns_cbranch_scc1 P_fin\ns_cmp_lg_u32 s3, 4\ns_cbranch_scc1 P_fin')
    a(f'v_lshlrev_b32 v16, {F2S}, v5\nv_add_u32 v16, {F2 + (56 << (F2S+2))}, v16')
    poll(a, 'PL_ep', 16, 20, x4=True, sleep=2)
    a(f's_mov_b32 s36, {EPOCH}')
    signal(a, 36, 16, 17)
    a.label('P_fin')

def kernel(a):
    if STAMPS or DIAG >= 0:
        a('v_mov_b32 v254, 0')
        stamp(a, 0)
    prologue(a)
    ph_front(a)
    ph_att(a)
    ph_out(a)
    if DIAG >= 0:
        a('s_waitcnt vmcnt(0)')
        stamp(a, 12)
        a(f"""
        s_cmp_lg_u32 s3, {int(os.environ.get('DIAGW', 0))}
        s_cbranch_scc1 L_end
        s_cmp_ge_u32 s23, 28
        s_cbranch_scc1 L_end
        v_readlane_b32 s36, v254, 0
        v_readlane_b32 s37, v254, {DIAG}
        s_memrealtime s[90:91]
        s_waitcnt lgkmcnt(0)
        s_sub_u32 s36, s37, s36
        s_min_u32 s36, s36, 10000
        s_mov_b32 s37, s90
        """)
        a.label('D_spin')
        a("""
        s_memrealtime s[90:91]
        s_waitcnt lgkmcnt(0)
        s_sub_u32 s38, s90, s37
        s_cmp_lt_u32 s38, s36
        s_cbranch_scc1 D_spin
        """)
    if STAMPS:
        a('s_waitcnt vmcnt(0)')
        stamp(a, 12)
        a(f"""
        s_mov_b32 s18, {WS_STAMP + (1<<20)}
        s_lshl_b32 s36, s2, 3
        s_add_u32 s36, s36, s3
        s_lshl_b32 s36, s36, 6
        s_add_u32 s36, s36, {WS_STAMP}
        v_lshl_add_u32 v2, v1, 2, s36
        s_mov_b64 exec, 0xffff
        buffer_store_dword v254, v2, s[16:19], 0 offen
        s_cmp_lg_u32 s2, 100
        s_cbranch_scc1 L_end
        s_cmp_lg_u32 s3, 0
        s_cbranch_scc1 L_end
        v_readfirstlane_b32 s36, v254
        v_lshlrev_b32 v2, 2, v1
        v_subrev_u32 v254, s36, v254
        s_mov_b64 exec, 0x7ffe
        """)
        srd(a, 56, P_DBG, 256)
        a('buffer_store_dword v254, v2, s[56:59], 0 offen')
    a.label('L_end')
    a('s_endpgm')
    ph_slow(a)


DOC = """
; ---------------------------------------------------------------------------------------------
; ---------------------------------------------------------------------------------------------"""

def build(path):
    hdr = open(f'cdna_kernels/{NAME}.s.ref').read().split('\n')
    out = [l for l in hdr if l.startswith(';') and '@launch' not in l][:16]
    out.append(f'; @launch grid=(256,1,1) block=(512,1,1) lds={LDS_TOTAL}')
    out.append('.amdgcn_target "amdgcn-amd-amdhsa--gfx950"')
    out.append('.text')
    out.append(DOC.strip())
    label = NAME + '_kernel'
    a = Asm(); kernel(a)
    txt = '\n'.join(out) + f'\n.globl {label}\n.p2align 8\n.type {label},@function\n{label}:\n' + a.finalize()
    txt += f'''.section .rodata,"a"
.p2align 6
.amdhsa_kernel {label}
  .amdhsa_next_free_vgpr 256
  .amdhsa_next_free_sgpr 102
  .amdhsa_accum_offset 256
  .amdhsa_group_segment_fixed_size 0
  .amdhsa_kernarg_size 104
  .amdhsa_user_sgpr_count 2
  .amdhsa_user_sgpr_kernarg_segment_ptr 1
  .amdhsa_system_sgpr_workgroup_id_x 1
.end_amdhsa_kernel
'''
    open(path, 'w').write(txt)

if __name__ == '__main__':
    if '--stamps' in sys.argv: STAMPS = True; sys.argv.remove('--stamps')
    path = sys.argv[1] if len(sys.argv) > 1 else f'cdna_kernels/{NAME}.s'
    build(path)
    import subprocess
    subprocess.run(['clang', '-x', 'assembler', '-target', 'amdgcn-amd-amdhsa', '-mcpu=gfx950', '-c', path, '-o', '_sz.o'], check=True)
    hdr = subprocess.run(['llvm-objdump', '-h', '_sz.o'], capture_output=True, text=True).stdout
    size = int([l for l in hdr.splitlines() if '.text' in l][0].split()[2], 16)
    CODE_KB[0] = size // 1024 - 1
    _gw[0] = 0; _jc[0] = 0
    build(path)
    print('code bytes', size)
```
